```python
import torch

def _softmax(x, axis=-1):
    return torch.softmax(x, dim=axis)
def _gelu(x):
    return torch.nn.functional.gelu(x, approximate="tanh")
def _silu(x):
    return torch.nn.functional.silu(x)
def _sigmoid(x):
    return torch.sigmoid(x)
def _layernorm(x, axis=-1, eps=1e-5):
    m = x.mean(dim=axis, keepdim=True)
    v = x.var(dim=axis, keepdim=True, unbiased=False)
    return (x - m) / torch.sqrt(v + eps)
def _scatter_add(tgt, idx, src, axis=0):
    return tgt.clone().index_add_(axis, idx, src)
def _segment_sum(src, seg, n):
    out = torch.zeros((n,) + src.shape[1:], dtype=src.dtype)
    return out.index_add_(0, seg, src)
def _pad(x, pw):
    flat = tuple(v for pair in reversed(pw) for v in pair)
    return torch.nn.functional.pad(x, flat)

kernel_name = 'gated_mix__spectral_gfnet__spectral_gfnet__prompt'

def setup_inputs():

    _w = (lambda a: (lambda t: t.to(torch.bfloat16) if t.is_floating_point() else t)(torch.as_tensor(a)))
    def _A_setup():
        B, S, D = 1, 2048, 1024
        Df = D // 2 + 1
        return {
            "x": _w((lambda *s: torch.randn(*s, dtype=torch.bfloat16) * 0.05)(B, S, D)),
            "w_r": _w((lambda *s: torch.randn(*s, dtype=torch.bfloat16) * 0.05)(S, Df) * 0.02),
            "w_i": _w((lambda *s: torch.randn(*s, dtype=torch.bfloat16) * 0.05)(S, Df) * 0.02),
        }
    _A_in = _A_setup()

    def _B_setup():
        B, S, D = 1, 2048, 1024
        Df = D // 2 + 1
        return {
            "x": _w((lambda *s: torch.randn(*s, dtype=torch.bfloat16) * 0.05)(B, S, D)),
            "w_r": _w((lambda *s: torch.randn(*s, dtype=torch.bfloat16) * 0.05)(S, Df) * 0.02),
            "w_i": _w((lambda *s: torch.randn(*s, dtype=torch.bfloat16) * 0.05)(S, Df) * 0.02),
        }
    _B_in = _B_setup()

    return {
        "A_x": _A_in["x"],
        "A_w_r": _A_in["w_r"],
        "A_w_i": _A_in["w_i"],
        "B_x": _B_in["x"],
        "B_w_r": _B_in["w_r"],
        "B_w_i": _B_in["w_i"],
        "gate_w": _w((lambda *s: torch.randn(*s, dtype=torch.bfloat16) * 0.05)(1024) * 16.0),
    }

def reference(A_x, A_w_r, A_w_i, B_x, B_w_r, B_w_i, gate_w):
    def _A_ref(x, w_r, w_i):
        B, S, D = x.shape
        X = (lambda x, axes=(-2,-1): torch.fft.rfft2(x.float(), dim=axes))(x, axes=(-2, -1))
        W = w_r + 1j * w_i
        X = X * W
        y = (lambda x, s, axes=(-2,-1): torch.fft.irfft2(x, s=s, dim=axes).to(torch.bfloat16))(X, (S, D), axes=(-2, -1))
        return y

    def _B_ref(x, w_r, w_i):
        B, S, D = x.shape
        X = (lambda x, axes=(-2,-1): torch.fft.rfft2(x.float(), dim=axes))(x, axes=(-2, -1))
        W = w_r + 1j * w_i
        X = X * W
        y = (lambda x, s, axes=(-2,-1): torch.fft.irfft2(x, s=s, dim=axes).to(torch.bfloat16))(X, (S, D), axes=(-2, -1))
        return y

    x = A_x
    g = _sigmoid((x * gate_w).sum(-1, keepdims=True))
    a = _A_ref(x, A_w_r, A_w_i)
    b = _B_ref(x, B_w_r, B_w_i)
    return g * a + (1 - g) * b
```

```python
import re, struct
def f2u(x): return struct.unpack("<I", struct.pack("<f", x))[0]
def hx(x): return "0x%08x" % (x & 0xffffffff)
def fl(x):
    inl = {0.0: "0", 0.5: "0.5", -0.5: "-0.5", 1.0: "1.0", -1.0: "-1.0", 2.0: "2.0", -2.0: "-2.0", 4.0: "4.0", -4.0: "-4.0"}
    if x in inl: return inl[x]
    return hx(f2u(x))
TRANS = ("v_exp_f32", "v_log_f32", "v_rcp_f32", "v_rsq_f32", "v_sqrt_f32", "v_sin_f32", "v_cos_f32")
def regs_of(op, kind):
    out = set()
    op = op.strip()
    op = re.sub(r"^(-|abs\(|\|)+", "", op)
    m = re.match(r"^%s\[(\d+):(\d+)\]" % kind, op)
    if m: return set(range(int(m.group(1)), int(m.group(2)) + 1))
    m = re.match(r"^%s(\d+)\b" % kind, op)
    if m: return {int(m.group(1))}
    if kind == 's':
        if op.startswith("vcc"): return {106, 107}
        if op == "m0": return {124}
        if op.startswith("exec"): return {126, 127}
    return out
class Asm:
    def __init__(self):
        self.lines = []; self.hist = []; self.maxv = 0; self.maxs = 0; self.nops = 0
    def raw(self, t): self.lines.append(t)
    def label(self, l):
        self.lines.append(l + ":")
    def comment(self, t): self.lines.append("    ; " + t)
    def flush_hazards(self, n=12):
        self("s_nop %d" % (n - 1))
    def __call__(self, text):
        text = text.strip()
        parts = text.split(None, 1)
        mn = parts[0]; rest = parts[1] if len(parts) > 1 else ""
        ops = [o.strip() for o in re.split(r",(?![^\[]*\])", rest)] if rest else []
        if ops:
            last = ops[-1].split()
            mods = last[1:]; ops[-1] = last[0] if last else ""
        else: mods = []
        info = dict(mn=mn, vw=set(), vr=set(), sw=set(), sr=set(), cls="other", srcc=set(), ab=set(), passes=0, states=1, sdata=set())
        isv = mn.startswith("v_")
        if mn == "s_nop": info["states"] = int(ops[0], 0) + 1
        elif mn.startswith("v_mfma"):
            info["cls"] = "mfma"; info["passes"] = 8 if "32x32" in mn else 4
            info["vw"] = regs_of(ops[0], 'v'); info["ab"] = regs_of(ops[1], 'v') | regs_of(ops[2], 'v')
            info["srcc"] = regs_of(ops[3], 'v'); info["vr"] = info["ab"] | info["srcc"]
        elif isv:
            info["cls"] = "trans" if mn.replace("_e32", "").replace("_e64", "") in TRANS else "valu"
            if mn.startswith("v_cmp"):
                info["sw"] = regs_of(ops[0], 's'); srcs = ops[1:]
            elif mn.startswith("v_readfirstlane") or mn.startswith("v_readlane"):
                info["sw"] = regs_of(ops[0], 's'); srcs = ops[1:]; info["rl"] = True
            elif mn.startswith("v_permlane"):
                info["vw"] = regs_of(ops[0], 'v') | regs_of(ops[1], 'v'); srcs = ops; info["pl"] = True
            else:
                info["vw"] = regs_of(ops[0], 'v'); srcs = ops[1:]
                if mn.startswith("v_fmac") or mn.startswith("v_dot2c") or mn.startswith("v_writelane") or "_dpp" in mn: srcs = ops
                if "_co_" in mn: info["sw"] = regs_of(ops[1], 's'); srcs = ops[2:]
            for o in srcs:
                info["vr"] |= regs_of(o, 'v'); info["sr"] |= regs_of(o, 's')
            if "_dpp" in mn: info["dpp"] = True
        elif mn.startswith("ds_"):
            info["cls"] = "ds"
            if mn.startswith("ds_read") or "permute" in mn or "swizzle" in mn:
                info["vw"] = regs_of(ops[0], 'v'); srcs = ops[1:]
            else: srcs = ops
            for o in srcs: info["vr"] |= regs_of(o, 'v')
        elif mn.startswith("buffer_") or mn.startswith("global_"):
            info["cls"] = "vmem"
            if "lds" in mods:
                srcs = ops; info["ldsdma"] = True
            elif "load" in mn:
                info["vw"] = regs_of(ops[0], 'v'); srcs = ops[1:]
            else:
                srcs = ops
                if "x4" in mn or "x3" in mn: info["sdata"] = regs_of(ops[0] if mn.startswith("buffer_") else ops[1], 'v')
            for o in srcs:
                info["vr"] |= regs_of(o, 'v'); info["sr"] |= regs_of(o, 's')
        elif mn.startswith("s_"):
            info["cls"] = "salu"
            if ops and not mn.startswith("s_cmp") and not mn.startswith("s_cbranch") and mn not in ("s_waitcnt", "s_barrier", "s_branch", "s_endpgm", "s_setprio", "s_sleep"):
                info["sw"] = regs_of(ops[0], 's')
        for r in info["vw"] | info["vr"]: self.maxv = max(self.maxv, r)
        for o in ops:
            for r in regs_of(o, 's'):
                if r < 102: self.maxs = max(self.maxs, r)
        need = 0; d = 0
        X = info
        for P in reversed(self.hist):
            req = 0
            pv = P["cls"] in ("valu", "trans")
            xv = X["cls"] in ("valu", "trans")
            if pv and X["cls"] == "mfma" and (P["vw"] & X["vr"]): req = max(req, 2)
            if P["cls"] == "mfma":
                p8 = P["passes"] == 8
                if X["cls"] == "mfma":
                    if P["vw"] & X["ab"]: req = max(req, 12 if p8 else 8)
                    if P["vw"] & X["srcc"]:
                        if not (X["srcc"] == P["vw"] and X["mn"] == P["mn"]): req = max(req, 10 if p8 else 6)
                    elif P["vw"] & X["vw"] and X["mn"] != P["mn"]: req = max(req, 12 if p8 else 8)
                elif X["cls"] in ("valu", "trans", "ds", "vmem"):
                    if P["vw"] & (X["vr"] | X["vw"]): req = max(req, 12 if p8 else 8)
                    if xv and (P["srcc"] & X["vw"]): req = max(req, 7 if p8 else 3)
            if P["cls"] == "trans" and X["cls"] in ("valu", "ds", "vmem") and (P["vw"] & X["vr"]): req = max(req, 1)
            if pv and X.get("rl") and (P["vw"] & X["vr"]): req = max(req, 1)
            if pv and X.get("pl") and (P["vw"] & X["vr"]): req = max(req, 2)
            if (pv or P["cls"] in ("ds", "vmem")) and X.get("dpp") and (P["vw"] & X["vr"]): req = max(req, 2)
            if pv and P["sw"]:
                if xv and (P["sw"] & X["sr"]): req = max(req, 4 if X.get("rl") else 2)
                if xv and mn.startswith("v_cndmask") and len(ops) == 4 and (P["sw"] & regs_of(ops[3], 's')): req = max(req, 2)
                if X["cls"] == "vmem" and (P["sw"] & X["sr"]): req = max(req, 5)
            if P["cls"] == "salu" and 124 in P["sw"] and X.get("ldsdma"): req = max(req, 1)
            if P["sdata"] and (P["sdata"] & X["vw"]): req = max(req, 2 if xv else 1)
            need = max(need, req - d)
            d += P["states"]
            if d > 24: break
        if need > 0:
            self.nops += need
            while need > 0:
                k = min(need, 16)
                self.lines.append("    s_nop %d" % (k - 1))
                self.hist.append(dict(mn="s_nop", vw=set(), vr=set(), sw=set(), sr=set(), cls="other", srcc=set(), ab=set(), passes=0, states=k, sdata=set()))
                need -= k
        self.lines.append("    " + text)
        self.hist.append(info)
        if len(self.hist) > 64: self.hist = self.hist[-40:]
    def text(self): return "\n".join(self.lines) + "\n"
class VAlloc:
    def __init__(self, start=0): self.n = start
    def __call__(self, cnt=1, align=1):
        if cnt > 1: align = max(align, 2)
        self.n = (self.n + align - 1) // align * align
        r = self.n; self.n += cnt
        return r
def vr(b, n=1): return "v%d" % b if n == 1 else "v[%d:%d]" % (b, b + n - 1)
def sr(b, n=1): return "s%d" % b if n == 1 else "s[%d:%d]" % (b, b + n - 1)
```

```python
import sys
from asmlib import *
T_OFF = 0; T_STRIDE = 16512
Q_OFF = 0x500000
W_OFF = 0xA00000
G_OFF = 0x1400000
WS_SIZE = 0x1500000
WBYTES = 2048 * 1026
M32 = "v_mfma_f32_32x32x16_bf16"
M16 = "v_mfma_f32_16x16x32_bf16"
OPT = set(sys.argv[1:])

def srd(a, d, base, size):
    a(f"s_mov_b32 s{d}, s{base}")
    a(f"s_mov_b32 s{d+1}, s{base+1}")
    a(f"s_mov_b32 s{d+2}, {hx(size)}")
    a(f"s_mov_b32 s{d+3}, 0x00020000")

def stamp_begin(a):
    if "stamps" in OPT: a("s_memrealtime s[90:91]")
def stamp_end(a, kidx, wsrd, vt, wavereg):
    if "stamps" not in OPT: return
    a("s_memrealtime s[94:95]")
    a("s_waitcnt vmcnt(0)")
    a("s_memrealtime s[92:93]")
    a("s_waitcnt lgkmcnt(0)")
    a(f"v_mov_b32 v{vt}, s90"); a(f"v_mov_b32 v{vt+1}, s94"); a(f"v_mov_b32 v{vt+2}, s92"); a(f"v_mov_b32 v{vt+3}, s90")
    a(f"s_and_b32 s96, s{wavereg}, 3")
    a(f"s_lshl_b32 s96, s96, 4")
    a(f"s_and_b32 s97, s2, 255")
    a(f"s_lshl_b32 s97, s97, 6")
    a(f"s_add_u32 s96, s96, s97")
    a(f"s_add_u32 s96, s96, {hx(0x3000000 + kidx * 16384)}")
    a(f"v_mov_b32 v{vt+4}, 0")
    a("s_mov_b64 exec, 1")
    a(f"buffer_store_dwordx4 {vr(vt,4)}, v{vt+4}, {sr(wsrd,4)}, s96 offen")

def gen_k1():
    a = Asm(); V = VAlloc(2)
    a.label("k1_kernel")
    a("s_cmp_ge_u32 s2, 512")
    a("s_cbranch_scc1 L_k1_end")
    stamp_begin(a)
    a("s_cmp_ge_u32 s2, 256")
    a("s_cbranch_scc1 L_k1_w")
    a("s_load_dwordx2 s[4:5], s[0:1], 0")
    a("s_load_dwordx2 s[6:7], s[0:1], 48")
    a("s_load_dwordx2 s[20:21], s[0:1], 72")
    a("v_lshrrev_b32 v1, 6, v0")
    a("v_and_b32 v0, 63, v0")
    a("v_readfirstlane_b32 s3, v1")
    vl16 = V(); a(f"v_lshlrev_b32 v{vl16}, 4, v0")
    vn = V(); vL5 = V()
    a(f"v_and_b32 v{vn}, 31, v0")
    a(f"v_lshrrev_b32 v{vL5}, 5, v0")
    CC = V(8, 4); SS = V(8, 4); SN = V(8, 4); TC = V(16); TS_ = V(16)
    vb = V(); vo = V(); t = [V() for _ in range(8)]
    a(f"v_cvt_f32_u32 v{vb}, v{vn}")
    a(f"v_cvt_f32_u32 v{vo}, v{vL5}")
    a(f"v_mul_f32 v{vb}, {fl(1/32)}, v{vb}")
    a(f"v_mul_f32 v{vo}, 4.0, v{vo}")
    a(f"v_mul_f32 v{vo}, v{vb}, v{vo}")
    a("s_lshl_b32 s22, s3, 9")
    a("s_add_u32 s22, s22, s2")
    a("s_lshl_b32 s22, s22, 11")
    a("s_add_u32 s23, s22, 0x80000")
    a("s_lshl_b32 s24, s3, 12")
    a("s_add_u32 s25, s24, 2048")
    a("s_waitcnt lgkmcnt(0)")
    srd(a, 8, 4, 2048 * 2048)
    srd(a, 12, 6, 2048)
    srd(a, 16, 20, 0x10000000 if "stamps" in OPT else WS_SIZE)
    a("s_mov_b32 m0, s24")
    a(f"buffer_load_dwordx4 v{vl16}, s[8:11], s22 offen lds")
    a(f"buffer_load_dwordx4 v{vl16}, s[8:11], s22 offen offset:1024 lds")
    a("s_mov_b32 m0, s25")
    a(f"buffer_load_dwordx4 v{vl16}, s[8:11], s23 offen lds")
    a(f"buffer_load_dwordx4 v{vl16}, s[8:11], s23 offen offset:1024 lds")
    GW = V(8, 4)
    a(f"buffer_load_dwordx4 {vr(GW,4)}, v{vl16}, s[12:15], 0 offen")
    a(f"buffer_load_dwordx4 {vr(GW+4,4)}, v{vl16}, s[12:15], 0 offen offset:1024")
    for i in range(0, 16, 2):
        for e in range(2):
            kc = 8 * ((i + e) // 4) + (i + e) % 4
            if kc == 0: a(f"v_mov_b32 v{t[e]}, v{vo}")
            else: a(f"v_fmamk_f32 v{t[e]}, v{vb}, {hx(f2u(float(kc)))}, v{vo}")
        a(f"v_cos_f32 v{t[2]}, v{t[0]}"); a(f"v_cos_f32 v{t[3]}, v{t[1]}")
        a(f"v_sin_f32 v{t[4]}, v{t[0]}"); a(f"v_sin_f32 v{t[5]}, v{t[1]}")
        a(f"v_mul_f32 v{t[0]}, {fl(1/32)}, v{t[0]}"); a(f"v_mul_f32 v{t[1]}, {fl(1/32)}, v{t[1]}")
        a(f"v_cvt_pk_bf16_f32 v{CC+i//2}, v{t[2]}, v{t[3]}")
        a(f"v_cvt_pk_bf16_f32 v{SS+i//2}, v{t[4]}, v{t[5]}")
        a(f"v_cvt_pk_bf16_f32 v{SN+i//2}, -v{t[4]}, -v{t[5]}")
        a(f"v_cos_f32 v{TC+i}, v{t[0]}"); a(f"v_cos_f32 v{TC+i+1}, v{t[1]}")
        a(f"v_sin_f32 v{TS_+i}, v{t[0]}"); a(f"v_sin_f32 v{TS_+i+1}, v{t[1]}")
    a("s_lshr_b32 s26, s2, 1"); a("s_and_b32 s26, s26, 7")
    a("s_lshr_b32 s27, s2, 3"); a("s_and_b32 s27, s27, 8")
    a("s_or_b32 s26, s26, s27")
    a("s_and_b32 s27, s26, 3")
    a("s_lshr_b32 s28, s26, 2")
    MA = V(4, 4)
    vu = V(); vA = V(); vB1 = V(); vB2 = V(); vsg = V()
    a(f"v_bfe_u32 v{t[0]}, v0, 3, 1")
    a(f"v_bfe_u32 v{t[1]}, v0, 1, 1")
    a(f"v_lshl_or_b32 v{t[0]}, v{t[0]}, 1, v{t[1]}")
    a(f"v_xor_b32 v{t[0]}, s27, v{t[0]}")
    a(f"v_and_b32 v{t[1]}, 4, v0")
    a(f"v_or_b32 v{vu}, v{t[0]}, v{t[1]}")
    a(f"v_cvt_f32_u32 v{vu}, v{vu}")
    a(f"v_cvt_f32_u32 v{vsg}, v{vL5}")
    a(f"v_fma_f32 v{vsg}, v{vsg}, -2.0, 1.0")
    a(f"v_mul_f32 v{vA}, v{vu}, v{vsg}")
    a(f"v_mul_f32 v{vA}, {fl(0.125)}, v{vA}")
    a(f"v_and_b32 v{t[0]}, 1, v0")
    a(f"v_cvt_f32_u32 v{t[0]}, v{t[0]}")
    a(f"v_mul_f32 v{vB1}, v{t[0]}, v{vsg}")
    a(f"v_mul_f32 v{vB1}, {fl(0.25)}, v{vB1}")
    a(f"v_add_f32 v{vB2}, {fl(0.25)}, v{vB1}")
    for pp in range(4):
        if pp == 0: a(f"v_mov_b32 v{t[0]}, v{vB1}")
        else: a(f"v_fmamk_f32 v{t[0]}, v{vA}, {hx(f2u(2.0*pp))}, v{vB1}")
        a(f"v_fmamk_f32 v{t[1]}, v{vA}, {hx(f2u(2.0*pp+1))}, v{vB2}")
        a(f"v_cos_f32 v{t[2]}, v{t[0]}"); a(f"v_cos_f32 v{t[3]}, v{t[1]}")
        a(f"v_sin_f32 v{t[4]}, v{t[0]}"); a(f"v_sin_f32 v{t[5]}, v{t[1]}")
        a(f"v_add_f32 v{t[2]}, v{t[2]}, v{t[3]}")
        a(f"v_add_f32 v{t[4]}, v{t[4]}, v{t[5]}")
        a(f"v_cvt_pk_bf16_f32 v{MA+pp}, v{t[2]}, v{t[4]}")
    vtr = V()
    a(f"v_lshlrev_b32 v{vtr}, 8, v{vL5}")
    a(f"v_bfe_u32 v{t[0]}, v0, 2, 2"); a(f"v_lshl_or_b32 v{vtr}, v{t[0]}, 6, v{vtr}")
    a(f"v_bfe_u32 v{t[0]}, v0, 4, 1"); a(f"v_lshl_or_b32 v{vtr}, v{t[0]}, 5, v{vtr}")
    a(f"v_and_b32 v{t[0]}, 3, v0"); a(f"v_lshl_or_b32 v{vtr}, v{t[0]}, 3, v{vtr}")
    a(f"v_add_u32 v{vtr}, s24, v{vtr}")
    vnat = V(); a(f"v_add_u32 v{vnat}, s24, v{vl16}")
    vpw = V(4)
    a(f"v_bfrev_b32 v{t[0]}, v{vn}")
    a(f"v_lshrrev_b32 v{t[0]}, 29, v{t[0]}")
    a(f"v_xor_b32 v{t[0]}, v{t[0]}, v{vL5}")
    a(f"v_lshlrev_b32 v{t[0]}, 4, v{t[0]}")
    a(f"v_lshl_or_b32 v{vpw}, v{vn}, 7, v{t[0]}")
    a(f"v_add_u32 v{vpw}, s24, v{vpw}")
    for c in range(1, 4): a(f"v_xor_b32 v{vpw+c}, {32*c}, v{vpw}")
    vmr = V(5); vkk = V(5); vs16 = V()
    a(f"v_bfe_u32 v{t[0]}, v0, 1, 4")
    a(f"v_and_b32 v{t[1]}, 1, v0")
    a(f"v_lshl_or_b32 v{t[2]}, v{t[1]}, 5, v{t[0]}")
    a("s_lshl_b32 s29, s3, 7")
    a(f"v_add_u32 v{t[3]}, s29, v{t[2]}")
    a(f"v_sub_u32 v{t[4]}, 0, v{vL5}")
    a(f"v_xor_b32 v{vkk}, v{t[3]}, v{t[4]}"); a(f"v_add_u32 v{vkk}, v{vkk}, v{vL5}")
    a(f"v_xor_b32 v{vs16}, 16, v{t[4]}"); a(f"v_add_u32 v{vs16}, v{vs16}, v{vL5}")
    a(f"v_add_u32 v{vkk+1}, v{vkk}, v{vs16}")
    a(f"v_lshl_add_u32 v{vkk+2}, v{vs16}, 2, v{vkk}")
    a(f"v_add_u32 v{vkk+3}, v{vkk+2}, v{vs16}")
    a(f"v_xor_b32 v{vkk+4}, v{t[2]}, v{t[4]}"); a(f"v_add_u32 v{vkk+4}, v{vkk+4}, v{vL5}")
    a(f"v_add_u32 v{vkk+4}, 512, v{vkk+4}")
    for q in range(5):
        a(f"v_bfrev_b32 v{t[5]}, v{vkk+q}")
        a(f"v_lshrrev_b32 v{t[5]}, 20, v{t[5]}")
        a(f"v_and_b32 v{t[5]}, 0x70, v{t[5]}")
        a(f"v_lshlrev_b32 v{t[6]}, 2, v{vkk+q}")
        a(f"v_and_b32 v{t[6]}, 0xffc, v{t[6]}")
        a(f"v_xor_b32 v{vmr+q}, v{t[5]}, v{t[6]}")
    vts = V()
    a(f"v_lshl_or_b32 v{t[1]}, v{vL5}, 1, v{t[1]}")
    a(f"v_xor_b32 v{t[1]}, s28, v{t[1]}")
    a(f"v_lshlrev_b32 v{t[1]}, 4, v{t[1]}")
    a(f"v_lshl_or_b32 v{vts}, v{t[0]}, 6, v{t[1]}")
    a(f"s_mul_i32 s30, s2, {T_STRIDE}")
    a("s_add_u32 s31, s30, s24")
    a("s_add_u32 s30, s30, 16384")
    XR = V(8, 4); XI = V(8, 4); XN = V(16, 4)
    D1r = V(16, 4); D1i = V(16, 4); D2r = V(16, 4); D2i = V(16, 4)
    a("s_waitcnt vmcnt(2)")
    for r, X in ((0, XR), (1, XI)):
        for h in range(2):
            for tt in range(2):
                a(f"ds_read_b64_tr_b16 {vr(X+4*h+2*tt,2)}, v{vtr} offset:{r*2048+h*1024+tt*512}")
    for r in range(2):
        for q in range(2):
            a(f"ds_read_b128 {vr(XN+8*r+4*q,4)}, v{vnat} offset:{r*2048+q*1024}")
    a("s_waitcnt lgkmcnt(4)")
    def cpass(R, I, Dr, Di, h, first):
        c0 = "0" if first else vr(Dr, 16); c1 = "0" if first else vr(Di, 16)
        a(f"{M32} {vr(Dr,16)}, {vr(R+4*h,4)}, {vr(CC+4*h,4)}, {c0}")
        a(f"{M32} {vr(Di,16)}, {vr(I+4*h,4)}, {vr(CC+4*h,4)}, {c1}")
        a(f"{M32} {vr(Dr,16)}, {vr(I+4*h,4)}, {vr(SS+4*h,4)}, {vr(Dr,16)}")
        a(f"{M32} {vr(Di,16)}, {vr(R+4*h,4)}, {vr(SN+4*h,4)}, {vr(Di,16)}")
    cpass(XR, XI, D1r, D1i, 0, True)
    cpass(XR, XI, D1r, D1i, 1, False)
    a("s_waitcnt vmcnt(0) lgkmcnt(0)")
    a("s_mov_b32 s33, 0xffff0000")
    acc = V(4, 4)
    ones = V(); a(f"v_mov_b32 v{ones}, 0x3f803f80")
    a(f"v_mov_b32 v{acc}, 0"); a(f"v_mov_b32 v{acc+2}, 0")
    for j in range(8):
        a(f"v_lshlrev_b32 v{t[0]}, 16, v{GW+j}")
        a(f"v_and_b32 v{t[1]}, s33, v{GW+j}")
        for r in range(2):
            a(f"v_lshlrev_b32 v{t[2+2*r]}, 16, v{XN+8*r+j}")
            a(f"v_and_b32 v{t[3+2*r]}, s33, v{XN+8*r+j}")
            a(f"v_mul_f32 v{t[2+2*r]}, v{t[2+2*r]}, v{t[0]}")
            a(f"v_mul_f32 v{t[3+2*r]}, v{t[3+2*r]}, v{t[1]}")
            a(f"v_cvt_pk_bf16_f32 v{t[2+2*r]}, v{t[2+2*r]}, v{t[3+2*r]}")
        for r in range(2):
            a(f"v_lshlrev_b32 v{t[3+2*r]}, 16, v{t[2+2*r]}")
            a(f"v_and_b32 v{t[2+2*r]}, s33, v{t[2+2*r]}")
            a(f"v_add_f32 v{acc+2*r}, v{acc+2*r}, v{t[3+2*r]}")
            a(f"v_add_f32 v{acc+2*r}, v{acc+2*r}, v{t[2+2*r]}")
    for h in range(2):
        for i in range(8 * h, 8 * h + 8, 2):
            for e in range(2):
                k = i + e
                a(f"v_mul_f32 v{t[e]}, v{D1r+k}, v{TC+k}")
                a(f"v_mul_f32 v{t[2+e]}, v{D1i+k}, v{TC+k}")
                a(f"v_fmac_f32 v{t[e]}, v{D1i+k}, v{TS_+k}")
                a(f"v_fma_f32 v{t[2+e]}, -v{D1r+k}, v{TS_+k}, v{t[2+e]}")
            a(f"v_cvt_pk_bf16_f32 v{XR+i//2}, v{t[0]}, v{t[1]}")
            a(f"v_cvt_pk_bf16_f32 v{XI+i//2}, v{t[2]}, v{t[3]}")
        cpass(XR, XI, D2r, D2i, h, h == 0)
    for dpp in ("row_shr:1", "row_shr:2", "row_shr:4", "row_shr:8"):
        for r in range(2):
            a(f"v_add_f32_dpp v{acc+2*r}, v{acc+2*r}, v{acc+2*r} {dpp} row_mask:0xf bank_mask:0xf bound_ctrl:0")
    for dpp, rm in (("row_bcast:15", "0xa"), ("row_bcast:31", "0xc")):
        for r in range(2):
            a(f"v_add_f32_dpp v{acc+2*r}, v{acc+2*r}, v{acc+2*r} {dpp} row_mask:{rm} bank_mask:0xf")
    a(f"v_cvt_pk_bf16_f32 v{t[0]}, v{acc}, v{acc+2}")
    a(f"v_lshlrev_b32 v{t[1]}, 16, v{t[0]}")
    a(f"v_and_b32 v{t[2]}, s33, v{t[0]}")
    for r in range(2): a(f"v_mul_f32 v{t[1+r]}, {hx(f2u(-1.4426950408889634))}, v{t[1+r]}")
    for r in range(2): a(f"v_exp_f32 v{t[1+r]}, v{t[1+r]}")
    for r in range(2): a(f"v_add_f32 v{t[1+r]}, 1.0, v{t[1+r]}")
    for r in range(2): a(f"v_rcp_f32 v{t[1+r]}, v{t[1+r]}")
    a(f"v_cvt_pk_bf16_f32 v{t[0]}, v{t[1]}, v{t[2]}")
    a(f"v_lshlrev_b32 v{acc}, 16, v{t[0]}")
    a(f"v_and_b32 v{acc+2}, s33, v{t[0]}")
    a(f"v_sub_f32 v{t[1]}, 1.0, v{acc}")
    a(f"v_sub_f32 v{t[2]}, 1.0, v{acc+2}")
    a(f"v_cvt_pk_bf16_f32 v{t[0]}, v{t[1]}, v{t[2]}")
    a(f"v_lshlrev_b32 v{acc+1}, 16, v{t[0]}")
    a(f"v_and_b32 v{acc+3}, s33, v{t[0]}")
    for r in range(4): a(f"v_mul_f32 v{acc+r}, {hx(f2u(2.0**-22))}, v{acc+r}")
    a("s_lshl_b32 s34, s2, 6"); a("s_lshl_b32 s35, s3, 4"); a("s_add_u32 s34, s34, s35")
    a(f"s_add_u32 s34, s34, {hx(G_OFF)}")
    a(f"v_mov_b32 v{t[3]}, 0")
    a("s_mov_b32 exec_lo, 0"); a("s_mov_b32 exec_hi, 0x80000000")
    a(f"buffer_store_dwordx4 {vr(acc,4)}, v{t[3]}, s[16:19], s34 offen")
    a("s_mov_b64 exec, -1")
    PK = D1r
    for c in range(4):
        for e in range(4):
            a(f"v_cvt_pk_bf16_f32 v{PK+4*c+e}, v{D2r+4*c+e}, v{D2i+4*c+e}")
        a(f"ds_write_b128 v{vpw+c}, {vr(PK+4*c,4)}")
    a("s_waitcnt lgkmcnt(0)")
    a("s_barrier")
    MB = XN
    for q in range(4):
        a(f"ds_read2st64_b32 {vr(MB+4*q,2)}, v{vmr+q} offset0:0 offset1:16")
        a(f"ds_read2st64_b32 {vr(MB+4*q+2,2)}, v{vmr+q} offset0:32 offset1:48")
    MB4 = XR
    a(f"ds_read2st64_b32 {vr(MB4,2)}, v{vmr+4} offset0:0 offset1:16")
    a(f"ds_read2st64_b32 {vr(MB4+2,2)}, v{vmr+4} offset0:32 offset1:48")
    DM = [D1r, D1i, D2r, D2i]
    for q in range(4):
        a(f"s_waitcnt lgkmcnt({8-2*q})")
        a(f"{M32} {vr(DM[q],16)}, {vr(MA,4)}, {vr(MB+4*q,4)}, 0")
    OUT = TC
    OUT = V(16, 4)
    for q in range(4):
        for s_ in range(4):
            a(f"v_cvt_pk_bf16_f32 v{OUT+4*q+s_}, v{DM[q]+2*s_}, v{DM[q]+2*s_+1}")
        a(f"buffer_store_dwordx4 {vr(OUT+4*q,4)}, v{vts}, s[16:19], s31 offen offset:{q*1024}")
    a("s_cmp_lg_u32 s3, 0")
    a("s_cbranch_scc1 L_k1_fin")
    a("s_waitcnt lgkmcnt(0)")
    a(f"{M32} {vr(D1r,16)}, {vr(MA,4)}, {vr(MB4,4)}, 0")
    for s_ in range(4):
        a(f"v_cvt_pk_bf16_f32 v{XI+s_}, v{D1r+2*s_}, v{D1r+2*s_+1}")
    a("s_mov_b32 exec_lo, 3"); a("s_mov_b32 exec_hi, 3")
    a(f"buffer_store_dwordx4 {vr(XI,4)}, v{vts}, s[16:19], s30 offen")
    a("s_mov_b64 exec, -1")
    a.label("L_k1_fin")
    stamp_end(a, 0, 16, D2r, 3)
    a("s_endpgm")
    a.label("L_k1_w")
    a.hist = []
    a("s_load_dwordx4 s[4:7], s[0:1], 8")
    a("s_load_dwordx4 s[8:11], s[0:1], 32")
    a("s_load_dwordx2 s[12:13], s[0:1], 72")
    a("v_lshrrev_b32 v1, 6, v0")
    a("v_and_b32 v0, 63, v0")
    a("v_readfirstlane_b32 s3, v1")
    a("s_and_b32 s14, s2, 7")
    a("s_bfe_u32 s15, s2, 0x50003")
    a("s_lshr_b32 s36, s15, 2")
    a("s_and_b32 s37, s15, 3")
    if "wq" in OPT:
        a("v_lshrrev_b32 v2, 2, v0"); a("v_and_b32 v3, 3, v0")
    else:
        a("v_and_b32 v2, 15, v0"); a("v_lshrrev_b32 v3, 4, v0")
    a(f"v_mul_u32_u24 v4, {8*1026}, v2")
    a("v_lshl_add_u32 v5, v3, 4, v4")
    a("s_lshl_b32 s38, s3, 2"); a("s_add_u32 s38, s38, s37"); a("s_lshl_b32 s38, s38, 7"); a("s_add_u32 s38, s38, s36")
    a("s_mul_i32 s38, s38, 1026")
    a("s_lshl_b32 s39, s14, 7"); a("s_add_u32 s39, s39, s38")
    a("v_lshlrev_b32 v6, 18, v3"); a("v_lshl_add_u32 v6, v2, 4, v6")
    a("v_lshlrev_b32 v7, 4, v2")
    a("s_lshl_b32 s40, s15, 10"); a("s_lshl_b32 s41, s3, 8"); a("s_add_u32 s40, s40, s41")
    a(f"s_add_u32 s40, s40, {hx(W_OFF)}")
    a("s_lshl_b32 s41, s14, 20"); a("s_add_u32 s41, s41, s40")
    a("s_mov_b32 s42, 0x05040100"); a("s_mov_b32 s43, 0x07060302")
    a("s_waitcnt lgkmcnt(0)")
    for k in range(4): srd(a, 16 + 4 * k, 4 + 2 * k, WBYTES)
    srd(a, 32, 12, 0x10000000 if "stamps" in OPT else WS_SIZE)
    R = 8
    for half in range(2):
        for arr in range(4):
            a(f"buffer_load_dwordx4 {vr(R+arr*8+half*4,4)}, v5, {sr(16+4*arr,4)}, s39 offen offset:{64*half}")
    a("s_cmp_lg_u32 s14, 7")
    a("s_cbranch_scc1 L_k1_w2")
    for arr in range(4):
        a(f"buffer_load_ushort v{72+arr}, v4, {sr(16+4*arr,4)}, s38 offen offset:1024")
    a("v_mov_b32 v78, 0"); a("v_mov_b32 v79, 0")
    a(f"s_add_u32 s44, s40, {hx(256*32768)}")
    a("s_waitcnt vmcnt(0)")
    a("v_lshl_or_b32 v76, v73, 16, v72")
    a("v_lshl_or_b32 v77, v75, 16, v74")
    a("buffer_store_dwordx4 v[76:79], v7, s[32:35], s44 offen")
    a.label("L_k1_w2")
    a("s_waitcnt vmcnt(0)")
    O = 40
    for m in range(8):
        sel = "s43" if m & 1 else "s42"
        for half in range(2):
            for ab in range(2):
                re = R + (2 * ab) * 8 + half * 4 + m // 2; im = R + (2 * ab + 1) * 8 + half * 4 + m // 2
                a(f"v_perm_b32 v{O+4*m+2*half+ab}, v{im}, v{re}, {sel}")
        a(f"buffer_store_dwordx4 {vr(O+4*m,4)}, v6, s[32:35], s41 offen")
        if m < 7: a("s_add_u32 s41, s41, 32768")
    stamp_end(a, 3, 32, 80, 3)
    a.label("L_k1_end")
    a("s_endpgm")
    return a

def gen_k2():
    a = Asm(); V = VAlloc(2)
    SB = 16384
    a.label("k2_kernel")
    a("s_cmp_ge_u32 s2, 257")
    a("s_cbranch_scc1 L_k2_end")
    stamp_begin(a)
    a("s_load_dwordx2 s[4:5], s[0:1], 72")
    a("v_lshrrev_b32 v1, 6, v0")
    a("v_and_b32 v0, 63, v0")
    a("v_readfirstlane_b32 s3, v1")
    a("s_and_b32 s6, s2, 7"); a("s_lshl_b32 s6, s6, 5"); a("s_lshr_b32 s7, s2, 3"); a("s_add_u32 s6, s6, s7")
    a("s_cmp_eq_u32 s2, 256"); a("s_cselect_b32 s6, 256, s6")
    t = [V() for _ in range(8)]
    vdma = V(); vl16 = V(); vg = V(); vb = V(); vr32 = V(); vL5 = V()
    a(f"v_lshrrev_b32 v{t[0]}, 2, v0")
    a(f"v_mul_u32_u24 v{vdma}, {T_STRIDE}, v{t[0]}")
    a(f"v_and_b32 v{t[0]}, 3, v0")
    a(f"v_lshl_add_u32 v{vdma}, v{t[0]}, 4, v{vdma}")
    a(f"v_lshlrev_b32 v{vl16}, 4, v0")
    a(f"v_lshrrev_b32 v{vg}, 4, v0"); a(f"v_and_b32 v{vb}, 15, v0")
    a(f"v_and_b32 v{vr32}, 31, v0"); a(f"v_lshrrev_b32 v{vL5}, 5, v0")
    vq = V()
    a(f"v_lshlrev_b32 v{vq}, 5, v{vL5}"); a(f"v_lshl_or_b32 v{vq}, v{vr32}, 6, v{vq}")
    a(f"s_mul_i32 s12, s3, {32*T_STRIDE}"); a("s_lshl_b32 s13, s6, 6"); a("s_add_u32 s12, s12, s13")
    a(f"s_add_u32 s13, s12, {16*T_STRIDE}")
    a("s_lshl_b32 s14, s3, 11"); a("s_add_u32 s15, s14, 1024")
    a("s_lshl_b32 s16, s6, 15"); a("s_lshl_b32 s17, s3, 12"); a("s_add_u32 s16, s16, s17"); a(f"s_add_u32 s16, s16, {hx(W_OFF)}")
    a(f"s_add_u32 s17, s14, {hx(G_OFF)}")
    a("s_lshl_b32 s18, s6, 14"); a("s_add_u32 s18, s18, s14"); a(f"s_add_u32 s18, s18, {hx(Q_OFF)}")
    a("s_and_b32 s19, s6, 255"); a("s_cmp_eq_u32 s19, 0"); a("s_cselect_b32 s19, 0, 1.0")
    a("s_waitcnt lgkmcnt(0)")
    srd(a, 8, 4, 0x10000000 if "stamps" in OPT else WS_SIZE)
    a("s_mov_b32 m0, s14")
    a(f"buffer_load_dwordx4 v{vdma}, s[8:11], s12 offen lds")
    a("s_mov_b32 m0, s15")
    a(f"buffer_load_dwordx4 v{vdma}, s[8:11], s13 offen lds")
    WW = V(16, 4); GG = V(8, 4)
    for i in range(4): a(f"buffer_load_dwordx4 {vr(WW+4*i,4)}, v{vl16}, s[8:11], s16 offen offset:{1024*i}")
    a(f"buffer_load_dwordx4 {vr(GG,4)}, v{vq}, s[8:11], s17 offen")
    a(f"buffer_load_dwordx4 {vr(GG+4,4)}, v{vq}, s[8:11], s17 offen offset:16")
    M1r = V(4, 4); M1m = V(4, 4); M2r = V(4, 4); M2m = V(4, 4); Mir = V(4, 4); Mim = V(4, 4)
    TC = V(4); TS_ = V(4); IC = V(4); IS = V(4)
    vlf = V(); vkf = V(); vu = V(); vlu = V()
    a(f"v_cvt_f32_u32 v{vlf}, v{vb}")
    a(f"v_cvt_f32_u32 v{vkf}, v{vg}"); a(f"v_mul_f32 v{vkf}, 4.0, v{vkf}")
    a(f"v_cvt_f32_u32 v{vu}, s3"); a(f"v_mul_f32 v{vu}, {fl(1/128)}, v{vu}")
    a(f"v_mul_f32 v{vlu}, v{vlf}, v{vu}")
    a(f"v_mul_f32 v{vlf}, {fl(1/16)}, v{vlf}")
    for i in range(4):
        if i: a(f"v_add_f32 v{vkf}, 1.0, v{vkf}")
        a(f"v_mul_f32 v{t[0]}, v{vkf}, v{vlf}")
        a(f"v_fma_f32 v{t[1]}, v{vkf}, v{vu}, v{t[0]}")
        a(f"v_add_f32 v{t[2]}, v{t[0]}, v{vlu}")
        for ang, Mr, Mm in ((t[0], M2r, M2m), (t[1], M1r, M1m), (t[2], Mir, Mim)):
            a(f"v_cos_f32 v{t[3]}, v{ang}"); a(f"v_sin_f32 v{t[4]}, v{ang}")
            if ang != t[0]: a(f"v_mul_f32 v{ang}, {fl(1/16)}, v{ang}")
            else: a("s_nop 0")
            a(f"v_cvt_pk_bf16_f32 v{Mr+i}, v{t[3]}, v{t[4]}")
            a(f"v_cvt_pk_bf16_f32 v{Mm+i}, -v{t[4]}, v{t[3]}")
        a(f"v_cos_f32 v{TC+i}, v{t[1]}"); a(f"v_sin_f32 v{TS_+i}, v{t[1]}")
        a(f"v_cos_f32 v{IC+i}, v{t[2]}"); a(f"v_sin_f32 v{IS+i}, v{t[2]}")
    MX = V(8, 4)
    vs1 = V(); vm0 = V(); vm1 = V(); vri = V()
    a(f"v_bfe_u32 v{t[0]}, v0, 3, 2"); a(f"v_and_b32 v{t[1]}, 4, v0"); a(f"v_or_b32 v{t[0]}, v{t[0]}, v{t[1]}")
    a(f"v_cvt_f32_u32 v{vs1}, v{t[0]}"); a(f"v_mul_f32 v{vs1}, {fl(-0.125)}, v{vs1}")
    a(f"v_bfe_i32 v{vm1}, v0, 1, 1")
    a(f"v_not_b32 v{vm0}, v{vm1}")
    a(f"v_and_b32 v{t[0]}, 1, v0"); a(f"v_cvt_f32_u32 v{vri}, v{t[0]}"); a(f"v_mul_f32 v{vri}, {fl(0.25)}, v{vri}")
    a(f"v_cvt_f32_u32 v{t[0]}, v{vL5}"); a(f"v_add_f32 v{t[0]}, v{t[0]}, v{t[0]}")
    a(f"v_fma_f32 v{vri}, v{t[0]}, v{vs1}, v{vri}")
    for h in range(2):
        for lo in range(2):
            k = 4 * h + lo
            if k == 0: a(f"v_mov_b32 v{t[0]}, v{vri}")
            else: a(f"v_fmamk_f32 v{t[0]}, v{vs1}, {hx(f2u(float(k)))}, v{vri}")
            a(f"v_cos_f32 v{t[1]}, v{t[0]}"); a(f"v_sin_f32 v{t[2]}, v{t[0]}")
            a(f"v_cvt_pk_bf16_f32 v{t[1]}, v{t[1]}, v{t[2]}")
            a(f"v_and_b32 v{MX+4*h+2*lo}, v{t[1]}, v{vm0}")
            a(f"v_and_b32 v{MX+4*h+2*lo+1}, v{t[1]}, v{vm1}")
    vt0 = V(); vt1 = V(); vsw = V(); vs0 = V(); vs1a = V()
    a("s_lshr_b32 s20, s3, 2"); a("s_lshl_b32 s20, s20, 3"); a("s_and_b32 s21, s3, 3"); a("s_or_b32 s20, s20, s21")
    a(f"v_lshrrev_b32 v{t[0]}, 1, v{vb}"); a(f"v_and_b32 v{t[1]}, 1, v{vg}"); a(f"v_lshl_or_b32 v{t[0]}, v{t[1]}, 3, v{t[0]}")
    a(f"v_xor_b32 v{t[0]}, s20, v{t[0]}"); a(f"v_lshlrev_b32 v{t[0]}, 2, v{t[0]}")
    a(f"v_lshl_or_b32 v{t[0]}, v{vb}, 6, v{t[0]}"); a(f"v_lshl_or_b32 v{vt0}, v{vg}, 12, v{t[0]}")
    a(f"v_xor_b32 v{vt1}, 16, v{vt0}")
    a("s_lshl_b32 s21, s3, 12"); a(f"s_add_u32 s21, s21, {SB}")
    a(f"v_lshlrev_b32 v{t[0]}, 4, v{vb}"); a(f"v_lshl_or_b32 v{t[0]}, v{vg}, 10, v{t[0]}"); a(f"v_add_u32 v{vsw}, s21, v{t[0]}")
    a("s_lshl_b32 s22, s3, 9"); a(f"s_add_u32 s22, s22, {SB}")
    a(f"v_bfe_u32 v{t[0]}, v0, 4, 1"); a(f"v_lshlrev_b32 v{t[0]}, 3, v{t[0]}")
    a(f"v_lshl_or_b32 v{t[0]}, v{vr32}, 4, v{t[0]}"); a(f"v_lshl_or_b32 v{t[0]}, v{vL5}, 13, v{t[0]}")
    a(f"v_add_u32 v{vs0}, s22, v{t[0]}"); a(f"v_xor_b32 v{vs1a}, 8, v{vs0}")
    a("s_mov_b32 s23, 0xffff0000")
    XA = V(8, 4)
    D = V(32, 4)
    OP = V(16, 4)
    a("s_waitcnt vmcnt(6)")
    a("s_barrier")
    for col, va in ((0, vt0), (1, vt1)):
        a(f"ds_read2st64_b32 {vr(XA+4*col,2)}, v{va} offset0:0 offset1:4")
        a(f"ds_read2st64_b32 {vr(XA+4*col+2,2)}, v{va} offset0:8 offset1:12")
    for col in range(2):
        a(f"s_waitcnt lgkmcnt({2-2*col})")
        a(f"{M16} {vr(D+8*col,4)}, {vr(XA+4*col,4)}, {vr(M1r,4)}, 0")
        a(f"{M16} {vr(D+8*col+4,4)}, {vr(XA+4*col,4)}, {vr(M1m,4)}, 0")
    def twid(Dr, Di, C, S, dst):
        for i in range(4):
            a(f"v_mul_f32 v{t[0]}, v{Dr+i}, v{C+i}")
            a(f"v_mul_f32 v{t[1]}, v{Di+i}, v{C+i}")
            a(f"v_fmac_f32 v{t[0]}, v{Di+i}, v{S+i}")
            a(f"v_fma_f32 v{t[1]}, -v{Dr+i}, v{S+i}, v{t[1]}")
            a(f"v_cvt_pk_bf16_f32 v{dst+i}, v{t[0]}, v{t[1]}")
    XX = V(16, 4)
    for col in range(2):
        twid(D + 8 * col, D + 8 * col + 4, TC, TS_, OP + 4 * col)
        a(f"{M16} {vr(XX+8*col,4)}, {vr(M2r,4)}, {vr(OP+4*col,4)}, 0")
        a(f"{M16} {vr(XX+8*col+4,4)}, {vr(M2m,4)}, {vr(OP+4*col,4)}, 0")
    a("s_waitcnt vmcnt(2)")
    for col in range(2):
        for ab in range(2):
            n = 2 * col + ab
            for i in range(4):
                wv = WW + 4 * i + 2 * col + ab
                xr = XX + 8 * col + i; xi = XX + 8 * col + 4 + i
                a(f"v_lshlrev_b32 v{t[2]}, 16, v{wv}")
                a(f"v_and_b32 v{t[3]}, s23, v{wv}")
                a(f"v_mul_f32 v{t[0]}, v{xr}, v{t[2]}")
                a(f"v_mul_f32 v{t[1]}, v{xi}, v{t[2]}")
                a(f"v_fma_f32 v{t[0]}, -v{xi}, v{t[3]}, v{t[0]}")
                a(f"v_fmac_f32 v{t[1]}, v{xr}, v{t[3]}")
                a(f"v_cvt_pk_bf16_f32 v{OP+4*n+i}, v{t[1]}, v{t[0]}")
            a(f"{M16} {vr(D+8*n,4)}, {vr(OP+4*n,4)}, {vr(M2r,4)}, 0")
            a(f"{M16} {vr(D+8*n+4,4)}, {vr(OP+4*n,4)}, {vr(M2m,4)}, 0")
    E = V(32, 4)
    for n in range(4):
        twid(D + 8 * n, D + 8 * n + 4, IC, IS, OP + 4 * n)
        a(f"{M16} {vr(E+8*n,4)}, {vr(Mir,4)}, {vr(OP+4*n,4)}, 0")
        a(f"{M16} {vr(E+8*n+4,4)}, {vr(Mim,4)}, {vr(OP+4*n,4)}, 0")
    SO = D
    for i in range(4):
        for col in range(2):
            for ab in range(2):
                n = 2 * col + ab
                a(f"v_cvt_pk_bf16_f32 v{SO+4*i+2*(col^(i&1))+ab}, v{E+8*n+4+i}, v{E+8*n+i}")
        a(f"ds_write_b128 v{vsw}, {vr(SO+4*i,4)} offset:{256*i}")
    a("s_waitcnt lgkmcnt(0)")
    a("s_barrier")
    for col, va in ((0, vs0), (1, vs1a)):
        for h in range(2):
            for lo in range(2):
                a(f"ds_read_b64 {vr(OP+8*col+4*h+2*lo,2)}, v{va} offset:{h*16384+lo*4096}")
    DX = [E, E + 16]
    for col in range(2):
        for h in range(2):
            a(f"s_waitcnt lgkmcnt({6-4*col-2*h})")
            a(f"{M32} {vr(DX[col],16)}, {vr(MX+4*h,4)}, {vr(OP+8*col+4*h,4)}, {'0' if h == 0 else vr(DX[col],16)}")
    a("s_waitcnt vmcnt(0)")
    QO = D
    for col in range(2):
        al = "s19" if col == 0 else None
        for pl in range(2):
            for eo in range(2):
                i0 = DX[col] + 8 * pl + 4 * eo; gi = GG + 2 * (2 * pl + eo)
                a(f"v_mul_f32 v{t[2*eo]}, v{gi}, v{i0}")
                a(f"v_mul_f32 v{t[2*eo+1]}, v{gi}, v{i0+1}")
                a(f"v_fmac_f32 v{t[2*eo]}, v{gi+1}, v{i0+2}")
                a(f"v_fmac_f32 v{t[2*eo+1]}, v{gi+1}, v{i0+3}")
            er, ei, orr, oi = t[0], t[1], t[2], t[3]
            if al:
                a(f"v_fma_f32 v{t[4]}, -v{oi}, {al}, v{er}")
                a(f"v_fma_f32 v{t[5]}, v{ei}, {al}, v{orr}")
                a(f"v_fma_f32 v{t[6]}, v{oi}, {al}, v{er}")
                a(f"v_fma_f32 v{t[7]}, -v{ei}, {al}, v{orr}")
            else:
                a(f"v_sub_f32 v{t[4]}, v{er}, v{oi}")
                a(f"v_add_f32 v{t[5]}, v{ei}, v{orr}")
                a(f"v_add_f32 v{t[6]}, v{er}, v{oi}")
                a(f"v_sub_f32 v{t[7]}, v{orr}, v{ei}")
            a(f"v_cvt_pk_bf16_f32 v{QO+4*pl+col}, v{t[4]}, v{t[5]}")
            a(f"v_cvt_pk_bf16_f32 v{QO+4*pl+2+(1-col)}, v{t[6]}, v{t[7]}")
    a(f"buffer_store_dwordx4 {vr(QO,4)}, v{vq}, s[8:11], s18 offen")
    a(f"buffer_store_dwordx4 {vr(QO+4,4)}, v{vq}, s[8:11], s18 offen offset:16")
    if "stamps" in OPT:
        a("s_cmp_ge_u32 s3, 4"); a("s_cbranch_scc1 L_k2_end"); a("s_cmp_ge_u32 s2, 256"); a("s_cbranch_scc1 L_k2_end")
    stamp_end(a, 1, 8, XX, 3)
    a.label("L_k2_end")
    a("s_endpgm")
    return a

def gen_k3():
    a = Asm(); V = VAlloc(2)
    a.label("k3_kernel")
    a("s_cmp_ge_u32 s2, 256")
    a("s_cbranch_scc1 L_k3_end")
    stamp_begin(a)
    a("s_load_dwordx2 s[4:5], s[0:1], 72")
    a("s_load_dwordx2 s[6:7], s[0:1], 56")
    a("v_lshrrev_b32 v1, 6, v0")
    a("v_and_b32 v0, 63, v0")
    a("v_readfirstlane_b32 s3, v1")
    a("s_and_b32 s16, s2, 7"); a("s_lshl_b32 s16, s16, 5"); a("s_lshr_b32 s17, s2, 3"); a("s_add_u32 s16, s16, s17")
    t = [V() for _ in range(8)]
    vn = V(); vL5 = V(); vdma = V()
    a(f"v_and_b32 v{vn}, 31, v0"); a(f"v_lshrrev_b32 v{vL5}, 5, v0")
    a(f"v_lshrrev_b32 v{t[0]}, 4, v0"); a(f"v_xor_b32 v{t[0]}, v{t[0]}, v0"); a(f"v_and_b32 v{t[0]}, 3, v{t[0]}")
    a(f"v_lshlrev_b32 v{t[0]}, 4, v{t[0]}")
    a(f"v_lshrrev_b32 v{t[1]}, 2, v0"); a(f"v_lshl_or_b32 v{vdma}, v{t[1]}, 14, v{t[0]}")
    a("s_lshl_b32 s18, s3, 20"); a("s_lshl_b32 s19, s16, 6"); a("s_add_u32 s18, s18, s19"); a(f"s_add_u32 s18, s18, {hx(Q_OFF)}")
    a(f"s_add_u32 s19, s19, {hx(Q_OFF + 256 * 16384)}")
    a("s_lshl_b32 s20, s3, 12")
    vb = V(); vo = V()
    a(f"v_cvt_f32_u32 v{vb}, v{vn}")
    a(f"v_cvt_f32_u32 v{vo}, v{vL5}")
    a(f"v_mul_f32 v{vb}, {fl(1/32)}, v{vb}")
    a(f"v_mul_f32 v{vo}, 4.0, v{vo}")
    a(f"v_mul_f32 v{vo}, v{vb}, v{vo}")
    a("s_waitcnt lgkmcnt(0)")
    srd(a, 8, 4, 0x10000000 if "stamps" in OPT else WS_SIZE)
    srd(a, 12, 6, 2048 * 2048)
    for q in range(4):
        a("s_mov_b32 m0, s20")
        a(f"buffer_load_dwordx4 v{vdma}, s[8:11], s18 offen lds")
        if q < 3:
            a("s_add_u32 s20, s20, 1024"); a(f"s_add_u32 s18, s18, {16*16384}")
    a("s_cmp_lg_u32 s3, 0")
    a("s_cbranch_scc1 L_k3_a")
    a("s_mov_b32 m0, 16384")
    a("s_mov_b64 exec, 15")
    a(f"buffer_load_dwordx4 v{vdma}, s[8:11], s19 offen lds")
    a("s_mov_b64 exec, -1")
    a.label("L_k3_a")
    MR = V(16, 4); MI = V(16, 4); TC = V(16); TS_ = V(16)
    for i in range(16):
        kc = 8 * (i // 4) + i % 4
        if kc == 0: a(f"v_mov_b32 v{t[0]}, v{vo}")
        else: a(f"v_fmamk_f32 v{t[0]}, v{vb}, {hx(f2u(float(kc)))}, v{vo}")
        a(f"v_cos_f32 v{t[1]}, v{t[0]}"); a(f"v_sin_f32 v{t[2]}, v{t[0]}")
        a(f"v_mul_f32 v{t[0]}, {fl(1/32)}, v{t[0]}")
        a(f"v_cvt_pk_bf16_f32 v{MR+i}, v{t[1]}, -v{t[2]}")
        a(f"v_cvt_pk_bf16_f32 v{MI+i}, v{t[2]}, v{t[1]}")
        a(f"v_cos_f32 v{TC+i}, v{t[0]}"); a(f"v_sin_f32 v{TS_+i}, v{t[0]}")
    vlo = V(); vE = V(); vO = V(); vst = V()
    a(f"v_bfe_u32 v{t[0]}, v{vn}, 2, 2"); a(f"v_xor_b32 v{t[0]}, s3, v{t[0]}"); a(f"v_lshlrev_b32 v{t[0]}, 4, v{t[0]}")
    a(f"v_lshl_or_b32 v{t[0]}, v{vn}, 6, v{t[0]}"); a(f"v_lshl_or_b32 v{vlo}, v{vL5}, 12, v{t[0]}")
    a(f"v_sub_u32 v{t[1]}, 32, v{vn}")
    a(f"v_bfe_u32 v{t[0]}, v{t[1]}, 2, 2"); a(f"v_xor_b32 v{t[0]}, s3, v{t[0]}"); a(f"v_lshlrev_b32 v{t[0]}, 4, v{t[0]}")
    a(f"v_lshl_or_b32 v{t[0]}, v{t[1]}, 6, v{t[0]}")
    a(f"v_xor_b32 v{t[2]}, 1, v{vL5}"); a(f"v_lshl_add_u32 v{t[0]}, v{t[2]}, 12, v{t[0]}")
    a(f"v_cmp_eq_u32 vcc, 0, v{vn}")
    a(f"v_mov_b32 v{t[3]}, 8"); a(f"v_mov_b32 v{t[4]}, 12"); a(f"v_mov_b32 v{t[5]}, {hx(8-2048)}")
    a(f"v_cndmask_b32 v{t[6]}, v{t[3]}, v{t[4]}, vcc")
    a(f"v_cndmask_b32 v{t[7]}, v{t[4]}, v{t[5]}, vcc")
    a(f"v_add_u32 v{vE}, v{t[0]}, v{t[6]}"); a(f"v_add_u32 v{vO}, v{t[0]}, v{t[7]}")
    a(f"v_lshlrev_b32 v{t[0]}, 4, v{vL5}"); a(f"v_lshl_or_b32 v{vst}, v{vn}, 6, v{t[0]}")
    a("s_lshl_b32 s21, s3, 9"); a("s_add_u32 s21, s21, s16"); a("s_lshl_b32 s21, s21, 11"); a("s_add_u32 s22, s21, 0x80000")
    X = V(16, 4); D1r = V(16, 4); D1i = V(16, 4); D2r = V(16, 4); D2i = V(16, 4)
    a("s_waitcnt vmcnt(0)")
    a("s_barrier")
    for q in range(2):
        for jj in range(2):
            a(f"ds_read_b64 {vr(X+4*q+2*jj,2)}, v{vlo} offset:{q*8192+jj*2048}")
    for q in range(2):
        for jj in range(2):
            off = (4 * (1 - q) + (1 - jj)) * 2048
            a(f"ds_read_b32 v{X+8+4*q+2*jj}, v{vE} offset:{off}")
            a(f"ds_read_b32 v{X+8+4*q+2*jj+1}, v{vO} offset:{off}")
    for q in range(4):
        a(f"s_waitcnt lgkmcnt({[10, 8, 4, 0][q]})")
        a(f"{M32} {vr(D1r,16)}, {vr(X+4*q,4)}, {vr(MR+4*q,4)}, {'0' if q == 0 else vr(D1r,16)}")
        a(f"{M32} {vr(D1i,16)}, {vr(X+4*q,4)}, {vr(MI+4*q,4)}, {'0' if q == 0 else vr(D1i,16)}")
    for q in range(4):
        for e in range(4):
            k = 4 * q + e
            a(f"v_mul_f32 v{t[0]}, v{D1r+k}, v{TC+k}")
            a(f"v_mul_f32 v{t[1]}, v{D1i+k}, v{TC+k}")
            a(f"v_fma_f32 v{t[0]}, -v{D1i+k}, v{TS_+k}, v{t[0]}")
            a(f"v_fmac_f32 v{t[1]}, v{D1r+k}, v{TS_+k}")
            a(f"v_cvt_pk_bf16_f32 v{X+k}, v{t[0]}, v{t[1]}")
        a(f"{M32} {vr(D2r,16)}, {vr(X+4*q,4)}, {vr(MR+4*q,4)}, {'0' if q == 0 else vr(D2r,16)}")
        a(f"{M32} {vr(D2i,16)}, {vr(X+4*q,4)}, {vr(MI+4*q,4)}, {'0' if q == 0 else vr(D2i,16)}")
    O = D1r
    for r, (Dx, so) in enumerate(((D2r, "s21"), (D2i, "s22"))):
        for c2 in range(2):
            o = O + 8 * r + 4 * c2
            for e in range(4):
                a(f"v_cvt_pk_bf16_f32 v{o+e}, v{Dx+8*c2+2*e}, v{Dx+8*c2+2*e+1}")
            a(f"v_permlane32_swap_b32 v{o}, v{o+2}")
            a(f"v_permlane32_swap_b32 v{o+1}, v{o+3}")
            a(f"buffer_store_dwordx4 {vr(o,4)}, v{vst}, s[12:15], {so} offen offset:{32*c2}")
    stamp_end(a, 2, 8, X, 3)
    a.label("L_k3_end")
    a("s_endpgm")
    return a

def kd(name, a):
    nv = (a.maxv + 1 + 7) // 8 * 8
    return f""".p2align 6
.amdhsa_kernel {name}
  .amdhsa_next_free_vgpr {nv}
  .amdhsa_next_free_sgpr {min(102, a.maxs + 1)}
  .amdhsa_accum_offset {nv}
  .amdhsa_group_segment_fixed_size 0
  .amdhsa_kernarg_size 80
  .amdhsa_user_sgpr_count 2
  .amdhsa_user_sgpr_kernarg_segment_ptr 1
  .amdhsa_system_sgpr_workgroup_id_x 1
  .amdhsa_float_denorm_mode_32 3
.end_amdhsa_kernel
"""
ks = [("k1_kernel", gen_k1(), 512, 256, 16384), ("k2_kernel", gen_k2(), 257, 512, 49152), ("k3_kernel", gen_k3(), 256, 256, 16448)]
out = "; gated_mix spectral gfnet: 3-kernel MFMA FFT pipeline (generated by gen.py)\n"
for n, a, g, b, l in ks:
    out += f"; @launch kernel={n} grid=({g},1,1) block=({b},1,1) lds={l}\n"
out += '.amdgcn_target "amdgcn-amd-amdhsa--gfx950"\n.text\n'
for n, a, g, b, l in ks:
    out += f".globl {n}\n.p2align 8\n.type {n},@function\n" + a.text()
    sys.stderr.write(f"{n}: vgpr {a.maxv+1} sgpr {a.maxs+1} lines {len(a.lines)} nops {a.nops}\n")
out += '.section .rodata,"a"\n'
for n, a, g, b, l in ks: out += kd(n, a)
print(out)
```

```python
import re, struct
def f2u(x): return struct.unpack("<I", struct.pack("<f", x))[0]
def hx(x): return "0x%08x" % (x & 0xffffffff)
def fl(x):
    inl = {0.0: "0", 0.5: "0.5", -0.5: "-0.5", 1.0: "1.0", -1.0: "-1.0", 2.0: "2.0", -2.0: "-2.0", 4.0: "4.0", -4.0: "-4.0"}
    if x in inl: return inl[x]
    return hx(f2u(x))
TRANS = ("v_exp_f32", "v_log_f32", "v_rcp_f32", "v_rsq_f32", "v_sqrt_f32", "v_sin_f32", "v_cos_f32")
def regs_of(op, kind):
    out = set()
    op = op.strip()
    op = re.sub(r"^(-|abs\(|\|)+", "", op)
    m = re.match(r"^%s\[(\d+):(\d+)\]" % kind, op)
    if m: return set(range(int(m.group(1)), int(m.group(2)) + 1))
    m = re.match(r"^%s(\d+)\b" % kind, op)
    if m: return {int(m.group(1))}
    if kind == 's':
        if op.startswith("vcc"): return {106, 107}
        if op == "m0": return {124}
        if op.startswith("exec"): return {126, 127}
    return out
class Asm:
    def __init__(self):
        self.lines = []; self.hist = []; self.maxv = 0; self.maxs = 0; self.nops = 0
    def raw(self, t): self.lines.append(t)
    def label(self, l):
        self.lines.append(l + ":")
    def comment(self, t): self.lines.append("    ; " + t)
    def flush_hazards(self, n=12):
        self("s_nop %d" % (n - 1))
    def __call__(self, text):
        text = text.strip()
        parts = text.split(None, 1)
        mn = parts[0]; rest = parts[1] if len(parts) > 1 else ""
        ops = [o.strip() for o in re.split(r",(?![^\[]*\])", rest)] if rest else []
        if ops:
            last = ops[-1].split()
            mods = last[1:]; ops[-1] = last[0] if last else ""
        else: mods = []
        info = dict(mn=mn, vw=set(), vr=set(), sw=set(), sr=set(), cls="other", srcc=set(), ab=set(), passes=0, states=1, sdata=set())
        isv = mn.startswith("v_")
        if mn == "s_nop": info["states"] = int(ops[0], 0) + 1
        elif mn.startswith("v_mfma"):
            info["cls"] = "mfma"; info["passes"] = 8 if "32x32" in mn else 4
            info["vw"] = regs_of(ops[0], 'v'); info["ab"] = regs_of(ops[1], 'v') | regs_of(ops[2], 'v')
            info["srcc"] = regs_of(ops[3], 'v'); info["vr"] = info["ab"] | info["srcc"]
        elif isv:
            info["cls"] = "trans" if mn.replace("_e32", "").replace("_e64", "") in TRANS else "valu"
            if mn.startswith("v_cmp"):
                info["sw"] = regs_of(ops[0], 's'); srcs = ops[1:]
            elif mn.startswith("v_readfirstlane") or mn.startswith("v_readlane"):
                info["sw"] = regs_of(ops[0], 's'); srcs = ops[1:]; info["rl"] = True
            elif mn.startswith("v_permlane"):
                info["vw"] = regs_of(ops[0], 'v') | regs_of(ops[1], 'v'); srcs = ops; info["pl"] = True
            else:
                info["vw"] = regs_of(ops[0], 'v'); srcs = ops[1:]
                if mn.startswith("v_fmac") or mn.startswith("v_dot2c") or mn.startswith("v_writelane") or "_dpp" in mn: srcs = ops
                if "_co_" in mn: info["sw"] = regs_of(ops[1], 's'); srcs = ops[2:]
            for o in srcs:
                info["vr"] |= regs_of(o, 'v'); info["sr"] |= regs_of(o, 's')
            if "_dpp" in mn: info["dpp"] = True
        elif mn.startswith("ds_"):
            info["cls"] = "ds"
            if mn.startswith("ds_read") or "permute" in mn or "swizzle" in mn:
                info["vw"] = regs_of(ops[0], 'v'); srcs = ops[1:]
            else: srcs = ops
            for o in srcs: info["vr"] |= regs_of(o, 'v')
        elif mn.startswith("buffer_") or mn.startswith("global_"):
            info["cls"] = "vmem"
            if "lds" in mods:
                srcs = ops; info["ldsdma"] = True
            elif "load" in mn:
                info["vw"] = regs_of(ops[0], 'v'); srcs = ops if "d16" in mn else ops[1:]
            else:
                srcs = ops
                if "x4" in mn or "x3" in mn: info["sdata"] = regs_of(ops[0] if mn.startswith("buffer_") else ops[1], 'v')
            for o in srcs:
                info["vr"] |= regs_of(o, 'v'); info["sr"] |= regs_of(o, 's')
        elif mn.startswith("s_"):
            info["cls"] = "salu"
            if ops and not mn.startswith("s_cmp") and not mn.startswith("s_cbranch") and mn not in ("s_waitcnt", "s_barrier", "s_branch", "s_endpgm", "s_setprio", "s_sleep"):
                info["sw"] = regs_of(ops[0], 's')
        for r in info["vw"] | info["vr"]: self.maxv = max(self.maxv, r)
        for o in ops:
            for r in regs_of(o, 's'):
                if r < 102: self.maxs = max(self.maxs, r)
        need = 0; d = 0
        X = info
        for P in reversed(self.hist):
            req = 0
            pv = P["cls"] in ("valu", "trans")
            xv = X["cls"] in ("valu", "trans")
            if pv and X["cls"] == "mfma" and (P["vw"] & X["vr"]): req = max(req, 2)
            if P["cls"] == "mfma":
                p8 = P["passes"] == 8
                if X["cls"] == "mfma":
                    if P["vw"] & X["ab"]: req = max(req, 12 if p8 else 8)
                    if P["vw"] & X["srcc"]:
                        if not (X["srcc"] == P["vw"] and X["mn"] == P["mn"]): req = max(req, 10 if p8 else 6)
                    elif P["vw"] & X["vw"] and X["mn"] != P["mn"]: req = max(req, 12 if p8 else 8)
                elif X["cls"] in ("valu", "trans", "ds", "vmem"):
                    if P["vw"] & (X["vr"] | X["vw"]): req = max(req, 12 if p8 else 8)
                    if xv and (P["srcc"] & X["vw"]): req = max(req, 7 if p8 else 3)
            if P["mn"].startswith("v_dot") and (P["vw"] & (X["vr"] | X["vw"])):
                same_c = X["mn"] == P["mn"] and len(ops) >= 3 and not (P["vw"] & (regs_of(ops[1], 'v') | regs_of(ops[2], 'v')))
                if not same_c: req = max(req, 3)
            if P["cls"] == "trans" and X["cls"] in ("valu", "ds", "vmem") and (P["vw"] & X["vr"]): req = max(req, 1)
            if pv and X.get("rl") and (P["vw"] & X["vr"]): req = max(req, 1)
            if pv and X.get("pl") and (P["vw"] & X["vr"]): req = max(req, 2)
            if (pv or P["cls"] in ("ds", "vmem")) and X.get("dpp") and (P["vw"] & X["vr"]): req = max(req, 2)
            if pv and P["sw"]:
                if xv and (P["sw"] & X["sr"]): req = max(req, 4 if X.get("rl") else 2)
                if xv and mn.startswith("v_cndmask") and len(ops) == 4 and (P["sw"] & regs_of(ops[3], 's')): req = max(req, 2)
                if X["cls"] == "vmem" and (P["sw"] & X["sr"]): req = max(req, 5)
            if P["cls"] == "salu" and 124 in P["sw"] and X.get("ldsdma"): req = max(req, 1)
            if P["sdata"] and (P["sdata"] & X["vw"]): req = max(req, 2 if xv else 1)
            need = max(need, req - d)
            d += P["states"]
            if d > 24: break
        if need > 0:
            self.nops += need
            while need > 0:
                k = min(need, 16)
                self.lines.append("    s_nop %d" % (k - 1))
                self.hist.append(dict(mn="s_nop", vw=set(), vr=set(), sw=set(), sr=set(), cls="other", srcc=set(), ab=set(), passes=0, states=k, sdata=set()))
                need -= k
        self.lines.append("    " + text)
        self.hist.append(info)
        if len(self.hist) > 64: self.hist = self.hist[-40:]
    def text(self): return "\n".join(self.lines) + "\n"
class VAlloc:
    def __init__(self, start=0): self.n = start
    def __call__(self, cnt=1, align=1):
        if cnt > 1: align = max(align, 2)
        self.n = (self.n + align - 1) // align * align
        r = self.n; self.n += cnt
        return r
def vr(b, n=1): return "v%d" % b if n == 1 else "v[%d:%d]" % (b, b + n - 1)
def sr(b, n=1): return "s%d" % b if n == 1 else "s[%d:%d]" % (b, b + n - 1)
```

```python
import sys
from asmlib import *
T_OFF = 0; TSB = 16512
S_OFF = 0x500000
G_OFF = 0xE00000
WN_OFF = 0xE10000
WS_SIZE = 0xF00000
WBYTES = 2048 * 1026
M32 = "v_mfma_f32_32x32x16_bf16"
M16 = "v_mfma_f32_16x16x32_bf16"
OPT = set(sys.argv[1:])
WSZ = 0x10000000 if "stamps" in OPT else WS_SIZE
ST1 = " sc1" if "sc1a" in OPT or "sc1" in OPT else ""
ST2 = " sc1" if "sc1b" in OPT or "sc1" in OPT else ""

def srd(a, d, base, size):
    a(f"s_mov_b32 s{d}, s{base}")
    a(f"s_mov_b32 s{d+1}, s{base+1}")
    a(f"s_mov_b32 s{d+2}, {hx(size)}")
    a(f"s_mov_b32 s{d+3}, 0x00020000")
def ts(a, k):
    if "stamps" in OPT:
        a(f"s_memrealtime s[{70+2*k}:{71+2*k}]")
        a("s_waitcnt lgkmcnt(0)")
def stamp_begin(a):
    if "stamps" in OPT:
        a("s_memrealtime s[70:71]")
        for k in range(1, 8): a(f"s_mov_b32 s{70+2*k}, 0")
def stamp_end(a, kidx, wsrd, vt, wavereg, extra=False):
    if "stamps" not in OPT: return
    a("s_memrealtime s[82:83]")
    a("s_waitcnt vmcnt(0)")
    a("s_memrealtime s[84:85]")
    a("s_waitcnt lgkmcnt(0)")
    for k in range(8): a(f"v_mov_b32 v{vt+k}, s{70+2*k}")
    a(f"s_and_b32 s96, s{wavereg}, 3")
    a(f"s_lshl_b32 s96, s96, 5")
    a(f"s_and_b32 s97, s2, 255")
    a(f"s_lshl_b32 s97, s97, 7")
    a(f"s_add_u32 s96, s96, s97")
    a(f"s_add_u32 s96, s96, {hx(0x3000000 + kidx * 32768)}")
    if extra:
        a("s_cmp_eq_u32 s2, 256"); a(f"s_cselect_b32 s97, {4*32768}, 0"); a("s_add_u32 s96, s96, s97")
    a(f"v_mov_b32 v{vt+8}, 0")
    a("s_mov_b64 exec, 1")
    a(f"buffer_store_dwordx4 {vr(vt,4)}, v{vt+8}, {sr(wsrd,4)}, s96 offen")
    a(f"buffer_store_dwordx4 {vr(vt+4,4)}, v{vt+8}, {sr(wsrd,4)}, s96 offen offset:16")

def gen_k1():
    a = Asm(); V = VAlloc(2)
    a.label("k1_kernel")
    a("s_cmp_ge_u32 s2, 256")
    a("s_cbranch_scc1 L_k1_end")
    stamp_begin(a)
    a("s_load_dwordx2 s[4:5], s[0:1], 0")
    a("s_load_dwordx2 s[20:21], s[0:1], 72")
    a("v_lshrrev_b32 v1, 6, v0")
    a("v_and_b32 v0, 63, v0")
    a("v_readfirstlane_b32 s3, v1")
    vl16 = V(); a(f"v_lshlrev_b32 v{vl16}, 4, v0")
    vn = V(); vL5 = V()
    a(f"v_and_b32 v{vn}, 31, v0")
    a(f"v_lshrrev_b32 v{vL5}, 5, v0")
    a("s_and_b32 s36, s3, 3")
    a("s_lshl_b32 s22, s36, 9")
    a("s_add_u32 s22, s22, s2")
    a("s_lshl_b32 s22, s22, 11")
    a("s_add_u32 s23, s22, 0x80000")
    a("s_cmp_ge_u32 s3, 4")
    a("s_cbranch_scc1 L_k1_h")
    base_n = V.n
    a("s_setprio 2")
    CC = V(8, 4); SS = V(8, 4); SN = V(8, 4); TC = V(16); TS_ = V(16)
    vb = V(); vo = V(); vkn = V(); t = [V() for _ in range(8)]
    a(f"v_and_b32 v{t[0]}, 7, v0"); a(f"v_bfe_u32 v{t[1]}, v0, 3, 2")
    a(f"v_lshl_or_b32 v{vkn}, v{t[0]}, 2, v{t[1]}")
    a(f"v_cvt_f32_u32 v{vb}, v{vkn}")
    a(f"v_cvt_f32_u32 v{vo}, v{vL5}")
    a(f"v_mul_f32 v{vb}, {fl(1/32)}, v{vb}")
    a(f"v_mul_f32 v{vo}, 4.0, v{vo}")
    a(f"v_mul_f32 v{vo}, v{vb}, v{vo}")
    a("s_lshl_b32 s24, s3, 12")
    a("s_add_u32 s25, s24, 2048")
    a("s_waitcnt lgkmcnt(0)")
    srd(a, 8, 4, 2048 * 2048)
    a("s_mov_b32 m0, s24")
    a(f"buffer_load_dwordx4 v{vl16}, s[8:11], s22 offen lds")
    a(f"buffer_load_dwordx4 v{vl16}, s[8:11], s22 offen offset:1024 lds")
    a("s_mov_b32 m0, s25")
    a(f"buffer_load_dwordx4 v{vl16}, s[8:11], s23 offen lds")
    a(f"buffer_load_dwordx4 v{vl16}, s[8:11], s23 offen offset:1024 lds")
    if "stamps" in OPT: srd(a, 16, 20, WSZ)
    for i in range(0, 16, 2):
        for e in range(2):
            kc = 8 * ((i + e) // 4) + (i + e) % 4
            if kc == 0: a(f"v_mov_b32 v{t[e]}, v{vo}")
            else: a(f"v_fmamk_f32 v{t[e]}, v{vb}, {hx(f2u(float(kc)))}, v{vo}")
        a(f"v_cos_f32 v{t[2]}, v{t[0]}"); a(f"v_cos_f32 v{t[3]}, v{t[1]}")
        a(f"v_sin_f32 v{t[4]}, v{t[0]}"); a(f"v_sin_f32 v{t[5]}, v{t[1]}")
        a(f"v_mul_f32 v{t[0]}, {fl(1/32)}, v{t[0]}"); a(f"v_mul_f32 v{t[1]}, {fl(1/32)}, v{t[1]}")
        a(f"v_cvt_pk_bf16_f32 v{CC+i//2}, v{t[2]}, v{t[3]}")
        a(f"v_cvt_pk_bf16_f32 v{SS+i//2}, v{t[4]}, v{t[5]}")
        a(f"v_cvt_pk_bf16_f32 v{SN+i//2}, -v{t[4]}, -v{t[5]}")
        a(f"v_cos_f32 v{TC+i}, v{t[0]}"); a(f"v_cos_f32 v{TC+i+1}, v{t[1]}")
        a(f"v_sin_f32 v{TS_+i}, v{t[0]}"); a(f"v_sin_f32 v{TS_+i+1}, v{t[1]}")
    vtr = V()
    a(f"v_lshlrev_b32 v{vtr}, 8, v{vL5}")
    a(f"v_bfe_u32 v{t[0]}, v0, 2, 2"); a(f"v_lshl_or_b32 v{vtr}, v{t[0]}, 6, v{vtr}")
    a(f"v_bfe_u32 v{t[0]}, v0, 4, 1"); a(f"v_lshl_or_b32 v{vtr}, v{t[0]}, 5, v{vtr}")
    a(f"v_and_b32 v{t[0]}, 3, v0"); a(f"v_lshl_or_b32 v{vtr}, v{t[0]}, 3, v{vtr}")
    a(f"v_add_u32 v{vtr}, s24, v{vtr}")
    vpw = V(4)
    a(f"v_and_b32 v{t[0]}, 7, v0"); a(f"v_bfe_u32 v{t[1]}, v0, 3, 2"); a(f"v_lshlrev_b32 v{t[1]}, 1, v{t[1]}")
    a(f"v_xor_b32 v{t[0]}, v{t[0]}, v{t[1]}"); a(f"v_xor_b32 v{t[0]}, v{t[0]}, v{vL5}")
    a(f"v_lshlrev_b32 v{t[0]}, 4, v{t[0]}")
    a(f"v_lshl_or_b32 v{vpw}, v{vkn}, 7, v{t[0]}")
    a("s_add_u32 s26, s24, 16384")
    a(f"v_add_u32 v{vpw}, s26, v{vpw}")
    for c in range(1, 4): a(f"v_xor_b32 v{vpw+c}, {32*c}, v{vpw}")
    XR = V(8, 4); XI = V(8, 4)
    D1r = V(16, 4); D1i = V(16, 4); D2r = V(16, 4); D2i = V(16, 4)
    ts(a, 1)
    a("s_waitcnt vmcnt(0)")
    ts(a, 2)
    for h in range(2):
        for r, X in ((0, XR), (1, XI)):
            for tt in range(2):
                a(f"ds_read_b64_tr_b16 {vr(X+4*h+2*tt,2)}, v{vtr} offset:{r*2048+h*1024+tt*512}")
    a("s_barrier")
    def cpass(R, I, Dr, Di, h, first):
        c0 = "0" if first else vr(Dr, 16); c1 = "0" if first else vr(Di, 16)
        a(f"{M32} {vr(Dr,16)}, {vr(R+4*h,4)}, {vr(CC+4*h,4)}, {c0}")
        a(f"{M32} {vr(Di,16)}, {vr(I+4*h,4)}, {vr(CC+4*h,4)}, {c1}")
        a(f"{M32} {vr(Dr,16)}, {vr(I+4*h,4)}, {vr(SS+4*h,4)}, {vr(Dr,16)}")
        a(f"{M32} {vr(Di,16)}, {vr(R+4*h,4)}, {vr(SN+4*h,4)}, {vr(Di,16)}")
    a("s_waitcnt lgkmcnt(4)")
    cpass(XR, XI, D1r, D1i, 0, True)
    a("s_waitcnt lgkmcnt(0)")
    cpass(XR, XI, D1r, D1i, 1, False)
    for h in range(2):
        for i in range(8 * h, 8 * h + 8, 2):
            for e in range(2):
                k = i + e
                a(f"v_mul_f32 v{t[e]}, v{D1r+k}, v{TC+k}")
                a(f"v_mul_f32 v{t[2+e]}, v{D1i+k}, v{TC+k}")
                a(f"v_fmac_f32 v{t[e]}, v{D1i+k}, v{TS_+k}")
                a(f"v_fma_f32 v{t[2+e]}, -v{D1r+k}, v{TS_+k}, v{t[2+e]}")
            a(f"v_cvt_pk_bf16_f32 v{XR+i//2}, v{t[0]}, v{t[1]}")
            a(f"v_cvt_pk_bf16_f32 v{XI+i//2}, v{t[2]}, v{t[3]}")
        cpass(XR, XI, D2r, D2i, h, h == 0)
    PK = D1r
    for c in range(4):
        for e in range(4):
            a(f"v_cvt_pk_bf16_f32 v{PK+4*c+e}, v{D2r+4*c+e}, v{D2i+4*c+e}")
        a(f"ds_write_b128 v{vpw+c}, {vr(PK+4*c,4)}")
    a("s_waitcnt lgkmcnt(0)")
    ts(a, 3)
    a("s_barrier")
    stamp_end(a, 0, 16, D2r, 3)
    a("s_endpgm")
    a.label("L_k1_h")
    a.hist = []
    V.n = base_n
    t = [V() for _ in range(8)]
    a("s_load_dwordx2 s[6:7], s[0:1], 48")
    a("s_lshl_b32 s26, s36, 3"); a("s_add_u32 s26, s26, 8")
    a("s_cmp_ge_u32 s36, 2"); a("s_cselect_b32 s27, 8, 0"); a("s_add_u32 s26, s26, s27")
    a("s_load_dwordx2 s[28:29], s[0:1], s26")
    vpf = V(); vwn = V(); vwo = V()
    a(f"v_lshrrev_b32 v{t[0]}, 3, v0"); a(f"v_mul_u32_u24 v{vwn}, {8*1026}, v{t[0]}")
    a(f"v_and_b32 v{t[1]}, 7, v0"); a(f"v_lshl_add_u32 v{vpf}, v{t[1]}, 7, v{vwn}")
    a(f"v_lshlrev_b32 v{vwo}, 4, v{t[0]}")
    a("s_and_b32 s30, s2, 7"); a("s_lshr_b32 s31, s2, 3"); a("s_lshl_b32 s31, s31, 6"); a("s_add_u32 s30, s30, s31")
    a("s_lshl_b32 s31, s30, 1"); a("s_lshl_b32 s32, s36, 12"); a("s_add_u32 s31, s31, s32"); a(f"s_add_u32 s31, s31, {hx(WN_OFF)}")
    a("s_mul_i32 s30, s30, 1026")
    a("s_waitcnt lgkmcnt(0)")
    srd(a, 12, 6, 2048)
    srd(a, 16, 20, WSZ)
    srd(a, 40, 28, WBYTES)
    XN = V(16, 4); GW = V(8, 4)
    a(f"buffer_load_dwordx4 {vr(GW,4)}, v{vl16}, s[12:15], 0 offen")
    a(f"buffer_load_dwordx4 {vr(GW+4,4)}, v{vl16}, s[12:15], 0 offen offset:1024")
    vj = V(3)
    NPF = 0 if "nopf" in OPT else (1 if "pf128" in OPT else 2)
    def prefetch():
        a(f"buffer_load_ushort v{vj}, v{vwn}, s[40:43], s30 offen offset:1024")
        if NPF >= 1: a(f"buffer_load_ubyte v{vj+1}, v{vpf}, s[40:43], s30 offen")
        if NPF >= 2: a(f"buffer_load_ubyte v{vj+2}, v{vpf}, s[40:43], s30 offen offset:64")
    if "pf0" in OPT: prefetch()
    vnat = V(); a("s_lshl_b32 s24, s36, 12"); a(f"v_add_u32 v{vnat}, s24, v{vl16}")
    MA = V(4, 4)
    vu = V(); vA = V(); vB1 = V(); vB2 = V(); vsg = V()
    a(f"v_bfe_u32 v{t[0]}, v0, 3, 1"); a(f"v_bfe_u32 v{t[1]}, v0, 1, 1")
    a(f"v_lshl_or_b32 v{t[0]}, v{t[0]}, 1, v{t[1]}")
    a(f"v_and_or_b32 v{vu}, v0, 4, v{t[0]}")
    a(f"v_cvt_f32_u32 v{vu}, v{vu}")
    a(f"v_cvt_f32_u32 v{vsg}, v{vL5}")
    a(f"v_fma_f32 v{vsg}, v{vsg}, -2.0, 1.0")
    a(f"v_mul_f32 v{vA}, v{vu}, v{vsg}")
    a(f"v_mul_f32 v{vA}, {fl(0.125)}, v{vA}")
    a(f"v_and_b32 v{t[0]}, 1, v0"); a(f"v_cvt_f32_u32 v{t[0]}, v{t[0]}")
    a(f"v_mul_f32 v{vB1}, v{t[0]}, v{vsg}"); a(f"v_mul_f32 v{vB1}, {fl(0.25)}, v{vB1}")
    a(f"v_cvt_f32_u32 v{t[1]}, s2"); a(f"v_mul_f32 v{t[1]}, {fl(1/256)}, v{t[1]}")
    a(f"v_fmac_f32 v{vB1}, v{t[1]}, v{vA}")
    a(f"v_add_f32 v{vB2}, {fl(0.25)}, v{vB1}")
    for pp in range(4):
        if pp == 0: a(f"v_mov_b32 v{t[0]}, v{vB1}")
        else: a(f"v_fmamk_f32 v{t[0]}, v{vA}, {hx(f2u(2.0*pp))}, v{vB1}")
        a(f"v_fmamk_f32 v{t[1]}, v{vA}, {hx(f2u(2.0*pp+1))}, v{vB2}")
        a(f"v_cos_f32 v{t[2]}, v{t[0]}"); a(f"v_cos_f32 v{t[3]}, v{t[1]}")
        a(f"v_sin_f32 v{t[4]}, v{t[0]}"); a(f"v_sin_f32 v{t[5]}, v{t[1]}")
        a(f"v_add_f32 v{t[2]}, v{t[2]}, v{t[3]}")
        a(f"v_add_f32 v{t[4]}, v{t[4]}, v{t[5]}")
        a(f"v_cvt_pk_bf16_f32 v{MA+pp}, v{t[2]}, v{t[4]}")
    vmr = V(5); vk = V(); vneg = V()
    a("s_lshl_b32 s33, s36, 7")
    a(f"v_lshlrev_b32 v{t[0]}, 2, v{vn}")
    a(f"v_sub_u32 v{vneg}, 0, v{vL5}")
    for q in range(5):
        if q < 4:
            a(f"v_add3_u32 v{vk}, v{t[0]}, s33, {q}")
        else:
            a(f"v_add_u32 v{vk}, 512, v{t[0]}")
        a(f"v_xor_b32 v{vk}, v{vk}, v{vneg}"); a(f"v_add_u32 v{vk}, v{vk}, v{vL5}")
        a(f"v_bfe_u32 v{t[1]}, v{vk}, 5, 5")
        a(f"v_bfe_u32 v{t[2]}, v{vk}, 7, 3")
        a(f"v_xor_b32 v{t[3]}, v{vk}, v{t[1]}")
        a(f"v_and_b32 v{t[3]}, 3, v{t[3]}")
        a(f"v_bfe_u32 v{t[4]}, v{vk}, 4, 1")
        a(f"v_lshl_or_b32 v{t[3]}, v{t[3]}, 1, v{t[4]}")
        a(f"v_xor_b32 v{t[3]}, v{t[3]}, v{t[2]}")
        a(f"v_and_b32 v{t[4]}, 12, v{vk}")
        a(f"v_lshl_or_b32 v{t[4]}, v{t[3]}, 4, v{t[4]}")
        a(f"v_lshl_or_b32 v{vmr+q}, v{t[1]}, 7, v{t[4]}")
    vts = V(); vtn = V()
    a(f"v_lshlrev_b32 v{t[0]}, 13, v{vL5}"); a(f"v_lshl_or_b32 v{vts}, v{vn}, 4, v{t[0]}")
    a(f"v_lshlrev_b32 v{vtn}, 4, v{vL5}")
    a(f"s_mul_i32 s34, s2, {TSB}")
    a("s_lshl_b32 s35, s36, 9"); a("s_add_u32 s35, s35, s34"); a("s_add_u32 s37, s35, 4096")
    a("s_add_u32 s34, s34, 16384")
    a("s_mov_b32 s33, 0xffff0000")
    acc = V(4, 4); ones = V(); GU = V(16)
    a(f"v_mov_b32 v{ones}, 0x3f803f80")
    a(f"v_mov_b32 v{acc}, 0"); a(f"v_mov_b32 v{acc+2}, 0")
    a(f"s_waitcnt vmcnt({(1+NPF) if 'pf0' in OPT else 0})")
    if "pf0" not in OPT and "pf2" not in OPT: prefetch()
    for j in range(8):
        a(f"v_lshlrev_b32 v{GU+2*j}, 16, v{GW+j}")
        a(f"v_and_b32 v{GU+2*j+1}, s33, v{GW+j}")
    ts(a, 1)
    a("s_barrier")
    for r in range(2):
        for q in range(2):
            a(f"ds_read_b128 {vr(XN+8*r+4*q,4)}, v{vnat} offset:{r*2048+q*1024}")
    if "pf2" in OPT: prefetch()
    a("s_waitcnt lgkmcnt(0)")
    ts(a, 2)
    for j in range(8):
        for r in range(2):
            a(f"v_lshlrev_b32 v{t[2*r]}, 16, v{XN+8*r+j}")
            a(f"v_and_b32 v{t[2*r+1]}, s33, v{XN+8*r+j}")
        for r in range(2):
            a(f"v_mul_f32 v{t[2*r]}, v{t[2*r]}, v{GU+2*j}")
            a(f"v_mul_f32 v{t[2*r+1]}, v{t[2*r+1]}, v{GU+2*j+1}")
        for r in range(2):
            a(f"v_cvt_pk_bf16_f32 v{t[4+r]}, v{t[2*r]}, v{t[2*r+1]}")
        for r in range(2):
            a(f"v_dot2_f32_bf16 v{acc+2*r}, v{t[4+r]}, v{ones}, v{acc+2*r}")
    for dpp in ("row_shr:1", "row_shr:2", "row_shr:4", "row_shr:8"):
        for r in range(2):
            a(f"v_add_f32_dpp v{acc+2*r}, v{acc+2*r}, v{acc+2*r} {dpp} row_mask:0xf bank_mask:0xf bound_ctrl:0")
    for dpp, rm in (("row_bcast:15", "0xa"), ("row_bcast:31", "0xc")):
        for r in range(2):
            a(f"v_add_f32_dpp v{acc+2*r}, v{acc+2*r}, v{acc+2*r} {dpp} row_mask:{rm} bank_mask:0xf")
    a(f"v_cvt_pk_bf16_f32 v{t[0]}, v{acc}, v{acc+2}")
    a(f"v_lshlrev_b32 v{t[1]}, 16, v{t[0]}")
    a(f"v_and_b32 v{t[2]}, s33, v{t[0]}")
    for r in range(2): a(f"v_mul_f32 v{t[1+r]}, {hx(f2u(-1.4426950408889634))}, v{t[1+r]}")
    for r in range(2): a(f"v_exp_f32 v{t[1+r]}, v{t[1+r]}")
    for r in range(2): a(f"v_add_f32 v{t[1+r]}, 1.0, v{t[1+r]}")
    for r in range(2): a(f"v_rcp_f32 v{t[1+r]}, v{t[1+r]}")
    a(f"v_cvt_pk_bf16_f32 v{t[0]}, v{t[1]}, v{t[2]}")
    a(f"v_lshlrev_b32 v{acc}, 16, v{t[0]}")
    a(f"v_and_b32 v{acc+2}, s33, v{t[0]}")
    a(f"v_sub_f32 v{t[1]}, 1.0, v{acc}")
    a(f"v_sub_f32 v{t[2]}, 1.0, v{acc+2}")
    a(f"v_cvt_pk_bf16_f32 v{t[0]}, v{t[1]}, v{t[2]}")
    a(f"v_lshlrev_b32 v{acc+1}, 16, v{t[0]}")
    a(f"v_and_b32 v{acc+3}, s33, v{t[0]}")
    for r in range(4): a(f"v_mul_f32 v{acc+r}, {hx(f2u(2.0**-22))}, v{acc+r}")
    a("s_lshl_b32 s38, s2, 6"); a("s_lshl_b32 s39, s36, 4"); a("s_add_u32 s38, s38, s39")
    a(f"s_add_u32 s38, s38, {hx(G_OFF)}")
    a(f"v_mov_b32 v{t[3]}, 0")
    a("s_mov_b32 exec_lo, 0"); a("s_mov_b32 exec_hi, 0x80000000")
    a(f"buffer_store_dwordx4 {vr(acc,4)}, v{t[3]}, s[16:19], s38 offen")
    a("s_mov_b64 exec, -1")
    ts(a, 3)
    a("s_barrier")
    ts(a, 4)
    MB = XN; MB4 = GW
    for q in range(4):
        a(f"ds_read2st64_b32 {vr(MB+4*q,2)}, v{vmr+q} offset0:64 offset1:80")
        a(f"ds_read2st64_b32 {vr(MB+4*q+2,2)}, v{vmr+q} offset0:96 offset1:112")
    a(f"ds_read2st64_b32 {vr(MB4,2)}, v{vmr+4} offset0:64 offset1:80")
    a(f"ds_read2st64_b32 {vr(MB4+2,2)}, v{vmr+4} offset0:96 offset1:112")
    DM = [V(16, 4) for _ in range(5)]
    for q in range(4):
        a(f"s_waitcnt lgkmcnt({8-2*q})")
        a(f"{M32} {vr(DM[q],16)}, {vr(MA,4)}, {vr(MB+4*q,4)}, 0")
    a("s_waitcnt lgkmcnt(0)")
    a(f"{M32} {vr(DM[4],16)}, {vr(MA,4)}, {vr(MB4,4)}, 0")
    OUT = GU if GU % 4 == 0 else V(16, 4)
    for s_ in range(4):
        for q in range(4):
            a(f"v_cvt_pk_bf16_f32 v{OUT+4*s_+q}, v{DM[q]+2*s_}, v{DM[q]+2*s_+1}")
        a(f"buffer_store_dwordx4 {vr(OUT+4*s_,4)}, v{vts}, s[16:19], {'s35' if s_ < 2 else 's37'} offen offset:{(s_&1)*2048}{ST1}")
    a(f"s_waitcnt vmcnt({5+NPF})")
    a("s_mov_b32 exec_lo, 0x01010101"); a("s_mov_b32 exec_hi, 0x01010101")
    a(f"buffer_store_short v{vj}, v{vwo}, s[16:19], s31 offen")
    a("s_mov_b64 exec, -1")
    for s_ in range(4):
        a(f"v_cvt_pk_bf16_f32 v{MB+s_}, v{DM[4]+2*s_}, v{DM[4]+2*s_+1}")
    a("s_cmp_lg_u32 s36, 0")
    a("s_cbranch_scc1 L_k1_fin")
    a("s_mov_b32 exec_lo, 1"); a("s_mov_b32 exec_hi, 1")
    a(f"buffer_store_dwordx4 {vr(MB,4)}, v{vtn}, s[16:19], s34 offen")
    a("s_mov_b64 exec, -1")
    a.label("L_k1_fin")
    stamp_end(a, 3, 16, DM[0], 3)
    a.label("L_k1_end")
    a("s_endpgm")
    return a

def gen_k2():
    a = Asm(); V = VAlloc(2)
    a.label("k2_kernel")
    a("s_cmp_ge_u32 s2, 257")
    a("s_cbranch_scc1 L_k2_end")
    stamp_begin(a)
    a("s_load_dwordx2 s[4:5], s[0:1], 72")
    a("s_load_dwordx4 s[12:15], s[0:1], 8")
    a("s_load_dwordx4 s[16:19], s[0:1], 32")
    a("v_lshrrev_b32 v1, 6, v0")
    a("v_and_b32 v0, 63, v0")
    a("v_readfirstlane_b32 s3, v1")
    vg = V(); vc = V()
    SC = V(16, 4)
    t = [SC + k for k in range(6)]
    vS = V(); vw1 = V(); vr1 = V(); vT = V()
    WW = V(32, 4)
    vW = 1
    vTr = V(); vWr = V()
    TL = 49152
    a("s_and_b32 s6, s2, 7"); a("s_lshl_b32 s6, s6, 5"); a("s_lshr_b32 s7, s2, 3"); a("s_add_u32 s6, s6, s7")
    a("s_and_b32 s20, s2, 7"); a("s_mul_i32 s20, s20, 1026"); a("s_lshl_b32 s21, s7, 5"); a("s_add_u32 s20, s20, s21")
    a("s_cmp_eq_u32 s2, 256")
    a("s_cselect_b32 s6, 256, s6")
    a("s_cselect_b32 s20, 0, s20")
    a(f"s_cselect_b32 s21, 16, {8*1026}")
    a(f"s_mov_b32 s22, {hx(WBYTES)}")
    a(f"s_cselect_b32 s22, 4096, s22")
    a(f"v_lshrrev_b32 v{vg}, 4, v0"); a(f"v_and_b32 v{vc}, 15, v0")
    a(f"v_lshrrev_b32 v{t[0]}, 2, v0"); a(f"v_mul_u32_u24 v{vT}, {16*TSB}, v{t[0]}")
    a(f"v_and_b32 v{t[0]}, 3, v0"); a(f"v_lshl_add_u32 v{vT}, v{t[0]}, 4, v{vT}")
    a(f"v_bfe_u32 v{t[0]}, v0, 1, 4"); a(f"v_lshrrev_b32 v{t[1]}, 5, v0"); a(f"v_lshl_add_u32 v{t[0]}, v{t[0]}, 4, v{t[1]}")
    a(f"v_mul_u32_u24 v{vW}, s21, v{t[0]}")
    a(f"v_and_b32 v{t[0]}, 1, v0"); a(f"v_lshl_add_u32 v{vW}, v{t[0]}, 4, v{vW}")
    a(f"s_mul_i32 s24, s3, {2*TSB}"); a("s_lshl_b32 s25, s6, 6"); a("s_add_u32 s24, s24, s25")
    a(f"s_add_u32 s26, s24, {TSB}")
    a("s_lshl_b32 s25, s3, 1"); a("s_mul_i32 s25, s25, s21"); a("s_add_u32 s25, s25, s20")
    a("s_lshl_b32 s27, s3, 11"); a(f"s_add_u32 s27, s27, {TL}")
    a("s_lshl_b32 s23, s3, 12"); a("s_add_u32 s23, s23, 16384")
    a("s_waitcnt lgkmcnt(0)")
    srd(a, 8, 4, WSZ)
    TB = V(8, 4)
    a("s_mov_b32 m0, s27")
    a(f"buffer_load_dwordx4 v{vT}, s[8:11], s24 offen lds")
    a("s_add_u32 m0, s27, 1024")
    a(f"buffer_load_dwordx4 v{vT}, s[8:11], s26 offen lds")
    a("s_cmp_eq_u32 s2, 256")
    a("s_cbranch_scc1 L_k2_n")
    for arr in range(4):
        a(f"s_mov_b32 s{32+4*arr}, s{12+2*arr}"); a(f"s_mov_b32 s{33+4*arr}, s{13+2*arr}")
    a.label("L_k2_nb")
    for arr in range(4):
        a(f"s_mov_b32 s{34+4*arr}, s22"); a(f"s_mov_b32 s{35+4*arr}, 0x00020000")
        a(f"s_add_u32 m0, s23, {1024*arr}")
        a(f"buffer_load_dwordx4 v{vW}, {sr(32+4*arr,4)}, s25 offen lds")
    a(f"v_lshlrev_b32 v{t[0]}, 2, v{vc}"); a(f"v_lshl_or_b32 v{vTr}, v{vg}, 8, v{t[0]}"); a(f"v_add_u32 v{vTr}, s27, v{vTr}")
    a(f"v_lshlrev_b32 v{vWr}, 3, v0"); a(f"v_add_u32 v{vWr}, s23, v{vWr}")
    Fr = V(4, 4); Fm = V(4, 4); M2 = V(16, 4); MT = V(16, 4)
    vlf = SC + 6; vkf = SC + 7; vc0 = SC + 8; vlc = SC + 10
    a(f"v_cvt_f32_u32 v{vlf}, v{vc}")
    a(f"v_cvt_f32_u32 v{vkf}, v{vg}"); a(f"v_mul_f32 v{vkf}, 4.0, v{vkf}")
    a(f"v_cvt_f32_u32 v{vc0}, s3"); a(f"v_mul_f32 v{vc0}, {fl(1/128)}, v{vc0}")
    a(f"v_mul_f32 v{vlc}, v{vlf}, v{vc0}")
    a(f"v_fmamk_f32 v{vlc+1}, v{vlf}, {hx(f2u(1/256))}, v{vlc}")
    a(f"v_mul_f32 v{vlf}, {fl(1/16)}, v{vlf}")
    def mat(ang, Mr, Mm):
        a(f"v_cos_f32 v{t[3]}, v{ang}"); a(f"v_sin_f32 v{t[4]}, v{ang}")
        return (Mr, Mm)
    def matfin(Mr, Mm):
        a(f"v_cvt_pk_bf16_f32 v{Mr}, v{t[3]}, v{t[4]}")
        a(f"v_cvt_pk_bf16_f32 v{Mm}, -v{t[4]}, v{t[3]}")
    FA = SC + 12
    for i in range(4):
        if i: a(f"v_add_f32 v{vkf}, 1.0, v{vkf}")
        a(f"v_mul_f32 v{FA+i}, v{vkf}, v{vlf}")
        mat(FA + i, 0, 0); a("s_nop 0"); matfin(Fr + i, Fm + i)
    a(f"v_lshlrev_b32 v{t[0]}, 4, v{vc}")
    a(f"v_lshl_or_b32 v{vw1}, v{vg}, 12, v{t[0]}"); a("s_lshl_b32 s28, s3, 8"); a(f"v_add_u32 v{vw1}, s28, v{vw1}")
    a(f"v_lshl_or_b32 v{vr1}, v{vg}, 9, v{t[0]}"); a("s_lshl_b32 s29, s3, 11"); a(f"v_add_u32 v{vr1}, s29, v{vr1}")
    a(f"v_lshlrev_b32 v{t[0]}, 3, v{vc}"); a(f"v_lshl_or_b32 v{vS}, v{vg}, 13, v{t[0]}")
    a("s_lshl_b32 s30, s6, 15"); a("s_add_u32 s30, s30, s28"); a(f"s_add_u32 s30, s30, {hx(S_OFF)}"); a("s_add_u32 s31, s30, 4096")
    for i in range(3, -1, -1):
        a(f"v_fma_f32 v{t[0]}, v{vkf}, v{vc0}, v{FA+i}")
        a(f"v_fmamk_f32 v{t[1]}, v{vkf}, {hx(f2u(1/256))}, v{t[0]}")
        mat(t[0], 0, 0); a(f"v_add_f32 v{t[2]}, v{FA+i}, v{vlc}"); matfin(M2 + i, M2 + 4 + i)
        mat(t[1], 0, 0); a(f"v_add_f32 v{t[5]}, v{FA+i}, v{vlc+1}"); matfin(M2 + 8 + i, M2 + 12 + i)
        mat(t[2], 0, 0); a(f"v_subrev_f32 v{vkf}, 1.0, v{vkf}"); matfin(MT + i, MT + 4 + i)
        mat(t[5], 0, 0); a("s_nop 0"); matfin(MT + 8 + i, MT + 12 + i)
    D = V(16, 4)
    PKD = SC + 8
    ts(a, 1)
    a("s_waitcnt vmcnt(4)")
    ts(a, 2)
    for bb in range(2):
        a(f"ds_read2_b32 {vr(TB+4*bb,2)}, v{vTr} offset0:{0} offset1:{16}") if bb == 0 else None
        if bb == 0:
            a(f"ds_read2_b32 {vr(TB+2,2)}, v{vTr} offset0:32 offset1:48")
            a(f"v_add_u32 v{vTr}, 1024, v{vTr}")
            a(f"ds_read2_b32 {vr(TB+4,2)}, v{vTr} offset0:0 offset1:16")
            a(f"ds_read2_b32 {vr(TB+6,2)}, v{vTr} offset0:32 offset1:48")
    for bb in range(2):
        a(f"s_waitcnt lgkmcnt({2-2*bb})")
        a(f"{M16} {vr(D+8*bb,4)}, {vr(Fr,4)}, {vr(TB+4*bb,4)}, 0")
        a(f"{M16} {vr(D+8*bb+4,4)}, {vr(Fm,4)}, {vr(TB+4*bb,4)}, 0")
    for ip in range(2):
        for cc in range(2):
            for bb in range(2):
                i = 2 * ip + cc
                a(f"v_cvt_pk_bf16_f32 v{PKD+4*ip+2*cc+bb}, v{D+8*bb+i}, v{D+8*bb+4+i}")
        a(f"ds_write_b128 v{vw1}, {vr(PKD+4*ip,4)} offset:{ip*2048}")
    a("s_waitcnt vmcnt(0)")
    for arr in range(4):
        for cc in range(2):
            a(f"ds_read_b64_tr_b16 {vr(WW+8*arr+4*cc+2,2)}, v{vWr} offset:{1024*arr+512*cc}")
    a("s_mov_b32 s13, 0xffff0000")
    a("s_waitcnt lgkmcnt(0)")
    a("s_barrier")
    ts(a, 3)
    OB = TB
    for cc in range(2):
        for h in range(2):
            a(f"ds_read_b64 {vr(OB+4*cc+2*h,2)}, v{vr1} offset:{h*256+cc*8}")
    X = D
    def unpack(arr, cc):
        w = WW + 8 * arr + 4 * cc
        a(f"v_lshlrev_b32 v{w}, 16, v{w+2}"); a(f"v_and_b32 v{w+1}, s13, v{w+2}")
        a(f"v_lshlrev_b32 v{w+2}, 16, v{w+3}"); a(f"v_and_b32 v{w+3}, s13, v{w+3}")
    for arr in range(4): unpack(arr, 0)
    for cc in range(2):
        a(f"s_waitcnt lgkmcnt({2-2*cc})")
        a(f"{M16} {vr(X+8*cc,4)}, {vr(M2+8*cc,4)}, {vr(OB+4*cc,4)}, 0")
        a(f"{M16} {vr(X+8*cc+4,4)}, {vr(M2+8*cc+4,4)}, {vr(OB+4*cc,4)}, 0")
    YO = [PKD, PKD + 4, TB, TB + 4]
    DP = M2
    tp = SC
    def dpt(cc, ab, ri):
        return DP + 8 * ab + 4 * ri if cc == 0 else WW + 8 * (2 * ab + ri)
    for arr in range(4): unpack(arr, 1)
    for cc in range(2):
        if cc == 0: ts(a, 4)
        for ab in range(2):
            n = 2 * cc + ab
            wr = WW + 8 * (2 * ab) + 4 * cc; wi = WW + 8 * (2 * ab + 1) + 4 * cc
            xr = X + 8 * cc; xi = X + 8 * cc + 4
            if "pk" in OPT:
                for i in (0, 2):
                    yr = tp + 2 * i; yi = tp + 2 * i + 2
                    a(f"v_pk_mul_f32 {vr(yr,2)}, {vr(xr+i,2)}, {vr(wr+i,2)}")
                    a(f"v_pk_mul_f32 {vr(yi,2)}, {vr(xi+i,2)}, {vr(wr+i,2)}")
                    a(f"v_pk_fma_f32 {vr(yr,2)}, {vr(xi+i,2)}, {vr(wi+i,2)}, {vr(yr,2)} neg_lo:[1,0,0] neg_hi:[1,0,0]")
                    a(f"v_pk_fma_f32 {vr(yi,2)}, {vr(xr+i,2)}, {vr(wi+i,2)}, {vr(yi,2)}")
                for i in range(4):
                    yr = tp + 2 * (i & 2) + (i & 1); yi = yr + 2
                    a(f"v_cvt_pk_bf16_f32 v{YO[n]+i}, v{yi}, v{yr}")
            else:
                for i in range(4):
                    a(f"v_mul_f32 v{tp+2*i}, v{xr+i}, v{wr+i}")
                    a(f"v_mul_f32 v{tp+2*i+1}, v{xi+i}, v{wr+i}")
                    a(f"v_fma_f32 v{tp+2*i}, -v{xi+i}, v{wi+i}, v{tp+2*i}")
                    a(f"v_fmac_f32 v{tp+2*i+1}, v{xr+i}, v{wi+i}")
                    a(f"v_cvt_pk_bf16_f32 v{YO[n]+i}, v{tp+2*i+1}, v{tp+2*i}")
            a(f"{M16} {vr(dpt(cc,ab,0),4)}, {vr(MT+8*cc,4)}, {vr(YO[n],4)}, 0")
            a(f"{M16} {vr(dpt(cc,ab,1),4)}, {vr(MT+8*cc+4,4)}, {vr(YO[n],4)}, 0")
    P2 = D
    for ab in range(2):
        for ip in range(2):
            for cc in range(2):
                for bb in range(2):
                    i = 2 * ip + bb
                    a(f"v_cvt_pk_bf16_f32 v{P2+8*ab+4*ip+2*bb+cc}, v{dpt(cc,ab,0)+i}, v{dpt(cc,ab,1)+i}")
            a(f"ds_write_b128 v{vw1}, {vr(P2+8*ab+4*ip,4)} offset:{16384*(1+ab)+ip*2048}")
    a("s_waitcnt lgkmcnt(0)")
    a("s_barrier")
    ts(a, 5)
    O2 = WW + 16
    for bb in range(2):
        for ab in range(2):
            for h in range(2):
                a(f"ds_read_b64 {vr(O2+8*bb+4*ab+2*h,2)}, v{vr1} offset:{16384*(1+ab)+h*256+bb*8}")
    E = [M2, M2 + 8, MT, MT + 8]
    for bb in range(2):
        for ab in range(2):
            n = 2 * bb + ab
            a(f"s_waitcnt lgkmcnt({6-2*n})")
            a(f"{M16} {vr(E[n],4)}, {vr(Fr,4)}, {vr(O2+4*n,4)}, 0")
            a(f"{M16} {vr(E[n]+4,4)}, {vr(Fm,4)}, {vr(O2+4*n,4)}, 0")
    SO = WW
    for bb in range(2):
        for i in range(4):
            for ab in range(2):
                n = 2 * bb + ab
                a(f"v_cvt_pk_bf16_f32 v{SO+8*bb+2*i+ab}, v{E[n]+4+i}, v{E[n]+i}")
            a(f"buffer_store_dwordx2 {vr(SO+8*bb+2*i,2)}, v{vS}, s[8:11], {'s30' if i < 2 else 's31'} offen offset:{(i&1)*2048+bb*128}{ST2}")
    if "stamps" in OPT:
        a("s_cmp_ge_u32 s3, 4"); a("s_cbranch_scc1 L_k2_end")
    stamp_end(a, 1, 8, D, 3, extra=True)
    a.label("L_k2_end")
    a("s_endpgm")
    a.label("L_k2_n")
    for arr in range(4):
        a(f"s_add_u32 s{32+4*arr}, s4, {hx(WN_OFF + 4096*arr)}"); a(f"s_addc_u32 s{33+4*arr}, s5, 0")
    a("s_branch L_k2_nb")
    return a

def gen_k3():
    a = Asm(); V = VAlloc(2)
    a.label("k3_kernel")
    a("s_cmp_ge_u32 s2, 256")
    a("s_cbranch_scc1 L_k3_end")
    stamp_begin(a)
    a("s_load_dwordx2 s[4:5], s[0:1], 72")
    a("s_load_dwordx2 s[6:7], s[0:1], 56")
    a("v_lshrrev_b32 v1, 6, v0")
    a("v_and_b32 v0, 63, v0")
    a("v_readfirstlane_b32 s3, v1")
    a("s_mov_b32 s16, s2")
    a("s_cmp_lt_u32 s3, 4")
    a("s_cbranch_scc1 L_k3_f")
    base_n = V.n
    a("s_setprio 2")
    a("s_and_b32 s17, s3, 3")
    t = [V() for _ in range(8)]
    vg = V(); vc = V(); vS = V(); vN = V(); vG = V()
    a(f"v_lshrrev_b32 v{vg}, 4, v0"); a(f"v_and_b32 v{vc}, 15, v0")
    a(f"v_lshlrev_b32 v{t[0]}, 3, v{vc}"); a(f"v_lshl_or_b32 v{vS}, v{vg}, 21, v{t[0]}")
    a(f"v_lshlrev_b32 v{vN}, 4, v{vg}")
    a(f"v_bfe_u32 v{t[0]}, v0, 2, 2"); a(f"v_lshlrev_b32 v{vG}, 4, v{t[0]}")
    a("s_lshl_b32 s18, s16, 7"); a(f"s_add_u32 s18, s18, {hx(S_OFF)}")
    a(f"s_add_u32 s19, s18, {hx(256*32768)}")
    a("s_lshl_b32 s20, s17, 15"); a("s_add_u32 s18, s18, s20")
    a("s_lshl_b32 s21, s16, 6"); a(f"s_add_u32 s21, s21, {hx(G_OFF)}")
    a("s_waitcnt lgkmcnt(0)")
    srd(a, 8, 4, WSZ)
    GG = V(4, 4); SB = V(36, 4)
    a(f"buffer_load_dwordx4 {vr(GG,4)}, v{vG}, s[8:11], s21 offen")
    for tt in range(8):
        for lo in range(2):
            a(f"s_add_u32 s22, s18, {hx(tt*4*32768 + lo*(1<<20))}")
            a(f"buffer_load_dwordx2 {vr(SB+4*tt+2*lo,2)}, v{vS}, s[8:11], s22 offen")
    a(f"buffer_load_dwordx4 {vr(SB+32,4)}, v{vN}, s[8:11], s19 offen")
    vsg = V(); ve = V(); vstep = V(); vpe = V(); vpo = V()
    CS = V(8)
    a(f"v_bfe_u32 v{t[1]}, v0, 1, 1"); a(f"v_cvt_f32_u32 v{vsg}, v{t[1]}")
    a(f"v_fma_f32 v{vsg}, v{vsg}, -0.5, {fl(0.25)}") if False else None
    a(f"v_mul_f32 v{vsg}, -0.5, v{vsg}"); a(f"v_add_f32 v{vsg}, {fl(0.25)}, v{vsg}")
    a(f"v_and_b32 v{t[1]}, 1, v0"); a(f"v_cvt_f32_u32 v{t[1]}, v{t[1]}")
    a(f"v_mul_f32 v{ve}, v{t[1]}, v{vsg}")
    a(f"v_lshlrev_b32 v{t[0]}, 9, v{t[0]}"); a(f"v_add_u32 v{t[0]}, s16, v{t[0]}")
    a(f"v_cvt_f32_u32 v{vstep}, v{t[0]}"); a(f"v_mul_f32 v{vstep}, {hx(f2u(-1/2048))}, v{vstep}")
    a(f"v_cvt_f32_u32 v{t[2]}, v{vg}"); a(f"v_add_f32 v{t[2]}, v{t[2]}, v{t[2]}")
    a(f"v_fma_f32 v{vpe}, v{t[2]}, v{vstep}, v{ve}")
    a(f"v_sub_f32 v{vpo}, v{vpe}, v{vsg}")
    a(f"v_fmamk_f32 v{vpo}, v{t[2]}, {hx(f2u(-0.125))}, v{vpo}")
    for lo in range(2):
        if lo:
            a(f"v_add_f32 v{vpe}, v{vpe}, v{vstep}")
            a(f"v_add_f32 v{vpo}, v{vpo}, v{vstep}"); a(f"v_add_f32 v{vpo}, {hx(f2u(-0.125))}, v{vpo}")
        a(f"v_cos_f32 v{CS+4*lo}, v{vpe}"); a(f"v_sin_f32 v{CS+4*lo+1}, v{vpe}")
        a(f"v_cos_f32 v{CS+4*lo+2}, v{vpo}"); a(f"v_sin_f32 v{CS+4*lo+3}, v{vpo}")
    AP = V(9); AM = V(9); vk = V(); vpl = V()
    a("s_lshl_b32 s23, s17, 4")
    a(f"v_lshlrev_b32 v{vpl}, 12, v{vg}")
    def addr(dst, kreg):
        a(f"v_lshrrev_b32 v{t[3]}, 6, v{kreg}"); a(f"v_xor_b32 v{t[3]}, v{t[3]}, v{kreg}")
        a(f"v_and_b32 v{t[3]}, 14, v{t[3]}"); a(f"v_lshl_or_b32 v{t[3]}, v{t[3]}, 3, v{vpl}")
        a(f"v_and_b32 v{t[4]}, 31, v{kreg}"); a(f"v_lshl_or_b32 v{t[3]}, v{t[4]}, 7, v{t[3]}")
        a(f"v_bfe_u32 v{t[4]}, v{kreg}, 5, 2"); a(f"v_lshl_or_b32 v{dst}, v{t[4]}, 2, v{t[3]}")
    a(f"v_add_u32 v{vk}, s23, v{vc}")
    addr(AP, vk)
    for tt in range(2, 8, 2): a(f"v_xor_b32 v{AP+tt}, {(tt>>1)<<4}, v{AP}")
    a(f"v_mov_b32 v{t[5]}, 512"); addr(AP + 8, t[5])
    a(f"v_sub_u32 v{t[5]}, 0, v{vk}")
    a(f"v_and_b32 v{t[4]}, 31, v{t[5]}"); a(f"v_lshl_or_b32 v{t[6]}, v{t[4]}, 7, v{vpl}")
    a(f"v_and_b32 v{t[4]}, 14, v{t[5]}"); a(f"v_lshl_or_b32 v{t[6]}, v{t[4]}, 3, v{t[6]}")
    a(f"v_lshrrev_b32 v{t[5]}, 3, v{t[5]}")
    for tt in range(8):
        if tt: a(f"v_subrev_u32 v{t[5]}, 8, v{t[5]}")
        a(f"v_and_b32 v{t[4]}, 0x7c, v{t[5]}")
        a(f"v_xor_b32 v{AM+tt}, v{t[4]}, v{t[6]}")
    MA = V(4, 4)
    a("s_cmp_eq_u32 s17, 0"); a("s_cselect_b32 s24, 0x00010001, 0")
    ts(a, 1)
    a("s_waitcnt vmcnt(17)")
    for lo in range(2):
        for ab in range(2):
            a(f"v_mul_f32 v{t[0]}, v{GG+ab}, v{CS+4*lo}"); a(f"v_mul_f32 v{t[1]}, v{GG+ab}, v{CS+4*lo+1}")
            a(f"v_fmac_f32 v{t[0]}, v{GG+2+ab}, v{CS+4*lo+2}"); a(f"v_fmac_f32 v{t[1]}, v{GG+2+ab}, v{CS+4*lo+3}")
            a(f"v_cvt_pk_bf16_f32 v{MA+2*lo+ab}, v{t[0]}, v{t[1]}")
    ts(a, 2)
    DD = V(36, 4); QO = V(18)
    def avg(d):
        a(f"v_add_f32 v{d}, v{d}, v{d+2}"); a(f"v_add_f32 v{d+1}, v{d+1}, v{d+3}")
        a(f"v_mul_f32 v{d}, 0.5, v{d}"); a(f"v_mul_f32 v{d+1}, 0.5, v{d+1}")
    def fin(tt):
        d = DD + 4 * tt
        if tt == 0:
            a("s_mov_b32 exec_lo, s24"); a("s_mov_b32 exec_hi, s24")
            avg(d); a(f"v_mov_b32 v{d+2}, v{d}"); a(f"v_mov_b32 v{d+3}, v{d+1}")
            a("s_mov_b64 exec, -1")
        a(f"v_cvt_pk_bf16_f32 v{QO+2*tt}, v{d}, v{d+1}")
        a(f"v_cvt_pk_bf16_f32 v{QO+2*tt+1}, v{d+2}, v{d+3}")
        a(f"ds_write_b32 v{AP+(tt&~1)}, v{QO+2*tt} offset:{8*(tt&1)}")
        a(f"ds_write_b32 v{AM+tt}, v{QO+2*tt+1}")
    for tt in range(9):
        a(f"s_waitcnt vmcnt({max(0, 15-2*tt)})")
        a(f"{M16} {vr(DD+4*tt,4)}, {vr(MA,4)}, {vr(SB+4*tt,4)}, 0")
        if tt >= 2: fin(tt - 2)
    fin(7)
    d = DD + 32
    avg(d)
    a(f"v_cvt_pk_bf16_f32 v{QO+16}, v{d}, v{d+1}")
    a("s_mov_b32 exec_lo, s24"); a("s_mov_b32 exec_hi, s24")
    a(f"ds_write_b32 v{AP+8}, v{QO+16}")
    a("s_mov_b64 exec, -1")
    a("s_waitcnt lgkmcnt(0)")
    ts(a, 3)
    a("s_barrier")
    stamp_end(a, 4, 8, DD, 3)
    a("s_endpgm")
    a.label("L_k3_f")
    a.hist = []
    V.n = base_n
    t = [V() for _ in range(8)]
    vn = V(); vL5 = V(); vb = V(); vo = V()
    a(f"v_and_b32 v{vn}, 31, v0"); a(f"v_lshrrev_b32 v{vL5}, 5, v0")
    a(f"v_cvt_f32_u32 v{vb}, v{vn}")
    a(f"v_cvt_f32_u32 v{vo}, v{vL5}")
    a(f"v_mul_f32 v{vb}, {fl(1/32)}, v{vb}")
    a(f"v_mul_f32 v{vo}, 4.0, v{vo}")
    a(f"v_mul_f32 v{vo}, v{vb}, v{vo}")
    MR = V(16, 4); MI = V(16, 4); TC = V(16); TS_ = V(16)
    for i in range(16):
        kc = 8 * (i // 4) + i % 4
        if kc == 0: a(f"v_mov_b32 v{t[0]}, v{vo}")
        else: a(f"v_fmamk_f32 v{t[0]}, v{vb}, {hx(f2u(float(kc)))}, v{vo}")
        a(f"v_cos_f32 v{t[1]}, v{t[0]}"); a(f"v_sin_f32 v{t[2]}, v{t[0]}")
        a(f"v_mul_f32 v{t[0]}, {fl(1/32)}, v{t[0]}")
        a(f"v_cvt_pk_bf16_f32 v{MR+i}, v{t[1]}, -v{t[2]}")
        a(f"v_cvt_pk_bf16_f32 v{MI+i}, v{t[2]}, v{t[1]}")
        a(f"v_cos_f32 v{TC+i}, v{t[0]}"); a(f"v_sin_f32 v{TS_+i}, v{t[0]}")
    vrd = V(4); vst = V()
    a(f"v_bfe_u32 v{t[0]}, v{vn}, 1, 3"); a(f"v_xor_b32 v{t[0]}, v{t[0]}, v{vL5}"); a(f"v_lshlrev_b32 v{t[0]}, 4, v{t[0]}")
    a(f"v_lshl_or_b32 v{t[0]}, v{vn}, 7, v{t[0]}"); a("s_lshl_b32 s20, s3, 12"); a(f"v_add_u32 v{vrd}, s20, v{t[0]}")
    for q in range(1, 4): a(f"v_xor_b32 v{vrd+q}, {32*q}, v{vrd}")
    a(f"v_lshlrev_b32 v{t[0]}, 4, v{vL5}"); a(f"v_lshl_or_b32 v{vst}, v{vn}, 6, v{t[0]}")
    a("s_lshl_b32 s21, s3, 9"); a("s_add_u32 s21, s21, s16"); a("s_lshl_b32 s21, s21, 11"); a("s_add_u32 s22, s21, 0x80000")
    a("s_waitcnt lgkmcnt(0)")
    srd(a, 12, 6, 2048 * 2048)
    if "stamps" in OPT: srd(a, 8, 4, WSZ)
    X = V(16, 4); D1r = V(16, 4); D1i = V(16, 4); D2r = V(16, 4); D2i = V(16, 4)
    ts(a, 1)
    a("s_barrier")
    ts(a, 2)
    for q in range(4): a(f"ds_read_b128 {vr(X+4*q,4)}, v{vrd+q}")
    for q in range(4):
        a(f"s_waitcnt lgkmcnt({3-q})")
        a(f"{M32} {vr(D1r,16)}, {vr(X+4*q,4)}, {vr(MR+4*q,4)}, {'0' if q == 0 else vr(D1r,16)}")
        a(f"{M32} {vr(D1i,16)}, {vr(X+4*q,4)}, {vr(MI+4*q,4)}, {'0' if q == 0 else vr(D1i,16)}")
    for q in range(4):
        for e in range(4):
            k = 4 * q + e
            a(f"v_mul_f32 v{t[0]}, v{D1r+k}, v{TC+k}")
            a(f"v_mul_f32 v{t[1]}, v{D1i+k}, v{TC+k}")
            a(f"v_fma_f32 v{t[0]}, -v{D1i+k}, v{TS_+k}, v{t[0]}")
            a(f"v_fmac_f32 v{t[1]}, v{D1r+k}, v{TS_+k}")
            a(f"v_cvt_pk_bf16_f32 v{X+k}, v{t[0]}, v{t[1]}")
        a(f"{M32} {vr(D2r,16)}, {vr(X+4*q,4)}, {vr(MR+4*q,4)}, {'0' if q == 0 else vr(D2r,16)}")
        a(f"{M32} {vr(D2i,16)}, {vr(X+4*q,4)}, {vr(MI+4*q,4)}, {'0' if q == 0 else vr(D2i,16)}")
    O = D1r
    for r, (Dx, so) in enumerate(((D2r, "s21"), (D2i, "s22"))):
        for c2 in range(2):
            o = O + 8 * r + 4 * c2
            for e in range(4):
                a(f"v_cvt_pk_bf16_f32 v{o+e}, v{Dx+8*c2+2*e}, v{Dx+8*c2+2*e+1}")
            a(f"v_permlane32_swap_b32 v{o}, v{o+2}")
            a(f"v_permlane32_swap_b32 v{o+1}, v{o+3}")
            a(f"buffer_store_dwordx4 {vr(o,4)}, v{vst}, s[12:15], {so} offen offset:{32*c2}")
    stamp_end(a, 2, 8, X, 3)
    a.label("L_k3_end")
    a("s_endpgm")
    return a

def kd(name, a):
    nv = (a.maxv + 1 + 7) // 8 * 8
    return f""".p2align 6
.amdhsa_kernel {name}
  .amdhsa_next_free_vgpr {nv}
  .amdhsa_next_free_sgpr {min(102, a.maxs + 1)}
  .amdhsa_accum_offset {nv}
  .amdhsa_group_segment_fixed_size 0
  .amdhsa_kernarg_size 80
  .amdhsa_user_sgpr_count 2
  .amdhsa_user_sgpr_kernarg_segment_ptr 1
  .amdhsa_system_sgpr_workgroup_id_x 1
  .amdhsa_float_denorm_mode_32 3
.end_amdhsa_kernel
"""
ks = [("k1_kernel", gen_k1(), 256, 512, 32768), ("k2_kernel", gen_k2(), 257, 512, 65536), ("k3_kernel", gen_k3(), 256, 512, 16384)]
out = "; gated_mix spectral gfnet: 3-kernel MFMA FFT pipeline (generated by gen2.py)\n"
for n, a, g, b, l in ks:
    out += f"; @launch kernel={n} grid=({g},1,1) block=({b},1,1) lds={l}\n"
out += '.amdgcn_target "amdgcn-amd-amdhsa--gfx950"\n.text\n'
for n, a, g, b, l in ks:
    out += f".globl {n}\n.p2align 8\n.type {n},@function\n" + a.text()
    sys.stderr.write(f"{n}: vgpr {a.maxv+1} sgpr {a.maxs+1} lines {len(a.lines)} nops {a.nops}\n")
out += '.section .rodata,"a"\n'
for n, a, g, b, l in ks: out += kd(n, a)
print(out)
```

```python
import sys
from asmlib import *
NAME = "gated_mix__spectral_gfnet__spectral_gfnet__prompt_kernel"
TSB = 16512
S_OFF = 0x500000
F1_OFF = 0xE20000
F2_OFF = 0xE80000
EP_OFF = 0xEF0000
WS_SIZE = 0xF00000
WBYTES = 2048 * 1026
M32 = "v_mfma_f32_32x32x16_bf16"
M16 = "v_mfma_f32_16x16x32_bf16"
OPT = set(sys.argv[1:])
ST = "stamps" in OPT
WSZ = 0x10000000 if ST else WS_SIZE
L_A = 0; L_W = 16384; L_P = L_W; WR = 6144; L_G = 65536; L_N = 65664; L_C = 65792; LDS_BYTES = 65808
def optint(pfx, d):
    for o in OPT:
        if o.startswith(pfx) and o[len(pfx):].isdigit(): return int(o[len(pfx):])
    return d
SLEEP = optint("sl", 1); PFAT = optint("pf", 8); NWG = optint("nwg", 0)
SPIN_MAX = 400000
NTX = "" if "nontx" in OPT else " nt"
NTW = "" if "nontw" in OPT else " nt"
a = Asm()
def srd(d, base, size):
    a(f"s_mov_b32 s{d}, s{base}"); a(f"s_mov_b32 s{d+1}, s{base+1}")
    a(f"s_mov_b32 s{d+2}, {hx(size)}"); a(f"s_mov_b32 s{d+3}, 0x00020000")
NST = 14
def ts(k):
    if ST:
        a(f"s_memrealtime s[{60+2*k}:{61+2*k}]")
        a("s_waitcnt lgkmcnt(0)")
def stamp_end(vt):
    if not ST: return
    a("s_waitcnt vmcnt(0)")
    ts(NST - 1)
    for k in range(16): a(f"v_mov_b32 v{vt+k}, {'s%d' % (60+2*k) if k < NST else '0'}")
    a("s_lshl_b32 s96, s3, 6"); a("s_lshl_b32 s97, s2, 9"); a("s_add_u32 s96, s96, s97")
    a(f"s_add_u32 s96, s96, 0x3000000")
    a(f"v_mov_b32 v{vt+16}, 0")
    a("s_mov_b64 exec, 1")
    for q in range(4): a(f"buffer_store_dwordx4 {vr(vt+4*q,4)}, v{vt+16}, s[16:19], s96 offen offset:{16*q}")
def poll(lbl, vaddr, vtmp, soff, tag):
    a("s_mov_b32 s58, 0")
    a.label(lbl)
    a(f"buffer_load_dword v{vtmp}, v{vaddr}, s[16:19], {soff} offen sc1")
    a("s_add_u32 s58, s58, 1")
    a("s_waitcnt vmcnt(0)")
    a(f"v_cmp_ne_u32 vcc, {tag}, v{vtmp}")
    a(f"s_cmp_gt_u32 s58, {SPIN_MAX}")
    a(f"s_cbranch_scc1 {lbl}_d")
    a(f"s_cbranch_vccz {lbl}_d")
    if SLEEP: a(f"s_sleep {SLEEP}")
    a(f"s_branch {lbl}")
    a.label(lbl + "_d")
def setflag(vtmp, soff, tag):
    a(f"v_mov_b32 v{vtmp}, {tag}"); a(f"v_mov_b32 v{vtmp+1}, 0")
    a("s_waitcnt vmcnt(0)")
    a("s_mov_b64 exec, 1")
    a(f"buffer_store_dword v{vtmp}, v{vtmp+1}, s[16:19], {soff} offen sc1")
    a("s_mov_b64 exec, -1")

a.label(NAME)
a.label("L_code_start")
a("s_cmp_ge_u32 s2, 256")
a("s_cbranch_scc1 L_end")
if ST:
    a("s_memrealtime s[60:61]")
    for k in range(1, NST): a(f"s_mov_b32 s{60+2*k}, 0")
a("s_load_dwordx4 s[4:7], s[0:1], 0")
a("s_load_dwordx2 s[20:21], s[0:1], 72")
a("s_load_dwordx2 s[28:29], s[0:1], 16")
a("s_load_dwordx8 s[88:95], s[0:1], 32")
a("s_getpc_b64 s[12:13]")
a("s_and_b32 s12, s12, 0xffffff00")
a("s_mov_b32 s14, L_code_end-L_code_start")
a("s_mov_b32 s15, 0x00020000")
a("v_lshlrev_b32 v6, 6, v0")
a("s_bfe_u32 s8, s2, 0x20003")
a("v_lshrrev_b32 v1, 6, v0")
a("v_cmp_eq_u32 vcc, s8, v1")
a("s_and_saveexec_b64 s[10:11], vcc")
a("s_cbranch_execz L_cp")
a("buffer_load_ubyte v5, v6, s[12:15], 0 offen")
a.label("L_cp")
a("s_mov_b64 exec, -1")
a("v_and_b32 v0, 63, v0")
a("v_readfirstlane_b32 s3, v1")
vl16 = 2; vn = 3; vL5 = 4; vE = 5
a(f"v_lshlrev_b32 v{vl16}, 4, v0")
a(f"v_and_b32 v{vn}, 31, v0")
a(f"v_lshrrev_b32 v{vL5}, 5, v0")
a("s_and_b32 s51, s3, 3")
a("s_lshl_b32 s22, s51, 9"); a("s_add_u32 s22, s22, s2"); a("s_lshl_b32 s22, s22, 11")
a("s_and_b32 s53, s2, 7"); a("s_lshl_b32 s53, s53, 5"); a("s_lshr_b32 s54, s2, 3"); a("s_add_u32 s53, s53, s54")
a("s_and_b32 s55, s2, 7"); a("s_mul_i32 s55, s55, 1026"); a("s_lshl_b32 s56, s54, 5"); a("s_add_u32 s55, s55, s56")
a("s_lshl_b32 s24, s51, 12")
a("s_lshl_b32 s57, s2, 7"); a(f"s_add_u32 s57, s57, {hx(F1_OFF)}")
a(f"s_mov_b32 s26, {hx(EP_OFF)}")
a("v_mov_b32 v7, 0")
a("s_mov_b32 s59, 0")
a("s_waitcnt lgkmcnt(0)")
srd(16, 20, WSZ)
a(f"buffer_load_dword v{vE}, v7, s[16:19], s26 offen sc1")
for arr, p_ in enumerate((6, 28, 88, 90)): srd(32 + 4 * arr, p_, WBYTES)
def tags():
    a(f"v_readfirstlane_b32 s48, v{vE}")
    a("s_mul_i32 s48, s48, 0x9E3779B1"); a("s_add_u32 s48, s48, 0x7F4A7C15")
    a("s_xor_b32 s49, s48, 0x5bd1e995")
def arr_srd():
    a("s_cmp_eq_u32 s51, 0"); a("s_cselect_b32 s12, s32, s36"); a("s_cselect_b32 s13, s33, s37")
    a("s_cmp_eq_u32 s51, 2"); a("s_cselect_b32 s12, s40, s12"); a("s_cselect_b32 s13, s41, s13")
    a("s_cmp_eq_u32 s51, 3"); a("s_cselect_b32 s12, s44, s12"); a("s_cselect_b32 s13, s45, s13")
    a(f"s_mov_b32 s14, {hx(WBYTES)}"); a("s_mov_b32 s15, 0x00020000")
V2 = VAlloc(5)
vg = V2(); vc = V2(); vF = V2()
SC = V2(16, 4)
vS = V2(); vw1 = V2(); vr1 = V2(); vT = V2(); vTr = V2(); vWr = V2(); vw2 = V2(); vr2 = V2()
WW = V2(32, 4); TB = V2(8, 4)
Fr = V2(4, 4); Fm = V2(4, 4); M2 = V2(16, 4); MT = V2(16, 4); D = V2(16, 4)
assert V2.n <= 128, V2.n
vW = D
L_GW = L_W + 16384
def p2_addr():
    t = [SC + k for k in range(6)]
    a(f"v_lshrrev_b32 v{vg}, 4, v0"); a(f"v_and_b32 v{vc}, 15, v0")
    a(f"v_lshrrev_b32 v{t[0]}, 2, v0"); a(f"v_mul_u32_u24 v{vT}, {16*TSB}, v{t[0]}")
    a(f"v_and_b32 v{t[0]}, 3, v0"); a(f"v_lshl_add_u32 v{vT}, v{t[0]}, 4, v{vT}")
    a("s_lshl_b32 s27, s3, 11")
    a(f"s_mul_i32 s23, s3, {WR}"); a(f"s_add_u32 s23, s23, {L_W}")
    a(f"v_bfe_u32 v{t[0]}, v0, 1, 4"); a(f"v_and_b32 v{t[1]}, 1, v0"); a(f"v_lshl_add_u32 v{t[0]}, v{t[0]}, 4, v{t[1]}")
    a(f"v_lshlrev_b32 v{vF}, 7, v{t[0]}")
    a("s_lshl_b32 s28, s3, 8")
    a(f"s_add_u32 s8, s28, {hx(F1_OFF)}")
    a(f"v_lshlrev_b32 v{t[0]}, 4, v{vc}")
    a(f"v_lshl_or_b32 v{t[1]}, v{vg}, 9, v{t[0]}")
    a(f"v_add_u32 v{vw1}, s27, v{t[1]}"); a(f"v_add_u32 v{vw2}, s23, v{t[1]}")
    a(f"v_lshl_or_b32 v{vr1}, v{vg}, 12, v{t[0]}"); a(f"v_add_u32 v{vr1}, s28, v{vr1}")
    a(f"v_mul_u32_u24 v{vr2}, {2*WR}, v{vg}"); a(f"s_add_u32 s29, s28, {L_W}"); a(f"v_add3_u32 v{vr2}, v{vr2}, v{t[0]}, s29")
    a(f"v_lshlrev_b32 v{t[0]}, 3, v{vc}"); a(f"v_lshl_or_b32 v{vS}, v{vg}, 13, v{t[0]}")
def p2_item():
    t = [SC + k for k in range(6)]
    a(f"s_mul_i32 s24, s3, {2*TSB}"); a("s_lshl_b32 s26, s53, 6"); a("s_add_u32 s24, s24, s26")
    a(f"s_add_u32 s26, s24, {TSB}")
    a(f"v_lshlrev_b32 v{t[0]}, 2, v{vc}"); a(f"v_lshl_or_b32 v{vTr}, v{vg}, 8, v{t[0]}"); a(f"v_add_u32 v{vTr}, s27, v{vTr}")
    a("s_and_b32 s29, s55, 15"); a("s_add_u32 s29, s29, s23")
    a(f"v_mul_u32_u24 v{vWr}, 192, v{vg}"); a(f"v_lshl_add_u32 v{vWr}, v{vc}, 1, v{vWr}"); a(f"v_add_u32 v{vWr}, s29, v{vWr}")
    a("s_lshl_b32 s30, s53, 15"); a("s_add_u32 s30, s30, s28"); a(f"s_add_u32 s30, s30, {hx(S_OFF)}"); a("s_add_u32 s31, s30, 4096")
    a("s_lshl_b32 s9, s53, 10"); a("s_lshl_b32 s10, s3, 7"); a("s_add_u32 s9, s9, s10"); a(f"s_add_u32 s9, s9, {hx(F2_OFF)}")
    a(f"v_mul_u32_u24 v{t[0]}, 43, v0"); a(f"v_lshrrev_b32 v{t[0]}, 7, v{t[0]}")
    a(f"v_mul_u32_u24 v{t[1]}, 3, v{t[0]}"); a(f"v_sub_u32 v{t[1]}, v0, v{t[1]}")
    a("s_lshl_b32 s29, s56, 4")
    a(f"v_mul_u32_u24 v{vW}, s29, v{t[0]}"); a(f"v_lshl_add_u32 v{vW}, v{t[1]}, 4, v{vW}")
def p2_const(dozero=True):
    t = [SC + k for k in range(6)]
    vlf = SC + 6; vkf = SC + 7; vc0 = SC + 8; vlc = SC + 10; FA = SC + 12
    a(f"v_cvt_f32_u32 v{vlf}, v{vc}")
    a(f"v_cvt_f32_u32 v{vkf}, v{vg}"); a(f"v_mul_f32 v{vkf}, 4.0, v{vkf}")
    a(f"v_cvt_f32_u32 v{vc0}, s3"); a(f"v_mul_f32 v{vc0}, {fl(1/128)}, v{vc0}")
    a(f"v_mul_f32 v{vlc}, v{vlf}, v{vc0}")
    a(f"v_fmamk_f32 v{vlc+1}, v{vlf}, {hx(f2u(1/256))}, v{vlc}")
    a(f"v_mul_f32 v{vlf}, {fl(1/16)}, v{vlf}")
    z = iter(range(32))
    def zero(n):
        if not dozero:
            if n == 1: a("s_nop 0")
            return
        for _ in range(n):
            k = next(z, None)
            if k is not None: a(f"v_mov_b32 v{WW+k}, 0")
    def mat(ang):
        a(f"v_cos_f32 v{t[3]}, v{ang}"); a(f"v_sin_f32 v{t[4]}, v{ang}")
    def matfin(Mr, Mm):
        a(f"v_cvt_pk_bf16_f32 v{Mr}, v{t[3]}, v{t[4]}")
        a(f"v_cvt_pk_bf16_f32 v{Mm}, -v{t[4]}, v{t[3]}")
    for i in range(4):
        if i: a(f"v_add_f32 v{vkf}, 1.0, v{vkf}")
        a(f"v_mul_f32 v{FA+i}, v{vkf}, v{vlf}")
        mat(FA + i); zero(1); matfin(Fr + i, Fm + i)
    for i in range(3, -1, -1):
        a(f"v_fma_f32 v{t[0]}, v{vkf}, v{vc0}, v{FA+i}")
        a(f"v_fmamk_f32 v{t[1]}, v{vkf}, {hx(f2u(1/256))}, v{t[0]}")
        mat(t[0]); a(f"v_add_f32 v{t[2]}, v{FA+i}, v{vlc}"); matfin(M2 + i, M2 + 4 + i)
        mat(t[1]); a(f"v_add_f32 v{t[5]}, v{FA+i}, v{vlc+1}"); matfin(M2 + 8 + i, M2 + 12 + i)
        mat(t[2]); a(f"v_subrev_f32 v{vkf}, 1.0, v{vkf}"); matfin(MT + i, MT + 4 + i)
        mat(t[5]); zero(1); matfin(MT + 8 + i, MT + 12 + i)
    zero(32)
def wdma(wave_sreg_expr_list, flag=""):
    a("s_mov_b32 exec_lo, -1"); a("s_mov_b32 exec_hi, 0xffff")
    for add in wave_sreg_expr_list:
        a(f"s_add_u32 s10, s3, {add}")
        a("s_lshl_b32 s25, s10, 1"); a("s_mul_i32 s25, s25, s56"); a("s_add_u32 s25, s25, s55"); a("s_and_b32 s25, s25, 0xfffffff0")
        a("s_add_u32 s11, s25, s56")
        a(f"s_mul_i32 s10, s10, {WR}")
        for arr in range(4):
            for cc in range(2):
                a(f"s_add_u32 m0, s10, {L_W + 1536*arr + 768*cc}")
                a(f"buffer_load_dwordx4 v{vW}, {sr(32+4*arr,4)}, {'s25' if cc == 0 else 's11'} offen{flag} lds")
    a("s_mov_b64 exec, -1")
a(f"s_mov_b32 s56, {8*1026}")
a("s_cmp_ge_u32 s3, 4")
a("s_cbranch_scc1 L_h")
a("s_setprio 2")
srd(8, 4, 2048 * 2048)
a("s_add_u32 s30, s22, 0x80000")
a("s_mov_b32 m0, s24")
a(f"buffer_load_dwordx4 v{vl16}, s[8:11], s22 offen{NTX} lds")
a(f"buffer_load_dwordx4 v{vl16}, s[8:11], s22 offen offset:1024{NTX} lds")
a("s_add_u32 m0, s24, 2048")
a(f"buffer_load_dwordx4 v{vl16}, s[8:11], s30 offen{NTX} lds")
a(f"buffer_load_dwordx4 v{vl16}, s[8:11], s30 offen offset:1024{NTX} lds")
V = VAlloc(6)
vb = V(); vo = V(); vkn = V(); vtr = V(); vpf = V(); vj = V(); vpw = V(4); t = [V() for _ in range(6)]
srd(8, 92, 2048)
a("s_lshl_b32 s30, s51, 9"); a(f"s_add_u32 m0, s30, {L_GW}")
a("s_mov_b32 exec_hi, 0")
a(f"buffer_load_dwordx4 v{vl16}, s[8:11], s30 offen lds")
a("s_mov_b32 exec_hi, -1")
arr_srd()
a(f"v_and_b32 v{t[0]}, 7, v0"); a(f"v_mul_u32_u24 v{t[2]}, 1026, v{t[0]}")
a(f"s_mul_i32 s30, s2, {8*1026}")
a(f"buffer_load_ushort v{vj}, v{t[2]}, s[12:15], s30 offen offset:1024")
a("s_and_b32 s30, s2, 7"); a("s_lshl_b32 s31, s54, 6"); a("s_add_u32 s30, s30, s31"); a("s_mul_i32 s30, s30, 1026")
a(f"v_lshrrev_b32 v{t[0]}, 3, v0"); a(f"v_mul_u32_u24 v{t[2]}, {8*1026}, v{t[0]}")
a(f"v_and_b32 v{t[1]}, 7, v0"); a(f"v_lshl_add_u32 v{vpf}, v{t[1]}, 7, v{t[2]}")
vjunk = 1
def prefetch():
    a(f"buffer_load_ubyte v{vjunk}, v{vpf}, s[12:15], s30 offen{NTW}")
    a(f"buffer_load_ubyte v{vjunk}, v{vpt}, s[12:15], s30 offen offset:1024{NTW}")
NPF = 2
vpt = V()
a(f"v_and_b32 v{t[1]}, 1, v0"); a(f"v_lshl_add_u32 v{vpt}, v{t[1]}, 4, v{t[2]}")
if PFAT == 0: prefetch()
CC = V(8, 4); SS = V(8, 4); SN = V(8, 4); XR = V(8, 4); XI = V(8, 4)
BA = V(24, 4); BB = V(24, 4); TCh = V(8); TSh = V(8)
D1r = BA + 8; D1i = BB + 8; D2r = BA; D2i = BB
TC = lambda k: BA + k if k < 8 else TCh + k - 8
TS_ = lambda k: BB + k if k < 8 else TSh + k - 8
assert V.n <= 128, V.n
a(f"v_and_b32 v{t[0]}, 7, v0"); a(f"v_bfe_u32 v{t[1]}, v0, 3, 2")
a(f"v_lshl_or_b32 v{vkn}, v{t[0]}, 2, v{t[1]}")
a(f"v_cvt_f32_u32 v{vb}, v{vkn}"); a(f"v_cvt_f32_u32 v{vo}, v{vL5}")
a(f"v_mul_f32 v{vb}, {fl(1/32)}, v{vb}"); a(f"v_mul_f32 v{vo}, 4.0, v{vo}"); a(f"v_mul_f32 v{vo}, v{vb}, v{vo}")
for i in range(0, 16, 2):
    for e in range(2):
        kc = 8 * ((i + e) // 4) + (i + e) % 4
        if kc == 0: a(f"v_mov_b32 v{t[e]}, v{vo}")
        else: a(f"v_fmamk_f32 v{t[e]}, v{vb}, {hx(f2u(float(kc)))}, v{vo}")
    a(f"v_cos_f32 v{t[2]}, v{t[0]}"); a(f"v_cos_f32 v{t[3]}, v{t[1]}")
    a(f"v_sin_f32 v{t[4]}, v{t[0]}"); a(f"v_sin_f32 v{t[5]}, v{t[1]}")
    a(f"v_mul_f32 v{t[0]}, {fl(1/32)}, v{t[0]}"); a(f"v_mul_f32 v{t[1]}, {fl(1/32)}, v{t[1]}")
    a(f"v_cvt_pk_bf16_f32 v{CC+i//2}, v{t[2]}, v{t[3]}")
    a(f"v_cvt_pk_bf16_f32 v{SS+i//2}, v{t[4]}, v{t[5]}")
    a(f"v_cvt_pk_bf16_f32 v{SN+i//2}, -v{t[4]}, -v{t[5]}")
    a(f"v_cos_f32 v{TC(i)}, v{t[0]}"); a(f"v_cos_f32 v{TC(i+1)}, v{t[1]}")
    a(f"v_sin_f32 v{TS_(i)}, v{t[0]}"); a(f"v_sin_f32 v{TS_(i+1)}, v{t[1]}")
    if PFAT == i // 2 + 1: prefetch()
a(f"v_lshlrev_b32 v{vtr}, 8, v{vL5}")
a(f"v_bfe_u32 v{t[0]}, v0, 2, 2"); a(f"v_lshl_or_b32 v{vtr}, v{t[0]}, 6, v{vtr}")
a(f"v_bfe_u32 v{t[0]}, v0, 4, 1"); a(f"v_lshl_or_b32 v{vtr}, v{t[0]}, 5, v{vtr}")
a(f"v_and_b32 v{t[0]}, 3, v0"); a(f"v_lshl_or_b32 v{vtr}, v{t[0]}, 3, v{vtr}")
a(f"v_add_u32 v{vtr}, s24, v{vtr}")
a(f"v_and_b32 v{t[0]}, 7, v0"); a(f"v_bfe_u32 v{t[1]}, v0, 3, 2"); a(f"v_lshlrev_b32 v{t[1]}, 1, v{t[1]}")
a(f"v_xor_b32 v{t[0]}, v{t[0]}, v{t[1]}"); a(f"v_xor_b32 v{t[0]}, v{t[0]}, v{vL5}")
a(f"v_lshlrev_b32 v{t[0]}, 4, v{t[0]}")
a(f"v_lshl_or_b32 v{vpw}, v{vkn}, 7, v{t[0]}")
a(f"s_add_u32 s26, s24, {L_P}")
a(f"v_add_u32 v{vpw}, s26, v{vpw}")
for c in range(1, 4): a(f"v_xor_b32 v{vpw+c}, {32*c}, v{vpw}")
ts(1)
a(f"s_waitcnt vmcnt({NPF})")
ts(2)
tags()
a(f"v_and_b32 v{t[0]}, 7, v0"); a(f"v_lshlrev_b32 v{t[0]}, 1, v{t[0]}")
a("s_lshl_b32 s30, s51, 4"); a(f"s_add_u32 s30, s30, {L_N + 64}"); a(f"v_add_u32 v{t[0]}, s30, v{t[0]}")
a(f"ds_write_b16 v{t[0]}, v{vj}")
for h in range(2):
    for r, X in ((0, XR), (1, XI)):
        for tt in range(2):
            a(f"ds_read_b64_tr_b16 {vr(X+4*h+2*tt,2)}, v{vtr} offset:{r*2048+h*1024+tt*512}")
a("s_barrier")
def cpass(R, I, Dr, Di, h, first):
    c0 = "0" if first else vr(Dr, 16); c1 = "0" if first else vr(Di, 16)
    a(f"{M32} {vr(Dr,16)}, {vr(R+4*h,4)}, {vr(CC+4*h,4)}, {c0}")
    a(f"{M32} {vr(Di,16)}, {vr(I+4*h,4)}, {vr(CC+4*h,4)}, {c1}")
    a(f"{M32} {vr(Dr,16)}, {vr(I+4*h,4)}, {vr(SS+4*h,4)}, {vr(Dr,16)}")
    a(f"{M32} {vr(Di,16)}, {vr(R+4*h,4)}, {vr(SN+4*h,4)}, {vr(Di,16)}")
a("s_waitcnt lgkmcnt(4)")
cpass(XR, XI, D1r, D1i, 0, True)
a("s_waitcnt lgkmcnt(0)")
cpass(XR, XI, D1r, D1i, 1, False)
for h in range(2):
    for i in range(8 * h, 8 * h + 8, 2):
        for e in range(2):
            k = i + e
            a(f"v_mul_f32 v{t[e]}, v{D1r+k}, v{TC(k)}")
            a(f"v_mul_f32 v{t[2+e]}, v{D1i+k}, v{TC(k)}")
            a(f"v_fmac_f32 v{t[e]}, v{D1i+k}, v{TS_(k)}")
            a(f"v_fma_f32 v{t[2+e]}, -v{D1r+k}, v{TS_(k)}, v{t[2+e]}")
        a(f"v_cvt_pk_bf16_f32 v{XR+i//2}, v{t[0]}, v{t[1]}")
        a(f"v_cvt_pk_bf16_f32 v{XI+i//2}, v{t[2]}, v{t[3]}")
    cpass(XR, XI, D2r, D2i, h, h == 0)
PK = CC
for c in range(4):
    for e in range(4):
        a(f"v_cvt_pk_bf16_f32 v{PK+4*c+e}, v{D2r+4*c+e}, v{D2i+4*c+e}")
    a(f"ds_write_b128 v{vpw+c}, {vr(PK+4*c,4)}")
a("s_waitcnt lgkmcnt(0)")
ts(3)
a("s_barrier")
a("s_setprio 0")
p2_addr()
p2_item()
ts(4)
a("s_barrier")
ts(5)
wdma([0, 4])
ts(6)
p2_const()
a("s_branch L_p2")
a.label("L_h")
a.hist = []
V = VAlloc(6)
t = [V() for _ in range(8)]
XN = V(16, 4); GW = V(8, 4)
vnat = V(); a(f"v_add_u32 v{vnat}, s24, v{vl16}")
MA = V(4, 4)
DMB = V(48, 4)
vu = DMB; vA = DMB + 1; vB1 = DMB + 2; vB2 = DMB + 3; vsg = DMB + 4
a(f"v_mov_b32 v{t[3]}, {L_C}"); a(f"v_mov_b32 v{t[4]}, 0")
a(f"ds_write_b32 v{t[3]}, v{t[4]}")
a(f"v_bfe_u32 v{t[0]}, v0, 3, 1"); a(f"v_bfe_u32 v{t[1]}, v0, 1, 1")
a(f"v_lshl_or_b32 v{t[0]}, v{t[0]}, 1, v{t[1]}")
a(f"v_and_or_b32 v{vu}, v0, 4, v{t[0]}")
a(f"v_cvt_f32_u32 v{vu}, v{vu}")
a(f"v_cvt_f32_u32 v{vsg}, v{vL5}")
a(f"v_fma_f32 v{vsg}, v{vsg}, -2.0, 1.0")
a(f"v_mul_f32 v{vA}, v{vu}, v{vsg}")
a(f"v_mul_f32 v{vA}, {fl(0.125)}, v{vA}")
a(f"v_and_b32 v{t[0]}, 1, v0"); a(f"v_cvt_f32_u32 v{t[0]}, v{t[0]}")
a(f"v_mul_f32 v{vB1}, v{t[0]}, v{vsg}"); a(f"v_mul_f32 v{vB1}, {fl(0.25)}, v{vB1}")
a(f"v_cvt_f32_u32 v{t[1]}, s2"); a(f"v_mul_f32 v{t[1]}, {fl(1/256)}, v{t[1]}")
a(f"v_fmac_f32 v{vB1}, v{t[1]}, v{vA}")
a(f"v_add_f32 v{vB2}, {fl(0.25)}, v{vB1}")
for pp in range(4):
    if pp == 0: a(f"v_mov_b32 v{t[0]}, v{vB1}")
    else: a(f"v_fmamk_f32 v{t[0]}, v{vA}, {hx(f2u(2.0*pp))}, v{vB1}")
    a(f"v_fmamk_f32 v{t[1]}, v{vA}, {hx(f2u(2.0*pp+1))}, v{vB2}")
    a(f"v_cos_f32 v{t[2]}, v{t[0]}"); a(f"v_cos_f32 v{t[3]}, v{t[1]}")
    a(f"v_sin_f32 v{t[4]}, v{t[0]}"); a(f"v_sin_f32 v{t[5]}, v{t[1]}")
    a(f"v_add_f32 v{t[2]}, v{t[2]}, v{t[3]}")
    a(f"v_add_f32 v{t[4]}, v{t[4]}, v{t[5]}")
    a(f"v_cvt_pk_bf16_f32 v{MA+pp}, v{t[2]}, v{t[4]}")
vmr = V(5); vk = DMB + 5; vneg = DMB + 6
a("s_lshl_b32 s30, s51, 7")
a(f"v_lshlrev_b32 v{t[0]}, 2, v{vn}")
a(f"v_sub_u32 v{vneg}, 0, v{vL5}")
for q in range(5):
    if q < 4: a(f"v_add3_u32 v{vk}, v{t[0]}, s30, {q}")
    else: a(f"v_add_u32 v{vk}, 512, v{t[0]}")
    a(f"v_xor_b32 v{vk}, v{vk}, v{vneg}"); a(f"v_add_u32 v{vk}, v{vk}, v{vL5}")
    a(f"v_bfe_u32 v{t[1]}, v{vk}, 5, 5")
    a(f"v_bfe_u32 v{t[2]}, v{vk}, 7, 3")
    a(f"v_xor_b32 v{t[3]}, v{vk}, v{t[1]}")
    a(f"v_and_b32 v{t[3]}, 3, v{t[3]}")
    a(f"v_bfe_u32 v{t[4]}, v{vk}, 4, 1")
    a(f"v_lshl_or_b32 v{t[3]}, v{t[3]}, 1, v{t[4]}")
    a(f"v_xor_b32 v{t[3]}, v{t[3]}, v{t[2]}")
    a(f"v_and_b32 v{t[4]}, 12, v{vk}")
    a(f"v_lshl_or_b32 v{t[4]}, v{t[3]}, 4, v{t[4]}")
    a(f"v_lshl_or_b32 v{vmr+q}, v{t[1]}, 7, v{t[4]}")
vts = V(); vtn = V(); vnl = V()
a(f"v_lshlrev_b32 v{t[0]}, 13, v{vL5}"); a(f"v_lshl_or_b32 v{vts}, v{vn}, 4, v{t[0]}")
a(f"v_lshlrev_b32 v{vtn}, 4, v{vL5}"); a(f"v_add_u32 v{vtn}, {L_N}, v{vtn}")
a(f"v_add_u32 v{vnl}, {L_N}, v{vl16}")
a(f"s_mul_i32 s8, s2, {TSB}")
a("s_lshl_b32 s9, s51, 9"); a("s_add_u32 s9, s9, s8"); a("s_add_u32 s10, s9, 4096")
a("s_add_u32 s8, s8, 16384")
a("s_mov_b32 s11, 0xffff0000")
acc = V(4, 4); ones = V(); MB = XN; MB4 = GW
a(f"v_mov_b32 v{ones}, 0x3f803f80")
a(f"v_mov_b32 v{acc}, 0"); a(f"v_mov_b32 v{acc+2}, 0")
assert V.n <= 128, V.n
a("s_waitcnt lgkmcnt(0)")
ts(1)
a("s_barrier")
for r in range(2):
    for q in range(2):
        a(f"ds_read_b128 {vr(XN+8*r+4*q,4)}, v{vnat} offset:{r*2048+q*1024}")
a(f"ds_read_b128 {vr(GW,4)}, v{vl16} offset:{L_GW}")
a(f"ds_read_b128 {vr(GW+4,4)}, v{vl16} offset:{L_GW+1024}")
a("s_waitcnt lgkmcnt(0)")
ts(2)
for j in range(8):
    a(f"v_lshlrev_b32 v{t[6]}, 16, v{GW+j}")
    a(f"v_and_b32 v{t[7]}, s11, v{GW+j}")
    for r in range(2):
        a(f"v_lshlrev_b32 v{t[2*r]}, 16, v{XN+8*r+j}")
        a(f"v_and_b32 v{t[2*r+1]}, s11, v{XN+8*r+j}")
    for r in range(2):
        a(f"v_mul_f32 v{t[2*r]}, v{t[2*r]}, v{t[6]}")
        a(f"v_mul_f32 v{t[2*r+1]}, v{t[2*r+1]}, v{t[7]}")
    for r in range(2): a(f"v_cvt_pk_bf16_f32 v{t[4+r]}, v{t[2*r]}, v{t[2*r+1]}")
    for r in range(2): a(f"v_dot2_f32_bf16 v{acc+2*r}, v{t[4+r]}, v{ones}, v{acc+2*r}")
a("s_waitcnt vmcnt(0)")
tags()
ts(3)
a("s_setprio 2")
a("s_barrier")
ts(4)
o = L_P // 256
a(f"ds_read2st64_b32 {vr(MB4,2)}, v{vmr+4} offset0:{o} offset1:{o+16}")
a(f"ds_read2st64_b32 {vr(MB4+2,2)}, v{vmr+4} offset0:{o+32} offset1:{o+48}")
for q in range(4):
    a(f"ds_read2st64_b32 {vr(MB+4*q,2)}, v{vmr+q} offset0:{o} offset1:{o+16}")
    a(f"ds_read2st64_b32 {vr(MB+4*q+2,2)}, v{vmr+q} offset0:{o+32} offset1:{o+48}")
DN = DMB; DM = [DMB + 8 + 8 * q for q in range(4)]
a("s_waitcnt lgkmcnt(8)")
a(f"{M32} {vr(DN,16)}, {vr(MA,4)}, {vr(MB4,4)}, 0")
for q in range(4):
    a(f"s_waitcnt lgkmcnt({6-2*q})")
    a(f"{M32} {vr(DM[q],16)}, {vr(MA,4)}, {vr(MB+4*q,4)}, 0")
for s_ in range(4):
    a(f"v_cvt_pk_bf16_f32 v{GW+4+s_}, v{DN+2*s_}, v{DN+2*s_+1}")
a("s_cmp_eq_u32 s51, 0"); a("s_cselect_b32 exec_lo, 1, 0"); a("s_cselect_b32 exec_hi, 1, 0")
a(f"ds_write_b128 v{vtn}, {vr(GW+4,4)}")
a("s_cselect_b32 s30, 255, 0")
a("s_mov_b64 exec, -1")
OUT = MB
for s_ in range(4):
    for q in range(4):
        a(f"v_cvt_pk_bf16_f32 v{OUT+4*s_+q}, v{DM[q]+2*s_}, v{DM[q]+2*s_+1}")
    a(f"buffer_store_dwordx4 {vr(OUT+4*s_,4)}, v{vts}, s[16:19], {'s9' if s_ < 2 else 's10'} offen offset:{(s_&1)*2048} sc1")
    if s_ == 0:
        a("s_mov_b32 exec_lo, s30"); a("s_mov_b32 exec_hi, 0")
        a(f"ds_read_b128 {vr(GW,4)}, v{vnl}")
        a("s_mov_b64 exec, -1")
a("s_waitcnt lgkmcnt(0)")
a("s_mov_b32 exec_lo, s30"); a("s_mov_b32 exec_hi, 0")
a(f"buffer_store_dwordx4 {vr(GW,4)}, v{vl16}, s[16:19], s8 offen sc1")
a("s_mov_b64 exec, -1")
a("s_barrier")
ts(5)
for dpp in ("row_shr:1", "row_shr:2", "row_shr:4", "row_shr:8"):
    for r in range(2):
        a(f"v_add_f32_dpp v{acc+2*r}, v{acc+2*r}, v{acc+2*r} {dpp} row_mask:0xf bank_mask:0xf bound_ctrl:0")
for dpp, rm in (("row_bcast:15", "0xa"), ("row_bcast:31", "0xc")):
    for r in range(2):
        a(f"v_add_f32_dpp v{acc+2*r}, v{acc+2*r}, v{acc+2*r} {dpp} row_mask:{rm} bank_mask:0xf")
a(f"v_cvt_pk_bf16_f32 v{t[0]}, v{acc}, v{acc+2}")
a(f"v_lshlrev_b32 v{t[1]}, 16, v{t[0]}")
a(f"v_and_b32 v{t[2]}, s11, v{t[0]}")
for r in range(2): a(f"v_mul_f32 v{t[1+r]}, {hx(f2u(-1.4426950408889634))}, v{t[1+r]}")
for r in range(2): a(f"v_exp_f32 v{t[1+r]}, v{t[1+r]}")
for r in range(2): a(f"v_add_f32 v{t[1+r]}, 1.0, v{t[1+r]}")
for r in range(2): a(f"v_rcp_f32 v{t[1+r]}, v{t[1+r]}")
a(f"v_cvt_pk_bf16_f32 v{t[0]}, v{t[1]}, v{t[2]}")
a(f"v_lshlrev_b32 v{acc}, 16, v{t[0]}")
a(f"v_and_b32 v{acc+2}, s11, v{t[0]}")
a(f"v_sub_f32 v{t[1]}, 1.0, v{acc}")
a(f"v_sub_f32 v{t[2]}, 1.0, v{acc+2}")
a(f"v_cvt_pk_bf16_f32 v{t[0]}, v{t[1]}, v{t[2]}")
a(f"v_lshlrev_b32 v{acc+1}, 16, v{t[0]}")
a(f"v_and_b32 v{acc+3}, s11, v{t[0]}")
for r in range(4): a(f"v_mul_f32 v{acc+r}, {hx(f2u(2.0**-22))}, v{acc+r}")
a("s_lshl_b32 s30, s51, 4"); a(f"s_add_u32 s30, s30, {L_G}")
a(f"v_mov_b32 v{t[3]}, s30")
a("s_mov_b32 exec_lo, 0"); a("s_mov_b32 exec_hi, 0x80000000")
a(f"ds_write_b128 v{t[3]}, {vr(acc,4)}")
a("s_mov_b64 exec, 1")
a(f"v_mov_b32 v{t[3]}, {L_C}"); a(f"v_mov_b32 v{t[4]}, 1"); a(f"v_mov_b32 v{t[6]}, s48"); a(f"v_mov_b32 v{t[7]}, 0")
a("s_waitcnt vmcnt(0)")
a(f"ds_add_rtn_u32 v{t[5]}, v{t[3]}, v{t[4]}")
a("s_waitcnt lgkmcnt(0)")
a(f"v_cmp_eq_u32 vcc, 3, v{t[5]}")
a("s_and_b64 exec, exec, vcc")
a(f"buffer_store_dword v{t[6]}, v{t[7]}, s[16:19], s57 offen sc1")
a("s_mov_b64 exec, -1")
a("s_setprio 0")
ts(6)
p2_addr(); p2_item(); p2_const()
a.label("L_p2")
a.hist = []
t = [SC + k for k in range(6)]
ts(7)
poll("L_poll1", vF, t[0], "s8", "s48")
ts(8)
a.label("L_p2c")
a("s_setprio 1")
a("s_mov_b32 m0, s27")
a(f"buffer_load_dwordx4 v{vT}, s[16:19], s24 offen sc1 lds")
a("s_add_u32 m0, s27, 1024")
a(f"buffer_load_dwordx4 v{vT}, s[16:19], s26 offen sc1 lds")
a.label("L_p2d")
a("s_barrier")
for cc in range(2):
    for arr in range(4):
        for i in range(4):
            a(f"ds_read_u16_d16_hi v{WW+8*arr+4*cc+i}, v{vWr} offset:{1536*arr+768*cc+48*i}")
PKD = SC + 8
a("s_waitcnt vmcnt(0)")
if ST: a("s_waitcnt lgkmcnt(0)")
ts(9)
a(f"ds_read2_b32 {vr(TB,2)}, v{vTr} offset0:0 offset1:16")
a(f"ds_read2_b32 {vr(TB+2,2)}, v{vTr} offset0:32 offset1:48")
a(f"v_add_u32 v{vTr}, 1024, v{vTr}")
a(f"ds_read2_b32 {vr(TB+4,2)}, v{vTr} offset0:0 offset1:16")
a(f"ds_read2_b32 {vr(TB+6,2)}, v{vTr} offset0:32 offset1:48")
a.label("L_p2e")
for bb in range(2):
    a(f"s_waitcnt lgkmcnt({2-2*bb})")
    a(f"{M16} {vr(D+8*bb,4)}, {vr(Fr,4)}, {vr(TB+4*bb,4)}, 0")
    a(f"{M16} {vr(D+8*bb+4,4)}, {vr(Fm,4)}, {vr(TB+4*bb,4)}, 0")
for ip in range(2):
    for cc in range(2):
        for bb in range(2):
            i = 2 * ip + cc
            a(f"v_cvt_pk_bf16_f32 v{PKD+4*ip+2*cc+bb}, v{D+8*bb+i}, v{D+8*bb+4+i}")
    a(f"ds_write_b128 v{vw1}, {vr(PKD+4*ip,4)} offset:{ip*256}")
a("s_waitcnt lgkmcnt(0)")
a("s_barrier")
OB = TB
for cc in range(2):
    for h in range(2):
        a(f"ds_read_b64 {vr(OB+4*cc+2*h,2)}, v{vr1} offset:{h*2048+cc*8}")
X = D
for cc in range(2):
    a(f"s_waitcnt lgkmcnt({2-2*cc})")
    a(f"{M16} {vr(X+8*cc,4)}, {vr(M2+8*cc,4)}, {vr(OB+4*cc,4)}, 0")
    a(f"{M16} {vr(X+8*cc+4,4)}, {vr(M2+8*cc+4,4)}, {vr(OB+4*cc,4)}, 0")
YO = [PKD, PKD + 4, TB, TB + 4]
DP = M2; tp = SC
def dpt(cc, ab, ri): return DP + 8 * ab + 4 * ri if cc == 0 else WW + 8 * (2 * ab + ri)
for cc in range(2):
    for ab in range(2):
        n = 2 * cc + ab
        wr = WW + 8 * (2 * ab) + 4 * cc; wi = WW + 8 * (2 * ab + 1) + 4 * cc
        xr = X + 8 * cc; xi = X + 8 * cc + 4
        for i in range(4):
            a(f"v_mul_f32 v{tp+2*i}, v{xr+i}, v{wr+i}")
            a(f"v_mul_f32 v{tp+2*i+1}, v{xi+i}, v{wr+i}")
            a(f"v_fma_f32 v{tp+2*i}, -v{xi+i}, v{wi+i}, v{tp+2*i}")
            a(f"v_fmac_f32 v{tp+2*i+1}, v{xr+i}, v{wi+i}")
            a(f"v_cvt_pk_bf16_f32 v{YO[n]+i}, v{tp+2*i+1}, v{tp+2*i}")
        a(f"{M16} {vr(dpt(cc,ab,0),4)}, {vr(MT+8*cc,4)}, {vr(YO[n],4)}, 0")
        a(f"{M16} {vr(dpt(cc,ab,1),4)}, {vr(MT+8*cc+4,4)}, {vr(YO[n],4)}, 0")
P2 = D
for ab in range(2):
    for ip in range(2):
        for cc in range(2):
            for bb in range(2):
                i = 2 * ip + bb
                a(f"v_cvt_pk_bf16_f32 v{P2+8*ab+4*ip+2*bb+cc}, v{dpt(cc,ab,0)+i}, v{dpt(cc,ab,1)+i}")
        a(f"ds_write_b128 v{vw2}, {vr(P2+8*ab+4*ip,4)} offset:{2048*ab+ip*256}")
a("s_waitcnt lgkmcnt(0)")
a("s_barrier")
O2 = WW + 16
for bb in range(2):
    for ab in range(2):
        for h in range(2):
            a(f"ds_read_b64 {vr(O2+8*bb+4*ab+2*h,2)}, v{vr2} offset:{WR*h+2048*ab+bb*8}")
E = [M2, M2 + 8, MT, MT + 8]
for bb in range(2):
    for ab in range(2):
        n = 2 * bb + ab
        a(f"s_waitcnt lgkmcnt({6-2*n})")
        a(f"{M16} {vr(E[n],4)}, {vr(Fr,4)}, {vr(O2+4*n,4)}, 0")
        a(f"{M16} {vr(E[n]+4,4)}, {vr(Fm,4)}, {vr(O2+4*n,4)}, 0")
SO = WW
for bb in range(2):
    for i in range(4):
        for ab in range(2):
            n = 2 * bb + ab
            a(f"v_cvt_pk_bf16_f32 v{SO+8*bb+2*i+ab}, v{E[n]+4+i}, v{E[n]+i}")
        a(f"buffer_store_dwordx2 {vr(SO+8*bb+2*i,2)}, v{vS}, s[16:19], {'s30' if i < 2 else 's31'} offen offset:{(i&1)*2048+bb*128} sc1")
if ST:
    a("s_cmp_lg_u32 s59, 0"); a("s_cbranch_scc1 L_sk10")
    ts(10)
    a.label("L_sk10")
a(f"s_lshl_b32 s29, s59, 8"); a("s_add_u32 s29, s29, s2")
a(f"s_cmp_eq_u32 s29, {NWG}")
a("s_cbranch_scc1 L_npass")
setflag(t[0], "s9", "s49")
a("s_setprio 0")
V = VAlloc(8)
vg_ = vg; vc_ = vc
t = [V() for _ in range(6)]
vS3 = 1; vN = 2; vF3 = 7; AP8 = V(); AMx = V()
MR = V(16, 4); MI = V(16, 4); X = V(16, 4)
BA = V(24, 4); BB = V(24, 4); TCh = V(8); TSh = V(8)
assert V.n <= 128, V.n
D1r = BA + 8; D1i = BB + 8; D2r = BA; D2i = BB
SBt = [D1r, D1r + 4, D1r + 8, D1r + 12, X]
DDt = [D1i, D1i + 4, D1i + 8, D1i + 12, X + 4]
MA = X + 8; AP = X + 12; AM = [X + 13, X + 14, X + 15, AMx]
CS = D1r; GG = D1i
a(f"v_bfe_u32 v{t[0]}, v0, 2, 2"); a(f"v_lshlrev_b32 v{t[1]}, 4, v{t[0]}")
a(f"v_add_u32 v{t[1]}, {L_G}, v{t[1]}")
a(f"ds_read_b128 {vr(GG,4)}, v{t[1]}")
a(f"v_lshlrev_b32 v{t[1]}, 3, v{vc_}"); a(f"v_lshl_or_b32 v{vS3}, v{vg_}, 21, v{t[1]}")
a(f"v_lshlrev_b32 v{vN}, 4, v{vg_}")
a("s_lshl_b32 s8, s2, 7"); a(f"s_add_u32 s8, s8, {hx(S_OFF)}"); a(f"s_add_u32 s10, s8, {hx(256*32768)}")
a("s_lshl_b32 s11, s3, 15"); a("s_add_u32 s8, s8, s11")
a(f"v_bfe_u32 v{t[1]}, v0, 2, 3"); a(f"v_and_b32 v{t[2]}, 3, v0"); a(f"v_lshlrev_b32 v{t[2]}, 3, v{t[2]}")
a(f"v_lshl_add_u32 v{t[1]}, v{t[1]}, 5, v{t[2]}"); a(f"v_add_u32 v{t[1]}, s3, v{t[1]}")
a("s_cmp_eq_u32 s3, 0"); a("s_cselect_b32 s24, 0x00010001, 0")
a(f"v_lshlrev_b32 v{vF3}, 10, v{t[1]}")
a("s_bfe_u32 s11, s2, 0x30001"); a("s_lshl_b32 s11, s11, 7"); a(f"s_add_u32 s11, s11, {hx(F2_OFF)}")
vsg = X; ve = X + 1; vstep = X + 2; vpe = X + 3; vpo = X + 4; vk = X + 5; vpl = X + 6
a(f"v_bfe_u32 v{t[1]}, v0, 1, 1"); a(f"v_cvt_f32_u32 v{vsg}, v{t[1]}")
a(f"v_mul_f32 v{vsg}, -0.5, v{vsg}"); a(f"v_add_f32 v{vsg}, {fl(0.25)}, v{vsg}")
a(f"v_and_b32 v{t[1]}, 1, v0"); a(f"v_cvt_f32_u32 v{t[1]}, v{t[1]}")
a(f"v_mul_f32 v{ve}, v{t[1]}, v{vsg}")
a(f"v_lshlrev_b32 v{t[0]}, 9, v{t[0]}"); a(f"v_add_u32 v{t[0]}, s2, v{t[0]}")
a(f"v_cvt_f32_u32 v{vstep}, v{t[0]}"); a(f"v_mul_f32 v{vstep}, {hx(f2u(-1/2048))}, v{vstep}")
a(f"v_cvt_f32_u32 v{t[2]}, v{vg_}"); a(f"v_add_f32 v{t[2]}, v{t[2]}, v{t[2]}")
a(f"v_fma_f32 v{vpe}, v{t[2]}, v{vstep}, v{ve}")
a(f"v_sub_f32 v{vpo}, v{vpe}, v{vsg}")
a(f"v_fmamk_f32 v{vpo}, v{t[2]}, {hx(f2u(-0.125))}, v{vpo}")
for lo in range(2):
    if lo:
        a(f"v_add_f32 v{vpe}, v{vpe}, v{vstep}")
        a(f"v_add_f32 v{vpo}, v{vpo}, v{vstep}"); a(f"v_add_f32 v{vpo}, {hx(f2u(-0.125))}, v{vpo}")
    a(f"v_cos_f32 v{CS+4*lo}, v{vpe}"); a(f"v_sin_f32 v{CS+4*lo+1}, v{vpe}")
    a(f"v_cos_f32 v{CS+4*lo+2}, v{vpo}"); a(f"v_sin_f32 v{CS+4*lo+3}, v{vpo}")
a("s_lshl_b32 s25, s3, 4")
a(f"v_lshlrev_b32 v{vpl}, 12, v{vg_}")
a(f"v_add_u32 v{vk}, s25, v{vc_}")
a(f"v_and_b32 v{t[3]}, 14, v{vk}"); a(f"v_lshl_or_b32 v{t[3]}, v{t[3]}, 3, v{vpl}")
a(f"v_and_b32 v{t[4]}, 31, v{vk}"); a(f"v_lshl_or_b32 v{t[3]}, v{t[4]}, 7, v{t[3]}")
a(f"v_bfe_u32 v{t[4]}, v{vk}, 5, 2"); a(f"v_lshl_or_b32 v{AP}, v{t[4]}, 2, v{t[3]}")
a(f"v_or_b32 v{AP8}, 64, v{vpl}")
a(f"v_sub_u32 v{t[5]}, 0, v{vk}")
a(f"v_and_b32 v{t[4]}, 31, v{t[5]}"); a(f"v_lshl_or_b32 v{t[3]}, v{t[4]}, 7, v{vpl}")
a(f"v_and_b32 v{t[4]}, 14, v{t[5]}"); a(f"v_lshl_or_b32 v{t[3]}, v{t[4]}, 3, v{t[3]}")
a(f"v_lshrrev_b32 v{t[5]}, 3, v{t[5]}")
for tt in range(4):
    if tt: a(f"v_subrev_u32 v{t[5]}, 16, v{t[5]}")
    a(f"v_and_b32 v{t[4]}, 0x7c, v{t[5]}")
    a(f"v_xor_b32 v{AM[tt]}, v{t[4]}, v{t[3]}")
a("s_waitcnt lgkmcnt(0)")
for lo in range(2):
    for ab in range(2):
        a(f"v_mul_f32 v{t[0]}, v{GG+ab}, v{CS+4*lo}"); a(f"v_mul_f32 v{t[1]}, v{GG+ab}, v{CS+4*lo+1}")
        a(f"v_fmac_f32 v{t[0]}, v{GG+2+ab}, v{CS+4*lo+2}"); a(f"v_fmac_f32 v{t[1]}, v{GG+2+ab}, v{CS+4*lo+3}")
        a(f"v_cvt_pk_bf16_f32 v{MA+2*lo+ab}, v{t[0]}, v{t[1]}")
a("s_cmp_ge_u32 s3, 4")
a("s_cbranch_scc1 L_p3b")
TC = lambda k: BA + k if k < 8 else TCh + k - 8
TS_ = lambda k: BB + k if k < 8 else TSh + k - 8
vb = X; vo = X + 1
a(f"v_cvt_f32_u32 v{vb}, v{vn}"); a(f"v_cvt_f32_u32 v{vo}, v{vL5}")
a(f"v_mul_f32 v{vb}, {fl(1/32)}, v{vb}"); a(f"v_mul_f32 v{vo}, 4.0, v{vo}"); a(f"v_mul_f32 v{vo}, v{vb}, v{vo}")
for i in range(16):
    kc = 8 * (i // 4) + i % 4
    if kc == 0: a(f"v_mov_b32 v{t[0]}, v{vo}")
    else: a(f"v_fmamk_f32 v{t[0]}, v{vb}, {hx(f2u(float(kc)))}, v{vo}")
    a(f"v_cos_f32 v{t[1]}, v{t[0]}"); a(f"v_sin_f32 v{t[2]}, v{t[0]}")
    a(f"v_mul_f32 v{t[0]}, {fl(1/32)}, v{t[0]}")
    a(f"v_cvt_pk_bf16_f32 v{MR+i}, v{t[1]}, -v{t[2]}")
    a(f"v_cvt_pk_bf16_f32 v{MI+i}, v{t[2]}, v{t[1]}")
    a(f"v_cos_f32 v{TC(i)}, v{t[0]}"); a(f"v_sin_f32 v{TS_(i)}, v{t[0]}")
a.label("L_p3b")
ts(11)
poll("L_poll2", vF3, t[0], "s11", "s49")
ts(12)
for tt in range(4):
    for lo in range(2):
        a(f"s_add_u32 s26, s8, {hx(tt*8*32768 + lo*(1<<20))}")
        a(f"buffer_load_dwordx2 {vr(SBt[tt]+2*lo,2)}, v{vS3}, s[16:19], s26 offen sc1")
def avg(d):
    a(f"v_add_f32 v{d}, v{d}, v{d+2}"); a(f"v_add_f32 v{d+1}, v{d+1}, v{d+3}")
    a(f"v_mul_f32 v{d}, 0.5, v{d}"); a(f"v_mul_f32 v{d+1}, 0.5, v{d+1}")
def fin(tt):
    d = DDt[tt]
    if tt == 0:
        a("s_mov_b32 exec_lo, s24"); a("s_mov_b32 exec_hi, s24")
        avg(d); a(f"v_mov_b32 v{d+2}, v{d}"); a(f"v_mov_b32 v{d+3}, v{d+1}")
        a("s_mov_b64 exec, -1")
    a(f"v_cvt_pk_bf16_f32 v{d}, v{d}, v{d+1}")
    a(f"v_cvt_pk_bf16_f32 v{d+1}, v{d+2}, v{d+3}")
    if tt: a(f"v_xor_b32 v{t[tt]}, {tt<<4}, v{AP}")
    a(f"ds_write_b32 v{t[tt] if tt else AP}, v{d}")
    a(f"ds_write_b32 v{AM[tt]}, v{d+1}")
for tt in range(4):
    a(f"s_waitcnt vmcnt({max(0, 6-2*tt)})")
    a(f"{M16} {vr(DDt[tt],4)}, {vr(MA,4)}, {vr(SBt[tt],4)}, 0")
    if tt >= 1: fin(tt - 1)
fin(3)
a("s_cmp_eq_u32 s3, 7")
a("s_cbranch_scc1 L_nt")
a.label("L_ntb")
vst = vS3
a(f"v_bfe_u32 v{t[4]}, v{vn}, 1, 3"); a(f"v_xor_b32 v{t[4]}, v{t[4]}, v{vL5}"); a(f"v_lshlrev_b32 v{t[4]}, 4, v{t[4]}")
a(f"v_lshl_or_b32 v{t[4]}, v{vn}, 7, v{t[4]}"); a("s_lshl_b32 s26, s51, 12")
a("s_waitcnt lgkmcnt(0)")
a(f"v_add_u32 v{t[0]}, s26, v{t[4]}")
for q in range(1, 4): a(f"v_xor_b32 v{t[q]}, {32*q}, v{t[0]}")
a(f"v_lshlrev_b32 v{t[4]}, 4, v{vL5}"); a(f"v_lshl_or_b32 v{vst}, v{vn}, 6, v{t[4]}")
srd(12, 94, 2048 * 2048)
a("s_add_u32 s30, s22, 0x80000")
a("s_barrier")
a("s_cmp_ge_u32 s3, 4")
a("s_cbranch_scc1 L_hx")
for q in range(4): a(f"ds_read_b128 {vr(X+4*q,4)}, v{t[q]}")
for q in range(4):
    a(f"s_waitcnt lgkmcnt({3-q})")
    a(f"{M32} {vr(D1r,16)}, {vr(X+4*q,4)}, {vr(MR+4*q,4)}, {'0' if q == 0 else vr(D1r,16)}")
    a(f"{M32} {vr(D1i,16)}, {vr(X+4*q,4)}, {vr(MI+4*q,4)}, {'0' if q == 0 else vr(D1i,16)}")
def p2m(q):
    a(f"{M32} {vr(D2r,16)}, {vr(X+4*q,4)}, {vr(MR+4*q,4)}, {'0' if q == 0 else vr(D2r,16)}")
    a(f"{M32} {vr(D2i,16)}, {vr(X+4*q,4)}, {vr(MI+4*q,4)}, {'0' if q == 0 else vr(D2i,16)}")
for q in range(4):
    for e in range(4):
        k = 4 * q + e
        a(f"v_mul_f32 v{t[0]}, v{D1r+k}, v{TC(k)}")
        a(f"v_mul_f32 v{t[1]}, v{D1i+k}, v{TC(k)}")
        a(f"v_fma_f32 v{t[0]}, -v{D1i+k}, v{TS_(k)}, v{t[0]}")
        a(f"v_fmac_f32 v{t[1]}, v{D1r+k}, v{TS_(k)}")
        a(f"v_cvt_pk_bf16_f32 v{X+k}, v{t[0]}, v{t[1]}")
        if q == 2 and e == 1: p2m(1)
    if q == 1: p2m(0)
    if q >= 2: p2m(q)
O = MR
for r, (Dx, so) in enumerate(((D2r, "s22"), (D2i, "s30"))):
    for c2 in range(2):
        o = O + 8 * r + 4 * c2
        for e in range(4):
            a(f"v_cvt_pk_bf16_f32 v{o+e}, v{Dx+8*c2+2*e}, v{Dx+8*c2+2*e+1}")
        a(f"v_permlane32_swap_b32 v{o}, v{o+2}")
        a(f"v_permlane32_swap_b32 v{o+1}, v{o+3}")
        a(f"buffer_store_dwordx4 {vr(o,4)}, v{vst}, s[12:15], {so} offen offset:{32*c2}")
a.label("L_fin")
stamp_end(32)
a.label("L_end")
a("s_endpgm")
a.label("L_hx")
a("s_lshl_b32 s26, s2, 3"); a("s_add_u32 s26, s26, s3")
a("s_cmp_lg_u32 s26, 4")
a("s_cbranch_scc1 L_fin")
a(f"s_mov_b32 s26, {hx(EP_OFF)}")
setflag(8, "s26", "s49")
a("s_branch L_fin")
a.label("L_nt")
a.hist = []
a(f"v_mov_b32 v{t[4]}, {256*1024}")
poll("L_poll3", t[4], t[5], "s11", "s49")
a(f"buffer_load_dwordx4 {vr(SBt[4],4)}, v{vN}, s[16:19], s10 offen sc1")
a("s_waitcnt vmcnt(0)")
a(f"{M16} {vr(DDt[4],4)}, {vr(MA,4)}, {vr(SBt[4],4)}, 0")
d = DDt[4]
avg(d)
a(f"v_cvt_pk_bf16_f32 v{d}, v{d}, v{d+1}")
a("s_mov_b32 exec_lo, 0x00010001"); a("s_mov_b32 exec_hi, 0x00010001")
a(f"ds_write_b32 v{AP8}, v{d}")
a("s_mov_b64 exec, -1")
a("s_branch L_ntb")
a.label("L_npass")
a.hist = []
t = [SC + k for k in range(6)]
a("s_mov_b32 s50, s9")
a("s_mov_b32 s59, 1")
a("s_mov_b32 s53, 256")
p2_item()
a(f"v_lshrrev_b32 v{t[0]}, 3, v0"); a(f"v_mul_u32_u24 v{t[2]}, {16*TSB}, v{t[0]}")
a(f"v_and_b32 v{t[0]}, 7, v0"); a(f"v_lshl_add_u32 v{t[2]}, v{t[0]}, 4, v{t[2]}")
a("s_barrier")
for bb in range(2):
    for q in range(2):
        a(f"s_add_u32 m0, s23, {bb*2048 + q*1024}")
        a(f"s_add_u32 s29, s24, {bb*TSB + q*128*TSB}")
        a(f"buffer_load_dwordx4 v{t[2]}, s[16:19], s29 offen sc1 lds")
a(f"v_lshlrev_b32 v{t[0]}, 2, v{vc}"); a(f"v_lshl_or_b32 v{vTr}, v{vg}, 9, v{t[0]}"); a(f"v_add_u32 v{vTr}, s23, v{vTr}")
a(f"v_and_b32 v{t[0]}, 7, v0"); a(f"v_lshlrev_b32 v{t[0]}, 1, v{t[0]}"); a(f"v_lshl_or_b32 v{vWr}, v{vg}, 9, v{t[0]}"); a(f"v_add_u32 v{vWr}, s23, v{vWr}")
p2_const(False)
a(f"v_mov_b32 v{t[0]}, s49"); a(f"v_mov_b32 v{t[1]}, 0")
a("s_waitcnt vmcnt(4)")
a("s_mov_b64 exec, 1")
a(f"buffer_store_dword v{t[0]}, v{t[1]}, s[16:19], s50 offen sc1")
a("s_mov_b64 exec, -1")
for k in range(32): a(f"v_mov_b32 v{WW+k}, 0")
a("s_waitcnt vmcnt(1)")
ts(9)
for cc in range(2):
    for arr in range(4):
        for i in range(4):
            a(f"ds_read_u16_d16_hi v{WW+8*arr+4*cc+i}, v{vWr} offset:{2048*cc+128*i+64+16*arr}")
for bb in range(2):
    for j in range(4):
        a(f"ds_read_b32 v{TB+4*bb+j}, v{vTr} offset:{2048*bb+128*j}")
a("s_waitcnt lgkmcnt(0)")
a("s_branch L_p2e")

nv = (a.maxv + 1 + 7) // 8 * 8
out = "; gated_mix spectral gfnet: persistent MFMA FFT pipeline (generated by gen4.py)\n"
out += f"; @launch grid=(256,1,1) block=(512,1,1) lds={LDS_BYTES}\n"
out += '.amdgcn_target "amdgcn-amd-amdhsa--gfx950"\n.text\n'
out += f".globl {NAME}\n.p2align 8\n.type {NAME},@function\n" + a.text() + "L_code_end:\n"
out += f""".section .rodata,"a"
.p2align 6
.amdhsa_kernel {NAME}
  .amdhsa_next_free_vgpr {nv}
  .amdhsa_next_free_sgpr {min(102, a.maxs + 1)}
  .amdhsa_accum_offset {nv}
  .amdhsa_group_segment_fixed_size 0
  .amdhsa_kernarg_size 80
  .amdhsa_user_sgpr_count 2
  .amdhsa_user_sgpr_kernarg_segment_ptr 1
  .amdhsa_system_sgpr_workgroup_id_x 1
  .amdhsa_float_denorm_mode_32 3
.end_amdhsa_kernel
"""
sys.stderr.write(f"vgpr {a.maxv+1} sgpr {a.maxs+1} lines {len(a.lines)} nops {a.nops}\n")
print(out)
```

```python
import sys
from asmlib import *
NAME = "gated_mix__spectral_gfnet__spectral_gfnet__prompt_kernel"
TSB = 16512
S_OFF = 0x500000
F1_OFF = 0xE20000
F2_OFF = 0xE80000
EP_OFF = 0xEF0000
WS_SIZE = 0xF00000
WBYTES = 2048 * 1026
M32 = "v_mfma_f32_32x32x16_bf16"
M16 = "v_mfma_f32_16x16x32_bf16"
OPT = set(sys.argv[1:])
ST = "stamps" in OPT
WSZ = 0x10000000 if ST else WS_SIZE
L_A = 0; L_W = 16384; L_P = L_W; WR = 6144; L_G = 65536; L_N = 65664; L_C = 65792; LDS_BYTES = 65808
def optint(pfx, d):
    for o in OPT:
        if o.startswith(pfx) and o[len(pfx):].isdigit(): return int(o[len(pfx):])
    return d
SLEEP = optint("sl", 1); PFAT = optint("pf", 8); NWG = optint("nwg", 0)
SPIN_MAX = 400000
NTX = "" if "nontx" in OPT else " nt"
NTW = "" if "nontw" in OPT else " nt"
a = Asm()
def srd(d, base, size):
    a(f"s_mov_b32 s{d}, s{base}"); a(f"s_mov_b32 s{d+1}, s{base+1}")
    a(f"s_mov_b32 s{d+2}, {hx(size)}"); a(f"s_mov_b32 s{d+3}, 0x00020000")
NST = 14
def ts(k):
    if ST:
        a(f"s_memrealtime s[{60+2*k}:{61+2*k}]")
        a("s_waitcnt lgkmcnt(0)")
def stamp_end(vt):
    if not ST: return
    a("s_waitcnt vmcnt(0)")
    ts(NST - 1)
    for k in range(16): a(f"v_mov_b32 v{vt+k}, {'s%d' % (60+2*k) if k < NST else '0'}")
    a("s_lshl_b32 s96, s3, 6"); a("s_lshl_b32 s97, s2, 9"); a("s_add_u32 s96, s96, s97")
    a(f"s_add_u32 s96, s96, 0x3000000")
    a(f"v_mov_b32 v{vt+16}, 0")
    a("s_mov_b64 exec, 1")
    if "dbg" in OPT:
        a("s_load_dwordx2 s[4:5], s[0:1], 64")
        a("s_waitcnt lgkmcnt(0)")
        a("s_mov_b32 s6, 256"); a("s_mov_b32 s7, 0x00020000")
        a(f"v_not_b32 v{vt+14}, v{vt}")
        for k in range(15):
            a(f"buffer_atomic_umax v{vt+k}, v{vt+16}, s[4:7], 0 offen offset:{4*k}")
        return
    for q in range(4): a(f"buffer_store_dwordx4 {vr(vt+4*q,4)}, v{vt+16}, s[16:19], s96 offen offset:{16*q}")
def poll(lbl, vaddr, vtmp, soff, tag):
    a("s_mov_b32 s58, 0")
    a.label(lbl)
    a(f"buffer_load_dword v{vtmp}, v{vaddr}, s[16:19], {soff} offen sc1")
    a("s_add_u32 s58, s58, 1")
    a("s_waitcnt vmcnt(0)")
    a(f"v_cmp_ne_u32 vcc, {tag}, v{vtmp}")
    a(f"s_cmp_gt_u32 s58, {SPIN_MAX}")
    a(f"s_cbranch_scc1 {lbl}_d")
    a(f"s_cbranch_vccz {lbl}_d")
    if SLEEP: a(f"s_sleep {SLEEP}")
    a(f"s_branch {lbl}")
    a.label(lbl + "_d")
def setflag(vtmp, soff, tag):
    a(f"v_mov_b32 v{vtmp}, {tag}"); a(f"v_mov_b32 v{vtmp+1}, 0")
    a("s_waitcnt vmcnt(0)")
    a("s_mov_b64 exec, 1")
    a(f"buffer_store_dword v{vtmp}, v{vtmp+1}, s[16:19], {soff} offen sc1")
    a("s_mov_b64 exec, -1")

a.label(NAME)
a.label("L_code_start")
a("s_cmp_ge_u32 s2, 256")
a("s_cbranch_scc1 L_end")
if ST:
    a("s_memrealtime s[60:61]")
    for k in range(1, NST): a(f"s_mov_b32 s{60+2*k}, 0")
a("s_load_dwordx4 s[4:7], s[0:1], 0")
a("s_load_dwordx2 s[20:21], s[0:1], 72")
a("s_load_dwordx2 s[28:29], s[0:1], 16")
a("s_load_dwordx8 s[88:95], s[0:1], 32")
a("s_getpc_b64 s[12:13]")
a("s_and_b32 s12, s12, 0xffffff00")
a("s_mov_b32 s14, L_code_end-L_code_start")
a("s_mov_b32 s15, 0x00020000")
a("v_lshlrev_b32 v6, 6, v0")
a("s_bfe_u32 s8, s2, 0x20003")
a("v_lshrrev_b32 v1, 6, v0")
a("v_cmp_eq_u32 vcc, s8, v1")
a("s_and_saveexec_b64 s[10:11], vcc")
a("s_cbranch_execz L_cp")
if "nocp" not in OPT: a("buffer_load_ubyte v5, v6, s[12:15], 0 offen")
a.label("L_cp")
a("s_mov_b64 exec, -1")
a("v_and_b32 v0, 63, v0")
a("v_readfirstlane_b32 s3, v1")
vl16 = 2; vn = 3; vL5 = 4; vE = 5
a(f"v_lshlrev_b32 v{vl16}, 4, v0")
a(f"v_and_b32 v{vn}, 31, v0")
a(f"v_lshrrev_b32 v{vL5}, 5, v0")
a("s_and_b32 s51, s3, 3")
a("s_lshl_b32 s22, s51, 9"); a("s_add_u32 s22, s22, s2"); a("s_lshl_b32 s22, s22, 11")
a("s_and_b32 s53, s2, 7"); a("s_lshl_b32 s53, s53, 5"); a("s_lshr_b32 s54, s2, 3"); a("s_add_u32 s53, s53, s54")
a("s_and_b32 s55, s2, 7"); a("s_mul_i32 s55, s55, 1026"); a("s_lshl_b32 s56, s54, 5"); a("s_add_u32 s55, s55, s56")
a("s_lshl_b32 s24, s51, 12")
a("s_lshl_b32 s57, s2, 7"); a(f"s_add_u32 s57, s57, {hx(F1_OFF)}")
a(f"s_mov_b32 s26, {hx(EP_OFF)}")
a("v_mov_b32 v7, 0")
a("s_mov_b32 s59, 0")
a("s_waitcnt lgkmcnt(0)")
srd(16, 20, WSZ)
a(f"buffer_load_dword v{vE}, v7, s[16:19], s26 offen sc1")
for arr, p_ in enumerate((6, 28, 88, 90)): srd(32 + 4 * arr, p_, WBYTES)
def tags():
    a(f"v_readfirstlane_b32 s48, v{vE}")
    a("s_mul_i32 s48, s48, 0x9E3779B1"); a("s_add_u32 s48, s48, 0x7F4A7C15")
    a("s_xor_b32 s49, s48, 0x5bd1e995")
def arr_srd():
    a("s_cmp_eq_u32 s51, 0"); a("s_cselect_b32 s12, s32, s36"); a("s_cselect_b32 s13, s33, s37")
    a("s_cmp_eq_u32 s51, 2"); a("s_cselect_b32 s12, s40, s12"); a("s_cselect_b32 s13, s41, s13")
    a("s_cmp_eq_u32 s51, 3"); a("s_cselect_b32 s12, s44, s12"); a("s_cselect_b32 s13, s45, s13")
    a(f"s_mov_b32 s14, {hx(WBYTES)}"); a("s_mov_b32 s15, 0x00020000")
V2 = VAlloc(5)
vg = V2(); vc = V2(); vF = V2()
SC = V2(16, 4)
vS = V2(); vw1 = V2(); vr1 = V2(); vT = V2(); vTr = V2(); vWr = V2(); vw2 = V2(); vr2 = V2()
WW = V2(32, 4); TB = V2(8, 4)
Fr = V2(4, 4); Fm = V2(4, 4); M2 = V2(16, 4); MT = V2(16, 4); D = V2(16, 4)
assert V2.n <= 128, V2.n
vW = D
L_GW = L_W + 16384
def p2_addr():
    t = [SC + k for k in range(6)]
    a(f"v_lshrrev_b32 v{vg}, 4, v0"); a(f"v_and_b32 v{vc}, 15, v0")
    a(f"v_lshrrev_b32 v{t[0]}, 2, v0"); a(f"v_mul_u32_u24 v{vT}, {16*TSB}, v{t[0]}")
    a(f"v_and_b32 v{t[0]}, 3, v0"); a(f"v_lshl_add_u32 v{vT}, v{t[0]}, 4, v{vT}")
    a("s_lshl_b32 s27, s3, 11")
    a(f"s_mul_i32 s23, s3, {WR}"); a(f"s_add_u32 s23, s23, {L_W}")
    a(f"v_bfe_u32 v{t[0]}, v0, 1, 4"); a(f"v_and_b32 v{t[1]}, 1, v0"); a(f"v_lshl_add_u32 v{t[0]}, v{t[0]}, 4, v{t[1]}")
    a(f"v_lshlrev_b32 v{vF}, 7, v{t[0]}")
    a("s_lshl_b32 s28, s3, 8")
    a(f"s_add_u32 s8, s28, {hx(F1_OFF)}")
    a(f"v_lshlrev_b32 v{t[0]}, 4, v{vc}")
    a(f"v_lshl_or_b32 v{t[1]}, v{vg}, 9, v{t[0]}")
    a(f"v_add_u32 v{vw1}, s27, v{t[1]}"); a(f"v_add_u32 v{vw2}, s23, v{t[1]}")
    a(f"v_lshl_or_b32 v{vr1}, v{vg}, 12, v{t[0]}"); a(f"v_add_u32 v{vr1}, s28, v{vr1}")
    a(f"v_mul_u32_u24 v{vr2}, {2*WR}, v{vg}"); a(f"s_add_u32 s29, s28, {L_W}"); a(f"v_add3_u32 v{vr2}, v{vr2}, v{t[0]}, s29")
    a(f"v_lshlrev_b32 v{t[0]}, 3, v{vc}"); a(f"v_lshl_or_b32 v{vS}, v{vg}, 13, v{t[0]}")
def p2_item():
    t = [SC + k for k in range(6)]
    a(f"s_mul_i32 s24, s3, {2*TSB}"); a("s_lshl_b32 s26, s53, 6"); a("s_add_u32 s24, s24, s26")
    a(f"s_add_u32 s26, s24, {TSB}")
    a(f"v_lshlrev_b32 v{t[0]}, 2, v{vc}"); a(f"v_lshl_or_b32 v{vTr}, v{vg}, 8, v{t[0]}"); a(f"v_add_u32 v{vTr}, s27, v{vTr}")
    a("s_and_b32 s29, s55, 15"); a("s_add_u32 s29, s29, s23")
    a(f"v_mul_u32_u24 v{vWr}, 192, v{vg}"); a(f"v_lshl_add_u32 v{vWr}, v{vc}, 1, v{vWr}"); a(f"v_add_u32 v{vWr}, s29, v{vWr}")
    a("s_lshl_b32 s30, s53, 15"); a("s_add_u32 s30, s30, s28"); a(f"s_add_u32 s30, s30, {hx(S_OFF)}"); a("s_add_u32 s31, s30, 4096")
    a("s_lshl_b32 s9, s53, 10"); a("s_lshl_b32 s10, s3, 7"); a("s_add_u32 s9, s9, s10"); a(f"s_add_u32 s9, s9, {hx(F2_OFF)}")
    a(f"v_mul_u32_u24 v{t[0]}, 43, v0"); a(f"v_lshrrev_b32 v{t[0]}, 7, v{t[0]}")
    a(f"v_mul_u32_u24 v{t[1]}, 3, v{t[0]}"); a(f"v_sub_u32 v{t[1]}, v0, v{t[1]}")
    a("s_lshl_b32 s29, s56, 4")
    a(f"v_mul_u32_u24 v{vW}, s29, v{t[0]}"); a(f"v_lshl_add_u32 v{vW}, v{t[1]}, 4, v{vW}")
def p2_const(dozero=True):
    t = [SC + k for k in range(6)]
    vlf = SC + 6; vkf = SC + 7; vc0 = SC + 8; vlc = SC + 10; FA = SC + 12
    a(f"v_cvt_f32_u32 v{vlf}, v{vc}")
    a(f"v_cvt_f32_u32 v{vkf}, v{vg}"); a(f"v_mul_f32 v{vkf}, 4.0, v{vkf}")
    a(f"v_cvt_f32_u32 v{vc0}, s3"); a(f"v_mul_f32 v{vc0}, {fl(1/128)}, v{vc0}")
    a(f"v_mul_f32 v{vlc}, v{vlf}, v{vc0}")
    a(f"v_fmamk_f32 v{vlc+1}, v{vlf}, {hx(f2u(1/256))}, v{vlc}")
    a(f"v_mul_f32 v{vlf}, {fl(1/16)}, v{vlf}")
    z = iter(range(32))
    def zero(n):
        if not dozero:
            if n == 1: a("s_nop 0")
            return
        for _ in range(n):
            k = next(z, None)
            if k is not None: a(f"v_mov_b32 v{WW+k}, 0")
    def mat(ang):
        a(f"v_cos_f32 v{t[3]}, v{ang}"); a(f"v_sin_f32 v{t[4]}, v{ang}")
    def matfin(Mr, Mm):
        a(f"v_cvt_pk_bf16_f32 v{Mr}, v{t[3]}, v{t[4]}")
        a(f"v_cvt_pk_bf16_f32 v{Mm}, -v{t[4]}, v{t[3]}")
    for i in range(4):
        if i: a(f"v_add_f32 v{vkf}, 1.0, v{vkf}")
        a(f"v_mul_f32 v{FA+i}, v{vkf}, v{vlf}")
        mat(FA + i); zero(1); matfin(Fr + i, Fm + i)
    for i in range(3, -1, -1):
        a(f"v_fma_f32 v{t[0]}, v{vkf}, v{vc0}, v{FA+i}")
        a(f"v_fmamk_f32 v{t[1]}, v{vkf}, {hx(f2u(1/256))}, v{t[0]}")
        mat(t[0]); a(f"v_add_f32 v{t[2]}, v{FA+i}, v{vlc}"); matfin(M2 + i, M2 + 4 + i)
        mat(t[1]); a(f"v_add_f32 v{t[5]}, v{FA+i}, v{vlc+1}"); matfin(M2 + 8 + i, M2 + 12 + i)
        mat(t[2]); a(f"v_subrev_f32 v{vkf}, 1.0, v{vkf}"); matfin(MT + i, MT + 4 + i)
        mat(t[5]); zero(1); matfin(MT + 8 + i, MT + 12 + i)
    zero(32)
def wdma(wave_sreg_expr_list, flag=""):
    a("s_mov_b32 exec_lo, -1"); a("s_mov_b32 exec_hi, 0xffff")
    for add in wave_sreg_expr_list:
        a(f"s_add_u32 s10, s3, {add}")
        a("s_lshl_b32 s25, s10, 1"); a("s_mul_i32 s25, s25, s56"); a("s_add_u32 s25, s25, s55"); a("s_and_b32 s25, s25, 0xfffffff0")
        a("s_add_u32 s11, s25, s56")
        a(f"s_mul_i32 s10, s10, {WR}")
        for arr in range(4):
            for cc in range(2):
                a(f"s_add_u32 m0, s10, {L_W + 1536*arr + 768*cc}")
                a(f"buffer_load_dwordx4 v{vW}, {sr(32+4*arr,4)}, {'s25' if cc == 0 else 's11'} offen{flag} lds")
    a("s_mov_b64 exec, -1")
a(f"s_mov_b32 s56, {8*1026}")
a("s_cmp_ge_u32 s3, 4")
a("s_cbranch_scc1 L_h")
a("s_setprio 2")
srd(8, 4, 2048 * 2048)
a("s_add_u32 s30, s22, 0x80000")
a("s_mov_b32 m0, s24")
a(f"buffer_load_dwordx4 v{vl16}, s[8:11], s22 offen{NTX} lds")
a(f"buffer_load_dwordx4 v{vl16}, s[8:11], s22 offen offset:1024{NTX} lds")
a("s_add_u32 m0, s24, 2048")
a(f"buffer_load_dwordx4 v{vl16}, s[8:11], s30 offen{NTX} lds")
a(f"buffer_load_dwordx4 v{vl16}, s[8:11], s30 offen offset:1024{NTX} lds")
V = VAlloc(6)
vb = V(); vo = V(); vkn = V(); vtr = V(); vpf = V(); vj = V(); vpw = V(4); t = [V() for _ in range(6)]
srd(8, 92, 2048)
a("s_lshl_b32 s30, s51, 9"); a(f"s_add_u32 m0, s30, {L_GW}")
a("s_mov_b32 exec_hi, 0")
a(f"buffer_load_dwordx4 v{vl16}, s[8:11], s30 offen lds")
a("s_mov_b32 exec_hi, -1")
arr_srd()
a(f"v_and_b32 v{t[0]}, 7, v0"); a(f"v_mul_u32_u24 v{t[2]}, 1026, v{t[0]}")
a(f"s_mul_i32 s30, s2, {8*1026}")
a(f"buffer_load_ushort v{vj}, v{t[2]}, s[12:15], s30 offen offset:1024")
a("s_and_b32 s30, s2, 7"); a("s_lshl_b32 s31, s54, 6"); a("s_add_u32 s30, s30, s31"); a("s_mul_i32 s30, s30, 1026")
a(f"v_lshrrev_b32 v{t[0]}, 3, v0"); a(f"v_mul_u32_u24 v{t[2]}, {8*1026}, v{t[0]}")
a(f"v_and_b32 v{t[1]}, 7, v0"); a(f"v_lshl_add_u32 v{vpf}, v{t[1]}, 7, v{t[2]}")
vjunk = 1
def prefetch():
    a(f"buffer_load_ubyte v{vjunk}, v{vpf}, s[12:15], s30 offen{NTW}")
    a(f"buffer_load_ubyte v{vjunk}, v{vpt}, s[12:15], s30 offen offset:1024{NTW}")
NPF = 2
vpt = V()
a(f"v_and_b32 v{t[1]}, 1, v0"); a(f"v_lshl_add_u32 v{vpt}, v{t[1]}, 4, v{t[2]}")
if PFAT == 0: prefetch()
CC = V(8, 4); SS = V(8, 4); SN = V(8, 4); XR = V(8, 4); XI = V(8, 4)
BA = V(24, 4); BB = V(24, 4); TCh = V(8); TSh = V(8)
D1r = BA + 8; D1i = BB + 8; D2r = BA; D2i = BB
TC = lambda k: BA + k if k < 8 else TCh + k - 8
TS_ = lambda k: BB + k if k < 8 else TSh + k - 8
assert V.n <= 128, V.n
a(f"v_and_b32 v{t[0]}, 7, v0"); a(f"v_bfe_u32 v{t[1]}, v0, 3, 2")
a(f"v_lshl_or_b32 v{vkn}, v{t[0]}, 2, v{t[1]}")
a(f"v_cvt_f32_u32 v{vb}, v{vkn}"); a(f"v_cvt_f32_u32 v{vo}, v{vL5}")
a(f"v_mul_f32 v{vb}, {fl(1/32)}, v{vb}"); a(f"v_mul_f32 v{vo}, 4.0, v{vo}"); a(f"v_mul_f32 v{vo}, v{vb}, v{vo}")
for i in range(0, 16, 2):
    for e in range(2):
        kc = 8 * ((i + e) // 4) + (i + e) % 4
        if kc == 0: a(f"v_mov_b32 v{t[e]}, v{vo}")
        else: a(f"v_fmamk_f32 v{t[e]}, v{vb}, {hx(f2u(float(kc)))}, v{vo}")
    a(f"v_cos_f32 v{t[2]}, v{t[0]}"); a(f"v_cos_f32 v{t[3]}, v{t[1]}")
    a(f"v_sin_f32 v{t[4]}, v{t[0]}"); a(f"v_sin_f32 v{t[5]}, v{t[1]}")
    a(f"v_mul_f32 v{t[0]}, {fl(1/32)}, v{t[0]}"); a(f"v_mul_f32 v{t[1]}, {fl(1/32)}, v{t[1]}")
    a(f"v_cvt_pk_bf16_f32 v{CC+i//2}, v{t[2]}, v{t[3]}")
    a(f"v_cvt_pk_bf16_f32 v{SS+i//2}, v{t[4]}, v{t[5]}")
    a(f"v_cvt_pk_bf16_f32 v{SN+i//2}, -v{t[4]}, -v{t[5]}")
    a(f"v_cos_f32 v{TC(i)}, v{t[0]}"); a(f"v_cos_f32 v{TC(i+1)}, v{t[1]}")
    a(f"v_sin_f32 v{TS_(i)}, v{t[0]}"); a(f"v_sin_f32 v{TS_(i+1)}, v{t[1]}")
    if PFAT == i // 2 + 1: prefetch()
a(f"v_lshlrev_b32 v{vtr}, 8, v{vL5}")
a(f"v_bfe_u32 v{t[0]}, v0, 2, 2"); a(f"v_lshl_or_b32 v{vtr}, v{t[0]}, 6, v{vtr}")
a(f"v_bfe_u32 v{t[0]}, v0, 4, 1"); a(f"v_lshl_or_b32 v{vtr}, v{t[0]}, 5, v{vtr}")
a(f"v_and_b32 v{t[0]}, 3, v0"); a(f"v_lshl_or_b32 v{vtr}, v{t[0]}, 3, v{vtr}")
a(f"v_add_u32 v{vtr}, s24, v{vtr}")
a(f"v_and_b32 v{t[0]}, 7, v0"); a(f"v_bfe_u32 v{t[1]}, v0, 3, 2"); a(f"v_lshlrev_b32 v{t[1]}, 1, v{t[1]}")
a(f"v_xor_b32 v{t[0]}, v{t[0]}, v{t[1]}"); a(f"v_xor_b32 v{t[0]}, v{t[0]}, v{vL5}")
a(f"v_lshlrev_b32 v{t[0]}, 4, v{t[0]}")
a(f"v_lshl_or_b32 v{vpw}, v{vkn}, 7, v{t[0]}")
a(f"s_add_u32 s26, s24, {L_P}")
a(f"v_add_u32 v{vpw}, s26, v{vpw}")
for c in range(1, 4): a(f"v_xor_b32 v{vpw+c}, {32*c}, v{vpw}")
ts(1)
a(f"s_waitcnt vmcnt({NPF if PFAT <= 8 else 0})")
ts(2)
tags()
a(f"v_and_b32 v{t[0]}, 7, v0"); a(f"v_lshlrev_b32 v{t[0]}, 1, v{t[0]}")
a("s_lshl_b32 s30, s51, 4"); a(f"s_add_u32 s30, s30, {L_N + 64}"); a(f"v_add_u32 v{t[0]}, s30, v{t[0]}")
a(f"ds_write_b16 v{t[0]}, v{vj}")
for h in range(2):
    for r, X in ((0, XR), (1, XI)):
        for tt in range(2):
            a(f"ds_read_b64_tr_b16 {vr(X+4*h+2*tt,2)}, v{vtr} offset:{r*2048+h*1024+tt*512}")
a("s_barrier")
def cpass(R, I, Dr, Di, h, first):
    c0 = "0" if first else vr(Dr, 16); c1 = "0" if first else vr(Di, 16)
    a(f"{M32} {vr(Dr,16)}, {vr(R+4*h,4)}, {vr(CC+4*h,4)}, {c0}")
    a(f"{M32} {vr(Di,16)}, {vr(I+4*h,4)}, {vr(CC+4*h,4)}, {c1}")
    a(f"{M32} {vr(Dr,16)}, {vr(I+4*h,4)}, {vr(SS+4*h,4)}, {vr(Dr,16)}")
    a(f"{M32} {vr(Di,16)}, {vr(R+4*h,4)}, {vr(SN+4*h,4)}, {vr(Di,16)}")
a("s_waitcnt lgkmcnt(4)")
cpass(XR, XI, D1r, D1i, 0, True)
a("s_waitcnt lgkmcnt(0)")
cpass(XR, XI, D1r, D1i, 1, False)
for h in range(2):
    for i in range(8 * h, 8 * h + 8, 2):
        for e in range(2):
            k = i + e
            a(f"v_mul_f32 v{t[e]}, v{D1r+k}, v{TC(k)}")
            a(f"v_mul_f32 v{t[2+e]}, v{D1i+k}, v{TC(k)}")
            a(f"v_fmac_f32 v{t[e]}, v{D1i+k}, v{TS_(k)}")
            a(f"v_fma_f32 v{t[2+e]}, -v{D1r+k}, v{TS_(k)}, v{t[2+e]}")
        a(f"v_cvt_pk_bf16_f32 v{XR+i//2}, v{t[0]}, v{t[1]}")
        a(f"v_cvt_pk_bf16_f32 v{XI+i//2}, v{t[2]}, v{t[3]}")
    cpass(XR, XI, D2r, D2i, h, h == 0)
PK = CC
for c in range(4):
    for e in range(4):
        a(f"v_cvt_pk_bf16_f32 v{PK+4*c+e}, v{D2r+4*c+e}, v{D2i+4*c+e}")
    a(f"ds_write_b128 v{vpw+c}, {vr(PK+4*c,4)}")
a("s_waitcnt lgkmcnt(0)")
ts(3)
a("s_barrier")
a("s_setprio 0")
p2_addr()
p2_item()
ts(4)
a("s_barrier")
ts(5)
wdma([0, 4])
ts(6)
p2_const()
a("s_branch L_p2")
a.label("L_h")
a.hist = []
V = VAlloc(6)
t = [V() for _ in range(8)]
XN = V(16, 4); GW = V(8, 4)
vnat = V(); a(f"v_add_u32 v{vnat}, s24, v{vl16}")
MA = V(4, 4)
DMB = V(48, 4)
vu = DMB; vA = DMB + 1; vB1 = DMB + 2; vB2 = DMB + 3; vsg = DMB + 4
a(f"v_mov_b32 v{t[3]}, {L_C}"); a(f"v_mov_b32 v{t[4]}, 0")
a(f"ds_write_b32 v{t[3]}, v{t[4]}")
a(f"v_bfe_u32 v{t[0]}, v0, 3, 1"); a(f"v_bfe_u32 v{t[1]}, v0, 1, 1")
a(f"v_lshl_or_b32 v{t[0]}, v{t[0]}, 1, v{t[1]}")
a(f"v_and_or_b32 v{vu}, v0, 4, v{t[0]}")
a(f"v_cvt_f32_u32 v{vu}, v{vu}")
a(f"v_cvt_f32_u32 v{vsg}, v{vL5}")
a(f"v_fma_f32 v{vsg}, v{vsg}, -2.0, 1.0")
a(f"v_mul_f32 v{vA}, v{vu}, v{vsg}")
a(f"v_mul_f32 v{vA}, {fl(0.125)}, v{vA}")
a(f"v_and_b32 v{t[0]}, 1, v0"); a(f"v_cvt_f32_u32 v{t[0]}, v{t[0]}")
a(f"v_mul_f32 v{vB1}, v{t[0]}, v{vsg}"); a(f"v_mul_f32 v{vB1}, {fl(0.25)}, v{vB1}")
a(f"v_cvt_f32_u32 v{t[1]}, s2"); a(f"v_mul_f32 v{t[1]}, {fl(1/256)}, v{t[1]}")
a(f"v_fmac_f32 v{vB1}, v{t[1]}, v{vA}")
a(f"v_add_f32 v{vB2}, {fl(0.25)}, v{vB1}")
for pp in range(4):
    if pp == 0: a(f"v_mov_b32 v{t[0]}, v{vB1}")
    else: a(f"v_fmamk_f32 v{t[0]}, v{vA}, {hx(f2u(2.0*pp))}, v{vB1}")
    a(f"v_fmamk_f32 v{t[1]}, v{vA}, {hx(f2u(2.0*pp+1))}, v{vB2}")
    a(f"v_cos_f32 v{t[2]}, v{t[0]}"); a(f"v_cos_f32 v{t[3]}, v{t[1]}")
    a(f"v_sin_f32 v{t[4]}, v{t[0]}"); a(f"v_sin_f32 v{t[5]}, v{t[1]}")
    a(f"v_add_f32 v{t[2]}, v{t[2]}, v{t[3]}")
    a(f"v_add_f32 v{t[4]}, v{t[4]}, v{t[5]}")
    a(f"v_cvt_pk_bf16_f32 v{MA+pp}, v{t[2]}, v{t[4]}")
vmr = V(5); vk = DMB + 5; vneg = DMB + 6
a("s_lshl_b32 s30, s51, 7")
a(f"v_lshlrev_b32 v{t[0]}, 2, v{vn}")
a(f"v_sub_u32 v{vneg}, 0, v{vL5}")
for q in range(5):
    if q < 4: a(f"v_add3_u32 v{vk}, v{t[0]}, s30, {q}")
    else: a(f"v_add_u32 v{vk}, 512, v{t[0]}")
    a(f"v_xor_b32 v{vk}, v{vk}, v{vneg}"); a(f"v_add_u32 v{vk}, v{vk}, v{vL5}")
    a(f"v_bfe_u32 v{t[1]}, v{vk}, 5, 5")
    a(f"v_bfe_u32 v{t[2]}, v{vk}, 7, 3")
    a(f"v_xor_b32 v{t[3]}, v{vk}, v{t[1]}")
    a(f"v_and_b32 v{t[3]}, 3, v{t[3]}")
    a(f"v_bfe_u32 v{t[4]}, v{vk}, 4, 1")
    a(f"v_lshl_or_b32 v{t[3]}, v{t[3]}, 1, v{t[4]}")
    a(f"v_xor_b32 v{t[3]}, v{t[3]}, v{t[2]}")
    a(f"v_and_b32 v{t[4]}, 12, v{vk}")
    a(f"v_lshl_or_b32 v{t[4]}, v{t[3]}, 4, v{t[4]}")
    a(f"v_lshl_or_b32 v{vmr+q}, v{t[1]}, 7, v{t[4]}")
vts = V(); vtn = V(); vnl = V()
a(f"v_lshlrev_b32 v{t[0]}, 13, v{vL5}"); a(f"v_lshl_or_b32 v{vts}, v{vn}, 4, v{t[0]}")
a(f"v_lshlrev_b32 v{vtn}, 4, v{vL5}"); a(f"v_add_u32 v{vtn}, {L_N}, v{vtn}")
a(f"v_add_u32 v{vnl}, {L_N}, v{vl16}")
a(f"s_mul_i32 s8, s2, {TSB}")
a("s_lshl_b32 s9, s51, 9"); a("s_add_u32 s9, s9, s8"); a("s_add_u32 s10, s9, 4096")
a("s_add_u32 s8, s8, 16384")
a("s_mov_b32 s11, 0xffff0000")
acc = V(4, 4); ones = V(); MB = XN; MB4 = GW
a(f"v_mov_b32 v{ones}, 0x3f803f80")
a(f"v_mov_b32 v{acc}, 0"); a(f"v_mov_b32 v{acc+2}, 0")
assert V.n <= 128, V.n
a("s_waitcnt lgkmcnt(0)")
ts(1)
a("s_barrier")
for r in range(2):
    for q in range(2):
        a(f"ds_read_b128 {vr(XN+8*r+4*q,4)}, v{vnat} offset:{r*2048+q*1024}")
a(f"ds_read_b128 {vr(GW,4)}, v{vl16} offset:{L_GW}")
a(f"ds_read_b128 {vr(GW+4,4)}, v{vl16} offset:{L_GW+1024}")
a("s_waitcnt lgkmcnt(0)")
ts(2)
for j in range(8):
    a(f"v_lshlrev_b32 v{t[6]}, 16, v{GW+j}")
    a(f"v_and_b32 v{t[7]}, s11, v{GW+j}")
    for r in range(2):
        a(f"v_lshlrev_b32 v{t[2*r]}, 16, v{XN+8*r+j}")
        a(f"v_and_b32 v{t[2*r+1]}, s11, v{XN+8*r+j}")
    for r in range(2):
        a(f"v_mul_f32 v{t[2*r]}, v{t[2*r]}, v{t[6]}")
        a(f"v_mul_f32 v{t[2*r+1]}, v{t[2*r+1]}, v{t[7]}")
    for r in range(2): a(f"v_cvt_pk_bf16_f32 v{t[4+r]}, v{t[2*r]}, v{t[2*r+1]}")
    for r in range(2): a(f"v_dot2_f32_bf16 v{acc+2*r}, v{t[4+r]}, v{ones}, v{acc+2*r}")
a("s_waitcnt vmcnt(0)")
tags()
ts(3)
a("s_setprio 2")
a("s_barrier")
ts(4)
o = L_P // 256
a(f"ds_read2st64_b32 {vr(MB4,2)}, v{vmr+4} offset0:{o} offset1:{o+16}")
a(f"ds_read2st64_b32 {vr(MB4+2,2)}, v{vmr+4} offset0:{o+32} offset1:{o+48}")
for q in range(4):
    a(f"ds_read2st64_b32 {vr(MB+4*q,2)}, v{vmr+q} offset0:{o} offset1:{o+16}")
    a(f"ds_read2st64_b32 {vr(MB+4*q+2,2)}, v{vmr+q} offset0:{o+32} offset1:{o+48}")
DN = DMB; DM = [DMB + 8 + 8 * q for q in range(4)]
a("s_waitcnt lgkmcnt(8)")
a(f"{M32} {vr(DN,16)}, {vr(MA,4)}, {vr(MB4,4)}, 0")
for q in range(4):
    a(f"s_waitcnt lgkmcnt({6-2*q})")
    a(f"{M32} {vr(DM[q],16)}, {vr(MA,4)}, {vr(MB+4*q,4)}, 0")
for s_ in range(4):
    a(f"v_cvt_pk_bf16_f32 v{GW+4+s_}, v{DN+2*s_}, v{DN+2*s_+1}")
a("s_cmp_eq_u32 s51, 0"); a("s_cselect_b32 exec_lo, 1, 0"); a("s_cselect_b32 exec_hi, 1, 0")
a(f"ds_write_b128 v{vtn}, {vr(GW+4,4)}")
a("s_cselect_b32 s30, 255, 0")
a("s_mov_b64 exec, -1")
OUT = MB
for s_ in range(4):
    for q in range(4):
        a(f"v_cvt_pk_bf16_f32 v{OUT+4*s_+q}, v{DM[q]+2*s_}, v{DM[q]+2*s_+1}")
    a(f"buffer_store_dwordx4 {vr(OUT+4*s_,4)}, v{vts}, s[16:19], {'s9' if s_ < 2 else 's10'} offen offset:{(s_&1)*2048} sc1")
    if s_ == 0:
        a("s_mov_b32 exec_lo, s30"); a("s_mov_b32 exec_hi, 0")
        a(f"ds_read_b128 {vr(GW,4)}, v{vnl}")
        a("s_mov_b64 exec, -1")
a("s_waitcnt lgkmcnt(0)")
a("s_mov_b32 exec_lo, s30"); a("s_mov_b32 exec_hi, 0")
a(f"buffer_store_dwordx4 {vr(GW,4)}, v{vl16}, s[16:19], s8 offen sc1")
a("s_mov_b64 exec, -1")
a("s_barrier")
ts(5)
for dpp in ("row_shr:1", "row_shr:2", "row_shr:4", "row_shr:8"):
    for r in range(2):
        a(f"v_add_f32_dpp v{acc+2*r}, v{acc+2*r}, v{acc+2*r} {dpp} row_mask:0xf bank_mask:0xf bound_ctrl:0")
for dpp, rm in (("row_bcast:15", "0xa"), ("row_bcast:31", "0xc")):
    for r in range(2):
        a(f"v_add_f32_dpp v{acc+2*r}, v{acc+2*r}, v{acc+2*r} {dpp} row_mask:{rm} bank_mask:0xf")
a(f"v_cvt_pk_bf16_f32 v{t[0]}, v{acc}, v{acc+2}")
a(f"v_lshlrev_b32 v{t[1]}, 16, v{t[0]}")
a(f"v_and_b32 v{t[2]}, s11, v{t[0]}")
for r in range(2): a(f"v_mul_f32 v{t[1+r]}, {hx(f2u(-1.4426950408889634))}, v{t[1+r]}")
for r in range(2): a(f"v_exp_f32 v{t[1+r]}, v{t[1+r]}")
for r in range(2): a(f"v_add_f32 v{t[1+r]}, 1.0, v{t[1+r]}")
for r in range(2): a(f"v_rcp_f32 v{t[1+r]}, v{t[1+r]}")
a(f"v_cvt_pk_bf16_f32 v{t[0]}, v{t[1]}, v{t[2]}")
a(f"v_lshlrev_b32 v{acc}, 16, v{t[0]}")
a(f"v_and_b32 v{acc+2}, s11, v{t[0]}")
a(f"v_sub_f32 v{t[1]}, 1.0, v{acc}")
a(f"v_sub_f32 v{t[2]}, 1.0, v{acc+2}")
a(f"v_cvt_pk_bf16_f32 v{t[0]}, v{t[1]}, v{t[2]}")
a(f"v_lshlrev_b32 v{acc+1}, 16, v{t[0]}")
a(f"v_and_b32 v{acc+3}, s11, v{t[0]}")
for r in range(4): a(f"v_mul_f32 v{acc+r}, {hx(f2u(2.0**-22))}, v{acc+r}")
a("s_lshl_b32 s30, s51, 4"); a(f"s_add_u32 s30, s30, {L_G}")
a(f"v_mov_b32 v{t[3]}, s30")
a("s_mov_b32 exec_lo, 0"); a("s_mov_b32 exec_hi, 0x80000000")
a(f"ds_write_b128 v{t[3]}, {vr(acc,4)}")
a("s_mov_b64 exec, 1")
a(f"v_mov_b32 v{t[3]}, {L_C}"); a(f"v_mov_b32 v{t[4]}, 1"); a(f"v_mov_b32 v{t[6]}, s48"); a(f"v_mov_b32 v{t[7]}, 0")
a("s_waitcnt vmcnt(0)")
a(f"ds_add_rtn_u32 v{t[5]}, v{t[3]}, v{t[4]}")
a("s_waitcnt lgkmcnt(0)")
a(f"v_cmp_eq_u32 vcc, 3, v{t[5]}")
a("s_and_b64 exec, exec, vcc")
a(f"buffer_store_dword v{t[6]}, v{t[7]}, s[16:19], s57 offen sc1")
a("s_mov_b64 exec, -1")
a("s_setprio 0")
ts(6)
p2_addr(); p2_item(); p2_const()
a.label("L_p2")
a.hist = []
t = [SC + k for k in range(6)]
ts(7)
poll("L_poll1", vF, t[0], "s8", "s48")
ts(8)
a.label("L_p2c")
a("s_setprio 1")
a("s_mov_b32 m0, s27")
a(f"buffer_load_dwordx4 v{vT}, s[16:19], s24 offen sc1 lds")
a("s_add_u32 m0, s27, 1024")
a(f"buffer_load_dwordx4 v{vT}, s[16:19], s26 offen sc1 lds")
a.label("L_p2d")
a("s_barrier")
for cc in range(2):
    for arr in range(4):
        for i in range(4):
            a(f"ds_read_u16_d16_hi v{WW+8*arr+4*cc+i}, v{vWr} offset:{1536*arr+768*cc+48*i}")
PKD = SC + 8
a("s_waitcnt vmcnt(0)")
if ST: a("s_waitcnt lgkmcnt(0)")
ts(9)
a(f"ds_read2_b32 {vr(TB,2)}, v{vTr} offset0:0 offset1:16")
a(f"ds_read2_b32 {vr(TB+2,2)}, v{vTr} offset0:32 offset1:48")
a(f"v_add_u32 v{vTr}, 1024, v{vTr}")
a(f"ds_read2_b32 {vr(TB+4,2)}, v{vTr} offset0:0 offset1:16")
a(f"ds_read2_b32 {vr(TB+6,2)}, v{vTr} offset0:32 offset1:48")
a.label("L_p2e")
for bb in range(2):
    a(f"s_waitcnt lgkmcnt({2-2*bb})")
    a(f"{M16} {vr(D+8*bb,4)}, {vr(Fr,4)}, {vr(TB+4*bb,4)}, 0")
    a(f"{M16} {vr(D+8*bb+4,4)}, {vr(Fm,4)}, {vr(TB+4*bb,4)}, 0")
for ip in range(2):
    for cc in range(2):
        for bb in range(2):
            i = 2 * ip + cc
            a(f"v_cvt_pk_bf16_f32 v{PKD+4*ip+2*cc+bb}, v{D+8*bb+i}, v{D+8*bb+4+i}")
    a(f"ds_write_b128 v{vw1}, {vr(PKD+4*ip,4)} offset:{ip*256}")
a("s_waitcnt lgkmcnt(0)")
a("s_barrier")
OB = TB
for cc in range(2):
    for h in range(2):
        a(f"ds_read_b64 {vr(OB+4*cc+2*h,2)}, v{vr1} offset:{h*2048+cc*8}")
X = D
for cc in range(2):
    a(f"s_waitcnt lgkmcnt({2-2*cc})")
    a(f"{M16} {vr(X+8*cc,4)}, {vr(M2+8*cc,4)}, {vr(OB+4*cc,4)}, 0")
    a(f"{M16} {vr(X+8*cc+4,4)}, {vr(M2+8*cc+4,4)}, {vr(OB+4*cc,4)}, 0")
YO = [PKD, PKD + 4, TB, TB + 4]
DP = M2; tp = SC
def dpt(cc, ab, ri): return DP + 8 * ab + 4 * ri if cc == 0 else WW + 8 * (2 * ab + ri)
for cc in range(2):
    for ab in range(2):
        n = 2 * cc + ab
        wr = WW + 8 * (2 * ab) + 4 * cc; wi = WW + 8 * (2 * ab + 1) + 4 * cc
        xr = X + 8 * cc; xi = X + 8 * cc + 4
        for i in range(4):
            a(f"v_mul_f32 v{tp+2*i}, v{xr+i}, v{wr+i}")
            a(f"v_mul_f32 v{tp+2*i+1}, v{xi+i}, v{wr+i}")
            a(f"v_fma_f32 v{tp+2*i}, -v{xi+i}, v{wi+i}, v{tp+2*i}")
            a(f"v_fmac_f32 v{tp+2*i+1}, v{xr+i}, v{wi+i}")
            a(f"v_cvt_pk_bf16_f32 v{YO[n]+i}, v{tp+2*i+1}, v{tp+2*i}")
        a(f"{M16} {vr(dpt(cc,ab,0),4)}, {vr(MT+8*cc,4)}, {vr(YO[n],4)}, 0")
        a(f"{M16} {vr(dpt(cc,ab,1),4)}, {vr(MT+8*cc+4,4)}, {vr(YO[n],4)}, 0")
P2 = D
for ab in range(2):
    for ip in range(2):
        for cc in range(2):
            for bb in range(2):
                i = 2 * ip + bb
                a(f"v_cvt_pk_bf16_f32 v{P2+8*ab+4*ip+2*bb+cc}, v{dpt(cc,ab,0)+i}, v{dpt(cc,ab,1)+i}")
        a(f"ds_write_b128 v{vw2}, {vr(P2+8*ab+4*ip,4)} offset:{2048*ab+ip*256}")
a("s_waitcnt lgkmcnt(0)")
a("s_barrier")
O2 = WW + 16
for bb in range(2):
    for ab in range(2):
        for h in range(2):
            a(f"ds_read_b64 {vr(O2+8*bb+4*ab+2*h,2)}, v{vr2} offset:{WR*h+2048*ab+bb*8}")
E = [M2, M2 + 8, MT, MT + 8]
for bb in range(2):
    for ab in range(2):
        n = 2 * bb + ab
        a(f"s_waitcnt lgkmcnt({6-2*n})")
        a(f"{M16} {vr(E[n],4)}, {vr(Fr,4)}, {vr(O2+4*n,4)}, 0")
        a(f"{M16} {vr(E[n]+4,4)}, {vr(Fm,4)}, {vr(O2+4*n,4)}, 0")
SO = WW
for bb in range(2):
    for i in range(4):
        for ab in range(2):
            n = 2 * bb + ab
            a(f"v_cvt_pk_bf16_f32 v{SO+8*bb+2*i+ab}, v{E[n]+4+i}, v{E[n]+i}")
        a(f"buffer_store_dwordx2 {vr(SO+8*bb+2*i,2)}, v{vS}, s[16:19], {'s30' if i < 2 else 's31'} offen offset:{(i&1)*2048+bb*128} sc1")
if ST:
    a("s_cmp_lg_u32 s59, 0"); a("s_cbranch_scc1 L_sk10")
    ts(10)
    a.label("L_sk10")
a(f"s_lshl_b32 s29, s59, 8"); a("s_add_u32 s29, s29, s2")
a(f"s_cmp_eq_u32 s29, {NWG}")
a("s_cbranch_scc1 L_npass")
setflag(t[0], "s9", "s49")
a("s_setprio 0")
V = VAlloc(8)
vg_ = vg; vc_ = vc
t = [V() for _ in range(6)]
vS3 = 1; vN = 2; vF3 = 7; AP8 = V(); AMx = V()
MR = V(16, 4); MI = V(16, 4); X = V(16, 4)
BA = V(24, 4); BB = V(24, 4); TCh = V(8); TSh = V(8)
assert V.n <= 128, V.n
D1r = BA + 8; D1i = BB + 8; D2r = BA; D2i = BB
SBt = [D1r, D1r + 4, D1r + 8, D1r + 12, X]
DDt = [D1i, D1i + 4, D1i + 8, D1i + 12, X + 4]
MA = X + 8; AP = X + 12; AM = [X + 13, X + 14, X + 15, AMx]
CS = D1r; GG = D1i
a(f"v_bfe_u32 v{t[0]}, v0, 2, 2"); a(f"v_lshlrev_b32 v{t[1]}, 4, v{t[0]}")
a(f"v_add_u32 v{t[1]}, {L_G}, v{t[1]}")
a(f"ds_read_b128 {vr(GG,4)}, v{t[1]}")
a(f"v_lshlrev_b32 v{t[1]}, 3, v{vc_}"); a(f"v_lshl_or_b32 v{vS3}, v{vg_}, 21, v{t[1]}")
a(f"v_lshlrev_b32 v{vN}, 4, v{vg_}")
a("s_lshl_b32 s8, s2, 7"); a(f"s_add_u32 s8, s8, {hx(S_OFF)}"); a(f"s_add_u32 s10, s8, {hx(256*32768)}")
a("s_lshl_b32 s11, s3, 15"); a("s_add_u32 s8, s8, s11")
a(f"v_bfe_u32 v{t[1]}, v0, 2, 3"); a(f"v_and_b32 v{t[2]}, 3, v0"); a(f"v_lshlrev_b32 v{t[2]}, 3, v{t[2]}")
a(f"v_lshl_add_u32 v{t[1]}, v{t[1]}, 5, v{t[2]}"); a(f"v_add_u32 v{t[1]}, s3, v{t[1]}")
a("s_cmp_eq_u32 s3, 0"); a("s_cselect_b32 s24, 0x00010001, 0")
a(f"v_lshlrev_b32 v{vF3}, 10, v{t[1]}")
a("s_bfe_u32 s11, s2, 0x30001"); a("s_lshl_b32 s11, s11, 7"); a(f"s_add_u32 s11, s11, {hx(F2_OFF)}")
vsg = X; ve = X + 1; vstep = X + 2; vpe = X + 3; vpo = X + 4; vk = X + 5; vpl = X + 6
a(f"v_bfe_u32 v{t[1]}, v0, 1, 1"); a(f"v_cvt_f32_u32 v{vsg}, v{t[1]}")
a(f"v_mul_f32 v{vsg}, -0.5, v{vsg}"); a(f"v_add_f32 v{vsg}, {fl(0.25)}, v{vsg}")
a(f"v_and_b32 v{t[1]}, 1, v0"); a(f"v_cvt_f32_u32 v{t[1]}, v{t[1]}")
a(f"v_mul_f32 v{ve}, v{t[1]}, v{vsg}")
a(f"v_lshlrev_b32 v{t[0]}, 9, v{t[0]}"); a(f"v_add_u32 v{t[0]}, s2, v{t[0]}")
a(f"v_cvt_f32_u32 v{vstep}, v{t[0]}"); a(f"v_mul_f32 v{vstep}, {hx(f2u(-1/2048))}, v{vstep}")
a(f"v_cvt_f32_u32 v{t[2]}, v{vg_}"); a(f"v_add_f32 v{t[2]}, v{t[2]}, v{t[2]}")
a(f"v_fma_f32 v{vpe}, v{t[2]}, v{vstep}, v{ve}")
a(f"v_sub_f32 v{vpo}, v{vpe}, v{vsg}")
a(f"v_fmamk_f32 v{vpo}, v{t[2]}, {hx(f2u(-0.125))}, v{vpo}")
for lo in range(2):
    if lo:
        a(f"v_add_f32 v{vpe}, v{vpe}, v{vstep}")
        a(f"v_add_f32 v{vpo}, v{vpo}, v{vstep}"); a(f"v_add_f32 v{vpo}, {hx(f2u(-0.125))}, v{vpo}")
    a(f"v_cos_f32 v{CS+4*lo}, v{vpe}"); a(f"v_sin_f32 v{CS+4*lo+1}, v{vpe}")
    a(f"v_cos_f32 v{CS+4*lo+2}, v{vpo}"); a(f"v_sin_f32 v{CS+4*lo+3}, v{vpo}")
a("s_lshl_b32 s25, s3, 4")
a(f"v_lshlrev_b32 v{vpl}, 12, v{vg_}")
a(f"v_add_u32 v{vk}, s25, v{vc_}")
a(f"v_and_b32 v{t[3]}, 14, v{vk}"); a(f"v_lshl_or_b32 v{t[3]}, v{t[3]}, 3, v{vpl}")
a(f"v_and_b32 v{t[4]}, 31, v{vk}"); a(f"v_lshl_or_b32 v{t[3]}, v{t[4]}, 7, v{t[3]}")
a(f"v_bfe_u32 v{t[4]}, v{vk}, 5, 2"); a(f"v_lshl_or_b32 v{AP}, v{t[4]}, 2, v{t[3]}")
a(f"v_or_b32 v{AP8}, 64, v{vpl}")
a(f"v_sub_u32 v{t[5]}, 0, v{vk}")
a(f"v_and_b32 v{t[4]}, 31, v{t[5]}"); a(f"v_lshl_or_b32 v{t[3]}, v{t[4]}, 7, v{vpl}")
a(f"v_and_b32 v{t[4]}, 14, v{t[5]}"); a(f"v_lshl_or_b32 v{t[3]}, v{t[4]}, 3, v{t[3]}")
a(f"v_lshrrev_b32 v{t[5]}, 3, v{t[5]}")
for tt in range(4):
    if tt: a(f"v_subrev_u32 v{t[5]}, 16, v{t[5]}")
    a(f"v_and_b32 v{t[4]}, 0x7c, v{t[5]}")
    a(f"v_xor_b32 v{AM[tt]}, v{t[4]}, v{t[3]}")
a("s_waitcnt lgkmcnt(0)")
for lo in range(2):
    for ab in range(2):
        a(f"v_mul_f32 v{t[0]}, v{GG+ab}, v{CS+4*lo}"); a(f"v_mul_f32 v{t[1]}, v{GG+ab}, v{CS+4*lo+1}")
        a(f"v_fmac_f32 v{t[0]}, v{GG+2+ab}, v{CS+4*lo+2}"); a(f"v_fmac_f32 v{t[1]}, v{GG+2+ab}, v{CS+4*lo+3}")
        a(f"v_cvt_pk_bf16_f32 v{MA+2*lo+ab}, v{t[0]}, v{t[1]}")
a("s_cmp_ge_u32 s3, 4")
a("s_cbranch_scc1 L_p3b")
TC = lambda k: BA + k if k < 8 else TCh + k - 8
TS_ = lambda k: BB + k if k < 8 else TSh + k - 8
vb = X; vo = X + 1
a(f"v_cvt_f32_u32 v{vb}, v{vn}"); a(f"v_cvt_f32_u32 v{vo}, v{vL5}")
a(f"v_mul_f32 v{vb}, {fl(1/32)}, v{vb}"); a(f"v_mul_f32 v{vo}, 4.0, v{vo}"); a(f"v_mul_f32 v{vo}, v{vb}, v{vo}")
for i in range(16):
    kc = 8 * (i // 4) + i % 4
    if kc == 0: a(f"v_mov_b32 v{t[0]}, v{vo}")
    else: a(f"v_fmamk_f32 v{t[0]}, v{vb}, {hx(f2u(float(kc)))}, v{vo}")
    a(f"v_cos_f32 v{t[1]}, v{t[0]}"); a(f"v_sin_f32 v{t[2]}, v{t[0]}")
    a(f"v_mul_f32 v{t[0]}, {fl(1/32)}, v{t[0]}")
    a(f"v_cvt_pk_bf16_f32 v{MR+i}, v{t[1]}, -v{t[2]}")
    a(f"v_cvt_pk_bf16_f32 v{MI+i}, v{t[2]}, v{t[1]}")
    a(f"v_cos_f32 v{TC(i)}, v{t[0]}"); a(f"v_sin_f32 v{TS_(i)}, v{t[0]}")
a.label("L_p3b")
ts(11)
poll("L_poll2", vF3, t[0], "s11", "s49")
ts(12)
for tt in range(4):
    for lo in range(2):
        a(f"s_add_u32 s26, s8, {hx(tt*8*32768 + lo*(1<<20))}")
        a(f"buffer_load_dwordx2 {vr(SBt[tt]+2*lo,2)}, v{vS3}, s[16:19], s26 offen sc1")
def avg(d):
    a(f"v_add_f32 v{d}, v{d}, v{d+2}"); a(f"v_add_f32 v{d+1}, v{d+1}, v{d+3}")
    a(f"v_mul_f32 v{d}, 0.5, v{d}"); a(f"v_mul_f32 v{d+1}, 0.5, v{d+1}")
def fin(tt):
    d = DDt[tt]
    if tt == 0:
        a("s_mov_b32 exec_lo, s24"); a("s_mov_b32 exec_hi, s24")
        avg(d); a(f"v_mov_b32 v{d+2}, v{d}"); a(f"v_mov_b32 v{d+3}, v{d+1}")
        a("s_mov_b64 exec, -1")
    a(f"v_cvt_pk_bf16_f32 v{d}, v{d}, v{d+1}")
    a(f"v_cvt_pk_bf16_f32 v{d+1}, v{d+2}, v{d+3}")
    if tt: a(f"v_xor_b32 v{t[tt]}, {tt<<4}, v{AP}")
    a(f"ds_write_b32 v{t[tt] if tt else AP}, v{d}")
    a(f"ds_write_b32 v{AM[tt]}, v{d+1}")
for tt in range(4):
    a(f"s_waitcnt vmcnt({max(0, 6-2*tt)})")
    a(f"{M16} {vr(DDt[tt],4)}, {vr(MA,4)}, {vr(SBt[tt],4)}, 0")
    if tt >= 1: fin(tt - 1)
fin(3)
a("s_cmp_eq_u32 s3, 7")
a("s_cbranch_scc1 L_nt")
a.label("L_ntb")
vst = vS3
a(f"v_bfe_u32 v{t[4]}, v{vn}, 1, 3"); a(f"v_xor_b32 v{t[4]}, v{t[4]}, v{vL5}"); a(f"v_lshlrev_b32 v{t[4]}, 4, v{t[4]}")
a(f"v_lshl_or_b32 v{t[4]}, v{vn}, 7, v{t[4]}"); a("s_lshl_b32 s26, s51, 12")
a("s_waitcnt lgkmcnt(0)")
a(f"v_add_u32 v{t[0]}, s26, v{t[4]}")
for q in range(1, 4): a(f"v_xor_b32 v{t[q]}, {32*q}, v{t[0]}")
a(f"v_lshlrev_b32 v{t[4]}, 4, v{vL5}"); a(f"v_lshl_or_b32 v{vst}, v{vn}, 6, v{t[4]}")
srd(12, 94, 2048 * 2048)
a("s_add_u32 s30, s22, 0x80000")
a("s_barrier")
a("s_cmp_ge_u32 s3, 4")
a("s_cbranch_scc1 L_hx")
for q in range(4): a(f"ds_read_b128 {vr(X+4*q,4)}, v{t[q]}")
for q in range(4):
    a(f"s_waitcnt lgkmcnt({3-q})")
    a(f"{M32} {vr(D1r,16)}, {vr(X+4*q,4)}, {vr(MR+4*q,4)}, {'0' if q == 0 else vr(D1r,16)}")
    a(f"{M32} {vr(D1i,16)}, {vr(X+4*q,4)}, {vr(MI+4*q,4)}, {'0' if q == 0 else vr(D1i,16)}")
def p2m(q):
    a(f"{M32} {vr(D2r,16)}, {vr(X+4*q,4)}, {vr(MR+4*q,4)}, {'0' if q == 0 else vr(D2r,16)}")
    a(f"{M32} {vr(D2i,16)}, {vr(X+4*q,4)}, {vr(MI+4*q,4)}, {'0' if q == 0 else vr(D2i,16)}")
for q in range(4):
    for e in range(4):
        k = 4 * q + e
        a(f"v_mul_f32 v{t[0]}, v{D1r+k}, v{TC(k)}")
        a(f"v_mul_f32 v{t[1]}, v{D1i+k}, v{TC(k)}")
        a(f"v_fma_f32 v{t[0]}, -v{D1i+k}, v{TS_(k)}, v{t[0]}")
        a(f"v_fmac_f32 v{t[1]}, v{D1r+k}, v{TS_(k)}")
        a(f"v_cvt_pk_bf16_f32 v{X+k}, v{t[0]}, v{t[1]}")
        if q == 2 and e == 1: p2m(1)
    if q == 1: p2m(0)
    if q >= 2: p2m(q)
O = MR
for r, (Dx, so) in enumerate(((D2r, "s22"), (D2i, "s30"))):
    for c2 in range(2):
        o = O + 8 * r + 4 * c2
        for e in range(4):
            a(f"v_cvt_pk_bf16_f32 v{o+e}, v{Dx+8*c2+2*e}, v{Dx+8*c2+2*e+1}")
        a(f"v_permlane32_swap_b32 v{o}, v{o+2}")
        a(f"v_permlane32_swap_b32 v{o+1}, v{o+3}")
        a(f"buffer_store_dwordx4 {vr(o,4)}, v{vst}, s[12:15], {so} offen offset:{32*c2}")
a.label("L_fin")
stamp_end(32)
a.label("L_end")
a("s_endpgm")
a.label("L_hx")
a("s_lshl_b32 s26, s2, 3"); a("s_add_u32 s26, s26, s3")
a("s_cmp_lg_u32 s26, 4")
a("s_cbranch_scc1 L_fin")
a(f"s_mov_b32 s26, {hx(EP_OFF)}")
setflag(8, "s26", "s49")
a("s_branch L_fin")
a.label("L_nt")
a.hist = []
a(f"v_mov_b32 v{t[4]}, {256*1024}")
poll("L_poll3", t[4], t[5], "s11", "s49")
a(f"buffer_load_dwordx4 {vr(SBt[4],4)}, v{vN}, s[16:19], s10 offen sc1")
a("s_waitcnt vmcnt(0)")
a(f"{M16} {vr(DDt[4],4)}, {vr(MA,4)}, {vr(SBt[4],4)}, 0")
d = DDt[4]
avg(d)
a(f"v_cvt_pk_bf16_f32 v{d}, v{d}, v{d+1}")
a("s_mov_b32 exec_lo, 0x00010001"); a("s_mov_b32 exec_hi, 0x00010001")
a(f"ds_write_b32 v{AP8}, v{d}")
a("s_mov_b64 exec, -1")
a("s_branch L_ntb")
a.label("L_npass")
a.hist = []
t = [SC + k for k in range(6)]
a("s_mov_b32 s50, s9")
a("s_mov_b32 s59, 1")
a("s_mov_b32 s53, 256")
p2_item()
a(f"v_lshrrev_b32 v{t[0]}, 3, v0"); a(f"v_mul_u32_u24 v{t[2]}, {16*TSB}, v{t[0]}")
a(f"v_and_b32 v{t[0]}, 7, v0"); a(f"v_lshl_add_u32 v{t[2]}, v{t[0]}, 4, v{t[2]}")
a("s_barrier")
for bb in range(2):
    for q in range(2):
        a(f"s_add_u32 m0, s23, {bb*2048 + q*1024}")
        a(f"s_add_u32 s29, s24, {bb*TSB + q*128*TSB}")
        a(f"buffer_load_dwordx4 v{t[2]}, s[16:19], s29 offen sc1 lds")
a(f"v_lshlrev_b32 v{t[0]}, 2, v{vc}"); a(f"v_lshl_or_b32 v{vTr}, v{vg}, 9, v{t[0]}"); a(f"v_add_u32 v{vTr}, s23, v{vTr}")
a(f"v_and_b32 v{t[0]}, 7, v0"); a(f"v_lshlrev_b32 v{t[0]}, 1, v{t[0]}"); a(f"v_lshl_or_b32 v{vWr}, v{vg}, 9, v{t[0]}"); a(f"v_add_u32 v{vWr}, s23, v{vWr}")
p2_const(False)
a(f"v_mov_b32 v{t[0]}, s49"); a(f"v_mov_b32 v{t[1]}, 0")
a("s_waitcnt vmcnt(4)")
a("s_mov_b64 exec, 1")
a(f"buffer_store_dword v{t[0]}, v{t[1]}, s[16:19], s50 offen sc1")
a("s_mov_b64 exec, -1")
for k in range(32): a(f"v_mov_b32 v{WW+k}, 0")
a("s_waitcnt vmcnt(1)")
ts(9)
for cc in range(2):
    for arr in range(4):
        for i in range(4):
            a(f"ds_read_u16_d16_hi v{WW+8*arr+4*cc+i}, v{vWr} offset:{2048*cc+128*i+64+16*arr}")
for bb in range(2):
    for j in range(4):
        a(f"ds_read_b32 v{TB+4*bb+j}, v{vTr} offset:{2048*bb+128*j}")
a("s_waitcnt lgkmcnt(0)")
a("s_branch L_p2e")

nv = (a.maxv + 1 + 7) // 8 * 8
out = "; gated_mix spectral gfnet: persistent MFMA FFT pipeline (generated by gen4.py)\n"
out += f"; @launch grid=(256,1,1) block=(512,1,1) lds={LDS_BYTES}\n"
out += '.amdgcn_target "amdgcn-amd-amdhsa--gfx950"\n.text\n'
out += f".globl {NAME}\n.p2align 8\n.type {NAME},@function\n" + a.text() + "L_code_end:\n"
out += f""".section .rodata,"a"
.p2align 6
.amdhsa_kernel {NAME}
  .amdhsa_next_free_vgpr {nv}
  .amdhsa_next_free_sgpr {min(102, a.maxs + 1)}
  .amdhsa_accum_offset {nv}
  .amdhsa_group_segment_fixed_size 0
  .amdhsa_kernarg_size 80
  .amdhsa_user_sgpr_count 2
  .amdhsa_user_sgpr_kernarg_segment_ptr 1
  .amdhsa_system_sgpr_workgroup_id_x 1
  .amdhsa_float_denorm_mode_32 3
.end_amdhsa_kernel
"""
sys.stderr.write(f"vgpr {a.maxv+1} sgpr {a.maxs+1} lines {len(a.lines)} nops {a.nops}\n")
print(out)
```

```python
import sys
from asmlib import *
NAME = "gated_mix__spectral_gfnet__spectral_gfnet__prompt_kernel"
TSB = 16512
S_OFF = 0x500000
F1_OFF = 0xE20000
F2_OFF = 0xE80000
EP_OFF = 0xEF0000
WS_SIZE = 0xF00000
WBYTES = 2048 * 1026
M32 = "v_mfma_f32_32x32x16_bf16"
M16 = "v_mfma_f32_16x16x32_bf16"
OPT = set(sys.argv[1:])
ST = "stamps" in OPT
WSZ = 0x10000000 if ST else WS_SIZE
L_A = 0; L_W = 16384; L_P = L_W; WR = 6144; L_G = 65536; L_N = 65664; L_C = 65792; LDS_BYTES = 65808
def optint(pfx, d):
    for o in OPT:
        if o.startswith(pfx) and o[len(pfx):].isdigit(): return int(o[len(pfx):])
    return d
SLEEP = optint("sl", 1); PFAT = optint("pf", 8); NWG = optint("nwg", 0)
SPIN_MAX = 400000
NTX = "" if "nontx" in OPT else " nt"
NTW = "" if "nontw" in OPT else " nt"
a = Asm()
def srd(d, base, size):
    a(f"s_mov_b32 s{d}, s{base}"); a(f"s_mov_b32 s{d+1}, s{base+1}")
    a(f"s_mov_b32 s{d+2}, {hx(size)}"); a(f"s_mov_b32 s{d+3}, 0x00020000")
NST = 14
def ts(k):
    if ST:
        a(f"s_memrealtime s[{60+2*k}:{61+2*k}]")
        a("s_waitcnt lgkmcnt(0)")
def stamp_end(vt):
    if not ST: return
    a("s_waitcnt vmcnt(0)")
    ts(NST - 1)
    for k in range(16): a(f"v_mov_b32 v{vt+k}, {'s%d' % (60+2*k) if k < NST else '0'}")
    a("s_lshl_b32 s96, s3, 6"); a("s_lshl_b32 s97, s2, 9"); a("s_add_u32 s96, s96, s97")
    a(f"s_add_u32 s96, s96, 0x3000000")
    a(f"v_mov_b32 v{vt+16}, 0")
    a("s_mov_b64 exec, 1")
    amp = optint("amp", -1)
    if amp >= 0:
        a("s_lshl_b32 s4, s2, 3"); a("s_add_u32 s4, s4, s3"); a("s_cmp_lg_u32 s4, 72"); a("s_cbranch_scc1 L_end")
        a(f"s_sub_u32 s4, s{60+2*amp}, s60"); a("s_mul_i32 s4, s4, 10"); a(f"s_add_u32 s4, s4, s{60+2*(NST-1)}")
        a.label("L_amp")
        a("s_memrealtime s[6:7]"); a("s_waitcnt lgkmcnt(0)")
        a("s_sub_u32 s5, s6, s4"); a("s_cmp_lt_i32 s5, 0"); a("s_cbranch_scc1 L_amp")
        return
    if "dbg" in OPT:
        a("s_load_dwordx2 s[4:5], s[0:1], 64")
        a("s_waitcnt lgkmcnt(0)")
        a("s_mov_b32 s6, 256"); a("s_mov_b32 s7, 0x00020000")
        a(f"v_not_b32 v{vt+14}, v{vt}")
        for k in range(15):
            a(f"buffer_atomic_umax v{vt+k}, v{vt+16}, s[4:7], 0 offen offset:{4*k}")
        return
    for q in range(4): a(f"buffer_store_dwordx4 {vr(vt+4*q,4)}, v{vt+16}, s[16:19], s96 offen offset:{16*q}")
def poll(lbl, vaddr, vtmp, soff, tag):
    a("s_mov_b32 s58, 0")
    a.label(lbl)
    a(f"buffer_load_dword v{vtmp}, v{vaddr}, s[16:19], {soff} offen sc1")
    a("s_add_u32 s58, s58, 1")
    a("s_waitcnt vmcnt(0)")
    a(f"v_cmp_ne_u32 vcc, {tag}, v{vtmp}")
    a(f"s_cmp_gt_u32 s58, {SPIN_MAX}")
    a(f"s_cbranch_scc1 {lbl}_d")
    a(f"s_cbranch_vccz {lbl}_d")
    if SLEEP: a(f"s_sleep {SLEEP}")
    a(f"s_branch {lbl}")
    a.label(lbl + "_d")
def setflag(vtmp, soff, tag):
    a(f"v_mov_b32 v{vtmp}, {tag}"); a(f"v_mov_b32 v{vtmp+1}, 0")
    a("s_waitcnt vmcnt(0)")
    a("s_mov_b64 exec, 1")
    a(f"buffer_store_dword v{vtmp}, v{vtmp+1}, s[16:19], {soff} offen sc1")
    a("s_mov_b64 exec, -1")

a.label(NAME)
a.label("L_code_start")
a("s_cmp_ge_u32 s2, 256")
a("s_cbranch_scc1 L_end")
if ST:
    a("s_memrealtime s[60:61]")
    for k in range(1, NST): a(f"s_mov_b32 s{60+2*k}, 0")
a("s_load_dwordx4 s[4:7], s[0:1], 0")
a("s_load_dwordx2 s[20:21], s[0:1], 72")
a("s_load_dwordx2 s[28:29], s[0:1], 16")
a("s_load_dwordx8 s[88:95], s[0:1], 32")
a("s_getpc_b64 s[12:13]")
a("s_and_b32 s12, s12, 0xffffff00")
a("s_mov_b32 s14, L_code_end-L_code_start")
a("s_mov_b32 s15, 0x00020000")
a("v_lshlrev_b32 v6, 6, v0")
a("s_bfe_u32 s8, s2, 0x20003")
a("v_lshrrev_b32 v1, 6, v0")
a("v_cmp_eq_u32 vcc, s8, v1")
a("s_and_saveexec_b64 s[10:11], vcc")
a("s_cbranch_execz L_cp")
if "nocp" not in OPT: a("buffer_load_ubyte v5, v6, s[12:15], 0 offen")
a.label("L_cp")
a("s_mov_b64 exec, -1")
a("v_and_b32 v0, 63, v0")
a("v_readfirstlane_b32 s3, v1")
vl16 = 2; vn = 3; vL5 = 4; vE = 5
a(f"v_lshlrev_b32 v{vl16}, 4, v0")
a(f"v_and_b32 v{vn}, 31, v0")
a(f"v_lshrrev_b32 v{vL5}, 5, v0")
a("s_and_b32 s51, s3, 3")
a("s_lshl_b32 s22, s51, 9"); a("s_add_u32 s22, s22, s2"); a("s_lshl_b32 s22, s22, 11")
a("s_and_b32 s53, s2, 7"); a("s_lshl_b32 s53, s53, 5"); a("s_lshr_b32 s54, s2, 3"); a("s_add_u32 s53, s53, s54")
a("s_and_b32 s55, s2, 7"); a("s_mul_i32 s55, s55, 1026"); a("s_lshl_b32 s56, s54, 5"); a("s_add_u32 s55, s55, s56")
a("s_lshl_b32 s24, s51, 12")
a("s_lshl_b32 s57, s2, 7"); a(f"s_add_u32 s57, s57, {hx(F1_OFF)}")
a(f"s_mov_b32 s26, {hx(EP_OFF)}")
a("v_mov_b32 v7, 0")
a("s_mov_b32 s59, 0")
a("s_waitcnt lgkmcnt(0)")
srd(16, 20, WSZ)
a(f"buffer_load_dword v{vE}, v7, s[16:19], s26 offen sc1")
for arr, p_ in enumerate((6, 28, 88, 90)): srd(32 + 4 * arr, p_, WBYTES)
def tags():
    a(f"v_readfirstlane_b32 s48, v{vE}")
    a("s_mul_i32 s48, s48, 0x9E3779B1"); a("s_add_u32 s48, s48, 0x7F4A7C15")
    a("s_xor_b32 s49, s48, 0x5bd1e995")
def arr_srd():
    a("s_cmp_eq_u32 s51, 0"); a("s_cselect_b32 s12, s32, s36"); a("s_cselect_b32 s13, s33, s37")
    a("s_cmp_eq_u32 s51, 2"); a("s_cselect_b32 s12, s40, s12"); a("s_cselect_b32 s13, s41, s13")
    a("s_cmp_eq_u32 s51, 3"); a("s_cselect_b32 s12, s44, s12"); a("s_cselect_b32 s13, s45, s13")
    a(f"s_mov_b32 s14, {hx(WBYTES)}"); a("s_mov_b32 s15, 0x00020000")
V2 = VAlloc(5)
vg = V2(); vc = V2(); vF = V2()
SC = V2(16, 4)
vS = V2(); vw1 = V2(); vr1 = V2(); vT = V2(); vTr = V2(); vWr = V2(); vw2 = V2(); vr2 = V2()
WW = V2(32, 4); TB = V2(8, 4)
Fr = V2(4, 4); Fm = V2(4, 4); M2 = V2(16, 4); MT = V2(16, 4); D = V2(16, 4)
assert V2.n <= 128, V2.n
vW = D
L_GW = L_W + 16384
def p2_addr():
    t = [SC + k for k in range(6)]
    a(f"v_lshrrev_b32 v{vg}, 4, v0"); a(f"v_and_b32 v{vc}, 15, v0")
    a(f"v_lshrrev_b32 v{t[0]}, 2, v0"); a(f"v_mul_u32_u24 v{vT}, {16*TSB}, v{t[0]}")
    a(f"v_and_b32 v{t[0]}, 3, v0"); a(f"v_lshl_add_u32 v{vT}, v{t[0]}, 4, v{vT}")
    a("s_lshl_b32 s27, s3, 11")
    a(f"s_mul_i32 s23, s3, {WR}"); a(f"s_add_u32 s23, s23, {L_W}")
    a(f"v_bfe_u32 v{t[0]}, v0, 1, 4"); a(f"v_and_b32 v{t[1]}, 1, v0"); a(f"v_lshl_add_u32 v{t[0]}, v{t[0]}, 4, v{t[1]}")
    a(f"v_lshlrev_b32 v{vF}, 7, v{t[0]}")
    a("s_lshl_b32 s28, s3, 8")
    a(f"s_add_u32 s8, s28, {hx(F1_OFF)}")
    a(f"v_lshlrev_b32 v{t[0]}, 4, v{vc}")
    a(f"v_lshl_or_b32 v{t[1]}, v{vg}, 9, v{t[0]}")
    a(f"v_add_u32 v{vw1}, s27, v{t[1]}"); a(f"v_add_u32 v{vw2}, s23, v{t[1]}")
    a(f"v_lshl_or_b32 v{vr1}, v{vg}, 12, v{t[0]}"); a(f"v_add_u32 v{vr1}, s28, v{vr1}")
    a(f"v_mul_u32_u24 v{vr2}, {2*WR}, v{vg}"); a(f"s_add_u32 s29, s28, {L_W}"); a(f"v_add3_u32 v{vr2}, v{vr2}, v{t[0]}, s29")
    a(f"v_lshlrev_b32 v{t[0]}, 3, v{vc}"); a(f"v_lshl_or_b32 v{vS}, v{vg}, 13, v{t[0]}")
def p2_item():
    t = [SC + k for k in range(6)]
    a(f"s_mul_i32 s24, s3, {2*TSB}"); a("s_lshl_b32 s26, s53, 6"); a("s_add_u32 s24, s24, s26")
    a(f"s_add_u32 s26, s24, {TSB}")
    a(f"v_lshlrev_b32 v{t[0]}, 2, v{vc}"); a(f"v_lshl_or_b32 v{vTr}, v{vg}, 8, v{t[0]}"); a(f"v_add_u32 v{vTr}, s27, v{vTr}")
    a("s_and_b32 s29, s55, 15"); a("s_add_u32 s29, s29, s23")
    a(f"v_mul_u32_u24 v{vWr}, 192, v{vg}"); a(f"v_lshl_add_u32 v{vWr}, v{vc}, 1, v{vWr}"); a(f"v_add_u32 v{vWr}, s29, v{vWr}")
    a("s_lshl_b32 s30, s53, 15"); a("s_add_u32 s30, s30, s28"); a(f"s_add_u32 s30, s30, {hx(S_OFF)}"); a("s_add_u32 s31, s30, 4096")
    a("s_lshl_b32 s9, s53, 10"); a("s_lshl_b32 s10, s3, 7"); a("s_add_u32 s9, s9, s10"); a(f"s_add_u32 s9, s9, {hx(F2_OFF)}")
    a(f"v_mul_u32_u24 v{t[0]}, 43, v0"); a(f"v_lshrrev_b32 v{t[0]}, 7, v{t[0]}")
    a(f"v_mul_u32_u24 v{t[1]}, 3, v{t[0]}"); a(f"v_sub_u32 v{t[1]}, v0, v{t[1]}")
    a("s_lshl_b32 s29, s56, 4")
    a(f"v_mul_u32_u24 v{vW}, s29, v{t[0]}"); a(f"v_lshl_add_u32 v{vW}, v{t[1]}, 4, v{vW}")
def p2_const(dozero=True):
    t = [SC + k for k in range(6)]
    vlf = SC + 6; vkf = SC + 7; vc0 = SC + 8; vlc = SC + 10; FA = SC + 12
    a(f"v_cvt_f32_u32 v{vlf}, v{vc}")
    a(f"v_cvt_f32_u32 v{vkf}, v{vg}"); a(f"v_mul_f32 v{vkf}, 4.0, v{vkf}")
    a(f"v_cvt_f32_u32 v{vc0}, s3"); a(f"v_mul_f32 v{vc0}, {fl(1/128)}, v{vc0}")
    a(f"v_mul_f32 v{vlc}, v{vlf}, v{vc0}")
    a(f"v_fmamk_f32 v{vlc+1}, v{vlf}, {hx(f2u(1/256))}, v{vlc}")
    a(f"v_mul_f32 v{vlf}, {fl(1/16)}, v{vlf}")
    z = iter(range(32))
    def zero(n):
        if not dozero:
            if n == 1: a("s_nop 0")
            return
        for _ in range(n):
            k = next(z, None)
            if k is not None: a(f"v_mov_b32 v{WW+k}, 0")
    def mat(ang):
        a(f"v_cos_f32 v{t[3]}, v{ang}"); a(f"v_sin_f32 v{t[4]}, v{ang}")
    def matfin(Mr, Mm):
        a(f"v_cvt_pk_bf16_f32 v{Mr}, v{t[3]}, v{t[4]}")
        a(f"v_cvt_pk_bf16_f32 v{Mm}, -v{t[4]}, v{t[3]}")
    for i in range(4):
        if i: a(f"v_add_f32 v{vkf}, 1.0, v{vkf}")
        a(f"v_mul_f32 v{FA+i}, v{vkf}, v{vlf}")
        mat(FA + i); zero(1); matfin(Fr + i, Fm + i)
    for i in range(3, -1, -1):
        a(f"v_fma_f32 v{t[0]}, v{vkf}, v{vc0}, v{FA+i}")
        a(f"v_fmamk_f32 v{t[1]}, v{vkf}, {hx(f2u(1/256))}, v{t[0]}")
        mat(t[0]); a(f"v_add_f32 v{t[2]}, v{FA+i}, v{vlc}"); matfin(M2 + i, M2 + 4 + i)
        mat(t[1]); a(f"v_add_f32 v{t[5]}, v{FA+i}, v{vlc+1}"); matfin(M2 + 8 + i, M2 + 12 + i)
        mat(t[2]); a(f"v_subrev_f32 v{vkf}, 1.0, v{vkf}"); matfin(MT + i, MT + 4 + i)
        mat(t[5]); zero(1); matfin(MT + 8 + i, MT + 12 + i)
    zero(32)
def wdma(wave_sreg_expr_list, flag=""):
    a("s_mov_b32 exec_lo, -1"); a("s_mov_b32 exec_hi, 0xffff")
    for add in wave_sreg_expr_list:
        a(f"s_add_u32 s10, s3, {add}")
        a("s_lshl_b32 s25, s10, 1"); a("s_mul_i32 s25, s25, s56"); a("s_add_u32 s25, s25, s55"); a("s_and_b32 s25, s25, 0xfffffff0")
        a("s_add_u32 s11, s25, s56")
        a(f"s_mul_i32 s10, s10, {WR}")
        for arr in range(4):
            for cc in range(2):
                a(f"s_add_u32 m0, s10, {L_W + 1536*arr + 768*cc}")
                a(f"buffer_load_dwordx4 v{vW}, {sr(32+4*arr,4)}, {'s25' if cc == 0 else 's11'} offen{flag} lds")
    a("s_mov_b64 exec, -1")
a(f"s_mov_b32 s56, {8*1026}")
a("s_cmp_ge_u32 s3, 4")
a("s_cbranch_scc1 L_h")
a("s_setprio 2")
srd(8, 4, 2048 * 2048)
a("s_add_u32 s30, s22, 0x80000")
a("s_mov_b32 m0, s24")
a(f"buffer_load_dwordx4 v{vl16}, s[8:11], s22 offen{NTX} lds")
a(f"buffer_load_dwordx4 v{vl16}, s[8:11], s22 offen offset:1024{NTX} lds")
a("s_add_u32 m0, s24, 2048")
a(f"buffer_load_dwordx4 v{vl16}, s[8:11], s30 offen{NTX} lds")
a(f"buffer_load_dwordx4 v{vl16}, s[8:11], s30 offen offset:1024{NTX} lds")
V = VAlloc(6)
vb = V(); vo = V(); vkn = V(); vtr = V(); vpf = V(); vj = V(); vpw = V(4); t = [V() for _ in range(6)]
srd(8, 92, 2048)
a("s_lshl_b32 s30, s51, 9"); a(f"s_add_u32 m0, s30, {L_GW}")
a("s_mov_b32 exec_hi, 0")
a(f"buffer_load_dwordx4 v{vl16}, s[8:11], s30 offen lds")
a("s_mov_b32 exec_hi, -1")
arr_srd()
a(f"v_and_b32 v{t[0]}, 7, v0"); a(f"v_mul_u32_u24 v{t[2]}, 1026, v{t[0]}")
a(f"s_mul_i32 s30, s2, {8*1026}")
a(f"buffer_load_ushort v{vj}, v{t[2]}, s[12:15], s30 offen offset:1024")
a("s_and_b32 s30, s2, 7"); a("s_lshl_b32 s31, s54, 6"); a("s_add_u32 s30, s30, s31"); a("s_mul_i32 s30, s30, 1026")
a(f"v_lshrrev_b32 v{t[0]}, 3, v0"); a(f"v_mul_u32_u24 v{t[2]}, {8*1026}, v{t[0]}")
a(f"v_and_b32 v{t[1]}, 7, v0"); a(f"v_lshl_add_u32 v{vpf}, v{t[1]}, 7, v{t[2]}")
vjunk = 1
def prefetch():
    a(f"buffer_load_ubyte v{vjunk}, v{vpf}, s[12:15], s30 offen{NTW}")
    a(f"buffer_load_ubyte v{vjunk}, v{vpt}, s[12:15], s30 offen offset:1024{NTW}")
NPF = 2
vpt = V()
a(f"v_and_b32 v{t[1]}, 1, v0"); a(f"v_lshl_add_u32 v{vpt}, v{t[1]}, 4, v{t[2]}")
if PFAT == 0: prefetch()
CC = V(8, 4); SS = V(8, 4); SN = V(8, 4); XR = V(8, 4); XI = V(8, 4)
BA = V(24, 4); BB = V(24, 4); TCh = V(8); TSh = V(8)
D1r = BA + 8; D1i = BB + 8; D2r = BA; D2i = BB
TC = lambda k: BA + k if k < 8 else TCh + k - 8
TS_ = lambda k: BB + k if k < 8 else TSh + k - 8
assert V.n <= 128, V.n
a(f"v_and_b32 v{t[0]}, 7, v0"); a(f"v_bfe_u32 v{t[1]}, v0, 3, 2")
a(f"v_lshl_or_b32 v{vkn}, v{t[0]}, 2, v{t[1]}")
a(f"v_cvt_f32_u32 v{vb}, v{vkn}"); a(f"v_cvt_f32_u32 v{vo}, v{vL5}")
a(f"v_mul_f32 v{vb}, {fl(1/32)}, v{vb}"); a(f"v_mul_f32 v{vo}, 4.0, v{vo}"); a(f"v_mul_f32 v{vo}, v{vb}, v{vo}")
for i in range(0, 16, 2):
    for e in range(2):
        kc = 8 * ((i + e) // 4) + (i + e) % 4
        if kc == 0: a(f"v_mov_b32 v{t[e]}, v{vo}")
        else: a(f"v_fmamk_f32 v{t[e]}, v{vb}, {hx(f2u(float(kc)))}, v{vo}")
    a(f"v_cos_f32 v{t[2]}, v{t[0]}"); a(f"v_cos_f32 v{t[3]}, v{t[1]}")
    a(f"v_sin_f32 v{t[4]}, v{t[0]}"); a(f"v_sin_f32 v{t[5]}, v{t[1]}")
    a(f"v_mul_f32 v{t[0]}, {fl(1/32)}, v{t[0]}"); a(f"v_mul_f32 v{t[1]}, {fl(1/32)}, v{t[1]}")
    a(f"v_cvt_pk_bf16_f32 v{CC+i//2}, v{t[2]}, v{t[3]}")
    a(f"v_cvt_pk_bf16_f32 v{SS+i//2}, v{t[4]}, v{t[5]}")
    a(f"v_cvt_pk_bf16_f32 v{SN+i//2}, -v{t[4]}, -v{t[5]}")
    a(f"v_cos_f32 v{TC(i)}, v{t[0]}"); a(f"v_cos_f32 v{TC(i+1)}, v{t[1]}")
    a(f"v_sin_f32 v{TS_(i)}, v{t[0]}"); a(f"v_sin_f32 v{TS_(i+1)}, v{t[1]}")
    if PFAT == i // 2 + 1: prefetch()
a(f"v_lshlrev_b32 v{vtr}, 8, v{vL5}")
a(f"v_bfe_u32 v{t[0]}, v0, 2, 2"); a(f"v_lshl_or_b32 v{vtr}, v{t[0]}, 6, v{vtr}")
a(f"v_bfe_u32 v{t[0]}, v0, 4, 1"); a(f"v_lshl_or_b32 v{vtr}, v{t[0]}, 5, v{vtr}")
a(f"v_and_b32 v{t[0]}, 3, v0"); a(f"v_lshl_or_b32 v{vtr}, v{t[0]}, 3, v{vtr}")
a(f"v_add_u32 v{vtr}, s24, v{vtr}")
a(f"v_and_b32 v{t[0]}, 7, v0"); a(f"v_bfe_u32 v{t[1]}, v0, 3, 2"); a(f"v_lshlrev_b32 v{t[1]}, 1, v{t[1]}")
a(f"v_xor_b32 v{t[0]}, v{t[0]}, v{t[1]}"); a(f"v_xor_b32 v{t[0]}, v{t[0]}, v{vL5}")
a(f"v_lshlrev_b32 v{t[0]}, 4, v{t[0]}")
a(f"v_lshl_or_b32 v{vpw}, v{vkn}, 7, v{t[0]}")
a(f"s_add_u32 s26, s24, {L_P}")
a(f"v_add_u32 v{vpw}, s26, v{vpw}")
for c in range(1, 4): a(f"v_xor_b32 v{vpw+c}, {32*c}, v{vpw}")
ts(1)
a(f"s_waitcnt vmcnt({NPF if PFAT <= 8 else 0})")
ts(2)
tags()
a(f"v_and_b32 v{t[0]}, 7, v0"); a(f"v_lshlrev_b32 v{t[0]}, 1, v{t[0]}")
a("s_lshl_b32 s30, s51, 4"); a(f"s_add_u32 s30, s30, {L_N + 64}"); a(f"v_add_u32 v{t[0]}, s30, v{t[0]}")
a(f"ds_write_b16 v{t[0]}, v{vj}")
for h in range(2):
    for r, X in ((0, XR), (1, XI)):
        for tt in range(2):
            a(f"ds_read_b64_tr_b16 {vr(X+4*h+2*tt,2)}, v{vtr} offset:{r*2048+h*1024+tt*512}")
a("s_barrier")
def cpass(R, I, Dr, Di, h, first):
    c0 = "0" if first else vr(Dr, 16); c1 = "0" if first else vr(Di, 16)
    a(f"{M32} {vr(Dr,16)}, {vr(R+4*h,4)}, {vr(CC+4*h,4)}, {c0}")
    a(f"{M32} {vr(Di,16)}, {vr(I+4*h,4)}, {vr(CC+4*h,4)}, {c1}")
    a(f"{M32} {vr(Dr,16)}, {vr(I+4*h,4)}, {vr(SS+4*h,4)}, {vr(Dr,16)}")
    a(f"{M32} {vr(Di,16)}, {vr(R+4*h,4)}, {vr(SN+4*h,4)}, {vr(Di,16)}")
a("s_waitcnt lgkmcnt(4)")
cpass(XR, XI, D1r, D1i, 0, True)
a("s_waitcnt lgkmcnt(0)")
cpass(XR, XI, D1r, D1i, 1, False)
for h in range(2):
    for i in range(8 * h, 8 * h + 8, 2):
        for e in range(2):
            k = i + e
            a(f"v_mul_f32 v{t[e]}, v{D1r+k}, v{TC(k)}")
            a(f"v_mul_f32 v{t[2+e]}, v{D1i+k}, v{TC(k)}")
            a(f"v_fmac_f32 v{t[e]}, v{D1i+k}, v{TS_(k)}")
            a(f"v_fma_f32 v{t[2+e]}, -v{D1r+k}, v{TS_(k)}, v{t[2+e]}")
        a(f"v_cvt_pk_bf16_f32 v{XR+i//2}, v{t[0]}, v{t[1]}")
        a(f"v_cvt_pk_bf16_f32 v{XI+i//2}, v{t[2]}, v{t[3]}")
    cpass(XR, XI, D2r, D2i, h, h == 0)
PK = CC
for c in range(4):
    for e in range(4):
        a(f"v_cvt_pk_bf16_f32 v{PK+4*c+e}, v{D2r+4*c+e}, v{D2i+4*c+e}")
    a(f"ds_write_b128 v{vpw+c}, {vr(PK+4*c,4)}")
a("s_waitcnt lgkmcnt(0)")
ts(3)
a("s_barrier")
a("s_setprio 0")
p2_addr()
p2_item()
ts(4)
a("s_barrier")
ts(5)
wdma([0, 4])
ts(6)
p2_const()
a("s_branch L_p2")
a.label("L_h")
a.hist = []
V = VAlloc(6)
t = [V() for _ in range(8)]
XN = V(16, 4); GW = V(8, 4)
vnat = V(); a(f"v_add_u32 v{vnat}, s24, v{vl16}")
MA = V(4, 4)
DMB = V(48, 4)
vu = DMB; vA = DMB + 1; vB1 = DMB + 2; vB2 = DMB + 3; vsg = DMB + 4
a(f"v_mov_b32 v{t[3]}, {L_C}"); a(f"v_mov_b32 v{t[4]}, 0")
a(f"ds_write_b32 v{t[3]}, v{t[4]}")
a(f"v_bfe_u32 v{t[0]}, v0, 3, 1"); a(f"v_bfe_u32 v{t[1]}, v0, 1, 1")
a(f"v_lshl_or_b32 v{t[0]}, v{t[0]}, 1, v{t[1]}")
a(f"v_and_or_b32 v{vu}, v0, 4, v{t[0]}")
a(f"v_cvt_f32_u32 v{vu}, v{vu}")
a(f"v_cvt_f32_u32 v{vsg}, v{vL5}")
a(f"v_fma_f32 v{vsg}, v{vsg}, -2.0, 1.0")
a(f"v_mul_f32 v{vA}, v{vu}, v{vsg}")
a(f"v_mul_f32 v{vA}, {fl(0.125)}, v{vA}")
a(f"v_and_b32 v{t[0]}, 1, v0"); a(f"v_cvt_f32_u32 v{t[0]}, v{t[0]}")
a(f"v_mul_f32 v{vB1}, v{t[0]}, v{vsg}"); a(f"v_mul_f32 v{vB1}, {fl(0.25)}, v{vB1}")
a(f"v_cvt_f32_u32 v{t[1]}, s2"); a(f"v_mul_f32 v{t[1]}, {fl(1/256)}, v{t[1]}")
a(f"v_fmac_f32 v{vB1}, v{t[1]}, v{vA}")
a(f"v_add_f32 v{vB2}, {fl(0.25)}, v{vB1}")
for pp in range(4):
    if pp == 0: a(f"v_mov_b32 v{t[0]}, v{vB1}")
    else: a(f"v_fmamk_f32 v{t[0]}, v{vA}, {hx(f2u(2.0*pp))}, v{vB1}")
    a(f"v_fmamk_f32 v{t[1]}, v{vA}, {hx(f2u(2.0*pp+1))}, v{vB2}")
    a(f"v_cos_f32 v{t[2]}, v{t[0]}"); a(f"v_cos_f32 v{t[3]}, v{t[1]}")
    a(f"v_sin_f32 v{t[4]}, v{t[0]}"); a(f"v_sin_f32 v{t[5]}, v{t[1]}")
    a(f"v_add_f32 v{t[2]}, v{t[2]}, v{t[3]}")
    a(f"v_add_f32 v{t[4]}, v{t[4]}, v{t[5]}")
    a(f"v_cvt_pk_bf16_f32 v{MA+pp}, v{t[2]}, v{t[4]}")
vmr = V(5); vk = DMB + 5; vneg = DMB + 6
a("s_lshl_b32 s30, s51, 7")
a(f"v_lshlrev_b32 v{t[0]}, 2, v{vn}")
a(f"v_sub_u32 v{vneg}, 0, v{vL5}")
for q in range(5):
    if q < 4: a(f"v_add3_u32 v{vk}, v{t[0]}, s30, {q}")
    else: a(f"v_add_u32 v{vk}, 512, v{t[0]}")
    a(f"v_xor_b32 v{vk}, v{vk}, v{vneg}"); a(f"v_add_u32 v{vk}, v{vk}, v{vL5}")
    a(f"v_bfe_u32 v{t[1]}, v{vk}, 5, 5")
    a(f"v_bfe_u32 v{t[2]}, v{vk}, 7, 3")
    a(f"v_xor_b32 v{t[3]}, v{vk}, v{t[1]}")
    a(f"v_and_b32 v{t[3]}, 3, v{t[3]}")
    a(f"v_bfe_u32 v{t[4]}, v{vk}, 4, 1")
    a(f"v_lshl_or_b32 v{t[3]}, v{t[3]}, 1, v{t[4]}")
    a(f"v_xor_b32 v{t[3]}, v{t[3]}, v{t[2]}")
    a(f"v_and_b32 v{t[4]}, 12, v{vk}")
    a(f"v_lshl_or_b32 v{t[4]}, v{t[3]}, 4, v{t[4]}")
    a(f"v_lshl_or_b32 v{vmr+q}, v{t[1]}, 7, v{t[4]}")
vts = V(); vtn = V(); vnl = V()
a(f"v_lshlrev_b32 v{t[0]}, 13, v{vL5}"); a(f"v_lshl_or_b32 v{vts}, v{vn}, 4, v{t[0]}")
a(f"v_lshlrev_b32 v{vtn}, 4, v{vL5}"); a(f"v_add_u32 v{vtn}, {L_N}, v{vtn}")
a(f"v_add_u32 v{vnl}, {L_N}, v{vl16}")
a(f"s_mul_i32 s8, s2, {TSB}")
a("s_lshl_b32 s9, s51, 9"); a("s_add_u32 s9, s9, s8"); a("s_add_u32 s10, s9, 4096")
a("s_add_u32 s8, s8, 16384")
a("s_mov_b32 s11, 0xffff0000")
acc = V(4, 4); ones = V(); MB = XN; MB4 = GW
a(f"v_mov_b32 v{ones}, 0x3f803f80")
a(f"v_mov_b32 v{acc}, 0"); a(f"v_mov_b32 v{acc+2}, 0")
assert V.n <= 128, V.n
a("s_waitcnt lgkmcnt(0)")
ts(1)
a("s_barrier")
for r in range(2):
    for q in range(2):
        a(f"ds_read_b128 {vr(XN+8*r+4*q,4)}, v{vnat} offset:{r*2048+q*1024}")
a(f"ds_read_b128 {vr(GW,4)}, v{vl16} offset:{L_GW}")
a(f"ds_read_b128 {vr(GW+4,4)}, v{vl16} offset:{L_GW+1024}")
a("s_waitcnt lgkmcnt(0)")
ts(2)
for j in range(8):
    a(f"v_lshlrev_b32 v{t[6]}, 16, v{GW+j}")
    a(f"v_and_b32 v{t[7]}, s11, v{GW+j}")
    for r in range(2):
        a(f"v_lshlrev_b32 v{t[2*r]}, 16, v{XN+8*r+j}")
        a(f"v_and_b32 v{t[2*r+1]}, s11, v{XN+8*r+j}")
    for r in range(2):
        a(f"v_mul_f32 v{t[2*r]}, v{t[2*r]}, v{t[6]}")
        a(f"v_mul_f32 v{t[2*r+1]}, v{t[2*r+1]}, v{t[7]}")
    for r in range(2): a(f"v_cvt_pk_bf16_f32 v{t[4+r]}, v{t[2*r]}, v{t[2*r+1]}")
    for r in range(2): a(f"v_dot2_f32_bf16 v{acc+2*r}, v{t[4+r]}, v{ones}, v{acc+2*r}")
a("s_waitcnt vmcnt(0)")
tags()
ts(3)
a("s_setprio 2")
a("s_barrier")
ts(4)
o = L_P // 256
a(f"ds_read2st64_b32 {vr(MB4,2)}, v{vmr+4} offset0:{o} offset1:{o+16}")
a(f"ds_read2st64_b32 {vr(MB4+2,2)}, v{vmr+4} offset0:{o+32} offset1:{o+48}")
for q in range(4):
    a(f"ds_read2st64_b32 {vr(MB+4*q,2)}, v{vmr+q} offset0:{o} offset1:{o+16}")
    a(f"ds_read2st64_b32 {vr(MB+4*q+2,2)}, v{vmr+q} offset0:{o+32} offset1:{o+48}")
DN = DMB; DM = [DMB + 8 + 8 * q for q in range(4)]
a("s_waitcnt lgkmcnt(8)")
a(f"{M32} {vr(DN,16)}, {vr(MA,4)}, {vr(MB4,4)}, 0")
for q in range(4):
    a(f"s_waitcnt lgkmcnt({6-2*q})")
    a(f"{M32} {vr(DM[q],16)}, {vr(MA,4)}, {vr(MB+4*q,4)}, 0")
for s_ in range(4):
    a(f"v_cvt_pk_bf16_f32 v{GW+4+s_}, v{DN+2*s_}, v{DN+2*s_+1}")
a("s_cmp_eq_u32 s51, 0"); a("s_cselect_b32 exec_lo, 1, 0"); a("s_cselect_b32 exec_hi, 1, 0")
a(f"ds_write_b128 v{vtn}, {vr(GW+4,4)}")
a("s_cselect_b32 s30, 255, 0")
a("s_mov_b64 exec, -1")
OUT = MB
for s_ in range(4):
    for q in range(4):
        a(f"v_cvt_pk_bf16_f32 v{OUT+4*s_+q}, v{DM[q]+2*s_}, v{DM[q]+2*s_+1}")
    a(f"buffer_store_dwordx4 {vr(OUT+4*s_,4)}, v{vts}, s[16:19], {'s9' if s_ < 2 else 's10'} offen offset:{(s_&1)*2048} sc1")
    if s_ == 0:
        a("s_mov_b32 exec_lo, s30"); a("s_mov_b32 exec_hi, 0")
        a(f"ds_read_b128 {vr(GW,4)}, v{vnl}")
        a("s_mov_b64 exec, -1")
a("s_waitcnt lgkmcnt(0)")
a("s_mov_b32 exec_lo, s30"); a("s_mov_b32 exec_hi, 0")
a(f"buffer_store_dwordx4 {vr(GW,4)}, v{vl16}, s[16:19], s8 offen sc1")
a("s_mov_b64 exec, -1")
a("s_barrier")
ts(5)
for dpp in ("row_shr:1", "row_shr:2", "row_shr:4", "row_shr:8"):
    for r in range(2):
        a(f"v_add_f32_dpp v{acc+2*r}, v{acc+2*r}, v{acc+2*r} {dpp} row_mask:0xf bank_mask:0xf bound_ctrl:0")
for dpp, rm in (("row_bcast:15", "0xa"), ("row_bcast:31", "0xc")):
    for r in range(2):
        a(f"v_add_f32_dpp v{acc+2*r}, v{acc+2*r}, v{acc+2*r} {dpp} row_mask:{rm} bank_mask:0xf")
a(f"v_cvt_pk_bf16_f32 v{t[0]}, v{acc}, v{acc+2}")
a(f"v_lshlrev_b32 v{t[1]}, 16, v{t[0]}")
a(f"v_and_b32 v{t[2]}, s11, v{t[0]}")
for r in range(2): a(f"v_mul_f32 v{t[1+r]}, {hx(f2u(-1.4426950408889634))}, v{t[1+r]}")
for r in range(2): a(f"v_exp_f32 v{t[1+r]}, v{t[1+r]}")
for r in range(2): a(f"v_add_f32 v{t[1+r]}, 1.0, v{t[1+r]}")
for r in range(2): a(f"v_rcp_f32 v{t[1+r]}, v{t[1+r]}")
a(f"v_cvt_pk_bf16_f32 v{t[0]}, v{t[1]}, v{t[2]}")
a(f"v_lshlrev_b32 v{acc}, 16, v{t[0]}")
a(f"v_and_b32 v{acc+2}, s11, v{t[0]}")
a(f"v_sub_f32 v{t[1]}, 1.0, v{acc}")
a(f"v_sub_f32 v{t[2]}, 1.0, v{acc+2}")
a(f"v_cvt_pk_bf16_f32 v{t[0]}, v{t[1]}, v{t[2]}")
a(f"v_lshlrev_b32 v{acc+1}, 16, v{t[0]}")
a(f"v_and_b32 v{acc+3}, s11, v{t[0]}")
for r in range(4): a(f"v_mul_f32 v{acc+r}, {hx(f2u(2.0**-22))}, v{acc+r}")
a("s_lshl_b32 s30, s51, 4"); a(f"s_add_u32 s30, s30, {L_G}")
a(f"v_mov_b32 v{t[3]}, s30")
a("s_mov_b32 exec_lo, 0"); a("s_mov_b32 exec_hi, 0x80000000")
a(f"ds_write_b128 v{t[3]}, {vr(acc,4)}")
a("s_mov_b64 exec, 1")
a(f"v_mov_b32 v{t[3]}, {L_C}"); a(f"v_mov_b32 v{t[4]}, 1"); a(f"v_mov_b32 v{t[6]}, s48"); a(f"v_mov_b32 v{t[7]}, 0")
a("s_waitcnt vmcnt(0)")
a(f"ds_add_rtn_u32 v{t[5]}, v{t[3]}, v{t[4]}")
a("s_waitcnt lgkmcnt(0)")
a(f"v_cmp_eq_u32 vcc, 3, v{t[5]}")
a("s_and_b64 exec, exec, vcc")
a(f"buffer_store_dword v{t[6]}, v{t[7]}, s[16:19], s57 offen sc1")
a("s_mov_b64 exec, -1")
a("s_setprio 0")
ts(6)
p2_addr(); p2_item(); p2_const()
a.label("L_p2")
a.hist = []
t = [SC + k for k in range(6)]
ts(7)
poll("L_poll1", vF, t[0], "s8", "s48")
ts(8)
a.label("L_p2c")
a("s_setprio 1")
a("s_mov_b32 m0, s27")
a(f"buffer_load_dwordx4 v{vT}, s[16:19], s24 offen sc1 lds")
a("s_add_u32 m0, s27, 1024")
a(f"buffer_load_dwordx4 v{vT}, s[16:19], s26 offen sc1 lds")
a.label("L_p2d")
a("s_barrier")
for cc in range(2):
    for arr in range(4):
        for i in range(4):
            a(f"ds_read_u16_d16_hi v{WW+8*arr+4*cc+i}, v{vWr} offset:{1536*arr+768*cc+48*i}")
PKD = SC + 8
a("s_waitcnt vmcnt(0)")
if ST: a("s_waitcnt lgkmcnt(0)")
ts(9)
a(f"ds_read2_b32 {vr(TB,2)}, v{vTr} offset0:0 offset1:16")
a(f"ds_read2_b32 {vr(TB+2,2)}, v{vTr} offset0:32 offset1:48")
a(f"v_add_u32 v{vTr}, 1024, v{vTr}")
a(f"ds_read2_b32 {vr(TB+4,2)}, v{vTr} offset0:0 offset1:16")
a(f"ds_read2_b32 {vr(TB+6,2)}, v{vTr} offset0:32 offset1:48")
a.label("L_p2e")
for bb in range(2):
    a(f"s_waitcnt lgkmcnt({2-2*bb})")
    a(f"{M16} {vr(D+8*bb,4)}, {vr(Fr,4)}, {vr(TB+4*bb,4)}, 0")
    a(f"{M16} {vr(D+8*bb+4,4)}, {vr(Fm,4)}, {vr(TB+4*bb,4)}, 0")
for ip in range(2):
    for cc in range(2):
        for bb in range(2):
            i = 2 * ip + cc
            a(f"v_cvt_pk_bf16_f32 v{PKD+4*ip+2*cc+bb}, v{D+8*bb+i}, v{D+8*bb+4+i}")
    a(f"ds_write_b128 v{vw1}, {vr(PKD+4*ip,4)} offset:{ip*256}")
a("s_waitcnt lgkmcnt(0)")
a("s_barrier")
OB = TB
for cc in range(2):
    for h in range(2):
        a(f"ds_read_b64 {vr(OB+4*cc+2*h,2)}, v{vr1} offset:{h*2048+cc*8}")
X = D
for cc in range(2):
    a(f"s_waitcnt lgkmcnt({2-2*cc})")
    a(f"{M16} {vr(X+8*cc,4)}, {vr(M2+8*cc,4)}, {vr(OB+4*cc,4)}, 0")
    a(f"{M16} {vr(X+8*cc+4,4)}, {vr(M2+8*cc+4,4)}, {vr(OB+4*cc,4)}, 0")
YO = [PKD, PKD + 4, TB, TB + 4]
DP = M2; tp = SC
def dpt(cc, ab, ri): return DP + 8 * ab + 4 * ri if cc == 0 else WW + 8 * (2 * ab + ri)
for cc in range(2):
    for ab in range(2):
        n = 2 * cc + ab
        wr = WW + 8 * (2 * ab) + 4 * cc; wi = WW + 8 * (2 * ab + 1) + 4 * cc
        xr = X + 8 * cc; xi = X + 8 * cc + 4
        for i in range(4):
            a(f"v_mul_f32 v{tp+2*i}, v{xr+i}, v{wr+i}")
            a(f"v_mul_f32 v{tp+2*i+1}, v{xi+i}, v{wr+i}")
            a(f"v_fma_f32 v{tp+2*i}, -v{xi+i}, v{wi+i}, v{tp+2*i}")
            a(f"v_fmac_f32 v{tp+2*i+1}, v{xr+i}, v{wi+i}")
            a(f"v_cvt_pk_bf16_f32 v{YO[n]+i}, v{tp+2*i+1}, v{tp+2*i}")
        a(f"{M16} {vr(dpt(cc,ab,0),4)}, {vr(MT+8*cc,4)}, {vr(YO[n],4)}, 0")
        a(f"{M16} {vr(dpt(cc,ab,1),4)}, {vr(MT+8*cc+4,4)}, {vr(YO[n],4)}, 0")
P2 = D
for ab in range(2):
    for ip in range(2):
        for cc in range(2):
            for bb in range(2):
                i = 2 * ip + bb
                a(f"v_cvt_pk_bf16_f32 v{P2+8*ab+4*ip+2*bb+cc}, v{dpt(cc,ab,0)+i}, v{dpt(cc,ab,1)+i}")
        a(f"ds_write_b128 v{vw2}, {vr(P2+8*ab+4*ip,4)} offset:{2048*ab+ip*256}")
a("s_waitcnt lgkmcnt(0)")
a("s_barrier")
O2 = WW + 16
for bb in range(2):
    for ab in range(2):
        for h in range(2):
            a(f"ds_read_b64 {vr(O2+8*bb+4*ab+2*h,2)}, v{vr2} offset:{WR*h+2048*ab+bb*8}")
E = [M2, M2 + 8, MT, MT + 8]
for bb in range(2):
    for ab in range(2):
        n = 2 * bb + ab
        a(f"s_waitcnt lgkmcnt({6-2*n})")
        a(f"{M16} {vr(E[n],4)}, {vr(Fr,4)}, {vr(O2+4*n,4)}, 0")
        a(f"{M16} {vr(E[n]+4,4)}, {vr(Fm,4)}, {vr(O2+4*n,4)}, 0")
SO = WW
for bb in range(2):
    for i in range(4):
        for ab in range(2):
            n = 2 * bb + ab
            a(f"v_cvt_pk_bf16_f32 v{SO+8*bb+2*i+ab}, v{E[n]+4+i}, v{E[n]+i}")
        a(f"buffer_store_dwordx2 {vr(SO+8*bb+2*i,2)}, v{vS}, s[16:19], {'s30' if i < 2 else 's31'} offen offset:{(i&1)*2048+bb*128} sc1")
if ST:
    a("s_cmp_lg_u32 s59, 0"); a("s_cbranch_scc1 L_sk10")
    ts(10)
    a.label("L_sk10")
a(f"s_lshl_b32 s29, s59, 8"); a("s_add_u32 s29, s29, s2")
a(f"s_cmp_eq_u32 s29, {NWG}")
a("s_cbranch_scc1 L_npass")
setflag(t[0], "s9", "s49")
a("s_setprio 0")
V = VAlloc(8)
vg_ = vg; vc_ = vc
t = [V() for _ in range(6)]
vS3 = 1; vN = 2; vF3 = 7; AP8 = V(); AMx = V()
MR = V(16, 4); MI = V(16, 4); X = V(16, 4)
BA = V(24, 4); BB = V(24, 4); TCh = V(8); TSh = V(8)
assert V.n <= 128, V.n
D1r = BA + 8; D1i = BB + 8; D2r = BA; D2i = BB
SBt = [D1r, D1r + 4, D1r + 8, D1r + 12, X]
DDt = [D1i, D1i + 4, D1i + 8, D1i + 12, X + 4]
MA = X + 8; AP = X + 12; AM = [X + 13, X + 14, X + 15, AMx]
CS = D1r; GG = D1i
a(f"v_bfe_u32 v{t[0]}, v0, 2, 2"); a(f"v_lshlrev_b32 v{t[1]}, 4, v{t[0]}")
a(f"v_add_u32 v{t[1]}, {L_G}, v{t[1]}")
a(f"ds_read_b128 {vr(GG,4)}, v{t[1]}")
a(f"v_lshlrev_b32 v{t[1]}, 3, v{vc_}"); a(f"v_lshl_or_b32 v{vS3}, v{vg_}, 21, v{t[1]}")
a(f"v_lshlrev_b32 v{vN}, 4, v{vg_}")
a("s_lshl_b32 s8, s2, 7"); a(f"s_add_u32 s8, s8, {hx(S_OFF)}"); a(f"s_add_u32 s10, s8, {hx(256*32768)}")
a("s_lshl_b32 s11, s3, 15"); a("s_add_u32 s8, s8, s11")
a(f"v_bfe_u32 v{t[1]}, v0, 2, 3"); a(f"v_and_b32 v{t[2]}, 3, v0"); a(f"v_lshlrev_b32 v{t[2]}, 3, v{t[2]}")
a(f"v_lshl_add_u32 v{t[1]}, v{t[1]}, 5, v{t[2]}"); a(f"v_add_u32 v{t[1]}, s3, v{t[1]}")
a("s_cmp_eq_u32 s3, 0"); a("s_cselect_b32 s24, 0x00010001, 0")
a(f"v_lshlrev_b32 v{vF3}, 10, v{t[1]}")
a("s_bfe_u32 s11, s2, 0x30001"); a("s_lshl_b32 s11, s11, 7"); a(f"s_add_u32 s11, s11, {hx(F2_OFF)}")
vsg = X; ve = X + 1; vstep = X + 2; vpe = X + 3; vpo = X + 4; vk = X + 5; vpl = X + 6
a(f"v_bfe_u32 v{t[1]}, v0, 1, 1"); a(f"v_cvt_f32_u32 v{vsg}, v{t[1]}")
a(f"v_mul_f32 v{vsg}, -0.5, v{vsg}"); a(f"v_add_f32 v{vsg}, {fl(0.25)}, v{vsg}")
a(f"v_and_b32 v{t[1]}, 1, v0"); a(f"v_cvt_f32_u32 v{t[1]}, v{t[1]}")
a(f"v_mul_f32 v{ve}, v{t[1]}, v{vsg}")
a(f"v_lshlrev_b32 v{t[0]}, 9, v{t[0]}"); a(f"v_add_u32 v{t[0]}, s2, v{t[0]}")
a(f"v_cvt_f32_u32 v{vstep}, v{t[0]}"); a(f"v_mul_f32 v{vstep}, {hx(f2u(-1/2048))}, v{vstep}")
a(f"v_cvt_f32_u32 v{t[2]}, v{vg_}"); a(f"v_add_f32 v{t[2]}, v{t[2]}, v{t[2]}")
a(f"v_fma_f32 v{vpe}, v{t[2]}, v{vstep}, v{ve}")
a(f"v_sub_f32 v{vpo}, v{vpe}, v{vsg}")
a(f"v_fmamk_f32 v{vpo}, v{t[2]}, {hx(f2u(-0.125))}, v{vpo}")
for lo in range(2):
    if lo:
        a(f"v_add_f32 v{vpe}, v{vpe}, v{vstep}")
        a(f"v_add_f32 v{vpo}, v{vpo}, v{vstep}"); a(f"v_add_f32 v{vpo}, {hx(f2u(-0.125))}, v{vpo}")
    a(f"v_cos_f32 v{CS+4*lo}, v{vpe}"); a(f"v_sin_f32 v{CS+4*lo+1}, v{vpe}")
    a(f"v_cos_f32 v{CS+4*lo+2}, v{vpo}"); a(f"v_sin_f32 v{CS+4*lo+3}, v{vpo}")
a("s_lshl_b32 s25, s3, 4")
a(f"v_lshlrev_b32 v{vpl}, 12, v{vg_}")
a(f"v_add_u32 v{vk}, s25, v{vc_}")
a(f"v_and_b32 v{t[3]}, 14, v{vk}"); a(f"v_lshl_or_b32 v{t[3]}, v{t[3]}, 3, v{vpl}")
a(f"v_and_b32 v{t[4]}, 31, v{vk}"); a(f"v_lshl_or_b32 v{t[3]}, v{t[4]}, 7, v{t[3]}")
a(f"v_bfe_u32 v{t[4]}, v{vk}, 5, 2"); a(f"v_lshl_or_b32 v{AP}, v{t[4]}, 2, v{t[3]}")
a(f"v_or_b32 v{AP8}, 64, v{vpl}")
a(f"v_sub_u32 v{t[5]}, 0, v{vk}")
a(f"v_and_b32 v{t[4]}, 31, v{t[5]}"); a(f"v_lshl_or_b32 v{t[3]}, v{t[4]}, 7, v{vpl}")
a(f"v_and_b32 v{t[4]}, 14, v{t[5]}"); a(f"v_lshl_or_b32 v{t[3]}, v{t[4]}, 3, v{t[3]}")
a(f"v_lshrrev_b32 v{t[5]}, 3, v{t[5]}")
for tt in range(4):
    if tt: a(f"v_subrev_u32 v{t[5]}, 16, v{t[5]}")
    a(f"v_and_b32 v{t[4]}, 0x7c, v{t[5]}")
    a(f"v_xor_b32 v{AM[tt]}, v{t[4]}, v{t[3]}")
a("s_waitcnt lgkmcnt(0)")
for lo in range(2):
    for ab in range(2):
        a(f"v_mul_f32 v{t[0]}, v{GG+ab}, v{CS+4*lo}"); a(f"v_mul_f32 v{t[1]}, v{GG+ab}, v{CS+4*lo+1}")
        a(f"v_fmac_f32 v{t[0]}, v{GG+2+ab}, v{CS+4*lo+2}"); a(f"v_fmac_f32 v{t[1]}, v{GG+2+ab}, v{CS+4*lo+3}")
        a(f"v_cvt_pk_bf16_f32 v{MA+2*lo+ab}, v{t[0]}, v{t[1]}")
a("s_cmp_ge_u32 s3, 4")
a("s_cbranch_scc1 L_p3b")
TC = lambda k: BA + k if k < 8 else TCh + k - 8
TS_ = lambda k: BB + k if k < 8 else TSh + k - 8
vb = X; vo = X + 1
a(f"v_cvt_f32_u32 v{vb}, v{vn}"); a(f"v_cvt_f32_u32 v{vo}, v{vL5}")
a(f"v_mul_f32 v{vb}, {fl(1/32)}, v{vb}"); a(f"v_mul_f32 v{vo}, 4.0, v{vo}"); a(f"v_mul_f32 v{vo}, v{vb}, v{vo}")
for i in range(16):
    kc = 8 * (i // 4) + i % 4
    if kc == 0: a(f"v_mov_b32 v{t[0]}, v{vo}")
    else: a(f"v_fmamk_f32 v{t[0]}, v{vb}, {hx(f2u(float(kc)))}, v{vo}")
    a(f"v_cos_f32 v{t[1]}, v{t[0]}"); a(f"v_sin_f32 v{t[2]}, v{t[0]}")
    a(f"v_mul_f32 v{t[0]}, {fl(1/32)}, v{t[0]}")
    a(f"v_cvt_pk_bf16_f32 v{MR+i}, v{t[1]}, -v{t[2]}")
    a(f"v_cvt_pk_bf16_f32 v{MI+i}, v{t[2]}, v{t[1]}")
    a(f"v_cos_f32 v{TC(i)}, v{t[0]}"); a(f"v_sin_f32 v{TS_(i)}, v{t[0]}")
a.label("L_p3b")
ts(11)
poll("L_poll2", vF3, t[0], "s11", "s49")
ts(12)
for tt in range(4):
    for lo in range(2):
        a(f"s_add_u32 s26, s8, {hx(tt*8*32768 + lo*(1<<20))}")
        a(f"buffer_load_dwordx2 {vr(SBt[tt]+2*lo,2)}, v{vS3}, s[16:19], s26 offen sc1")
def avg(d):
    a(f"v_add_f32 v{d}, v{d}, v{d+2}"); a(f"v_add_f32 v{d+1}, v{d+1}, v{d+3}")
    a(f"v_mul_f32 v{d}, 0.5, v{d}"); a(f"v_mul_f32 v{d+1}, 0.5, v{d+1}")
def fin(tt):
    d = DDt[tt]
    if tt == 0:
        a("s_mov_b32 exec_lo, s24"); a("s_mov_b32 exec_hi, s24")
        avg(d); a(f"v_mov_b32 v{d+2}, v{d}"); a(f"v_mov_b32 v{d+3}, v{d+1}")
        a("s_mov_b64 exec, -1")
    a(f"v_cvt_pk_bf16_f32 v{d}, v{d}, v{d+1}")
    a(f"v_cvt_pk_bf16_f32 v{d+1}, v{d+2}, v{d+3}")
    if tt: a(f"v_xor_b32 v{t[tt]}, {tt<<4}, v{AP}")
    a(f"ds_write_b32 v{t[tt] if tt else AP}, v{d}")
    a(f"ds_write_b32 v{AM[tt]}, v{d+1}")
for tt in range(4):
    a(f"s_waitcnt vmcnt({max(0, 6-2*tt)})")
    a(f"{M16} {vr(DDt[tt],4)}, {vr(MA,4)}, {vr(SBt[tt],4)}, 0")
    if tt >= 1: fin(tt - 1)
fin(3)
a("s_cmp_eq_u32 s3, 7")
a("s_cbranch_scc1 L_nt")
a.label("L_ntb")
vst = vS3
a(f"v_bfe_u32 v{t[4]}, v{vn}, 1, 3"); a(f"v_xor_b32 v{t[4]}, v{t[4]}, v{vL5}"); a(f"v_lshlrev_b32 v{t[4]}, 4, v{t[4]}")
a(f"v_lshl_or_b32 v{t[4]}, v{vn}, 7, v{t[4]}"); a("s_lshl_b32 s26, s51, 12")
a("s_waitcnt lgkmcnt(0)")
a(f"v_add_u32 v{t[0]}, s26, v{t[4]}")
for q in range(1, 4): a(f"v_xor_b32 v{t[q]}, {32*q}, v{t[0]}")
a(f"v_lshlrev_b32 v{t[4]}, 4, v{vL5}"); a(f"v_lshl_or_b32 v{vst}, v{vn}, 6, v{t[4]}")
srd(12, 94, 2048 * 2048)
a("s_add_u32 s30, s22, 0x80000")
a("s_barrier")
a("s_cmp_ge_u32 s3, 4")
a("s_cbranch_scc1 L_hx")
for q in range(4): a(f"ds_read_b128 {vr(X+4*q,4)}, v{t[q]}")
for q in range(4):
    a(f"s_waitcnt lgkmcnt({3-q})")
    a(f"{M32} {vr(D1r,16)}, {vr(X+4*q,4)}, {vr(MR+4*q,4)}, {'0' if q == 0 else vr(D1r,16)}")
    a(f"{M32} {vr(D1i,16)}, {vr(X+4*q,4)}, {vr(MI+4*q,4)}, {'0' if q == 0 else vr(D1i,16)}")
def p2m(q):
    a(f"{M32} {vr(D2r,16)}, {vr(X+4*q,4)}, {vr(MR+4*q,4)}, {'0' if q == 0 else vr(D2r,16)}")
    a(f"{M32} {vr(D2i,16)}, {vr(X+4*q,4)}, {vr(MI+4*q,4)}, {'0' if q == 0 else vr(D2i,16)}")
for q in range(4):
    for e in range(4):
        k = 4 * q + e
        a(f"v_mul_f32 v{t[0]}, v{D1r+k}, v{TC(k)}")
        a(f"v_mul_f32 v{t[1]}, v{D1i+k}, v{TC(k)}")
        a(f"v_fma_f32 v{t[0]}, -v{D1i+k}, v{TS_(k)}, v{t[0]}")
        a(f"v_fmac_f32 v{t[1]}, v{D1r+k}, v{TS_(k)}")
        a(f"v_cvt_pk_bf16_f32 v{X+k}, v{t[0]}, v{t[1]}")
        if q == 2 and e == 1: p2m(1)
    if q == 1: p2m(0)
    if q >= 2: p2m(q)
O = MR
for r, (Dx, so) in enumerate(((D2r, "s22"), (D2i, "s30"))):
    for c2 in range(2):
        o = O + 8 * r + 4 * c2
        for e in range(4):
            a(f"v_cvt_pk_bf16_f32 v{o+e}, v{Dx+8*c2+2*e}, v{Dx+8*c2+2*e+1}")
        a(f"v_permlane32_swap_b32 v{o}, v{o+2}")
        a(f"v_permlane32_swap_b32 v{o+1}, v{o+3}")
        a(f"buffer_store_dwordx4 {vr(o,4)}, v{vst}, s[12:15], {so} offen offset:{32*c2}")
a.label("L_fin")
stamp_end(32)
a.label("L_end")
a("s_endpgm")
a.label("L_hx")
a("s_lshl_b32 s26, s2, 3"); a("s_add_u32 s26, s26, s3")
a("s_cmp_lg_u32 s26, 4")
a("s_cbranch_scc1 L_fin")
a(f"s_mov_b32 s26, {hx(EP_OFF)}")
setflag(8, "s26", "s49")
a("s_branch L_fin")
a.label("L_nt")
a.hist = []
a(f"v_mov_b32 v{t[4]}, {256*1024}")
poll("L_poll3", t[4], t[5], "s11", "s49")
a(f"buffer_load_dwordx4 {vr(SBt[4],4)}, v{vN}, s[16:19], s10 offen sc1")
a("s_waitcnt vmcnt(0)")
a(f"{M16} {vr(DDt[4],4)}, {vr(MA,4)}, {vr(SBt[4],4)}, 0")
d = DDt[4]
avg(d)
a(f"v_cvt_pk_bf16_f32 v{d}, v{d}, v{d+1}")
a("s_mov_b32 exec_lo, 0x00010001"); a("s_mov_b32 exec_hi, 0x00010001")
a(f"ds_write_b32 v{AP8}, v{d}")
a("s_mov_b64 exec, -1")
a("s_branch L_ntb")
a.label("L_npass")
a.hist = []
t = [SC + k for k in range(6)]
a("s_mov_b32 s50, s9")
a("s_mov_b32 s59, 1")
a("s_mov_b32 s53, 256")
p2_item()
a(f"v_lshrrev_b32 v{t[0]}, 3, v0"); a(f"v_mul_u32_u24 v{t[2]}, {16*TSB}, v{t[0]}")
a(f"v_and_b32 v{t[0]}, 7, v0"); a(f"v_lshl_add_u32 v{t[2]}, v{t[0]}, 4, v{t[2]}")
a("s_barrier")
for bb in range(2):
    for q in range(2):
        a(f"s_add_u32 m0, s23, {bb*2048 + q*1024}")
        a(f"s_add_u32 s29, s24, {bb*TSB + q*128*TSB}")
        a(f"buffer_load_dwordx4 v{t[2]}, s[16:19], s29 offen sc1 lds")
a(f"v_lshlrev_b32 v{t[0]}, 2, v{vc}"); a(f"v_lshl_or_b32 v{vTr}, v{vg}, 9, v{t[0]}"); a(f"v_add_u32 v{vTr}, s23, v{vTr}")
a(f"v_and_b32 v{t[0]}, 7, v0"); a(f"v_lshlrev_b32 v{t[0]}, 1, v{t[0]}"); a(f"v_lshl_or_b32 v{vWr}, v{vg}, 9, v{t[0]}"); a(f"v_add_u32 v{vWr}, s23, v{vWr}")
p2_const(False)
a(f"v_mov_b32 v{t[0]}, s49"); a(f"v_mov_b32 v{t[1]}, 0")
a("s_waitcnt vmcnt(4)")
a("s_mov_b64 exec, 1")
a(f"buffer_store_dword v{t[0]}, v{t[1]}, s[16:19], s50 offen sc1")
a("s_mov_b64 exec, -1")
for k in range(32): a(f"v_mov_b32 v{WW+k}, 0")
a("s_waitcnt vmcnt(1)")
ts(9)
for cc in range(2):
    for arr in range(4):
        for i in range(4):
            a(f"ds_read_u16_d16_hi v{WW+8*arr+4*cc+i}, v{vWr} offset:{2048*cc+128*i+64+16*arr}")
for bb in range(2):
    for j in range(4):
        a(f"ds_read_b32 v{TB+4*bb+j}, v{vTr} offset:{2048*bb+128*j}")
a("s_waitcnt lgkmcnt(0)")
a("s_branch L_p2e")

nv = (a.maxv + 1 + 7) // 8 * 8
out = "; gated_mix spectral gfnet: persistent MFMA FFT pipeline (generated by gen4.py)\n"
out += f"; @launch grid=(256,1,1) block=(512,1,1) lds={LDS_BYTES}\n"
out += '.amdgcn_target "amdgcn-amd-amdhsa--gfx950"\n.text\n'
out += f".globl {NAME}\n.p2align 8\n.type {NAME},@function\n" + a.text() + "L_code_end:\n"
out += f""".section .rodata,"a"
.p2align 6
.amdhsa_kernel {NAME}
  .amdhsa_next_free_vgpr {nv}
  .amdhsa_next_free_sgpr {min(102, a.maxs + 1)}
  .amdhsa_accum_offset {nv}
  .amdhsa_group_segment_fixed_size 0
  .amdhsa_kernarg_size 80
  .amdhsa_user_sgpr_count 2
  .amdhsa_user_sgpr_kernarg_segment_ptr 1
  .amdhsa_system_sgpr_workgroup_id_x 1
  .amdhsa_float_denorm_mode_32 3
.end_amdhsa_kernel
"""
sys.stderr.write(f"vgpr {a.maxv+1} sgpr {a.maxs+1} lines {len(a.lines)} nops {a.nops}\n")
print(out)
```

```python
import sys
from asmlib import *
NAME = "gated_mix__spectral_gfnet__spectral_gfnet__prompt_kernel"
TSB = 16512
S_OFF = 0x500000
F1_OFF = 0xE20000
F2_OFF = 0xE80000
EP_OFF = 0xEF0000
WS_SIZE = 0xF00000
WBYTES = 2048 * 1026
M32 = "v_mfma_f32_32x32x16_bf16"
M16 = "v_mfma_f32_16x16x32_bf16"
OPT = set(sys.argv[1:])
ST = "stamps" in OPT
WSZ = 0x10000000 if ST else WS_SIZE
L_A = 0; L_W = 16384; L_P = L_W; WR = 6144; L_G = 65536; L_N = 65664; L_C = 65920; L_E = 65936; LDS_BYTES = 65936 + 4096
def optint(pfx, d):
    for o in OPT:
        if o.startswith(pfx) and o[len(pfx):].isdigit(): return int(o[len(pfx):])
    return d
SLEEP = optint("sl", 1); PFAT = optint("pf", 8); NWG = optint("nwg", 0)
SPIN_MAX = 400000
NTX = "" if "nontx" in OPT else " nt"
NTW = "" if "nontw" in OPT else " nt"
a = Asm()
def srd(d, base, size):
    a(f"s_mov_b32 s{d}, s{base}"); a(f"s_mov_b32 s{d+1}, s{base+1}")
    a(f"s_mov_b32 s{d+2}, {hx(size)}"); a(f"s_mov_b32 s{d+3}, 0x00020000")
NST = 14
def ts(k):
    if ST:
        a(f"s_memrealtime s[{60+2*k}:{61+2*k}]")
        a("s_waitcnt lgkmcnt(0)")
def stamp_end(vt):
    if not ST: return
    a("s_waitcnt vmcnt(0)")
    ts(NST - 1)
    for k in range(16): a(f"v_mov_b32 v{vt+k}, {'s%d' % (60+2*k) if k < NST else '0'}")
    a("s_lshl_b32 s96, s3, 6"); a("s_lshl_b32 s97, s2, 9"); a("s_add_u32 s96, s96, s97")
    a(f"s_add_u32 s96, s96, 0x3000000")
    a(f"v_mov_b32 v{vt+16}, 0")
    a("s_mov_b64 exec, 1")
    amp = optint("amp", -1)
    if amp >= 0:
        a("s_lshl_b32 s4, s2, 3"); a("s_add_u32 s4, s4, s3"); a("s_cmp_lg_u32 s4, %d" % (72 + optint("aw", 0))); a("s_cbranch_scc1 L_end")
        a(f"s_sub_u32 s4, s{60+2*amp}, s60"); a("s_mul_i32 s4, s4, 10"); a(f"s_add_u32 s4, s4, s{60+2*(NST-1)}")
        a.label("L_amp")
        a("s_memrealtime s[6:7]"); a("s_waitcnt lgkmcnt(0)")
        a("s_sub_u32 s5, s6, s4"); a("s_cmp_lt_i32 s5, 0"); a("s_cbranch_scc1 L_amp")
        return
    if "dbg" in OPT:
        a("s_load_dwordx2 s[4:5], s[0:1], 64")
        a("s_waitcnt lgkmcnt(0)")
        a("s_mov_b32 s6, 256"); a("s_mov_b32 s7, 0x00020000")
        a(f"v_not_b32 v{vt+14}, v{vt}")
        for k in range(15):
            a(f"buffer_atomic_umax v{vt+k}, v{vt+16}, s[4:7], 0 offen offset:{4*k}")
        return
    for q in range(4): a(f"buffer_store_dwordx4 {vr(vt+4*q,4)}, v{vt+16}, s[16:19], s96 offen offset:{16*q}")
def poll(lbl, vaddr, vtmp, soff, tag):
    a("s_mov_b32 s58, 0")
    a.label(lbl)
    a(f"buffer_load_dword v{vtmp}, v{vaddr}, s[16:19], {soff} offen sc1")
    a("s_add_u32 s58, s58, 1")
    a("s_waitcnt vmcnt(0)")
    a(f"v_cmp_ne_u32 vcc, {tag}, v{vtmp}")
    a(f"s_cmp_gt_u32 s58, {SPIN_MAX}")
    a(f"s_cbranch_scc1 {lbl}_d")
    a(f"s_cbranch_vccz {lbl}_d")
    if SLEEP: a(f"s_sleep {SLEEP}")
    a(f"s_branch {lbl}")
    a.label(lbl + "_d")
def setflag(vtmp, soff, tag):
    a(f"v_mov_b32 v{vtmp}, {tag}"); a(f"v_mov_b32 v{vtmp+1}, 0")
    a("s_waitcnt vmcnt(0)")
    a("s_mov_b64 exec, 1")
    a(f"buffer_store_dword v{vtmp}, v{vtmp+1}, s[16:19], {soff} offen sc1")
    a("s_mov_b64 exec, -1")

a.label(NAME)
a.label("L_code_start")
a("s_cmp_ge_u32 s2, 256")
a("s_cbranch_scc1 L_end")
if ST:
    a("s_memrealtime s[60:61]")
    for k in range(1, NST): a(f"s_mov_b32 s{60+2*k}, 0")
a("s_load_dwordx4 s[4:7], s[0:1], 0")
a("s_load_dwordx2 s[20:21], s[0:1], 72")
a("s_load_dwordx2 s[28:29], s[0:1], 16")
a("s_load_dwordx8 s[88:95], s[0:1], 32")
a("s_getpc_b64 s[12:13]")
a("s_and_b32 s12, s12, 0xffffff00")
a("s_mov_b32 s14, L_code_end-L_code_start")
a("s_mov_b32 s15, 0x00020000")
a("v_lshlrev_b32 v6, 6, v0")
a("s_bfe_u32 s8, s2, 0x20003")
a("v_lshrrev_b32 v1, 6, v0")
a("v_cmp_eq_u32 vcc, s8, v1")
a("s_and_saveexec_b64 s[10:11], vcc")
a("s_cbranch_execz L_cp")
if "nocp" not in OPT: a("buffer_load_ubyte v5, v6, s[12:15], 0 offen")
a.label("L_cp")
a("s_mov_b64 exec, -1")
a("v_and_b32 v0, 63, v0")
a("v_readfirstlane_b32 s3, v1")
vl16 = 2; vn = 3; vL5 = 4; vE = 5
a(f"v_lshlrev_b32 v{vl16}, 4, v0")
a(f"v_and_b32 v{vn}, 31, v0")
a(f"v_lshrrev_b32 v{vL5}, 5, v0")
a("s_and_b32 s51, s3, 3")
a("s_lshl_b32 s22, s51, 9"); a("s_add_u32 s22, s22, s2"); a("s_lshl_b32 s22, s22, 11")
a("s_and_b32 s53, s2, 7"); a("s_lshl_b32 s53, s53, 5"); a("s_lshr_b32 s54, s2, 3"); a("s_add_u32 s53, s53, s54")
a("s_and_b32 s55, s2, 7"); a("s_mul_i32 s55, s55, 1026"); a("s_lshl_b32 s56, s54, 5"); a("s_add_u32 s55, s55, s56")
a("s_lshl_b32 s24, s51, 12")
a("s_lshl_b32 s57, s2, 7"); a(f"s_add_u32 s57, s57, {hx(F1_OFF)}")
a(f"s_mov_b32 s26, {hx(EP_OFF)}")
a("v_mov_b32 v7, 0")
a("s_waitcnt lgkmcnt(0)")
srd(16, 20, WSZ)
a(f"buffer_load_dword v{vE}, v7, s[16:19], s26 offen sc1")
for arr, p_ in enumerate((6, 28, 88, 90)): srd(32 + 4 * arr, p_, WBYTES)
def tags():
    a(f"v_readfirstlane_b32 s48, v{vE}")
    a("s_mul_i32 s48, s48, 0x9E3779B1"); a("s_add_u32 s48, s48, 0x7F4A7C15")
    a("s_xor_b32 s49, s48, 0x5bd1e995")
def arr_srd():
    a("s_cmp_eq_u32 s51, 0"); a("s_cselect_b32 s12, s32, s36"); a("s_cselect_b32 s13, s33, s37")
    a("s_cmp_eq_u32 s51, 2"); a("s_cselect_b32 s12, s40, s12"); a("s_cselect_b32 s13, s41, s13")
    a("s_cmp_eq_u32 s51, 3"); a("s_cselect_b32 s12, s44, s12"); a("s_cselect_b32 s13, s45, s13")
    a(f"s_mov_b32 s14, {hx(WBYTES)}"); a("s_mov_b32 s15, 0x00020000")
V2 = VAlloc(5)
vg = V2(); vc = V2(); vF = V2()
SC = V2(16, 4)
vS = V2(); vw1 = V2(); vr1 = V2(); vT = V2(); vTr = V2(); vWr = V2(); vw2 = V2(); vr2 = V2()
WW = V2(32, 4); TB = V2(8, 4)
Fr = V2(4, 4); Fm = V2(4, 4); M2 = V2(16, 4); MT = V2(16, 4); D = V2(16, 4)
assert V2.n <= 128, V2.n
vW = D; vEa = 2
Wi = lambda arr, cc, i: WW + 16 * cc + 8 * (arr >> 1) + 2 * i + (arr & 1)
MX = SC
L_GW = L_W + 16384
def p2_addr():
    t = [SC + k for k in range(6)]
    a(f"v_lshrrev_b32 v{vg}, 4, v0"); a(f"v_and_b32 v{vc}, 15, v0")
    a(f"v_lshrrev_b32 v{t[0]}, 2, v0"); a(f"v_mul_u32_u24 v{vT}, {16*TSB}, v{t[0]}")
    a(f"v_and_b32 v{t[0]}, 3, v0"); a(f"v_lshl_add_u32 v{vT}, v{t[0]}, 4, v{vT}")
    a("s_lshl_b32 s27, s3, 11")
    a(f"s_mul_i32 s23, s3, {WR}"); a(f"s_add_u32 s23, s23, {L_W}")
    a(f"v_bfe_u32 v{t[0]}, v0, 1, 4"); a(f"v_and_b32 v{t[1]}, 1, v0"); a(f"v_lshl_add_u32 v{t[0]}, v{t[0]}, 4, v{t[1]}")
    a(f"v_lshlrev_b32 v{vF}, 7, v{t[0]}")
    a("s_lshl_b32 s28, s3, 8")
    a(f"s_add_u32 s8, s28, {hx(F1_OFF)}")
    a(f"v_lshlrev_b32 v{t[0]}, 4, v{vc}")
    a(f"v_lshl_or_b32 v{t[1]}, v{vg}, 9, v{t[0]}")
    a(f"v_add_u32 v{vw1}, s27, v{t[1]}"); a(f"v_add_u32 v{vw2}, s23, v{t[1]}")
    a(f"v_lshl_or_b32 v{vr1}, v{vg}, 12, v{t[0]}"); a(f"v_add_u32 v{vr1}, s28, v{vr1}")
    a(f"v_mul_u32_u24 v{vr2}, {2*WR}, v{vg}"); a(f"s_add_u32 s29, s28, {L_W}"); a(f"v_add3_u32 v{vr2}, v{vr2}, v{t[0]}, s29")
    a(f"v_lshlrev_b32 v{t[0]}, 3, v{vc}"); a(f"v_lshl_or_b32 v{vS}, v{vg}, 13, v{t[0]}")
def p2_item():
    t = [SC + k for k in range(6)]
    a(f"s_mul_i32 s24, s3, {2*TSB}"); a("s_lshl_b32 s26, s53, 6"); a("s_add_u32 s24, s24, s26")
    a(f"s_add_u32 s26, s24, {TSB}")
    a(f"v_lshlrev_b32 v{t[0]}, 2, v{vc}"); a(f"v_lshl_or_b32 v{vTr}, v{vg}, 8, v{t[0]}"); a(f"v_add_u32 v{vTr}, s27, v{vTr}")
    a("s_and_b32 s29, s55, 15"); a("s_add_u32 s29, s29, s23")
    a(f"v_mul_u32_u24 v{vWr}, 192, v{vg}"); a(f"v_lshl_add_u32 v{vWr}, v{vc}, 1, v{vWr}"); a(f"v_add_u32 v{vWr}, s29, v{vWr}")
    a("s_lshl_b32 s30, s53, 15"); a("s_add_u32 s30, s30, s28"); a(f"s_add_u32 s30, s30, {hx(S_OFF)}"); a("s_add_u32 s31, s30, 4096")
    a("s_lshl_b32 s9, s53, 10"); a("s_lshl_b32 s10, s3, 7"); a("s_add_u32 s9, s9, s10"); a(f"s_add_u32 s9, s9, {hx(F2_OFF)}")
    a(f"s_mul_i32 s50, s3, {2*TSB}"); a("s_and_b32 s29, s2, 7"); a("s_lshl_b32 s29, s29, 4"); a("s_add_u32 s50, s50, s29"); a("s_add_u32 s50, s50, 16384")
    a("s_cmp_eq_u32 s54, 0"); a("s_cselect_b32 s52, 0x00010001, 0")
    a(f"v_bfe_u32 v{t[0]}, v0, 4, 1"); a(f"v_lshl_add_u32 v{t[0]}, v{vc}, 4, v{t[0]}"); a(f"v_mul_u32_u24 v{vEa}, {TSB}, v{t[0]}")
    a("s_cselect_b32 s59, -1, 0")
    a(f"v_mul_u32_u24 v{t[0]}, 43, v0"); a(f"v_lshrrev_b32 v{t[0]}, 7, v{t[0]}")
    a(f"v_mul_u32_u24 v{t[1]}, 3, v{t[0]}"); a(f"v_sub_u32 v{t[1]}, v0, v{t[1]}")
    a("s_lshl_b32 s29, s56, 4")
    a(f"v_mul_u32_u24 v{vW}, s29, v{t[0]}"); a(f"v_lshl_add_u32 v{vW}, v{t[1]}, 4, v{vW}")
def p2_const(dozero=True):
    t = [SC + k for k in range(6)]
    vlf = SC + 6; vkf = SC + 7; vc0 = SC + 8; vlc = SC + 10; FA = SC + 12
    a(f"v_cvt_f32_u32 v{vlf}, v{vc}")
    a(f"v_cvt_f32_u32 v{vkf}, v{vg}"); a(f"v_mul_f32 v{vkf}, 4.0, v{vkf}")
    a(f"v_cvt_f32_u32 v{vc0}, s3"); a(f"v_mul_f32 v{vc0}, {fl(1/128)}, v{vc0}")
    a(f"v_mul_f32 v{vlc}, v{vlf}, v{vc0}")
    a(f"v_fmamk_f32 v{vlc+1}, v{vlf}, {hx(f2u(1/256))}, v{vlc}")
    a(f"v_mul_f32 v{vlf}, {fl(1/16)}, v{vlf}")
    z = iter(range(32))
    def zero(n):
        if not dozero:
            if n == 1: a("s_nop 0")
            return
        for _ in range(n):
            k = next(z, None)
            if k is not None: a(f"v_mov_b32 v{WW+k}, 0")
    def mat(ang):
        a(f"v_cos_f32 v{t[3]}, v{ang}"); a(f"v_sin_f32 v{t[4]}, v{ang}")
    def matfin(Mr, Mm):
        a(f"v_cvt_pk_bf16_f32 v{Mr}, v{t[3]}, v{t[4]}")
        a(f"v_cvt_pk_bf16_f32 v{Mm}, -v{t[4]}, v{t[3]}")
    for i in range(4):
        if i: a(f"v_add_f32 v{vkf}, 1.0, v{vkf}")
        a(f"v_mul_f32 v{FA+i}, v{vkf}, v{vlf}")
        mat(FA + i); zero(1); matfin(Fr + i, Fm + i)
    for i in range(3, -1, -1):
        a(f"v_fma_f32 v{t[0]}, v{vkf}, v{vc0}, v{FA+i}")
        a(f"v_fmamk_f32 v{t[1]}, v{vkf}, {hx(f2u(1/256))}, v{t[0]}")
        mat(t[0]); a(f"v_add_f32 v{t[2]}, v{FA+i}, v{vlc}"); matfin(M2 + i, M2 + 4 + i)
        mat(t[1]); a(f"v_add_f32 v{t[5]}, v{FA+i}, v{vlc+1}"); matfin(M2 + 8 + i, M2 + 12 + i)
        mat(t[2]); a(f"v_subrev_f32 v{vkf}, 1.0, v{vkf}"); matfin(MT + i, MT + 4 + i)
        mat(t[5]); zero(1); matfin(MT + 8 + i, MT + 12 + i)
    zero(32)
    a(f"v_add_f32 v{vc0}, {fl(1/128)}, v{vc0}")
    a(f"v_mov_b32 v{SC+9}, v{vkf}")
    for i in range(4):
        a(f"v_add_f32 v{SC+9}, 1.0, v{SC+9}")
        a(f"v_fma_f32 v{FA+i}, v{SC+9}, v{vc0}, v{FA+i}")
    for i in range(4):
        a(f"v_cos_f32 v{SC+10}, v{FA+i}"); a(f"v_sin_f32 v{SC+11}, v{FA+i}"); a("s_nop 0")
        a(f"v_cvt_pk_bf16_f32 v{MX+i}, v{SC+10}, v{SC+11}")
        a(f"v_cvt_pk_bf16_f32 v{MX+4+i}, -v{SC+11}, v{SC+10}")
def wdma(wave_sreg_expr_list, flag=""):
    a("s_mov_b32 exec_lo, -1"); a("s_mov_b32 exec_hi, 0xffff")
    for add in wave_sreg_expr_list:
        a(f"s_add_u32 s10, s3, {add}")
        a("s_lshl_b32 s25, s10, 1"); a("s_mul_i32 s25, s25, s56"); a("s_add_u32 s25, s25, s55"); a("s_and_b32 s25, s25, 0xfffffff0")
        a("s_add_u32 s11, s25, s56")
        a(f"s_mul_i32 s10, s10, {WR}")
        for arr in range(4):
            for cc in range(2):
                a(f"s_add_u32 m0, s10, {L_W + 1536*arr + 768*cc}")
                a(f"buffer_load_dwordx4 v{vW}, {sr(32+4*arr,4)}, {'s25' if cc == 0 else 's11'} offen{flag} lds")
    a("s_mov_b64 exec, -1")
a(f"s_mov_b32 s56, {8*1026}")
a("s_cmp_ge_u32 s3, 4")
a("s_cbranch_scc1 L_h")
a("s_setprio 2")
srd(8, 4, 2048 * 2048)
a("s_add_u32 s30, s22, 0x80000")
a("s_mov_b32 m0, s24")
a(f"buffer_load_dwordx4 v{vl16}, s[8:11], s22 offen{NTX} lds")
a(f"buffer_load_dwordx4 v{vl16}, s[8:11], s22 offen offset:1024{NTX} lds")
a("s_add_u32 m0, s24, 2048")
a(f"buffer_load_dwordx4 v{vl16}, s[8:11], s30 offen{NTX} lds")
a(f"buffer_load_dwordx4 v{vl16}, s[8:11], s30 offen offset:1024{NTX} lds")
V = VAlloc(6)
vb = V(); vo = V(); vkn = V(); vtr = V(); vpf = V(); vj = V(); vpw = V(4); t = [V() for _ in range(6)]
srd(8, 92, 2048)
a("s_lshl_b32 s30, s51, 9"); a(f"s_add_u32 m0, s30, {L_GW}")
a("s_mov_b32 exec_hi, 0")
a(f"buffer_load_dwordx4 v{vl16}, s[8:11], s30 offen lds")
a("s_mov_b32 exec_hi, -1")
arr_srd()
a(f"v_and_b32 v{t[0]}, 7, v0"); a("s_lshl_b32 s30, s2, 3"); a(f"v_add_u32 v{t[0]}, s30, v{t[0]}")
a(f"v_bfe_i32 v{t[1]}, v0, 4, 1"); a(f"v_xor_b32 v{t[0]}, v{t[0]}, v{t[1]}"); a(f"v_sub_u32 v{t[0]}, v{t[0]}, v{t[1]}")
a(f"v_and_b32 v{t[0]}, 2047, v{t[0]}"); a(f"v_mul_u32_u24 v{t[2]}, 1026, v{t[0]}")
a(f"v_bfe_u32 v{t[1]}, v0, 3, 1"); a(f"v_lshl_add_u32 v{t[2]}, v{t[1]}, 10, v{t[2]}")
a(f"buffer_load_ushort v{vj}, v{t[2]}, s[12:15], 0 offen")
a("s_and_b32 s30, s2, 7"); a("s_lshl_b32 s31, s54, 6"); a("s_add_u32 s30, s30, s31"); a("s_mul_i32 s30, s30, 1026")
a(f"v_lshrrev_b32 v{t[0]}, 3, v0"); a(f"v_mul_u32_u24 v{t[2]}, {8*1026}, v{t[0]}")
a(f"v_and_b32 v{t[1]}, 7, v0"); a(f"v_lshl_add_u32 v{vpf}, v{t[1]}, 7, v{t[2]}")
vjunk = 1
def prefetch():
    a(f"buffer_load_ubyte v{vjunk}, v{vpf}, s[12:15], s30 offen{NTW}")
    a(f"buffer_load_ubyte v{vjunk}, v{vpt}, s[12:15], s30 offen offset:1024{NTW}")
NPF = 2
vpt = V()
a(f"v_and_b32 v{t[1]}, 1, v0"); a(f"v_lshl_add_u32 v{vpt}, v{t[1]}, 4, v{t[2]}")
if PFAT == 0: prefetch()
CC = V(8, 4); SS = V(8, 4); SN = V(8, 4); XR = V(8, 4); XI = V(8, 4)
BA = V(24, 4); BB = V(24, 4); TCh = V(8); TSh = V(8)
D1r = BA + 8; D1i = BB + 8; D2r = BA; D2i = BB
TC = lambda k: BA + k if k < 8 else TCh + k - 8
TS_ = lambda k: BB + k if k < 8 else TSh + k - 8
assert V.n <= 128, V.n
a(f"v_and_b32 v{t[0]}, 7, v0"); a(f"v_bfe_u32 v{t[1]}, v0, 3, 2")
a(f"v_lshl_or_b32 v{vkn}, v{t[0]}, 2, v{t[1]}")
a(f"v_cvt_f32_u32 v{vb}, v{vkn}"); a(f"v_cvt_f32_u32 v{vo}, v{vL5}")
a(f"v_mul_f32 v{vb}, {fl(1/32)}, v{vb}"); a(f"v_mul_f32 v{vo}, 4.0, v{vo}"); a(f"v_mul_f32 v{vo}, v{vb}, v{vo}")
for i in range(0, 16, 2):
    for e in range(2):
        kc = 8 * ((i + e) // 4) + (i + e) % 4
        if kc == 0: a(f"v_mov_b32 v{t[e]}, v{vo}")
        else: a(f"v_fmamk_f32 v{t[e]}, v{vb}, {hx(f2u(float(kc)))}, v{vo}")
    a(f"v_cos_f32 v{t[2]}, v{t[0]}"); a(f"v_cos_f32 v{t[3]}, v{t[1]}")
    a(f"v_sin_f32 v{t[4]}, v{t[0]}"); a(f"v_sin_f32 v{t[5]}, v{t[1]}")
    a(f"v_mul_f32 v{t[0]}, {fl(1/32)}, v{t[0]}"); a(f"v_mul_f32 v{t[1]}, {fl(1/32)}, v{t[1]}")
    a(f"v_cvt_pk_bf16_f32 v{CC+i//2}, v{t[2]}, v{t[3]}")
    a(f"v_cvt_pk_bf16_f32 v{SS+i//2}, v{t[4]}, v{t[5]}")
    a(f"v_cvt_pk_bf16_f32 v{SN+i//2}, -v{t[4]}, -v{t[5]}")
    a(f"v_cos_f32 v{TC(i)}, v{t[0]}"); a(f"v_cos_f32 v{TC(i+1)}, v{t[1]}")
    a(f"v_sin_f32 v{TS_(i)}, v{t[0]}"); a(f"v_sin_f32 v{TS_(i+1)}, v{t[1]}")
    if PFAT == i // 2 + 1: prefetch()
a(f"v_lshlrev_b32 v{vtr}, 8, v{vL5}")
a(f"v_bfe_u32 v{t[0]}, v0, 2, 2"); a(f"v_lshl_or_b32 v{vtr}, v{t[0]}, 6, v{vtr}")
a(f"v_bfe_u32 v{t[0]}, v0, 4, 1"); a(f"v_lshl_or_b32 v{vtr}, v{t[0]}, 5, v{vtr}")
a(f"v_and_b32 v{t[0]}, 3, v0"); a(f"v_lshl_or_b32 v{vtr}, v{t[0]}, 3, v{vtr}")
a(f"v_add_u32 v{vtr}, s24, v{vtr}")
a(f"v_and_b32 v{t[0]}, 7, v0"); a(f"v_bfe_u32 v{t[1]}, v0, 3, 2"); a(f"v_lshlrev_b32 v{t[1]}, 1, v{t[1]}")
a(f"v_xor_b32 v{t[0]}, v{t[0]}, v{t[1]}"); a(f"v_xor_b32 v{t[0]}, v{t[0]}, v{vL5}")
a(f"v_lshlrev_b32 v{t[0]}, 4, v{t[0]}")
a(f"v_lshl_or_b32 v{vpw}, v{vkn}, 7, v{t[0]}")
a(f"s_add_u32 s26, s24, {L_P}")
a(f"v_add_u32 v{vpw}, s26, v{vpw}")
for c in range(1, 4): a(f"v_xor_b32 v{vpw+c}, {32*c}, v{vpw}")
vet = vb
a(f"v_and_b32 v{t[0]}, 7, v0"); a(f"v_and_b32 v{t[1]}, 16, v0"); a(f"v_lshl_or_b32 v{t[0]}, v{t[0]}, 1, v{t[1]}")
a(f"v_bfe_u32 v{t[1]}, v0, 3, 1"); a(f"v_lshl_or_b32 v{t[0]}, v{t[1]}, 7, v{t[0]}")
a("s_lshl_b32 s30, s51, 5"); a(f"s_add_u32 s30, s30, {L_N}"); a(f"v_add_u32 v{vet}, s30, v{t[0]}")
ts(1)
a(f"s_waitcnt vmcnt({NPF if PFAT <= 8 else 0})")
ts(2)
tags()
a(f"ds_write_b16 v{vet}, v{vj}")
for h in range(2):
    for r, X in ((0, XR), (1, XI)):
        for tt in range(2):
            a(f"ds_read_b64_tr_b16 {vr(X+4*h+2*tt,2)}, v{vtr} offset:{r*2048+h*1024+tt*512}")
a("s_waitcnt lgkmcnt(8)")
a("s_barrier")
def cpass(R, I, Dr, Di, h, first):
    c0 = "0" if first else vr(Dr, 16); c1 = "0" if first else vr(Di, 16)
    a(f"{M32} {vr(Dr,16)}, {vr(R+4*h,4)}, {vr(CC+4*h,4)}, {c0}")
    a(f"{M32} {vr(Di,16)}, {vr(I+4*h,4)}, {vr(CC+4*h,4)}, {c1}")
    a(f"{M32} {vr(Dr,16)}, {vr(I+4*h,4)}, {vr(SS+4*h,4)}, {vr(Dr,16)}")
    a(f"{M32} {vr(Di,16)}, {vr(R+4*h,4)}, {vr(SN+4*h,4)}, {vr(Di,16)}")
a("s_waitcnt lgkmcnt(4)")
cpass(XR, XI, D1r, D1i, 0, True)
a("s_waitcnt lgkmcnt(0)")
cpass(XR, XI, D1r, D1i, 1, False)
for h in range(2):
    for i in range(8 * h, 8 * h + 8, 2):
        for e in range(2):
            k = i + e
            a(f"v_mul_f32 v{t[e]}, v{D1r+k}, v{TC(k)}")
            a(f"v_mul_f32 v{t[2+e]}, v{D1i+k}, v{TC(k)}")
            a(f"v_fmac_f32 v{t[e]}, v{D1i+k}, v{TS_(k)}")
            a(f"v_fma_f32 v{t[2+e]}, -v{D1r+k}, v{TS_(k)}, v{t[2+e]}")
        a(f"v_cvt_pk_bf16_f32 v{XR+i//2}, v{t[0]}, v{t[1]}")
        a(f"v_cvt_pk_bf16_f32 v{XI+i//2}, v{t[2]}, v{t[3]}")
    cpass(XR, XI, D2r, D2i, h, h == 0)
PK = CC
for c in range(4):
    for e in range(4):
        a(f"v_cvt_pk_bf16_f32 v{PK+4*c+e}, v{D2r+4*c+e}, v{D2i+4*c+e}")
    a(f"ds_write_b128 v{vpw+c}, {vr(PK+4*c,4)}")
a("s_waitcnt lgkmcnt(0)")
ts(3)
a("s_barrier")
a("s_setprio 0")
p2_addr()
p2_item()
ts(4)
a("s_barrier")
ts(5)
wdma([0, 4])
ts(6)
p2_const()
a("s_branch L_p2")
a.label("L_h")
a.hist = []
V = VAlloc(6)
t = [V() for _ in range(8)]
XN = V(16, 4); GW = V(8, 4)
vnat = V(); a(f"v_add_u32 v{vnat}, s24, v{vl16}")
MA = V(4, 4)
DMB = V(48, 4)
vu = DMB; vA = DMB + 1; vB1 = DMB + 2; vB2 = DMB + 3; vsg = DMB + 4
a(f"v_mov_b32 v{t[3]}, {L_C}"); a(f"v_mov_b32 v{t[4]}, 0")
a(f"ds_write_b32 v{t[3]}, v{t[4]}")
a(f"v_bfe_u32 v{t[0]}, v0, 3, 1"); a(f"v_bfe_u32 v{t[1]}, v0, 1, 1")
a(f"v_lshl_or_b32 v{t[0]}, v{t[0]}, 1, v{t[1]}")
a(f"v_and_or_b32 v{vu}, v0, 4, v{t[0]}")
a(f"v_cvt_f32_u32 v{vu}, v{vu}")
a(f"v_cvt_f32_u32 v{vsg}, v{vL5}")
a(f"v_fma_f32 v{vsg}, v{vsg}, -2.0, 1.0")
a(f"v_mul_f32 v{vA}, v{vu}, v{vsg}")
a(f"v_mul_f32 v{vA}, {fl(0.125)}, v{vA}")
a(f"v_and_b32 v{t[0]}, 1, v0"); a(f"v_cvt_f32_u32 v{t[0]}, v{t[0]}")
a(f"v_mul_f32 v{vB1}, v{t[0]}, v{vsg}"); a(f"v_mul_f32 v{vB1}, {fl(0.25)}, v{vB1}")
a(f"v_cvt_f32_u32 v{t[1]}, s2"); a(f"v_mul_f32 v{t[1]}, {fl(1/256)}, v{t[1]}")
a(f"v_fmac_f32 v{vB1}, v{t[1]}, v{vA}")
a(f"v_add_f32 v{vB2}, {fl(0.25)}, v{vB1}")
for pp in range(4):
    if pp == 0: a(f"v_mov_b32 v{t[0]}, v{vB1}")
    else: a(f"v_fmamk_f32 v{t[0]}, v{vA}, {hx(f2u(2.0*pp))}, v{vB1}")
    a(f"v_fmamk_f32 v{t[1]}, v{vA}, {hx(f2u(2.0*pp+1))}, v{vB2}")
    a(f"v_cos_f32 v{t[2]}, v{t[0]}"); a(f"v_cos_f32 v{t[3]}, v{t[1]}")
    a(f"v_sin_f32 v{t[4]}, v{t[0]}"); a(f"v_sin_f32 v{t[5]}, v{t[1]}")
    a(f"v_add_f32 v{t[2]}, v{t[2]}, v{t[3]}")
    a(f"v_add_f32 v{t[4]}, v{t[4]}, v{t[5]}")
    a(f"v_cvt_pk_bf16_f32 v{MA+pp}, v{t[2]}, v{t[4]}")
vmr = V(5); vk = DMB + 5; vneg = DMB + 6
a("s_lshl_b32 s30, s51, 7")
a(f"v_lshlrev_b32 v{t[0]}, 2, v{vn}")
a(f"v_sub_u32 v{vneg}, 0, v{vL5}")
for q in range(5):
    if q < 4: a(f"v_add3_u32 v{vk}, v{t[0]}, s30, {q}")
    else: a(f"v_add_u32 v{vk}, 512, v{t[0]}")
    a(f"v_xor_b32 v{vk}, v{vk}, v{vneg}"); a(f"v_add_u32 v{vk}, v{vk}, v{vL5}")
    a(f"v_bfe_u32 v{t[1]}, v{vk}, 5, 5")
    a(f"v_bfe_u32 v{t[2]}, v{vk}, 7, 3")
    a(f"v_xor_b32 v{t[3]}, v{vk}, v{t[1]}")
    a(f"v_and_b32 v{t[3]}, 3, v{t[3]}")
    a(f"v_bfe_u32 v{t[4]}, v{vk}, 4, 1")
    a(f"v_lshl_or_b32 v{t[3]}, v{t[3]}, 1, v{t[4]}")
    a(f"v_xor_b32 v{t[3]}, v{t[3]}, v{t[2]}")
    a(f"v_and_b32 v{t[4]}, 12, v{vk}")
    a(f"v_lshl_or_b32 v{t[4]}, v{t[3]}, 4, v{t[4]}")
    a(f"v_lshl_or_b32 v{vmr+q}, v{t[1]}, 7, v{t[4]}")
vts = V(); veo = V(); vet2 = V(); vsig = V(); ves = V()
a(f"v_lshlrev_b32 v{t[0]}, 13, v{vL5}"); a(f"v_lshl_or_b32 v{vts}, v{vn}, 4, v{t[0]}")
EV = DMB + 8
a(f"v_and_b32 v{t[0]}, 7, v0"); a(f"v_bfe_u32 v{t[1]}, v0, 3, 1")
a(f"v_lshlrev_b32 v{t[2]}, 3, v{t[1]}"); a(f"v_lshl_or_b32 v{ves}, v{t[0]}, 4, v{t[2]}")
a(f"v_and_b32 v{t[2]}, 3, v0"); a(f"v_cmp_eq_u32 vcc, 0, v{t[2]}")
a(f"v_lshrrev_b32 v{t[3]}, 2, v{t[0]}")
a(f"v_cvt_f32_u32 v{t[4]}, v{t[1]}"); a(f"v_fma_f32 v{t[4]}, v{t[4]}, -2.0, 1.0")
a(f"v_cndmask_b32 v{t[3]}, v{t[3]}, v{t[1]}, vcc")
a(f"v_cndmask_b32 v{vsig}, 0, v{t[4]}, vcc")
a(f"v_lshlrev_b32 v{t[0]}, 1, v{t[0]}"); a(f"v_lshl_or_b32 v{t[0]}, v{t[1]}, 6, v{t[0]}"); a(f"v_lshl_or_b32 v{t[0]}, v{t[3]}, 7, v{t[0]}")
a(f"v_add_u32 v{veo}, {L_N}, v{t[0]}"); a(f"v_xor_b32 v{vet2}, 64, v{veo}")
for k in range(8): a(f"v_mov_b32 v{EV+k}, 0")
a(f"s_mul_i32 s8, s2, {TSB}")
a("s_lshl_b32 s9, s51, 9"); a("s_add_u32 s9, s9, s8"); a("s_add_u32 s10, s9, 4096")
a("s_add_u32 s8, s8, 16384")
a("s_mov_b32 s11, 0xffff0000")
acc = V(4, 4); ones = V(); MB = XN; MB4 = GW
a(f"v_mov_b32 v{ones}, 0x3f803f80")
a(f"v_mov_b32 v{acc}, 0"); a(f"v_mov_b32 v{acc+2}, 0")
assert V.n <= 128, V.n
a("s_waitcnt lgkmcnt(0)")
ts(1)
a("s_barrier")
for r in range(2):
    for q in range(2):
        a(f"ds_read_b128 {vr(XN+8*r+4*q,4)}, v{vnat} offset:{r*2048+q*1024}")
a(f"ds_read_b128 {vr(GW,4)}, v{vl16} offset:{L_GW}")
a(f"ds_read_b128 {vr(GW+4,4)}, v{vl16} offset:{L_GW+1024}")
for k in range(4):
    a(f"ds_read_u16_d16_hi v{EV+k}, v{veo} offset:{16*k}")
    a(f"ds_read_u16_d16_hi v{EV+4+k}, v{vet2} offset:{16*k}")
a("s_waitcnt lgkmcnt(0)")
a(f"v_add_f32 v{EV+8}, v{EV}, v{EV+1}"); a(f"v_sub_f32 v{EV+9}, v{EV+2}, v{EV+3}")
a(f"v_add_f32 v{EV+4}, v{EV+4}, v{EV+5}"); a(f"v_sub_f32 v{EV+6}, v{EV+6}, v{EV+7}")
a(f"v_fma_f32 v{EV+8}, -v{vsig}, v{EV+6}, v{EV+8}"); a(f"v_fmac_f32 v{EV+9}, v{vsig}, v{EV+4}")
a("s_waitcnt vmcnt(0)")
tags()
a("s_cmp_eq_u32 s51, 1"); a("s_cselect_b32 exec_lo, 0xffff, 0"); a("s_mov_b32 exec_hi, 0")
a(f"buffer_store_dwordx2 {vr(EV+8,2)}, v{ves}, s[16:19], s8 offen sc1")
a("s_mov_b64 exec, -1")
ts(2)
for j in range(8):
    a(f"v_lshlrev_b32 v{t[6]}, 16, v{GW+j}")
    a(f"v_and_b32 v{t[7]}, s11, v{GW+j}")
    for r in range(2):
        a(f"v_lshlrev_b32 v{t[2*r]}, 16, v{XN+8*r+j}")
        a(f"v_and_b32 v{t[2*r+1]}, s11, v{XN+8*r+j}")
    for r in range(2):
        a(f"v_mul_f32 v{t[2*r]}, v{t[2*r]}, v{t[6]}")
        a(f"v_mul_f32 v{t[2*r+1]}, v{t[2*r+1]}, v{t[7]}")
    for r in range(2): a(f"v_cvt_pk_bf16_f32 v{t[4+r]}, v{t[2*r]}, v{t[2*r+1]}")
    for r in range(2): a(f"v_dot2_f32_bf16 v{acc+2*r}, v{t[4+r]}, v{ones}, v{acc+2*r}")
ts(3)
a("s_setprio 2")
a("s_barrier")
ts(4)
o = L_P // 256
a(f"ds_read2st64_b32 {vr(MB4,2)}, v{vmr+4} offset0:{o} offset1:{o+16}")
a(f"ds_read2st64_b32 {vr(MB4+2,2)}, v{vmr+4} offset0:{o+32} offset1:{o+48}")
for q in range(4):
    a(f"ds_read2st64_b32 {vr(MB+4*q,2)}, v{vmr+q} offset0:{o} offset1:{o+16}")
    a(f"ds_read2st64_b32 {vr(MB+4*q+2,2)}, v{vmr+q} offset0:{o+32} offset1:{o+48}")
DN = DMB; DM = [DMB + 8 + 8 * q for q in range(4)]
a("s_waitcnt lgkmcnt(8)")
a(f"{M32} {vr(DN,16)}, {vr(MA,4)}, {vr(MB4,4)}, 0")
for q in range(4):
    a(f"s_waitcnt lgkmcnt({6-2*q})")
    a(f"{M32} {vr(DM[q],16)}, {vr(MA,4)}, {vr(MB+4*q,4)}, 0")
a("s_cmp_eq_u32 s51, 0"); a("s_cselect_b32 exec_lo, 1, 0"); a("s_cselect_b32 exec_hi, 1, 0")
a(f"v_sub_f32 v{DM[0]}, v{DM[0]}, v{DN+1}"); a(f"v_add_f32 v{DM[0]+1}, v{DM[0]+1}, v{DN}")
a("s_mov_b32 exec_lo, 0")
for k in range(2, 8): a(f"v_mov_b32 v{DM[0]+k}, v{DN+k}")
a("s_mov_b64 exec, -1")
OUT = MB
for s_ in range(4):
    for q in range(4):
        a(f"v_cvt_pk_bf16_f32 v{OUT+4*s_+q}, v{DM[q]+2*s_}, v{DM[q]+2*s_+1}")
    a(f"buffer_store_dwordx4 {vr(OUT+4*s_,4)}, v{vts}, s[16:19], {'s9' if s_ < 2 else 's10'} offen offset:{(s_&1)*2048} sc1")
a("s_barrier")
ts(5)
for dpp in ("row_shr:1", "row_shr:2", "row_shr:4", "row_shr:8"):
    for r in range(2):
        a(f"v_add_f32_dpp v{acc+2*r}, v{acc+2*r}, v{acc+2*r} {dpp} row_mask:0xf bank_mask:0xf bound_ctrl:0")
for dpp, rm in (("row_bcast:15", "0xa"), ("row_bcast:31", "0xc")):
    for r in range(2):
        a(f"v_add_f32_dpp v{acc+2*r}, v{acc+2*r}, v{acc+2*r} {dpp} row_mask:{rm} bank_mask:0xf")
a(f"v_cvt_pk_bf16_f32 v{t[0]}, v{acc}, v{acc+2}")
a(f"v_lshlrev_b32 v{t[1]}, 16, v{t[0]}")
a(f"v_and_b32 v{t[2]}, s11, v{t[0]}")
for r in range(2): a(f"v_mul_f32 v{t[1+r]}, {hx(f2u(-1.4426950408889634))}, v{t[1+r]}")
for r in range(2): a(f"v_exp_f32 v{t[1+r]}, v{t[1+r]}")
for r in range(2): a(f"v_add_f32 v{t[1+r]}, 1.0, v{t[1+r]}")
for r in range(2): a(f"v_rcp_f32 v{t[1+r]}, v{t[1+r]}")
a(f"v_cvt_pk_bf16_f32 v{t[0]}, v{t[1]}, v{t[2]}")
a(f"v_lshlrev_b32 v{acc}, 16, v{t[0]}")
a(f"v_and_b32 v{acc+2}, s11, v{t[0]}")
a(f"v_sub_f32 v{t[1]}, 1.0, v{acc}")
a(f"v_sub_f32 v{t[2]}, 1.0, v{acc+2}")
a(f"v_cvt_pk_bf16_f32 v{t[0]}, v{t[1]}, v{t[2]}")
a(f"v_lshlrev_b32 v{acc+1}, 16, v{t[0]}")
a(f"v_and_b32 v{acc+3}, s11, v{t[0]}")
for r in range(4): a(f"v_mul_f32 v{acc+r}, {hx(f2u(2.0**-22))}, v{acc+r}")
a("s_lshl_b32 s30, s51, 4"); a(f"s_add_u32 s30, s30, {L_G}")
a(f"v_mov_b32 v{t[3]}, s30")
a("s_mov_b32 exec_lo, 0"); a("s_mov_b32 exec_hi, 0x80000000")
a(f"ds_write_b128 v{t[3]}, {vr(acc,4)}")
a("s_mov_b64 exec, 1")
a(f"v_mov_b32 v{t[3]}, {L_C}"); a(f"v_mov_b32 v{t[4]}, 1"); a(f"v_mov_b32 v{t[6]}, s48"); a(f"v_mov_b32 v{t[7]}, 0")
a("s_waitcnt vmcnt(0)")
a(f"ds_add_rtn_u32 v{t[5]}, v{t[3]}, v{t[4]}")
a("s_waitcnt lgkmcnt(0)")
a(f"v_cmp_eq_u32 vcc, 3, v{t[5]}")
a("s_and_b64 exec, exec, vcc")
a(f"buffer_store_dword v{t[6]}, v{t[7]}, s[16:19], s57 offen sc1")
a("s_mov_b64 exec, -1")
a("s_setprio 0")
ts(6)
p2_addr(); p2_item(); p2_const()
a.label("L_p2")
a.hist = []
t = [SC + k for k in range(6)]
ts(7)
poll("L_poll1", vF, TB, "s8", "s48")
ts(8)
a.label("L_p2c")
a("s_setprio 1")
a("s_mov_b32 m0, s27")
a(f"buffer_load_dwordx4 v{vT}, s[16:19], s24 offen sc1 lds")
a("s_add_u32 m0, s27, 1024")
a(f"buffer_load_dwordx4 v{vT}, s[16:19], s26 offen sc1 lds")
a("s_lshl_b32 s29, s3, 9"); a(f"s_add_u32 s29, s29, {L_E}"); a("s_mov_b32 m0, s29")
a("s_mov_b32 exec_lo, s59"); a("s_mov_b32 exec_hi, 0")
a(f"buffer_load_dwordx4 v{vEa}, s[16:19], s50 offen sc1 lds")
a("s_not_b32 exec_lo, s52"); a("s_not_b32 exec_hi, s52")
a("s_barrier")
for cc in range(2):
    for arr in range(4):
        for i in range(4):
            a(f"ds_read_u16_d16_hi v{Wi(arr,cc,i)}, v{vWr} offset:{1536*arr+768*cc+48*i}")
a("s_mov_b64 exec, -1")
PKD = SC + 8
a("s_waitcnt vmcnt(0)")
if ST: a("s_waitcnt lgkmcnt(0)")
ts(9)
a(f"ds_read2_b32 {vr(TB,2)}, v{vTr} offset0:0 offset1:16")
a(f"ds_read2_b32 {vr(TB+2,2)}, v{vTr} offset0:32 offset1:48")
a(f"v_add_u32 v{vTr}, 1024, v{vTr}")
a(f"ds_read2_b32 {vr(TB+4,2)}, v{vTr} offset0:0 offset1:16")
a(f"ds_read2_b32 {vr(TB+6,2)}, v{vTr} offset0:32 offset1:48")
a.label("L_p2e")
for bb in range(2):
    a(f"s_waitcnt lgkmcnt({2-2*bb})")
    a(f"{M16} {vr(D+8*bb,4)}, {vr(Fr,4)}, {vr(TB+4*bb,4)}, 0")
    a(f"{M16} {vr(D+8*bb+4,4)}, {vr(Fm,4)}, {vr(TB+4*bb,4)}, 0")
for ip in range(2):
    for cc in range(2):
        for bb in range(2):
            i = 2 * ip + cc
            a(f"v_cvt_pk_bf16_f32 v{PKD+4*ip+2*cc+bb}, v{D+8*bb+i}, v{D+8*bb+4+i}")
    a(f"ds_write_b128 v{vw1}, {vr(PKD+4*ip,4)} offset:{ip*256}")
a("s_cmp_lg_u32 s54, 0")
a("s_cbranch_scc0 L_el")
a.label("L_elb")
a("s_waitcnt lgkmcnt(0)")
a("s_barrier")
OB = TB
for cc in range(2):
    for h in range(2):
        a(f"ds_read_b64 {vr(OB+4*cc+2*h,2)}, v{vr1} offset:{h*2048+cc*8}")
X = D
for cc in range(2):
    a(f"s_waitcnt lgkmcnt({2-2*cc})")
    a(f"{M16} {vr(X+8*cc,4)}, {vr(M2+8*cc,4)}, {vr(OB+4*cc,4)}, 0")
    a(f"{M16} {vr(X+8*cc+4,4)}, {vr(M2+8*cc+4,4)}, {vr(OB+4*cc,4)}, 0")
YO = [PKD, PKD + 4, PKD, PKD + 4]
tpr = [(vT, vTr), (vWr, vw1)]
def dpt(cc, ab, ri): return WW + 16 * cc + 8 * ab + 4 * ri
def wmul(cc, ab):
    n = 2 * cc + ab
    xr = X + 8 * cc; xi = X + 8 * cc + 4
    for i in range(4):
        wr = Wi(2 * ab, cc, i); wi = Wi(2 * ab + 1, cc, i)
        y0, y1 = tpr[i & 1]
        a(f"v_mul_f32 v{y0}, v{xr+i}, v{wr}")
        a(f"v_mul_f32 v{y1}, v{xi+i}, v{wr}")
        a(f"v_fma_f32 v{y0}, -v{xi+i}, v{wi}, v{y0}")
        a(f"v_fmac_f32 v{y1}, v{xr+i}, v{wi}")
        a(f"v_cvt_pk_bf16_f32 v{YO[n]+i}, v{y1}, v{y0}")
    a(f"{M16} {vr(dpt(cc,ab,0),4)}, {vr(MT+8*cc,4)}, {vr(YO[n],4)}, 0")
    a(f"{M16} {vr(dpt(cc,ab,1),4)}, {vr(MT+8*cc+4,4)}, {vr(YO[n],4)}, 0")
a("s_and_b32 s29, s2, 0xfb")
a("s_cmp_eq_u32 s29, 0")
a("s_cbranch_scc1 L_sp")
for cc in range(2):
    for ab in range(2): wmul(cc, ab)
a.label("L_spb")
XP2 = X
P2 = D
for ab in range(2):
    for ip in range(2):
        for cc in range(2):
            for bb in range(2):
                i = 2 * ip + bb
                a(f"v_cvt_pk_bf16_f32 v{P2+8*ab+4*ip+2*bb+cc}, v{dpt(cc,ab,0)+i}, v{dpt(cc,ab,1)+i}")
        a(f"ds_write_b128 v{vw2}, {vr(P2+8*ab+4*ip,4)} offset:{2048*ab+ip*256}")
a("s_waitcnt lgkmcnt(0)")
a("s_barrier")
O2 = WW + 16
for bb in range(2):
    for ab in range(2):
        for h in range(2):
            a(f"ds_read_b64 {vr(O2+8*bb+4*ab+2*h,2)}, v{vr2} offset:{WR*h+2048*ab+bb*8}")
E = [M2, M2 + 8, MT, MT + 8]
for bb in range(2):
    for ab in range(2):
        n = 2 * bb + ab
        a(f"s_waitcnt lgkmcnt({6-2*n})")
        a(f"{M16} {vr(E[n],4)}, {vr(Fr,4)}, {vr(O2+4*n,4)}, 0")
        a(f"{M16} {vr(E[n]+4,4)}, {vr(Fm,4)}, {vr(O2+4*n,4)}, 0")
SO = WW
for bb in range(2):
    for i in range(4):
        for ab in range(2):
            n = 2 * bb + ab
            a(f"v_cvt_pk_bf16_f32 v{SO+8*bb+2*i+ab}, v{E[n]+4+i}, v{E[n]+i}")
        a(f"buffer_store_dwordx2 {vr(SO+8*bb+2*i,2)}, v{vS}, s[16:19], {'s30' if i < 2 else 's31'} offen offset:{(i&1)*2048+bb*128} sc1")
ts(10)
setflag(t[0], "s9", "s49")
a("s_setprio 0")
V = VAlloc(8)
vg_ = vg; vc_ = vc
t = [V() for _ in range(6)]
vS3 = 1; vN = 2; vF3 = 7; AP8 = V(); AMx = V()
MR = V(16, 4); MI = V(16, 4); X = V(16, 4)
BA = V(24, 4); BB = V(24, 4); TCh = V(8); TSh = V(8)
assert V.n <= 128, V.n
D1r = BA + 8; D1i = BB + 8; D2r = BA; D2i = BB
SBt = [D1r, D1r + 4, D1r + 8, D1r + 12, X]
DDt = [D1i, D1i + 4, D1i + 8, D1i + 12, X + 4]
MA = X + 8; AP = X + 12; AM = [X + 13, X + 14, X + 15, AMx]
CS = D1r; GG = D1i
a(f"v_bfe_u32 v{t[0]}, v0, 2, 2"); a(f"v_lshlrev_b32 v{t[1]}, 4, v{t[0]}")
a(f"v_add_u32 v{t[1]}, {L_G}, v{t[1]}")
a(f"ds_read_b128 {vr(GG,4)}, v{t[1]}")
a(f"v_lshlrev_b32 v{t[1]}, 3, v{vc_}"); a(f"v_lshl_or_b32 v{vS3}, v{vg_}, 21, v{t[1]}")
a("s_xor_b32 s50, s3, 4")
a("s_lshl_b32 s8, s2, 7"); a(f"s_add_u32 s8, s8, {hx(S_OFF)}")
a("s_lshl_b32 s11, s50, 15"); a("s_add_u32 s8, s8, s11")
a(f"v_bfe_u32 v{t[1]}, v0, 2, 3"); a(f"v_and_b32 v{t[2]}, 3, v0"); a(f"v_lshlrev_b32 v{t[2]}, 3, v{t[2]}")
a(f"v_lshl_add_u32 v{t[1]}, v{t[1]}, 5, v{t[2]}"); a(f"v_add_u32 v{t[1]}, s50, v{t[1]}")
a("s_cmp_eq_u32 s50, 0"); a("s_cselect_b32 s24, 0x00010001, 0")
a(f"v_lshlrev_b32 v{vF3}, 10, v{t[1]}")
a("s_bfe_u32 s11, s2, 0x30001"); a("s_lshl_b32 s11, s11, 7"); a(f"s_add_u32 s11, s11, {hx(F2_OFF)}")
vsg = X; ve = X + 1; vstep = X + 2; vpe = X + 3; vpo = X + 4; vk = X + 5; vpl = X + 6
a(f"v_bfe_u32 v{t[1]}, v0, 1, 1"); a(f"v_cvt_f32_u32 v{vsg}, v{t[1]}")
a(f"v_mul_f32 v{vsg}, -0.5, v{vsg}"); a(f"v_add_f32 v{vsg}, {fl(0.25)}, v{vsg}")
a(f"v_and_b32 v{t[1]}, 1, v0"); a(f"v_cvt_f32_u32 v{t[1]}, v{t[1]}")
a(f"v_mul_f32 v{ve}, v{t[1]}, v{vsg}")
a(f"v_lshlrev_b32 v{t[0]}, 9, v{t[0]}"); a(f"v_add_u32 v{t[0]}, s2, v{t[0]}")
a(f"v_cvt_f32_u32 v{vstep}, v{t[0]}"); a(f"v_mul_f32 v{vstep}, {hx(f2u(-1/2048))}, v{vstep}")
a(f"v_cvt_f32_u32 v{t[2]}, v{vg_}"); a(f"v_add_f32 v{t[2]}, v{t[2]}, v{t[2]}")
a(f"v_fma_f32 v{vpe}, v{t[2]}, v{vstep}, v{ve}")
a(f"v_sub_f32 v{vpo}, v{vpe}, v{vsg}")
a(f"v_fmamk_f32 v{vpo}, v{t[2]}, {hx(f2u(-0.125))}, v{vpo}")
for lo in range(2):
    if lo:
        a(f"v_add_f32 v{vpe}, v{vpe}, v{vstep}")
        a(f"v_add_f32 v{vpo}, v{vpo}, v{vstep}"); a(f"v_add_f32 v{vpo}, {hx(f2u(-0.125))}, v{vpo}")
    a(f"v_cos_f32 v{CS+4*lo}, v{vpe}"); a(f"v_sin_f32 v{CS+4*lo+1}, v{vpe}")
    a(f"v_cos_f32 v{CS+4*lo+2}, v{vpo}"); a(f"v_sin_f32 v{CS+4*lo+3}, v{vpo}")
a("s_lshl_b32 s25, s50, 4")
a(f"v_lshlrev_b32 v{vpl}, 12, v{vg_}")
a(f"v_add_u32 v{vk}, s25, v{vc_}")
a(f"v_and_b32 v{t[3]}, 14, v{vk}"); a(f"v_lshl_or_b32 v{t[3]}, v{t[3]}, 3, v{vpl}")
a(f"v_and_b32 v{t[4]}, 31, v{vk}"); a(f"v_lshl_or_b32 v{t[3]}, v{t[4]}, 7, v{t[3]}")
a(f"v_bfe_u32 v{t[4]}, v{vk}, 5, 2"); a(f"v_lshl_or_b32 v{AP}, v{t[4]}, 2, v{t[3]}")
a(f"v_sub_u32 v{t[5]}, 0, v{vk}")
a(f"v_and_b32 v{t[4]}, 31, v{t[5]}"); a(f"v_lshl_or_b32 v{t[3]}, v{t[4]}, 7, v{vpl}")
a(f"v_and_b32 v{t[4]}, 14, v{t[5]}"); a(f"v_lshl_or_b32 v{t[3]}, v{t[4]}, 3, v{t[3]}")
a(f"v_lshrrev_b32 v{t[5]}, 3, v{t[5]}")
for tt in range(4):
    if tt: a(f"v_subrev_u32 v{t[5]}, 16, v{t[5]}")
    a(f"v_and_b32 v{t[4]}, 0x7c, v{t[5]}")
    a(f"v_xor_b32 v{AM[tt]}, v{t[4]}, v{t[3]}")
a("s_mov_b32 exec_lo, s24"); a("s_mov_b32 exec_hi, s24")
a(f"v_or_b32 v{AM[0]}, 64, v{vpl}")
a("s_mov_b64 exec, -1")
a("s_waitcnt lgkmcnt(0)")
for lo in range(2):
    for ab in range(2):
        a(f"v_mul_f32 v{t[0]}, v{GG+ab}, v{CS+4*lo}"); a(f"v_mul_f32 v{t[1]}, v{GG+ab}, v{CS+4*lo+1}")
        a(f"v_fmac_f32 v{t[0]}, v{GG+2+ab}, v{CS+4*lo+2}"); a(f"v_fmac_f32 v{t[1]}, v{GG+2+ab}, v{CS+4*lo+3}")
        a(f"v_cvt_pk_bf16_f32 v{MA+2*lo+ab}, v{t[0]}, v{t[1]}")
a("s_cmp_eq_u32 s3, 4")
a("s_cbranch_scc1 L_m0")
a("s_cmp_ge_u32 s3, 4")
a("s_cbranch_scc1 L_p3b")
TC = lambda k: BA + k if k < 8 else TCh + k - 8
TS_ = lambda k: BB + k if k < 8 else TSh + k - 8
vb = X; vo = X + 1
a(f"v_cvt_f32_u32 v{vb}, v{vn}"); a(f"v_cvt_f32_u32 v{vo}, v{vL5}")
a(f"v_mul_f32 v{vb}, {fl(1/32)}, v{vb}"); a(f"v_mul_f32 v{vo}, 4.0, v{vo}"); a(f"v_mul_f32 v{vo}, v{vb}, v{vo}")
for i in range(16):
    kc = 8 * (i // 4) + i % 4
    if kc == 0: a(f"v_mov_b32 v{t[0]}, v{vo}")
    else: a(f"v_fmamk_f32 v{t[0]}, v{vb}, {hx(f2u(float(kc)))}, v{vo}")
    a(f"v_cos_f32 v{t[1]}, v{t[0]}"); a(f"v_sin_f32 v{t[2]}, v{t[0]}")
    a(f"v_mul_f32 v{t[0]}, {fl(1/32)}, v{t[0]}")
    a(f"v_cvt_pk_bf16_f32 v{MR+i}, v{t[1]}, -v{t[2]}")
    a(f"v_cvt_pk_bf16_f32 v{MI+i}, v{t[2]}, v{t[1]}")
    a(f"v_cos_f32 v{TC(i)}, v{t[0]}"); a(f"v_sin_f32 v{TS_(i)}, v{t[0]}")
a.label("L_p3b")
ts(11)
poll("L_poll2", vF3, t[0], "s11", "s49")
ts(12)
for tt in range(4):
    for lo in range(2):
        a(f"s_add_u32 s26, s8, {hx(tt*8*32768 + lo*(1<<20))}")
        a(f"buffer_load_dwordx2 {vr(SBt[tt]+2*lo,2)}, v{vS3}, s[16:19], s26 offen sc1")
MA0 = MR
def fin(tt):
    d = DDt[tt]
    if tt == 0:
        a("s_mov_b32 exec_lo, s24"); a("s_mov_b32 exec_hi, s24")
        for k in range(4): a(f"v_mov_b32 v{d+k}, v{DDt[4]+k}")
        a("s_mov_b64 exec, -1")
    a(f"v_cvt_pk_bf16_f32 v{d}, v{d}, v{d+1}")
    a(f"v_cvt_pk_bf16_f32 v{d+1}, v{d+2}, v{d+3}")
    if tt: a(f"v_xor_b32 v{t[tt]}, {tt<<4}, v{AP}")
    a(f"ds_write_b32 v{t[tt] if tt else AP}, v{d}")
    a(f"ds_write_b32 v{AM[tt]}, v{d+1}")
for tt in range(4):
    a(f"s_waitcnt vmcnt({max(0, 6-2*tt)})")
    a(f"{M16} {vr(DDt[tt],4)}, {vr(MA,4)}, {vr(SBt[tt],4)}, 0")
    if tt == 0: a(f"{M16} {vr(DDt[4],4)}, {vr(MA0,4)}, {vr(SBt[0],4)}, 0")
    if tt >= 1: fin(tt - 1)
fin(3)
vst = vS3
a(f"v_bfe_u32 v{t[4]}, v{vn}, 1, 3"); a(f"v_xor_b32 v{t[4]}, v{t[4]}, v{vL5}"); a(f"v_lshlrev_b32 v{t[4]}, 4, v{t[4]}")
a(f"v_lshl_or_b32 v{t[4]}, v{vn}, 7, v{t[4]}"); a("s_lshl_b32 s26, s51, 12")
a("s_waitcnt lgkmcnt(0)")
a(f"v_add_u32 v{t[0]}, s26, v{t[4]}")
for q in range(1, 4): a(f"v_xor_b32 v{t[q]}, {32*q}, v{t[0]}")
a(f"v_lshlrev_b32 v{t[4]}, 4, v{vL5}"); a(f"v_lshl_or_b32 v{vst}, v{vn}, 6, v{t[4]}")
srd(12, 94, 2048 * 2048)
a("s_add_u32 s30, s22, 0x80000")
a("s_barrier")
a("s_cmp_ge_u32 s3, 4")
a("s_cbranch_scc1 L_hx")
for q in range(4): a(f"ds_read_b128 {vr(X+4*q,4)}, v{t[q]}")
for q in range(4):
    a(f"s_waitcnt lgkmcnt({3-q})")
    a(f"{M32} {vr(D1r,16)}, {vr(X+4*q,4)}, {vr(MR+4*q,4)}, {'0' if q == 0 else vr(D1r,16)}")
    a(f"{M32} {vr(D1i,16)}, {vr(X+4*q,4)}, {vr(MI+4*q,4)}, {'0' if q == 0 else vr(D1i,16)}")
def p2m(q):
    a(f"{M32} {vr(D2r,16)}, {vr(X+4*q,4)}, {vr(MR+4*q,4)}, {'0' if q == 0 else vr(D2r,16)}")
    a(f"{M32} {vr(D2i,16)}, {vr(X+4*q,4)}, {vr(MI+4*q,4)}, {'0' if q == 0 else vr(D2i,16)}")
for q in range(4):
    for e in range(4):
        k = 4 * q + e
        a(f"v_mul_f32 v{t[0]}, v{D1r+k}, v{TC(k)}")
        a(f"v_mul_f32 v{t[1]}, v{D1i+k}, v{TC(k)}")
        a(f"v_fma_f32 v{t[0]}, -v{D1i+k}, v{TS_(k)}, v{t[0]}")
        a(f"v_fmac_f32 v{t[1]}, v{D1r+k}, v{TS_(k)}")
        a(f"v_cvt_pk_bf16_f32 v{X+k}, v{t[0]}, v{t[1]}")
        if q == 2 and e == 1: p2m(1)
    if q == 1: p2m(0)
    if q >= 2: p2m(q)
O = MR
for r, (Dx, so) in enumerate(((D2r, "s22"), (D2i, "s30"))):
    for c2 in range(2):
        o = O + 8 * r + 4 * c2
        for e in range(4):
            a(f"v_cvt_pk_bf16_f32 v{o+e}, v{Dx+8*c2+2*e}, v{Dx+8*c2+2*e+1}")
        a(f"v_permlane32_swap_b32 v{o}, v{o+2}")
        a(f"v_permlane32_swap_b32 v{o+1}, v{o+3}")
        a(f"buffer_store_dwordx4 {vr(o,4)}, v{vst}, s[12:15], {so} offen offset:{32*c2}")
a.label("L_fin")
stamp_end(32)
a.label("L_end")
a("s_endpgm")
a.label("L_hx")
a("s_lshl_b32 s26, s2, 3"); a("s_add_u32 s26, s26, s3")
a("s_cmp_lg_u32 s26, 4")
a("s_cbranch_scc1 L_fin")
a(f"s_mov_b32 s26, {hx(EP_OFF)}")
setflag(8, "s26", "s49")
a("s_branch L_fin")
a.label("L_m0")
a.hist = []
q_ = [MI + k for k in range(16)]
gaa = q_[0]; gbb = q_[1]; ph = q_[2]; st_ = q_[3]; c_ = q_[4]; s__ = q_[5]; al = q_[6]; be = q_[7]
a(f"v_and_b32 v{t[0]}, 1, v0"); a(f"v_cmp_eq_u32 vcc, 1, v{t[0]}")
a(f"v_bfe_u32 v{t[1]}, v0, 2, 2"); a(f"v_lshl_or_b32 v{t[1]}, v{t[1]}, 1, v{t[0]}")
a(f"v_cndmask_b32 v{gaa}, v{GG}, v{GG+2}, vcc"); a(f"v_cndmask_b32 v{gbb}, v{GG+1}, v{GG+3}, vcc")
a(f"v_lshlrev_b32 v{t[1]}, 8, v{t[1]}"); a(f"v_add_u32 v{t[1]}, s2, v{t[1]}")
a(f"v_cvt_f32_u32 v{st_}, v{t[1]}"); a(f"v_mul_f32 v{st_}, {hx(f2u(1/2048))}, v{st_}")
a(f"v_cvt_f32_u32 v{ph}, v{vg_}"); a(f"v_add_f32 v{ph}, v{ph}, v{ph}"); a(f"v_mul_f32 v{ph}, v{ph}, v{st_}")
a(f"v_bfe_u32 v{t[2]}, v0, 1, 1")
a(f"v_lshrrev_b32 v{t[3]}, 1, v{vg_}"); a(f"v_cmp_eq_u32 s[4:5], v{t[2]}, v{t[3]}")
a(f"v_and_b32 v{t[3]}, 1, v{vg_}"); a(f"v_cmp_eq_u32 s[6:7], 0, v{t[3]}")
a(f"v_cmp_eq_u32 s[14:15], 0, v{t[2]}")
a(f"v_cndmask_b32 v{q_[8]}, 0, v{gaa}, s[4:5]"); a(f"v_cndmask_b32 v{q_[9]}, 0, v{gbb}, s[4:5]")
a(f"v_mul_f32 v{q_[10]}, {fl(0.25)}, v{gaa}"); a(f"v_mul_f32 v{q_[11]}, {fl(0.25)}, v{gbb}")
for lo in range(2):
    if lo: a(f"v_add_f32 v{ph}, v{ph}, v{st_}")
    a(f"v_cos_f32 v{c_}, v{ph}"); a(f"v_sin_f32 v{s__}, v{ph}")
    for ab in range(2):
        if lo == 0:
            if ab == 0:
                a(f"v_cndmask_b32 v{al}, 0, v{q_[10]}, s[14:15]"); a(f"v_cndmask_b32 v{be}, 0, v{q_[11]}, s[14:15]")
            else:
                a(f"v_cndmask_b32 v{al}, v{q_[10]}, 0, s[14:15]"); a(f"v_cndmask_b32 v{be}, v{q_[11]}, 0, s[14:15]")
            a(f"v_cndmask_b32 v{al}, v{q_[8+ab]}, v{al}, s[6:7]"); a(f"v_cndmask_b32 v{be}, 0, v{be}, s[6:7]")
            a(f"v_mul_f32 v{t[0]}, v{al}, v{c_}"); a(f"v_fmac_f32 v{t[0]}, v{be}, v{s__}")
            a(f"v_mul_f32 v{t[1]}, v{be}, v{c_}"); a(f"v_fma_f32 v{t[1]}, -v{al}, v{s__}, v{t[1]}")
            a(f"v_cvt_pk_bf16_f32 v{MA0+2*lo+ab}, v{t[0]}, v{t[1]}")
        else:
            a(f"v_mul_f32 v{t[0]}, v{q_[8+ab]}, v{c_}"); a(f"v_mul_f32 v{t[1]}, v{q_[8+ab]}, v{s__}")
            a(f"v_cvt_pk_bf16_f32 v{MA0+2*lo+ab}, v{t[0]}, -v{t[1]}")
a("s_branch L_p3b")
a.label("L_el")
a.hist = []
a(f"v_lshlrev_b32 v{vEa}, 6, v{vg}"); a(f"v_add_u32 v{vEa}, s29, v{vEa}")
a("s_mov_b32 exec_lo, s52"); a("s_mov_b32 exec_hi, s52")
for cc in range(2):
    for i in range(4):
        for ab in range(2):
            a(f"ds_read_b64 {vr(Wi(2*ab,cc,i),2)}, v{vEa} offset:{256*cc+16*i+8*ab}")
a("s_mov_b64 exec, -1")
a("s_branch L_elb")
a.label("L_sp")
a.hist = []
X = XP2
ts(3)
a("s_lshr_b32 s29, s2, 2"); a("s_lshl_b32 s10, s3, 1"); a("s_add_u32 s29, s29, s10"); a("s_sub_u32 s29, 16, s29")
for cc in range(2):
    a(f"s_sub_u32 s10, s29, {cc}"); a("s_and_b32 s10, s10, 15")
    a("s_lshr_b32 s11, s10, 1"); a("s_lshl_b32 s11, s11, 8"); a("s_and_b32 s10, s10, 1"); a("s_lshl_b32 s10, s10, 3"); a("s_add_u32 s10, s10, s11")
    a(f"v_lshlrev_b32 v{tpr[0][cc]}, 12, v{vg}"); a(f"v_add_u32 v{tpr[0][cc]}, s10, v{tpr[0][cc]}")
for k in range(8): a(f"v_mov_b32 v{TB+k}, 0")
a("s_mov_b32 exec_lo, 0x00010001"); a("s_mov_b32 exec_hi, 0x00010001")
for cc in range(2):
    for h in range(2):
        a(f"ds_read_b64 {vr(TB+4*cc+2*h,2)}, v{tpr[0][cc]} offset:{h*2048}")
a("s_mov_b32 s10, 0x80000000"); a("s_mov_b32 s11, 0x80008000")
a("s_waitcnt lgkmcnt(0)")
for k in range(8): a(f"v_xor_b32 v{TB+k}, s10, v{TB+k}")
a("s_mov_b64 exec, -1")
ts(4)
a("s_cmp_lg_u32 s2, 0")
a("s_cbranch_scc1 L_sp4")
def sp_body(mats):
    def acc(cc):
        a(f"{M16} {vr(X+8*cc,4)}, {vr(mats[cc],4)}, {vr(TB+4*cc,4)}, {vr(X+8*cc,4)}")
        a(f"{M16} {vr(X+8*cc+4,4)}, {vr(mats[cc]+4,4)}, {vr(TB+4*cc,4)}, {vr(X+8*cc+4,4)}")
    acc(0); acc(1)
    a("s_mov_b32 exec_lo, 0x00010001"); a("s_mov_b32 exec_hi, 0x00010001")
    for k in range(8): a(f"v_xor_b32 v{TB+k}, s11, v{TB+k}")
    a("s_mov_b64 exec, -1")
    wmul(0, 0); acc(0); acc(0)
    wmul(1, 0); acc(1); acc(1)
    wmul(0, 1)
    wmul(1, 1)
    ts(6)
    a("s_nop 7")
    a("s_branch L_spb")
YO = [PKD, PKD, PKD + 4, PKD + 4]
sp_body([M2, M2 + 8])
a.label("L_sp4")
a.hist = []
a("s_nop 1")
sp_body([M2 + 8, MX])

nv = (a.maxv + 1 + 7) // 8 * 8
out = "; gated_mix spectral gfnet: persistent MFMA FFT pipeline (generated by gen5.py)\n"
out += f"; @launch grid=(256,1,1) block=(512,1,1) lds={LDS_BYTES}\n"
out += '.amdgcn_target "amdgcn-amd-amdhsa--gfx950"\n.text\n'
out += f".globl {NAME}\n.p2align 8\n.type {NAME},@function\n" + a.text() + ".rept 96\n    s_endpgm\n.endr\nL_code_end:\n"
out += f""".section .rodata,"a"
.p2align 6
.amdhsa_kernel {NAME}
  .amdhsa_next_free_vgpr {nv}
  .amdhsa_next_free_sgpr {min(102, a.maxs + 1)}
  .amdhsa_accum_offset {nv}
  .amdhsa_group_segment_fixed_size 0
  .amdhsa_kernarg_size 80
  .amdhsa_user_sgpr_count 2
  .amdhsa_user_sgpr_kernarg_segment_ptr 1
  .amdhsa_system_sgpr_workgroup_id_x 1
  .amdhsa_float_denorm_mode_32 3
.end_amdhsa_kernel
"""
sys.stderr.write(f"vgpr {a.maxv+1} sgpr {a.maxs+1} lines {len(a.lines)} nops {a.nops}\n")
print(out)
```

```python
import sys
from asmlib import *
NAME = "gated_mix__spectral_gfnet__spectral_gfnet__prompt_kernel"
TSB = 16512
S_OFF = 0x500000
F1_OFF = 0xE20000
F2_OFF = 0xE80000
EP_OFF = 0xEF0000
WS_SIZE = 0xF00000
WBYTES = 2048 * 1026
M32 = "v_mfma_f32_32x32x16_bf16"
M16 = "v_mfma_f32_16x16x32_bf16"
OPT = set(sys.argv[1:])
ST = "stamps" in OPT
WSZ = 0x10000000 if ST else WS_SIZE
L_A = 0; L_W = 16384; L_P = L_W; WR = 6144; L_G = 65536; L_N = 65664; L_C = 65920; L_E = 65936; LDS_BYTES = 65936 + 4096
def optint(pfx, d):
    for o in OPT:
        if o.startswith(pfx) and o[len(pfx):].isdigit(): return int(o[len(pfx):])
    return d
SLEEP = optint("sl", 1); PFAT = optint("pf", 8); NWG = optint("nwg", 0)
SPIN_MAX = 400000
NTX = " nt" if "ntx" in OPT else ""
NTW = " nt" if "ntw" in OPT else ""
PLF = "sc0 sc1" if "psys" in OPT else ("sc1 nt" if "pnt" in OPT else ("sc0 sc1 nt" if "psysnt" in OPT else "sc1"))
FSF = "sc0 sc1" if "fsys" in OPT else "sc1"
a = Asm()
def srd(d, base, size):
    a(f"s_mov_b32 s{d}, s{base}"); a(f"s_mov_b32 s{d+1}, s{base+1}")
    a(f"s_mov_b32 s{d+2}, {hx(size)}"); a(f"s_mov_b32 s{d+3}, 0x00020000")
NST = 14
def ts(k):
    if ST:
        a(f"s_memrealtime s[{60+2*k}:{61+2*k}]")
        a("s_waitcnt lgkmcnt(0)")
def stamp_end(vt):
    if not ST: return
    a("s_waitcnt vmcnt(0)")
    ts(NST - 1)
    for k in range(16): a(f"v_mov_b32 v{vt+k}, {'s%d' % (60+2*k) if k < NST else '0'}")
    a("s_lshl_b32 s96, s3, 6"); a("s_lshl_b32 s97, s2, 9"); a("s_add_u32 s96, s96, s97")
    a(f"s_add_u32 s96, s96, 0x3000000")
    a(f"v_mov_b32 v{vt+16}, 0")
    a("s_mov_b64 exec, 1")
    amp = optint("amp", -1)
    if amp >= 0:
        a("s_lshl_b32 s4, s2, 3"); a("s_add_u32 s4, s4, s3"); a("s_cmp_lg_u32 s4, %d" % (72 + optint("aw", 0))); a("s_cbranch_scc1 L_end")
        a(f"s_sub_u32 s4, s{60+2*amp}, s60"); a("s_mul_i32 s4, s4, 10"); a(f"s_add_u32 s4, s4, s{60+2*(NST-1)}")
        a.label("L_amp")
        a("s_memrealtime s[6:7]"); a("s_waitcnt lgkmcnt(0)")
        a("s_sub_u32 s5, s6, s4"); a("s_cmp_lt_i32 s5, 0"); a("s_cbranch_scc1 L_amp")
        return
    if "dbg" in OPT:
        a("s_load_dwordx2 s[4:5], s[0:1], 64")
        a("s_waitcnt lgkmcnt(0)")
        a("s_mov_b32 s6, 256"); a("s_mov_b32 s7, 0x00020000")
        a(f"v_not_b32 v{vt+14}, v{vt}")
        for k in range(15):
            a(f"buffer_atomic_umax v{vt+k}, v{vt+16}, s[4:7], 0 offen offset:{4*k}")
        return
    for q in range(4): a(f"buffer_store_dwordx4 {vr(vt+4*q,4)}, v{vt+16}, s[16:19], s96 offen offset:{16*q}")
def poll(lbl, vaddr, vtmp, soff, tag):
    a("s_mov_b32 s58, 0")
    a("s_mov_b32 exec_hi, 0")
    a.label(lbl)
    a(f"buffer_load_dword v{vtmp}, v{vaddr}, s[16:19], {soff} offen {PLF}")
    a("s_add_u32 s58, s58, 1")
    a("s_waitcnt vmcnt(0)")
    a(f"v_cmp_ne_u32 vcc, {tag}, v{vtmp}")
    a(f"s_cmp_gt_u32 s58, {SPIN_MAX}")
    a(f"s_cbranch_scc1 {lbl}_d")
    a("s_and_b64 exec, exec, vcc")
    a(f"s_cbranch_execz {lbl}_d")
    if SLEEP: a(f"s_sleep {SLEEP}")
    a(f"s_branch {lbl}")
    a.label(lbl + "_d")
    a("s_mov_b64 exec, -1")
def setflag(vtmp, soff, tag):
    a(f"v_mov_b32 v{vtmp}, {tag}"); a(f"v_lshlrev_b32 v{vtmp+1}, 2, v0")
    a("s_waitcnt vmcnt(0)")
    a("s_mov_b32 exec_hi, 0")
    a(f"buffer_store_dword v{vtmp}, v{vtmp+1}, s[16:19], {soff} offen {FSF}")
    a("s_mov_b32 exec_hi, -1")

a.label(NAME)
a.label("L_code_start")
a("s_cmp_ge_u32 s2, 256")
a("s_cbranch_scc1 L_end")
if ST:
    a("s_memrealtime s[60:61]")
    for k in range(1, NST): a(f"s_mov_b32 s{60+2*k}, 0")
a("s_load_dwordx4 s[4:7], s[0:1], 0")
a("s_load_dwordx2 s[20:21], s[0:1], 72")
a("s_load_dwordx2 s[28:29], s[0:1], 16")
a("s_load_dwordx8 s[88:95], s[0:1], 32")
a("s_getpc_b64 s[12:13]")
a("s_and_b32 s12, s12, 0xffffff00")
a("s_mov_b32 s14, L_code_end-L_code_start")
a("s_mov_b32 s15, 0x00020000")
a("v_lshlrev_b32 v6, 6, v0")
a("s_bfe_u32 s8, s2, 0x20003")
a("v_lshrrev_b32 v1, 6, v0")
a("v_cmp_eq_u32 vcc, s8, v1")
a("s_and_saveexec_b64 s[10:11], vcc")
a("s_cbranch_execz L_cp")
if "nocp" not in OPT: a("buffer_load_ubyte v5, v6, s[12:15], 0 offen")
a.label("L_cp")
a("s_mov_b64 exec, -1")
a("v_and_b32 v0, 63, v0")
a("v_readfirstlane_b32 s3, v1")
vl16 = 2; vn = 3; vL5 = 4; vE = 5
a(f"v_lshlrev_b32 v{vl16}, 4, v0")
a(f"v_and_b32 v{vn}, 31, v0")
a(f"v_lshrrev_b32 v{vL5}, 5, v0")
a("s_and_b32 s51, s3, 3")
a("s_lshl_b32 s22, s51, 9"); a("s_add_u32 s22, s22, s2"); a("s_lshl_b32 s22, s22, 11")
a("s_and_b32 s53, s2, 7"); a("s_lshl_b32 s53, s53, 5"); a("s_lshr_b32 s54, s2, 3"); a("s_add_u32 s53, s53, s54")
a("s_and_b32 s55, s2, 7"); a("s_mul_i32 s55, s55, 1026"); a("s_lshl_b32 s56, s54, 5"); a("s_add_u32 s55, s55, s56")
a("s_lshl_b32 s24, s51, 12")
a("s_lshl_b32 s57, s2, 10"); a(f"s_add_u32 s57, s57, {hx(F1_OFF)}")
a(f"s_mov_b32 s26, {hx(EP_OFF)}")
a("v_mov_b32 v7, 0")
a("s_waitcnt lgkmcnt(0)")
srd(16, 20, WSZ)
a(f"buffer_load_dword v{vE}, v7, s[16:19], s26 offen sc1")
for arr, p_ in enumerate((6, 28, 88, 90)): srd(32 + 4 * arr, p_, WBYTES)
def tags():
    a(f"v_readfirstlane_b32 s48, v{vE}")
    a("s_mul_i32 s48, s48, 0x9E3779B1"); a("s_add_u32 s48, s48, 0x7F4A7C15")
    a("s_xor_b32 s49, s48, 0x5bd1e995")
def arr_srd():
    a("s_cmp_eq_u32 s51, 0"); a("s_cselect_b32 s12, s32, s36"); a("s_cselect_b32 s13, s33, s37")
    a("s_cmp_eq_u32 s51, 2"); a("s_cselect_b32 s12, s40, s12"); a("s_cselect_b32 s13, s41, s13")
    a("s_cmp_eq_u32 s51, 3"); a("s_cselect_b32 s12, s44, s12"); a("s_cselect_b32 s13, s45, s13")
    a(f"s_mov_b32 s14, {hx(WBYTES)}"); a("s_mov_b32 s15, 0x00020000")
V2 = VAlloc(5)
vg = V2(); vc = V2(); vF = V2()
SC = V2(16, 4)
vS = V2(); vw1 = V2(); vr1 = V2(); vT = V2(); vTr = V2(); vWr = V2(); vw2 = V2(); vr2 = V2()
WW = V2(32, 4); TB = V2(8, 4)
Fr = V2(4, 4); Fm = V2(4, 4); M2 = V2(16, 4); MT = V2(16, 4); D = V2(16, 4)
assert V2.n <= 128, V2.n
vW = D; vEa = 2
Wi = lambda arr, cc, i: WW + 16 * cc + 8 * (arr >> 1) + 2 * i + (arr & 1)
MX = SC
L_GW = L_W + 16384
def p2_addr():
    t = [SC + k for k in range(6)]
    a(f"v_lshrrev_b32 v{vg}, 4, v0"); a(f"v_and_b32 v{vc}, 15, v0")
    a(f"v_lshrrev_b32 v{t[0]}, 2, v0"); a(f"v_mul_u32_u24 v{vT}, {16*TSB}, v{t[0]}")
    a(f"v_and_b32 v{t[0]}, 3, v0"); a(f"v_lshl_add_u32 v{vT}, v{t[0]}, 4, v{vT}")
    a("s_lshl_b32 s27, s3, 11")
    a(f"s_mul_i32 s23, s3, {WR}"); a(f"s_add_u32 s23, s23, {L_W}")
    a(f"v_bfe_u32 v{t[0]}, v0, 1, 4"); a(f"v_and_b32 v{t[1]}, 1, v0"); a(f"v_lshl_add_u32 v{t[0]}, v{t[0]}, 4, v{t[1]}")
    a(f"v_lshlrev_b32 v{vF}, 10, v{t[0]}")
    a("s_lshl_b32 s28, s3, 8")
    a("s_and_b32 s8, s2, 7"); a("s_lshl_b32 s8, s8, 7"); a("s_add_u32 s8, s8, s27"); a(f"s_add_u32 s8, s8, {hx(F1_OFF)}")
    a(f"v_lshlrev_b32 v{t[0]}, 4, v{vc}")
    a(f"v_lshl_or_b32 v{t[1]}, v{vg}, 9, v{t[0]}")
    a(f"v_add_u32 v{vw1}, s27, v{t[1]}"); a(f"v_add_u32 v{vw2}, s23, v{t[1]}")
    a(f"v_lshl_or_b32 v{vr1}, v{vg}, 12, v{t[0]}"); a(f"v_add_u32 v{vr1}, s28, v{vr1}")
    a(f"v_mul_u32_u24 v{vr2}, {2*WR}, v{vg}"); a(f"s_add_u32 s29, s28, {L_W}"); a(f"v_add3_u32 v{vr2}, v{vr2}, v{t[0]}, s29")
    if "x4" not in OPT:
        a(f"v_lshlrev_b32 v{t[0]}, 3, v{vc}"); a(f"v_lshl_or_b32 v{vS}, v{vg}, 13, v{t[0]}")
    else:
        a(f"v_lshlrev_b32 v{t[0]}, 4, v{vg}"); a(f"v_lshl_or_b32 v{vS}, v{vc}, 11, v{t[0]}")
def p2_item():
    t = [SC + k for k in range(6)]
    a(f"s_mul_i32 s24, s3, {2*TSB}"); a("s_lshl_b32 s26, s53, 6"); a("s_add_u32 s24, s24, s26")
    a(f"s_add_u32 s26, s24, {TSB}")
    a(f"v_lshlrev_b32 v{t[0]}, 2, v{vc}"); a(f"v_lshl_or_b32 v{vTr}, v{vg}, 8, v{t[0]}"); a(f"v_add_u32 v{vTr}, s27, v{vTr}")
    a("s_and_b32 s29, s55, 15"); a("s_add_u32 s29, s29, s23")
    a(f"v_mul_u32_u24 v{vWr}, 192, v{vg}"); a(f"v_lshl_add_u32 v{vWr}, v{vc}, 1, v{vWr}"); a(f"v_add_u32 v{vWr}, s29, v{vWr}")
    a("s_lshl_b32 s30, s53, 15"); a("s_add_u32 s30, s30, s28"); a(f"s_add_u32 s30, s30, {hx(S_OFF)}"); a("s_add_u32 s31, s30, 4096")
    a("s_lshl_b32 s9, s53, 10"); a("s_lshl_b32 s10, s3, 7"); a("s_add_u32 s9, s9, s10"); a(f"s_add_u32 s9, s9, {hx(F2_OFF)}")
    a(f"s_mul_i32 s50, s3, {2*TSB}"); a("s_and_b32 s29, s2, 7"); a("s_lshl_b32 s29, s29, 4"); a("s_add_u32 s50, s50, s29"); a("s_add_u32 s50, s50, 16384")
    a("s_cmp_eq_u32 s54, 0"); a("s_cselect_b32 s52, 0x00010001, 0")
    a(f"v_bfe_u32 v{t[0]}, v0, 4, 1"); a(f"v_lshl_add_u32 v{t[0]}, v{vc}, 4, v{t[0]}"); a(f"v_mul_u32_u24 v{vEa}, {TSB}, v{t[0]}")
    a("s_cselect_b32 s59, -1, 0")
def p2_const(dozero=True, hooks=()):
    hooks = list(hooks)
    def hook():
        if hooks: hooks.pop(0)()
    t = [SC + k for k in range(6)]
    vlf = SC + 6; vkf = SC + 7; vc0 = SC + 8; vlc = SC + 10; FA = SC + 12
    a(f"v_cvt_f32_u32 v{vlf}, v{vc}")
    a(f"v_cvt_f32_u32 v{vkf}, v{vg}"); a(f"v_mul_f32 v{vkf}, 4.0, v{vkf}")
    a(f"v_cvt_f32_u32 v{vc0}, s3"); a(f"v_mul_f32 v{vc0}, {fl(1/128)}, v{vc0}")
    a(f"v_mul_f32 v{vlc}, v{vlf}, v{vc0}")
    a(f"v_fmamk_f32 v{vlc+1}, v{vlf}, {hx(f2u(1/256))}, v{vlc}")
    a(f"v_mul_f32 v{vlf}, {fl(1/16)}, v{vlf}")
    z = iter(range(32))
    def zero(n):
        if not dozero:
            if n == 1: a("s_nop 0")
            return
        for _ in range(n):
            k = next(z, None)
            if k is not None: a(f"v_mov_b32 v{WW+k}, 0")
    def mat(ang):
        a(f"v_cos_f32 v{t[3]}, v{ang}"); a(f"v_sin_f32 v{t[4]}, v{ang}")
    def matfin(Mr, Mm):
        a(f"v_cvt_pk_bf16_f32 v{Mr}, v{t[3]}, v{t[4]}")
        a(f"v_cvt_pk_bf16_f32 v{Mm}, -v{t[4]}, v{t[3]}")
        hook()
    hook(); hook()
    for i in range(4):
        if i: a(f"v_add_f32 v{vkf}, 1.0, v{vkf}")
        a(f"v_mul_f32 v{FA+i}, v{vkf}, v{vlf}")
        mat(FA + i); zero(1); matfin(Fr + i, Fm + i)
    for i in range(3, -1, -1):
        a(f"v_fma_f32 v{t[0]}, v{vkf}, v{vc0}, v{FA+i}")
        a(f"v_fmamk_f32 v{t[1]}, v{vkf}, {hx(f2u(1/256))}, v{t[0]}")
        mat(t[0]); a(f"v_add_f32 v{t[2]}, v{FA+i}, v{vlc}"); matfin(M2 + i, M2 + 4 + i)
        mat(t[1]); a(f"v_add_f32 v{t[5]}, v{FA+i}, v{vlc+1}"); matfin(M2 + 8 + i, M2 + 12 + i)
        mat(t[2]); a(f"v_subrev_f32 v{vkf}, 1.0, v{vkf}"); matfin(MT + i, MT + 4 + i)
        mat(t[5]); zero(1); matfin(MT + 8 + i, MT + 12 + i)
    zero(32)
    a(f"v_add_f32 v{vc0}, {fl(1/128)}, v{vc0}")
    a(f"v_mov_b32 v{SC+9}, v{vkf}")
    for i in range(4):
        a(f"v_add_f32 v{SC+9}, 1.0, v{SC+9}")
        a(f"v_fma_f32 v{FA+i}, v{SC+9}, v{vc0}, v{FA+i}")
    for i in range(4):
        a(f"v_cos_f32 v{SC+10}, v{FA+i}"); a(f"v_sin_f32 v{SC+11}, v{FA+i}"); a("s_nop 0")
        a(f"v_cvt_pk_bf16_f32 v{MX+i}, v{SC+10}, v{SC+11}")
        a(f"v_cvt_pk_bf16_f32 v{MX+4+i}, -v{SC+11}, v{SC+10}")
def wvoff(dst, t0, t1):
    a(f"v_mul_u32_u24 v{t0}, 43, v0"); a(f"v_lshrrev_b32 v{t0}, 7, v{t0}")
    a(f"v_mul_u32_u24 v{t1}, 3, v{t0}"); a(f"v_sub_u32 v{t1}, v0, v{t1}")
    a(f"v_mul_u32_u24 v{dst}, {16*8*1026}, v{t0}"); a(f"v_lshl_add_u32 v{dst}, v{t1}, 4, v{dst}")
def wdma_list(vreg, adds, ccs=(0, 1)):
    ops = []
    for add in adds:
        def head(add=add):
            a(f"s_add_u32 s6, s3, {add}")
            a(f"s_mul_i32 s4, s6, {2*8*1026}"); a("s_add_u32 s4, s4, s55"); a("s_and_b32 s4, s4, 0xfffffff0")
            a(f"s_add_u32 s5, s4, {8*1026}")
            a(f"s_mul_i32 s6, s6, {WR}")
        for arr in range(4):
            for cc in ccs:
                def op(arr=arr, cc=cc, head=head):
                    if arr == 0 and cc == ccs[0]: head()
                    a("s_mov_b32 exec_hi, 0xffff")
                    a(f"s_add_u32 m0, s6, {L_W + 1536*arr + 768*cc}")
                    a(f"buffer_load_dwordx4 v{vreg}, {sr(32+4*arr,4)}, {'s4' if cc == 0 else 's5'} offen lds")
                    a("s_mov_b32 exec_hi, -1")
                ops.append(op)
    return ops
a(f"s_mov_b32 s56, {8*1026}")
a("s_cmp_ge_u32 s3, 4")
a("s_cbranch_scc1 L_h")
a("s_setprio 2")
srd(8, 4, 2048 * 2048)
a("s_add_u32 s30, s22, 0x80000")
a("s_mov_b32 m0, s24")
a(f"buffer_load_dwordx4 v{vl16}, s[8:11], s22 offen{NTX} lds")
a(f"buffer_load_dwordx4 v{vl16}, s[8:11], s22 offen offset:1024{NTX} lds")
a("s_add_u32 m0, s24, 2048")
a(f"buffer_load_dwordx4 v{vl16}, s[8:11], s30 offen{NTX} lds")
a(f"buffer_load_dwordx4 v{vl16}, s[8:11], s30 offen offset:1024{NTX} lds")
V = VAlloc(6)
vb = V(); vo = V(); vkn = V(); vtr = V(); vpf = V(); vj = V(); vpw = V(4); t = [V() for _ in range(6)]
srd(8, 92, 2048)
a("s_lshl_b32 s30, s51, 9"); a(f"s_add_u32 m0, s30, {L_GW}")
a("s_mov_b32 exec_hi, 0")
a(f"buffer_load_dwordx4 v{vl16}, s[8:11], s30 offen lds")
a("s_mov_b32 exec_hi, -1")
arr_srd()
a(f"v_and_b32 v{t[0]}, 7, v0"); a("s_lshl_b32 s30, s2, 3"); a(f"v_add_u32 v{t[0]}, s30, v{t[0]}")
a(f"v_bfe_i32 v{t[1]}, v0, 4, 1"); a(f"v_xor_b32 v{t[0]}, v{t[0]}, v{t[1]}"); a(f"v_sub_u32 v{t[0]}, v{t[0]}, v{t[1]}")
a(f"v_and_b32 v{t[0]}, 2047, v{t[0]}"); a(f"v_mul_u32_u24 v{t[2]}, 1026, v{t[0]}")
a(f"v_bfe_u32 v{t[1]}, v0, 3, 1"); a(f"v_lshl_add_u32 v{t[2]}, v{t[1]}, 10, v{t[2]}")
a(f"buffer_load_ushort v{vj}, v{t[2]}, s[12:15], 0 offen")
a("s_and_b32 s30, s2, 7"); a("s_lshl_b32 s31, s54, 6"); a("s_add_u32 s30, s30, s31"); a("s_mul_i32 s30, s30, 1026")
a(f"v_lshrrev_b32 v{t[0]}, 3, v0"); a(f"v_mul_u32_u24 v{t[2]}, {8*1026}, v{t[0]}")
a(f"v_and_b32 v{t[1]}, 7, v0"); a(f"v_lshl_add_u32 v{vpf}, v{t[1]}, 7, v{t[2]}")
vjunk = 1
def prefetch():
    a(f"buffer_load_ubyte v{vjunk}, v{vpf}, s[12:15], s30 offen{NTW}")
    a(f"buffer_load_ubyte v{vjunk}, v{vpt}, s[12:15], s30 offen offset:1024{NTW}")
NPF = 2
vpt = V()
a(f"v_and_b32 v{t[1]}, 1, v0"); a(f"v_lshl_add_u32 v{vpt}, v{t[1]}, 4, v{t[2]}")
if PFAT == 0: prefetch()
CC = V(8, 4); SS = V(8, 4); SN = V(8, 4); XR = V(8, 4); XI = V(8, 4)
BA = V(24, 4); BB = V(24, 4); TCh = V(8); TSh = V(8)
D1r = BA + 8; D1i = BB + 8; D2r = BA; D2i = BB
TC = lambda k: BA + k if k < 8 else TCh + k - 8
TS_ = lambda k: BB + k if k < 8 else TSh + k - 8
assert V.n <= 128, V.n
a(f"v_and_b32 v{t[0]}, 7, v0"); a(f"v_bfe_u32 v{t[1]}, v0, 3, 2")
a(f"v_lshl_or_b32 v{vkn}, v{t[0]}, 2, v{t[1]}")
a(f"v_cvt_f32_u32 v{vb}, v{vkn}"); a(f"v_cvt_f32_u32 v{vo}, v{vL5}")
a(f"v_mul_f32 v{vb}, {fl(1/32)}, v{vb}"); a(f"v_mul_f32 v{vo}, 4.0, v{vo}"); a(f"v_mul_f32 v{vo}, v{vb}, v{vo}")
for i in range(0, 16, 2):
    for e in range(2):
        kc = 8 * ((i + e) // 4) + (i + e) % 4
        if kc == 0: a(f"v_mov_b32 v{t[e]}, v{vo}")
        else: a(f"v_fmamk_f32 v{t[e]}, v{vb}, {hx(f2u(float(kc)))}, v{vo}")
    a(f"v_cos_f32 v{t[2]}, v{t[0]}"); a(f"v_cos_f32 v{t[3]}, v{t[1]}")
    a(f"v_sin_f32 v{t[4]}, v{t[0]}"); a(f"v_sin_f32 v{t[5]}, v{t[1]}")
    a(f"v_mul_f32 v{t[0]}, {fl(1/32)}, v{t[0]}"); a(f"v_mul_f32 v{t[1]}, {fl(1/32)}, v{t[1]}")
    a(f"v_cvt_pk_bf16_f32 v{CC+i//2}, v{t[2]}, v{t[3]}")
    a(f"v_cvt_pk_bf16_f32 v{SS+i//2}, v{t[4]}, v{t[5]}")
    a(f"v_cvt_pk_bf16_f32 v{SN+i//2}, -v{t[4]}, -v{t[5]}")
    a(f"v_cos_f32 v{TC(i)}, v{t[0]}"); a(f"v_cos_f32 v{TC(i+1)}, v{t[1]}")
    a(f"v_sin_f32 v{TS_(i)}, v{t[0]}"); a(f"v_sin_f32 v{TS_(i+1)}, v{t[1]}")
    if PFAT == i // 2 + 1: prefetch()
a(f"v_lshlrev_b32 v{vtr}, 8, v{vL5}")
a(f"v_bfe_u32 v{t[0]}, v0, 2, 2"); a(f"v_lshl_or_b32 v{vtr}, v{t[0]}, 6, v{vtr}")
a(f"v_bfe_u32 v{t[0]}, v0, 4, 1"); a(f"v_lshl_or_b32 v{vtr}, v{t[0]}, 5, v{vtr}")
a(f"v_and_b32 v{t[0]}, 3, v0"); a(f"v_lshl_or_b32 v{vtr}, v{t[0]}, 3, v{vtr}")
a(f"v_add_u32 v{vtr}, s24, v{vtr}")
a(f"v_and_b32 v{t[0]}, 7, v0"); a(f"v_bfe_u32 v{t[1]}, v0, 3, 2"); a(f"v_lshlrev_b32 v{t[1]}, 1, v{t[1]}")
a(f"v_xor_b32 v{t[0]}, v{t[0]}, v{t[1]}"); a(f"v_xor_b32 v{t[0]}, v{t[0]}, v{vL5}")
a(f"v_lshlrev_b32 v{t[0]}, 4, v{t[0]}")
a(f"v_lshl_or_b32 v{vpw}, v{vkn}, 7, v{t[0]}")
a(f"s_add_u32 s26, s24, {L_P}")
a(f"v_add_u32 v{vpw}, s26, v{vpw}")
for c in range(1, 4): a(f"v_xor_b32 v{vpw+c}, {32*c}, v{vpw}")
vet = vb
a(f"v_and_b32 v{t[0]}, 7, v0"); a(f"v_and_b32 v{t[1]}, 16, v0"); a(f"v_lshl_or_b32 v{t[0]}, v{t[0]}, 1, v{t[1]}")
a(f"v_bfe_u32 v{t[1]}, v0, 3, 1"); a(f"v_lshl_or_b32 v{t[0]}, v{t[1]}, 7, v{t[0]}")
a("s_lshl_b32 s30, s51, 5"); a(f"s_add_u32 s30, s30, {L_N}"); a(f"v_add_u32 v{vet}, s30, v{t[0]}")
ts(1)
a(f"s_waitcnt vmcnt({NPF if PFAT <= 8 else 0})")
ts(2)
tags()
a(f"ds_write_b16 v{vet}, v{vj}")
for h in range(2):
    for r, X in ((0, XR), (1, XI)):
        for tt in range(2):
            a(f"ds_read_b64_tr_b16 {vr(X+4*h+2*tt,2)}, v{vtr} offset:{r*2048+h*1024+tt*512}")
a("s_waitcnt lgkmcnt(8)")
a("s_barrier")
def cpass(R, I, Dr, Di, h, first):
    c0 = "0" if first else vr(Dr, 16); c1 = "0" if first else vr(Di, 16)
    a(f"{M32} {vr(Dr,16)}, {vr(R+4*h,4)}, {vr(CC+4*h,4)}, {c0}")
    a(f"{M32} {vr(Di,16)}, {vr(I+4*h,4)}, {vr(CC+4*h,4)}, {c1}")
    a(f"{M32} {vr(Dr,16)}, {vr(I+4*h,4)}, {vr(SS+4*h,4)}, {vr(Dr,16)}")
    a(f"{M32} {vr(Di,16)}, {vr(R+4*h,4)}, {vr(SN+4*h,4)}, {vr(Di,16)}")
a("s_waitcnt lgkmcnt(4)")
cpass(XR, XI, D1r, D1i, 0, True)
a("s_waitcnt lgkmcnt(0)")
cpass(XR, XI, D1r, D1i, 1, False)
for h in range(2):
    for i in range(8 * h, 8 * h + 8, 2):
        for e in range(2):
            k = i + e
            a(f"v_mul_f32 v{t[e]}, v{D1r+k}, v{TC(k)}")
            a(f"v_mul_f32 v{t[2+e]}, v{D1i+k}, v{TC(k)}")
            a(f"v_fmac_f32 v{t[e]}, v{D1i+k}, v{TS_(k)}")
            a(f"v_fma_f32 v{t[2+e]}, -v{D1r+k}, v{TS_(k)}, v{t[2+e]}")
        a(f"v_cvt_pk_bf16_f32 v{XR+i//2}, v{t[0]}, v{t[1]}")
        a(f"v_cvt_pk_bf16_f32 v{XI+i//2}, v{t[2]}, v{t[3]}")
    cpass(XR, XI, D2r, D2i, h, h == 0)
PK = CC
for c in range(4):
    for e in range(4):
        a(f"v_cvt_pk_bf16_f32 v{PK+4*c+e}, v{D2r+4*c+e}, v{D2i+4*c+e}")
    a(f"ds_write_b128 v{vpw+c}, {vr(PK+4*c,4)}")
a("s_waitcnt lgkmcnt(0)")
ts(3)
a("s_barrier")
a("s_setprio 0")
p2_addr()
p2_item()
wvoff(vW, SC, SC + 1)
ts(4)
a("s_barrier")
ts(5)
EARLY = "early" in OPT
SPLIT = "split" in OPT
p2_const(hooks=wdma_list(vW, [0, 4], (0,) if SPLIT else (0, 1)))
ts(6)
a("s_branch L_p2")
a.label("L_h")
a.hist = []
V = VAlloc(6)
t = [V() for _ in range(8)]
XN = V(16, 4); GW = V(8, 4)
vnat = V(); a(f"v_add_u32 v{vnat}, s24, v{vl16}")
MA = V(4, 4)
DMB = V(48, 4)
vu = DMB; vA = DMB + 1; vB1 = DMB + 2; vB2 = DMB + 3; vsg = DMB + 4
a(f"v_mov_b32 v{t[3]}, {L_C}"); a(f"v_mov_b32 v{t[4]}, 0")
a(f"ds_write_b32 v{t[3]}, v{t[4]}")
a(f"v_bfe_u32 v{t[0]}, v0, 3, 1"); a(f"v_bfe_u32 v{t[1]}, v0, 1, 1")
a(f"v_lshl_or_b32 v{t[0]}, v{t[0]}, 1, v{t[1]}")
a(f"v_and_or_b32 v{vu}, v0, 4, v{t[0]}")
a(f"v_cvt_f32_u32 v{vu}, v{vu}")
a(f"v_cvt_f32_u32 v{vsg}, v{vL5}")
a(f"v_fma_f32 v{vsg}, v{vsg}, -2.0, 1.0")
a(f"v_mul_f32 v{vA}, v{vu}, v{vsg}")
a(f"v_mul_f32 v{vA}, {fl(0.125)}, v{vA}")
a(f"v_and_b32 v{t[0]}, 1, v0"); a(f"v_cvt_f32_u32 v{t[0]}, v{t[0]}")
a(f"v_mul_f32 v{vB1}, v{t[0]}, v{vsg}"); a(f"v_mul_f32 v{vB1}, {fl(0.25)}, v{vB1}")
a(f"v_cvt_f32_u32 v{t[1]}, s2"); a(f"v_mul_f32 v{t[1]}, {fl(1/256)}, v{t[1]}")
a(f"v_fmac_f32 v{vB1}, v{t[1]}, v{vA}")
a(f"v_add_f32 v{vB2}, {fl(0.25)}, v{vB1}")
for pp in range(4):
    if pp == 0: a(f"v_mov_b32 v{t[0]}, v{vB1}")
    else: a(f"v_fmamk_f32 v{t[0]}, v{vA}, {hx(f2u(2.0*pp))}, v{vB1}")
    a(f"v_fmamk_f32 v{t[1]}, v{vA}, {hx(f2u(2.0*pp+1))}, v{vB2}")
    a(f"v_cos_f32 v{t[2]}, v{t[0]}"); a(f"v_cos_f32 v{t[3]}, v{t[1]}")
    a(f"v_sin_f32 v{t[4]}, v{t[0]}"); a(f"v_sin_f32 v{t[5]}, v{t[1]}")
    a(f"v_add_f32 v{t[2]}, v{t[2]}, v{t[3]}")
    a(f"v_add_f32 v{t[4]}, v{t[4]}, v{t[5]}")
    a(f"v_cvt_pk_bf16_f32 v{MA+pp}, v{t[2]}, v{t[4]}")
vmr = V(5); vk = DMB + 5; vneg = DMB + 6
a("s_lshl_b32 s30, s51, 7")
a(f"v_lshlrev_b32 v{t[0]}, 2, v{vn}")
a(f"v_sub_u32 v{vneg}, 0, v{vL5}")
for q in range(5):
    if q < 4: a(f"v_add3_u32 v{vk}, v{t[0]}, s30, {q}")
    else: a(f"v_add_u32 v{vk}, 512, v{t[0]}")
    a(f"v_xor_b32 v{vk}, v{vk}, v{vneg}"); a(f"v_add_u32 v{vk}, v{vk}, v{vL5}")
    a(f"v_bfe_u32 v{t[1]}, v{vk}, 5, 5")
    a(f"v_bfe_u32 v{t[2]}, v{vk}, 7, 3")
    a(f"v_xor_b32 v{t[3]}, v{vk}, v{t[1]}")
    a(f"v_and_b32 v{t[3]}, 3, v{t[3]}")
    a(f"v_bfe_u32 v{t[4]}, v{vk}, 4, 1")
    a(f"v_lshl_or_b32 v{t[3]}, v{t[3]}, 1, v{t[4]}")
    a(f"v_xor_b32 v{t[3]}, v{t[3]}, v{t[2]}")
    a(f"v_and_b32 v{t[4]}, 12, v{vk}")
    a(f"v_lshl_or_b32 v{t[4]}, v{t[3]}, 4, v{t[4]}")
    a(f"v_lshl_or_b32 v{vmr+q}, v{t[1]}, 7, v{t[4]}")
vts = V(); veo = V(); vet2 = V(); vsig = V(); ves = V()
a(f"v_lshlrev_b32 v{t[0]}, 13, v{vL5}"); a(f"v_lshl_or_b32 v{vts}, v{vn}, 4, v{t[0]}")
EV = DMB + 8
a(f"v_and_b32 v{t[0]}, 7, v0"); a(f"v_bfe_u32 v{t[1]}, v0, 3, 1")
a(f"v_lshlrev_b32 v{t[2]}, 3, v{t[1]}"); a(f"v_lshl_or_b32 v{ves}, v{t[0]}, 4, v{t[2]}")
a(f"v_and_b32 v{t[2]}, 3, v0"); a(f"v_cmp_eq_u32 vcc, 0, v{t[2]}")
a(f"v_lshrrev_b32 v{t[3]}, 2, v{t[0]}")
a(f"v_cvt_f32_u32 v{t[4]}, v{t[1]}"); a(f"v_fma_f32 v{t[4]}, v{t[4]}, -2.0, 1.0")
a(f"v_cndmask_b32 v{t[3]}, v{t[3]}, v{t[1]}, vcc")
a(f"v_cndmask_b32 v{vsig}, 0, v{t[4]}, vcc")
a(f"v_lshlrev_b32 v{t[0]}, 1, v{t[0]}"); a(f"v_lshl_or_b32 v{t[0]}, v{t[1]}, 6, v{t[0]}"); a(f"v_lshl_or_b32 v{t[0]}, v{t[3]}, 7, v{t[0]}")
a(f"v_add_u32 v{veo}, {L_N}, v{t[0]}"); a(f"v_xor_b32 v{vet2}, 64, v{veo}")
for k in range(8): a(f"v_mov_b32 v{EV+k}, 0")
a(f"s_mul_i32 s8, s2, {TSB}")
a("s_lshl_b32 s9, s51, 9"); a("s_add_u32 s9, s9, s8"); a("s_add_u32 s10, s9, 4096")
a("s_add_u32 s8, s8, 16384")
a("s_mov_b32 s11, 0xffff0000")
acc = V(4, 4); ones = V(); MB = XN; MB4 = GW
a(f"v_mov_b32 v{ones}, 0x3f803f80")
a(f"v_mov_b32 v{acc}, 0"); a(f"v_mov_b32 v{acc+2}, 0")
vWh = V()
wvoff(vWh, t[0], t[1])
assert V.n <= 128, V.n
a("s_waitcnt lgkmcnt(0)")
ts(1)
if EARLY and "e0" in OPT:
    for op in wdma_list(vWh, [0]): op()
a("s_barrier")
for r in range(2):
    for q in range(2):
        a(f"ds_read_b128 {vr(XN+8*r+4*q,4)}, v{vnat} offset:{r*2048+q*1024}")
a(f"ds_read_b128 {vr(GW,4)}, v{vl16} offset:{L_GW}")
a(f"ds_read_b128 {vr(GW+4,4)}, v{vl16} offset:{L_GW+1024}")
for k in range(4):
    a(f"ds_read_u16_d16_hi v{EV+k}, v{veo} offset:{16*k}")
    a(f"ds_read_u16_d16_hi v{EV+4+k}, v{vet2} offset:{16*k}")
a("s_waitcnt lgkmcnt(0)")
a(f"v_add_f32 v{EV+8}, v{EV}, v{EV+1}"); a(f"v_sub_f32 v{EV+9}, v{EV+2}, v{EV+3}")
a(f"v_add_f32 v{EV+4}, v{EV+4}, v{EV+5}"); a(f"v_sub_f32 v{EV+6}, v{EV+6}, v{EV+7}")
a(f"v_fma_f32 v{EV+8}, -v{vsig}, v{EV+6}, v{EV+8}"); a(f"v_fmac_f32 v{EV+9}, v{vsig}, v{EV+4}")
a(f"s_waitcnt vmcnt({8 if (EARLY and 'e0' in OPT) else 0})")
tags()
a("s_cmp_eq_u32 s51, 1"); a("s_cselect_b32 exec_lo, 0xffff, 0"); a("s_mov_b32 exec_hi, 0")
a(f"buffer_store_dwordx2 {vr(EV+8,2)}, v{ves}, s[16:19], s8 offen sc1")
if "nopw" not in OPT:
    a("s_cselect_b32 exec_lo, -1, 0"); a("s_cselect_b32 exec_hi, -1, 0")
    for k in range(4): a(f"v_mov_b32 v{EV+k}, s49")
    a(f"buffer_store_dwordx4 {vr(EV,4)}, v{vl16}, s[16:19], s57 offen sc1")
a("s_mov_b64 exec, -1")
ts(2)
eops = wdma_list(vWh, [0]) if (EARLY and "e0" not in OPT) else []
for j in range(8):
    if eops: eops.pop(0)()
    a(f"v_lshlrev_b32 v{t[6]}, 16, v{GW+j}")
    a(f"v_and_b32 v{t[7]}, s11, v{GW+j}")
    for r in range(2):
        a(f"v_lshlrev_b32 v{t[2*r]}, 16, v{XN+8*r+j}")
        a(f"v_and_b32 v{t[2*r+1]}, s11, v{XN+8*r+j}")
    for r in range(2):
        a(f"v_mul_f32 v{t[2*r]}, v{t[2*r]}, v{t[6]}")
        a(f"v_mul_f32 v{t[2*r+1]}, v{t[2*r+1]}, v{t[7]}")
    for r in range(2): a(f"v_cvt_pk_bf16_f32 v{t[4+r]}, v{t[2*r]}, v{t[2*r+1]}")
    for r in range(2): a(f"v_dot2_f32_bf16 v{acc+2*r}, v{t[4+r]}, v{ones}, v{acc+2*r}")
ts(3)
a("s_setprio 2")
a("s_barrier")
ts(4)
o = L_P // 256
a(f"ds_read2st64_b32 {vr(MB4,2)}, v{vmr+4} offset0:{o} offset1:{o+16}")
a(f"ds_read2st64_b32 {vr(MB4+2,2)}, v{vmr+4} offset0:{o+32} offset1:{o+48}")
for q in range(4):
    a(f"ds_read2st64_b32 {vr(MB+4*q,2)}, v{vmr+q} offset0:{o} offset1:{o+16}")
    a(f"ds_read2st64_b32 {vr(MB+4*q+2,2)}, v{vmr+q} offset0:{o+32} offset1:{o+48}")
DN = DMB; DM = [DMB + 8 + 8 * q for q in range(4)]
a("s_waitcnt lgkmcnt(8)")
a(f"{M32} {vr(DN,16)}, {vr(MA,4)}, {vr(MB4,4)}, 0")
for q in range(4):
    a(f"s_waitcnt lgkmcnt({6-2*q})")
    a(f"{M32} {vr(DM[q],16)}, {vr(MA,4)}, {vr(MB+4*q,4)}, 0")
a("s_cmp_eq_u32 s51, 0"); a("s_cselect_b32 exec_lo, 1, 0"); a("s_cselect_b32 exec_hi, 1, 0")
a(f"v_sub_f32 v{DM[0]}, v{DM[0]}, v{DN+1}"); a(f"v_add_f32 v{DM[0]+1}, v{DM[0]+1}, v{DN}")
a("s_mov_b32 exec_lo, 0")
for k in range(2, 8): a(f"v_mov_b32 v{DM[0]+k}, v{DN+k}")
a("s_mov_b64 exec, -1")
OUT = MB
for s_ in range(4):
    for q in range(4):
        a(f"v_cvt_pk_bf16_f32 v{OUT+4*s_+q}, v{DM[q]+2*s_}, v{DM[q]+2*s_+1}")
    a(f"buffer_store_dwordx4 {vr(OUT+4*s_,4)}, v{vts}, s[16:19], {'s9' if s_ < 2 else 's10'} offen offset:{(s_&1)*2048} sc1")
a("s_barrier")
ts(5)
for dpp in ("row_shr:1", "row_shr:2", "row_shr:4", "row_shr:8"):
    for r in range(2):
        a(f"v_add_f32_dpp v{acc+2*r}, v{acc+2*r}, v{acc+2*r} {dpp} row_mask:0xf bank_mask:0xf bound_ctrl:0")
for dpp, rm in (("row_bcast:15", "0xa"), ("row_bcast:31", "0xc")):
    for r in range(2):
        a(f"v_add_f32_dpp v{acc+2*r}, v{acc+2*r}, v{acc+2*r} {dpp} row_mask:{rm} bank_mask:0xf")
a(f"v_cvt_pk_bf16_f32 v{t[0]}, v{acc}, v{acc+2}")
a(f"v_lshlrev_b32 v{t[1]}, 16, v{t[0]}")
a(f"v_and_b32 v{t[2]}, s11, v{t[0]}")
for r in range(2): a(f"v_mul_f32 v{t[1+r]}, {hx(f2u(-1.4426950408889634))}, v{t[1+r]}")
for r in range(2): a(f"v_exp_f32 v{t[1+r]}, v{t[1+r]}")
for r in range(2): a(f"v_add_f32 v{t[1+r]}, 1.0, v{t[1+r]}")
for r in range(2): a(f"v_rcp_f32 v{t[1+r]}, v{t[1+r]}")
a(f"v_cvt_pk_bf16_f32 v{t[0]}, v{t[1]}, v{t[2]}")
a(f"v_lshlrev_b32 v{acc}, 16, v{t[0]}")
a(f"v_and_b32 v{acc+2}, s11, v{t[0]}")
a(f"v_sub_f32 v{t[1]}, 1.0, v{acc}")
a(f"v_sub_f32 v{t[2]}, 1.0, v{acc+2}")
a(f"v_cvt_pk_bf16_f32 v{t[0]}, v{t[1]}, v{t[2]}")
a(f"v_lshlrev_b32 v{acc+1}, 16, v{t[0]}")
a(f"v_and_b32 v{acc+3}, s11, v{t[0]}")
for r in range(4): a(f"v_mul_f32 v{acc+r}, {hx(f2u(2.0**-22))}, v{acc+r}")
a("s_lshl_b32 s30, s51, 4"); a(f"s_add_u32 s30, s30, {L_G}")
a(f"v_mov_b32 v{t[3]}, s30")
a("s_mov_b32 exec_lo, 0"); a("s_mov_b32 exec_hi, 0x80000000")
a(f"ds_write_b128 v{t[3]}, {vr(acc,4)}")
a("s_mov_b64 exec, -1")
a(f"v_mov_b32 v{t[3]}, {L_C}"); a(f"v_mov_b32 v{t[4]}, 1")
for k in range(4): a(f"v_mov_b32 v{DMB+k}, s48")
a("s_mov_b64 exec, 1")
a("s_waitcnt vmcnt(0)")
a(f"ds_add_rtn_u32 v{t[5]}, v{t[3]}, v{t[4]}")
a("s_waitcnt lgkmcnt(0)")
a(f"v_readfirstlane_b32 s30, v{t[5]}")
a("s_cmp_eq_u32 s30, 3"); a("s_cselect_b32 exec_lo, -1, 0"); a("s_cselect_b32 exec_hi, -1, 0")
a(f"buffer_store_dwordx4 {vr(DMB,4)}, v{vl16}, s[16:19], s57 offen {FSF}")
a("s_mov_b64 exec, -1")
a("s_setprio 0")
ts(6)
p2_addr(); p2_item(); wvoff(vW, SC, SC + 1); p2_const()
if optint("pa", 0): a(f"s_sleep {optint('pa', 0)}")
a.label("L_p2")
a.hist = []
t = [SC + k for k in range(6)]
ts(7)
poll("L_poll1", vF, TB, "s8", "s48")
def f2pre():
    if "nopw" in OPT: return
    a(f"v_mov_b32 v{TB}, s48"); a(f"v_lshlrev_b32 v{TB+1}, 2, v0")
    a("s_mov_b32 exec_hi, 0")
    a(f"buffer_store_dword v{TB}, v{TB+1}, s[16:19], s9 offen sc1")
    a("s_mov_b32 exec_hi, -1")
ts(8)
if "st2" in OPT: a("s_add_u32 s70, s60, s58")
a.label("L_p2c")
a("s_setprio 1")
a("s_mov_b32 m0, s27")
a(f"buffer_load_dwordx4 v{vT}, s[16:19], s24 offen sc1 lds")
a("s_add_u32 m0, s27, 1024")
a(f"buffer_load_dwordx4 v{vT}, s[16:19], s26 offen sc1 lds")
a("s_lshl_b32 s29, s3, 9"); a(f"s_add_u32 s29, s29, {L_E}"); a("s_mov_b32 m0, s29")
a("s_mov_b32 exec_lo, s59"); a("s_mov_b32 exec_hi, 0")
a(f"buffer_load_dwordx4 v{vEa}, s[16:19], s50 offen sc1 lds")
a("s_mov_b64 exec, -1")
if SPLIT:
    for op in wdma_list(vW, [0], (1,)): op()
def wread(cc):
    a("s_not_b32 exec_lo, s52"); a("s_not_b32 exec_hi, s52")
    for arr in range(4):
        for i in range(4):
            a(f"ds_read_u16_d16_hi v{Wi(arr,cc,i)}, v{vWr} offset:{1536*arr+768*cc+48*i}")
    a("s_mov_b64 exec, -1")
a("s_barrier")
wread(0)
if not SPLIT: wread(1)
PKD = SC + 8
a(f"s_waitcnt vmcnt({4 if SPLIT else 0})")
if ST: a("s_waitcnt lgkmcnt(0)")
ts(9)
a(f"ds_read2_b32 {vr(TB,2)}, v{vTr} offset0:0 offset1:16")
a(f"ds_read2_b32 {vr(TB+2,2)}, v{vTr} offset0:32 offset1:48")
a(f"v_add_u32 v{vTr}, 1024, v{vTr}")
a(f"ds_read2_b32 {vr(TB+4,2)}, v{vTr} offset0:0 offset1:16")
a(f"ds_read2_b32 {vr(TB+6,2)}, v{vTr} offset0:32 offset1:48")
a.label("L_p2e")
for bb in range(2):
    a(f"s_waitcnt lgkmcnt({2-2*bb})")
    a(f"{M16} {vr(D+8*bb,4)}, {vr(Fr,4)}, {vr(TB+4*bb,4)}, 0")
    a(f"{M16} {vr(D+8*bb+4,4)}, {vr(Fm,4)}, {vr(TB+4*bb,4)}, 0")
for ip in range(2):
    for cc in range(2):
        for bb in range(2):
            i = 2 * ip + cc
            a(f"v_cvt_pk_bf16_f32 v{PKD+4*ip+2*cc+bb}, v{D+8*bb+i}, v{D+8*bb+4+i}")
    a(f"ds_write_b128 v{vw1}, {vr(PKD+4*ip,4)} offset:{ip*256}")
a("s_cmp_lg_u32 s54, 0")
a("s_cbranch_scc0 L_el")
a.label("L_elb")
a("s_waitcnt lgkmcnt(0)")
f2pre()
a("s_barrier")
OB = TB
for cc in range(2):
    for h in range(2):
        a(f"ds_read_b64 {vr(OB+4*cc+2*h,2)}, v{vr1} offset:{h*2048+cc*8}")
X = D
for cc in range(2):
    a(f"s_waitcnt lgkmcnt({2-2*cc})")
    a(f"{M16} {vr(X+8*cc,4)}, {vr(M2+8*cc,4)}, {vr(OB+4*cc,4)}, 0")
    a(f"{M16} {vr(X+8*cc+4,4)}, {vr(M2+8*cc+4,4)}, {vr(OB+4*cc,4)}, 0")
YO = [PKD, PKD + 4, PKD, PKD + 4]
tpr = [(vT, vTr), (vr1, vw1)]
if SPLIT:
    a(f"s_waitcnt vmcnt({0 if 'nopw' in OPT else 1})")
    wread(1)
def dpt(cc, ab, ri): return WW + 16 * cc + 8 * ab + 4 * ri
def wmul(cc, ab):
    n = 2 * cc + ab
    xr = X + 8 * cc; xi = X + 8 * cc + 4
    for i in range(4):
        wr = Wi(2 * ab, cc, i); wi = Wi(2 * ab + 1, cc, i)
        y0, y1 = tpr[i & 1]
        a(f"v_mul_f32 v{y0}, v{xr+i}, v{wr}")
        a(f"v_mul_f32 v{y1}, v{xi+i}, v{wr}")
        a(f"v_fma_f32 v{y0}, -v{xi+i}, v{wi}, v{y0}")
        a(f"v_fmac_f32 v{y1}, v{xr+i}, v{wi}")
        a(f"v_cvt_pk_bf16_f32 v{YO[n]+i}, v{y1}, v{y0}")
    a(f"{M16} {vr(dpt(cc,ab,0),4)}, {vr(MT+8*cc,4)}, {vr(YO[n],4)}, 0")
    a(f"{M16} {vr(dpt(cc,ab,1),4)}, {vr(MT+8*cc+4,4)}, {vr(YO[n],4)}, 0")
a("s_and_b32 s29, s2, 0xfb")
a("s_cmp_eq_u32 s29, 0")
a("s_cbranch_scc1 L_sp")
for cc in range(2):
    if cc == 1: a("s_waitcnt lgkmcnt(0)")
    for ab in range(2): wmul(cc, ab)
a.label("L_spb")
XP2 = X
P2 = D
for ab in range(2):
    for ip in range(2):
        for cc in range(2):
            for bb in range(2):
                i = 2 * ip + bb
                a(f"v_cvt_pk_bf16_f32 v{P2+8*ab+4*ip+2*bb+cc}, v{dpt(cc,ab,0)+i}, v{dpt(cc,ab,1)+i}")
        a(f"ds_write_b128 v{vw2}, {vr(P2+8*ab+4*ip,4)} offset:{2048*ab+ip*256}")
a("s_waitcnt lgkmcnt(0)")
a("s_barrier")
O2 = WW + 16
for bb in range(2):
    for ab in range(2):
        for h in range(2):
            a(f"ds_read_b64 {vr(O2+8*bb+4*ab+2*h,2)}, v{vr2} offset:{WR*h+2048*ab+bb*8}")
E = [M2, M2 + 8, MT, MT + 8]
X4 = "x4" in OPT
for bb in range(2):
    for ab in range(2):
        n = 2 * bb + ab
        a(f"s_waitcnt lgkmcnt({6-2*n})")
        if X4:
            a(f"{M16} {vr(E[n],4)}, {vr(O2+4*n,4)}, {vr(Fr,4)}, 0")
            a(f"{M16} {vr(E[n]+4,4)}, {vr(O2+4*n,4)}, {vr(Fm,4)}, 0")
        else:
            a(f"{M16} {vr(E[n],4)}, {vr(Fr,4)}, {vr(O2+4*n,4)}, 0")
            a(f"{M16} {vr(E[n]+4,4)}, {vr(Fm,4)}, {vr(O2+4*n,4)}, 0")
SO = WW
for bb in range(2):
    for i in range(4):
        for ab in range(2):
            n = 2 * bb + ab
            a(f"v_cvt_pk_bf16_f32 v{SO+8*bb+2*i+ab}, v{E[n]+4+i}, v{E[n]+i}")
        if X4:
            if i & 1: a(f"buffer_store_dwordx4 {vr(SO+8*bb+2*(i-1),4)}, v{vS}, s[16:19], s30 offen offset:{(i>>1)*64+bb*128} sc1")
        else:
            a(f"buffer_store_dwordx2 {vr(SO+8*bb+2*i,2)}, v{vS}, s[16:19], {'s30' if i < 2 else 's31'} offen offset:{(i&1)*2048+bb*128} sc1")
ts(10)
setflag(t[0], "s9", "s49")
if "st2" in OPT: ts(1)
a("s_setprio 0")
V = VAlloc(8)
vg_ = vg; vc_ = vc
t = [V() for _ in range(6)]
vS3 = 1; vN = 2; vF3 = 7; AP8 = V(); AMx = V()
MR = V(16, 4); MI = V(16, 4); X = V(16, 4)
BA = V(24, 4); BB = V(24, 4); TCh = V(8); TSh = V(8)
assert V.n <= 128, V.n
D1r = BA + 8; D1i = BB + 8; D2r = BA; D2i = BB
SBt = [D1r, D1r + 4, D1r + 8, D1r + 12, X]
DDt = [D1i, D1i + 4, D1i + 8, D1i + 12, X + 4]
MA = X + 8; AP = X + 12; AM = [X + 13, X + 14, X + 15, AMx]
CS = D1r; GG = D1i
a(f"v_bfe_u32 v{t[0]}, v0, 2, 2"); a(f"v_lshlrev_b32 v{t[1]}, 4, v{t[0]}")
a(f"v_add_u32 v{t[1]}, {L_G}, v{t[1]}")
a(f"ds_read_b128 {vr(GG,4)}, v{t[1]}")
if X4:
    a(f"v_and_b32 v{t[1]}, 1, v0"); a(f"v_lshlrev_b32 v{t[1]}, 3, v{t[1]}")
    a(f"v_lshl_or_b32 v{t[1]}, v{t[0]}, 4, v{t[1]}")
    a(f"v_bfe_u32 v{t[2]}, v0, 1, 1"); a(f"v_lshl_or_b32 v{t[1]}, v{t[2]}, 6, v{t[1]}")
else:
    a(f"v_lshlrev_b32 v{t[1]}, 3, v{vc_}")
a(f"v_lshl_or_b32 v{vS3}, v{vg_}, 21, v{t[1]}")
a("s_xor_b32 s50, s3, 4")
a("s_lshl_b32 s8, s2, 7"); a(f"s_add_u32 s8, s8, {hx(S_OFF)}")
a("s_lshl_b32 s11, s50, 15"); a("s_add_u32 s8, s8, s11")
a(f"v_bfe_u32 v{t[1]}, v0, 2, 3"); a(f"v_and_b32 v{t[2]}, 3, v0"); a(f"v_lshlrev_b32 v{t[2]}, 3, v{t[2]}")
a(f"v_lshl_add_u32 v{t[1]}, v{t[1]}, 5, v{t[2]}"); a(f"v_add_u32 v{t[1]}, s50, v{t[1]}")
a("s_cmp_eq_u32 s50, 0"); a("s_cselect_b32 s24, 0x00010001, 0")
a(f"v_lshlrev_b32 v{vF3}, 10, v{t[1]}")
a("s_bfe_u32 s11, s2, 0x30001"); a("s_lshl_b32 s11, s11, 7"); a(f"s_add_u32 s11, s11, {hx(F2_OFF)}")
vsg = X; ve = X + 1; vstep = X + 2; vpe = X + 3; vpo = X + 4; vk = X + 5; vpl = X + 6
a(f"v_bfe_u32 v{t[1]}, v0, 1, 1"); a(f"v_cvt_f32_u32 v{vsg}, v{t[1]}")
a(f"v_mul_f32 v{vsg}, -0.5, v{vsg}"); a(f"v_add_f32 v{vsg}, {fl(0.25)}, v{vsg}")
a(f"v_and_b32 v{t[1]}, 1, v0"); a(f"v_cvt_f32_u32 v{t[1]}, v{t[1]}")
a(f"v_mul_f32 v{ve}, v{t[1]}, v{vsg}")
a(f"v_lshlrev_b32 v{t[0]}, 9, v{t[0]}"); a(f"v_add_u32 v{t[0]}, s2, v{t[0]}")
a(f"v_cvt_f32_u32 v{vstep}, v{t[0]}"); a(f"v_mul_f32 v{vstep}, {hx(f2u(-1/2048))}, v{vstep}")
a(f"v_cvt_f32_u32 v{t[2]}, v{vg_}"); a(f"v_add_f32 v{t[2]}, v{t[2]}, v{t[2]}")
a(f"v_fma_f32 v{vpe}, v{t[2]}, v{vstep}, v{ve}")
a(f"v_sub_f32 v{vpo}, v{vpe}, v{vsg}")
a(f"v_fmamk_f32 v{vpo}, v{t[2]}, {hx(f2u(-0.125))}, v{vpo}")
for lo in range(2):
    if lo:
        a(f"v_add_f32 v{vpe}, v{vpe}, v{vstep}")
        a(f"v_add_f32 v{vpo}, v{vpo}, v{vstep}"); a(f"v_add_f32 v{vpo}, {hx(f2u(-0.125))}, v{vpo}")
    a(f"v_cos_f32 v{CS+4*lo}, v{vpe}"); a(f"v_sin_f32 v{CS+4*lo+1}, v{vpe}")
    a(f"v_cos_f32 v{CS+4*lo+2}, v{vpo}"); a(f"v_sin_f32 v{CS+4*lo+3}, v{vpo}")
a("s_lshl_b32 s25, s50, 4")
a(f"v_lshlrev_b32 v{vpl}, 12, v{vg_}")
a(f"v_add_u32 v{vk}, s25, v{vc_}")
a(f"v_and_b32 v{t[3]}, 14, v{vk}"); a(f"v_lshl_or_b32 v{t[3]}, v{t[3]}, 3, v{vpl}")
a(f"v_and_b32 v{t[4]}, 31, v{vk}"); a(f"v_lshl_or_b32 v{t[3]}, v{t[4]}, 7, v{t[3]}")
a(f"v_bfe_u32 v{t[4]}, v{vk}, 5, 2"); a(f"v_lshl_or_b32 v{AP}, v{t[4]}, 2, v{t[3]}")
a(f"v_sub_u32 v{t[5]}, 0, v{vk}")
a(f"v_and_b32 v{t[4]}, 31, v{t[5]}"); a(f"v_lshl_or_b32 v{t[3]}, v{t[4]}, 7, v{vpl}")
a(f"v_and_b32 v{t[4]}, 14, v{t[5]}"); a(f"v_lshl_or_b32 v{t[3]}, v{t[4]}, 3, v{t[3]}")
a(f"v_lshrrev_b32 v{t[5]}, 3, v{t[5]}")
for tt in range(4):
    if tt: a(f"v_subrev_u32 v{t[5]}, 16, v{t[5]}")
    a(f"v_and_b32 v{t[4]}, 0x7c, v{t[5]}")
    a(f"v_xor_b32 v{AM[tt]}, v{t[4]}, v{t[3]}")
a("s_mov_b32 exec_lo, s24"); a("s_mov_b32 exec_hi, s24")
a(f"v_or_b32 v{AM[0]}, 64, v{vpl}")
a("s_mov_b64 exec, -1")
a("s_waitcnt lgkmcnt(0)")
for lo in range(2):
    for ab in range(2):
        a(f"v_mul_f32 v{t[0]}, v{GG+ab}, v{CS+4*lo}"); a(f"v_mul_f32 v{t[1]}, v{GG+ab}, v{CS+4*lo+1}")
        a(f"v_fmac_f32 v{t[0]}, v{GG+2+ab}, v{CS+4*lo+2}"); a(f"v_fmac_f32 v{t[1]}, v{GG+2+ab}, v{CS+4*lo+3}")
        a(f"v_cvt_pk_bf16_f32 v{MA+2*lo+ab}, v{t[0]}, v{t[1]}")
a("s_cmp_eq_u32 s3, 4")
a("s_cbranch_scc1 L_m0")
a("s_cmp_ge_u32 s3, 4")
a("s_cbranch_scc1 L_p3b")
TC = lambda k: BA + k if k < 8 else TCh + k - 8
TS_ = lambda k: BB + k if k < 8 else TSh + k - 8
vb = X; vo = X + 1
a(f"v_cvt_f32_u32 v{vb}, v{vn}"); a(f"v_cvt_f32_u32 v{vo}, v{vL5}")
a(f"v_mul_f32 v{vb}, {fl(1/32)}, v{vb}"); a(f"v_mul_f32 v{vo}, 4.0, v{vo}"); a(f"v_mul_f32 v{vo}, v{vb}, v{vo}")
for i in range(16):
    kc = 8 * (i // 4) + i % 4
    if kc == 0: a(f"v_mov_b32 v{t[0]}, v{vo}")
    else: a(f"v_fmamk_f32 v{t[0]}, v{vb}, {hx(f2u(float(kc)))}, v{vo}")
    a(f"v_cos_f32 v{t[1]}, v{t[0]}"); a(f"v_sin_f32 v{t[2]}, v{t[0]}")
    a(f"v_mul_f32 v{t[0]}, {fl(1/32)}, v{t[0]}")
    a(f"v_cvt_pk_bf16_f32 v{MR+i}, v{t[1]}, -v{t[2]}")
    a(f"v_cvt_pk_bf16_f32 v{MI+i}, v{t[2]}, v{t[1]}")
    a(f"v_cos_f32 v{TC(i)}, v{t[0]}"); a(f"v_sin_f32 v{TS_(i)}, v{t[0]}")
a.label("L_p3b")
if optint("pb", 0): a(f"s_sleep {optint('pb', 0)}")
ts(11)
poll("L_poll2", vF3, t[0], "s11", "s49")
ts(12)
if "st2" in OPT: a("s_add_u32 s64, s60, s58")
for tt in range(4):
    for lo in range(2):
        a(f"s_add_u32 s26, s8, {hx(tt*8*32768 + lo*(1<<20))}")
        a(f"buffer_load_dwordx2 {vr(SBt[tt]+2*lo,2)}, v{vS3}, s[16:19], s26 offen sc1")
MA0 = MR
def fin(tt):
    d = DDt[tt]
    if tt == 0:
        a("s_mov_b32 exec_lo, s24"); a("s_mov_b32 exec_hi, s24")
        for k in range(4): a(f"v_mov_b32 v{d+k}, v{DDt[4]+k}")
        a("s_mov_b64 exec, -1")
    a(f"v_cvt_pk_bf16_f32 v{d}, v{d}, v{d+1}")
    a(f"v_cvt_pk_bf16_f32 v{d+1}, v{d+2}, v{d+3}")
    if tt: a(f"v_xor_b32 v{t[tt]}, {tt<<4}, v{AP}")
    a(f"ds_write_b32 v{t[tt] if tt else AP}, v{d}")
    a(f"ds_write_b32 v{AM[tt]}, v{d+1}")
for tt in range(4):
    a(f"s_waitcnt vmcnt({max(0, 6-2*tt)})")
    a(f"{M16} {vr(DDt[tt],4)}, {vr(MA,4)}, {vr(SBt[tt],4)}, 0")
    if tt == 0: a(f"{M16} {vr(DDt[4],4)}, {vr(MA0,4)}, {vr(SBt[0],4)}, 0")
    if tt >= 1: fin(tt - 1)
fin(3)
vst = vS3
a(f"v_bfe_u32 v{t[4]}, v{vn}, 1, 3"); a(f"v_xor_b32 v{t[4]}, v{t[4]}, v{vL5}"); a(f"v_lshlrev_b32 v{t[4]}, 4, v{t[4]}")
a(f"v_lshl_or_b32 v{t[4]}, v{vn}, 7, v{t[4]}"); a("s_lshl_b32 s26, s51, 12")
a("s_waitcnt lgkmcnt(0)")
a(f"v_add_u32 v{t[0]}, s26, v{t[4]}")
for q in range(1, 4): a(f"v_xor_b32 v{t[q]}, {32*q}, v{t[0]}")
a(f"v_lshlrev_b32 v{t[4]}, 4, v{vL5}"); a(f"v_lshl_or_b32 v{vst}, v{vn}, 6, v{t[4]}")
srd(12, 94, 2048 * 2048)
a("s_add_u32 s30, s22, 0x80000")
if "st2" in OPT: ts(3)
a("s_barrier")
if "st2" in OPT: ts(4)
a("s_cmp_ge_u32 s3, 4")
a("s_cbranch_scc1 L_hx")
for q in range(4): a(f"ds_read_b128 {vr(X+4*q,4)}, v{t[q]}")
for q in range(4):
    a(f"s_waitcnt lgkmcnt({3-q})")
    a(f"{M32} {vr(D1r,16)}, {vr(X+4*q,4)}, {vr(MR+4*q,4)}, {'0' if q == 0 else vr(D1r,16)}")
    a(f"{M32} {vr(D1i,16)}, {vr(X+4*q,4)}, {vr(MI+4*q,4)}, {'0' if q == 0 else vr(D1i,16)}")
def p2m(q):
    a(f"{M32} {vr(D2r,16)}, {vr(X+4*q,4)}, {vr(MR+4*q,4)}, {'0' if q == 0 else vr(D2r,16)}")
    a(f"{M32} {vr(D2i,16)}, {vr(X+4*q,4)}, {vr(MI+4*q,4)}, {'0' if q == 0 else vr(D2i,16)}")
for q in range(4):
    for e in range(4):
        k = 4 * q + e
        a(f"v_mul_f32 v{t[0]}, v{D1r+k}, v{TC(k)}")
        a(f"v_mul_f32 v{t[1]}, v{D1i+k}, v{TC(k)}")
        a(f"v_fma_f32 v{t[0]}, -v{D1i+k}, v{TS_(k)}, v{t[0]}")
        a(f"v_fmac_f32 v{t[1]}, v{D1r+k}, v{TS_(k)}")
        a(f"v_cvt_pk_bf16_f32 v{X+k}, v{t[0]}, v{t[1]}")
        if q == 2 and e == 1: p2m(1)
    if q == 1: p2m(0)
    if q >= 2: p2m(q)
O = MR
for r, (Dx, so) in enumerate(((D2r, "s22"), (D2i, "s30"))):
    for c2 in range(2):
        o = O + 8 * r + 4 * c2
        for e in range(4):
            a(f"v_cvt_pk_bf16_f32 v{o+e}, v{Dx+8*c2+2*e}, v{Dx+8*c2+2*e+1}")
        a(f"v_permlane32_swap_b32 v{o}, v{o+2}")
        a(f"v_permlane32_swap_b32 v{o+1}, v{o+3}")
        a(f"buffer_store_dwordx4 {vr(o,4)}, v{vst}, s[12:15], {so} offen offset:{32*c2}")
a.label("L_fin")
stamp_end(32)
a.label("L_end")
a("s_endpgm")
a.label("L_hx")
a("s_lshl_b32 s26, s2, 3"); a("s_add_u32 s26, s26, s3")
a("s_cmp_lg_u32 s26, 4")
a("s_cbranch_scc1 L_fin")
a(f"s_mov_b32 s26, {hx(EP_OFF)}")
setflag(8, "s26", "s49")
a("s_branch L_fin")
a.label("L_m0")
a.hist = []
q_ = [MI + k for k in range(16)]
gaa = q_[0]; gbb = q_[1]; ph = q_[2]; st_ = q_[3]; c_ = q_[4]; s__ = q_[5]; al = q_[6]; be = q_[7]
a(f"v_and_b32 v{t[0]}, 1, v0"); a(f"v_cmp_eq_u32 vcc, 1, v{t[0]}")
a(f"v_bfe_u32 v{t[1]}, v0, 2, 2"); a(f"v_lshl_or_b32 v{t[1]}, v{t[1]}, 1, v{t[0]}")
a(f"v_cndmask_b32 v{gaa}, v{GG}, v{GG+2}, vcc"); a(f"v_cndmask_b32 v{gbb}, v{GG+1}, v{GG+3}, vcc")
a(f"v_lshlrev_b32 v{t[1]}, 8, v{t[1]}"); a(f"v_add_u32 v{t[1]}, s2, v{t[1]}")
a(f"v_cvt_f32_u32 v{st_}, v{t[1]}"); a(f"v_mul_f32 v{st_}, {hx(f2u(1/2048))}, v{st_}")
a(f"v_cvt_f32_u32 v{ph}, v{vg_}"); a(f"v_add_f32 v{ph}, v{ph}, v{ph}"); a(f"v_mul_f32 v{ph}, v{ph}, v{st_}")
a(f"v_bfe_u32 v{t[2]}, v0, 1, 1")
a(f"v_lshrrev_b32 v{t[3]}, 1, v{vg_}"); a(f"v_cmp_eq_u32 s[4:5], v{t[2]}, v{t[3]}")
a(f"v_and_b32 v{t[3]}, 1, v{vg_}"); a(f"v_cmp_eq_u32 s[6:7], 0, v{t[3]}")
a(f"v_cmp_eq_u32 s[14:15], 0, v{t[2]}")
a(f"v_cndmask_b32 v{q_[8]}, 0, v{gaa}, s[4:5]"); a(f"v_cndmask_b32 v{q_[9]}, 0, v{gbb}, s[4:5]")
a(f"v_mul_f32 v{q_[10]}, {fl(0.25)}, v{gaa}"); a(f"v_mul_f32 v{q_[11]}, {fl(0.25)}, v{gbb}")
for lo in range(2):
    if lo: a(f"v_add_f32 v{ph}, v{ph}, v{st_}")
    a(f"v_cos_f32 v{c_}, v{ph}"); a(f"v_sin_f32 v{s__}, v{ph}")
    for ab in range(2):
        if lo == 0:
            if ab == 0:
                a(f"v_cndmask_b32 v{al}, 0, v{q_[10]}, s[14:15]"); a(f"v_cndmask_b32 v{be}, 0, v{q_[11]}, s[14:15]")
            else:
                a(f"v_cndmask_b32 v{al}, v{q_[10]}, 0, s[14:15]"); a(f"v_cndmask_b32 v{be}, v{q_[11]}, 0, s[14:15]")
            a(f"v_cndmask_b32 v{al}, v{q_[8+ab]}, v{al}, s[6:7]"); a(f"v_cndmask_b32 v{be}, 0, v{be}, s[6:7]")
            a(f"v_mul_f32 v{t[0]}, v{al}, v{c_}"); a(f"v_fmac_f32 v{t[0]}, v{be}, v{s__}")
            a(f"v_mul_f32 v{t[1]}, v{be}, v{c_}"); a(f"v_fma_f32 v{t[1]}, -v{al}, v{s__}, v{t[1]}")
            a(f"v_cvt_pk_bf16_f32 v{MA0+2*lo+ab}, v{t[0]}, v{t[1]}")
        else:
            a(f"v_mul_f32 v{t[0]}, v{q_[8+ab]}, v{c_}"); a(f"v_mul_f32 v{t[1]}, v{q_[8+ab]}, v{s__}")
            a(f"v_cvt_pk_bf16_f32 v{MA0+2*lo+ab}, v{t[0]}, -v{t[1]}")
a("s_branch L_p3b")
a.label("L_el")
a.hist = []
a(f"v_lshlrev_b32 v{vEa}, 6, v{vg}"); a(f"v_add_u32 v{vEa}, s29, v{vEa}")
a("s_mov_b32 exec_lo, s52"); a("s_mov_b32 exec_hi, s52")
for cc in range(2):
    for i in range(4):
        for ab in range(2):
            a(f"ds_read_b64 {vr(Wi(2*ab,cc,i),2)}, v{vEa} offset:{256*cc+16*i+8*ab}")
a("s_mov_b64 exec, -1")
a("s_branch L_elb")
a.label("L_sp")
a.hist = []
X = XP2
ts(3)
a("s_lshr_b32 s29, s2, 2"); a("s_lshl_b32 s10, s3, 1"); a("s_add_u32 s29, s29, s10"); a("s_sub_u32 s29, 16, s29")
for cc in range(2):
    a(f"s_sub_u32 s10, s29, {cc}"); a("s_and_b32 s10, s10, 15")
    a("s_lshr_b32 s11, s10, 1"); a("s_lshl_b32 s11, s11, 8"); a("s_and_b32 s10, s10, 1"); a("s_lshl_b32 s10, s10, 3"); a("s_add_u32 s10, s10, s11")
    a(f"v_lshlrev_b32 v{tpr[0][cc]}, 12, v{vg}"); a(f"v_add_u32 v{tpr[0][cc]}, s10, v{tpr[0][cc]}")
for k in range(8): a(f"v_mov_b32 v{TB+k}, 0")
a("s_mov_b32 exec_lo, 0x00010001"); a("s_mov_b32 exec_hi, 0x00010001")
for cc in range(2):
    for h in range(2):
        a(f"ds_read_b64 {vr(TB+4*cc+2*h,2)}, v{tpr[0][cc]} offset:{h*2048}")
a("s_mov_b32 s10, 0x80000000"); a("s_mov_b32 s11, 0x80008000")
a("s_waitcnt lgkmcnt(0)")
for k in range(8): a(f"v_xor_b32 v{TB+k}, s10, v{TB+k}")
a("s_mov_b64 exec, -1")
ts(4)
a("s_cmp_lg_u32 s2, 0")
a("s_cbranch_scc1 L_sp4")
def sp_body(mats):
    def acc(cc):
        a(f"{M16} {vr(X+8*cc,4)}, {vr(mats[cc],4)}, {vr(TB+4*cc,4)}, {vr(X+8*cc,4)}")
        a(f"{M16} {vr(X+8*cc+4,4)}, {vr(mats[cc]+4,4)}, {vr(TB+4*cc,4)}, {vr(X+8*cc+4,4)}")
    acc(0); acc(1)
    a("s_mov_b32 exec_lo, 0x00010001"); a("s_mov_b32 exec_hi, 0x00010001")
    for k in range(8): a(f"v_xor_b32 v{TB+k}, s11, v{TB+k}")
    a("s_mov_b64 exec, -1")
    wmul(0, 0); acc(0); acc(0)
    wmul(1, 0); acc(1); acc(1)
    wmul(0, 1)
    wmul(1, 1)
    ts(6)
    a("s_nop 7")
    a("s_branch L_spb")
YO = [PKD, PKD, PKD + 4, PKD + 4]
sp_body([M2, M2 + 8])
a.label("L_sp4")
a.hist = []
a("s_nop 1")
sp_body([M2 + 8, MX])

nv = (a.maxv + 1 + 7) // 8 * 8
out = "; gated_mix spectral gfnet: persistent MFMA FFT pipeline (generated by gen5.py)\n"
out += f"; @launch grid=(256,1,1) block=(512,1,1) lds={LDS_BYTES}\n"
out += '.amdgcn_target "amdgcn-amd-amdhsa--gfx950"\n.text\n'
out += f".globl {NAME}\n.p2align 8\n.type {NAME},@function\n" + a.text() + ".rept 96\n    s_endpgm\n.endr\nL_code_end:\n"
out += f""".section .rodata,"a"
.p2align 6
.amdhsa_kernel {NAME}
  .amdhsa_next_free_vgpr {nv}
  .amdhsa_next_free_sgpr {min(102, a.maxs + 1)}
  .amdhsa_accum_offset {nv}
  .amdhsa_group_segment_fixed_size 0
  .amdhsa_kernarg_size 80
  .amdhsa_user_sgpr_count 2
  .amdhsa_user_sgpr_kernarg_segment_ptr 1
  .amdhsa_system_sgpr_workgroup_id_x 1
  .amdhsa_float_denorm_mode_32 3
.end_amdhsa_kernel
"""
sys.stderr.write(f"vgpr {a.maxv+1} sgpr {a.maxs+1} lines {len(a.lines)} nops {a.nops}\n")
print(out)
```

```python
import sys
from asmlib import *
NAME = "gated_mix__spectral_gfnet__spectral_gfnet__prompt_kernel"
TSB = 16512
S_OFF = 0x500000
F1_OFF = 0xE20000
F2_OFF = 0xE80000
EP_OFF = 0xEF0000
WS_SIZE = 0xF00000
WBYTES = 2048 * 1026
M32 = "v_mfma_f32_32x32x16_bf16"
M16 = "v_mfma_f32_16x16x32_bf16"
OPT = set(sys.argv[1:])
ST = "stamps" in OPT
WSZ = 0x10000000 if ST else WS_SIZE
L_A = 0; L_W = 16384; L_P = L_W; WR = 6144; L_G = 65536; L_N = 65664; L_C = 65920; L_E = 65936; LDS_BYTES = 65936 + 4096
def optint(pfx, d):
    for o in OPT:
        if o.startswith(pfx) and o[len(pfx):].isdigit(): return int(o[len(pfx):])
    return d
SLEEP = optint("sl", 1); PFAT = optint("pf", 8); NWG = optint("nwg", 0)
SPIN_MAX = 400000
NTX = " nt" if "ntx" in OPT else ""
NTW = " nt" if "ntw" in OPT else ""
PLF = "sc0 sc1" if "psys" in OPT else ("sc1 nt" if "pnt" in OPT else ("sc0 sc1 nt" if "psysnt" in OPT else "sc1"))
FSF = "sc0 sc1" if "fsys" in OPT else "sc1"
a = Asm()
def srd(d, base, size):
    a(f"s_mov_b32 s{d}, s{base}"); a(f"s_mov_b32 s{d+1}, s{base+1}")
    a(f"s_mov_b32 s{d+2}, {hx(size)}"); a(f"s_mov_b32 s{d+3}, 0x00020000")
NST = 14
AMX = optint("amx", -1)
def ts(k):
    if ST:
        a(f"s_memrealtime s[{60+2*k}:{61+2*k}]")
        a("s_waitcnt lgkmcnt(0)")
def amx_post(vt):
    if AMX < 0: return
    a("s_load_dwordx2 s[4:5], s[0:1], 64")
    a("s_waitcnt lgkmcnt(0)")
    a("s_mov_b32 s6, 256"); a("s_mov_b32 s7, 0x00020000")
    a(f"v_mov_b32 v{vt}, s{60+2*AMX}"); a("s_and_b32 s96, s2, 7"); a("s_lshl_b32 s96, s96, 2"); a(f"v_mov_b32 v{vt+1}, s96")
    a("s_cmp_eq_u32 s3, %d" % optint("aw", 0)); a("s_cselect_b32 exec_lo, 1, 0"); a("s_mov_b32 exec_hi, 0")
    a(f"buffer_atomic_umax v{vt}, v{vt+1}, s[4:7], 0 offen")
    a("s_mov_b64 exec, -1")
def stamp_end(vt):
    if not ST: return
    a("s_waitcnt vmcnt(0)")
    ts(NST - 1)
    for k in range(16): a(f"v_mov_b32 v{vt+k}, {'s%d' % (60+2*k) if k < NST else '0'}")
    a("s_lshl_b32 s96, s3, 6"); a("s_lshl_b32 s97, s2, 9"); a("s_add_u32 s96, s96, s97")
    a(f"s_add_u32 s96, s96, 0x3000000")
    a(f"v_mov_b32 v{vt+16}, 0")
    a("s_mov_b64 exec, 1")
    if AMX >= 0:
        a("s_lshl_b32 s96, s2, 3"); a("s_add_u32 s96, s96, s3"); a("s_cmp_lg_u32 s96, 72"); a("s_cbranch_scc1 L_end")
        a("s_load_dwordx2 s[4:5], s[0:1], 64")
        a("s_waitcnt lgkmcnt(0)")
        a("s_mov_b32 s6, 256"); a("s_mov_b32 s7, 0x00020000")
        a(f"buffer_load_dwordx4 {vr(vt,4)}, v{vt+16}, s[4:7], 0 offen sc1")
        a(f"buffer_load_dwordx4 {vr(vt+4,4)}, v{vt+16}, s[4:7], 0 offen offset:16 sc1")
        a("s_waitcnt vmcnt(0)")
        for k in range(1, 8): a(f"v_max_u32 v{vt}, v{vt}, v{vt+k}")
        a("s_nop 1")
        a(f"v_readfirstlane_b32 s4, v{vt}")
        a(f"s_sub_u32 s4, s4, s60"); a("s_mul_i32 s4, s4, 10"); a(f"s_add_u32 s4, s4, s{60+2*(NST-1)}")
        a.label("L_amp")
        a("s_memrealtime s[6:7]"); a("s_waitcnt lgkmcnt(0)")
        a("s_sub_u32 s5, s6, s4"); a("s_cmp_lt_i32 s5, 0"); a("s_cbranch_scc1 L_amp")
        return
    amp = optint("amp", -1)
    if amp >= 0:
        a("s_lshl_b32 s4, s2, 3"); a("s_add_u32 s4, s4, s3"); a("s_cmp_lg_u32 s4, %d" % (72 + optint("aw", 0))); a("s_cbranch_scc1 L_end")
        a(f"s_sub_u32 s4, s{60+2*amp}, s60"); a("s_mul_i32 s4, s4, 10"); a(f"s_add_u32 s4, s4, s{60+2*(NST-1)}")
        a.label("L_amp")
        a("s_memrealtime s[6:7]"); a("s_waitcnt lgkmcnt(0)")
        a("s_sub_u32 s5, s6, s4"); a("s_cmp_lt_i32 s5, 0"); a("s_cbranch_scc1 L_amp")
        return
    if "dbg" in OPT:
        a("s_load_dwordx2 s[4:5], s[0:1], 64")
        a("s_waitcnt lgkmcnt(0)")
        a("s_mov_b32 s6, 256"); a("s_mov_b32 s7, 0x00020000")
        a(f"v_not_b32 v{vt+14}, v{vt}")
        for k in range(15):
            a(f"buffer_atomic_umax v{vt+k}, v{vt+16}, s[4:7], 0 offen offset:{4*k}")
        return
    for q in range(4): a(f"buffer_store_dwordx4 {vr(vt+4*q,4)}, v{vt+16}, s[16:19], s96 offen offset:{16*q}")
def poll(lbl, vaddr, vtmp, soff, tag):
    a("s_mov_b32 s58, 0")
    a("s_mov_b32 exec_hi, 0")
    a.label(lbl)
    a(f"buffer_load_dword v{vtmp}, v{vaddr}, s[16:19], {soff} offen {PLF}")
    a("s_add_u32 s58, s58, 1")
    a("s_waitcnt vmcnt(0)")
    a(f"v_cmp_ne_u32 vcc, {tag}, v{vtmp}")
    a(f"s_cmp_gt_u32 s58, {SPIN_MAX}")
    a(f"s_cbranch_scc1 {lbl}_d")
    a("s_and_b64 exec, exec, vcc")
    a(f"s_cbranch_execz {lbl}_d")
    if SLEEP: a(f"s_sleep {SLEEP}")
    a(f"s_branch {lbl}")
    a.label(lbl + "_d")
    a("s_mov_b64 exec, -1")
def setflag(vtmp, soff, tag):
    a(f"v_mov_b32 v{vtmp}, {tag}"); a(f"v_lshlrev_b32 v{vtmp+1}, 2, v0")
    a("s_waitcnt vmcnt(0)")
    a("s_mov_b32 exec_hi, 0")
    a(f"buffer_store_dword v{vtmp}, v{vtmp+1}, s[16:19], {soff} offen {FSF}")
    a("s_mov_b32 exec_hi, -1")

a.label(NAME)
a.label("L_code_start")
a("s_cmp_ge_u32 s2, 256")
a("s_cbranch_scc1 L_end")
if ST:
    a("s_memrealtime s[60:61]")
    for k in range(1, NST): a(f"s_mov_b32 s{60+2*k}, 0")
a("s_load_dwordx4 s[4:7], s[0:1], 0")
a("s_load_dwordx2 s[20:21], s[0:1], 72")
a("s_load_dwordx2 s[28:29], s[0:1], 16")
a("s_load_dwordx8 s[88:95], s[0:1], 32")
a("s_getpc_b64 s[12:13]")
a("s_and_b32 s12, s12, 0xffffff00")
a("s_mov_b32 s14, L_code_end-L_code_start")
a("s_mov_b32 s15, 0x00020000")
a("v_lshlrev_b32 v6, 6, v0")
a("s_bfe_u32 s8, s2, 0x20003")
a("v_lshrrev_b32 v1, 6, v0")
a("v_cmp_eq_u32 vcc, s8, v1")
a("s_and_saveexec_b64 s[10:11], vcc")
a("s_cbranch_execz L_cp")
if "nocp" not in OPT: a("buffer_load_ubyte v5, v6, s[12:15], 0 offen")
a.label("L_cp")
a("s_mov_b64 exec, -1")
a("v_and_b32 v0, 63, v0")
a("v_readfirstlane_b32 s3, v1")
vl16 = 2; vn = 3; vL5 = 4; vE = 5
a(f"v_lshlrev_b32 v{vl16}, 4, v0")
a(f"v_and_b32 v{vn}, 31, v0")
a(f"v_lshrrev_b32 v{vL5}, 5, v0")
a("s_and_b32 s51, s3, 3")
a("s_lshl_b32 s22, s51, 9"); a("s_add_u32 s22, s22, s2"); a("s_lshl_b32 s22, s22, 11")
a("s_and_b32 s53, s2, 7"); a("s_lshl_b32 s53, s53, 5"); a("s_lshr_b32 s54, s2, 3"); a("s_add_u32 s53, s53, s54")
a("s_and_b32 s55, s2, 7"); a("s_mul_i32 s55, s55, 1026"); a("s_lshl_b32 s56, s54, 5"); a("s_add_u32 s55, s55, s56")
a("s_lshl_b32 s24, s51, 12")
a("s_lshl_b32 s57, s2, 10"); a(f"s_add_u32 s57, s57, {hx(F1_OFF)}")
a(f"s_mov_b32 s26, {hx(EP_OFF)}")
a("v_mov_b32 v7, 0")
a("s_waitcnt lgkmcnt(0)")
srd(16, 20, WSZ)
a(f"buffer_load_dword v{vE}, v7, s[16:19], s26 offen sc1")
for arr, p_ in enumerate((6, 28, 88, 90)): srd(32 + 4 * arr, p_, WBYTES)
def tags():
    a(f"v_readfirstlane_b32 s48, v{vE}")
    a("s_mul_i32 s48, s48, 0x9E3779B1"); a("s_add_u32 s48, s48, 0x7F4A7C15")
    a("s_xor_b32 s49, s48, 0x5bd1e995")
def arr_srd():
    a("s_cmp_eq_u32 s51, 0"); a("s_cselect_b32 s12, s32, s36"); a("s_cselect_b32 s13, s33, s37")
    a("s_cmp_eq_u32 s51, 2"); a("s_cselect_b32 s12, s40, s12"); a("s_cselect_b32 s13, s41, s13")
    a("s_cmp_eq_u32 s51, 3"); a("s_cselect_b32 s12, s44, s12"); a("s_cselect_b32 s13, s45, s13")
    a(f"s_mov_b32 s14, {hx(WBYTES)}"); a("s_mov_b32 s15, 0x00020000")
V2 = VAlloc(5)
vg = V2(); vc = V2(); vF = V2()
SC = V2(16, 4)
vS = V2(); vw1 = V2(); vr1 = V2(); vT = V2(); vTr = V2(); vWr = V2(); vw2 = V2(); vr2 = V2()
WW = V2(32, 4); TB = V2(8, 4)
Fr = V2(4, 4); Fm = V2(4, 4); M2 = V2(16, 4); MT = V2(16, 4); D = V2(16, 4)
assert V2.n <= 128, V2.n
vW = D; vEa = 2
Wi = lambda arr, cc, i: WW + 16 * cc + 8 * (arr >> 1) + 2 * i + (arr & 1)
MX = SC
L_GW = L_W + 16384
def p2_addr():
    t = [SC + k for k in range(6)]
    a(f"v_lshrrev_b32 v{vg}, 4, v0"); a(f"v_and_b32 v{vc}, 15, v0")
    a(f"v_lshrrev_b32 v{t[0]}, 2, v0"); a(f"v_mul_u32_u24 v{vT}, {16*TSB}, v{t[0]}")
    a(f"v_and_b32 v{t[0]}, 3, v0"); a(f"v_lshl_add_u32 v{vT}, v{t[0]}, 4, v{vT}")
    a("s_lshl_b32 s27, s3, 11")
    a(f"s_mul_i32 s23, s3, {WR}"); a(f"s_add_u32 s23, s23, {L_W}")
    a(f"v_bfe_u32 v{t[0]}, v0, 1, 4"); a(f"v_and_b32 v{t[1]}, 1, v0"); a(f"v_lshl_add_u32 v{t[0]}, v{t[0]}, 4, v{t[1]}")
    a(f"v_lshlrev_b32 v{vF}, 10, v{t[0]}")
    a("s_lshl_b32 s28, s3, 8")
    a("s_and_b32 s8, s2, 7"); a("s_lshl_b32 s8, s8, 7"); a("s_add_u32 s8, s8, s27"); a(f"s_add_u32 s8, s8, {hx(F1_OFF)}")
    a(f"v_lshlrev_b32 v{t[0]}, 4, v{vc}")
    a(f"v_lshl_or_b32 v{t[1]}, v{vg}, 9, v{t[0]}")
    a(f"v_add_u32 v{vw1}, s27, v{t[1]}"); a(f"v_add_u32 v{vw2}, s23, v{t[1]}")
    a(f"v_lshl_or_b32 v{vr1}, v{vg}, 12, v{t[0]}"); a(f"v_add_u32 v{vr1}, s28, v{vr1}")
    a(f"v_mul_u32_u24 v{vr2}, {2*WR}, v{vg}"); a(f"s_add_u32 s29, s28, {L_W}"); a(f"v_add3_u32 v{vr2}, v{vr2}, v{t[0]}, s29")
    if "x4" not in OPT:
        a(f"v_lshlrev_b32 v{t[0]}, 3, v{vc}"); a(f"v_lshl_or_b32 v{vS}, v{vg}, 13, v{t[0]}")
    else:
        a(f"v_lshlrev_b32 v{t[0]}, 4, v{vg}"); a(f"v_lshl_or_b32 v{vS}, v{vc}, 11, v{t[0]}")
def p2_item():
    t = [SC + k for k in range(6)]
    a(f"s_mul_i32 s24, s3, {2*TSB}"); a("s_lshl_b32 s26, s53, 6"); a("s_add_u32 s24, s24, s26")
    a(f"s_add_u32 s26, s24, {TSB}")
    a(f"v_lshlrev_b32 v{t[0]}, 2, v{vc}"); a(f"v_lshl_or_b32 v{vTr}, v{vg}, 8, v{t[0]}"); a(f"v_add_u32 v{vTr}, s27, v{vTr}")
    a("s_and_b32 s29, s55, 15"); a("s_add_u32 s29, s29, s23")
    a(f"v_mul_u32_u24 v{vWr}, 192, v{vg}"); a(f"v_lshl_add_u32 v{vWr}, v{vc}, 1, v{vWr}"); a(f"v_add_u32 v{vWr}, s29, v{vWr}")
    a("s_lshl_b32 s30, s53, 15"); a("s_add_u32 s30, s30, s28"); a(f"s_add_u32 s30, s30, {hx(S_OFF)}"); a("s_add_u32 s31, s30, 4096")
    a("s_lshl_b32 s9, s53, 10"); a("s_lshl_b32 s10, s3, 7"); a("s_add_u32 s9, s9, s10"); a(f"s_add_u32 s9, s9, {hx(F2_OFF)}")
    a(f"s_mul_i32 s50, s3, {2*TSB}"); a("s_and_b32 s29, s2, 7"); a("s_lshl_b32 s29, s29, 4"); a("s_add_u32 s50, s50, s29"); a("s_add_u32 s50, s50, 16384")
    a("s_cmp_eq_u32 s54, 0"); a("s_cselect_b32 s52, 0x00010001, 0")
    a(f"v_bfe_u32 v{t[0]}, v0, 4, 1"); a(f"v_lshl_add_u32 v{t[0]}, v{vc}, 4, v{t[0]}"); a(f"v_mul_u32_u24 v{vEa}, {TSB}, v{t[0]}")
    a("s_cselect_b32 s59, -1, 0")
def p2_const(dozero=True, hooks=()):
    hooks = list(hooks)
    def hook():
        if hooks: hooks.pop(0)()
    t = [SC + k for k in range(6)]
    vlf = SC + 6; vkf = SC + 7; vc0 = SC + 8; vlc = SC + 10; FA = SC + 12
    a(f"v_cvt_f32_u32 v{vlf}, v{vc}")
    a(f"v_cvt_f32_u32 v{vkf}, v{vg}"); a(f"v_mul_f32 v{vkf}, 4.0, v{vkf}")
    a(f"v_cvt_f32_u32 v{vc0}, s3"); a(f"v_mul_f32 v{vc0}, {fl(1/128)}, v{vc0}")
    a(f"v_mul_f32 v{vlc}, v{vlf}, v{vc0}")
    a(f"v_fmamk_f32 v{vlc+1}, v{vlf}, {hx(f2u(1/256))}, v{vlc}")
    a(f"v_mul_f32 v{vlf}, {fl(1/16)}, v{vlf}")
    z = iter(range(32))
    def zero(n):
        if not dozero:
            if n == 1: a("s_nop 0")
            return
        for _ in range(n):
            k = next(z, None)
            if k is not None: a(f"v_mov_b32 v{WW+k}, 0")
    def mat(ang):
        a(f"v_cos_f32 v{t[3]}, v{ang}"); a(f"v_sin_f32 v{t[4]}, v{ang}")
    def matfin(Mr, Mm):
        a(f"v_cvt_pk_bf16_f32 v{Mr}, v{t[3]}, v{t[4]}")
        a(f"v_cvt_pk_bf16_f32 v{Mm}, -v{t[4]}, v{t[3]}")
        hook()
    hook(); hook()
    for i in range(4):
        if i: a(f"v_add_f32 v{vkf}, 1.0, v{vkf}")
        a(f"v_mul_f32 v{FA+i}, v{vkf}, v{vlf}")
        mat(FA + i); zero(1); matfin(Fr + i, Fm + i)
    for i in range(3, -1, -1):
        a(f"v_fma_f32 v{t[0]}, v{vkf}, v{vc0}, v{FA+i}")
        a(f"v_fmamk_f32 v{t[1]}, v{vkf}, {hx(f2u(1/256))}, v{t[0]}")
        mat(t[0]); a(f"v_add_f32 v{t[2]}, v{FA+i}, v{vlc}"); matfin(M2 + i, M2 + 4 + i)
        mat(t[1]); a(f"v_add_f32 v{t[5]}, v{FA+i}, v{vlc+1}"); matfin(M2 + 8 + i, M2 + 12 + i)
        mat(t[2]); a(f"v_subrev_f32 v{vkf}, 1.0, v{vkf}"); matfin(MT + i, MT + 4 + i)
        mat(t[5]); zero(1); matfin(MT + 8 + i, MT + 12 + i)
    zero(32)
    a(f"v_add_f32 v{vc0}, {fl(1/128)}, v{vc0}")
    a(f"v_mov_b32 v{SC+9}, v{vkf}")
    for i in range(4):
        a(f"v_add_f32 v{SC+9}, 1.0, v{SC+9}")
        a(f"v_fma_f32 v{FA+i}, v{SC+9}, v{vc0}, v{FA+i}")
    for i in range(4):
        a(f"v_cos_f32 v{SC+10}, v{FA+i}"); a(f"v_sin_f32 v{SC+11}, v{FA+i}"); a("s_nop 0")
        a(f"v_cvt_pk_bf16_f32 v{MX+i}, v{SC+10}, v{SC+11}")
        a(f"v_cvt_pk_bf16_f32 v{MX+4+i}, -v{SC+11}, v{SC+10}")
def wvoff(dst, t0, t1):
    a(f"v_mul_u32_u24 v{t0}, 43, v0"); a(f"v_lshrrev_b32 v{t0}, 7, v{t0}")
    a(f"v_mul_u32_u24 v{t1}, 3, v{t0}"); a(f"v_sub_u32 v{t1}, v0, v{t1}")
    a(f"v_mul_u32_u24 v{dst}, {16*8*1026}, v{t0}"); a(f"v_lshl_add_u32 v{dst}, v{t1}, 4, v{dst}")
def wdma_list(vreg, adds, ccs=(0, 1)):
    ops = []
    for add in adds:
        def head(add=add):
            a(f"s_add_u32 s6, s3, {add}")
            a(f"s_mul_i32 s4, s6, {2*8*1026}"); a("s_add_u32 s4, s4, s55"); a("s_and_b32 s4, s4, 0xfffffff0")
            a(f"s_add_u32 s5, s4, {8*1026}")
            a(f"s_mul_i32 s6, s6, {WR}")
        for arr in range(4):
            for cc in ccs:
                def op(arr=arr, cc=cc, head=head):
                    if arr == 0 and cc == ccs[0]: head()
                    a("s_mov_b32 exec_hi, 0xffff")
                    a(f"s_add_u32 m0, s6, {L_W + 1536*arr + 768*cc}")
                    a(f"buffer_load_dwordx4 v{vreg}, {sr(32+4*arr,4)}, {'s4' if cc == 0 else 's5'} offen lds")
                    a("s_mov_b32 exec_hi, -1")
                ops.append(op)
    return ops
a(f"s_mov_b32 s56, {8*1026}")
a("s_cmp_ge_u32 s3, 4")
a("s_cbranch_scc1 L_h")
a("s_setprio 2")
srd(8, 4, 2048 * 2048)
a("s_add_u32 s30, s22, 0x80000")
a("s_mov_b32 m0, s24")
a(f"buffer_load_dwordx4 v{vl16}, s[8:11], s22 offen{NTX} lds")
a(f"buffer_load_dwordx4 v{vl16}, s[8:11], s22 offen offset:1024{NTX} lds")
a("s_add_u32 m0, s24, 2048")
a(f"buffer_load_dwordx4 v{vl16}, s[8:11], s30 offen{NTX} lds")
a(f"buffer_load_dwordx4 v{vl16}, s[8:11], s30 offen offset:1024{NTX} lds")
V = VAlloc(6)
vb = V(); vo = V(); vkn = V(); vtr = V(); vpf = V(); vj = V(); vpw = V(4); t = [V() for _ in range(6)]
srd(8, 92, 2048)
a("s_lshl_b32 s30, s51, 9"); a(f"s_add_u32 m0, s30, {L_GW}")
a("s_mov_b32 exec_hi, 0")
a(f"buffer_load_dwordx4 v{vl16}, s[8:11], s30 offen lds")
a("s_mov_b32 exec_hi, -1")
arr_srd()
a(f"v_and_b32 v{t[0]}, 7, v0"); a("s_lshl_b32 s30, s2, 3"); a(f"v_add_u32 v{t[0]}, s30, v{t[0]}")
a(f"v_bfe_i32 v{t[1]}, v0, 4, 1"); a(f"v_xor_b32 v{t[0]}, v{t[0]}, v{t[1]}"); a(f"v_sub_u32 v{t[0]}, v{t[0]}, v{t[1]}")
a(f"v_and_b32 v{t[0]}, 2047, v{t[0]}"); a(f"v_mul_u32_u24 v{t[2]}, 1026, v{t[0]}")
a(f"v_bfe_u32 v{t[1]}, v0, 3, 1"); a(f"v_lshl_add_u32 v{t[2]}, v{t[1]}, 10, v{t[2]}")
a(f"buffer_load_ushort v{vj}, v{t[2]}, s[12:15], 0 offen")
a("s_and_b32 s30, s2, 7"); a("s_lshl_b32 s31, s54, 6"); a("s_add_u32 s30, s30, s31"); a("s_mul_i32 s30, s30, 1026")
a(f"v_lshrrev_b32 v{t[0]}, 3, v0"); a(f"v_mul_u32_u24 v{t[2]}, {8*1026}, v{t[0]}")
a(f"v_and_b32 v{t[1]}, 7, v0"); a(f"v_lshl_add_u32 v{vpf}, v{t[1]}, 7, v{t[2]}")
vjunk = 1
def prefetch():
    a(f"buffer_load_ubyte v{vjunk}, v{vpf}, s[12:15], s30 offen{NTW}")
    a(f"buffer_load_ubyte v{vjunk}, v{vpt}, s[12:15], s30 offen offset:1024{NTW}")
NPF = 2
vpt = V()
a(f"v_and_b32 v{t[1]}, 1, v0"); a(f"v_lshl_add_u32 v{vpt}, v{t[1]}, 4, v{t[2]}")
if PFAT == 0: prefetch()
CC = V(8, 4); SS = V(8, 4); SN = V(8, 4); XR = V(8, 4); XI = V(8, 4)
BA = V(24, 4); BB = V(24, 4); TCh = V(8); TSh = V(8)
D1r = BA + 8; D1i = BB + 8; D2r = BA; D2i = BB
TC = lambda k: BA + k if k < 8 else TCh + k - 8
TS_ = lambda k: BB + k if k < 8 else TSh + k - 8
assert V.n <= 128, V.n
a(f"v_and_b32 v{t[0]}, 7, v0"); a(f"v_bfe_u32 v{t[1]}, v0, 3, 2")
a(f"v_lshl_or_b32 v{vkn}, v{t[0]}, 2, v{t[1]}")
a(f"v_cvt_f32_u32 v{vb}, v{vkn}"); a(f"v_cvt_f32_u32 v{vo}, v{vL5}")
a(f"v_mul_f32 v{vb}, {fl(1/32)}, v{vb}"); a(f"v_mul_f32 v{vo}, 4.0, v{vo}"); a(f"v_mul_f32 v{vo}, v{vb}, v{vo}")
for i in range(0, 16, 2):
    for e in range(2):
        kc = 8 * ((i + e) // 4) + (i + e) % 4
        if kc == 0: a(f"v_mov_b32 v{t[e]}, v{vo}")
        else: a(f"v_fmamk_f32 v{t[e]}, v{vb}, {hx(f2u(float(kc)))}, v{vo}")
    a(f"v_cos_f32 v{t[2]}, v{t[0]}"); a(f"v_cos_f32 v{t[3]}, v{t[1]}")
    a(f"v_sin_f32 v{t[4]}, v{t[0]}"); a(f"v_sin_f32 v{t[5]}, v{t[1]}")
    a(f"v_mul_f32 v{t[0]}, {fl(1/32)}, v{t[0]}"); a(f"v_mul_f32 v{t[1]}, {fl(1/32)}, v{t[1]}")
    a(f"v_cvt_pk_bf16_f32 v{CC+i//2}, v{t[2]}, v{t[3]}")
    a(f"v_cvt_pk_bf16_f32 v{SS+i//2}, v{t[4]}, v{t[5]}")
    a(f"v_cvt_pk_bf16_f32 v{SN+i//2}, -v{t[4]}, -v{t[5]}")
    a(f"v_cos_f32 v{TC(i)}, v{t[0]}"); a(f"v_cos_f32 v{TC(i+1)}, v{t[1]}")
    a(f"v_sin_f32 v{TS_(i)}, v{t[0]}"); a(f"v_sin_f32 v{TS_(i+1)}, v{t[1]}")
    if PFAT == i // 2 + 1: prefetch()
a(f"v_lshlrev_b32 v{vtr}, 8, v{vL5}")
a(f"v_bfe_u32 v{t[0]}, v0, 2, 2"); a(f"v_lshl_or_b32 v{vtr}, v{t[0]}, 6, v{vtr}")
a(f"v_bfe_u32 v{t[0]}, v0, 4, 1"); a(f"v_lshl_or_b32 v{vtr}, v{t[0]}, 5, v{vtr}")
a(f"v_and_b32 v{t[0]}, 3, v0"); a(f"v_lshl_or_b32 v{vtr}, v{t[0]}, 3, v{vtr}")
a(f"v_add_u32 v{vtr}, s24, v{vtr}")
a(f"v_and_b32 v{t[0]}, 7, v0"); a(f"v_bfe_u32 v{t[1]}, v0, 3, 2"); a(f"v_lshlrev_b32 v{t[1]}, 1, v{t[1]}")
a(f"v_xor_b32 v{t[0]}, v{t[0]}, v{t[1]}"); a(f"v_xor_b32 v{t[0]}, v{t[0]}, v{vL5}")
a(f"v_lshlrev_b32 v{t[0]}, 4, v{t[0]}")
a(f"v_lshl_or_b32 v{vpw}, v{vkn}, 7, v{t[0]}")
a(f"s_add_u32 s26, s24, {L_P}")
a(f"v_add_u32 v{vpw}, s26, v{vpw}")
for c in range(1, 4): a(f"v_xor_b32 v{vpw+c}, {32*c}, v{vpw}")
vet = vb
a(f"v_and_b32 v{t[0]}, 7, v0"); a(f"v_and_b32 v{t[1]}, 16, v0"); a(f"v_lshl_or_b32 v{t[0]}, v{t[0]}, 1, v{t[1]}")
a(f"v_bfe_u32 v{t[1]}, v0, 3, 1"); a(f"v_lshl_or_b32 v{t[0]}, v{t[1]}, 7, v{t[0]}")
a("s_lshl_b32 s30, s51, 5"); a(f"s_add_u32 s30, s30, {L_N}"); a(f"v_add_u32 v{vet}, s30, v{t[0]}")
ts(1)
a(f"s_waitcnt vmcnt({NPF if PFAT <= 8 else 0})")
ts(2)
tags()
a(f"ds_write_b16 v{vet}, v{vj}")
for h in range(2):
    for r, X in ((0, XR), (1, XI)):
        for tt in range(2):
            a(f"ds_read_b64_tr_b16 {vr(X+4*h+2*tt,2)}, v{vtr} offset:{r*2048+h*1024+tt*512}")
a("s_waitcnt lgkmcnt(8)")
a("s_barrier")
def cpass(R, I, Dr, Di, h, first):
    c0 = "0" if first else vr(Dr, 16); c1 = "0" if first else vr(Di, 16)
    a(f"{M32} {vr(Dr,16)}, {vr(R+4*h,4)}, {vr(CC+4*h,4)}, {c0}")
    a(f"{M32} {vr(Di,16)}, {vr(I+4*h,4)}, {vr(CC+4*h,4)}, {c1}")
    a(f"{M32} {vr(Dr,16)}, {vr(I+4*h,4)}, {vr(SS+4*h,4)}, {vr(Dr,16)}")
    a(f"{M32} {vr(Di,16)}, {vr(R+4*h,4)}, {vr(SN+4*h,4)}, {vr(Di,16)}")
a("s_waitcnt lgkmcnt(4)")
cpass(XR, XI, D1r, D1i, 0, True)
a("s_waitcnt lgkmcnt(0)")
cpass(XR, XI, D1r, D1i, 1, False)
for h in range(2):
    for i in range(8 * h, 8 * h + 8, 2):
        for e in range(2):
            k = i + e
            a(f"v_mul_f32 v{t[e]}, v{D1r+k}, v{TC(k)}")
            a(f"v_mul_f32 v{t[2+e]}, v{D1i+k}, v{TC(k)}")
            a(f"v_fmac_f32 v{t[e]}, v{D1i+k}, v{TS_(k)}")
            a(f"v_fma_f32 v{t[2+e]}, -v{D1r+k}, v{TS_(k)}, v{t[2+e]}")
        a(f"v_cvt_pk_bf16_f32 v{XR+i//2}, v{t[0]}, v{t[1]}")
        a(f"v_cvt_pk_bf16_f32 v{XI+i//2}, v{t[2]}, v{t[3]}")
    cpass(XR, XI, D2r, D2i, h, h == 0)
PK = CC
for c in range(4):
    for e in range(4):
        a(f"v_cvt_pk_bf16_f32 v{PK+4*c+e}, v{D2r+4*c+e}, v{D2i+4*c+e}")
    a(f"ds_write_b128 v{vpw+c}, {vr(PK+4*c,4)}")
a("s_waitcnt lgkmcnt(0)")
ts(3)
a("s_barrier")
a("s_setprio 0")
p2_addr()
p2_item()
wvoff(vW, SC, SC + 1)
ts(4)
a("s_barrier")
ts(5)
EARLY = "early" in OPT
SPLIT = "split" in OPT
p2_const(hooks=wdma_list(vW, [0, 4], (0,) if SPLIT else (0, 1)))
ts(6)
a("s_branch L_p2")
a.label("L_h")
a.hist = []
V = VAlloc(6)
t = [V() for _ in range(8)]
XN = V(16, 4); GW = V(8, 4)
vnat = V(); a(f"v_add_u32 v{vnat}, s24, v{vl16}")
MA = V(4, 4)
DMB = V(48, 4)
vu = DMB; vA = DMB + 1; vB1 = DMB + 2; vB2 = DMB + 3; vsg = DMB + 4
a(f"v_mov_b32 v{t[3]}, {L_C}"); a(f"v_mov_b32 v{t[4]}, 0")
a(f"ds_write_b32 v{t[3]}, v{t[4]}")
a(f"v_bfe_u32 v{t[0]}, v0, 3, 1"); a(f"v_bfe_u32 v{t[1]}, v0, 1, 1")
a(f"v_lshl_or_b32 v{t[0]}, v{t[0]}, 1, v{t[1]}")
a(f"v_and_or_b32 v{vu}, v0, 4, v{t[0]}")
a(f"v_cvt_f32_u32 v{vu}, v{vu}")
a(f"v_cvt_f32_u32 v{vsg}, v{vL5}")
a(f"v_fma_f32 v{vsg}, v{vsg}, -2.0, 1.0")
a(f"v_mul_f32 v{vA}, v{vu}, v{vsg}")
a(f"v_mul_f32 v{vA}, {fl(0.125)}, v{vA}")
a(f"v_and_b32 v{t[0]}, 1, v0"); a(f"v_cvt_f32_u32 v{t[0]}, v{t[0]}")
a(f"v_mul_f32 v{vB1}, v{t[0]}, v{vsg}"); a(f"v_mul_f32 v{vB1}, {fl(0.25)}, v{vB1}")
a(f"v_cvt_f32_u32 v{t[1]}, s2"); a(f"v_mul_f32 v{t[1]}, {fl(1/256)}, v{t[1]}")
a(f"v_fmac_f32 v{vB1}, v{t[1]}, v{vA}")
a(f"v_add_f32 v{vB2}, {fl(0.25)}, v{vB1}")
for pp in range(4):
    if pp == 0: a(f"v_mov_b32 v{t[0]}, v{vB1}")
    else: a(f"v_fmamk_f32 v{t[0]}, v{vA}, {hx(f2u(2.0*pp))}, v{vB1}")
    a(f"v_fmamk_f32 v{t[1]}, v{vA}, {hx(f2u(2.0*pp+1))}, v{vB2}")
    a(f"v_cos_f32 v{t[2]}, v{t[0]}"); a(f"v_cos_f32 v{t[3]}, v{t[1]}")
    a(f"v_sin_f32 v{t[4]}, v{t[0]}"); a(f"v_sin_f32 v{t[5]}, v{t[1]}")
    a(f"v_add_f32 v{t[2]}, v{t[2]}, v{t[3]}")
    a(f"v_add_f32 v{t[4]}, v{t[4]}, v{t[5]}")
    a(f"v_cvt_pk_bf16_f32 v{MA+pp}, v{t[2]}, v{t[4]}")
vmr = V(5); vk = DMB + 5; vneg = DMB + 6
a("s_lshl_b32 s30, s51, 7")
a(f"v_lshlrev_b32 v{t[0]}, 2, v{vn}")
a(f"v_sub_u32 v{vneg}, 0, v{vL5}")
for q in range(5):
    if q < 4: a(f"v_add3_u32 v{vk}, v{t[0]}, s30, {q}")
    else: a(f"v_add_u32 v{vk}, 512, v{t[0]}")
    a(f"v_xor_b32 v{vk}, v{vk}, v{vneg}"); a(f"v_add_u32 v{vk}, v{vk}, v{vL5}")
    a(f"v_bfe_u32 v{t[1]}, v{vk}, 5, 5")
    a(f"v_bfe_u32 v{t[2]}, v{vk}, 7, 3")
    a(f"v_xor_b32 v{t[3]}, v{vk}, v{t[1]}")
    a(f"v_and_b32 v{t[3]}, 3, v{t[3]}")
    a(f"v_bfe_u32 v{t[4]}, v{vk}, 4, 1")
    a(f"v_lshl_or_b32 v{t[3]}, v{t[3]}, 1, v{t[4]}")
    a(f"v_xor_b32 v{t[3]}, v{t[3]}, v{t[2]}")
    a(f"v_and_b32 v{t[4]}, 12, v{vk}")
    a(f"v_lshl_or_b32 v{t[4]}, v{t[3]}, 4, v{t[4]}")
    a(f"v_lshl_or_b32 v{vmr+q}, v{t[1]}, 7, v{t[4]}")
vts = V(); veo = V(); vet2 = V(); vsig = V(); ves = V()
a(f"v_lshlrev_b32 v{t[0]}, 13, v{vL5}"); a(f"v_lshl_or_b32 v{vts}, v{vn}, 4, v{t[0]}")
EV = DMB + 8
a(f"v_and_b32 v{t[0]}, 7, v0"); a(f"v_bfe_u32 v{t[1]}, v0, 3, 1")
a(f"v_lshlrev_b32 v{t[2]}, 3, v{t[1]}"); a(f"v_lshl_or_b32 v{ves}, v{t[0]}, 4, v{t[2]}")
a(f"v_and_b32 v{t[2]}, 3, v0"); a(f"v_cmp_eq_u32 vcc, 0, v{t[2]}")
a(f"v_lshrrev_b32 v{t[3]}, 2, v{t[0]}")
a(f"v_cvt_f32_u32 v{t[4]}, v{t[1]}"); a(f"v_fma_f32 v{t[4]}, v{t[4]}, -2.0, 1.0")
a(f"v_cndmask_b32 v{t[3]}, v{t[3]}, v{t[1]}, vcc")
a(f"v_cndmask_b32 v{vsig}, 0, v{t[4]}, vcc")
a(f"v_lshlrev_b32 v{t[0]}, 1, v{t[0]}"); a(f"v_lshl_or_b32 v{t[0]}, v{t[1]}, 6, v{t[0]}"); a(f"v_lshl_or_b32 v{t[0]}, v{t[3]}, 7, v{t[0]}")
a(f"v_add_u32 v{veo}, {L_N}, v{t[0]}"); a(f"v_xor_b32 v{vet2}, 64, v{veo}")
for k in range(8): a(f"v_mov_b32 v{EV+k}, 0")
a(f"s_mul_i32 s8, s2, {TSB}")
a("s_lshl_b32 s9, s51, 9"); a("s_add_u32 s9, s9, s8"); a("s_add_u32 s10, s9, 4096")
a("s_add_u32 s8, s8, 16384")
a("s_mov_b32 s11, 0xffff0000")
acc = V(4, 4); ones = V(); MB = XN; MB4 = GW
a(f"v_mov_b32 v{ones}, 0x3f803f80")
a(f"v_mov_b32 v{acc}, 0"); a(f"v_mov_b32 v{acc+2}, 0")
vWh = V()
wvoff(vWh, t[0], t[1])
assert V.n <= 128, V.n
a("s_waitcnt lgkmcnt(0)")
ts(1)
if EARLY and "e0" in OPT:
    for op in wdma_list(vWh, [0]): op()
a("s_barrier")
for r in range(2):
    for q in range(2):
        a(f"ds_read_b128 {vr(XN+8*r+4*q,4)}, v{vnat} offset:{r*2048+q*1024}")
a(f"ds_read_b128 {vr(GW,4)}, v{vl16} offset:{L_GW}")
a(f"ds_read_b128 {vr(GW+4,4)}, v{vl16} offset:{L_GW+1024}")
for k in range(4):
    a(f"ds_read_u16_d16_hi v{EV+k}, v{veo} offset:{16*k}")
    a(f"ds_read_u16_d16_hi v{EV+4+k}, v{vet2} offset:{16*k}")
a("s_waitcnt lgkmcnt(0)")
a(f"v_add_f32 v{EV+8}, v{EV}, v{EV+1}"); a(f"v_sub_f32 v{EV+9}, v{EV+2}, v{EV+3}")
a(f"v_add_f32 v{EV+4}, v{EV+4}, v{EV+5}"); a(f"v_sub_f32 v{EV+6}, v{EV+6}, v{EV+7}")
a(f"v_fma_f32 v{EV+8}, -v{vsig}, v{EV+6}, v{EV+8}"); a(f"v_fmac_f32 v{EV+9}, v{vsig}, v{EV+4}")
a(f"s_waitcnt vmcnt({8 if (EARLY and 'e0' in OPT) else 0})")
tags()
a("s_cmp_eq_u32 s51, 1"); a("s_cselect_b32 exec_lo, 0xffff, 0"); a("s_mov_b32 exec_hi, 0")
a(f"buffer_store_dwordx2 {vr(EV+8,2)}, v{ves}, s[16:19], s8 offen sc1")
if "nopw" not in OPT:
    a("s_cselect_b32 exec_lo, -1, 0"); a("s_cselect_b32 exec_hi, -1, 0")
    for k in range(4): a(f"v_mov_b32 v{EV+k}, s49")
    a(f"buffer_store_dwordx4 {vr(EV,4)}, v{vl16}, s[16:19], s57 offen sc1")
a("s_mov_b64 exec, -1")
ts(2)
eops = wdma_list(vWh, [0]) if (EARLY and "e0" not in OPT) else []
for j in range(8):
    if eops: eops.pop(0)()
    a(f"v_lshlrev_b32 v{t[6]}, 16, v{GW+j}")
    a(f"v_and_b32 v{t[7]}, s11, v{GW+j}")
    for r in range(2):
        a(f"v_lshlrev_b32 v{t[2*r]}, 16, v{XN+8*r+j}")
        a(f"v_and_b32 v{t[2*r+1]}, s11, v{XN+8*r+j}")
    for r in range(2):
        a(f"v_mul_f32 v{t[2*r]}, v{t[2*r]}, v{t[6]}")
        a(f"v_mul_f32 v{t[2*r+1]}, v{t[2*r+1]}, v{t[7]}")
    for r in range(2): a(f"v_cvt_pk_bf16_f32 v{t[4+r]}, v{t[2*r]}, v{t[2*r+1]}")
    for r in range(2): a(f"v_dot2_f32_bf16 v{acc+2*r}, v{t[4+r]}, v{ones}, v{acc+2*r}")
ts(3)
a("s_setprio 2")
a("s_barrier")
ts(4)
o = L_P // 256
a(f"ds_read2st64_b32 {vr(MB4,2)}, v{vmr+4} offset0:{o} offset1:{o+16}")
a(f"ds_read2st64_b32 {vr(MB4+2,2)}, v{vmr+4} offset0:{o+32} offset1:{o+48}")
for q in range(4):
    a(f"ds_read2st64_b32 {vr(MB+4*q,2)}, v{vmr+q} offset0:{o} offset1:{o+16}")
    a(f"ds_read2st64_b32 {vr(MB+4*q+2,2)}, v{vmr+q} offset0:{o+32} offset1:{o+48}")
DN = DMB; DM = [DMB + 8 + 8 * q for q in range(4)]
a("s_waitcnt lgkmcnt(8)")
a(f"{M32} {vr(DN,16)}, {vr(MA,4)}, {vr(MB4,4)}, 0")
for q in range(4):
    a(f"s_waitcnt lgkmcnt({6-2*q})")
    a(f"{M32} {vr(DM[q],16)}, {vr(MA,4)}, {vr(MB+4*q,4)}, 0")
a("s_cmp_eq_u32 s51, 0"); a("s_cselect_b32 exec_lo, 1, 0"); a("s_cselect_b32 exec_hi, 1, 0")
a(f"v_sub_f32 v{DM[0]}, v{DM[0]}, v{DN+1}"); a(f"v_add_f32 v{DM[0]+1}, v{DM[0]+1}, v{DN}")
a("s_mov_b32 exec_lo, 0")
for k in range(2, 8): a(f"v_mov_b32 v{DM[0]+k}, v{DN+k}")
a("s_mov_b64 exec, -1")
OUT = MB
for s_ in range(4):
    for q in range(4):
        a(f"v_cvt_pk_bf16_f32 v{OUT+4*s_+q}, v{DM[q]+2*s_}, v{DM[q]+2*s_+1}")
    a(f"buffer_store_dwordx4 {vr(OUT+4*s_,4)}, v{vts}, s[16:19], {'s9' if s_ < 2 else 's10'} offen offset:{(s_&1)*2048} sc1")
a("s_barrier")
ts(5)
for dpp in ("row_shr:1", "row_shr:2", "row_shr:4", "row_shr:8"):
    for r in range(2):
        a(f"v_add_f32_dpp v{acc+2*r}, v{acc+2*r}, v{acc+2*r} {dpp} row_mask:0xf bank_mask:0xf bound_ctrl:0")
for dpp, rm in (("row_bcast:15", "0xa"), ("row_bcast:31", "0xc")):
    for r in range(2):
        a(f"v_add_f32_dpp v{acc+2*r}, v{acc+2*r}, v{acc+2*r} {dpp} row_mask:{rm} bank_mask:0xf")
a(f"v_cvt_pk_bf16_f32 v{t[0]}, v{acc}, v{acc+2}")
a(f"v_lshlrev_b32 v{t[1]}, 16, v{t[0]}")
a(f"v_and_b32 v{t[2]}, s11, v{t[0]}")
for r in range(2): a(f"v_mul_f32 v{t[1+r]}, {hx(f2u(-1.4426950408889634))}, v{t[1+r]}")
for r in range(2): a(f"v_exp_f32 v{t[1+r]}, v{t[1+r]}")
for r in range(2): a(f"v_add_f32 v{t[1+r]}, 1.0, v{t[1+r]}")
for r in range(2): a(f"v_rcp_f32 v{t[1+r]}, v{t[1+r]}")
a(f"v_cvt_pk_bf16_f32 v{t[0]}, v{t[1]}, v{t[2]}")
a(f"v_lshlrev_b32 v{acc}, 16, v{t[0]}")
a(f"v_and_b32 v{acc+2}, s11, v{t[0]}")
a(f"v_sub_f32 v{t[1]}, 1.0, v{acc}")
a(f"v_sub_f32 v{t[2]}, 1.0, v{acc+2}")
a(f"v_cvt_pk_bf16_f32 v{t[0]}, v{t[1]}, v{t[2]}")
a(f"v_lshlrev_b32 v{acc+1}, 16, v{t[0]}")
a(f"v_and_b32 v{acc+3}, s11, v{t[0]}")
for r in range(4): a(f"v_mul_f32 v{acc+r}, {hx(f2u(2.0**-22))}, v{acc+r}")
a("s_lshl_b32 s30, s51, 4"); a(f"s_add_u32 s30, s30, {L_G}")
a(f"v_mov_b32 v{t[3]}, s30")
a("s_mov_b32 exec_lo, 0"); a("s_mov_b32 exec_hi, 0x80000000")
a(f"ds_write_b128 v{t[3]}, {vr(acc,4)}")
a("s_mov_b64 exec, -1")
a(f"v_mov_b32 v{t[3]}, {L_C}"); a(f"v_mov_b32 v{t[4]}, 1")
for k in range(4): a(f"v_mov_b32 v{DMB+k}, s48")
a("s_mov_b64 exec, 1")
a("s_waitcnt vmcnt(0)")
a(f"ds_add_rtn_u32 v{t[5]}, v{t[3]}, v{t[4]}")
a("s_waitcnt lgkmcnt(0)")
a(f"v_readfirstlane_b32 s30, v{t[5]}")
a("s_cmp_eq_u32 s30, 3"); a("s_cselect_b32 exec_lo, -1, 0"); a("s_cselect_b32 exec_hi, -1, 0")
a(f"buffer_store_dwordx4 {vr(DMB,4)}, v{vl16}, s[16:19], s57 offen {FSF}")
a("s_mov_b64 exec, -1")
a("s_setprio 0")
ts(6)
p2_addr(); p2_item(); wvoff(vW, SC, SC + 1); p2_const()
if optint("pa", 0): a(f"s_sleep {optint('pa', 0)}")
a.label("L_p2")
a.hist = []
t = [SC + k for k in range(6)]
ts(7)
poll("L_poll1", vF, TB, "s8", "s48")
def f2pre():
    if "nopw" in OPT: return
    a(f"v_mov_b32 v{TB}, s48"); a(f"v_lshlrev_b32 v{TB+1}, 2, v0")
    a("s_mov_b32 exec_hi, 0")
    a(f"buffer_store_dword v{TB}, v{TB+1}, s[16:19], s9 offen sc1")
    a("s_mov_b32 exec_hi, -1")
ts(8)
if "st2" in OPT: a("s_add_u32 s70, s60, s58")
a.label("L_p2c")
a("s_setprio 1")
a("s_mov_b32 m0, s27")
a(f"buffer_load_dwordx4 v{vT}, s[16:19], s24 offen sc1 lds")
a("s_add_u32 m0, s27, 1024")
a(f"buffer_load_dwordx4 v{vT}, s[16:19], s26 offen sc1 lds")
a("s_lshl_b32 s29, s3, 9"); a(f"s_add_u32 s29, s29, {L_E}"); a("s_mov_b32 m0, s29")
a("s_mov_b32 exec_lo, s59"); a("s_mov_b32 exec_hi, 0")
a(f"buffer_load_dwordx4 v{vEa}, s[16:19], s50 offen sc1 lds")
a("s_mov_b64 exec, -1")
if SPLIT:
    for op in wdma_list(vW, [0], (1,)): op()
def wread(cc):
    a("s_not_b32 exec_lo, s52"); a("s_not_b32 exec_hi, s52")
    for arr in range(4):
        for i in range(4):
            a(f"ds_read_u16_d16_hi v{Wi(arr,cc,i)}, v{vWr} offset:{1536*arr+768*cc+48*i}")
    a("s_mov_b64 exec, -1")
a("s_barrier")
wread(0)
if not SPLIT: wread(1)
PKD = SC + 8
a(f"s_waitcnt vmcnt({4 if SPLIT else 0})")
if ST: a("s_waitcnt lgkmcnt(0)")
ts(9)
a(f"ds_read2_b32 {vr(TB,2)}, v{vTr} offset0:0 offset1:16")
a(f"ds_read2_b32 {vr(TB+2,2)}, v{vTr} offset0:32 offset1:48")
a(f"v_add_u32 v{vTr}, 1024, v{vTr}")
a(f"ds_read2_b32 {vr(TB+4,2)}, v{vTr} offset0:0 offset1:16")
a(f"ds_read2_b32 {vr(TB+6,2)}, v{vTr} offset0:32 offset1:48")
a.label("L_p2e")
for bb in range(2):
    a(f"s_waitcnt lgkmcnt({2-2*bb})")
    a(f"{M16} {vr(D+8*bb,4)}, {vr(Fr,4)}, {vr(TB+4*bb,4)}, 0")
    a(f"{M16} {vr(D+8*bb+4,4)}, {vr(Fm,4)}, {vr(TB+4*bb,4)}, 0")
for ip in range(2):
    for cc in range(2):
        for bb in range(2):
            i = 2 * ip + cc
            a(f"v_cvt_pk_bf16_f32 v{PKD+4*ip+2*cc+bb}, v{D+8*bb+i}, v{D+8*bb+4+i}")
    a(f"ds_write_b128 v{vw1}, {vr(PKD+4*ip,4)} offset:{ip*256}")
a("s_cmp_lg_u32 s54, 0")
a("s_cbranch_scc0 L_el")
a.label("L_elb")
a("s_waitcnt lgkmcnt(0)")
f2pre()
a("s_barrier")
OB = TB
for cc in range(2):
    for h in range(2):
        a(f"ds_read_b64 {vr(OB+4*cc+2*h,2)}, v{vr1} offset:{h*2048+cc*8}")
X = D
for cc in range(2):
    a(f"s_waitcnt lgkmcnt({2-2*cc})")
    a(f"{M16} {vr(X+8*cc,4)}, {vr(M2+8*cc,4)}, {vr(OB+4*cc,4)}, 0")
    a(f"{M16} {vr(X+8*cc+4,4)}, {vr(M2+8*cc+4,4)}, {vr(OB+4*cc,4)}, 0")
YO = [PKD, PKD + 4, PKD, PKD + 4]
tpr = [(vT, vTr), (vr1, vw1)]
if SPLIT:
    a(f"s_waitcnt vmcnt({0 if 'nopw' in OPT else 1})")
    wread(1)
def dpt(cc, ab, ri): return WW + 16 * cc + 8 * ab + 4 * ri
def wmul(cc, ab):
    n = 2 * cc + ab
    xr = X + 8 * cc; xi = X + 8 * cc + 4
    for i in range(4):
        wr = Wi(2 * ab, cc, i); wi = Wi(2 * ab + 1, cc, i)
        y0, y1 = tpr[i & 1]
        a(f"v_mul_f32 v{y0}, v{xr+i}, v{wr}")
        a(f"v_mul_f32 v{y1}, v{xi+i}, v{wr}")
        a(f"v_fma_f32 v{y0}, -v{xi+i}, v{wi}, v{y0}")
        a(f"v_fmac_f32 v{y1}, v{xr+i}, v{wi}")
        a(f"v_cvt_pk_bf16_f32 v{YO[n]+i}, v{y1}, v{y0}")
    a(f"{M16} {vr(dpt(cc,ab,0),4)}, {vr(MT+8*cc,4)}, {vr(YO[n],4)}, 0")
    a(f"{M16} {vr(dpt(cc,ab,1),4)}, {vr(MT+8*cc+4,4)}, {vr(YO[n],4)}, 0")
a("s_and_b32 s29, s2, 0xfb")
a("s_cmp_eq_u32 s29, 0")
a("s_cbranch_scc1 L_sp")
for cc in range(2):
    if cc == 1: a("s_waitcnt lgkmcnt(0)")
    for ab in range(2): wmul(cc, ab)
a.label("L_spb")
XP2 = X
P2 = D
for ab in range(2):
    for ip in range(2):
        for cc in range(2):
            for bb in range(2):
                i = 2 * ip + bb
                a(f"v_cvt_pk_bf16_f32 v{P2+8*ab+4*ip+2*bb+cc}, v{dpt(cc,ab,0)+i}, v{dpt(cc,ab,1)+i}")
        a(f"ds_write_b128 v{vw2}, {vr(P2+8*ab+4*ip,4)} offset:{2048*ab+ip*256}")
a("s_waitcnt lgkmcnt(0)")
a("s_barrier")
O2 = WW + 16
for bb in range(2):
    for ab in range(2):
        for h in range(2):
            a(f"ds_read_b64 {vr(O2+8*bb+4*ab+2*h,2)}, v{vr2} offset:{WR*h+2048*ab+bb*8}")
E = [M2, M2 + 8, MT, MT + 8]
X4 = "x4" in OPT
for bb in range(2):
    for ab in range(2):
        n = 2 * bb + ab
        a(f"s_waitcnt lgkmcnt({6-2*n})")
        if X4:
            a(f"{M16} {vr(E[n],4)}, {vr(O2+4*n,4)}, {vr(Fr,4)}, 0")
            a(f"{M16} {vr(E[n]+4,4)}, {vr(O2+4*n,4)}, {vr(Fm,4)}, 0")
        else:
            a(f"{M16} {vr(E[n],4)}, {vr(Fr,4)}, {vr(O2+4*n,4)}, 0")
            a(f"{M16} {vr(E[n]+4,4)}, {vr(Fm,4)}, {vr(O2+4*n,4)}, 0")
SO = WW
for bb in range(2):
    for i in range(4):
        for ab in range(2):
            n = 2 * bb + ab
            a(f"v_cvt_pk_bf16_f32 v{SO+8*bb+2*i+ab}, v{E[n]+4+i}, v{E[n]+i}")
        if X4:
            if i & 1: a(f"buffer_store_dwordx4 {vr(SO+8*bb+2*(i-1),4)}, v{vS}, s[16:19], s30 offen offset:{(i>>1)*64+bb*128} sc1")
        else:
            a(f"buffer_store_dwordx2 {vr(SO+8*bb+2*i,2)}, v{vS}, s[16:19], {'s30' if i < 2 else 's31'} offen offset:{(i&1)*2048+bb*128} sc1")
ts(10)
amx_post(t[0])
setflag(t[0], "s9", "s49")
if "st2" in OPT: ts(1)
a("s_setprio 0")
V = VAlloc(8)
vg_ = vg; vc_ = vc
t = [V() for _ in range(6)]
vS3 = 1; vN = 2; vF3 = 7; AP8 = V(); AMx = V()
MR = V(16, 4); MI = V(16, 4); X = V(16, 4)
BA = V(24, 4); BB = V(24, 4); TCh = V(8); TSh = V(8)
assert V.n <= 128, V.n
D1r = BA + 8; D1i = BB + 8; D2r = BA; D2i = BB
SBt = [D1r, D1r + 4, D1r + 8, D1r + 12, X]
DDt = [D1i, D1i + 4, D1i + 8, D1i + 12, X + 4]
MA = X + 8; AP = X + 12; AM = [X + 13, X + 14, X + 15, AMx]
CS = D1r; GG = D1i
a(f"v_bfe_u32 v{t[0]}, v0, 2, 2"); a(f"v_lshlrev_b32 v{t[1]}, 4, v{t[0]}")
a(f"v_add_u32 v{t[1]}, {L_G}, v{t[1]}")
a(f"ds_read_b128 {vr(GG,4)}, v{t[1]}")
if X4:
    a(f"v_and_b32 v{t[1]}, 1, v0"); a(f"v_lshlrev_b32 v{t[1]}, 3, v{t[1]}")
    a(f"v_lshl_or_b32 v{t[1]}, v{t[0]}, 4, v{t[1]}")
    a(f"v_bfe_u32 v{t[2]}, v0, 1, 1"); a(f"v_lshl_or_b32 v{t[1]}, v{t[2]}, 6, v{t[1]}")
else:
    a(f"v_lshlrev_b32 v{t[1]}, 3, v{vc_}")
a(f"v_lshl_or_b32 v{vS3}, v{vg_}, 21, v{t[1]}")
a("s_xor_b32 s50, s3, 4")
a("s_lshl_b32 s8, s2, 7"); a(f"s_add_u32 s8, s8, {hx(S_OFF)}")
a("s_lshl_b32 s11, s50, 15"); a("s_add_u32 s8, s8, s11")
a(f"v_bfe_u32 v{t[1]}, v0, 2, 3"); a(f"v_and_b32 v{t[2]}, 3, v0"); a(f"v_lshlrev_b32 v{t[2]}, 3, v{t[2]}")
a(f"v_lshl_add_u32 v{t[1]}, v{t[1]}, 5, v{t[2]}"); a(f"v_add_u32 v{t[1]}, s50, v{t[1]}")
a("s_cmp_eq_u32 s50, 0"); a("s_cselect_b32 s24, 0x00010001, 0")
a(f"v_lshlrev_b32 v{vF3}, 10, v{t[1]}")
a("s_bfe_u32 s11, s2, 0x30001"); a("s_lshl_b32 s11, s11, 7"); a(f"s_add_u32 s11, s11, {hx(F2_OFF)}")
vsg = X; ve = X + 1; vstep = X + 2; vpe = X + 3; vpo = X + 4; vk = X + 5; vpl = X + 6
a(f"v_bfe_u32 v{t[1]}, v0, 1, 1"); a(f"v_cvt_f32_u32 v{vsg}, v{t[1]}")
a(f"v_mul_f32 v{vsg}, -0.5, v{vsg}"); a(f"v_add_f32 v{vsg}, {fl(0.25)}, v{vsg}")
a(f"v_and_b32 v{t[1]}, 1, v0"); a(f"v_cvt_f32_u32 v{t[1]}, v{t[1]}")
a(f"v_mul_f32 v{ve}, v{t[1]}, v{vsg}")
a(f"v_lshlrev_b32 v{t[0]}, 9, v{t[0]}"); a(f"v_add_u32 v{t[0]}, s2, v{t[0]}")
a(f"v_cvt_f32_u32 v{vstep}, v{t[0]}"); a(f"v_mul_f32 v{vstep}, {hx(f2u(-1/2048))}, v{vstep}")
a(f"v_cvt_f32_u32 v{t[2]}, v{vg_}"); a(f"v_add_f32 v{t[2]}, v{t[2]}, v{t[2]}")
a(f"v_fma_f32 v{vpe}, v{t[2]}, v{vstep}, v{ve}")
a(f"v_sub_f32 v{vpo}, v{vpe}, v{vsg}")
a(f"v_fmamk_f32 v{vpo}, v{t[2]}, {hx(f2u(-0.125))}, v{vpo}")
for lo in range(2):
    if lo:
        a(f"v_add_f32 v{vpe}, v{vpe}, v{vstep}")
        a(f"v_add_f32 v{vpo}, v{vpo}, v{vstep}"); a(f"v_add_f32 v{vpo}, {hx(f2u(-0.125))}, v{vpo}")
    a(f"v_cos_f32 v{CS+4*lo}, v{vpe}"); a(f"v_sin_f32 v{CS+4*lo+1}, v{vpe}")
    a(f"v_cos_f32 v{CS+4*lo+2}, v{vpo}"); a(f"v_sin_f32 v{CS+4*lo+3}, v{vpo}")
a("s_lshl_b32 s25, s50, 4")
a(f"v_lshlrev_b32 v{vpl}, 12, v{vg_}")
a(f"v_add_u32 v{vk}, s25, v{vc_}")
a(f"v_and_b32 v{t[3]}, 14, v{vk}"); a(f"v_lshl_or_b32 v{t[3]}, v{t[3]}, 3, v{vpl}")
a(f"v_and_b32 v{t[4]}, 31, v{vk}"); a(f"v_lshl_or_b32 v{t[3]}, v{t[4]}, 7, v{t[3]}")
a(f"v_bfe_u32 v{t[4]}, v{vk}, 5, 2"); a(f"v_lshl_or_b32 v{AP}, v{t[4]}, 2, v{t[3]}")
a(f"v_sub_u32 v{t[5]}, 0, v{vk}")
a(f"v_and_b32 v{t[4]}, 31, v{t[5]}"); a(f"v_lshl_or_b32 v{t[3]}, v{t[4]}, 7, v{vpl}")
a(f"v_and_b32 v{t[4]}, 14, v{t[5]}"); a(f"v_lshl_or_b32 v{t[3]}, v{t[4]}, 3, v{t[3]}")
a(f"v_lshrrev_b32 v{t[5]}, 3, v{t[5]}")
for tt in range(4):
    if tt: a(f"v_subrev_u32 v{t[5]}, 16, v{t[5]}")
    a(f"v_and_b32 v{t[4]}, 0x7c, v{t[5]}")
    a(f"v_xor_b32 v{AM[tt]}, v{t[4]}, v{t[3]}")
a("s_mov_b32 exec_lo, s24"); a("s_mov_b32 exec_hi, s24")
a(f"v_or_b32 v{AM[0]}, 64, v{vpl}")
a("s_mov_b64 exec, -1")
a("s_waitcnt lgkmcnt(0)")
for lo in range(2):
    for ab in range(2):
        a(f"v_mul_f32 v{t[0]}, v{GG+ab}, v{CS+4*lo}"); a(f"v_mul_f32 v{t[1]}, v{GG+ab}, v{CS+4*lo+1}")
        a(f"v_fmac_f32 v{t[0]}, v{GG+2+ab}, v{CS+4*lo+2}"); a(f"v_fmac_f32 v{t[1]}, v{GG+2+ab}, v{CS+4*lo+3}")
        a(f"v_cvt_pk_bf16_f32 v{MA+2*lo+ab}, v{t[0]}, v{t[1]}")
a("s_cmp_eq_u32 s3, 4")
a("s_cbranch_scc1 L_m0")
a("s_cmp_ge_u32 s3, 4")
a("s_cbranch_scc1 L_p3b")
TC = lambda k: BA + k if k < 8 else TCh + k - 8
TS_ = lambda k: BB + k if k < 8 else TSh + k - 8
vb = X; vo = X + 1
a(f"v_cvt_f32_u32 v{vb}, v{vn}"); a(f"v_cvt_f32_u32 v{vo}, v{vL5}")
a(f"v_mul_f32 v{vb}, {fl(1/32)}, v{vb}"); a(f"v_mul_f32 v{vo}, 4.0, v{vo}"); a(f"v_mul_f32 v{vo}, v{vb}, v{vo}")
for i in range(16):
    kc = 8 * (i // 4) + i % 4
    if kc == 0: a(f"v_mov_b32 v{t[0]}, v{vo}")
    else: a(f"v_fmamk_f32 v{t[0]}, v{vb}, {hx(f2u(float(kc)))}, v{vo}")
    a(f"v_cos_f32 v{t[1]}, v{t[0]}"); a(f"v_sin_f32 v{t[2]}, v{t[0]}")
    a(f"v_mul_f32 v{t[0]}, {fl(1/32)}, v{t[0]}")
    a(f"v_cvt_pk_bf16_f32 v{MR+i}, v{t[1]}, -v{t[2]}")
    a(f"v_cvt_pk_bf16_f32 v{MI+i}, v{t[2]}, v{t[1]}")
    a(f"v_cos_f32 v{TC(i)}, v{t[0]}"); a(f"v_sin_f32 v{TS_(i)}, v{t[0]}")
a.label("L_p3b")
if optint("pb", 0): a(f"s_sleep {optint('pb', 0)}")
ts(11)
poll("L_poll2", vF3, t[0], "s11", "s49")
ts(12)
if "st2" in OPT: a("s_add_u32 s64, s60, s58")
for tt in range(4):
    for lo in range(2):
        a(f"s_add_u32 s26, s8, {hx(tt*8*32768 + lo*(1<<20))}")
        a(f"buffer_load_dwordx2 {vr(SBt[tt]+2*lo,2)}, v{vS3}, s[16:19], s26 offen sc1")
MA0 = MR
def fin(tt):
    d = DDt[tt]
    if tt == 0:
        a("s_mov_b32 exec_lo, s24"); a("s_mov_b32 exec_hi, s24")
        for k in range(4): a(f"v_mov_b32 v{d+k}, v{DDt[4]+k}")
        a("s_mov_b64 exec, -1")
    a(f"v_cvt_pk_bf16_f32 v{d}, v{d}, v{d+1}")
    a(f"v_cvt_pk_bf16_f32 v{d+1}, v{d+2}, v{d+3}")
    if tt: a(f"v_xor_b32 v{t[tt]}, {tt<<4}, v{AP}")
    a(f"ds_write_b32 v{t[tt] if tt else AP}, v{d}")
    a(f"ds_write_b32 v{AM[tt]}, v{d+1}")
for tt in range(4):
    a(f"s_waitcnt vmcnt({max(0, 6-2*tt)})")
    a(f"{M16} {vr(DDt[tt],4)}, {vr(MA,4)}, {vr(SBt[tt],4)}, 0")
    if tt == 0: a(f"{M16} {vr(DDt[4],4)}, {vr(MA0,4)}, {vr(SBt[0],4)}, 0")
    if tt >= 1: fin(tt - 1)
fin(3)
vst = vS3
a(f"v_bfe_u32 v{t[4]}, v{vn}, 1, 3"); a(f"v_xor_b32 v{t[4]}, v{t[4]}, v{vL5}"); a(f"v_lshlrev_b32 v{t[4]}, 4, v{t[4]}")
a(f"v_lshl_or_b32 v{t[4]}, v{vn}, 7, v{t[4]}"); a("s_lshl_b32 s26, s51, 12")
a("s_waitcnt lgkmcnt(0)")
a(f"v_add_u32 v{t[0]}, s26, v{t[4]}")
for q in range(1, 4): a(f"v_xor_b32 v{t[q]}, {32*q}, v{t[0]}")
a(f"v_lshlrev_b32 v{t[4]}, 4, v{vL5}"); a(f"v_lshl_or_b32 v{vst}, v{vn}, 6, v{t[4]}")
srd(12, 94, 2048 * 2048)
a("s_add_u32 s30, s22, 0x80000")
if "st2" in OPT: ts(3)
a("s_barrier")
if "st2" in OPT: ts(4)
a("s_cmp_ge_u32 s3, 4")
a("s_cbranch_scc1 L_hx")
for q in range(4): a(f"ds_read_b128 {vr(X+4*q,4)}, v{t[q]}")
for q in range(4):
    a(f"s_waitcnt lgkmcnt({3-q})")
    a(f"{M32} {vr(D1r,16)}, {vr(X+4*q,4)}, {vr(MR+4*q,4)}, {'0' if q == 0 else vr(D1r,16)}")
    a(f"{M32} {vr(D1i,16)}, {vr(X+4*q,4)}, {vr(MI+4*q,4)}, {'0' if q == 0 else vr(D1i,16)}")
def p2m(q):
    a(f"{M32} {vr(D2r,16)}, {vr(X+4*q,4)}, {vr(MR+4*q,4)}, {'0' if q == 0 else vr(D2r,16)}")
    a(f"{M32} {vr(D2i,16)}, {vr(X+4*q,4)}, {vr(MI+4*q,4)}, {'0' if q == 0 else vr(D2i,16)}")
for q in range(4):
    for e in range(4):
        k = 4 * q + e
        a(f"v_mul_f32 v{t[0]}, v{D1r+k}, v{TC(k)}")
        a(f"v_mul_f32 v{t[1]}, v{D1i+k}, v{TC(k)}")
        a(f"v_fma_f32 v{t[0]}, -v{D1i+k}, v{TS_(k)}, v{t[0]}")
        a(f"v_fmac_f32 v{t[1]}, v{D1r+k}, v{TS_(k)}")
        a(f"v_cvt_pk_bf16_f32 v{X+k}, v{t[0]}, v{t[1]}")
        if q == 2 and e == 1: p2m(1)
    if q == 1: p2m(0)
    if q >= 2: p2m(q)
O = MR
for r, (Dx, so) in enumerate(((D2r, "s22"), (D2i, "s30"))):
    for c2 in range(2):
        o = O + 8 * r + 4 * c2
        for e in range(4):
            a(f"v_cvt_pk_bf16_f32 v{o+e}, v{Dx+8*c2+2*e}, v{Dx+8*c2+2*e+1}")
        a(f"v_permlane32_swap_b32 v{o}, v{o+2}")
        a(f"v_permlane32_swap_b32 v{o+1}, v{o+3}")
        a(f"buffer_store_dwordx4 {vr(o,4)}, v{vst}, s[12:15], {so} offen offset:{32*c2}")
a.label("L_fin")
stamp_end(32)
a.label("L_end")
a("s_endpgm")
a.label("L_hx")
a("s_lshl_b32 s26, s2, 3"); a("s_add_u32 s26, s26, s3")
a("s_cmp_lg_u32 s26, 4")
a("s_cbranch_scc1 L_fin")
a(f"s_mov_b32 s26, {hx(EP_OFF)}")
setflag(8, "s26", "s49")
a("s_branch L_fin")
a.label("L_m0")
a.hist = []
q_ = [MI + k for k in range(16)]
gaa = q_[0]; gbb = q_[1]; ph = q_[2]; st_ = q_[3]; c_ = q_[4]; s__ = q_[5]; al = q_[6]; be = q_[7]
a(f"v_and_b32 v{t[0]}, 1, v0"); a(f"v_cmp_eq_u32 vcc, 1, v{t[0]}")
a(f"v_bfe_u32 v{t[1]}, v0, 2, 2"); a(f"v_lshl_or_b32 v{t[1]}, v{t[1]}, 1, v{t[0]}")
a(f"v_cndmask_b32 v{gaa}, v{GG}, v{GG+2}, vcc"); a(f"v_cndmask_b32 v{gbb}, v{GG+1}, v{GG+3}, vcc")
a(f"v_lshlrev_b32 v{t[1]}, 8, v{t[1]}"); a(f"v_add_u32 v{t[1]}, s2, v{t[1]}")
a(f"v_cvt_f32_u32 v{st_}, v{t[1]}"); a(f"v_mul_f32 v{st_}, {hx(f2u(1/2048))}, v{st_}")
a(f"v_cvt_f32_u32 v{ph}, v{vg_}"); a(f"v_add_f32 v{ph}, v{ph}, v{ph}"); a(f"v_mul_f32 v{ph}, v{ph}, v{st_}")
a(f"v_bfe_u32 v{t[2]}, v0, 1, 1")
a(f"v_lshrrev_b32 v{t[3]}, 1, v{vg_}"); a(f"v_cmp_eq_u32 s[4:5], v{t[2]}, v{t[3]}")
a(f"v_and_b32 v{t[3]}, 1, v{vg_}"); a(f"v_cmp_eq_u32 s[6:7], 0, v{t[3]}")
a(f"v_cmp_eq_u32 s[14:15], 0, v{t[2]}")
a(f"v_cndmask_b32 v{q_[8]}, 0, v{gaa}, s[4:5]"); a(f"v_cndmask_b32 v{q_[9]}, 0, v{gbb}, s[4:5]")
a(f"v_mul_f32 v{q_[10]}, {fl(0.25)}, v{gaa}"); a(f"v_mul_f32 v{q_[11]}, {fl(0.25)}, v{gbb}")
for lo in range(2):
    if lo: a(f"v_add_f32 v{ph}, v{ph}, v{st_}")
    a(f"v_cos_f32 v{c_}, v{ph}"); a(f"v_sin_f32 v{s__}, v{ph}")
    for ab in range(2):
        if lo == 0:
            if ab == 0:
                a(f"v_cndmask_b32 v{al}, 0, v{q_[10]}, s[14:15]"); a(f"v_cndmask_b32 v{be}, 0, v{q_[11]}, s[14:15]")
            else:
                a(f"v_cndmask_b32 v{al}, v{q_[10]}, 0, s[14:15]"); a(f"v_cndmask_b32 v{be}, v{q_[11]}, 0, s[14:15]")
            a(f"v_cndmask_b32 v{al}, v{q_[8+ab]}, v{al}, s[6:7]"); a(f"v_cndmask_b32 v{be}, 0, v{be}, s[6:7]")
            a(f"v_mul_f32 v{t[0]}, v{al}, v{c_}"); a(f"v_fmac_f32 v{t[0]}, v{be}, v{s__}")
            a(f"v_mul_f32 v{t[1]}, v{be}, v{c_}"); a(f"v_fma_f32 v{t[1]}, -v{al}, v{s__}, v{t[1]}")
            a(f"v_cvt_pk_bf16_f32 v{MA0+2*lo+ab}, v{t[0]}, v{t[1]}")
        else:
            a(f"v_mul_f32 v{t[0]}, v{q_[8+ab]}, v{c_}"); a(f"v_mul_f32 v{t[1]}, v{q_[8+ab]}, v{s__}")
            a(f"v_cvt_pk_bf16_f32 v{MA0+2*lo+ab}, v{t[0]}, -v{t[1]}")
a("s_branch L_p3b")
a.label("L_el")
a.hist = []
a(f"v_lshlrev_b32 v{vEa}, 6, v{vg}"); a(f"v_add_u32 v{vEa}, s29, v{vEa}")
a("s_mov_b32 exec_lo, s52"); a("s_mov_b32 exec_hi, s52")
for cc in range(2):
    for i in range(4):
        for ab in range(2):
            a(f"ds_read_b64 {vr(Wi(2*ab,cc,i),2)}, v{vEa} offset:{256*cc+16*i+8*ab}")
a("s_mov_b64 exec, -1")
a("s_branch L_elb")
a.label("L_sp")
a.hist = []
X = XP2
ts(3)
a("s_lshr_b32 s29, s2, 2"); a("s_lshl_b32 s10, s3, 1"); a("s_add_u32 s29, s29, s10"); a("s_sub_u32 s29, 16, s29")
for cc in range(2):
    a(f"s_sub_u32 s10, s29, {cc}"); a("s_and_b32 s10, s10, 15")
    a("s_lshr_b32 s11, s10, 1"); a("s_lshl_b32 s11, s11, 8"); a("s_and_b32 s10, s10, 1"); a("s_lshl_b32 s10, s10, 3"); a("s_add_u32 s10, s10, s11")
    a(f"v_lshlrev_b32 v{tpr[0][cc]}, 12, v{vg}"); a(f"v_add_u32 v{tpr[0][cc]}, s10, v{tpr[0][cc]}")
for k in range(8): a(f"v_mov_b32 v{TB+k}, 0")
a("s_mov_b32 exec_lo, 0x00010001"); a("s_mov_b32 exec_hi, 0x00010001")
for cc in range(2):
    for h in range(2):
        a(f"ds_read_b64 {vr(TB+4*cc+2*h,2)}, v{tpr[0][cc]} offset:{h*2048}")
a("s_mov_b32 s10, 0x80000000"); a("s_mov_b32 s11, 0x80008000")
a("s_waitcnt lgkmcnt(0)")
for k in range(8): a(f"v_xor_b32 v{TB+k}, s10, v{TB+k}")
a("s_mov_b64 exec, -1")
ts(4)
a("s_cmp_lg_u32 s2, 0")
a("s_cbranch_scc1 L_sp4")
def sp_body(mats):
    def acc(cc):
        a(f"{M16} {vr(X+8*cc,4)}, {vr(mats[cc],4)}, {vr(TB+4*cc,4)}, {vr(X+8*cc,4)}")
        a(f"{M16} {vr(X+8*cc+4,4)}, {vr(mats[cc]+4,4)}, {vr(TB+4*cc,4)}, {vr(X+8*cc+4,4)}")
    acc(0); acc(1)
    a("s_mov_b32 exec_lo, 0x00010001"); a("s_mov_b32 exec_hi, 0x00010001")
    for k in range(8): a(f"v_xor_b32 v{TB+k}, s11, v{TB+k}")
    a("s_mov_b64 exec, -1")
    wmul(0, 0); acc(0); acc(0)
    wmul(1, 0); acc(1); acc(1)
    wmul(0, 1)
    wmul(1, 1)
    ts(6)
    a("s_nop 7")
    a("s_branch L_spb")
YO = [PKD, PKD, PKD + 4, PKD + 4]
sp_body([M2, M2 + 8])
a.label("L_sp4")
a.hist = []
a("s_nop 1")
sp_body([M2 + 8, MX])

nv = (a.maxv + 1 + 7) // 8 * 8
out = "; gated_mix spectral gfnet: persistent MFMA FFT pipeline (generated by gen5.py)\n"
out += f"; @launch grid=(256,1,1) block=(512,1,1) lds={LDS_BYTES}\n"
out += '.amdgcn_target "amdgcn-amd-amdhsa--gfx950"\n.text\n'
out += f".globl {NAME}\n.p2align 8\n.type {NAME},@function\n" + a.text() + ".rept 96\n    s_endpgm\n.endr\nL_code_end:\n"
out += f""".section .rodata,"a"
.p2align 6
.amdhsa_kernel {NAME}
  .amdhsa_next_free_vgpr {nv}
  .amdhsa_next_free_sgpr {min(102, a.maxs + 1)}
  .amdhsa_accum_offset {nv}
  .amdhsa_group_segment_fixed_size 0
  .amdhsa_kernarg_size 80
  .amdhsa_user_sgpr_count 2
  .amdhsa_user_sgpr_kernarg_segment_ptr 1
  .amdhsa_system_sgpr_workgroup_id_x 1
  .amdhsa_float_denorm_mode_32 3
.end_amdhsa_kernel
"""
sys.stderr.write(f"vgpr {a.maxv+1} sgpr {a.maxs+1} lines {len(a.lines)} nops {a.nops}\n")
print(out)
```

```python
import sys
from asmlib import *
NAME = "gated_mix__spectral_gfnet__spectral_gfnet__prompt_kernel"
TSB = 16512
S_OFF = 0x500000
import sys as _s
for _o in _s.argv:
    if _o.startswith('soff'): S_OFF = int(_o[4:]) << 20
F1_OFF = 0xE20000
F2_OFF = 0xE80000
EP_OFF = 0xEF0000
WS_SIZE = 0xF00000
WBYTES = 2048 * 1026
M32 = "v_mfma_f32_32x32x16_bf16"
M16 = "v_mfma_f32_16x16x32_bf16"
OPT = set(sys.argv[1:])
ST = "stamps" in OPT
WSZ = 0x10000000 if ST else WS_SIZE
L_A = 0; L_W = 16384; L_P = L_W; WR = 6144; L_G = 65536; L_N = 65664; L_C = 65920; L_E = 65936; LDS_BYTES = 65936 + 4096
def optint(pfx, d):
    for o in OPT:
        if o.startswith(pfx) and o[len(pfx):].isdigit(): return int(o[len(pfx):])
    return d
SLEEP = optint("sl", 1); PFAT = optint("pf", 8); NWG = optint("nwg", 0)
SPIN_MAX = 400000
NTX = " nt" if "ntx" in OPT else ""
NTW = " nt" if "ntw" in OPT else ""
PLF = "sc0 sc1" if "psys" in OPT else ("sc1 nt" if "pnt" in OPT else ("sc0 sc1 nt" if "psysnt" in OPT else "sc1"))
FSF = "sc0 sc1" if "fsys" in OPT else "sc1"
SSF = "sc0 sc1" if "ssys" in OPT else ("sc1 nt" if "snt" in OPT else ("" if "swb" in OPT else "sc1"))
a = Asm()
def srd(d, base, size):
    a(f"s_mov_b32 s{d}, s{base}"); a(f"s_mov_b32 s{d+1}, s{base+1}")
    a(f"s_mov_b32 s{d+2}, {hx(size)}"); a(f"s_mov_b32 s{d+3}, 0x00020000")
NST = 14
AMX = optint("amx", -1)
def ts(k):
    if ST:
        a(f"s_memrealtime s[{60+2*k}:{61+2*k}]")
        a("s_waitcnt lgkmcnt(0)")
def amx_post(vt):
    if AMX < 0: return
    a("s_load_dwordx2 s[4:5], s[0:1], 64")
    a("s_waitcnt lgkmcnt(0)")
    a("s_mov_b32 s6, 256"); a("s_mov_b32 s7, 0x00020000")
    a(f"v_mov_b32 v{vt}, s{60+2*AMX}"); a("s_and_b32 s96, s2, 7"); a("s_lshl_b32 s96, s96, 2"); a(f"v_mov_b32 v{vt+1}, s96")
    a("s_cmp_eq_u32 s3, %d" % optint("aw", 0)); a("s_cselect_b32 exec_lo, 1, 0"); a("s_mov_b32 exec_hi, 0")
    a(f"buffer_atomic_umax v{vt}, v{vt+1}, s[4:7], 0 offen")
    a("s_mov_b64 exec, -1")
def stamp_end(vt):
    if not ST: return
    a("s_waitcnt vmcnt(0)")
    ts(NST - 1)
    for k in range(16): a(f"v_mov_b32 v{vt+k}, {'s%d' % (60+2*k) if k < NST else '0'}")
    a("s_lshl_b32 s96, s3, 6"); a("s_lshl_b32 s97, s2, 9"); a("s_add_u32 s96, s96, s97")
    a(f"s_add_u32 s96, s96, 0x3000000")
    a(f"v_mov_b32 v{vt+16}, 0")
    a("s_mov_b64 exec, 1")
    if AMX >= 0:
        a("s_lshl_b32 s96, s2, 3"); a("s_add_u32 s96, s96, s3"); a("s_cmp_lg_u32 s96, 72"); a("s_cbranch_scc1 L_end")
        a("s_load_dwordx2 s[4:5], s[0:1], 64")
        a("s_waitcnt lgkmcnt(0)")
        a("s_mov_b32 s6, 256"); a("s_mov_b32 s7, 0x00020000")
        a(f"buffer_load_dwordx4 {vr(vt,4)}, v{vt+16}, s[4:7], 0 offen sc1")
        a(f"buffer_load_dwordx4 {vr(vt+4,4)}, v{vt+16}, s[4:7], 0 offen offset:16 sc1")
        a("s_waitcnt vmcnt(0)")
        for k in range(1, 8): a(f"v_max_u32 v{vt}, v{vt}, v{vt+k}")
        a("s_nop 1")
        a(f"v_readfirstlane_b32 s4, v{vt}")
        a(f"s_sub_u32 s4, s4, s60"); a("s_mul_i32 s4, s4, 10"); a(f"s_add_u32 s4, s4, s{60+2*(NST-1)}")
        a.label("L_amp")
        a("s_memrealtime s[6:7]"); a("s_waitcnt lgkmcnt(0)")
        a("s_sub_u32 s5, s6, s4"); a("s_cmp_lt_i32 s5, 0"); a("s_cbranch_scc1 L_amp")
        return
    amp = optint("amp", -1)
    if amp >= 0:
        a("s_lshl_b32 s4, s2, 3"); a("s_add_u32 s4, s4, s3"); a("s_cmp_lg_u32 s4, %d" % (72 + optint("aw", 0))); a("s_cbranch_scc1 L_end")
        a(f"s_sub_u32 s4, s{60+2*amp}, s60"); a("s_mul_i32 s4, s4, 10"); a(f"s_add_u32 s4, s4, s{60+2*(NST-1)}")
        a.label("L_amp")
        a("s_memrealtime s[6:7]"); a("s_waitcnt lgkmcnt(0)")
        a("s_sub_u32 s5, s6, s4"); a("s_cmp_lt_i32 s5, 0"); a("s_cbranch_scc1 L_amp")
        return
    if "dbg" in OPT:
        a("s_load_dwordx2 s[4:5], s[0:1], 64")
        a("s_waitcnt lgkmcnt(0)")
        a("s_mov_b32 s6, 256"); a("s_mov_b32 s7, 0x00020000")
        a(f"v_not_b32 v{vt+14}, v{vt}")
        for k in range(15):
            a(f"buffer_atomic_umax v{vt+k}, v{vt+16}, s[4:7], 0 offen offset:{4*k}")
        return
    for q in range(4): a(f"buffer_store_dwordx4 {vr(vt+4*q,4)}, v{vt+16}, s[16:19], s96 offen offset:{16*q}")
def poll(lbl, vaddr, vtmp, soff, tag):
    a("s_mov_b32 s58, 0")
    a("s_mov_b32 exec_hi, 0")
    a.label(lbl)
    a(f"buffer_load_dword v{vtmp}, v{vaddr}, s[16:19], {soff} offen {PLF}")
    a("s_add_u32 s58, s58, 1")
    a("s_waitcnt vmcnt(0)")
    a(f"v_cmp_ne_u32 vcc, {tag}, v{vtmp}")
    a(f"s_cmp_gt_u32 s58, {SPIN_MAX}")
    a(f"s_cbranch_scc1 {lbl}_d")
    a("s_and_b64 exec, exec, vcc")
    a(f"s_cbranch_execz {lbl}_d")
    if SLEEP: a(f"s_sleep {SLEEP}")
    a(f"s_branch {lbl}")
    a.label(lbl + "_d")
    a("s_mov_b64 exec, -1")
def setflag(vtmp, soff, tag):
    a(f"v_mov_b32 v{vtmp}, {tag}"); a(f"v_lshlrev_b32 v{vtmp+1}, 2, v0")
    a("s_waitcnt vmcnt(0)")
    a("s_mov_b32 exec_hi, 0")
    a(f"buffer_store_dword v{vtmp}, v{vtmp+1}, s[16:19], {soff} offen {FSF}")
    a("s_mov_b32 exec_hi, -1")

a.label(NAME)
a.label("L_code_start")
a("s_cmp_ge_u32 s2, 256")
a("s_cbranch_scc1 L_end")
if ST:
    a("s_memrealtime s[60:61]")
    for k in range(1, NST): a(f"s_mov_b32 s{60+2*k}, 0")
a("s_load_dwordx4 s[4:7], s[0:1], 0")
a("s_load_dwordx2 s[20:21], s[0:1], 72")
a("s_load_dwordx2 s[28:29], s[0:1], 16")
a("s_load_dwordx8 s[88:95], s[0:1], 32")
a("s_getpc_b64 s[12:13]")
a("s_and_b32 s12, s12, 0xffffff00")
a("s_mov_b32 s14, L_code_end-L_code_start")
a("s_mov_b32 s15, 0x00020000")
a("v_lshlrev_b32 v6, 6, v0")
a("s_bfe_u32 s8, s2, 0x20003")
a("v_lshrrev_b32 v1, 6, v0")
a("v_cmp_eq_u32 vcc, s8, v1")
a("s_and_saveexec_b64 s[10:11], vcc")
a("s_cbranch_execz L_cp")
if "nocp" not in OPT: a("buffer_load_ubyte v5, v6, s[12:15], 0 offen")
a.label("L_cp")
a("s_mov_b64 exec, -1")
a("v_and_b32 v0, 63, v0")
a("v_readfirstlane_b32 s3, v1")
vl16 = 2; vn = 3; vL5 = 4; vE = 5
a(f"v_lshlrev_b32 v{vl16}, 4, v0")
a(f"v_and_b32 v{vn}, 31, v0")
a(f"v_lshrrev_b32 v{vL5}, 5, v0")
a("s_and_b32 s51, s3, 3")
a("s_lshl_b32 s22, s51, 9"); a("s_add_u32 s22, s22, s2"); a("s_lshl_b32 s22, s22, 11")
a("s_and_b32 s53, s2, 7"); a("s_lshl_b32 s53, s53, 5"); a("s_lshr_b32 s54, s2, 3"); a("s_add_u32 s53, s53, s54")
a("s_and_b32 s55, s2, 7"); a("s_mul_i32 s55, s55, 1026"); a("s_lshl_b32 s56, s54, 5"); a("s_add_u32 s55, s55, s56")
a("s_lshl_b32 s24, s51, 12")
a("s_lshl_b32 s57, s2, 10"); a(f"s_add_u32 s57, s57, {hx(F1_OFF)}")
a(f"s_mov_b32 s26, {hx(EP_OFF)}")
a("v_mov_b32 v7, 0")
a("s_waitcnt lgkmcnt(0)")
srd(16, 20, WSZ)
a(f"buffer_load_dword v{vE}, v7, s[16:19], s26 offen sc1")
for arr, p_ in enumerate((6, 28, 88, 90)): srd(32 + 4 * arr, p_, WBYTES)
def tags():
    a(f"v_readfirstlane_b32 s48, v{vE}")
    a("s_mul_i32 s48, s48, 0x9E3779B1"); a("s_add_u32 s48, s48, 0x7F4A7C15")
    a("s_xor_b32 s49, s48, 0x5bd1e995")
def arr_srd():
    a("s_cmp_eq_u32 s51, 0"); a("s_cselect_b32 s12, s32, s36"); a("s_cselect_b32 s13, s33, s37")
    a("s_cmp_eq_u32 s51, 2"); a("s_cselect_b32 s12, s40, s12"); a("s_cselect_b32 s13, s41, s13")
    a("s_cmp_eq_u32 s51, 3"); a("s_cselect_b32 s12, s44, s12"); a("s_cselect_b32 s13, s45, s13")
    a(f"s_mov_b32 s14, {hx(WBYTES)}"); a("s_mov_b32 s15, 0x00020000")
V2 = VAlloc(5)
vg = V2(); vc = V2(); vF = V2()
SC = V2(16, 4)
vS = V2(); vw1 = V2(); vr1 = V2(); vT = V2(); vTr = V2(); vWr = V2(); vw2 = V2(); vr2 = V2()
WW = V2(32, 4); TB = V2(8, 4)
Fr = V2(4, 4); Fm = V2(4, 4); M2 = V2(16, 4); MT = V2(16, 4); D = V2(16, 4)
assert V2.n <= 128, V2.n
vW = D; vEa = 2
Wi = lambda arr, cc, i: WW + 16 * cc + 8 * (arr >> 1) + 2 * i + (arr & 1)
MX = SC
L_GW = L_W + 16384
def p2_addr():
    t = [SC + k for k in range(6)]
    a(f"v_lshrrev_b32 v{vg}, 4, v0"); a(f"v_and_b32 v{vc}, 15, v0")
    a(f"v_lshrrev_b32 v{t[0]}, 2, v0"); a(f"v_mul_u32_u24 v{vT}, {16*TSB}, v{t[0]}")
    a(f"v_and_b32 v{t[0]}, 3, v0"); a(f"v_lshl_add_u32 v{vT}, v{t[0]}, 4, v{vT}")
    a("s_lshl_b32 s27, s3, 11")
    a(f"s_mul_i32 s23, s3, {WR}"); a(f"s_add_u32 s23, s23, {L_W}")
    a(f"v_bfe_u32 v{t[0]}, v0, 1, 4"); a(f"v_and_b32 v{t[1]}, 1, v0"); a(f"v_lshl_add_u32 v{t[0]}, v{t[0]}, 4, v{t[1]}")
    a(f"v_lshlrev_b32 v{vF}, 10, v{t[0]}")
    a("s_lshl_b32 s28, s3, 8")
    a("s_and_b32 s8, s2, 7"); a("s_lshl_b32 s8, s8, 7"); a("s_add_u32 s8, s8, s27"); a(f"s_add_u32 s8, s8, {hx(F1_OFF)}")
    a(f"v_lshlrev_b32 v{t[0]}, 4, v{vc}")
    a(f"v_lshl_or_b32 v{t[1]}, v{vg}, 9, v{t[0]}")
    a(f"v_add_u32 v{vw1}, s27, v{t[1]}"); a(f"v_add_u32 v{vw2}, s23, v{t[1]}")
    a(f"v_lshl_or_b32 v{vr1}, v{vg}, 12, v{t[0]}"); a(f"v_add_u32 v{vr1}, s28, v{vr1}")
    a(f"v_mul_u32_u24 v{vr2}, {2*WR}, v{vg}"); a(f"s_add_u32 s29, s28, {L_W}"); a(f"v_add3_u32 v{vr2}, v{vr2}, v{t[0]}, s29")
    if "x4" not in OPT:
        a(f"v_lshlrev_b32 v{t[0]}, 3, v{vc}"); a(f"v_lshl_or_b32 v{vS}, v{vg}, 13, v{t[0]}")
    else:
        a(f"v_lshlrev_b32 v{t[0]}, 4, v{vg}"); a(f"v_lshl_or_b32 v{vS}, v{vc}, 11, v{t[0]}")
def p2_item():
    t = [SC + k for k in range(6)]
    a(f"s_mul_i32 s24, s3, {2*TSB}"); a("s_lshl_b32 s26, s53, 6"); a("s_add_u32 s24, s24, s26")
    a(f"s_add_u32 s26, s24, {TSB}")
    a(f"v_lshlrev_b32 v{t[0]}, 2, v{vc}"); a(f"v_lshl_or_b32 v{vTr}, v{vg}, 8, v{t[0]}"); a(f"v_add_u32 v{vTr}, s27, v{vTr}")
    a("s_and_b32 s29, s55, 15"); a("s_add_u32 s29, s29, s23")
    a(f"v_mul_u32_u24 v{vWr}, 192, v{vg}"); a(f"v_lshl_add_u32 v{vWr}, v{vc}, 1, v{vWr}"); a(f"v_add_u32 v{vWr}, s29, v{vWr}")
    a("s_lshl_b32 s30, s53, 15"); a("s_add_u32 s30, s30, s28"); a(f"s_add_u32 s30, s30, {hx(S_OFF)}"); a("s_add_u32 s31, s30, 4096")
    a("s_lshl_b32 s9, s53, 10"); a("s_lshl_b32 s10, s3, 7"); a("s_add_u32 s9, s9, s10"); a(f"s_add_u32 s9, s9, {hx(F2_OFF)}")
    a(f"s_mul_i32 s50, s3, {2*TSB}"); a("s_and_b32 s29, s2, 7"); a("s_lshl_b32 s29, s29, 4"); a("s_add_u32 s50, s50, s29"); a("s_add_u32 s50, s50, 16384")
    a("s_cmp_eq_u32 s54, 0"); a("s_cselect_b32 s52, 0x00010001, 0")
    a(f"v_bfe_u32 v{t[0]}, v0, 4, 1"); a(f"v_lshl_add_u32 v{t[0]}, v{vc}, 4, v{t[0]}"); a(f"v_mul_u32_u24 v{vEa}, {TSB}, v{t[0]}")
    a("s_cselect_b32 s59, -1, 0")
def p2_const(dozero=True, hooks=()):
    hooks = list(hooks)
    def hook():
        if hooks: hooks.pop(0)()
    t = [SC + k for k in range(6)]
    vlf = SC + 6; vkf = SC + 7; vc0 = SC + 8; vlc = SC + 10; FA = SC + 12
    a(f"v_cvt_f32_u32 v{vlf}, v{vc}")
    a(f"v_cvt_f32_u32 v{vkf}, v{vg}"); a(f"v_mul_f32 v{vkf}, 4.0, v{vkf}")
    a(f"v_cvt_f32_u32 v{vc0}, s3"); a(f"v_mul_f32 v{vc0}, {fl(1/128)}, v{vc0}")
    a(f"v_mul_f32 v{vlc}, v{vlf}, v{vc0}")
    a(f"v_fmamk_f32 v{vlc+1}, v{vlf}, {hx(f2u(1/256))}, v{vlc}")
    a(f"v_mul_f32 v{vlf}, {fl(1/16)}, v{vlf}")
    z = iter(range(32))
    def zero(n):
        if not dozero:
            if n == 1: a("s_nop 0")
            return
        for _ in range(n):
            k = next(z, None)
            if k is not None: a(f"v_mov_b32 v{WW+k}, 0")
    def mat(ang):
        a(f"v_cos_f32 v{t[3]}, v{ang}"); a(f"v_sin_f32 v{t[4]}, v{ang}")
    def matfin(Mr, Mm):
        a(f"v_cvt_pk_bf16_f32 v{Mr}, v{t[3]}, v{t[4]}")
        a(f"v_cvt_pk_bf16_f32 v{Mm}, -v{t[4]}, v{t[3]}")
        hook()
    hook(); hook()
    for i in range(4):
        if i: a(f"v_add_f32 v{vkf}, 1.0, v{vkf}")
        a(f"v_mul_f32 v{FA+i}, v{vkf}, v{vlf}")
        mat(FA + i); zero(1); matfin(Fr + i, Fm + i)
    for i in range(3, -1, -1):
        a(f"v_fma_f32 v{t[0]}, v{vkf}, v{vc0}, v{FA+i}")
        a(f"v_fmamk_f32 v{t[1]}, v{vkf}, {hx(f2u(1/256))}, v{t[0]}")
        mat(t[0]); a(f"v_add_f32 v{t[2]}, v{FA+i}, v{vlc}"); matfin(M2 + i, M2 + 4 + i)
        mat(t[1]); a(f"v_add_f32 v{t[5]}, v{FA+i}, v{vlc+1}"); matfin(M2 + 8 + i, M2 + 12 + i)
        mat(t[2]); a(f"v_subrev_f32 v{vkf}, 1.0, v{vkf}"); matfin(MT + i, MT + 4 + i)
        mat(t[5]); zero(1); matfin(MT + 8 + i, MT + 12 + i)
    zero(32)
    a(f"v_add_f32 v{vc0}, {fl(1/128)}, v{vc0}")
    a(f"v_mov_b32 v{SC+9}, v{vkf}")
    for i in range(4):
        a(f"v_add_f32 v{SC+9}, 1.0, v{SC+9}")
        a(f"v_fma_f32 v{FA+i}, v{SC+9}, v{vc0}, v{FA+i}")
    for i in range(4):
        a(f"v_cos_f32 v{SC+10}, v{FA+i}"); a(f"v_sin_f32 v{SC+11}, v{FA+i}"); a("s_nop 0")
        a(f"v_cvt_pk_bf16_f32 v{MX+i}, v{SC+10}, v{SC+11}")
        a(f"v_cvt_pk_bf16_f32 v{MX+4+i}, -v{SC+11}, v{SC+10}")
def wvoff(dst, t0, t1):
    a(f"v_mul_u32_u24 v{t0}, 43, v0"); a(f"v_lshrrev_b32 v{t0}, 7, v{t0}")
    a(f"v_mul_u32_u24 v{t1}, 3, v{t0}"); a(f"v_sub_u32 v{t1}, v0, v{t1}")
    a(f"v_mul_u32_u24 v{dst}, {16*8*1026}, v{t0}"); a(f"v_lshl_add_u32 v{dst}, v{t1}, 4, v{dst}")
def wdma_list(vreg, adds, ccs=(0, 1)):
    ops = []
    for add in adds:
        def head(add=add):
            a(f"s_add_u32 s6, s3, {add}")
            a(f"s_mul_i32 s4, s6, {2*8*1026}"); a("s_add_u32 s4, s4, s55"); a("s_and_b32 s4, s4, 0xfffffff0")
            a(f"s_add_u32 s5, s4, {8*1026}")
            a(f"s_mul_i32 s6, s6, {WR}")
        for arr in range(4):
            for cc in ccs:
                def op(arr=arr, cc=cc, head=head):
                    if arr == 0 and cc == ccs[0]: head()
                    a("s_mov_b32 exec_hi, 0xffff")
                    a(f"s_add_u32 m0, s6, {L_W + 1536*arr + 768*cc}")
                    a(f"buffer_load_dwordx4 v{vreg}, {sr(32+4*arr,4)}, {'s4' if cc == 0 else 's5'} offen lds")
                    a("s_mov_b32 exec_hi, -1")
                ops.append(op)
    return ops
a(f"s_mov_b32 s56, {8*1026}")
a("s_cmp_ge_u32 s3, 4")
a("s_cbranch_scc1 L_h")
a("s_setprio 2")
srd(8, 4, 2048 * 2048)
a("s_add_u32 s30, s22, 0x80000")
a("s_mov_b32 m0, s24")
a(f"buffer_load_dwordx4 v{vl16}, s[8:11], s22 offen{NTX} lds")
a(f"buffer_load_dwordx4 v{vl16}, s[8:11], s22 offen offset:1024{NTX} lds")
a("s_add_u32 m0, s24, 2048")
a(f"buffer_load_dwordx4 v{vl16}, s[8:11], s30 offen{NTX} lds")
a(f"buffer_load_dwordx4 v{vl16}, s[8:11], s30 offen offset:1024{NTX} lds")
V = VAlloc(6)
vb = V(); vo = V(); vkn = V(); vtr = V(); vpf = V(); vj = V(); vpw = V(4); t = [V() for _ in range(6)]
srd(8, 92, 2048)
a("s_lshl_b32 s30, s51, 9"); a(f"s_add_u32 m0, s30, {L_GW}")
a("s_mov_b32 exec_hi, 0")
a(f"buffer_load_dwordx4 v{vl16}, s[8:11], s30 offen lds")
a("s_mov_b32 exec_hi, -1")
arr_srd()
a(f"v_and_b32 v{t[0]}, 7, v0"); a("s_lshl_b32 s30, s2, 3"); a(f"v_add_u32 v{t[0]}, s30, v{t[0]}")
a(f"v_bfe_i32 v{t[1]}, v0, 4, 1"); a(f"v_xor_b32 v{t[0]}, v{t[0]}, v{t[1]}"); a(f"v_sub_u32 v{t[0]}, v{t[0]}, v{t[1]}")
a(f"v_and_b32 v{t[0]}, 2047, v{t[0]}"); a(f"v_mul_u32_u24 v{t[2]}, 1026, v{t[0]}")
a(f"v_bfe_u32 v{t[1]}, v0, 3, 1"); a(f"v_lshl_add_u32 v{t[2]}, v{t[1]}, 10, v{t[2]}")
a(f"buffer_load_ushort v{vj}, v{t[2]}, s[12:15], 0 offen")
a("s_and_b32 s30, s2, 7"); a("s_lshl_b32 s31, s54, 6"); a("s_add_u32 s30, s30, s31"); a("s_mul_i32 s30, s30, 1026")
a(f"v_lshrrev_b32 v{t[0]}, 3, v0"); a(f"v_mul_u32_u24 v{t[2]}, {8*1026}, v{t[0]}")
a(f"v_and_b32 v{t[1]}, 7, v0"); a(f"v_lshl_add_u32 v{vpf}, v{t[1]}, 7, v{t[2]}")
vjunk = 1
def prefetch():
    a(f"buffer_load_ubyte v{vjunk}, v{vpf}, s[12:15], s30 offen{NTW}")
    a(f"buffer_load_ubyte v{vjunk}, v{vpt}, s[12:15], s30 offen offset:1024{NTW}")
NPF = 2
vpt = V()
a(f"v_and_b32 v{t[1]}, 1, v0"); a(f"v_lshl_add_u32 v{vpt}, v{t[1]}, 4, v{t[2]}")
if PFAT == 0: prefetch()
CC = V(8, 4); SS = V(8, 4); SN = V(8, 4); XR = V(8, 4); XI = V(8, 4)
BA = V(24, 4); BB = V(24, 4); TCh = V(8); TSh = V(8)
D1r = BA + 8; D1i = BB + 8; D2r = BA; D2i = BB
TC = lambda k: BA + k if k < 8 else TCh + k - 8
TS_ = lambda k: BB + k if k < 8 else TSh + k - 8
assert V.n <= 128, V.n
a(f"v_and_b32 v{t[0]}, 7, v0"); a(f"v_bfe_u32 v{t[1]}, v0, 3, 2")
a(f"v_lshl_or_b32 v{vkn}, v{t[0]}, 2, v{t[1]}")
a(f"v_cvt_f32_u32 v{vb}, v{vkn}"); a(f"v_cvt_f32_u32 v{vo}, v{vL5}")
a(f"v_mul_f32 v{vb}, {fl(1/32)}, v{vb}"); a(f"v_mul_f32 v{vo}, 4.0, v{vo}"); a(f"v_mul_f32 v{vo}, v{vb}, v{vo}")
for i in range(0, 16, 2):
    for e in range(2):
        kc = 8 * ((i + e) // 4) + (i + e) % 4
        if kc == 0: a(f"v_mov_b32 v{t[e]}, v{vo}")
        else: a(f"v_fmamk_f32 v{t[e]}, v{vb}, {hx(f2u(float(kc)))}, v{vo}")
    a(f"v_cos_f32 v{t[2]}, v{t[0]}"); a(f"v_cos_f32 v{t[3]}, v{t[1]}")
    a(f"v_sin_f32 v{t[4]}, v{t[0]}"); a(f"v_sin_f32 v{t[5]}, v{t[1]}")
    a(f"v_mul_f32 v{t[0]}, {fl(1/32)}, v{t[0]}"); a(f"v_mul_f32 v{t[1]}, {fl(1/32)}, v{t[1]}")
    a(f"v_cvt_pk_bf16_f32 v{CC+i//2}, v{t[2]}, v{t[3]}")
    a(f"v_cvt_pk_bf16_f32 v{SS+i//2}, v{t[4]}, v{t[5]}")
    a(f"v_cvt_pk_bf16_f32 v{SN+i//2}, -v{t[4]}, -v{t[5]}")
    a(f"v_cos_f32 v{TC(i)}, v{t[0]}"); a(f"v_cos_f32 v{TC(i+1)}, v{t[1]}")
    a(f"v_sin_f32 v{TS_(i)}, v{t[0]}"); a(f"v_sin_f32 v{TS_(i+1)}, v{t[1]}")
    if PFAT == i // 2 + 1: prefetch()
a(f"v_lshlrev_b32 v{vtr}, 8, v{vL5}")
a(f"v_bfe_u32 v{t[0]}, v0, 2, 2"); a(f"v_lshl_or_b32 v{vtr}, v{t[0]}, 6, v{vtr}")
a(f"v_bfe_u32 v{t[0]}, v0, 4, 1"); a(f"v_lshl_or_b32 v{vtr}, v{t[0]}, 5, v{vtr}")
a(f"v_and_b32 v{t[0]}, 3, v0"); a(f"v_lshl_or_b32 v{vtr}, v{t[0]}, 3, v{vtr}")
a(f"v_add_u32 v{vtr}, s24, v{vtr}")
a(f"v_and_b32 v{t[0]}, 7, v0"); a(f"v_bfe_u32 v{t[1]}, v0, 3, 2"); a(f"v_lshlrev_b32 v{t[1]}, 1, v{t[1]}")
a(f"v_xor_b32 v{t[0]}, v{t[0]}, v{t[1]}"); a(f"v_xor_b32 v{t[0]}, v{t[0]}, v{vL5}")
a(f"v_lshlrev_b32 v{t[0]}, 4, v{t[0]}")
a(f"v_lshl_or_b32 v{vpw}, v{vkn}, 7, v{t[0]}")
a(f"s_add_u32 s26, s24, {L_P}")
a(f"v_add_u32 v{vpw}, s26, v{vpw}")
for c in range(1, 4): a(f"v_xor_b32 v{vpw+c}, {32*c}, v{vpw}")
vet = vb
a(f"v_and_b32 v{t[0]}, 7, v0"); a(f"v_and_b32 v{t[1]}, 16, v0"); a(f"v_lshl_or_b32 v{t[0]}, v{t[0]}, 1, v{t[1]}")
a(f"v_bfe_u32 v{t[1]}, v0, 3, 1"); a(f"v_lshl_or_b32 v{t[0]}, v{t[1]}, 7, v{t[0]}")
a("s_lshl_b32 s30, s51, 5"); a(f"s_add_u32 s30, s30, {L_N}"); a(f"v_add_u32 v{vet}, s30, v{t[0]}")
ts(1)
a(f"s_waitcnt vmcnt({NPF if PFAT <= 8 else 0})")
ts(2)
tags()
a(f"ds_write_b16 v{vet}, v{vj}")
for h in range(2):
    for r, X in ((0, XR), (1, XI)):
        for tt in range(2):
            a(f"ds_read_b64_tr_b16 {vr(X+4*h+2*tt,2)}, v{vtr} offset:{r*2048+h*1024+tt*512}")
a("s_waitcnt lgkmcnt(8)")
a("s_barrier")
def cpass(R, I, Dr, Di, h, first):
    c0 = "0" if first else vr(Dr, 16); c1 = "0" if first else vr(Di, 16)
    a(f"{M32} {vr(Dr,16)}, {vr(R+4*h,4)}, {vr(CC+4*h,4)}, {c0}")
    a(f"{M32} {vr(Di,16)}, {vr(I+4*h,4)}, {vr(CC+4*h,4)}, {c1}")
    a(f"{M32} {vr(Dr,16)}, {vr(I+4*h,4)}, {vr(SS+4*h,4)}, {vr(Dr,16)}")
    a(f"{M32} {vr(Di,16)}, {vr(R+4*h,4)}, {vr(SN+4*h,4)}, {vr(Di,16)}")
a("s_waitcnt lgkmcnt(4)")
cpass(XR, XI, D1r, D1i, 0, True)
a("s_waitcnt lgkmcnt(0)")
cpass(XR, XI, D1r, D1i, 1, False)
for h in range(2):
    for i in range(8 * h, 8 * h + 8, 2):
        for e in range(2):
            k = i + e
            a(f"v_mul_f32 v{t[e]}, v{D1r+k}, v{TC(k)}")
            a(f"v_mul_f32 v{t[2+e]}, v{D1i+k}, v{TC(k)}")
            a(f"v_fmac_f32 v{t[e]}, v{D1i+k}, v{TS_(k)}")
            a(f"v_fma_f32 v{t[2+e]}, -v{D1r+k}, v{TS_(k)}, v{t[2+e]}")
        a(f"v_cvt_pk_bf16_f32 v{XR+i//2}, v{t[0]}, v{t[1]}")
        a(f"v_cvt_pk_bf16_f32 v{XI+i//2}, v{t[2]}, v{t[3]}")
    cpass(XR, XI, D2r, D2i, h, h == 0)
PK = CC
for c in range(4):
    for e in range(4):
        a(f"v_cvt_pk_bf16_f32 v{PK+4*c+e}, v{D2r+4*c+e}, v{D2i+4*c+e}")
    a(f"ds_write_b128 v{vpw+c}, {vr(PK+4*c,4)}")
a("s_waitcnt lgkmcnt(0)")
ts(3)
a("s_barrier")
a("s_setprio 0")
p2_addr()
p2_item()
wvoff(vW, SC, SC + 1)
ts(4)
a("s_barrier")
ts(5)
EARLY = "early" in OPT
SPLIT = "split" in OPT
p2_const(hooks=wdma_list(vW, [0, 4], (0,) if SPLIT else (0, 1)))
ts(6)
a("s_branch L_p2")
a.label("L_h")
a.hist = []
V = VAlloc(6)
t = [V() for _ in range(8)]
XN = V(16, 4); GW = V(8, 4)
vnat = V(); a(f"v_add_u32 v{vnat}, s24, v{vl16}")
MA = V(4, 4)
DMB = V(48, 4)
vu = DMB; vA = DMB + 1; vB1 = DMB + 2; vB2 = DMB + 3; vsg = DMB + 4
a(f"v_mov_b32 v{t[3]}, {L_C}"); a(f"v_mov_b32 v{t[4]}, 0")
a(f"ds_write_b32 v{t[3]}, v{t[4]}")
a(f"v_bfe_u32 v{t[0]}, v0, 3, 1"); a(f"v_bfe_u32 v{t[1]}, v0, 1, 1")
a(f"v_lshl_or_b32 v{t[0]}, v{t[0]}, 1, v{t[1]}")
a(f"v_and_or_b32 v{vu}, v0, 4, v{t[0]}")
a(f"v_cvt_f32_u32 v{vu}, v{vu}")
a(f"v_cvt_f32_u32 v{vsg}, v{vL5}")
a(f"v_fma_f32 v{vsg}, v{vsg}, -2.0, 1.0")
a(f"v_mul_f32 v{vA}, v{vu}, v{vsg}")
a(f"v_mul_f32 v{vA}, {fl(0.125)}, v{vA}")
a(f"v_and_b32 v{t[0]}, 1, v0"); a(f"v_cvt_f32_u32 v{t[0]}, v{t[0]}")
a(f"v_mul_f32 v{vB1}, v{t[0]}, v{vsg}"); a(f"v_mul_f32 v{vB1}, {fl(0.25)}, v{vB1}")
a(f"v_cvt_f32_u32 v{t[1]}, s2"); a(f"v_mul_f32 v{t[1]}, {fl(1/256)}, v{t[1]}")
a(f"v_fmac_f32 v{vB1}, v{t[1]}, v{vA}")
a(f"v_add_f32 v{vB2}, {fl(0.25)}, v{vB1}")
for pp in range(4):
    if pp == 0: a(f"v_mov_b32 v{t[0]}, v{vB1}")
    else: a(f"v_fmamk_f32 v{t[0]}, v{vA}, {hx(f2u(2.0*pp))}, v{vB1}")
    a(f"v_fmamk_f32 v{t[1]}, v{vA}, {hx(f2u(2.0*pp+1))}, v{vB2}")
    a(f"v_cos_f32 v{t[2]}, v{t[0]}"); a(f"v_cos_f32 v{t[3]}, v{t[1]}")
    a(f"v_sin_f32 v{t[4]}, v{t[0]}"); a(f"v_sin_f32 v{t[5]}, v{t[1]}")
    a(f"v_add_f32 v{t[2]}, v{t[2]}, v{t[3]}")
    a(f"v_add_f32 v{t[4]}, v{t[4]}, v{t[5]}")
    a(f"v_cvt_pk_bf16_f32 v{MA+pp}, v{t[2]}, v{t[4]}")
vmr = V(5); vk = DMB + 5; vneg = DMB + 6
a("s_lshl_b32 s30, s51, 7")
a(f"v_lshlrev_b32 v{t[0]}, 2, v{vn}")
a(f"v_sub_u32 v{vneg}, 0, v{vL5}")
for q in range(5):
    if q < 4: a(f"v_add3_u32 v{vk}, v{t[0]}, s30, {q}")
    else: a(f"v_add_u32 v{vk}, 512, v{t[0]}")
    a(f"v_xor_b32 v{vk}, v{vk}, v{vneg}"); a(f"v_add_u32 v{vk}, v{vk}, v{vL5}")
    a(f"v_bfe_u32 v{t[1]}, v{vk}, 5, 5")
    a(f"v_bfe_u32 v{t[2]}, v{vk}, 7, 3")
    a(f"v_xor_b32 v{t[3]}, v{vk}, v{t[1]}")
    a(f"v_and_b32 v{t[3]}, 3, v{t[3]}")
    a(f"v_bfe_u32 v{t[4]}, v{vk}, 4, 1")
    a(f"v_lshl_or_b32 v{t[3]}, v{t[3]}, 1, v{t[4]}")
    a(f"v_xor_b32 v{t[3]}, v{t[3]}, v{t[2]}")
    a(f"v_and_b32 v{t[4]}, 12, v{vk}")
    a(f"v_lshl_or_b32 v{t[4]}, v{t[3]}, 4, v{t[4]}")
    a(f"v_lshl_or_b32 v{vmr+q}, v{t[1]}, 7, v{t[4]}")
vts = V(); veo = V(); vet2 = V(); vsig = V(); ves = V()
a(f"v_lshlrev_b32 v{t[0]}, 13, v{vL5}"); a(f"v_lshl_or_b32 v{vts}, v{vn}, 4, v{t[0]}")
EV = DMB + 8
a(f"v_and_b32 v{t[0]}, 7, v0"); a(f"v_bfe_u32 v{t[1]}, v0, 3, 1")
a(f"v_lshlrev_b32 v{t[2]}, 3, v{t[1]}"); a(f"v_lshl_or_b32 v{ves}, v{t[0]}, 4, v{t[2]}")
a(f"v_and_b32 v{t[2]}, 3, v0"); a(f"v_cmp_eq_u32 vcc, 0, v{t[2]}")
a(f"v_lshrrev_b32 v{t[3]}, 2, v{t[0]}")
a(f"v_cvt_f32_u32 v{t[4]}, v{t[1]}"); a(f"v_fma_f32 v{t[4]}, v{t[4]}, -2.0, 1.0")
a(f"v_cndmask_b32 v{t[3]}, v{t[3]}, v{t[1]}, vcc")
a(f"v_cndmask_b32 v{vsig}, 0, v{t[4]}, vcc")
a(f"v_lshlrev_b32 v{t[0]}, 1, v{t[0]}"); a(f"v_lshl_or_b32 v{t[0]}, v{t[1]}, 6, v{t[0]}"); a(f"v_lshl_or_b32 v{t[0]}, v{t[3]}, 7, v{t[0]}")
a(f"v_add_u32 v{veo}, {L_N}, v{t[0]}"); a(f"v_xor_b32 v{vet2}, 64, v{veo}")
for k in range(8): a(f"v_mov_b32 v{EV+k}, 0")
a(f"s_mul_i32 s8, s2, {TSB}")
a("s_lshl_b32 s9, s51, 9"); a("s_add_u32 s9, s9, s8"); a("s_add_u32 s10, s9, 4096")
a("s_add_u32 s8, s8, 16384")
a("s_mov_b32 s11, 0xffff0000")
acc = V(4, 4); ones = V(); MB = XN; MB4 = GW
a(f"v_mov_b32 v{ones}, 0x3f803f80")
a(f"v_mov_b32 v{acc}, 0"); a(f"v_mov_b32 v{acc+2}, 0")
vWh = V()
wvoff(vWh, t[0], t[1])
assert V.n <= 128, V.n
a("s_waitcnt lgkmcnt(0)")
ts(1)
if EARLY and "e0" in OPT:
    for op in wdma_list(vWh, [0]): op()
a("s_barrier")
for r in range(2):
    for q in range(2):
        a(f"ds_read_b128 {vr(XN+8*r+4*q,4)}, v{vnat} offset:{r*2048+q*1024}")
a(f"ds_read_b128 {vr(GW,4)}, v{vl16} offset:{L_GW}")
a(f"ds_read_b128 {vr(GW+4,4)}, v{vl16} offset:{L_GW+1024}")
for k in range(4):
    a(f"ds_read_u16_d16_hi v{EV+k}, v{veo} offset:{16*k}")
    a(f"ds_read_u16_d16_hi v{EV+4+k}, v{vet2} offset:{16*k}")
a("s_waitcnt lgkmcnt(0)")
a(f"v_add_f32 v{EV+8}, v{EV}, v{EV+1}"); a(f"v_sub_f32 v{EV+9}, v{EV+2}, v{EV+3}")
a(f"v_add_f32 v{EV+4}, v{EV+4}, v{EV+5}"); a(f"v_sub_f32 v{EV+6}, v{EV+6}, v{EV+7}")
a(f"v_fma_f32 v{EV+8}, -v{vsig}, v{EV+6}, v{EV+8}"); a(f"v_fmac_f32 v{EV+9}, v{vsig}, v{EV+4}")
a(f"s_waitcnt vmcnt({8 if (EARLY and 'e0' in OPT) else 0})")
tags()
a("s_cmp_eq_u32 s51, 1"); a("s_cselect_b32 exec_lo, 0xffff, 0"); a("s_mov_b32 exec_hi, 0")
a(f"buffer_store_dwordx2 {vr(EV+8,2)}, v{ves}, s[16:19], s8 offen sc1")
if "nopw" not in OPT:
    a("s_cselect_b32 exec_lo, -1, 0"); a("s_cselect_b32 exec_hi, -1, 0")
    for k in range(4): a(f"v_mov_b32 v{EV+k}, s49")
    a(f"buffer_store_dwordx4 {vr(EV,4)}, v{vl16}, s[16:19], s57 offen sc1")
a("s_mov_b64 exec, -1")
ts(2)
if "pt2" in OPT:
    a(f"v_lshlrev_b32 v{t[0]}, 7, v0")
    a("s_lshl_b32 s30, s53, 15"); a("s_lshl_b32 s31, s51, 13"); a("s_add_u32 s30, s30, s31"); a(f"s_add_u32 s30, s30, {hx(S_OFF)}")
    a(f"buffer_load_ubyte v1, v{t[0]}, s[16:19], s30 offen")
eops = wdma_list(vWh, [0]) if (EARLY and "e0" not in OPT) else []
for j in range(8):
    if eops: eops.pop(0)()
    a(f"v_lshlrev_b32 v{t[6]}, 16, v{GW+j}")
    a(f"v_and_b32 v{t[7]}, s11, v{GW+j}")
    for r in range(2):
        a(f"v_lshlrev_b32 v{t[2*r]}, 16, v{XN+8*r+j}")
        a(f"v_and_b32 v{t[2*r+1]}, s11, v{XN+8*r+j}")
    for r in range(2):
        a(f"v_mul_f32 v{t[2*r]}, v{t[2*r]}, v{t[6]}")
        a(f"v_mul_f32 v{t[2*r+1]}, v{t[2*r+1]}, v{t[7]}")
    for r in range(2): a(f"v_cvt_pk_bf16_f32 v{t[4+r]}, v{t[2*r]}, v{t[2*r+1]}")
    for r in range(2): a(f"v_dot2_f32_bf16 v{acc+2*r}, v{t[4+r]}, v{ones}, v{acc+2*r}")
ts(3)
a("s_setprio 2")
a("s_barrier")
ts(4)
o = L_P // 256
a(f"ds_read2st64_b32 {vr(MB4,2)}, v{vmr+4} offset0:{o} offset1:{o+16}")
a(f"ds_read2st64_b32 {vr(MB4+2,2)}, v{vmr+4} offset0:{o+32} offset1:{o+48}")
for q in range(4):
    a(f"ds_read2st64_b32 {vr(MB+4*q,2)}, v{vmr+q} offset0:{o} offset1:{o+16}")
    a(f"ds_read2st64_b32 {vr(MB+4*q+2,2)}, v{vmr+q} offset0:{o+32} offset1:{o+48}")
DN = DMB; DM = [DMB + 8 + 8 * q for q in range(4)]
a("s_waitcnt lgkmcnt(8)")
a(f"{M32} {vr(DN,16)}, {vr(MA,4)}, {vr(MB4,4)}, 0")
for q in range(4):
    a(f"s_waitcnt lgkmcnt({6-2*q})")
    a(f"{M32} {vr(DM[q],16)}, {vr(MA,4)}, {vr(MB+4*q,4)}, 0")
a("s_cmp_eq_u32 s51, 0"); a("s_cselect_b32 exec_lo, 1, 0"); a("s_cselect_b32 exec_hi, 1, 0")
a(f"v_sub_f32 v{DM[0]}, v{DM[0]}, v{DN+1}"); a(f"v_add_f32 v{DM[0]+1}, v{DM[0]+1}, v{DN}")
a("s_mov_b32 exec_lo, 0")
for k in range(2, 8): a(f"v_mov_b32 v{DM[0]+k}, v{DN+k}")
a("s_mov_b64 exec, -1")
OUT = MB
for s_ in range(4):
    for q in range(4):
        a(f"v_cvt_pk_bf16_f32 v{OUT+4*s_+q}, v{DM[q]+2*s_}, v{DM[q]+2*s_+1}")
    a(f"buffer_store_dwordx4 {vr(OUT+4*s_,4)}, v{vts}, s[16:19], {'s9' if s_ < 2 else 's10'} offen offset:{(s_&1)*2048} sc1")
a("s_barrier")
ts(5)
for dpp in ("row_shr:1", "row_shr:2", "row_shr:4", "row_shr:8"):
    for r in range(2):
        a(f"v_add_f32_dpp v{acc+2*r}, v{acc+2*r}, v{acc+2*r} {dpp} row_mask:0xf bank_mask:0xf bound_ctrl:0")
for dpp, rm in (("row_bcast:15", "0xa"), ("row_bcast:31", "0xc")):
    for r in range(2):
        a(f"v_add_f32_dpp v{acc+2*r}, v{acc+2*r}, v{acc+2*r} {dpp} row_mask:{rm} bank_mask:0xf")
a(f"v_cvt_pk_bf16_f32 v{t[0]}, v{acc}, v{acc+2}")
a(f"v_lshlrev_b32 v{t[1]}, 16, v{t[0]}")
a(f"v_and_b32 v{t[2]}, s11, v{t[0]}")
for r in range(2): a(f"v_mul_f32 v{t[1+r]}, {hx(f2u(-1.4426950408889634))}, v{t[1+r]}")
for r in range(2): a(f"v_exp_f32 v{t[1+r]}, v{t[1+r]}")
for r in range(2): a(f"v_add_f32 v{t[1+r]}, 1.0, v{t[1+r]}")
for r in range(2): a(f"v_rcp_f32 v{t[1+r]}, v{t[1+r]}")
a(f"v_cvt_pk_bf16_f32 v{t[0]}, v{t[1]}, v{t[2]}")
a(f"v_lshlrev_b32 v{acc}, 16, v{t[0]}")
a(f"v_and_b32 v{acc+2}, s11, v{t[0]}")
a(f"v_sub_f32 v{t[1]}, 1.0, v{acc}")
a(f"v_sub_f32 v{t[2]}, 1.0, v{acc+2}")
a(f"v_cvt_pk_bf16_f32 v{t[0]}, v{t[1]}, v{t[2]}")
a(f"v_lshlrev_b32 v{acc+1}, 16, v{t[0]}")
a(f"v_and_b32 v{acc+3}, s11, v{t[0]}")
for r in range(4): a(f"v_mul_f32 v{acc+r}, {hx(f2u(2.0**-22))}, v{acc+r}")
a("s_lshl_b32 s30, s51, 4"); a(f"s_add_u32 s30, s30, {L_G}")
a(f"v_mov_b32 v{t[3]}, s30")
a("s_mov_b32 exec_lo, 0"); a("s_mov_b32 exec_hi, 0x80000000")
a(f"ds_write_b128 v{t[3]}, {vr(acc,4)}")
a("s_mov_b64 exec, -1")
a(f"v_mov_b32 v{t[3]}, {L_C}"); a(f"v_mov_b32 v{t[4]}, 1")
for k in range(4): a(f"v_mov_b32 v{DMB+k}, s48")
a("s_mov_b64 exec, 1")
a("s_waitcnt vmcnt(0)")
a(f"ds_add_rtn_u32 v{t[5]}, v{t[3]}, v{t[4]}")
a("s_waitcnt lgkmcnt(0)")
a(f"v_readfirstlane_b32 s30, v{t[5]}")
a("s_cmp_eq_u32 s30, 3"); a("s_cselect_b32 exec_lo, -1, 0"); a("s_cselect_b32 exec_hi, -1, 0")
a(f"buffer_store_dwordx4 {vr(DMB,4)}, v{vl16}, s[16:19], s57 offen {FSF}")
a("s_mov_b64 exec, -1")
def stouch(vt):
    a(f"v_lshlrev_b32 v{vt}, 7, v0")
    a("s_lshl_b32 s30, s53, 15"); a("s_lshl_b32 s31, s51, 13"); a("s_add_u32 s30, s30, s31"); a(f"s_add_u32 s30, s30, {hx(S_OFF)}")
    a(f"buffer_load_ubyte v1, v{vt}, s[16:19], s30 offen{' sc1' if 'ptsc' in OPT else ''}")
if "pt1" in OPT: stouch(t[0])
a("s_setprio 0")
ts(6)
p2_addr(); p2_item(); wvoff(vW, SC, SC + 1); p2_const()
if optint("pa", 0): a(f"s_sleep {optint('pa', 0)}")
a.label("L_p2")
a.hist = []
t = [SC + k for k in range(6)]
ts(7)
poll("L_poll1", vF, TB, "s8", "s48")
def f2pre():
    if "nopw" in OPT: return
    a(f"v_mov_b32 v{TB}, s48"); a(f"v_lshlrev_b32 v{TB+1}, 2, v0")
    a("s_mov_b32 exec_hi, 0")
    a(f"buffer_store_dword v{TB}, v{TB+1}, s[16:19], s9 offen sc1")
    a("s_mov_b32 exec_hi, -1")
ts(8)
if "st2" in OPT: a("s_add_u32 s70, s60, s58")
a.label("L_p2c")
a("s_setprio 1")
a("s_mov_b32 m0, s27")
a(f"buffer_load_dwordx4 v{vT}, s[16:19], s24 offen sc1 lds")
a("s_add_u32 m0, s27, 1024")
a(f"buffer_load_dwordx4 v{vT}, s[16:19], s26 offen sc1 lds")
a("s_lshl_b32 s29, s3, 9"); a(f"s_add_u32 s29, s29, {L_E}"); a("s_mov_b32 m0, s29")
a("s_mov_b32 exec_lo, s59"); a("s_mov_b32 exec_hi, 0")
a(f"buffer_load_dwordx4 v{vEa}, s[16:19], s50 offen sc1 lds")
a("s_mov_b64 exec, -1")
if SPLIT:
    for op in wdma_list(vW, [0], (1,)): op()
def wread(cc):
    a("s_not_b32 exec_lo, s52"); a("s_not_b32 exec_hi, s52")
    for arr in range(4):
        for i in range(4):
            a(f"ds_read_u16_d16_hi v{Wi(arr,cc,i)}, v{vWr} offset:{1536*arr+768*cc+48*i}")
    a("s_mov_b64 exec, -1")
a("s_barrier")
wread(0)
if not SPLIT: wread(1)
PKD = SC + 8
a(f"s_waitcnt vmcnt({4 if SPLIT else 0})")
if ST: a("s_waitcnt lgkmcnt(0)")
ts(9)
a(f"ds_read2_b32 {vr(TB,2)}, v{vTr} offset0:0 offset1:16")
a(f"ds_read2_b32 {vr(TB+2,2)}, v{vTr} offset0:32 offset1:48")
a(f"v_add_u32 v{vTr}, 1024, v{vTr}")
a(f"ds_read2_b32 {vr(TB+4,2)}, v{vTr} offset0:0 offset1:16")
a(f"ds_read2_b32 {vr(TB+6,2)}, v{vTr} offset0:32 offset1:48")
a.label("L_p2e")
for bb in range(2):
    a(f"s_waitcnt lgkmcnt({2-2*bb})")
    a(f"{M16} {vr(D+8*bb,4)}, {vr(Fr,4)}, {vr(TB+4*bb,4)}, 0")
    a(f"{M16} {vr(D+8*bb+4,4)}, {vr(Fm,4)}, {vr(TB+4*bb,4)}, 0")
for ip in range(2):
    for cc in range(2):
        for bb in range(2):
            i = 2 * ip + cc
            a(f"v_cvt_pk_bf16_f32 v{PKD+4*ip+2*cc+bb}, v{D+8*bb+i}, v{D+8*bb+4+i}")
    a(f"ds_write_b128 v{vw1}, {vr(PKD+4*ip,4)} offset:{ip*256}")
a("s_cmp_lg_u32 s54, 0")
a("s_cbranch_scc0 L_el")
a.label("L_elb")
a("s_waitcnt lgkmcnt(0)")
f2pre()
a("s_barrier")
OB = TB
for cc in range(2):
    for h in range(2):
        a(f"ds_read_b64 {vr(OB+4*cc+2*h,2)}, v{vr1} offset:{h*2048+cc*8}")
X = D
for cc in range(2):
    a(f"s_waitcnt lgkmcnt({2-2*cc})")
    a(f"{M16} {vr(X+8*cc,4)}, {vr(M2+8*cc,4)}, {vr(OB+4*cc,4)}, 0")
    a(f"{M16} {vr(X+8*cc+4,4)}, {vr(M2+8*cc+4,4)}, {vr(OB+4*cc,4)}, 0")
YO = [PKD, PKD + 4, PKD, PKD + 4]
tpr = [(vT, vTr), (vr1, vw1)]
if SPLIT:
    a(f"s_waitcnt vmcnt({0 if 'nopw' in OPT else 1})")
    wread(1)
def dpt(cc, ab, ri): return WW + 16 * cc + 8 * ab + 4 * ri
def wmul(cc, ab):
    n = 2 * cc + ab
    xr = X + 8 * cc; xi = X + 8 * cc + 4
    for i in range(4):
        wr = Wi(2 * ab, cc, i); wi = Wi(2 * ab + 1, cc, i)
        y0, y1 = tpr[i & 1]
        a(f"v_mul_f32 v{y0}, v{xr+i}, v{wr}")
        a(f"v_mul_f32 v{y1}, v{xi+i}, v{wr}")
        a(f"v_fma_f32 v{y0}, -v{xi+i}, v{wi}, v{y0}")
        a(f"v_fmac_f32 v{y1}, v{xr+i}, v{wi}")
        a(f"v_cvt_pk_bf16_f32 v{YO[n]+i}, v{y1}, v{y0}")
    a(f"{M16} {vr(dpt(cc,ab,0),4)}, {vr(MT+8*cc,4)}, {vr(YO[n],4)}, 0")
    a(f"{M16} {vr(dpt(cc,ab,1),4)}, {vr(MT+8*cc+4,4)}, {vr(YO[n],4)}, 0")
a("s_and_b32 s29, s2, 0xfb")
a("s_cmp_eq_u32 s29, 0")
a("s_cbranch_scc1 L_sp")
for cc in range(2):
    if cc == 1: a("s_waitcnt lgkmcnt(0)")
    for ab in range(2): wmul(cc, ab)
a.label("L_spb")
XP2 = X
P2 = D
for ab in range(2):
    for ip in range(2):
        for cc in range(2):
            for bb in range(2):
                i = 2 * ip + bb
                a(f"v_cvt_pk_bf16_f32 v{P2+8*ab+4*ip+2*bb+cc}, v{dpt(cc,ab,0)+i}, v{dpt(cc,ab,1)+i}")
        a(f"ds_write_b128 v{vw2}, {vr(P2+8*ab+4*ip,4)} offset:{2048*ab+ip*256}")
a("s_waitcnt lgkmcnt(0)")
a("s_barrier")
O2 = WW + 16
for bb in range(2):
    for ab in range(2):
        for h in range(2):
            a(f"ds_read_b64 {vr(O2+8*bb+4*ab+2*h,2)}, v{vr2} offset:{WR*h+2048*ab+bb*8}")
E = [M2, M2 + 8, MT, MT + 8]
X4 = "x4" in OPT
for bb in range(2):
    for ab in range(2):
        n = 2 * bb + ab
        a(f"s_waitcnt lgkmcnt({6-2*n})")
        if X4:
            a(f"{M16} {vr(E[n],4)}, {vr(O2+4*n,4)}, {vr(Fr,4)}, 0")
            a(f"{M16} {vr(E[n]+4,4)}, {vr(O2+4*n,4)}, {vr(Fm,4)}, 0")
        else:
            a(f"{M16} {vr(E[n],4)}, {vr(Fr,4)}, {vr(O2+4*n,4)}, 0")
            a(f"{M16} {vr(E[n]+4,4)}, {vr(Fm,4)}, {vr(O2+4*n,4)}, 0")
SO = WW
for bb in range(2):
    for i in range(4):
        for ab in range(2):
            n = 2 * bb + ab
            a(f"v_cvt_pk_bf16_f32 v{SO+8*bb+2*i+ab}, v{E[n]+4+i}, v{E[n]+i}")
        if X4:
            if i & 1: a(f"buffer_store_dwordx4 {vr(SO+8*bb+2*(i-1),4)}, v{vS}, s[16:19], s30 offen offset:{(i>>1)*64+bb*128} sc1")
        else:
            a(f"buffer_store_dwordx2 {vr(SO+8*bb+2*i,2)}, v{vS}, s[16:19], {'s30' if i < 2 else 's31'} offen offset:{(i&1)*2048+bb*128} {SSF}")
ts(10)
if "swb" in OPT:
    a("s_waitcnt vmcnt(0)")
    a("buffer_wbl2 sc1")
amx_post(t[0])
setflag(t[0], "s9", "s49")
if "st2" in OPT: ts(1)
a("s_setprio 0")
V = VAlloc(8)
vg_ = vg; vc_ = vc
t = [V() for _ in range(6)]
vS3 = 1; vN = 2; vF3 = 7; AP8 = V(); AMx = V()
MR = V(16, 4); MI = V(16, 4); X = V(16, 4)
BA = V(24, 4); BB = V(24, 4); TCh = V(8); TSh = V(8)
assert V.n <= 128, V.n
D1r = BA + 8; D1i = BB + 8; D2r = BA; D2i = BB
SBt = [D1r, D1r + 4, D1r + 8, D1r + 12, X]
DDt = [D1i, D1i + 4, D1i + 8, D1i + 12, X + 4]
MA = X + 8; AP = X + 12; AM = [X + 13, X + 14, X + 15, AMx]
CS = D1r; GG = D1i
a(f"v_bfe_u32 v{t[0]}, v0, 2, 2"); a(f"v_lshlrev_b32 v{t[1]}, 4, v{t[0]}")
a(f"v_add_u32 v{t[1]}, {L_G}, v{t[1]}")
a(f"ds_read_b128 {vr(GG,4)}, v{t[1]}")
if X4:
    a(f"v_and_b32 v{t[1]}, 1, v0"); a(f"v_lshlrev_b32 v{t[1]}, 3, v{t[1]}")
    a(f"v_lshl_or_b32 v{t[1]}, v{t[0]}, 4, v{t[1]}")
    a(f"v_bfe_u32 v{t[2]}, v0, 1, 1"); a(f"v_lshl_or_b32 v{t[1]}, v{t[2]}, 6, v{t[1]}")
else:
    a(f"v_lshlrev_b32 v{t[1]}, 3, v{vc_}")
a(f"v_lshl_or_b32 v{vS3}, v{vg_}, 21, v{t[1]}")
a("s_xor_b32 s50, s3, 4")
a("s_lshl_b32 s8, s2, 7"); a(f"s_add_u32 s8, s8, {hx(S_OFF)}")
a("s_lshl_b32 s11, s50, 15"); a("s_add_u32 s8, s8, s11")
a(f"v_bfe_u32 v{t[1]}, v0, 2, 3"); a(f"v_and_b32 v{t[2]}, 3, v0"); a(f"v_lshlrev_b32 v{t[2]}, 3, v{t[2]}")
a(f"v_lshl_add_u32 v{t[1]}, v{t[1]}, 5, v{t[2]}"); a(f"v_add_u32 v{t[1]}, s50, v{t[1]}")
a("s_cmp_eq_u32 s50, 0"); a("s_cselect_b32 s24, 0x00010001, 0")
a(f"v_lshlrev_b32 v{vF3}, 10, v{t[1]}")
a("s_bfe_u32 s11, s2, 0x30001"); a("s_lshl_b32 s11, s11, 7"); a(f"s_add_u32 s11, s11, {hx(F2_OFF)}")
vsg = X; ve = X + 1; vstep = X + 2; vpe = X + 3; vpo = X + 4; vk = X + 5; vpl = X + 6
a(f"v_bfe_u32 v{t[1]}, v0, 1, 1"); a(f"v_cvt_f32_u32 v{vsg}, v{t[1]}")
a(f"v_mul_f32 v{vsg}, -0.5, v{vsg}"); a(f"v_add_f32 v{vsg}, {fl(0.25)}, v{vsg}")
a(f"v_and_b32 v{t[1]}, 1, v0"); a(f"v_cvt_f32_u32 v{t[1]}, v{t[1]}")
a(f"v_mul_f32 v{ve}, v{t[1]}, v{vsg}")
a(f"v_lshlrev_b32 v{t[0]}, 9, v{t[0]}"); a(f"v_add_u32 v{t[0]}, s2, v{t[0]}")
a(f"v_cvt_f32_u32 v{vstep}, v{t[0]}"); a(f"v_mul_f32 v{vstep}, {hx(f2u(-1/2048))}, v{vstep}")
a(f"v_cvt_f32_u32 v{t[2]}, v{vg_}"); a(f"v_add_f32 v{t[2]}, v{t[2]}, v{t[2]}")
a(f"v_fma_f32 v{vpe}, v{t[2]}, v{vstep}, v{ve}")
a(f"v_sub_f32 v{vpo}, v{vpe}, v{vsg}")
a(f"v_fmamk_f32 v{vpo}, v{t[2]}, {hx(f2u(-0.125))}, v{vpo}")
for lo in range(2):
    if lo:
        a(f"v_add_f32 v{vpe}, v{vpe}, v{vstep}")
        a(f"v_add_f32 v{vpo}, v{vpo}, v{vstep}"); a(f"v_add_f32 v{vpo}, {hx(f2u(-0.125))}, v{vpo}")
    a(f"v_cos_f32 v{CS+4*lo}, v{vpe}"); a(f"v_sin_f32 v{CS+4*lo+1}, v{vpe}")
    a(f"v_cos_f32 v{CS+4*lo+2}, v{vpo}"); a(f"v_sin_f32 v{CS+4*lo+3}, v{vpo}")
a("s_lshl_b32 s25, s50, 4")
a(f"v_lshlrev_b32 v{vpl}, 12, v{vg_}")
a(f"v_add_u32 v{vk}, s25, v{vc_}")
a(f"v_and_b32 v{t[3]}, 14, v{vk}"); a(f"v_lshl_or_b32 v{t[3]}, v{t[3]}, 3, v{vpl}")
a(f"v_and_b32 v{t[4]}, 31, v{vk}"); a(f"v_lshl_or_b32 v{t[3]}, v{t[4]}, 7, v{t[3]}")
a(f"v_bfe_u32 v{t[4]}, v{vk}, 5, 2"); a(f"v_lshl_or_b32 v{AP}, v{t[4]}, 2, v{t[3]}")
a(f"v_sub_u32 v{t[5]}, 0, v{vk}")
a(f"v_and_b32 v{t[4]}, 31, v{t[5]}"); a(f"v_lshl_or_b32 v{t[3]}, v{t[4]}, 7, v{vpl}")
a(f"v_and_b32 v{t[4]}, 14, v{t[5]}"); a(f"v_lshl_or_b32 v{t[3]}, v{t[4]}, 3, v{t[3]}")
a(f"v_lshrrev_b32 v{t[5]}, 3, v{t[5]}")
for tt in range(4):
    if tt: a(f"v_subrev_u32 v{t[5]}, 16, v{t[5]}")
    a(f"v_and_b32 v{t[4]}, 0x7c, v{t[5]}")
    a(f"v_xor_b32 v{AM[tt]}, v{t[4]}, v{t[3]}")
a("s_mov_b32 exec_lo, s24"); a("s_mov_b32 exec_hi, s24")
a(f"v_or_b32 v{AM[0]}, 64, v{vpl}")
a("s_mov_b64 exec, -1")
a("s_waitcnt lgkmcnt(0)")
for lo in range(2):
    for ab in range(2):
        a(f"v_mul_f32 v{t[0]}, v{GG+ab}, v{CS+4*lo}"); a(f"v_mul_f32 v{t[1]}, v{GG+ab}, v{CS+4*lo+1}")
        a(f"v_fmac_f32 v{t[0]}, v{GG+2+ab}, v{CS+4*lo+2}"); a(f"v_fmac_f32 v{t[1]}, v{GG+2+ab}, v{CS+4*lo+3}")
        a(f"v_cvt_pk_bf16_f32 v{MA+2*lo+ab}, v{t[0]}, v{t[1]}")
a("s_cmp_eq_u32 s3, 4")
a("s_cbranch_scc1 L_m0")
a("s_cmp_ge_u32 s3, 4")
a("s_cbranch_scc1 L_p3b")
TC = lambda k: BA + k if k < 8 else TCh + k - 8
TS_ = lambda k: BB + k if k < 8 else TSh + k - 8
vb = X; vo = X + 1
a(f"v_cvt_f32_u32 v{vb}, v{vn}"); a(f"v_cvt_f32_u32 v{vo}, v{vL5}")
a(f"v_mul_f32 v{vb}, {fl(1/32)}, v{vb}"); a(f"v_mul_f32 v{vo}, 4.0, v{vo}"); a(f"v_mul_f32 v{vo}, v{vb}, v{vo}")
for i in range(16):
    kc = 8 * (i // 4) + i % 4
    if kc == 0: a(f"v_mov_b32 v{t[0]}, v{vo}")
    else: a(f"v_fmamk_f32 v{t[0]}, v{vb}, {hx(f2u(float(kc)))}, v{vo}")
    a(f"v_cos_f32 v{t[1]}, v{t[0]}"); a(f"v_sin_f32 v{t[2]}, v{t[0]}")
    a(f"v_mul_f32 v{t[0]}, {fl(1/32)}, v{t[0]}")
    a(f"v_cvt_pk_bf16_f32 v{MR+i}, v{t[1]}, -v{t[2]}")
    a(f"v_cvt_pk_bf16_f32 v{MI+i}, v{t[2]}, v{t[1]}")
    a(f"v_cos_f32 v{TC(i)}, v{t[0]}"); a(f"v_sin_f32 v{TS_(i)}, v{t[0]}")
a.label("L_p3b")
if optint("pb", 0): a(f"s_sleep {optint('pb', 0)}")
ts(11)
poll("L_poll2", vF3, t[0], "s11", "s49")
ts(12)
if "st2" in OPT: a("s_add_u32 s64, s60, s58")
for tt in range(4):
    for lo in range(2):
        a(f"s_add_u32 s26, s8, {hx(tt*8*32768 + lo*(1<<20))}")
        a(f"buffer_load_dwordx2 {vr(SBt[tt]+2*lo,2)}, v{vS3}, s[16:19], s26 offen sc1")
MA0 = MR
def fin(tt):
    d = DDt[tt]
    if tt == 0:
        a("s_mov_b32 exec_lo, s24"); a("s_mov_b32 exec_hi, s24")
        for k in range(4): a(f"v_mov_b32 v{d+k}, v{DDt[4]+k}")
        a("s_mov_b64 exec, -1")
    a(f"v_cvt_pk_bf16_f32 v{d}, v{d}, v{d+1}")
    a(f"v_cvt_pk_bf16_f32 v{d+1}, v{d+2}, v{d+3}")
    if tt: a(f"v_xor_b32 v{t[tt]}, {tt<<4}, v{AP}")
    a(f"ds_write_b32 v{t[tt] if tt else AP}, v{d}")
    a(f"ds_write_b32 v{AM[tt]}, v{d+1}")
for tt in range(4):
    a(f"s_waitcnt vmcnt({max(0, 6-2*tt)})")
    a(f"{M16} {vr(DDt[tt],4)}, {vr(MA,4)}, {vr(SBt[tt],4)}, 0")
    if tt == 0: a(f"{M16} {vr(DDt[4],4)}, {vr(MA0,4)}, {vr(SBt[0],4)}, 0")
    if tt >= 1: fin(tt - 1)
fin(3)
vst = vS3
a(f"v_bfe_u32 v{t[4]}, v{vn}, 1, 3"); a(f"v_xor_b32 v{t[4]}, v{t[4]}, v{vL5}"); a(f"v_lshlrev_b32 v{t[4]}, 4, v{t[4]}")
a(f"v_lshl_or_b32 v{t[4]}, v{vn}, 7, v{t[4]}"); a("s_lshl_b32 s26, s51, 12")
a("s_waitcnt lgkmcnt(0)")
a(f"v_add_u32 v{t[0]}, s26, v{t[4]}")
for q in range(1, 4): a(f"v_xor_b32 v{t[q]}, {32*q}, v{t[0]}")
a(f"v_lshlrev_b32 v{t[4]}, 4, v{vL5}"); a(f"v_lshl_or_b32 v{vst}, v{vn}, 6, v{t[4]}")
srd(12, 94, 2048 * 2048)
a("s_add_u32 s30, s22, 0x80000")
if "st2" in OPT: ts(3)
a("s_barrier")
if "st2" in OPT: ts(4)
a("s_cmp_ge_u32 s3, 4")
a("s_cbranch_scc1 L_hx")
for q in range(4): a(f"ds_read_b128 {vr(X+4*q,4)}, v{t[q]}")
for q in range(4):
    a(f"s_waitcnt lgkmcnt({3-q})")
    a(f"{M32} {vr(D1r,16)}, {vr(X+4*q,4)}, {vr(MR+4*q,4)}, {'0' if q == 0 else vr(D1r,16)}")
    a(f"{M32} {vr(D1i,16)}, {vr(X+4*q,4)}, {vr(MI+4*q,4)}, {'0' if q == 0 else vr(D1i,16)}")
def p2m(q):
    a(f"{M32} {vr(D2r,16)}, {vr(X+4*q,4)}, {vr(MR+4*q,4)}, {'0' if q == 0 else vr(D2r,16)}")
    a(f"{M32} {vr(D2i,16)}, {vr(X+4*q,4)}, {vr(MI+4*q,4)}, {'0' if q == 0 else vr(D2i,16)}")
for q in range(4):
    for e in range(4):
        k = 4 * q + e
        a(f"v_mul_f32 v{t[0]}, v{D1r+k}, v{TC(k)}")
        a(f"v_mul_f32 v{t[1]}, v{D1i+k}, v{TC(k)}")
        a(f"v_fma_f32 v{t[0]}, -v{D1i+k}, v{TS_(k)}, v{t[0]}")
        a(f"v_fmac_f32 v{t[1]}, v{D1r+k}, v{TS_(k)}")
        a(f"v_cvt_pk_bf16_f32 v{X+k}, v{t[0]}, v{t[1]}")
        if q == 2 and e == 1: p2m(1)
    if q == 1: p2m(0)
    if q >= 2: p2m(q)
O = MR
for r, (Dx, so) in enumerate(((D2r, "s22"), (D2i, "s30"))):
    for c2 in range(2):
        o = O + 8 * r + 4 * c2
        for e in range(4):
            a(f"v_cvt_pk_bf16_f32 v{o+e}, v{Dx+8*c2+2*e}, v{Dx+8*c2+2*e+1}")
        a(f"v_permlane32_swap_b32 v{o}, v{o+2}")
        a(f"v_permlane32_swap_b32 v{o+1}, v{o+3}")
        a(f"buffer_store_dwordx4 {vr(o,4)}, v{vst}, s[12:15], {so} offen offset:{32*c2}")
a.label("L_fin")
stamp_end(32)
a.label("L_end")
a("s_endpgm")
a.label("L_hx")
a("s_lshl_b32 s26, s2, 3"); a("s_add_u32 s26, s26, s3")
a("s_cmp_lg_u32 s26, 4")
a("s_cbranch_scc1 L_fin")
a(f"s_mov_b32 s26, {hx(EP_OFF)}")
setflag(8, "s26", "s49")
a("s_branch L_fin")
a.label("L_m0")
a.hist = []
q_ = [MI + k for k in range(16)]
gaa = q_[0]; gbb = q_[1]; ph = q_[2]; st_ = q_[3]; c_ = q_[4]; s__ = q_[5]; al = q_[6]; be = q_[7]
a(f"v_and_b32 v{t[0]}, 1, v0"); a(f"v_cmp_eq_u32 vcc, 1, v{t[0]}")
a(f"v_bfe_u32 v{t[1]}, v0, 2, 2"); a(f"v_lshl_or_b32 v{t[1]}, v{t[1]}, 1, v{t[0]}")
a(f"v_cndmask_b32 v{gaa}, v{GG}, v{GG+2}, vcc"); a(f"v_cndmask_b32 v{gbb}, v{GG+1}, v{GG+3}, vcc")
a(f"v_lshlrev_b32 v{t[1]}, 8, v{t[1]}"); a(f"v_add_u32 v{t[1]}, s2, v{t[1]}")
a(f"v_cvt_f32_u32 v{st_}, v{t[1]}"); a(f"v_mul_f32 v{st_}, {hx(f2u(1/2048))}, v{st_}")
a(f"v_cvt_f32_u32 v{ph}, v{vg_}"); a(f"v_add_f32 v{ph}, v{ph}, v{ph}"); a(f"v_mul_f32 v{ph}, v{ph}, v{st_}")
a(f"v_bfe_u32 v{t[2]}, v0, 1, 1")
a(f"v_lshrrev_b32 v{t[3]}, 1, v{vg_}"); a(f"v_cmp_eq_u32 s[4:5], v{t[2]}, v{t[3]}")
a(f"v_and_b32 v{t[3]}, 1, v{vg_}"); a(f"v_cmp_eq_u32 s[6:7], 0, v{t[3]}")
a(f"v_cmp_eq_u32 s[14:15], 0, v{t[2]}")
a(f"v_cndmask_b32 v{q_[8]}, 0, v{gaa}, s[4:5]"); a(f"v_cndmask_b32 v{q_[9]}, 0, v{gbb}, s[4:5]")
a(f"v_mul_f32 v{q_[10]}, {fl(0.25)}, v{gaa}"); a(f"v_mul_f32 v{q_[11]}, {fl(0.25)}, v{gbb}")
for lo in range(2):
    if lo: a(f"v_add_f32 v{ph}, v{ph}, v{st_}")
    a(f"v_cos_f32 v{c_}, v{ph}"); a(f"v_sin_f32 v{s__}, v{ph}")
    for ab in range(2):
        if lo == 0:
            if ab == 0:
                a(f"v_cndmask_b32 v{al}, 0, v{q_[10]}, s[14:15]"); a(f"v_cndmask_b32 v{be}, 0, v{q_[11]}, s[14:15]")
            else:
                a(f"v_cndmask_b32 v{al}, v{q_[10]}, 0, s[14:15]"); a(f"v_cndmask_b32 v{be}, v{q_[11]}, 0, s[14:15]")
            a(f"v_cndmask_b32 v{al}, v{q_[8+ab]}, v{al}, s[6:7]"); a(f"v_cndmask_b32 v{be}, 0, v{be}, s[6:7]")
            a(f"v_mul_f32 v{t[0]}, v{al}, v{c_}"); a(f"v_fmac_f32 v{t[0]}, v{be}, v{s__}")
            a(f"v_mul_f32 v{t[1]}, v{be}, v{c_}"); a(f"v_fma_f32 v{t[1]}, -v{al}, v{s__}, v{t[1]}")
            a(f"v_cvt_pk_bf16_f32 v{MA0+2*lo+ab}, v{t[0]}, v{t[1]}")
        else:
            a(f"v_mul_f32 v{t[0]}, v{q_[8+ab]}, v{c_}"); a(f"v_mul_f32 v{t[1]}, v{q_[8+ab]}, v{s__}")
            a(f"v_cvt_pk_bf16_f32 v{MA0+2*lo+ab}, v{t[0]}, -v{t[1]}")
a("s_branch L_p3b")
a.label("L_el")
a.hist = []
a(f"v_lshlrev_b32 v{vEa}, 6, v{vg}"); a(f"v_add_u32 v{vEa}, s29, v{vEa}")
a("s_mov_b32 exec_lo, s52"); a("s_mov_b32 exec_hi, s52")
for cc in range(2):
    for i in range(4):
        for ab in range(2):
            a(f"ds_read_b64 {vr(Wi(2*ab,cc,i),2)}, v{vEa} offset:{256*cc+16*i+8*ab}")
a("s_mov_b64 exec, -1")
a("s_branch L_elb")
a.label("L_sp")
a.hist = []
X = XP2
ts(3)
a("s_lshr_b32 s29, s2, 2"); a("s_lshl_b32 s10, s3, 1"); a("s_add_u32 s29, s29, s10"); a("s_sub_u32 s29, 16, s29")
for cc in range(2):
    a(f"s_sub_u32 s10, s29, {cc}"); a("s_and_b32 s10, s10, 15")
    a("s_lshr_b32 s11, s10, 1"); a("s_lshl_b32 s11, s11, 8"); a("s_and_b32 s10, s10, 1"); a("s_lshl_b32 s10, s10, 3"); a("s_add_u32 s10, s10, s11")
    a(f"v_lshlrev_b32 v{tpr[0][cc]}, 12, v{vg}"); a(f"v_add_u32 v{tpr[0][cc]}, s10, v{tpr[0][cc]}")
for k in range(8): a(f"v_mov_b32 v{TB+k}, 0")
a("s_mov_b32 exec_lo, 0x00010001"); a("s_mov_b32 exec_hi, 0x00010001")
for cc in range(2):
    for h in range(2):
        a(f"ds_read_b64 {vr(TB+4*cc+2*h,2)}, v{tpr[0][cc]} offset:{h*2048}")
a("s_mov_b32 s10, 0x80000000"); a("s_mov_b32 s11, 0x80008000")
a("s_waitcnt lgkmcnt(0)")
for k in range(8): a(f"v_xor_b32 v{TB+k}, s10, v{TB+k}")
a("s_mov_b64 exec, -1")
ts(4)
a("s_cmp_lg_u32 s2, 0")
a("s_cbranch_scc1 L_sp4")
def sp_body(mats):
    def acc(cc):
        a(f"{M16} {vr(X+8*cc,4)}, {vr(mats[cc],4)}, {vr(TB+4*cc,4)}, {vr(X+8*cc,4)}")
        a(f"{M16} {vr(X+8*cc+4,4)}, {vr(mats[cc]+4,4)}, {vr(TB+4*cc,4)}, {vr(X+8*cc+4,4)}")
    acc(0); acc(1)
    a("s_mov_b32 exec_lo, 0x00010001"); a("s_mov_b32 exec_hi, 0x00010001")
    for k in range(8): a(f"v_xor_b32 v{TB+k}, s11, v{TB+k}")
    a("s_mov_b64 exec, -1")
    wmul(0, 0); acc(0); acc(0)
    wmul(1, 0); acc(1); acc(1)
    wmul(0, 1)
    wmul(1, 1)
    ts(6)
    a("s_nop 7")
    a("s_branch L_spb")
YO = [PKD, PKD, PKD + 4, PKD + 4]
sp_body([M2, M2 + 8])
a.label("L_sp4")
a.hist = []
a("s_nop 1")
sp_body([M2 + 8, MX])

nv = (a.maxv + 1 + 7) // 8 * 8
out = "; gated_mix spectral gfnet: persistent MFMA FFT pipeline (generated by gen5.py)\n"
out += f"; @launch grid=(256,1,1) block=(512,1,1) lds={LDS_BYTES}\n"
out += '.amdgcn_target "amdgcn-amd-amdhsa--gfx950"\n.text\n'
out += f".globl {NAME}\n.p2align 8\n.type {NAME},@function\n" + a.text() + ".rept 96\n    s_endpgm\n.endr\nL_code_end:\n"
out += f""".section .rodata,"a"
.p2align 6
.amdhsa_kernel {NAME}
  .amdhsa_next_free_vgpr {nv}
  .amdhsa_next_free_sgpr {min(102, a.maxs + 1)}
  .amdhsa_accum_offset {nv}
  .amdhsa_group_segment_fixed_size 0
  .amdhsa_kernarg_size 80
  .amdhsa_user_sgpr_count 2
  .amdhsa_user_sgpr_kernarg_segment_ptr 1
  .amdhsa_system_sgpr_workgroup_id_x 1
  .amdhsa_float_denorm_mode_32 3
.end_amdhsa_kernel
"""
sys.stderr.write(f"vgpr {a.maxv+1} sgpr {a.maxs+1} lines {len(a.lines)} nops {a.nops}\n")
print(out)
```

```python
import sys
from asmlib import *
NAME = "gated_mix__spectral_gfnet__spectral_gfnet__prompt_kernel"
TSB = 32896
ELO = 32768
S_OFF = 0x500000
import sys as _s
for _o in _s.argv:
    if _o.startswith('soff'): S_OFF = int(_o[4:]) << 20
F1_OFF = 0xE20000
F2_OFF = 0xE80000
EP_OFF = 0xEF0000
WS_SIZE = 0xF00000
WBYTES = 2048 * 1026
M32 = "v_mfma_f32_32x32x16_bf16"
M16 = "v_mfma_f32_16x16x32_bf16"
OPT = set(sys.argv[1:])
ST = "stamps" in OPT
WSZ = 0x10000000 if ST else WS_SIZE
L_A = 0; L_W = 16384; L_P = L_W; WR = 6144; L_G = 65536; L_N = 65664; L_C = 65920; L_E = 65936; LDS_BYTES = 65936 + 4096
def optint(pfx, d):
    for o in OPT:
        if o.startswith(pfx) and o[len(pfx):].isdigit(): return int(o[len(pfx):])
    return d
SLEEP = optint("sl", 1); PFAT = optint("pf", 8); NWG = optint("nwg", 0)
SPIN_MAX = 400000
NTX = " nt" if "ntx" in OPT else ""
NTW = " nt" if "ntw" in OPT else ""
PLF = "sc0 sc1" if "psys" in OPT else ("sc1 nt" if "pnt" in OPT else ("sc0 sc1 nt" if "psysnt" in OPT else "sc1"))
FSF = "sc0 sc1" if "fsys" in OPT else "sc1"
SSF = "sc0 sc1" if "ssys" in OPT else ("sc1 nt" if "snt" in OPT else ("" if "swb" in OPT else "sc1"))
def lf(k):
    return "sc0 sc1" if k+"sys" in OPT else ("sc1 nt" if k+"nt" in OPT else ("sc0 sc1 nt" if k+"sn" in OPT else "sc1"))
SLF = lf("ls"); TLF = lf("lt")
OSF = " sc1" if "osc1" in OPT else (" nt" if "ont" in OPT else (" sc0 sc1" if "osys" in OPT else ""))
a = Asm()
def srd(d, base, size):
    a(f"s_mov_b32 s{d}, s{base}"); a(f"s_mov_b32 s{d+1}, s{base+1}")
    a(f"s_mov_b32 s{d+2}, {hx(size)}"); a(f"s_mov_b32 s{d+3}, 0x00020000")
NST = 14
AMX = optint("amx", -1)
def ts(k):
    if ST:
        a(f"s_memrealtime s[{60+2*k}:{61+2*k}]")
        a("s_waitcnt lgkmcnt(0)")
def amx_post(vt):
    if AMX < 0: return
    a("s_load_dwordx2 s[4:5], s[0:1], 64")
    a("s_waitcnt lgkmcnt(0)")
    a("s_mov_b32 s6, 256"); a("s_mov_b32 s7, 0x00020000")
    a(f"v_mov_b32 v{vt}, s{60+2*AMX}"); a("s_and_b32 s96, s2, 7"); a("s_lshl_b32 s96, s96, 2"); a(f"v_mov_b32 v{vt+1}, s96")
    a("s_cmp_eq_u32 s3, %d" % optint("aw", 0)); a("s_cselect_b32 exec_lo, 1, 0"); a("s_mov_b32 exec_hi, 0")
    a(f"buffer_atomic_umax v{vt}, v{vt+1}, s[4:7], 0 offen")
    a("s_mov_b64 exec, -1")
def stamp_end(vt):
    if not ST: return
    a("s_waitcnt vmcnt(0)")
    ts(NST - 1)
    for k in range(16): a(f"v_mov_b32 v{vt+k}, {'s%d' % (60+2*k) if k < NST else '0'}")
    a("s_lshl_b32 s96, s3, 6"); a("s_lshl_b32 s97, s2, 9"); a("s_add_u32 s96, s96, s97")
    a(f"s_add_u32 s96, s96, 0x3000000")
    a(f"v_mov_b32 v{vt+16}, 0")
    a("s_mov_b64 exec, 1")
    if AMX >= 0:
        a("s_lshl_b32 s96, s2, 3"); a("s_add_u32 s96, s96, s3"); a("s_cmp_lg_u32 s96, 72"); a("s_cbranch_scc1 L_end")
        a("s_load_dwordx2 s[4:5], s[0:1], 64")
        a("s_waitcnt lgkmcnt(0)")
        a("s_mov_b32 s6, 256"); a("s_mov_b32 s7, 0x00020000")
        a(f"buffer_load_dwordx4 {vr(vt,4)}, v{vt+16}, s[4:7], 0 offen sc1")
        a(f"buffer_load_dwordx4 {vr(vt+4,4)}, v{vt+16}, s[4:7], 0 offen offset:16 sc1")
        a("s_waitcnt vmcnt(0)")
        for k in range(1, 8): a(f"v_max_u32 v{vt}, v{vt}, v{vt+k}")
        a("s_nop 1")
        a(f"v_readfirstlane_b32 s4, v{vt}")
        a(f"s_sub_u32 s4, s4, s60"); a("s_mul_i32 s4, s4, 10"); a(f"s_add_u32 s4, s4, s{60+2*(NST-1)}")
        a.label("L_amp")
        a("s_memrealtime s[6:7]"); a("s_waitcnt lgkmcnt(0)")
        a("s_sub_u32 s5, s6, s4"); a("s_cmp_lt_i32 s5, 0"); a("s_cbranch_scc1 L_amp")
        return
    amp = optint("amp", -1)
    if amp >= 0:
        a("s_lshl_b32 s4, s2, 3"); a("s_add_u32 s4, s4, s3"); a("s_cmp_lg_u32 s4, %d" % (72 + optint("aw", 0))); a("s_cbranch_scc1 L_end")
        a(f"s_sub_u32 s4, s{60+2*amp}, s60"); a("s_mul_i32 s4, s4, 10"); a(f"s_add_u32 s4, s4, s{60+2*(NST-1)}")
        a.label("L_amp")
        a("s_memrealtime s[6:7]"); a("s_waitcnt lgkmcnt(0)")
        a("s_sub_u32 s5, s6, s4"); a("s_cmp_lt_i32 s5, 0"); a("s_cbranch_scc1 L_amp")
        return
    if "dbg" in OPT:
        a("s_load_dwordx2 s[4:5], s[0:1], 64")
        a("s_waitcnt lgkmcnt(0)")
        a("s_mov_b32 s6, 256"); a("s_mov_b32 s7, 0x00020000")
        a(f"v_not_b32 v{vt+14}, v{vt}")
        for k in range(15):
            a(f"buffer_atomic_umax v{vt+k}, v{vt+16}, s[4:7], 0 offen offset:{4*k}")
        return
    for q in range(4): a(f"buffer_store_dwordx4 {vr(vt+4*q,4)}, v{vt+16}, s[16:19], s96 offen offset:{16*q}")
def poll(lbl, vaddr, vtmp, soff, tag):
    a("s_mov_b32 s58, 0")
    a("s_mov_b32 exec_hi, 0")
    a.label(lbl)
    a(f"buffer_load_dword v{vtmp}, v{vaddr}, s[16:19], {soff} offen {PLF}")
    a("s_add_u32 s58, s58, 1")
    a("s_waitcnt vmcnt(0)")
    a(f"v_cmp_ne_u32 vcc, {tag}, v{vtmp}")
    a(f"s_cmp_gt_u32 s58, {SPIN_MAX}")
    a(f"s_cbranch_scc1 {lbl}_d")
    a("s_and_b64 exec, exec, vcc")
    a(f"s_cbranch_execz {lbl}_d")
    if SLEEP: a(f"s_sleep {SLEEP}")
    a(f"s_branch {lbl}")
    a.label(lbl + "_d")
    a("s_mov_b64 exec, -1")
def setflag(vtmp, soff, tag):
    a(f"v_mov_b32 v{vtmp}, {tag}"); a(f"v_lshlrev_b32 v{vtmp+1}, 2, v0")
    a("s_waitcnt vmcnt(0)")
    a("s_mov_b32 exec_hi, 0")
    a(f"buffer_store_dword v{vtmp}, v{vtmp+1}, s[16:19], {soff} offen {FSF}")
    a("s_mov_b32 exec_hi, -1")

a.label(NAME)
a.label("L_code_start")
a("s_cmp_ge_u32 s2, 256")
a("s_cbranch_scc1 L_end")
if ST:
    a("s_memrealtime s[60:61]")
    for k in range(1, NST): a(f"s_mov_b32 s{60+2*k}, 0")
a("s_load_dwordx4 s[4:7], s[0:1], 0")
a("s_load_dwordx2 s[20:21], s[0:1], 72")
a("s_load_dwordx2 s[28:29], s[0:1], 16")
a("s_load_dwordx8 s[88:95], s[0:1], 32")
a("s_getpc_b64 s[12:13]")
a("s_and_b32 s12, s12, 0xffffff00")
a("s_mov_b32 s14, L_code_end-L_code_start")
a("s_mov_b32 s15, 0x00020000")
a("v_lshlrev_b32 v6, 6, v0")
a("s_bfe_u32 s8, s2, 0x20003")
a("v_lshrrev_b32 v1, 6, v0")
a("v_cmp_eq_u32 vcc, s8, v1")
a("s_and_saveexec_b64 s[10:11], vcc")
a("s_cbranch_execz L_cp")
if "nocp" not in OPT: a("buffer_load_ubyte v5, v6, s[12:15], 0 offen")
a.label("L_cp")
a("s_mov_b64 exec, -1")
a("v_and_b32 v0, 63, v0")
a("v_readfirstlane_b32 s3, v1")
vl16 = 2; vn = 3; vL5 = 4; vE = 5
a(f"v_lshlrev_b32 v{vl16}, 4, v0")
a(f"v_and_b32 v{vn}, 31, v0")
a(f"v_lshrrev_b32 v{vL5}, 5, v0")
a("s_and_b32 s51, s3, 3")
a("s_lshl_b32 s22, s51, 9"); a("s_add_u32 s22, s22, s2"); a("s_lshl_b32 s22, s22, 11")
a("s_and_b32 s53, s2, 7"); a("s_lshl_b32 s53, s53, 5"); a("s_lshr_b32 s54, s2, 3"); a("s_add_u32 s53, s53, s54")
a("s_and_b32 s55, s2, 7"); a("s_mul_i32 s55, s55, 1026"); a("s_lshl_b32 s56, s54, 5"); a("s_add_u32 s55, s55, s56")
a("s_lshl_b32 s24, s51, 12")
a("s_lshl_b32 s57, s2, 10"); a(f"s_add_u32 s57, s57, {hx(F1_OFF)}")
a(f"s_mov_b32 s26, {hx(EP_OFF)}")
a("v_mov_b32 v7, 0")
a("s_waitcnt lgkmcnt(0)")
srd(16, 20, WSZ)
a(f"buffer_load_dword v{vE}, v7, s[16:19], s26 offen sc1")
for arr, p_ in enumerate((6, 28, 88, 90)): srd(32 + 4 * arr, p_, WBYTES)
def tags():
    a(f"v_readfirstlane_b32 s48, v{vE}")
    a("s_mul_i32 s48, s48, 0x9E3779B1"); a("s_add_u32 s48, s48, 0x7F4A7C15")
    a("s_xor_b32 s49, s48, 0x5bd1e995")
def arr_srd():
    a("s_cmp_eq_u32 s51, 0"); a("s_cselect_b32 s12, s32, s36"); a("s_cselect_b32 s13, s33, s37")
    a("s_cmp_eq_u32 s51, 2"); a("s_cselect_b32 s12, s40, s12"); a("s_cselect_b32 s13, s41, s13")
    a("s_cmp_eq_u32 s51, 3"); a("s_cselect_b32 s12, s44, s12"); a("s_cselect_b32 s13, s45, s13")
    a(f"s_mov_b32 s14, {hx(WBYTES)}"); a("s_mov_b32 s15, 0x00020000")
V2 = VAlloc(5)
vg = V2(); vc = V2(); vF = V2()
SC = V2(16, 4)
vS = V2(); vw1 = V2(); vr1 = V2(); vT = V2(); vTr = V2(); vWr = V2(); vw2 = V2(); vr2 = V2()
WW = V2(32, 4); TB = V2(8, 4)
Fr = V2(4, 4); Fm = V2(4, 4); M2 = V2(16, 4); MT = V2(16, 4); D = V2(16, 4)
assert V2.n <= 128, V2.n
vW = D; vEa = 2
Wi = lambda arr, cc, i: WW + 16 * cc + 8 * (arr >> 1) + 2 * i + (arr & 1)
MX = SC
L_GW = L_W + 16384
def p2_addr():
    t = [SC + k for k in range(6)]
    a(f"v_lshrrev_b32 v{vg}, 4, v0"); a(f"v_and_b32 v{vc}, 15, v0")
    a(f"v_lshrrev_b32 v{t[0]}, 2, v0"); a(f"v_mul_u32_u24 v{vT}, {16*TSB}, v{t[0]}")
    a(f"v_and_b32 v{t[0]}, 3, v0"); a(f"v_lshl_add_u32 v{vT}, v{t[0]}, 4, v{vT}")
    a("s_lshl_b32 s27, s3, 11")
    a(f"s_mul_i32 s23, s3, {WR}"); a(f"s_add_u32 s23, s23, {L_W}")
    a(f"v_bfe_u32 v{t[0]}, v0, 1, 4"); a(f"v_and_b32 v{t[1]}, 1, v0"); a(f"v_lshl_add_u32 v{t[0]}, v{t[0]}, 4, v{t[1]}")
    a(f"v_lshlrev_b32 v{vF}, 10, v{t[0]}")
    a("s_lshl_b32 s28, s3, 8")
    a("s_and_b32 s8, s2, 7"); a("s_lshl_b32 s8, s8, 7"); a("s_add_u32 s8, s8, s27"); a(f"s_add_u32 s8, s8, {hx(F1_OFF)}")
    a(f"v_lshlrev_b32 v{t[0]}, 4, v{vc}")
    a(f"v_lshl_or_b32 v{t[1]}, v{vg}, 9, v{t[0]}")
    a(f"v_add_u32 v{vw1}, s27, v{t[1]}"); a(f"v_add_u32 v{vw2}, s23, v{t[1]}")
    a(f"v_lshl_or_b32 v{vr1}, v{vg}, 12, v{t[0]}"); a(f"v_add_u32 v{vr1}, s28, v{vr1}")
    a(f"v_mul_u32_u24 v{vr2}, {2*WR}, v{vg}"); a(f"s_add_u32 s29, s28, {L_W}"); a(f"v_add3_u32 v{vr2}, v{vr2}, v{t[0]}, s29")
    if "x4" not in OPT:
        a(f"v_mul_u32_u24 v{vS}, {64*TSB}, v{vg}"); a(f"v_lshl_add_u32 v{vS}, v{vc}, 3, v{vS}")
    else:
        a(f"v_lshlrev_b32 v{t[0]}, 4, v{vg}"); a(f"v_lshl_or_b32 v{vS}, v{vc}, 11, v{t[0]}")
def p2_item():
    t = [SC + k for k in range(6)]
    a(f"s_mul_i32 s24, s3, {2*TSB}"); a("s_lshl_b32 s26, s53, 7"); a("s_add_u32 s24, s24, s26")
    a(f"s_add_u32 s26, s24, {TSB}")
    a(f"v_lshlrev_b32 v{t[0]}, 2, v{vc}"); a(f"v_lshl_or_b32 v{vTr}, v{vg}, 8, v{t[0]}"); a(f"v_add_u32 v{vTr}, s27, v{vTr}")
    a("s_and_b32 s29, s55, 15"); a("s_add_u32 s29, s29, s23")
    a(f"v_mul_u32_u24 v{vWr}, 192, v{vg}"); a(f"v_lshl_add_u32 v{vWr}, v{vc}, 1, v{vWr}"); a(f"v_add_u32 v{vWr}, s29, v{vWr}")
    a("s_lshl_b32 s30, s53, 15"); a("s_add_u32 s30, s30, s28"); a(f"s_add_u32 s30, s30, {hx(S_OFF)}"); a("s_add_u32 s31, s30, 4096")
    a("s_lshl_b32 s9, s53, 10"); a("s_lshl_b32 s10, s3, 7"); a("s_add_u32 s9, s9, s10"); a(f"s_add_u32 s9, s9, {hx(F2_OFF)}")
    a(f"s_mul_i32 s50, s3, {2*TSB}"); a("s_and_b32 s29, s2, 7"); a("s_lshl_b32 s29, s29, 4"); a("s_add_u32 s50, s50, s29"); a(f"s_add_u32 s50, s50, {ELO}")
    a("s_cmp_eq_u32 s54, 0"); a("s_cselect_b32 s52, 0x00010001, 0")
    a(f"v_bfe_u32 v{t[0]}, v0, 4, 1"); a(f"v_lshl_add_u32 v{t[0]}, v{vc}, 4, v{t[0]}"); a(f"v_mul_u32_u24 v{vEa}, {TSB}, v{t[0]}")
    a("s_cselect_b32 s59, -1, 0")
def p2_const(dozero=True, hooks=()):
    hooks = list(hooks)
    def hook():
        if hooks: hooks.pop(0)()
    t = [SC + k for k in range(6)]
    vlf = SC + 6; vkf = SC + 7; vc0 = SC + 8; vlc = SC + 10; FA = SC + 12
    a(f"v_cvt_f32_u32 v{vlf}, v{vc}")
    a(f"v_cvt_f32_u32 v{vkf}, v{vg}"); a(f"v_mul_f32 v{vkf}, 4.0, v{vkf}")
    a(f"v_cvt_f32_u32 v{vc0}, s3"); a(f"v_mul_f32 v{vc0}, {fl(1/128)}, v{vc0}")
    a(f"v_mul_f32 v{vlc}, v{vlf}, v{vc0}")
    a(f"v_fmamk_f32 v{vlc+1}, v{vlf}, {hx(f2u(1/256))}, v{vlc}")
    a(f"v_mul_f32 v{vlf}, {fl(1/16)}, v{vlf}")
    z = iter(range(32))
    def zero(n):
        if not dozero:
            if n == 1: a("s_nop 0")
            return
        for _ in range(n):
            k = next(z, None)
            if k is not None: a(f"v_mov_b32 v{WW+k}, 0")
    def mat(ang):
        a(f"v_cos_f32 v{t[3]}, v{ang}"); a(f"v_sin_f32 v{t[4]}, v{ang}")
    def matfin(Mr, Mm):
        a(f"v_cvt_pk_bf16_f32 v{Mr}, v{t[3]}, v{t[4]}")
        a(f"v_cvt_pk_bf16_f32 v{Mm}, -v{t[4]}, v{t[3]}")
        hook()
    hook(); hook()
    for i in range(4):
        if i: a(f"v_add_f32 v{vkf}, 1.0, v{vkf}")
        a(f"v_mul_f32 v{FA+i}, v{vkf}, v{vlf}")
        mat(FA + i); zero(1); matfin(Fr + i, Fm + i)
    for i in range(3, -1, -1):
        a(f"v_fma_f32 v{t[0]}, v{vkf}, v{vc0}, v{FA+i}")
        a(f"v_fmamk_f32 v{t[1]}, v{vkf}, {hx(f2u(1/256))}, v{t[0]}")
        mat(t[0]); a(f"v_add_f32 v{t[2]}, v{FA+i}, v{vlc}"); matfin(M2 + i, M2 + 4 + i)
        mat(t[1]); a(f"v_add_f32 v{t[5]}, v{FA+i}, v{vlc+1}"); matfin(M2 + 8 + i, M2 + 12 + i)
        mat(t[2]); a(f"v_subrev_f32 v{vkf}, 1.0, v{vkf}"); matfin(MT + i, MT + 4 + i)
        mat(t[5]); zero(1); matfin(MT + 8 + i, MT + 12 + i)
    zero(32)
    a(f"v_add_f32 v{vc0}, {fl(1/128)}, v{vc0}")
    a(f"v_mov_b32 v{SC+9}, v{vkf}")
    for i in range(4):
        a(f"v_add_f32 v{SC+9}, 1.0, v{SC+9}")
        a(f"v_fma_f32 v{FA+i}, v{SC+9}, v{vc0}, v{FA+i}")
    for i in range(4):
        a(f"v_cos_f32 v{SC+10}, v{FA+i}"); a(f"v_sin_f32 v{SC+11}, v{FA+i}"); a("s_nop 0")
        a(f"v_cvt_pk_bf16_f32 v{MX+i}, v{SC+10}, v{SC+11}")
        a(f"v_cvt_pk_bf16_f32 v{MX+4+i}, -v{SC+11}, v{SC+10}")
def wvoff(dst, t0, t1):
    a(f"v_mul_u32_u24 v{t0}, 43, v0"); a(f"v_lshrrev_b32 v{t0}, 7, v{t0}")
    a(f"v_mul_u32_u24 v{t1}, 3, v{t0}"); a(f"v_sub_u32 v{t1}, v0, v{t1}")
    a(f"v_mul_u32_u24 v{dst}, {16*8*1026}, v{t0}"); a(f"v_lshl_add_u32 v{dst}, v{t1}, 4, v{dst}")
def wdma_list(vreg, adds, ccs=(0, 1)):
    ops = []
    for add in adds:
        def head(add=add):
            a(f"s_add_u32 s6, s3, {add}")
            a(f"s_mul_i32 s4, s6, {2*8*1026}"); a("s_add_u32 s4, s4, s55"); a("s_and_b32 s4, s4, 0xfffffff0")
            a(f"s_add_u32 s5, s4, {8*1026}")
            a(f"s_mul_i32 s6, s6, {WR}")
        for arr in range(4):
            for cc in ccs:
                def op(arr=arr, cc=cc, head=head):
                    if arr == 0 and cc == ccs[0]: head()
                    a("s_mov_b32 exec_hi, 0xffff")
                    a(f"s_add_u32 m0, s6, {L_W + 1536*arr + 768*cc}")
                    a(f"buffer_load_dwordx4 v{vreg}, {sr(32+4*arr,4)}, {'s4' if cc == 0 else 's5'} offen lds")
                    a("s_mov_b32 exec_hi, -1")
                ops.append(op)
    return ops
a(f"s_mov_b32 s56, {8*1026}")
a("s_cmp_ge_u32 s3, 4")
a("s_cbranch_scc1 L_h")
a("s_setprio 2")
srd(8, 4, 2048 * 2048)
a("s_add_u32 s30, s22, 0x80000")
a("s_mov_b32 m0, s24")
a(f"buffer_load_dwordx4 v{vl16}, s[8:11], s22 offen{NTX} lds")
a(f"buffer_load_dwordx4 v{vl16}, s[8:11], s22 offen offset:1024{NTX} lds")
a("s_add_u32 m0, s24, 2048")
a(f"buffer_load_dwordx4 v{vl16}, s[8:11], s30 offen{NTX} lds")
a(f"buffer_load_dwordx4 v{vl16}, s[8:11], s30 offen offset:1024{NTX} lds")
V = VAlloc(6)
vb = V(); vo = V(); vkn = V(); vtr = V(); vpf = V(); vj = V(); vpw = V(4); t = [V() for _ in range(6)]
srd(8, 92, 2048)
a("s_lshl_b32 s30, s51, 9"); a(f"s_add_u32 m0, s30, {L_GW}")
a("s_mov_b32 exec_hi, 0")
a(f"buffer_load_dwordx4 v{vl16}, s[8:11], s30 offen lds")
a("s_mov_b32 exec_hi, -1")
arr_srd()
a(f"v_and_b32 v{t[0]}, 7, v0"); a("s_lshl_b32 s30, s2, 3"); a(f"v_add_u32 v{t[0]}, s30, v{t[0]}")
a(f"v_bfe_i32 v{t[1]}, v0, 4, 1"); a(f"v_xor_b32 v{t[0]}, v{t[0]}, v{t[1]}"); a(f"v_sub_u32 v{t[0]}, v{t[0]}, v{t[1]}")
a(f"v_and_b32 v{t[0]}, 2047, v{t[0]}"); a(f"v_mul_u32_u24 v{t[2]}, 1026, v{t[0]}")
a(f"v_bfe_u32 v{t[1]}, v0, 3, 1"); a(f"v_lshl_add_u32 v{t[2]}, v{t[1]}, 10, v{t[2]}")
a(f"buffer_load_ushort v{vj}, v{t[2]}, s[12:15], 0 offen")
a("s_and_b32 s30, s2, 7"); a("s_lshl_b32 s31, s54, 6"); a("s_add_u32 s30, s30, s31"); a("s_mul_i32 s30, s30, 1026")
a(f"v_lshrrev_b32 v{t[0]}, 3, v0"); a(f"v_mul_u32_u24 v{t[2]}, {8*1026}, v{t[0]}")
a(f"v_and_b32 v{t[1]}, 7, v0"); a(f"v_lshl_add_u32 v{vpf}, v{t[1]}, 7, v{t[2]}")
vjunk = 1
def prefetch():
    a(f"buffer_load_ubyte v{vjunk}, v{vpf}, s[12:15], s30 offen{NTW}")
    a(f"buffer_load_ubyte v{vjunk}, v{vpt}, s[12:15], s30 offen offset:1024{NTW}")
NPF = 2
vpt = V()
a(f"v_and_b32 v{t[1]}, 1, v0"); a(f"v_lshl_add_u32 v{vpt}, v{t[1]}, 4, v{t[2]}")
if PFAT == 0: prefetch()
CC = V(8, 4); SS = V(8, 4); SN = V(8, 4); XR = V(8, 4); XI = V(8, 4)
BA = V(24, 4); BB = V(24, 4); TCh = V(8); TSh = V(8)
D1r = BA + 8; D1i = BB + 8; D2r = BA; D2i = BB
TC = lambda k: BA + k if k < 8 else TCh + k - 8
TS_ = lambda k: BB + k if k < 8 else TSh + k - 8
assert V.n <= 128, V.n
a(f"v_and_b32 v{t[0]}, 7, v0"); a(f"v_bfe_u32 v{t[1]}, v0, 3, 2")
a(f"v_lshl_or_b32 v{vkn}, v{t[0]}, 2, v{t[1]}")
a(f"v_cvt_f32_u32 v{vb}, v{vkn}"); a(f"v_cvt_f32_u32 v{vo}, v{vL5}")
a(f"v_mul_f32 v{vb}, {fl(1/32)}, v{vb}"); a(f"v_mul_f32 v{vo}, 4.0, v{vo}"); a(f"v_mul_f32 v{vo}, v{vb}, v{vo}")
for i in range(0, 16, 2):
    for e in range(2):
        kc = 8 * ((i + e) // 4) + (i + e) % 4
        if kc == 0: a(f"v_mov_b32 v{t[e]}, v{vo}")
        else: a(f"v_fmamk_f32 v{t[e]}, v{vb}, {hx(f2u(float(kc)))}, v{vo}")
    a(f"v_cos_f32 v{t[2]}, v{t[0]}"); a(f"v_cos_f32 v{t[3]}, v{t[1]}")
    a(f"v_sin_f32 v{t[4]}, v{t[0]}"); a(f"v_sin_f32 v{t[5]}, v{t[1]}")
    a(f"v_mul_f32 v{t[0]}, {fl(1/32)}, v{t[0]}"); a(f"v_mul_f32 v{t[1]}, {fl(1/32)}, v{t[1]}")
    a(f"v_cvt_pk_bf16_f32 v{CC+i//2}, v{t[2]}, v{t[3]}")
    a(f"v_cvt_pk_bf16_f32 v{SS+i//2}, v{t[4]}, v{t[5]}")
    a(f"v_cvt_pk_bf16_f32 v{SN+i//2}, -v{t[4]}, -v{t[5]}")
    a(f"v_cos_f32 v{TC(i)}, v{t[0]}"); a(f"v_cos_f32 v{TC(i+1)}, v{t[1]}")
    a(f"v_sin_f32 v{TS_(i)}, v{t[0]}"); a(f"v_sin_f32 v{TS_(i+1)}, v{t[1]}")
    if PFAT == i // 2 + 1: prefetch()
a(f"v_lshlrev_b32 v{vtr}, 8, v{vL5}")
a(f"v_bfe_u32 v{t[0]}, v0, 2, 2"); a(f"v_lshl_or_b32 v{vtr}, v{t[0]}, 6, v{vtr}")
a(f"v_bfe_u32 v{t[0]}, v0, 4, 1"); a(f"v_lshl_or_b32 v{vtr}, v{t[0]}, 5, v{vtr}")
a(f"v_and_b32 v{t[0]}, 3, v0"); a(f"v_lshl_or_b32 v{vtr}, v{t[0]}, 3, v{vtr}")
a(f"v_add_u32 v{vtr}, s24, v{vtr}")
a(f"v_and_b32 v{t[0]}, 7, v0"); a(f"v_bfe_u32 v{t[1]}, v0, 3, 2"); a(f"v_lshlrev_b32 v{t[1]}, 1, v{t[1]}")
a(f"v_xor_b32 v{t[0]}, v{t[0]}, v{t[1]}"); a(f"v_xor_b32 v{t[0]}, v{t[0]}, v{vL5}")
a(f"v_lshlrev_b32 v{t[0]}, 4, v{t[0]}")
a(f"v_lshl_or_b32 v{vpw}, v{vkn}, 7, v{t[0]}")
a(f"s_add_u32 s26, s24, {L_P}")
a(f"v_add_u32 v{vpw}, s26, v{vpw}")
for c in range(1, 4): a(f"v_xor_b32 v{vpw+c}, {32*c}, v{vpw}")
vet = vb
a(f"v_and_b32 v{t[0]}, 7, v0"); a(f"v_and_b32 v{t[1]}, 16, v0"); a(f"v_lshl_or_b32 v{t[0]}, v{t[0]}, 1, v{t[1]}")
a(f"v_bfe_u32 v{t[1]}, v0, 3, 1"); a(f"v_lshl_or_b32 v{t[0]}, v{t[1]}, 7, v{t[0]}")
a("s_lshl_b32 s30, s51, 5"); a(f"s_add_u32 s30, s30, {L_N}"); a(f"v_add_u32 v{vet}, s30, v{t[0]}")
ts(1)
a(f"s_waitcnt vmcnt({NPF if PFAT <= 8 else 0})")
ts(2)
tags()
a(f"ds_write_b16 v{vet}, v{vj}")
for h in range(2):
    for r, X in ((0, XR), (1, XI)):
        for tt in range(2):
            a(f"ds_read_b64_tr_b16 {vr(X+4*h+2*tt,2)}, v{vtr} offset:{r*2048+h*1024+tt*512}")
a("s_waitcnt lgkmcnt(8)")
a("s_barrier")
def cpass(R, I, Dr, Di, h, first):
    c0 = "0" if first else vr(Dr, 16); c1 = "0" if first else vr(Di, 16)
    a(f"{M32} {vr(Dr,16)}, {vr(R+4*h,4)}, {vr(CC+4*h,4)}, {c0}")
    a(f"{M32} {vr(Di,16)}, {vr(I+4*h,4)}, {vr(CC+4*h,4)}, {c1}")
    a(f"{M32} {vr(Dr,16)}, {vr(I+4*h,4)}, {vr(SS+4*h,4)}, {vr(Dr,16)}")
    a(f"{M32} {vr(Di,16)}, {vr(R+4*h,4)}, {vr(SN+4*h,4)}, {vr(Di,16)}")
a("s_waitcnt lgkmcnt(4)")
cpass(XR, XI, D1r, D1i, 0, True)
a("s_waitcnt lgkmcnt(0)")
cpass(XR, XI, D1r, D1i, 1, False)
for h in range(2):
    for i in range(8 * h, 8 * h + 8, 2):
        for e in range(2):
            k = i + e
            a(f"v_mul_f32 v{t[e]}, v{D1r+k}, v{TC(k)}")
            a(f"v_mul_f32 v{t[2+e]}, v{D1i+k}, v{TC(k)}")
            a(f"v_fmac_f32 v{t[e]}, v{D1i+k}, v{TS_(k)}")
            a(f"v_fma_f32 v{t[2+e]}, -v{D1r+k}, v{TS_(k)}, v{t[2+e]}")
        a(f"v_cvt_pk_bf16_f32 v{XR+i//2}, v{t[0]}, v{t[1]}")
        a(f"v_cvt_pk_bf16_f32 v{XI+i//2}, v{t[2]}, v{t[3]}")
    cpass(XR, XI, D2r, D2i, h, h == 0)
PK = CC
for c in range(4):
    for e in range(4):
        a(f"v_cvt_pk_bf16_f32 v{PK+4*c+e}, v{D2r+4*c+e}, v{D2i+4*c+e}")
    a(f"ds_write_b128 v{vpw+c}, {vr(PK+4*c,4)}")
a("s_waitcnt lgkmcnt(0)")
ts(3)
a("s_barrier")
a("s_setprio 0")
p2_addr()
p2_item()
wvoff(vW, SC, SC + 1)
ts(4)
a("s_barrier")
ts(5)
EARLY = "early" in OPT
SPLIT = "split" in OPT
p2_const(hooks=wdma_list(vW, [0, 4], (0,) if SPLIT else (0, 1)))
ts(6)
a("s_branch L_p2")
a.label("L_h")
a.hist = []
V = VAlloc(6)
t = [V() for _ in range(8)]
XN = V(16, 4); GW = V(8, 4)
def prewrite():
    if "pw" in OPT or "pws" in OPT:
        a(f"v_lshlrev_b32 v{t[0]}, 7, v0")
        a("s_lshl_b32 s30, s53, 15"); a("s_lshl_b32 s31, s51, 13"); a("s_add_u32 s30, s30, s31"); a(f"s_add_u32 s30, s30, {hx(S_OFF)}")
    if "pw" in OPT or "pwt" in OPT:
        a(f"v_and_b32 v{t[1]}, 3, v0"); a(f"v_lshlrev_b32 v{t[1]}, 7, v{t[1]}"); a(f"v_bfe_u32 v{t[2]}, v0, 2, 3"); a(f"v_lshl_or_b32 v{t[1]}, v{t[2]}, 11, v{t[1]}")
        a(f"s_mul_i32 s31, s2, {TSB}"); a("s_lshl_b32 s29, s51, 9"); a("s_add_u32 s31, s31, s29")
        a("s_mov_b32 exec_hi, 0")
        a(f"buffer_store_dword v{t[1]}, v{t[1]}, s[16:19], s31 offen sc1")
        a("s_mov_b32 exec_hi, -1")
    if "pw" in OPT or "pws" in OPT:
        a(f"buffer_store_dword v{t[0]}, v{t[0]}, s[16:19], s30 offen sc1")
NPW = 2 if "pw" in OPT else (1 if ("pws" in OPT or "pwt" in OPT) else 0)
if "pwl" not in OPT: prewrite()
vnat = V(); a(f"v_add_u32 v{vnat}, s24, v{vl16}")
MA = V(4, 4)
DMB = V(48, 4)
vu = DMB; vA = DMB + 1; vB1 = DMB + 2; vB2 = DMB + 3; vsg = DMB + 4
a(f"v_mov_b32 v{t[3]}, {L_C}"); a(f"v_mov_b32 v{t[4]}, 0")
a(f"ds_write_b32 v{t[3]}, v{t[4]}")
a(f"v_bfe_u32 v{t[0]}, v0, 3, 1"); a(f"v_bfe_u32 v{t[1]}, v0, 1, 1")
a(f"v_lshl_or_b32 v{t[0]}, v{t[0]}, 1, v{t[1]}")
a(f"v_and_or_b32 v{vu}, v0, 4, v{t[0]}")
a(f"v_cvt_f32_u32 v{vu}, v{vu}")
a(f"v_cvt_f32_u32 v{vsg}, v{vL5}")
a(f"v_fma_f32 v{vsg}, v{vsg}, -2.0, 1.0")
a(f"v_mul_f32 v{vA}, v{vu}, v{vsg}")
a(f"v_mul_f32 v{vA}, {fl(0.125)}, v{vA}")
a(f"v_and_b32 v{t[0]}, 1, v0"); a(f"v_cvt_f32_u32 v{t[0]}, v{t[0]}")
a(f"v_mul_f32 v{vB1}, v{t[0]}, v{vsg}"); a(f"v_mul_f32 v{vB1}, {fl(0.25)}, v{vB1}")
a(f"v_cvt_f32_u32 v{t[1]}, s2"); a(f"v_mul_f32 v{t[1]}, {fl(1/256)}, v{t[1]}")
a(f"v_fmac_f32 v{vB1}, v{t[1]}, v{vA}")
a(f"v_add_f32 v{vB2}, {fl(0.25)}, v{vB1}")
for pp in range(4):
    if pp == 0: a(f"v_mov_b32 v{t[0]}, v{vB1}")
    else: a(f"v_fmamk_f32 v{t[0]}, v{vA}, {hx(f2u(2.0*pp))}, v{vB1}")
    a(f"v_fmamk_f32 v{t[1]}, v{vA}, {hx(f2u(2.0*pp+1))}, v{vB2}")
    a(f"v_cos_f32 v{t[2]}, v{t[0]}"); a(f"v_cos_f32 v{t[3]}, v{t[1]}")
    a(f"v_sin_f32 v{t[4]}, v{t[0]}"); a(f"v_sin_f32 v{t[5]}, v{t[1]}")
    a(f"v_add_f32 v{t[2]}, v{t[2]}, v{t[3]}")
    a(f"v_add_f32 v{t[4]}, v{t[4]}, v{t[5]}")
    a(f"v_cvt_pk_bf16_f32 v{MA+pp}, v{t[2]}, v{t[4]}")
vmr = V(5); vk = DMB + 5; vneg = DMB + 6
a("s_lshl_b32 s30, s51, 7")
a(f"v_lshlrev_b32 v{t[0]}, 2, v{vn}")
a(f"v_sub_u32 v{vneg}, 0, v{vL5}")
for q in range(5):
    if q < 4: a(f"v_add3_u32 v{vk}, v{t[0]}, s30, {q}")
    else: a(f"v_add_u32 v{vk}, 512, v{t[0]}")
    a(f"v_xor_b32 v{vk}, v{vk}, v{vneg}"); a(f"v_add_u32 v{vk}, v{vk}, v{vL5}")
    a(f"v_bfe_u32 v{t[1]}, v{vk}, 5, 5")
    a(f"v_bfe_u32 v{t[2]}, v{vk}, 7, 3")
    a(f"v_xor_b32 v{t[3]}, v{vk}, v{t[1]}")
    a(f"v_and_b32 v{t[3]}, 3, v{t[3]}")
    a(f"v_bfe_u32 v{t[4]}, v{vk}, 4, 1")
    a(f"v_lshl_or_b32 v{t[3]}, v{t[3]}, 1, v{t[4]}")
    a(f"v_xor_b32 v{t[3]}, v{t[3]}, v{t[2]}")
    a(f"v_and_b32 v{t[4]}, 12, v{vk}")
    a(f"v_lshl_or_b32 v{t[4]}, v{t[3]}, 4, v{t[4]}")
    a(f"v_lshl_or_b32 v{vmr+q}, v{t[1]}, 7, v{t[4]}")
vts = V(); veo = V(); vet2 = V(); vsig = V(); ves = V()
a(f"v_lshlrev_b32 v{t[0]}, 14, v{vL5}"); a(f"v_and_b32 v{t[1]}, 3, v0"); a(f"v_lshl_or_b32 v{t[0]}, v{t[1]}, 4, v{t[0]}")
a(f"v_bfe_u32 v{t[1]}, v0, 2, 3"); a(f"v_lshl_or_b32 v{vts}, v{t[1]}, 7, v{t[0]}")
EV = DMB + 8
a(f"v_and_b32 v{t[0]}, 7, v0"); a(f"v_bfe_u32 v{t[1]}, v0, 3, 1")
a(f"v_lshlrev_b32 v{t[2]}, 3, v{t[1]}"); a(f"v_lshl_or_b32 v{ves}, v{t[0]}, 4, v{t[2]}")
a(f"v_and_b32 v{t[2]}, 3, v0"); a(f"v_cmp_eq_u32 vcc, 0, v{t[2]}")
a(f"v_lshrrev_b32 v{t[3]}, 2, v{t[0]}")
a(f"v_cvt_f32_u32 v{t[4]}, v{t[1]}"); a(f"v_fma_f32 v{t[4]}, v{t[4]}, -2.0, 1.0")
a(f"v_cndmask_b32 v{t[3]}, v{t[3]}, v{t[1]}, vcc")
a(f"v_cndmask_b32 v{vsig}, 0, v{t[4]}, vcc")
a(f"v_lshlrev_b32 v{t[0]}, 1, v{t[0]}"); a(f"v_lshl_or_b32 v{t[0]}, v{t[1]}, 6, v{t[0]}"); a(f"v_lshl_or_b32 v{t[0]}, v{t[3]}, 7, v{t[0]}")
a(f"v_add_u32 v{veo}, {L_N}, v{t[0]}"); a(f"v_xor_b32 v{vet2}, 64, v{veo}")
for k in range(8): a(f"v_mov_b32 v{EV+k}, 0")
a(f"s_mul_i32 s8, s2, {TSB}")
a("s_lshl_b32 s9, s51, 10"); a("s_add_u32 s9, s9, s8")
a(f"s_add_u32 s8, s8, {ELO}")
if "nopad" not in OPT:
    for s_ in range(4):
        a(f"s_add_u32 s10, s9, {4096*s_}")
        a(f"buffer_store_dwordx4 {vr(XN,4)}, v{vts}, s[16:19], s10 offen offset:64 sc1")
    NPW += 4
a("s_mov_b32 s11, 0xffff0000")
acc = V(4, 4); ones = V(); MB = XN; MB4 = GW
a(f"v_mov_b32 v{ones}, 0x3f803f80")
a(f"v_mov_b32 v{acc}, 0"); a(f"v_mov_b32 v{acc+2}, 0")
vWh = V()
wvoff(vWh, t[0], t[1])
assert V.n <= 128, V.n
a("s_waitcnt lgkmcnt(0)")
if "pwl" in OPT: prewrite()
ts(1)
if EARLY and "e0" in OPT:
    for op in wdma_list(vWh, [0]): op()
a("s_barrier")
for r in range(2):
    for q in range(2):
        a(f"ds_read_b128 {vr(XN+8*r+4*q,4)}, v{vnat} offset:{r*2048+q*1024}")
a(f"ds_read_b128 {vr(GW,4)}, v{vl16} offset:{L_GW}")
a(f"ds_read_b128 {vr(GW+4,4)}, v{vl16} offset:{L_GW+1024}")
for k in range(4):
    a(f"ds_read_u16_d16_hi v{EV+k}, v{veo} offset:{16*k}")
    a(f"ds_read_u16_d16_hi v{EV+4+k}, v{vet2} offset:{16*k}")
a("s_waitcnt lgkmcnt(0)")
a(f"v_add_f32 v{EV+8}, v{EV}, v{EV+1}"); a(f"v_sub_f32 v{EV+9}, v{EV+2}, v{EV+3}")
a(f"v_add_f32 v{EV+4}, v{EV+4}, v{EV+5}"); a(f"v_sub_f32 v{EV+6}, v{EV+6}, v{EV+7}")
a(f"v_fma_f32 v{EV+8}, -v{vsig}, v{EV+6}, v{EV+8}"); a(f"v_fmac_f32 v{EV+9}, v{vsig}, v{EV+4}")
a(f"s_waitcnt vmcnt({NPW})")
tags()
a("s_cmp_eq_u32 s51, 1"); a("s_cselect_b32 exec_lo, 0xffff, 0"); a("s_mov_b32 exec_hi, 0")
a(f"buffer_store_dwordx2 {vr(EV+8,2)}, v{ves}, s[16:19], s8 offen sc1")
if "nopw" not in OPT:
    a("s_cselect_b32 exec_lo, -1, 0"); a("s_cselect_b32 exec_hi, -1, 0")
    for k in range(4): a(f"v_mov_b32 v{EV+k}, s49")
    a(f"buffer_store_dwordx4 {vr(EV,4)}, v{vl16}, s[16:19], s57 offen sc1")
a("s_mov_b64 exec, -1")
ts(2)
if "pt2" in OPT:
    a(f"v_lshlrev_b32 v{t[0]}, 7, v0")
    a("s_lshl_b32 s30, s53, 15"); a("s_lshl_b32 s31, s51, 13"); a("s_add_u32 s30, s30, s31"); a(f"s_add_u32 s30, s30, {hx(S_OFF)}")
    a(f"buffer_load_ubyte v1, v{t[0]}, s[16:19], s30 offen")
eops = wdma_list(vWh, [0]) if (EARLY and "e0" not in OPT) else []
for j in range(8):
    if eops: eops.pop(0)()
    a(f"v_lshlrev_b32 v{t[6]}, 16, v{GW+j}")
    a(f"v_and_b32 v{t[7]}, s11, v{GW+j}")
    for r in range(2):
        a(f"v_lshlrev_b32 v{t[2*r]}, 16, v{XN+8*r+j}")
        a(f"v_and_b32 v{t[2*r+1]}, s11, v{XN+8*r+j}")
    for r in range(2):
        a(f"v_mul_f32 v{t[2*r]}, v{t[2*r]}, v{t[6]}")
        a(f"v_mul_f32 v{t[2*r+1]}, v{t[2*r+1]}, v{t[7]}")
    for r in range(2): a(f"v_cvt_pk_bf16_f32 v{t[4+r]}, v{t[2*r]}, v{t[2*r+1]}")
    for r in range(2): a(f"v_dot2_f32_bf16 v{acc+2*r}, v{t[4+r]}, v{ones}, v{acc+2*r}")
ts(3)
a("s_setprio 2")
a("s_barrier")
ts(4)
o = L_P // 256
a(f"ds_read2st64_b32 {vr(MB4,2)}, v{vmr+4} offset0:{o} offset1:{o+16}")
a(f"ds_read2st64_b32 {vr(MB4+2,2)}, v{vmr+4} offset0:{o+32} offset1:{o+48}")
for q in range(4):
    a(f"ds_read2st64_b32 {vr(MB+4*q,2)}, v{vmr+q} offset0:{o} offset1:{o+16}")
    a(f"ds_read2st64_b32 {vr(MB+4*q+2,2)}, v{vmr+q} offset0:{o+32} offset1:{o+48}")
DN = DMB; DM = [DMB + 8 + 8 * q for q in range(4)]
a("s_waitcnt lgkmcnt(8)")
a(f"{M32} {vr(DN,16)}, {vr(MA,4)}, {vr(MB4,4)}, 0")
for q in range(4):
    a(f"s_waitcnt lgkmcnt({6-2*q})")
    a(f"{M32} {vr(DM[q],16)}, {vr(MA,4)}, {vr(MB+4*q,4)}, 0")
a("s_cmp_eq_u32 s51, 0"); a("s_cselect_b32 exec_lo, 1, 0"); a("s_cselect_b32 exec_hi, 1, 0")
a(f"v_sub_f32 v{DM[0]}, v{DM[0]}, v{DN+1}"); a(f"v_add_f32 v{DM[0]+1}, v{DM[0]+1}, v{DN}")
a("s_mov_b32 exec_lo, 0")
for k in range(2, 8): a(f"v_mov_b32 v{DM[0]+k}, v{DN+k}")
a("s_mov_b64 exec, -1")
OUT = MB
for s_ in range(4):
    for q in range(4):
        a(f"v_cvt_pk_bf16_f32 v{OUT+4*s_+q}, v{DM[q]+2*s_}, v{DM[q]+2*s_+1}")
    a(f"s_add_u32 s10, s9, {4096*s_}")
    a(f"buffer_store_dwordx4 {vr(OUT+4*s_,4)}, v{vts}, s[16:19], s10 offen sc1")
a("s_barrier")
ts(5)
for dpp in ("row_shr:1", "row_shr:2", "row_shr:4", "row_shr:8"):
    for r in range(2):
        a(f"v_add_f32_dpp v{acc+2*r}, v{acc+2*r}, v{acc+2*r} {dpp} row_mask:0xf bank_mask:0xf bound_ctrl:0")
for dpp, rm in (("row_bcast:15", "0xa"), ("row_bcast:31", "0xc")):
    for r in range(2):
        a(f"v_add_f32_dpp v{acc+2*r}, v{acc+2*r}, v{acc+2*r} {dpp} row_mask:{rm} bank_mask:0xf")
a(f"v_cvt_pk_bf16_f32 v{t[0]}, v{acc}, v{acc+2}")
a(f"v_lshlrev_b32 v{t[1]}, 16, v{t[0]}")
a(f"v_and_b32 v{t[2]}, s11, v{t[0]}")
for r in range(2): a(f"v_mul_f32 v{t[1+r]}, {hx(f2u(-1.4426950408889634))}, v{t[1+r]}")
for r in range(2): a(f"v_exp_f32 v{t[1+r]}, v{t[1+r]}")
for r in range(2): a(f"v_add_f32 v{t[1+r]}, 1.0, v{t[1+r]}")
for r in range(2): a(f"v_rcp_f32 v{t[1+r]}, v{t[1+r]}")
a(f"v_cvt_pk_bf16_f32 v{t[0]}, v{t[1]}, v{t[2]}")
a(f"v_lshlrev_b32 v{acc}, 16, v{t[0]}")
a(f"v_and_b32 v{acc+2}, s11, v{t[0]}")
a(f"v_sub_f32 v{t[1]}, 1.0, v{acc}")
a(f"v_sub_f32 v{t[2]}, 1.0, v{acc+2}")
a(f"v_cvt_pk_bf16_f32 v{t[0]}, v{t[1]}, v{t[2]}")
a(f"v_lshlrev_b32 v{acc+1}, 16, v{t[0]}")
a(f"v_and_b32 v{acc+3}, s11, v{t[0]}")
for r in range(4): a(f"v_mul_f32 v{acc+r}, {hx(f2u(2.0**-22))}, v{acc+r}")
a("s_lshl_b32 s30, s51, 4"); a(f"s_add_u32 s30, s30, {L_G}")
a(f"v_mov_b32 v{t[3]}, s30")
a("s_mov_b32 exec_lo, 0"); a("s_mov_b32 exec_hi, 0x80000000")
a(f"ds_write_b128 v{t[3]}, {vr(acc,4)}")
a("s_mov_b64 exec, -1")
a(f"v_mov_b32 v{t[3]}, {L_C}"); a(f"v_mov_b32 v{t[4]}, 1")
for k in range(4): a(f"v_mov_b32 v{DMB+k}, s48")
a("s_mov_b64 exec, 1")
a("s_waitcnt vmcnt(0)")
a(f"ds_add_rtn_u32 v{t[5]}, v{t[3]}, v{t[4]}")
a("s_waitcnt lgkmcnt(0)")
a(f"v_readfirstlane_b32 s30, v{t[5]}")
a("s_cmp_eq_u32 s30, 3"); a("s_cselect_b32 exec_lo, -1, 0"); a("s_cselect_b32 exec_hi, -1, 0")
a(f"buffer_store_dwordx4 {vr(DMB,4)}, v{vl16}, s[16:19], s57 offen {FSF}")
a("s_mov_b64 exec, -1")
def stouch(vt):
    a(f"v_lshlrev_b32 v{vt}, 7, v0")
    a("s_lshl_b32 s30, s53, 15"); a("s_lshl_b32 s31, s51, 13"); a("s_add_u32 s30, s30, s31"); a(f"s_add_u32 s30, s30, {hx(S_OFF)}")
    a(f"buffer_load_ubyte v1, v{vt}, s[16:19], s30 offen{' sc1' if 'ptsc' in OPT else ''}")
if "pt1" in OPT: stouch(t[0])
a("s_setprio 0")
ts(6)
p2_addr(); p2_item(); wvoff(vW, SC, SC + 1); p2_const()
if optint("pa", 0): a(f"s_sleep {optint('pa', 0)}")
a.label("L_p2")
a.hist = []
t = [SC + k for k in range(6)]
ts(7)
if "pw3" in OPT:
    a(f"v_lshrrev_b32 v{TB}, 2, v0"); a(f"v_and_b32 v{TB+1}, 3, v0"); a(f"v_lshlrev_b32 v{TB+1}, 6, v{TB+1}"); a(f"v_lshl_or_b32 v{TB+2}, v{TB}, 11, v{TB+1}")
    a(f"buffer_store_dword v{TB+2}, v{TB+2}, s[16:19], s30 offen sc1")
poll("L_poll1", vF, TB, "s8", "s48")
def f2pre():
    if "nopw" in OPT: return
    a(f"v_mov_b32 v{TB}, s48"); a(f"v_lshlrev_b32 v{TB+1}, 2, v0")
    a("s_mov_b32 exec_hi, 0")
    a(f"buffer_store_dword v{TB}, v{TB+1}, s[16:19], s9 offen sc1")
    a("s_mov_b32 exec_hi, -1")
ts(8)
if "st2" in OPT: a("s_add_u32 s70, s60, s58")
a.label("L_p2c")
a("s_setprio 1")
a("s_mov_b32 m0, s27")
a(f"buffer_load_dwordx4 v{vT}, s[16:19], s24 offen {TLF} lds")
a("s_add_u32 m0, s27, 1024")
a(f"buffer_load_dwordx4 v{vT}, s[16:19], s26 offen {TLF} lds")
a("s_lshl_b32 s29, s3, 9"); a(f"s_add_u32 s29, s29, {L_E}"); a("s_mov_b32 m0, s29")
a("s_mov_b32 exec_lo, s59"); a("s_mov_b32 exec_hi, 0")
a(f"buffer_load_dwordx4 v{vEa}, s[16:19], s50 offen sc1 lds")
a("s_mov_b64 exec, -1")
PW2 = "pw2" in OPT or "pw3" in OPT
def pw2():
    a(f"v_lshrrev_b32 v{TB}, 2, v0"); a(f"v_and_b32 v{TB+1}, 3, v0"); a(f"v_lshlrev_b32 v{TB+1}, 6, v{TB+1}"); a(f"v_lshl_or_b32 v{TB}, v{TB}, 11, v{TB+1}")
    if "pwh" in OPT: a("s_mov_b32 exec_lo, 0x55555555"); a("s_mov_b32 exec_hi, 0x55555555")
    a(f"buffer_store_dword v{TB}, v{TB}, s[16:19], s30 offen sc1")
    if "pwh" in OPT: a("s_mov_b64 exec, -1")
if "pw2" in OPT: pw2()
if SPLIT:
    for op in wdma_list(vW, [0], (1,)): op()
def wread(cc):
    a("s_not_b32 exec_lo, s52"); a("s_not_b32 exec_hi, s52")
    for arr in range(4):
        for i in range(4):
            a(f"ds_read_u16_d16_hi v{Wi(arr,cc,i)}, v{vWr} offset:{1536*arr+768*cc+48*i}")
    a("s_mov_b64 exec, -1")
a("s_barrier")
wread(0)
if not SPLIT: wread(1)
PKD = SC + 8
a(f"s_waitcnt vmcnt({4 if SPLIT else (1 if 'pw2' in OPT else 0)})")
if ST: a("s_waitcnt lgkmcnt(0)")
ts(9)
a(f"ds_read2_b32 {vr(TB,2)}, v{vTr} offset0:0 offset1:16")
a(f"ds_read2_b32 {vr(TB+2,2)}, v{vTr} offset0:32 offset1:48")
a(f"v_add_u32 v{vTr}, 1024, v{vTr}")
a(f"ds_read2_b32 {vr(TB+4,2)}, v{vTr} offset0:0 offset1:16")
a(f"ds_read2_b32 {vr(TB+6,2)}, v{vTr} offset0:32 offset1:48")
a.label("L_p2e")
for bb in range(2):
    a(f"s_waitcnt lgkmcnt({2-2*bb})")
    a(f"{M16} {vr(D+8*bb,4)}, {vr(Fr,4)}, {vr(TB+4*bb,4)}, 0")
    a(f"{M16} {vr(D+8*bb+4,4)}, {vr(Fm,4)}, {vr(TB+4*bb,4)}, 0")
for ip in range(2):
    for cc in range(2):
        for bb in range(2):
            i = 2 * ip + cc
            a(f"v_cvt_pk_bf16_f32 v{PKD+4*ip+2*cc+bb}, v{D+8*bb+i}, v{D+8*bb+4+i}")
    a(f"ds_write_b128 v{vw1}, {vr(PKD+4*ip,4)} offset:{ip*256}")
a("s_cmp_lg_u32 s54, 0")
a("s_cbranch_scc0 L_el")
a.label("L_elb")
a("s_waitcnt lgkmcnt(0)")
f2pre()
a("s_barrier")
OB = TB
for cc in range(2):
    for h in range(2):
        a(f"ds_read_b64 {vr(OB+4*cc+2*h,2)}, v{vr1} offset:{h*2048+cc*8}")
X = D
for cc in range(2):
    a(f"s_waitcnt lgkmcnt({2-2*cc})")
    a(f"{M16} {vr(X+8*cc,4)}, {vr(M2+8*cc,4)}, {vr(OB+4*cc,4)}, 0")
    a(f"{M16} {vr(X+8*cc+4,4)}, {vr(M2+8*cc+4,4)}, {vr(OB+4*cc,4)}, 0")
YO = [PKD, PKD + 4, PKD, PKD + 4]
tpr = [(vT, vTr), (vr1, vw1)]
if SPLIT:
    a(f"s_waitcnt vmcnt({0 if 'nopw' in OPT else 1})")
    wread(1)
def dpt(cc, ab, ri): return WW + 16 * cc + 8 * ab + 4 * ri
def wmul(cc, ab):
    n = 2 * cc + ab
    xr = X + 8 * cc; xi = X + 8 * cc + 4
    for i in range(4):
        wr = Wi(2 * ab, cc, i); wi = Wi(2 * ab + 1, cc, i)
        y0, y1 = tpr[i & 1]
        a(f"v_mul_f32 v{y0}, v{xr+i}, v{wr}")
        a(f"v_mul_f32 v{y1}, v{xi+i}, v{wr}")
        a(f"v_fma_f32 v{y0}, -v{xi+i}, v{wi}, v{y0}")
        a(f"v_fmac_f32 v{y1}, v{xr+i}, v{wi}")
        a(f"v_cvt_pk_bf16_f32 v{YO[n]+i}, v{y1}, v{y0}")
    a(f"{M16} {vr(dpt(cc,ab,0),4)}, {vr(MT+8*cc,4)}, {vr(YO[n],4)}, 0")
    a(f"{M16} {vr(dpt(cc,ab,1),4)}, {vr(MT+8*cc+4,4)}, {vr(YO[n],4)}, 0")
a("s_and_b32 s29, s2, 0xfb")
a("s_cmp_eq_u32 s29, 0")
a("s_cbranch_scc1 L_sp")
for cc in range(2):
    if cc == 1: a("s_waitcnt lgkmcnt(0)")
    for ab in range(2): wmul(cc, ab)
a.label("L_spb")
XP2 = X
P2 = D
for ab in range(2):
    for ip in range(2):
        for cc in range(2):
            for bb in range(2):
                i = 2 * ip + bb
                a(f"v_cvt_pk_bf16_f32 v{P2+8*ab+4*ip+2*bb+cc}, v{dpt(cc,ab,0)+i}, v{dpt(cc,ab,1)+i}")
        a(f"ds_write_b128 v{vw2}, {vr(P2+8*ab+4*ip,4)} offset:{2048*ab+ip*256}")
a("s_waitcnt lgkmcnt(0)")
a("s_barrier")
O2 = WW + 16
for bb in range(2):
    for ab in range(2):
        for h in range(2):
            a(f"ds_read_b64 {vr(O2+8*bb+4*ab+2*h,2)}, v{vr2} offset:{WR*h+2048*ab+bb*8}")
E = [M2, M2 + 8, MT, MT + 8]
X4 = "x4" in OPT
for bb in range(2):
    for ab in range(2):
        n = 2 * bb + ab
        a(f"s_waitcnt lgkmcnt({6-2*n})")
        if X4:
            a(f"{M16} {vr(E[n],4)}, {vr(O2+4*n,4)}, {vr(Fr,4)}, 0")
            a(f"{M16} {vr(E[n]+4,4)}, {vr(O2+4*n,4)}, {vr(Fm,4)}, 0")
        else:
            a(f"{M16} {vr(E[n],4)}, {vr(Fr,4)}, {vr(O2+4*n,4)}, 0")
            a(f"{M16} {vr(E[n]+4,4)}, {vr(Fm,4)}, {vr(O2+4*n,4)}, 0")
SO = WW
for bb in range(2):
    for i in range(4):
        for ab in range(2):
            n = 2 * bb + ab
            a(f"v_cvt_pk_bf16_f32 v{SO+8*bb+2*i+ab}, v{E[n]+4+i}, v{E[n]+i}")
        if X4:
            if i & 1: a(f"buffer_store_dwordx4 {vr(SO+8*bb+2*(i-1),4)}, v{vS}, s[16:19], s30 offen offset:{(i>>1)*64+bb*128} sc1")
        else:
            a(f"s_add_u32 s30, s24, {(16*i+bb)*TSB}")
            a(f"buffer_store_dwordx2 {vr(SO+8*bb+2*i,2)}, v{vS}, s[16:19], s30 offen {SSF}")
ts(10)
if "swb" in OPT:
    a("s_waitcnt vmcnt(0)")
    a("buffer_wbl2 sc1")
amx_post(t[0])
setflag(t[0], "s9", "s49")
if "st2" in OPT: ts(1)
a("s_setprio 0")
V = VAlloc(8)
vg_ = vg; vc_ = vc
t = [V() for _ in range(6)]
vS3 = 1; vN = 2; vF3 = 7; AP8 = V(); AMx = V()
MR = V(16, 4); MI = V(16, 4); X = V(16, 4)
BA = V(24, 4); BB = V(24, 4); TCh = V(8); TSh = V(8)
assert V.n <= 128, V.n
D1r = BA + 8; D1i = BB + 8; D2r = BA; D2i = BB
SBt = [D1r, D1r + 4, D1r + 8, D1r + 12, X]
DDt = [D1i, D1i + 4, D1i + 8, D1i + 12, X + 4]
MA = X + 8; AP = X + 12; AM = [X + 13, X + 14, X + 15, AMx]
CS = D1r; GG = D1i
a(f"v_bfe_u32 v{t[0]}, v0, 2, 2"); a(f"v_lshlrev_b32 v{t[1]}, 4, v{t[0]}")
a(f"v_add_u32 v{t[1]}, {L_G}, v{t[1]}")
a(f"ds_read_b128 {vr(GG,4)}, v{t[1]}")
if X4:
    a(f"v_and_b32 v{t[1]}, 1, v0"); a(f"v_lshlrev_b32 v{t[1]}, 3, v{t[1]}")
    a(f"v_lshl_or_b32 v{t[1]}, v{t[0]}, 4, v{t[1]}")
    a(f"v_bfe_u32 v{t[2]}, v0, 1, 1"); a(f"v_lshl_or_b32 v{t[1]}, v{t[2]}, 6, v{t[1]}")
else:
    a(f"v_lshlrev_b32 v{t[1]}, 3, v{vc_}")
a(f"v_lshl_or_b32 v{vS3}, v{vg_}, 13, v{t[1]}")
a("s_xor_b32 s50, s3, 4")
a(f"s_mul_i32 s8, s2, {TSB}")
a("s_lshl_b32 s11, s50, 7"); a("s_add_u32 s8, s8, s11"); a("s_add_u32 s10, s8, 4096")
a(f"v_bfe_u32 v{t[1]}, v0, 2, 3"); a(f"v_and_b32 v{t[2]}, 3, v0"); a(f"v_lshlrev_b32 v{t[2]}, 3, v{t[2]}")
a(f"v_lshl_add_u32 v{t[1]}, v{t[1]}, 5, v{t[2]}"); a(f"v_add_u32 v{t[1]}, s50, v{t[1]}")
a("s_cmp_eq_u32 s50, 0"); a("s_cselect_b32 s24, 0x00010001, 0")
a(f"v_lshlrev_b32 v{vF3}, 10, v{t[1]}")
a("s_bfe_u32 s11, s2, 0x30001"); a("s_lshl_b32 s11, s11, 7"); a(f"s_add_u32 s11, s11, {hx(F2_OFF)}")
vsg = X; ve = X + 1; vstep = X + 2; vpe = X + 3; vpo = X + 4; vk = X + 5; vpl = X + 6
a(f"v_bfe_u32 v{t[1]}, v0, 1, 1"); a(f"v_cvt_f32_u32 v{vsg}, v{t[1]}")
a(f"v_mul_f32 v{vsg}, -0.5, v{vsg}"); a(f"v_add_f32 v{vsg}, {fl(0.25)}, v{vsg}")
a(f"v_and_b32 v{t[1]}, 1, v0"); a(f"v_cvt_f32_u32 v{t[1]}, v{t[1]}")
a(f"v_mul_f32 v{ve}, v{t[1]}, v{vsg}")
a(f"v_lshlrev_b32 v{t[0]}, 9, v{t[0]}"); a(f"v_add_u32 v{t[0]}, s2, v{t[0]}")
a(f"v_cvt_f32_u32 v{vstep}, v{t[0]}"); a(f"v_mul_f32 v{vstep}, {hx(f2u(-1/2048))}, v{vstep}")
a(f"v_cvt_f32_u32 v{t[2]}, v{vg_}"); a(f"v_add_f32 v{t[2]}, v{t[2]}, v{t[2]}")
a(f"v_fma_f32 v{vpe}, v{t[2]}, v{vstep}, v{ve}")
a(f"v_sub_f32 v{vpo}, v{vpe}, v{vsg}")
a(f"v_fmamk_f32 v{vpo}, v{t[2]}, {hx(f2u(-0.125))}, v{vpo}")
for lo in range(2):
    if lo:
        a(f"v_add_f32 v{vpe}, v{vpe}, v{vstep}")
        a(f"v_add_f32 v{vpo}, v{vpo}, v{vstep}"); a(f"v_add_f32 v{vpo}, {hx(f2u(-0.125))}, v{vpo}")
    a(f"v_cos_f32 v{CS+4*lo}, v{vpe}"); a(f"v_sin_f32 v{CS+4*lo+1}, v{vpe}")
    a(f"v_cos_f32 v{CS+4*lo+2}, v{vpo}"); a(f"v_sin_f32 v{CS+4*lo+3}, v{vpo}")
a("s_lshl_b32 s25, s50, 4")
a(f"v_lshlrev_b32 v{vpl}, 12, v{vg_}")
a(f"v_add_u32 v{vk}, s25, v{vc_}")
a(f"v_and_b32 v{t[3]}, 14, v{vk}"); a(f"v_lshl_or_b32 v{t[3]}, v{t[3]}, 3, v{vpl}")
a(f"v_and_b32 v{t[4]}, 31, v{vk}"); a(f"v_lshl_or_b32 v{t[3]}, v{t[4]}, 7, v{t[3]}")
a(f"v_bfe_u32 v{t[4]}, v{vk}, 5, 2"); a(f"v_lshl_or_b32 v{AP}, v{t[4]}, 2, v{t[3]}")
a(f"v_sub_u32 v{t[5]}, 0, v{vk}")
a(f"v_and_b32 v{t[4]}, 31, v{t[5]}"); a(f"v_lshl_or_b32 v{t[3]}, v{t[4]}, 7, v{vpl}")
a(f"v_and_b32 v{t[4]}, 14, v{t[5]}"); a(f"v_lshl_or_b32 v{t[3]}, v{t[4]}, 3, v{t[3]}")
a(f"v_lshrrev_b32 v{t[5]}, 3, v{t[5]}")
for tt in range(4):
    if tt: a(f"v_subrev_u32 v{t[5]}, 16, v{t[5]}")
    a(f"v_and_b32 v{t[4]}, 0x7c, v{t[5]}")
    a(f"v_xor_b32 v{AM[tt]}, v{t[4]}, v{t[3]}")
a("s_mov_b32 exec_lo, s24"); a("s_mov_b32 exec_hi, s24")
a(f"v_or_b32 v{AM[0]}, 64, v{vpl}")
a("s_mov_b64 exec, -1")
a("s_waitcnt lgkmcnt(0)")
for lo in range(2):
    for ab in range(2):
        a(f"v_mul_f32 v{t[0]}, v{GG+ab}, v{CS+4*lo}"); a(f"v_mul_f32 v{t[1]}, v{GG+ab}, v{CS+4*lo+1}")
        a(f"v_fmac_f32 v{t[0]}, v{GG+2+ab}, v{CS+4*lo+2}"); a(f"v_fmac_f32 v{t[1]}, v{GG+2+ab}, v{CS+4*lo+3}")
        a(f"v_cvt_pk_bf16_f32 v{MA+2*lo+ab}, v{t[0]}, v{t[1]}")
a("s_cmp_eq_u32 s3, 4")
a("s_cbranch_scc1 L_m0")
a("s_cmp_ge_u32 s3, 4")
a("s_cbranch_scc1 L_p3b")
TC = lambda k: BA + k if k < 8 else TCh + k - 8
TS_ = lambda k: BB + k if k < 8 else TSh + k - 8
vb = X; vo = X + 1
a(f"v_cvt_f32_u32 v{vb}, v{vn}"); a(f"v_cvt_f32_u32 v{vo}, v{vL5}")
a(f"v_mul_f32 v{vb}, {fl(1/32)}, v{vb}"); a(f"v_mul_f32 v{vo}, 4.0, v{vo}"); a(f"v_mul_f32 v{vo}, v{vb}, v{vo}")
for i in range(16):
    kc = 8 * (i // 4) + i % 4
    if kc == 0: a(f"v_mov_b32 v{t[0]}, v{vo}")
    else: a(f"v_fmamk_f32 v{t[0]}, v{vb}, {hx(f2u(float(kc)))}, v{vo}")
    a(f"v_cos_f32 v{t[1]}, v{t[0]}"); a(f"v_sin_f32 v{t[2]}, v{t[0]}")
    a(f"v_mul_f32 v{t[0]}, {fl(1/32)}, v{t[0]}")
    a(f"v_cvt_pk_bf16_f32 v{MR+i}, v{t[1]}, -v{t[2]}")
    a(f"v_cvt_pk_bf16_f32 v{MI+i}, v{t[2]}, v{t[1]}")
    a(f"v_cos_f32 v{TC(i)}, v{t[0]}"); a(f"v_sin_f32 v{TS_(i)}, v{t[0]}")
a.label("L_p3b")
if optint("pb", 0): a(f"s_sleep {optint('pb', 0)}")
ts(11)
poll("L_poll2", vF3, t[0], "s11", "s49")
ts(12)
if "st2" in OPT: a("s_add_u32 s64, s60, s58")
for tt in range(4):
    for lo in range(2):
        a(f"buffer_load_dwordx2 {vr(SBt[tt]+2*lo,2)}, v{vS3}, s[16:19], {'s10' if lo else 's8'} offen offset:{tt*1024} {SLF}")
MA0 = MR
def fin(tt):
    d = DDt[tt]
    if tt == 0:
        a("s_mov_b32 exec_lo, s24"); a("s_mov_b32 exec_hi, s24")
        for k in range(4): a(f"v_mov_b32 v{d+k}, v{DDt[4]+k}")
        a("s_mov_b64 exec, -1")
    a(f"v_cvt_pk_bf16_f32 v{d}, v{d}, v{d+1}")
    a(f"v_cvt_pk_bf16_f32 v{d+1}, v{d+2}, v{d+3}")
    if tt: a(f"v_xor_b32 v{t[tt]}, {tt<<4}, v{AP}")
    a(f"ds_write_b32 v{t[tt] if tt else AP}, v{d}")
    a(f"ds_write_b32 v{AM[tt]}, v{d+1}")
for tt in range(4):
    a(f"s_waitcnt vmcnt({max(0, 6-2*tt)})")
    a(f"{M16} {vr(DDt[tt],4)}, {vr(MA,4)}, {vr(SBt[tt],4)}, 0")
    if tt == 0: a(f"{M16} {vr(DDt[4],4)}, {vr(MA0,4)}, {vr(SBt[0],4)}, 0")
    if tt >= 1: fin(tt - 1)
fin(3)
vst = vS3
a(f"v_bfe_u32 v{t[4]}, v{vn}, 1, 3"); a(f"v_xor_b32 v{t[4]}, v{t[4]}, v{vL5}"); a(f"v_lshlrev_b32 v{t[4]}, 4, v{t[4]}")
a(f"v_lshl_or_b32 v{t[4]}, v{vn}, 7, v{t[4]}"); a("s_lshl_b32 s26, s51, 12")
a("s_waitcnt lgkmcnt(0)")
a(f"v_add_u32 v{t[0]}, s26, v{t[4]}")
for q in range(1, 4): a(f"v_xor_b32 v{t[q]}, {32*q}, v{t[0]}")
a(f"v_lshlrev_b32 v{t[4]}, 4, v{vL5}"); a(f"v_lshl_or_b32 v{vst}, v{vn}, 6, v{t[4]}")
srd(12, 94, 2048 * 2048)
a("s_add_u32 s30, s22, 0x80000")
if "st2" in OPT: ts(3)
a("s_barrier")
if "st2" in OPT: ts(4)
a("s_cmp_ge_u32 s3, 4")
a("s_cbranch_scc1 L_hx")
for q in range(4): a(f"ds_read_b128 {vr(X+4*q,4)}, v{t[q]}")
for q in range(4):
    a(f"s_waitcnt lgkmcnt({3-q})")
    a(f"{M32} {vr(D1r,16)}, {vr(X+4*q,4)}, {vr(MR+4*q,4)}, {'0' if q == 0 else vr(D1r,16)}")
    a(f"{M32} {vr(D1i,16)}, {vr(X+4*q,4)}, {vr(MI+4*q,4)}, {'0' if q == 0 else vr(D1i,16)}")
def p2m(q):
    a(f"{M32} {vr(D2r,16)}, {vr(X+4*q,4)}, {vr(MR+4*q,4)}, {'0' if q == 0 else vr(D2r,16)}")
    a(f"{M32} {vr(D2i,16)}, {vr(X+4*q,4)}, {vr(MI+4*q,4)}, {'0' if q == 0 else vr(D2i,16)}")
for q in range(4):
    for e in range(4):
        k = 4 * q + e
        a(f"v_mul_f32 v{t[0]}, v{D1r+k}, v{TC(k)}")
        a(f"v_mul_f32 v{t[1]}, v{D1i+k}, v{TC(k)}")
        a(f"v_fma_f32 v{t[0]}, -v{D1i+k}, v{TS_(k)}, v{t[0]}")
        a(f"v_fmac_f32 v{t[1]}, v{D1r+k}, v{TS_(k)}")
        a(f"v_cvt_pk_bf16_f32 v{X+k}, v{t[0]}, v{t[1]}")
        if q == 2 and e == 1: p2m(1)
    if q == 1: p2m(0)
    if q >= 2: p2m(q)
O = MR
for r, (Dx, so) in enumerate(((D2r, "s22"), (D2i, "s30"))):
    for c2 in range(2):
        o = O + 8 * r + 4 * c2
        for e in range(4):
            a(f"v_cvt_pk_bf16_f32 v{o+e}, v{Dx+8*c2+2*e}, v{Dx+8*c2+2*e+1}")
        a(f"v_permlane32_swap_b32 v{o}, v{o+2}")
        a(f"v_permlane32_swap_b32 v{o+1}, v{o+3}")
        a(f"buffer_store_dwordx4 {vr(o,4)}, v{vst}, s[12:15], {so} offen offset:{32*c2}{OSF}")
a.label("L_fin")
stamp_end(32)
a.label("L_end")
a("s_endpgm")
a.label("L_hx")
a("s_lshl_b32 s26, s2, 3"); a("s_add_u32 s26, s26, s3")
a("s_cmp_lg_u32 s26, 4")
a("s_cbranch_scc1 L_fin")
a(f"s_mov_b32 s26, {hx(EP_OFF)}")
setflag(8, "s26", "s49")
a("s_branch L_fin")
a.label("L_m0")
a.hist = []
q_ = [MI + k for k in range(16)]
gaa = q_[0]; gbb = q_[1]; ph = q_[2]; st_ = q_[3]; c_ = q_[4]; s__ = q_[5]; al = q_[6]; be = q_[7]
a(f"v_and_b32 v{t[0]}, 1, v0"); a(f"v_cmp_eq_u32 vcc, 1, v{t[0]}")
a(f"v_bfe_u32 v{t[1]}, v0, 2, 2"); a(f"v_lshl_or_b32 v{t[1]}, v{t[1]}, 1, v{t[0]}")
a(f"v_cndmask_b32 v{gaa}, v{GG}, v{GG+2}, vcc"); a(f"v_cndmask_b32 v{gbb}, v{GG+1}, v{GG+3}, vcc")
a(f"v_lshlrev_b32 v{t[1]}, 8, v{t[1]}"); a(f"v_add_u32 v{t[1]}, s2, v{t[1]}")
a(f"v_cvt_f32_u32 v{st_}, v{t[1]}"); a(f"v_mul_f32 v{st_}, {hx(f2u(1/2048))}, v{st_}")
a(f"v_cvt_f32_u32 v{ph}, v{vg_}"); a(f"v_add_f32 v{ph}, v{ph}, v{ph}"); a(f"v_mul_f32 v{ph}, v{ph}, v{st_}")
a(f"v_bfe_u32 v{t[2]}, v0, 1, 1")
a(f"v_lshrrev_b32 v{t[3]}, 1, v{vg_}"); a(f"v_cmp_eq_u32 s[4:5], v{t[2]}, v{t[3]}")
a(f"v_and_b32 v{t[3]}, 1, v{vg_}"); a(f"v_cmp_eq_u32 s[6:7], 0, v{t[3]}")
a(f"v_cmp_eq_u32 s[14:15], 0, v{t[2]}")
a(f"v_cndmask_b32 v{q_[8]}, 0, v{gaa}, s[4:5]"); a(f"v_cndmask_b32 v{q_[9]}, 0, v{gbb}, s[4:5]")
a(f"v_mul_f32 v{q_[10]}, {fl(0.25)}, v{gaa}"); a(f"v_mul_f32 v{q_[11]}, {fl(0.25)}, v{gbb}")
for lo in range(2):
    if lo: a(f"v_add_f32 v{ph}, v{ph}, v{st_}")
    a(f"v_cos_f32 v{c_}, v{ph}"); a(f"v_sin_f32 v{s__}, v{ph}")
    for ab in range(2):
        if lo == 0:
            if ab == 0:
                a(f"v_cndmask_b32 v{al}, 0, v{q_[10]}, s[14:15]"); a(f"v_cndmask_b32 v{be}, 0, v{q_[11]}, s[14:15]")
            else:
                a(f"v_cndmask_b32 v{al}, v{q_[10]}, 0, s[14:15]"); a(f"v_cndmask_b32 v{be}, v{q_[11]}, 0, s[14:15]")
            a(f"v_cndmask_b32 v{al}, v{q_[8+ab]}, v{al}, s[6:7]"); a(f"v_cndmask_b32 v{be}, 0, v{be}, s[6:7]")
            a(f"v_mul_f32 v{t[0]}, v{al}, v{c_}"); a(f"v_fmac_f32 v{t[0]}, v{be}, v{s__}")
            a(f"v_mul_f32 v{t[1]}, v{be}, v{c_}"); a(f"v_fma_f32 v{t[1]}, -v{al}, v{s__}, v{t[1]}")
            a(f"v_cvt_pk_bf16_f32 v{MA0+2*lo+ab}, v{t[0]}, v{t[1]}")
        else:
            a(f"v_mul_f32 v{t[0]}, v{q_[8+ab]}, v{c_}"); a(f"v_mul_f32 v{t[1]}, v{q_[8+ab]}, v{s__}")
            a(f"v_cvt_pk_bf16_f32 v{MA0+2*lo+ab}, v{t[0]}, -v{t[1]}")
a("s_branch L_p3b")
a.label("L_el")
a.hist = []
a(f"v_lshlrev_b32 v{vEa}, 6, v{vg}"); a(f"v_add_u32 v{vEa}, s29, v{vEa}")
a("s_mov_b32 exec_lo, s52"); a("s_mov_b32 exec_hi, s52")
for cc in range(2):
    for i in range(4):
        for ab in range(2):
            a(f"ds_read_b64 {vr(Wi(2*ab,cc,i),2)}, v{vEa} offset:{256*cc+16*i+8*ab}")
a("s_mov_b64 exec, -1")
a("s_branch L_elb")
a.label("L_sp")
a.hist = []
X = XP2
ts(3)
a("s_lshr_b32 s29, s2, 2"); a("s_lshl_b32 s10, s3, 1"); a("s_add_u32 s29, s29, s10"); a("s_sub_u32 s29, 16, s29")
for cc in range(2):
    a(f"s_sub_u32 s10, s29, {cc}"); a("s_and_b32 s10, s10, 15")
    a("s_lshr_b32 s11, s10, 1"); a("s_lshl_b32 s11, s11, 8"); a("s_and_b32 s10, s10, 1"); a("s_lshl_b32 s10, s10, 3"); a("s_add_u32 s10, s10, s11")
    a(f"v_lshlrev_b32 v{tpr[0][cc]}, 12, v{vg}"); a(f"v_add_u32 v{tpr[0][cc]}, s10, v{tpr[0][cc]}")
for k in range(8): a(f"v_mov_b32 v{TB+k}, 0")
a("s_mov_b32 exec_lo, 0x00010001"); a("s_mov_b32 exec_hi, 0x00010001")
for cc in range(2):
    for h in range(2):
        a(f"ds_read_b64 {vr(TB+4*cc+2*h,2)}, v{tpr[0][cc]} offset:{h*2048}")
a("s_mov_b32 s10, 0x80000000"); a("s_mov_b32 s11, 0x80008000")
a("s_waitcnt lgkmcnt(0)")
for k in range(8): a(f"v_xor_b32 v{TB+k}, s10, v{TB+k}")
a("s_mov_b64 exec, -1")
ts(4)
a("s_cmp_lg_u32 s2, 0")
a("s_cbranch_scc1 L_sp4")
def sp_body(mats):
    def acc(cc):
        a(f"{M16} {vr(X+8*cc,4)}, {vr(mats[cc],4)}, {vr(TB+4*cc,4)}, {vr(X+8*cc,4)}")
        a(f"{M16} {vr(X+8*cc+4,4)}, {vr(mats[cc]+4,4)}, {vr(TB+4*cc,4)}, {vr(X+8*cc+4,4)}")
    acc(0); acc(1)
    a("s_mov_b32 exec_lo, 0x00010001"); a("s_mov_b32 exec_hi, 0x00010001")
    for k in range(8): a(f"v_xor_b32 v{TB+k}, s11, v{TB+k}")
    a("s_mov_b64 exec, -1")
    wmul(0, 0); acc(0); acc(0)
    wmul(1, 0); acc(1); acc(1)
    wmul(0, 1)
    wmul(1, 1)
    ts(6)
    a("s_nop 7")
    a("s_branch L_spb")
YO = [PKD, PKD, PKD + 4, PKD + 4]
sp_body([M2, M2 + 8])
a.label("L_sp4")
a.hist = []
a("s_nop 1")
sp_body([M2 + 8, MX])

nv = (a.maxv + 1 + 7) // 8 * 8
out = "; gated_mix spectral gfnet: persistent MFMA FFT pipeline (generated by gen6.py)\n"
out += f"; @launch grid=(256,1,1) block=(512,1,1) lds={LDS_BYTES}\n"
out += '.amdgcn_target "amdgcn-amd-amdhsa--gfx950"\n.text\n'
out += f".globl {NAME}\n.p2align 8\n.type {NAME},@function\n" + a.text() + ".rept 96\n    s_endpgm\n.endr\nL_code_end:\n"
out += f""".section .rodata,"a"
.p2align 6
.amdhsa_kernel {NAME}
  .amdhsa_next_free_vgpr {nv}
  .amdhsa_next_free_sgpr {min(102, a.maxs + 1)}
  .amdhsa_accum_offset {nv}
  .amdhsa_group_segment_fixed_size 0
  .amdhsa_kernarg_size 80
  .amdhsa_user_sgpr_count 2
  .amdhsa_user_sgpr_kernarg_segment_ptr 1
  .amdhsa_system_sgpr_workgroup_id_x 1
  .amdhsa_float_denorm_mode_32 3
.end_amdhsa_kernel
"""
sys.stderr.write(f"vgpr {a.maxv+1} sgpr {a.maxs+1} lines {len(a.lines)} nops {a.nops}\n")
print(out)
```

```python
import sys
from asmlib import *
NAME = "gated_mix__spectral_gfnet__spectral_gfnet__prompt_kernel"
TSB = 32896
ELO = 32768
S_OFF = 0x500000
import sys as _s
for _o in _s.argv:
    if _o.startswith('soff'): S_OFF = int(_o[4:]) << 20
F1_OFF = 0xE20000
F2_OFF = 0xE80000
EP_OFF = 0xEF0000
WS_SIZE = 0xF00000
WBYTES = 2048 * 1026
M32 = "v_mfma_f32_32x32x16_bf16"
M16 = "v_mfma_f32_16x16x32_bf16"
OPT = set(sys.argv[1:])
ST = "stamps" in OPT
WSZ = 0x10000000 if ST else WS_SIZE
L_A = 0; L_W = 16384; L_P = L_W; WR = 6144; L_G = 65536; L_N = 65664; L_C = 65920; L_E = 65936; LDS_BYTES = 65936 + 4096
def optint(pfx, d):
    for o in OPT:
        if o.startswith(pfx) and o[len(pfx):].isdigit(): return int(o[len(pfx):])
    return d
SLEEP = optint("sl", 1); PFAT = optint("pf", 8); NWG = optint("nwg", 0)
SPIN_MAX = 400000
NTX = " nt" if "ntx" in OPT else ""
NTW = " nt" if "ntw" in OPT else ""
PLF = "sc0 sc1" if "psys" in OPT else ("sc1 nt" if "pnt" in OPT else ("sc0 sc1 nt" if "psysnt" in OPT else "sc1"))
FSF = "sc0 sc1" if "fsys" in OPT else "sc1"
SSF = "sc0 sc1" if "ssys" in OPT else ("sc1 nt" if "snt" in OPT else ("" if "swb" in OPT else "sc1"))
def lf(k):
    return "sc0 sc1" if k+"sys" in OPT else ("sc1 nt" if k+"nt" in OPT else ("sc0 sc1 nt" if k+"sn" in OPT else "sc1"))
SLF = lf("ls"); TLF = lf("lt")
OSF = " sc1" if "osc1" in OPT else (" nt" if "ont" in OPT else (" sc0 sc1" if "osys" in OPT else ""))
a = Asm()
def srd(d, base, size):
    a(f"s_mov_b32 s{d}, s{base}"); a(f"s_mov_b32 s{d+1}, s{base+1}")
    a(f"s_mov_b32 s{d+2}, {hx(size)}"); a(f"s_mov_b32 s{d+3}, 0x00020000")
NST = 14
AMX = optint("amx", -1)
def ts(k):
    if ST:
        a(f"s_memrealtime s[{60+2*k}:{61+2*k}]")
        a("s_waitcnt lgkmcnt(0)")
def amx_post(vt):
    if AMX < 0: return
    a("s_load_dwordx2 s[4:5], s[0:1], 64")
    a("s_waitcnt lgkmcnt(0)")
    a("s_mov_b32 s6, 256"); a("s_mov_b32 s7, 0x00020000")
    a(f"v_mov_b32 v{vt}, s{60+2*AMX}"); a("s_and_b32 s96, s2, 7"); a("s_lshl_b32 s96, s96, 2"); a(f"v_mov_b32 v{vt+1}, s96")
    a("s_cmp_eq_u32 s3, %d" % optint("aw", 0)); a("s_cselect_b32 exec_lo, 1, 0"); a("s_mov_b32 exec_hi, 0")
    a(f"buffer_atomic_umax v{vt}, v{vt+1}, s[4:7], 0 offen")
    a("s_mov_b64 exec, -1")
def stamp_end(vt):
    if not ST: return
    a("s_waitcnt vmcnt(0)")
    ts(NST - 1)
    for k in range(16): a(f"v_mov_b32 v{vt+k}, {'s%d' % (60+2*k) if k < NST else '0'}")
    a("s_lshl_b32 s96, s3, 6"); a("s_lshl_b32 s97, s2, 9"); a("s_add_u32 s96, s96, s97")
    a(f"s_add_u32 s96, s96, 0x3000000")
    a(f"v_mov_b32 v{vt+16}, 0")
    a("s_mov_b64 exec, 1")
    if AMX >= 0:
        a("s_lshl_b32 s96, s2, 3"); a("s_add_u32 s96, s96, s3"); a("s_cmp_lg_u32 s96, 72"); a("s_cbranch_scc1 L_end")
        a("s_load_dwordx2 s[4:5], s[0:1], 64")
        a("s_waitcnt lgkmcnt(0)")
        a("s_mov_b32 s6, 256"); a("s_mov_b32 s7, 0x00020000")
        a(f"buffer_load_dwordx4 {vr(vt,4)}, v{vt+16}, s[4:7], 0 offen sc1")
        a(f"buffer_load_dwordx4 {vr(vt+4,4)}, v{vt+16}, s[4:7], 0 offen offset:16 sc1")
        a("s_waitcnt vmcnt(0)")
        for k in range(1, 8): a(f"v_max_u32 v{vt}, v{vt}, v{vt+k}")
        a("s_nop 1")
        a(f"v_readfirstlane_b32 s4, v{vt}")
        a(f"s_sub_u32 s4, s4, s60"); a("s_mul_i32 s4, s4, 10"); a(f"s_add_u32 s4, s4, s{60+2*(NST-1)}")
        a.label("L_amp")
        a("s_memrealtime s[6:7]"); a("s_waitcnt lgkmcnt(0)")
        a("s_sub_u32 s5, s6, s4"); a("s_cmp_lt_i32 s5, 0"); a("s_cbranch_scc1 L_amp")
        return
    amp = optint("amp", -1)
    if amp >= 0:
        a("s_lshl_b32 s4, s2, 3"); a("s_add_u32 s4, s4, s3"); a("s_cmp_lg_u32 s4, %d" % (72 + optint("aw", 0))); a("s_cbranch_scc1 L_end")
        a(f"s_sub_u32 s4, s{60+2*amp}, s60"); a("s_mul_i32 s4, s4, 10"); a(f"s_add_u32 s4, s4, s{60+2*(NST-1)}")
        a.label("L_amp")
        a("s_memrealtime s[6:7]"); a("s_waitcnt lgkmcnt(0)")
        a("s_sub_u32 s5, s6, s4"); a("s_cmp_lt_i32 s5, 0"); a("s_cbranch_scc1 L_amp")
        return
    if "dbg" in OPT:
        a("s_load_dwordx2 s[4:5], s[0:1], 64")
        a("s_waitcnt lgkmcnt(0)")
        a("s_mov_b32 s6, 256"); a("s_mov_b32 s7, 0x00020000")
        a(f"v_not_b32 v{vt+14}, v{vt}")
        for k in range(15):
            a(f"buffer_atomic_umax v{vt+k}, v{vt+16}, s[4:7], 0 offen offset:{4*k}")
        return
    for q in range(4): a(f"buffer_store_dwordx4 {vr(vt+4*q,4)}, v{vt+16}, s[16:19], s96 offen offset:{16*q}")
def poll(lbl, vaddr, vtmp, soff, tag):
    a("s_mov_b32 s58, 0")
    a("s_mov_b32 exec_hi, 0")
    a.label(lbl)
    a(f"buffer_load_dword v{vtmp}, v{vaddr}, s[16:19], {soff} offen {PLF}")
    a("s_add_u32 s58, s58, 1")
    a("s_waitcnt vmcnt(0)")
    a(f"v_cmp_ne_u32 vcc, {tag}, v{vtmp}")
    a(f"s_cmp_gt_u32 s58, {SPIN_MAX}")
    a(f"s_cbranch_scc1 {lbl}_d")
    a("s_and_b64 exec, exec, vcc")
    a(f"s_cbranch_execz {lbl}_d")
    if SLEEP: a(f"s_sleep {SLEEP}")
    a(f"s_branch {lbl}")
    a.label(lbl + "_d")
    a("s_mov_b64 exec, -1")
def setflag(vtmp, soff, tag):
    a(f"v_mov_b32 v{vtmp}, {tag}"); a(f"v_lshlrev_b32 v{vtmp+1}, 2, v0")
    a("s_waitcnt vmcnt(0)")
    a("s_mov_b32 exec_hi, 0")
    a(f"buffer_store_dword v{vtmp}, v{vtmp+1}, s[16:19], {soff} offen {FSF}")
    a("s_mov_b32 exec_hi, -1")

a.label(NAME)
a.label("L_code_start")
a("s_cmp_ge_u32 s2, 256")
a("s_cbranch_scc1 L_end")
if ST:
    a("s_memrealtime s[60:61]")
    for k in range(1, NST): a(f"s_mov_b32 s{60+2*k}, 0")
a("s_load_dwordx4 s[4:7], s[0:1], 0")
a("s_load_dwordx2 s[20:21], s[0:1], 72")
a("s_load_dwordx2 s[28:29], s[0:1], 16")
a("s_load_dwordx8 s[88:95], s[0:1], 32")
a("s_getpc_b64 s[12:13]")
a("s_and_b32 s12, s12, 0xffffff00")
a("s_mov_b32 s14, L_code_end-L_code_start")
a("s_mov_b32 s15, 0x00020000")
a("v_lshlrev_b32 v6, 6, v0")
a("s_bfe_u32 s8, s2, 0x20003")
a("v_lshrrev_b32 v1, 6, v0")
a("v_cmp_eq_u32 vcc, s8, v1")
a("s_and_saveexec_b64 s[10:11], vcc")
a("s_cbranch_execz L_cp")
if "nocp" not in OPT: a("buffer_load_ubyte v5, v6, s[12:15], 0 offen")
a.label("L_cp")
a("s_mov_b64 exec, -1")
a("v_and_b32 v0, 63, v0")
a("v_readfirstlane_b32 s3, v1")
vl16 = 2; vn = 3; vL5 = 4; vE = 5
a(f"v_lshlrev_b32 v{vl16}, 4, v0")
a(f"v_and_b32 v{vn}, 31, v0")
a(f"v_lshrrev_b32 v{vL5}, 5, v0")
a("s_and_b32 s51, s3, 3")
a("s_lshl_b32 s22, s51, 9"); a("s_add_u32 s22, s22, s2"); a("s_lshl_b32 s22, s22, 11")
a("s_and_b32 s53, s2, 7"); a("s_lshl_b32 s53, s53, 5"); a("s_lshr_b32 s54, s2, 3"); a("s_add_u32 s53, s53, s54")
a("s_and_b32 s55, s2, 7"); a("s_mul_i32 s55, s55, 1026"); a("s_lshl_b32 s56, s54, 5"); a("s_add_u32 s55, s55, s56")
a("s_lshl_b32 s24, s51, 12")
a("s_lshl_b32 s57, s2, 10"); a(f"s_add_u32 s57, s57, {hx(F1_OFF)}")
a(f"s_mov_b32 s26, {hx(EP_OFF)}")
a("v_mov_b32 v7, 0")
a("s_waitcnt lgkmcnt(0)")
srd(16, 20, WSZ)
a(f"buffer_load_dword v{vE}, v7, s[16:19], s26 offen sc1")
for arr, p_ in enumerate((6, 28, 88, 90)): srd(32 + 4 * arr, p_, WBYTES)
def tags():
    a(f"v_readfirstlane_b32 s48, v{vE}")
    a("s_mul_i32 s48, s48, 0x9E3779B1"); a("s_add_u32 s48, s48, 0x7F4A7C15")
    a("s_xor_b32 s49, s48, 0x5bd1e995")
def arr_srd():
    a("s_cmp_eq_u32 s51, 0"); a("s_cselect_b32 s12, s32, s36"); a("s_cselect_b32 s13, s33, s37")
    a("s_cmp_eq_u32 s51, 2"); a("s_cselect_b32 s12, s40, s12"); a("s_cselect_b32 s13, s41, s13")
    a("s_cmp_eq_u32 s51, 3"); a("s_cselect_b32 s12, s44, s12"); a("s_cselect_b32 s13, s45, s13")
    a(f"s_mov_b32 s14, {hx(WBYTES)}"); a("s_mov_b32 s15, 0x00020000")
V2 = VAlloc(5)
vg = V2(); vc = V2(); vF = V2()
SC = V2(16, 4)
vS = V2(); vw1 = V2(); vr1 = V2(); vT = V2(); vTr = V2(); vWr = V2(); vw2 = V2(); vr2 = V2()
WW = V2(32, 4); TB = V2(8, 4)
Fr = V2(4, 4); Fm = V2(4, 4); M2 = V2(16, 4); MT = V2(16, 4); D = V2(16, 4)
assert V2.n <= 128, V2.n
vW = D; vEa = 2
Wi = lambda arr, cc, i: WW + 16 * cc + 8 * (arr >> 1) + 2 * i + (arr & 1)
MX = SC
L_GW = L_W + 16384
def p2_addr():
    t = [SC + k for k in range(6)]
    a(f"v_lshrrev_b32 v{vg}, 4, v0"); a(f"v_and_b32 v{vc}, 15, v0")
    a(f"v_lshrrev_b32 v{t[0]}, 2, v0"); a(f"v_mul_u32_u24 v{vT}, {16*TSB}, v{t[0]}")
    a(f"v_and_b32 v{t[0]}, 3, v0"); a(f"v_lshl_add_u32 v{vT}, v{t[0]}, 4, v{vT}")
    a("s_lshl_b32 s27, s3, 11")
    a(f"s_mul_i32 s23, s3, {WR}"); a(f"s_add_u32 s23, s23, {L_W}")
    a(f"v_bfe_u32 v{t[0]}, v0, 1, 4"); a(f"v_and_b32 v{t[1]}, 1, v0"); a(f"v_lshl_add_u32 v{t[0]}, v{t[0]}, 4, v{t[1]}")
    a(f"v_lshlrev_b32 v{vF}, 10, v{t[0]}")
    a("s_lshl_b32 s28, s3, 8")
    a("s_and_b32 s8, s2, 7"); a("s_lshl_b32 s8, s8, 7"); a("s_add_u32 s8, s8, s27"); a(f"s_add_u32 s8, s8, {hx(F1_OFF)}")
    a(f"v_lshlrev_b32 v{t[0]}, 4, v{vc}")
    a(f"v_lshl_or_b32 v{t[1]}, v{vg}, 9, v{t[0]}")
    a(f"v_add_u32 v{vw1}, s27, v{t[1]}"); a(f"v_add_u32 v{vw2}, s23, v{t[1]}")
    a(f"v_lshl_or_b32 v{vr1}, v{vg}, 12, v{t[0]}"); a(f"v_add_u32 v{vr1}, s28, v{vr1}")
    a(f"v_mul_u32_u24 v{vr2}, {2*WR}, v{vg}"); a(f"s_add_u32 s29, s28, {L_W}"); a(f"v_add3_u32 v{vr2}, v{vr2}, v{t[0]}, s29")
    if "x4" not in OPT:
        a(f"v_mul_u32_u24 v{vS}, {64*TSB}, v{vg}"); a(f"v_lshl_add_u32 v{vS}, v{vc}, 3, v{vS}")
    else:
        a(f"v_lshlrev_b32 v{t[0]}, 4, v{vg}"); a(f"v_lshl_or_b32 v{vS}, v{vc}, 11, v{t[0]}")
def p2_item():
    t = [SC + k for k in range(6)]
    a(f"s_mul_i32 s24, s3, {2*TSB}"); a("s_lshl_b32 s26, s53, 7"); a("s_add_u32 s24, s24, s26")
    a(f"s_add_u32 s26, s24, {TSB}")
    a(f"v_lshlrev_b32 v{t[0]}, 2, v{vc}"); a(f"v_lshl_or_b32 v{vTr}, v{vg}, 8, v{t[0]}"); a(f"v_add_u32 v{vTr}, s27, v{vTr}")
    a("s_and_b32 s29, s55, 15"); a("s_add_u32 s29, s29, s23")
    a(f"v_mul_u32_u24 v{vWr}, 192, v{vg}"); a(f"v_lshl_add_u32 v{vWr}, v{vc}, 1, v{vWr}"); a(f"v_add_u32 v{vWr}, s29, v{vWr}")
    a("s_lshl_b32 s30, s53, 15"); a("s_add_u32 s30, s30, s28"); a(f"s_add_u32 s30, s30, {hx(S_OFF)}"); a("s_add_u32 s31, s30, 4096")
    a("s_lshl_b32 s9, s53, 10"); a("s_lshl_b32 s10, s3, 7"); a("s_add_u32 s9, s9, s10"); a(f"s_add_u32 s9, s9, {hx(F2_OFF)}")
    a(f"s_mul_i32 s50, s3, {2*TSB}"); a("s_and_b32 s29, s2, 7"); a("s_lshl_b32 s29, s29, 4"); a("s_add_u32 s50, s50, s29"); a(f"s_add_u32 s50, s50, {ELO}")
    a("s_cmp_eq_u32 s54, 0"); a("s_cselect_b32 s52, 0x00010001, 0")
    a(f"v_bfe_u32 v{t[0]}, v0, 4, 1"); a(f"v_lshl_add_u32 v{t[0]}, v{vc}, 4, v{t[0]}"); a(f"v_mul_u32_u24 v{vEa}, {TSB}, v{t[0]}")
    a("s_cselect_b32 s59, -1, 0")
def p2_const(dozero=True, hooks=()):
    hooks = list(hooks)
    def hook():
        if hooks: hooks.pop(0)()
    t = [SC + k for k in range(6)]
    vlf = SC + 6; vkf = SC + 7; vc0 = SC + 8; vlc = SC + 10; FA = SC + 12
    a(f"v_cvt_f32_u32 v{vlf}, v{vc}")
    a(f"v_cvt_f32_u32 v{vkf}, v{vg}"); a(f"v_mul_f32 v{vkf}, 4.0, v{vkf}")
    a(f"v_cvt_f32_u32 v{vc0}, s3"); a(f"v_mul_f32 v{vc0}, {fl(1/128)}, v{vc0}")
    a(f"v_mul_f32 v{vlc}, v{vlf}, v{vc0}")
    a(f"v_fmamk_f32 v{vlc+1}, v{vlf}, {hx(f2u(1/256))}, v{vlc}")
    a(f"v_mul_f32 v{vlf}, {fl(1/16)}, v{vlf}")
    z = iter(range(32))
    def zero(n):
        if not dozero:
            if n == 1: a("s_nop 0")
            return
        for _ in range(n):
            k = next(z, None)
            if k is not None: a(f"v_mov_b32 v{WW+k}, 0")
    def mat(ang):
        a(f"v_cos_f32 v{t[3]}, v{ang}"); a(f"v_sin_f32 v{t[4]}, v{ang}")
    def matfin(Mr, Mm):
        a(f"v_cvt_pk_bf16_f32 v{Mr}, v{t[3]}, v{t[4]}")
        a(f"v_cvt_pk_bf16_f32 v{Mm}, -v{t[4]}, v{t[3]}")
        hook()
    hook(); hook()
    for i in range(4):
        if i: a(f"v_add_f32 v{vkf}, 1.0, v{vkf}")
        a(f"v_mul_f32 v{FA+i}, v{vkf}, v{vlf}")
        mat(FA + i); zero(1); matfin(Fr + i, Fm + i)
    for i in range(3, -1, -1):
        a(f"v_fma_f32 v{t[0]}, v{vkf}, v{vc0}, v{FA+i}")
        a(f"v_fmamk_f32 v{t[1]}, v{vkf}, {hx(f2u(1/256))}, v{t[0]}")
        mat(t[0]); a(f"v_add_f32 v{t[2]}, v{FA+i}, v{vlc}"); matfin(M2 + i, M2 + 4 + i)
        mat(t[1]); a(f"v_add_f32 v{t[5]}, v{FA+i}, v{vlc+1}"); matfin(M2 + 8 + i, M2 + 12 + i)
        mat(t[2]); a(f"v_subrev_f32 v{vkf}, 1.0, v{vkf}"); matfin(MT + i, MT + 4 + i)
        mat(t[5]); zero(1); matfin(MT + 8 + i, MT + 12 + i)
    zero(32)
    a(f"v_add_f32 v{vc0}, {fl(1/128)}, v{vc0}")
    a(f"v_mov_b32 v{SC+9}, v{vkf}")
    for i in range(4):
        a(f"v_add_f32 v{SC+9}, 1.0, v{SC+9}")
        a(f"v_fma_f32 v{FA+i}, v{SC+9}, v{vc0}, v{FA+i}")
    for i in range(4):
        a(f"v_cos_f32 v{SC+10}, v{FA+i}"); a(f"v_sin_f32 v{SC+11}, v{FA+i}"); a("s_nop 0")
        a(f"v_cvt_pk_bf16_f32 v{MX+i}, v{SC+10}, v{SC+11}")
        a(f"v_cvt_pk_bf16_f32 v{MX+4+i}, -v{SC+11}, v{SC+10}")
def wvoff(dst, t0, t1):
    a(f"v_mul_u32_u24 v{t0}, 43, v0"); a(f"v_lshrrev_b32 v{t0}, 7, v{t0}")
    a(f"v_mul_u32_u24 v{t1}, 3, v{t0}"); a(f"v_sub_u32 v{t1}, v0, v{t1}")
    a(f"v_mul_u32_u24 v{dst}, {16*8*1026}, v{t0}"); a(f"v_lshl_add_u32 v{dst}, v{t1}, 4, v{dst}")
def wdma_list(vreg, adds, ccs=(0, 1)):
    ops = []
    for add in adds:
        def head(add=add):
            a(f"s_add_u32 s6, s3, {add}")
            a(f"s_mul_i32 s4, s6, {2*8*1026}"); a("s_add_u32 s4, s4, s55"); a("s_and_b32 s4, s4, 0xfffffff0")
            a(f"s_add_u32 s5, s4, {8*1026}")
            a(f"s_mul_i32 s6, s6, {WR}")
        for arr in range(4):
            for cc in ccs:
                def op(arr=arr, cc=cc, head=head):
                    if arr == 0 and cc == ccs[0]: head()
                    a("s_mov_b32 exec_hi, 0xffff")
                    a(f"s_add_u32 m0, s6, {L_W + 1536*arr + 768*cc}")
                    a(f"buffer_load_dwordx4 v{vreg}, {sr(32+4*arr,4)}, {'s4' if cc == 0 else 's5'} offen lds")
                    a("s_mov_b32 exec_hi, -1")
                ops.append(op)
    return ops
a(f"s_mov_b32 s56, {8*1026}")
a("s_cmp_ge_u32 s3, 4")
a("s_cbranch_scc1 L_h")
a("s_setprio 2")
srd(8, 4, 2048 * 2048)
a("s_add_u32 s30, s22, 0x80000")
a("s_mov_b32 m0, s24")
a(f"buffer_load_dwordx4 v{vl16}, s[8:11], s22 offen{NTX} lds")
a(f"buffer_load_dwordx4 v{vl16}, s[8:11], s22 offen offset:1024{NTX} lds")
a("s_add_u32 m0, s24, 2048")
a(f"buffer_load_dwordx4 v{vl16}, s[8:11], s30 offen{NTX} lds")
a(f"buffer_load_dwordx4 v{vl16}, s[8:11], s30 offen offset:1024{NTX} lds")
V = VAlloc(6)
vb = V(); vo = V(); vkn = V(); vtr = V(); vpf = V(); vj = V(); vpw = V(4); t = [V() for _ in range(6)]
srd(8, 92, 2048)
a("s_lshl_b32 s30, s51, 9"); a(f"s_add_u32 m0, s30, {L_GW}")
a("s_mov_b32 exec_hi, 0")
a(f"buffer_load_dwordx4 v{vl16}, s[8:11], s30 offen lds")
a("s_mov_b32 exec_hi, -1")
arr_srd()
a(f"v_and_b32 v{t[0]}, 7, v0"); a("s_lshl_b32 s30, s2, 3"); a(f"v_add_u32 v{t[0]}, s30, v{t[0]}")
a(f"v_bfe_i32 v{t[1]}, v0, 4, 1"); a(f"v_xor_b32 v{t[0]}, v{t[0]}, v{t[1]}"); a(f"v_sub_u32 v{t[0]}, v{t[0]}, v{t[1]}")
a(f"v_and_b32 v{t[0]}, 2047, v{t[0]}"); a(f"v_mul_u32_u24 v{t[2]}, 1026, v{t[0]}")
a(f"v_bfe_u32 v{t[1]}, v0, 3, 1"); a(f"v_lshl_add_u32 v{t[2]}, v{t[1]}, 10, v{t[2]}")
a(f"buffer_load_ushort v{vj}, v{t[2]}, s[12:15], 0 offen")
a("s_and_b32 s30, s2, 7"); a("s_lshl_b32 s31, s54, 6"); a("s_add_u32 s30, s30, s31"); a("s_mul_i32 s30, s30, 1026")
a(f"v_lshrrev_b32 v{t[0]}, 3, v0"); a(f"v_mul_u32_u24 v{t[2]}, {8*1026}, v{t[0]}")
a(f"v_and_b32 v{t[1]}, 7, v0"); a(f"v_lshl_add_u32 v{vpf}, v{t[1]}, 7, v{t[2]}")
vjunk = 1
def prefetch():
    a(f"buffer_load_ubyte v{vjunk}, v{vpf}, s[12:15], s30 offen{NTW}")
    a(f"buffer_load_ubyte v{vjunk}, v{vpt}, s[12:15], s30 offen offset:1024{NTW}")
NPF = 2
vpt = V()
a(f"v_and_b32 v{t[1]}, 1, v0"); a(f"v_lshl_add_u32 v{vpt}, v{t[1]}, 4, v{t[2]}")
if PFAT == 0: prefetch()
CC = V(8, 4); SS = V(8, 4); SN = V(8, 4); XR = V(8, 4); XI = V(8, 4)
BA = V(24, 4); BB = V(24, 4); TCh = V(8); TSh = V(8)
D1r = BA + 8; D1i = BB + 8; D2r = BA; D2i = BB
TC = lambda k: BA + k if k < 8 else TCh + k - 8
TS_ = lambda k: BB + k if k < 8 else TSh + k - 8
assert V.n <= 128, V.n
a(f"v_and_b32 v{t[0]}, 7, v0"); a(f"v_bfe_u32 v{t[1]}, v0, 3, 2")
a(f"v_lshl_or_b32 v{vkn}, v{t[0]}, 2, v{t[1]}")
a(f"v_cvt_f32_u32 v{vb}, v{vkn}"); a(f"v_cvt_f32_u32 v{vo}, v{vL5}")
a(f"v_mul_f32 v{vb}, {fl(1/32)}, v{vb}"); a(f"v_mul_f32 v{vo}, 4.0, v{vo}"); a(f"v_mul_f32 v{vo}, v{vb}, v{vo}")
for i in range(0, 16, 2):
    for e in range(2):
        kc = 8 * ((i + e) // 4) + (i + e) % 4
        if kc == 0: a(f"v_mov_b32 v{t[e]}, v{vo}")
        else: a(f"v_fmamk_f32 v{t[e]}, v{vb}, {hx(f2u(float(kc)))}, v{vo}")
    a(f"v_cos_f32 v{t[2]}, v{t[0]}"); a(f"v_cos_f32 v{t[3]}, v{t[1]}")
    a(f"v_sin_f32 v{t[4]}, v{t[0]}"); a(f"v_sin_f32 v{t[5]}, v{t[1]}")
    a(f"v_mul_f32 v{t[0]}, {fl(1/32)}, v{t[0]}"); a(f"v_mul_f32 v{t[1]}, {fl(1/32)}, v{t[1]}")
    a(f"v_cvt_pk_bf16_f32 v{CC+i//2}, v{t[2]}, v{t[3]}")
    a(f"v_cvt_pk_bf16_f32 v{SS+i//2}, v{t[4]}, v{t[5]}")
    a(f"v_cvt_pk_bf16_f32 v{SN+i//2}, -v{t[4]}, -v{t[5]}")
    a(f"v_cos_f32 v{TC(i)}, v{t[0]}"); a(f"v_cos_f32 v{TC(i+1)}, v{t[1]}")
    a(f"v_sin_f32 v{TS_(i)}, v{t[0]}"); a(f"v_sin_f32 v{TS_(i+1)}, v{t[1]}")
    if PFAT == i // 2 + 1: prefetch()
a(f"v_lshlrev_b32 v{vtr}, 8, v{vL5}")
a(f"v_bfe_u32 v{t[0]}, v0, 2, 2"); a(f"v_lshl_or_b32 v{vtr}, v{t[0]}, 6, v{vtr}")
a(f"v_bfe_u32 v{t[0]}, v0, 4, 1"); a(f"v_lshl_or_b32 v{vtr}, v{t[0]}, 5, v{vtr}")
a(f"v_and_b32 v{t[0]}, 3, v0"); a(f"v_lshl_or_b32 v{vtr}, v{t[0]}, 3, v{vtr}")
a(f"v_add_u32 v{vtr}, s24, v{vtr}")
a(f"v_and_b32 v{t[0]}, 7, v0"); a(f"v_bfe_u32 v{t[1]}, v0, 3, 2"); a(f"v_lshlrev_b32 v{t[1]}, 1, v{t[1]}")
a(f"v_xor_b32 v{t[0]}, v{t[0]}, v{t[1]}"); a(f"v_xor_b32 v{t[0]}, v{t[0]}, v{vL5}")
a(f"v_lshlrev_b32 v{t[0]}, 4, v{t[0]}")
a(f"v_lshl_or_b32 v{vpw}, v{vkn}, 7, v{t[0]}")
a(f"s_add_u32 s26, s24, {L_P}")
a(f"v_add_u32 v{vpw}, s26, v{vpw}")
for c in range(1, 4): a(f"v_xor_b32 v{vpw+c}, {32*c}, v{vpw}")
vet = vb
a(f"v_and_b32 v{t[0]}, 7, v0"); a(f"v_and_b32 v{t[1]}, 16, v0"); a(f"v_lshl_or_b32 v{t[0]}, v{t[0]}, 1, v{t[1]}")
a(f"v_bfe_u32 v{t[1]}, v0, 3, 1"); a(f"v_lshl_or_b32 v{t[0]}, v{t[1]}, 7, v{t[0]}")
a("s_lshl_b32 s30, s51, 5"); a(f"s_add_u32 s30, s30, {L_N}"); a(f"v_add_u32 v{vet}, s30, v{t[0]}")
ts(1)
a(f"s_waitcnt vmcnt({NPF if PFAT <= 8 else 0})")
ts(2)
tags()
a(f"ds_write_b16 v{vet}, v{vj}")
for h in range(2):
    for r, X in ((0, XR), (1, XI)):
        for tt in range(2):
            a(f"ds_read_b64_tr_b16 {vr(X+4*h+2*tt,2)}, v{vtr} offset:{r*2048+h*1024+tt*512}")
a("s_waitcnt lgkmcnt(8)")
a("s_barrier")
def cpass(R, I, Dr, Di, h, first):
    c0 = "0" if first else vr(Dr, 16); c1 = "0" if first else vr(Di, 16)
    a(f"{M32} {vr(Dr,16)}, {vr(R+4*h,4)}, {vr(CC+4*h,4)}, {c0}")
    a(f"{M32} {vr(Di,16)}, {vr(I+4*h,4)}, {vr(CC+4*h,4)}, {c1}")
    a(f"{M32} {vr(Dr,16)}, {vr(I+4*h,4)}, {vr(SS+4*h,4)}, {vr(Dr,16)}")
    a(f"{M32} {vr(Di,16)}, {vr(R+4*h,4)}, {vr(SN+4*h,4)}, {vr(Di,16)}")
a("s_waitcnt lgkmcnt(4)")
cpass(XR, XI, D1r, D1i, 0, True)
a("s_waitcnt lgkmcnt(0)")
cpass(XR, XI, D1r, D1i, 1, False)
for h in range(2):
    for i in range(8 * h, 8 * h + 8, 2):
        for e in range(2):
            k = i + e
            a(f"v_mul_f32 v{t[e]}, v{D1r+k}, v{TC(k)}")
            a(f"v_mul_f32 v{t[2+e]}, v{D1i+k}, v{TC(k)}")
            a(f"v_fmac_f32 v{t[e]}, v{D1i+k}, v{TS_(k)}")
            a(f"v_fma_f32 v{t[2+e]}, -v{D1r+k}, v{TS_(k)}, v{t[2+e]}")
        a(f"v_cvt_pk_bf16_f32 v{XR+i//2}, v{t[0]}, v{t[1]}")
        a(f"v_cvt_pk_bf16_f32 v{XI+i//2}, v{t[2]}, v{t[3]}")
    cpass(XR, XI, D2r, D2i, h, h == 0)
PK = CC
for c in range(4):
    for e in range(4):
        a(f"v_cvt_pk_bf16_f32 v{PK+4*c+e}, v{D2r+4*c+e}, v{D2i+4*c+e}")
    a(f"ds_write_b128 v{vpw+c}, {vr(PK+4*c,4)}")
a("s_waitcnt lgkmcnt(0)")
ts(3)
a("s_barrier")
a("s_setprio 0")
p2_addr()
p2_item()
wvoff(vW, SC, SC + 1)
ts(4)
a("s_barrier")
ts(5)
EARLY = "early" in OPT
SPLIT = "split" in OPT
p2_const(hooks=wdma_list(vW, [0, 4], (0,) if SPLIT else (0, 1)))
ts(6)
a("s_branch L_p2")
a.label("L_h")
a.hist = []
V = VAlloc(6)
t = [V() for _ in range(8)]
XN = V(16, 4); GW = V(8, 4)
def prewrite():
    if "pw" in OPT or "pws" in OPT:
        a(f"v_lshlrev_b32 v{t[0]}, 7, v0")
        a("s_lshl_b32 s30, s53, 15"); a("s_lshl_b32 s31, s51, 13"); a("s_add_u32 s30, s30, s31"); a(f"s_add_u32 s30, s30, {hx(S_OFF)}")
    if "pw" in OPT or "pwt" in OPT:
        a(f"v_and_b32 v{t[1]}, 3, v0"); a(f"v_lshlrev_b32 v{t[1]}, 7, v{t[1]}"); a(f"v_bfe_u32 v{t[2]}, v0, 2, 3"); a(f"v_lshl_or_b32 v{t[1]}, v{t[2]}, 11, v{t[1]}")
        a(f"s_mul_i32 s31, s2, {TSB}"); a("s_lshl_b32 s29, s51, 9"); a("s_add_u32 s31, s31, s29")
        a("s_mov_b32 exec_hi, 0")
        a(f"buffer_store_dword v{t[1]}, v{t[1]}, s[16:19], s31 offen sc1")
        a("s_mov_b32 exec_hi, -1")
    if "pw" in OPT or "pws" in OPT:
        a(f"buffer_store_dword v{t[0]}, v{t[0]}, s[16:19], s30 offen sc1")
NPW = 2 if "pw" in OPT else (1 if ("pws" in OPT or "pwt" in OPT) else 0)
if "pwl" not in OPT: prewrite()
vnat = V(); a(f"v_add_u32 v{vnat}, s24, v{vl16}")
MA = V(4, 4)
DMB = V(48, 4)
vu = DMB; vA = DMB + 1; vB1 = DMB + 2; vB2 = DMB + 3; vsg = DMB + 4
a(f"v_mov_b32 v{t[3]}, {L_C}"); a(f"v_mov_b32 v{t[4]}, 0")
a(f"ds_write_b32 v{t[3]}, v{t[4]}")
a(f"v_bfe_u32 v{t[0]}, v0, 3, 1"); a(f"v_bfe_u32 v{t[1]}, v0, 1, 1")
a(f"v_lshl_or_b32 v{t[0]}, v{t[0]}, 1, v{t[1]}")
a(f"v_and_or_b32 v{vu}, v0, 4, v{t[0]}")
a(f"v_cvt_f32_u32 v{vu}, v{vu}")
a(f"v_cvt_f32_u32 v{vsg}, v{vL5}")
a(f"v_fma_f32 v{vsg}, v{vsg}, -2.0, 1.0")
a(f"v_mul_f32 v{vA}, v{vu}, v{vsg}")
a(f"v_mul_f32 v{vA}, {fl(0.125)}, v{vA}")
a(f"v_and_b32 v{t[0]}, 1, v0"); a(f"v_cvt_f32_u32 v{t[0]}, v{t[0]}")
a(f"v_mul_f32 v{vB1}, v{t[0]}, v{vsg}"); a(f"v_mul_f32 v{vB1}, {fl(0.25)}, v{vB1}")
a(f"v_cvt_f32_u32 v{t[1]}, s2"); a(f"v_mul_f32 v{t[1]}, {fl(1/256)}, v{t[1]}")
a(f"v_fmac_f32 v{vB1}, v{t[1]}, v{vA}")
a(f"v_add_f32 v{vB2}, {fl(0.25)}, v{vB1}")
for pp in range(4):
    if pp == 0: a(f"v_mov_b32 v{t[0]}, v{vB1}")
    else: a(f"v_fmamk_f32 v{t[0]}, v{vA}, {hx(f2u(2.0*pp))}, v{vB1}")
    a(f"v_fmamk_f32 v{t[1]}, v{vA}, {hx(f2u(2.0*pp+1))}, v{vB2}")
    a(f"v_cos_f32 v{t[2]}, v{t[0]}"); a(f"v_cos_f32 v{t[3]}, v{t[1]}")
    a(f"v_sin_f32 v{t[4]}, v{t[0]}"); a(f"v_sin_f32 v{t[5]}, v{t[1]}")
    a(f"v_add_f32 v{t[2]}, v{t[2]}, v{t[3]}")
    a(f"v_add_f32 v{t[4]}, v{t[4]}, v{t[5]}")
    a(f"v_cvt_pk_bf16_f32 v{MA+pp}, v{t[2]}, v{t[4]}")
vmr = V(5); vk = DMB + 5; vneg = DMB + 6
a("s_lshl_b32 s30, s51, 7")
a(f"v_lshlrev_b32 v{t[0]}, 2, v{vn}")
a(f"v_sub_u32 v{vneg}, 0, v{vL5}")
for q in range(5):
    if q < 4: a(f"v_add3_u32 v{vk}, v{t[0]}, s30, {q}")
    else: a(f"v_add_u32 v{vk}, 512, v{t[0]}")
    a(f"v_xor_b32 v{vk}, v{vk}, v{vneg}"); a(f"v_add_u32 v{vk}, v{vk}, v{vL5}")
    a(f"v_bfe_u32 v{t[1]}, v{vk}, 5, 5")
    a(f"v_bfe_u32 v{t[2]}, v{vk}, 7, 3")
    a(f"v_xor_b32 v{t[3]}, v{vk}, v{t[1]}")
    a(f"v_and_b32 v{t[3]}, 3, v{t[3]}")
    a(f"v_bfe_u32 v{t[4]}, v{vk}, 4, 1")
    a(f"v_lshl_or_b32 v{t[3]}, v{t[3]}, 1, v{t[4]}")
    a(f"v_xor_b32 v{t[3]}, v{t[3]}, v{t[2]}")
    a(f"v_and_b32 v{t[4]}, 12, v{vk}")
    a(f"v_lshl_or_b32 v{t[4]}, v{t[3]}, 4, v{t[4]}")
    a(f"v_lshl_or_b32 v{vmr+q}, v{t[1]}, 7, v{t[4]}")
vts = V(); veo = V(); vet2 = V(); vsig = V(); ves = V()
a(f"v_lshlrev_b32 v{t[0]}, 14, v{vL5}"); a(f"v_and_b32 v{t[1]}, 3, v0"); a(f"v_lshl_or_b32 v{t[0]}, v{t[1]}, 4, v{t[0]}")
a(f"v_bfe_u32 v{t[1]}, v0, 2, 3"); a(f"v_lshl_or_b32 v{vts}, v{t[1]}, 7, v{t[0]}")
EV = DMB + 8
a(f"v_and_b32 v{t[0]}, 7, v0"); a(f"v_bfe_u32 v{t[1]}, v0, 3, 1")
a(f"v_lshlrev_b32 v{t[2]}, 3, v{t[1]}"); a(f"v_lshl_or_b32 v{ves}, v{t[0]}, 4, v{t[2]}")
a(f"v_and_b32 v{t[2]}, 3, v0"); a(f"v_cmp_eq_u32 vcc, 0, v{t[2]}")
a(f"v_lshrrev_b32 v{t[3]}, 2, v{t[0]}")
a(f"v_cvt_f32_u32 v{t[4]}, v{t[1]}"); a(f"v_fma_f32 v{t[4]}, v{t[4]}, -2.0, 1.0")
a(f"v_cndmask_b32 v{t[3]}, v{t[3]}, v{t[1]}, vcc")
a(f"v_cndmask_b32 v{vsig}, 0, v{t[4]}, vcc")
a(f"v_lshlrev_b32 v{t[0]}, 1, v{t[0]}"); a(f"v_lshl_or_b32 v{t[0]}, v{t[1]}, 6, v{t[0]}"); a(f"v_lshl_or_b32 v{t[0]}, v{t[3]}, 7, v{t[0]}")
a(f"v_add_u32 v{veo}, {L_N}, v{t[0]}"); a(f"v_xor_b32 v{vet2}, 64, v{veo}")
for k in range(8): a(f"v_mov_b32 v{EV+k}, 0")
a(f"s_mul_i32 s8, s2, {TSB}")
a("s_lshl_b32 s9, s51, 10"); a("s_add_u32 s9, s9, s8")
a(f"s_add_u32 s8, s8, {ELO}")
if "pad" in OPT:
    for s_ in range(4):
        a(f"s_add_u32 s10, s9, {4096*s_}")
        a(f"buffer_store_dwordx4 {vr(XN,4)}, v{vts}, s[16:19], s10 offen offset:64 sc1")
    NPW += 4
a("s_mov_b32 s11, 0xffff0000")
acc = V(4, 4); ones = V(); MB = XN; MB4 = GW
a(f"v_mov_b32 v{ones}, 0x3f803f80")
a(f"v_mov_b32 v{acc}, 0"); a(f"v_mov_b32 v{acc+2}, 0")
vWh = V()
wvoff(vWh, t[0], t[1])
assert V.n <= 128, V.n
a("s_waitcnt lgkmcnt(0)")
if "pwl" in OPT: prewrite()
ts(1)
if EARLY and "e0" in OPT:
    for op in wdma_list(vWh, [0]): op()
a("s_barrier")
for r in range(2):
    for q in range(2):
        a(f"ds_read_b128 {vr(XN+8*r+4*q,4)}, v{vnat} offset:{r*2048+q*1024}")
a(f"ds_read_b128 {vr(GW,4)}, v{vl16} offset:{L_GW}")
a(f"ds_read_b128 {vr(GW+4,4)}, v{vl16} offset:{L_GW+1024}")
for k in range(4):
    a(f"ds_read_u16_d16_hi v{EV+k}, v{veo} offset:{16*k}")
    a(f"ds_read_u16_d16_hi v{EV+4+k}, v{vet2} offset:{16*k}")
a("s_waitcnt lgkmcnt(0)")
a(f"v_add_f32 v{EV+8}, v{EV}, v{EV+1}"); a(f"v_sub_f32 v{EV+9}, v{EV+2}, v{EV+3}")
a(f"v_add_f32 v{EV+4}, v{EV+4}, v{EV+5}"); a(f"v_sub_f32 v{EV+6}, v{EV+6}, v{EV+7}")
a(f"v_fma_f32 v{EV+8}, -v{vsig}, v{EV+6}, v{EV+8}"); a(f"v_fmac_f32 v{EV+9}, v{vsig}, v{EV+4}")
a(f"s_waitcnt vmcnt({NPW})")
tags()
a("s_cmp_eq_u32 s51, 1"); a("s_cselect_b32 exec_lo, 0xffff, 0"); a("s_mov_b32 exec_hi, 0")
a(f"buffer_store_dwordx2 {vr(EV+8,2)}, v{ves}, s[16:19], s8 offen sc1")
if "nopw" not in OPT:
    a("s_cselect_b32 exec_lo, -1, 0"); a("s_cselect_b32 exec_hi, -1, 0")
    for k in range(4): a(f"v_mov_b32 v{EV+k}, s49")
    a(f"buffer_store_dwordx4 {vr(EV,4)}, v{vl16}, s[16:19], s57 offen sc1")
a("s_mov_b64 exec, -1")
ts(2)
if "pt2" in OPT:
    a(f"v_lshlrev_b32 v{t[0]}, 7, v0")
    a("s_lshl_b32 s30, s53, 15"); a("s_lshl_b32 s31, s51, 13"); a("s_add_u32 s30, s30, s31"); a(f"s_add_u32 s30, s30, {hx(S_OFF)}")
    a(f"buffer_load_ubyte v1, v{t[0]}, s[16:19], s30 offen")
eops = wdma_list(vWh, [0]) if (EARLY and "e0" not in OPT) else []
for j in range(8):
    if eops: eops.pop(0)()
    a(f"v_lshlrev_b32 v{t[6]}, 16, v{GW+j}")
    a(f"v_and_b32 v{t[7]}, s11, v{GW+j}")
    for r in range(2):
        a(f"v_lshlrev_b32 v{t[2*r]}, 16, v{XN+8*r+j}")
        a(f"v_and_b32 v{t[2*r+1]}, s11, v{XN+8*r+j}")
    for r in range(2):
        a(f"v_mul_f32 v{t[2*r]}, v{t[2*r]}, v{t[6]}")
        a(f"v_mul_f32 v{t[2*r+1]}, v{t[2*r+1]}, v{t[7]}")
    for r in range(2): a(f"v_cvt_pk_bf16_f32 v{t[4+r]}, v{t[2*r]}, v{t[2*r+1]}")
    for r in range(2): a(f"v_dot2_f32_bf16 v{acc+2*r}, v{t[4+r]}, v{ones}, v{acc+2*r}")
ts(3)
a("s_setprio 2")
a("s_barrier")
ts(4)
o = L_P // 256
a(f"ds_read2st64_b32 {vr(MB4,2)}, v{vmr+4} offset0:{o} offset1:{o+16}")
a(f"ds_read2st64_b32 {vr(MB4+2,2)}, v{vmr+4} offset0:{o+32} offset1:{o+48}")
for q in range(4):
    a(f"ds_read2st64_b32 {vr(MB+4*q,2)}, v{vmr+q} offset0:{o} offset1:{o+16}")
    a(f"ds_read2st64_b32 {vr(MB+4*q+2,2)}, v{vmr+q} offset0:{o+32} offset1:{o+48}")
DN = DMB; DM = [DMB + 8 + 8 * q for q in range(4)]
a("s_waitcnt lgkmcnt(8)")
a(f"{M32} {vr(DN,16)}, {vr(MA,4)}, {vr(MB4,4)}, 0")
for q in range(4):
    a(f"s_waitcnt lgkmcnt({6-2*q})")
    a(f"{M32} {vr(DM[q],16)}, {vr(MA,4)}, {vr(MB+4*q,4)}, 0")
a("s_cmp_eq_u32 s51, 0"); a("s_cselect_b32 exec_lo, 1, 0"); a("s_cselect_b32 exec_hi, 1, 0")
a(f"v_sub_f32 v{DM[0]}, v{DM[0]}, v{DN+1}"); a(f"v_add_f32 v{DM[0]+1}, v{DM[0]+1}, v{DN}")
a("s_mov_b32 exec_lo, 0")
for k in range(2, 8): a(f"v_mov_b32 v{DM[0]+k}, v{DN+k}")
a("s_mov_b64 exec, -1")
OUT = MB
for s_ in range(4):
    for q in range(4):
        a(f"v_cvt_pk_bf16_f32 v{OUT+4*s_+q}, v{DM[q]+2*s_}, v{DM[q]+2*s_+1}")
    a(f"s_add_u32 s10, s9, {4096*s_}")
    a(f"buffer_store_dwordx4 {vr(OUT+4*s_,4)}, v{vts}, s[16:19], s10 offen sc1")
a("s_barrier")
ts(5)
for dpp in ("row_shr:1", "row_shr:2", "row_shr:4", "row_shr:8"):
    for r in range(2):
        a(f"v_add_f32_dpp v{acc+2*r}, v{acc+2*r}, v{acc+2*r} {dpp} row_mask:0xf bank_mask:0xf bound_ctrl:0")
for dpp, rm in (("row_bcast:15", "0xa"), ("row_bcast:31", "0xc")):
    for r in range(2):
        a(f"v_add_f32_dpp v{acc+2*r}, v{acc+2*r}, v{acc+2*r} {dpp} row_mask:{rm} bank_mask:0xf")
a(f"v_cvt_pk_bf16_f32 v{t[0]}, v{acc}, v{acc+2}")
a(f"v_lshlrev_b32 v{t[1]}, 16, v{t[0]}")
a(f"v_and_b32 v{t[2]}, s11, v{t[0]}")
for r in range(2): a(f"v_mul_f32 v{t[1+r]}, {hx(f2u(-1.4426950408889634))}, v{t[1+r]}")
for r in range(2): a(f"v_exp_f32 v{t[1+r]}, v{t[1+r]}")
for r in range(2): a(f"v_add_f32 v{t[1+r]}, 1.0, v{t[1+r]}")
for r in range(2): a(f"v_rcp_f32 v{t[1+r]}, v{t[1+r]}")
a(f"v_cvt_pk_bf16_f32 v{t[0]}, v{t[1]}, v{t[2]}")
a(f"v_lshlrev_b32 v{acc}, 16, v{t[0]}")
a(f"v_and_b32 v{acc+2}, s11, v{t[0]}")
a(f"v_sub_f32 v{t[1]}, 1.0, v{acc}")
a(f"v_sub_f32 v{t[2]}, 1.0, v{acc+2}")
a(f"v_cvt_pk_bf16_f32 v{t[0]}, v{t[1]}, v{t[2]}")
a(f"v_lshlrev_b32 v{acc+1}, 16, v{t[0]}")
a(f"v_and_b32 v{acc+3}, s11, v{t[0]}")
for r in range(4): a(f"v_mul_f32 v{acc+r}, {hx(f2u(2.0**-22))}, v{acc+r}")
a("s_lshl_b32 s30, s51, 4"); a(f"s_add_u32 s30, s30, {L_G}")
a(f"v_mov_b32 v{t[3]}, s30")
a("s_mov_b32 exec_lo, 0"); a("s_mov_b32 exec_hi, 0x80000000")
a(f"ds_write_b128 v{t[3]}, {vr(acc,4)}")
a("s_mov_b64 exec, -1")
a(f"v_mov_b32 v{t[3]}, {L_C}"); a(f"v_mov_b32 v{t[4]}, 1")
for k in range(4): a(f"v_mov_b32 v{DMB+k}, s48")
a("s_mov_b64 exec, 1")
a("s_waitcnt vmcnt(0)")
a(f"ds_add_rtn_u32 v{t[5]}, v{t[3]}, v{t[4]}")
a("s_waitcnt lgkmcnt(0)")
a(f"v_readfirstlane_b32 s30, v{t[5]}")
a("s_cmp_eq_u32 s30, 3"); a("s_cselect_b32 exec_lo, -1, 0"); a("s_cselect_b32 exec_hi, -1, 0")
a(f"buffer_store_dwordx4 {vr(DMB,4)}, v{vl16}, s[16:19], s57 offen {FSF}")
a("s_mov_b64 exec, -1")
def stouch(vt):
    a(f"v_lshlrev_b32 v{vt}, 7, v0")
    a("s_lshl_b32 s30, s53, 15"); a("s_lshl_b32 s31, s51, 13"); a("s_add_u32 s30, s30, s31"); a(f"s_add_u32 s30, s30, {hx(S_OFF)}")
    a(f"buffer_load_ubyte v1, v{vt}, s[16:19], s30 offen{' sc1' if 'ptsc' in OPT else ''}")
if "pt1" in OPT: stouch(t[0])
a("s_setprio 0")
ts(6)
p2_addr(); p2_item(); wvoff(vW, SC, SC + 1); p2_const()
if optint("pa", 0): a(f"s_sleep {optint('pa', 0)}")
a.label("L_p2")
a.hist = []
t = [SC + k for k in range(6)]
ts(7)
if "pw3" in OPT:
    a(f"v_lshrrev_b32 v{TB}, 2, v0"); a(f"v_and_b32 v{TB+1}, 3, v0"); a(f"v_lshlrev_b32 v{TB+1}, 6, v{TB+1}"); a(f"v_lshl_or_b32 v{TB+2}, v{TB}, 11, v{TB+1}")
    a(f"buffer_store_dword v{TB+2}, v{TB+2}, s[16:19], s30 offen sc1")
poll("L_poll1", vF, TB, "s8", "s48")
def f2pre():
    if "nopw" in OPT: return
    a(f"v_mov_b32 v{TB}, s48"); a(f"v_lshlrev_b32 v{TB+1}, 2, v0")
    a("s_mov_b32 exec_hi, 0")
    a(f"buffer_store_dword v{TB}, v{TB+1}, s[16:19], s9 offen sc1")
    a("s_mov_b32 exec_hi, -1")
ts(8)
if "st2" in OPT: a("s_add_u32 s70, s60, s58")
a.label("L_p2c")
a("s_setprio 1")
a("s_mov_b32 m0, s27")
a(f"buffer_load_dwordx4 v{vT}, s[16:19], s24 offen {TLF} lds")
a("s_add_u32 m0, s27, 1024")
a(f"buffer_load_dwordx4 v{vT}, s[16:19], s26 offen {TLF} lds")
a("s_lshl_b32 s29, s3, 9"); a(f"s_add_u32 s29, s29, {L_E}"); a("s_mov_b32 m0, s29")
a("s_mov_b32 exec_lo, s59"); a("s_mov_b32 exec_hi, 0")
a(f"buffer_load_dwordx4 v{vEa}, s[16:19], s50 offen sc1 lds")
a("s_mov_b64 exec, -1")
PW2 = "pw2" in OPT or "pw3" in OPT
def pw2():
    a(f"v_lshrrev_b32 v{TB}, 2, v0"); a(f"v_and_b32 v{TB+1}, 3, v0"); a(f"v_lshlrev_b32 v{TB+1}, 6, v{TB+1}"); a(f"v_lshl_or_b32 v{TB}, v{TB}, 11, v{TB+1}")
    if "pwh" in OPT: a("s_mov_b32 exec_lo, 0x55555555"); a("s_mov_b32 exec_hi, 0x55555555")
    a(f"buffer_store_dword v{TB}, v{TB}, s[16:19], s30 offen sc1")
    if "pwh" in OPT: a("s_mov_b64 exec, -1")
if "pw2" in OPT: pw2()
if SPLIT:
    for op in wdma_list(vW, [0], (1,)): op()
def wread(cc):
    a("s_not_b32 exec_lo, s52"); a("s_not_b32 exec_hi, s52")
    for arr in range(4):
        for i in range(4):
            a(f"ds_read_u16_d16_hi v{Wi(arr,cc,i)}, v{vWr} offset:{1536*arr+768*cc+48*i}")
    a("s_mov_b64 exec, -1")
a("s_barrier")
wread(0)
if not SPLIT: wread(1)
PKD = SC + 8
a(f"s_waitcnt vmcnt({4 if SPLIT else (1 if 'pw2' in OPT else 0)})")
if ST: a("s_waitcnt lgkmcnt(0)")
ts(9)
def pq():
    if "pq4" in OPT:
        a(f"buffer_store_dwordx4 {vr(D,4)}, v{vT}, s[16:19], s24 offen offset:64 sc1")
        a(f"buffer_store_dwordx4 {vr(D,4)}, v{vT}, s[16:19], s26 offen offset:64 sc1")
    else:
        a("s_mov_b32 exec_lo, 0x11111111"); a("s_mov_b32 exec_hi, 0x11111111")
        a(f"buffer_store_dword v{vT}, v{vT}, s[16:19], s24 offen offset:64 sc1")
        a(f"buffer_store_dword v{vT}, v{vT}, s[16:19], s26 offen offset:64 sc1")
        a("s_mov_b64 exec, -1")
if "pq" in OPT: pq()
a(f"ds_read2_b32 {vr(TB,2)}, v{vTr} offset0:0 offset1:16")
a(f"ds_read2_b32 {vr(TB+2,2)}, v{vTr} offset0:32 offset1:48")
a(f"v_add_u32 v{vTr}, 1024, v{vTr}")
a(f"ds_read2_b32 {vr(TB+4,2)}, v{vTr} offset0:0 offset1:16")
a(f"ds_read2_b32 {vr(TB+6,2)}, v{vTr} offset0:32 offset1:48")
a.label("L_p2e")
for bb in range(2):
    a(f"s_waitcnt lgkmcnt({2-2*bb})")
    a(f"{M16} {vr(D+8*bb,4)}, {vr(Fr,4)}, {vr(TB+4*bb,4)}, 0")
    a(f"{M16} {vr(D+8*bb+4,4)}, {vr(Fm,4)}, {vr(TB+4*bb,4)}, 0")
for ip in range(2):
    for cc in range(2):
        for bb in range(2):
            i = 2 * ip + cc
            a(f"v_cvt_pk_bf16_f32 v{PKD+4*ip+2*cc+bb}, v{D+8*bb+i}, v{D+8*bb+4+i}")
    a(f"ds_write_b128 v{vw1}, {vr(PKD+4*ip,4)} offset:{ip*256}")
a("s_cmp_lg_u32 s54, 0")
a("s_cbranch_scc0 L_el")
a.label("L_elb")
a("s_waitcnt lgkmcnt(0)")
f2pre()
a("s_barrier")
if "pqd" in OPT:
    a("s_mov_b32 exec_lo, 0x11111111"); a("s_mov_b32 exec_hi, 0x11111111")
    a(f"buffer_store_dword v{vT}, v{vT}, s[16:19], s24 offen offset:64 sc1")
    a(f"buffer_store_dword v{vT}, v{vT}, s[16:19], s26 offen offset:64 sc1")
    a("s_mov_b64 exec, -1")
OB = TB
for cc in range(2):
    for h in range(2):
        a(f"ds_read_b64 {vr(OB+4*cc+2*h,2)}, v{vr1} offset:{h*2048+cc*8}")
X = D
for cc in range(2):
    a(f"s_waitcnt lgkmcnt({2-2*cc})")
    a(f"{M16} {vr(X+8*cc,4)}, {vr(M2+8*cc,4)}, {vr(OB+4*cc,4)}, 0")
    a(f"{M16} {vr(X+8*cc+4,4)}, {vr(M2+8*cc+4,4)}, {vr(OB+4*cc,4)}, 0")
YO = [PKD, PKD + 4, PKD, PKD + 4]
tpr = [(vT, vTr), (vr1, vw1)]
if SPLIT:
    a(f"s_waitcnt vmcnt({0 if 'nopw' in OPT else 1})")
    wread(1)
def dpt(cc, ab, ri): return WW + 16 * cc + 8 * ab + 4 * ri
def wmul(cc, ab):
    n = 2 * cc + ab
    xr = X + 8 * cc; xi = X + 8 * cc + 4
    for i in range(4):
        wr = Wi(2 * ab, cc, i); wi = Wi(2 * ab + 1, cc, i)
        y0, y1 = tpr[i & 1]
        a(f"v_mul_f32 v{y0}, v{xr+i}, v{wr}")
        a(f"v_mul_f32 v{y1}, v{xi+i}, v{wr}")
        a(f"v_fma_f32 v{y0}, -v{xi+i}, v{wi}, v{y0}")
        a(f"v_fmac_f32 v{y1}, v{xr+i}, v{wi}")
        a(f"v_cvt_pk_bf16_f32 v{YO[n]+i}, v{y1}, v{y0}")
    a(f"{M16} {vr(dpt(cc,ab,0),4)}, {vr(MT+8*cc,4)}, {vr(YO[n],4)}, 0")
    a(f"{M16} {vr(dpt(cc,ab,1),4)}, {vr(MT+8*cc+4,4)}, {vr(YO[n],4)}, 0")
a("s_and_b32 s29, s2, 0xfb")
a("s_cmp_eq_u32 s29, 0")
a("s_cbranch_scc1 L_sp")
for cc in range(2):
    if cc == 1: a("s_waitcnt lgkmcnt(0)")
    for ab in range(2): wmul(cc, ab)
a.label("L_spb")
XP2 = X
P2 = D
for ab in range(2):
    for ip in range(2):
        for cc in range(2):
            for bb in range(2):
                i = 2 * ip + bb
                a(f"v_cvt_pk_bf16_f32 v{P2+8*ab+4*ip+2*bb+cc}, v{dpt(cc,ab,0)+i}, v{dpt(cc,ab,1)+i}")
        a(f"ds_write_b128 v{vw2}, {vr(P2+8*ab+4*ip,4)} offset:{2048*ab+ip*256}")
a("s_waitcnt lgkmcnt(0)")
a("s_barrier")
O2 = WW + 16
for bb in range(2):
    for ab in range(2):
        for h in range(2):
            a(f"ds_read_b64 {vr(O2+8*bb+4*ab+2*h,2)}, v{vr2} offset:{WR*h+2048*ab+bb*8}")
E = [M2, M2 + 8, MT, MT + 8]
X4 = "x4" in OPT
for bb in range(2):
    for ab in range(2):
        n = 2 * bb + ab
        a(f"s_waitcnt lgkmcnt({6-2*n})")
        if X4:
            a(f"{M16} {vr(E[n],4)}, {vr(O2+4*n,4)}, {vr(Fr,4)}, 0")
            a(f"{M16} {vr(E[n]+4,4)}, {vr(O2+4*n,4)}, {vr(Fm,4)}, 0")
        else:
            a(f"{M16} {vr(E[n],4)}, {vr(Fr,4)}, {vr(O2+4*n,4)}, 0")
            a(f"{M16} {vr(E[n]+4,4)}, {vr(Fm,4)}, {vr(O2+4*n,4)}, 0")
SO = WW
for bb in range(2):
    for i in range(4):
        for ab in range(2):
            n = 2 * bb + ab
            a(f"v_cvt_pk_bf16_f32 v{SO+8*bb+2*i+ab}, v{E[n]+4+i}, v{E[n]+i}")
        if X4:
            if i & 1: a(f"buffer_store_dwordx4 {vr(SO+8*bb+2*(i-1),4)}, v{vS}, s[16:19], s30 offen offset:{(i>>1)*64+bb*128} sc1")
        else:
            a(f"s_add_u32 s30, s24, {(16*i+bb)*TSB}")
            a(f"buffer_store_dwordx2 {vr(SO+8*bb+2*i,2)}, v{vS}, s[16:19], s30 offen {SSF}")
ts(10)
if "swb" in OPT:
    a("s_waitcnt vmcnt(0)")
    a("buffer_wbl2 sc1")
amx_post(t[0])
setflag(t[0], "s9", "s49")
if "st2" in OPT: ts(1)
a("s_setprio 0")
V = VAlloc(8)
vg_ = vg; vc_ = vc
t = [V() for _ in range(6)]
vS3 = 1; vN = 2; vF3 = 7; AP8 = V(); AMx = V()
MR = V(16, 4); MI = V(16, 4); X = V(16, 4)
BA = V(24, 4); BB = V(24, 4); TCh = V(8); TSh = V(8)
assert V.n <= 128, V.n
D1r = BA + 8; D1i = BB + 8; D2r = BA; D2i = BB
SBt = [D1r, D1r + 4, D1r + 8, D1r + 12, X]
DDt = [D1i, D1i + 4, D1i + 8, D1i + 12, X + 4]
MA = X + 8; AP = X + 12; AM = [X + 13, X + 14, X + 15, AMx]
CS = D1r; GG = D1i
a(f"v_bfe_u32 v{t[0]}, v0, 2, 2"); a(f"v_lshlrev_b32 v{t[1]}, 4, v{t[0]}")
a(f"v_add_u32 v{t[1]}, {L_G}, v{t[1]}")
a(f"ds_read_b128 {vr(GG,4)}, v{t[1]}")
if X4:
    a(f"v_and_b32 v{t[1]}, 1, v0"); a(f"v_lshlrev_b32 v{t[1]}, 3, v{t[1]}")
    a(f"v_lshl_or_b32 v{t[1]}, v{t[0]}, 4, v{t[1]}")
    a(f"v_bfe_u32 v{t[2]}, v0, 1, 1"); a(f"v_lshl_or_b32 v{t[1]}, v{t[2]}, 6, v{t[1]}")
else:
    a(f"v_lshlrev_b32 v{t[1]}, 3, v{vc_}")
a(f"v_lshl_or_b32 v{vS3}, v{vg_}, 13, v{t[1]}")
a("s_xor_b32 s50, s3, 4")
a(f"s_mul_i32 s8, s2, {TSB}")
a("s_lshl_b32 s11, s50, 7"); a("s_add_u32 s8, s8, s11"); a("s_add_u32 s10, s8, 4096")
a(f"v_bfe_u32 v{t[1]}, v0, 2, 3"); a(f"v_and_b32 v{t[2]}, 3, v0"); a(f"v_lshlrev_b32 v{t[2]}, 3, v{t[2]}")
a(f"v_lshl_add_u32 v{t[1]}, v{t[1]}, 5, v{t[2]}"); a(f"v_add_u32 v{t[1]}, s50, v{t[1]}")
a("s_cmp_eq_u32 s50, 0"); a("s_cselect_b32 s24, 0x00010001, 0")
a(f"v_lshlrev_b32 v{vF3}, 10, v{t[1]}")
a("s_bfe_u32 s11, s2, 0x30001"); a("s_lshl_b32 s11, s11, 7"); a(f"s_add_u32 s11, s11, {hx(F2_OFF)}")
vsg = X; ve = X + 1; vstep = X + 2; vpe = X + 3; vpo = X + 4; vk = X + 5; vpl = X + 6
a(f"v_bfe_u32 v{t[1]}, v0, 1, 1"); a(f"v_cvt_f32_u32 v{vsg}, v{t[1]}")
a(f"v_mul_f32 v{vsg}, -0.5, v{vsg}"); a(f"v_add_f32 v{vsg}, {fl(0.25)}, v{vsg}")
a(f"v_and_b32 v{t[1]}, 1, v0"); a(f"v_cvt_f32_u32 v{t[1]}, v{t[1]}")
a(f"v_mul_f32 v{ve}, v{t[1]}, v{vsg}")
a(f"v_lshlrev_b32 v{t[0]}, 9, v{t[0]}"); a(f"v_add_u32 v{t[0]}, s2, v{t[0]}")
a(f"v_cvt_f32_u32 v{vstep}, v{t[0]}"); a(f"v_mul_f32 v{vstep}, {hx(f2u(-1/2048))}, v{vstep}")
a(f"v_cvt_f32_u32 v{t[2]}, v{vg_}"); a(f"v_add_f32 v{t[2]}, v{t[2]}, v{t[2]}")
a(f"v_fma_f32 v{vpe}, v{t[2]}, v{vstep}, v{ve}")
a(f"v_sub_f32 v{vpo}, v{vpe}, v{vsg}")
a(f"v_fmamk_f32 v{vpo}, v{t[2]}, {hx(f2u(-0.125))}, v{vpo}")
for lo in range(2):
    if lo:
        a(f"v_add_f32 v{vpe}, v{vpe}, v{vstep}")
        a(f"v_add_f32 v{vpo}, v{vpo}, v{vstep}"); a(f"v_add_f32 v{vpo}, {hx(f2u(-0.125))}, v{vpo}")
    a(f"v_cos_f32 v{CS+4*lo}, v{vpe}"); a(f"v_sin_f32 v{CS+4*lo+1}, v{vpe}")
    a(f"v_cos_f32 v{CS+4*lo+2}, v{vpo}"); a(f"v_sin_f32 v{CS+4*lo+3}, v{vpo}")
a("s_lshl_b32 s25, s50, 4")
a(f"v_lshlrev_b32 v{vpl}, 12, v{vg_}")
a(f"v_add_u32 v{vk}, s25, v{vc_}")
a(f"v_and_b32 v{t[3]}, 14, v{vk}"); a(f"v_lshl_or_b32 v{t[3]}, v{t[3]}, 3, v{vpl}")
a(f"v_and_b32 v{t[4]}, 31, v{vk}"); a(f"v_lshl_or_b32 v{t[3]}, v{t[4]}, 7, v{t[3]}")
a(f"v_bfe_u32 v{t[4]}, v{vk}, 5, 2"); a(f"v_lshl_or_b32 v{AP}, v{t[4]}, 2, v{t[3]}")
a(f"v_sub_u32 v{t[5]}, 0, v{vk}")
a(f"v_and_b32 v{t[4]}, 31, v{t[5]}"); a(f"v_lshl_or_b32 v{t[3]}, v{t[4]}, 7, v{vpl}")
a(f"v_and_b32 v{t[4]}, 14, v{t[5]}"); a(f"v_lshl_or_b32 v{t[3]}, v{t[4]}, 3, v{t[3]}")
a(f"v_lshrrev_b32 v{t[5]}, 3, v{t[5]}")
for tt in range(4):
    if tt: a(f"v_subrev_u32 v{t[5]}, 16, v{t[5]}")
    a(f"v_and_b32 v{t[4]}, 0x7c, v{t[5]}")
    a(f"v_xor_b32 v{AM[tt]}, v{t[4]}, v{t[3]}")
a("s_mov_b32 exec_lo, s24"); a("s_mov_b32 exec_hi, s24")
a(f"v_or_b32 v{AM[0]}, 64, v{vpl}")
a("s_mov_b64 exec, -1")
a("s_waitcnt lgkmcnt(0)")
for lo in range(2):
    for ab in range(2):
        a(f"v_mul_f32 v{t[0]}, v{GG+ab}, v{CS+4*lo}"); a(f"v_mul_f32 v{t[1]}, v{GG+ab}, v{CS+4*lo+1}")
        a(f"v_fmac_f32 v{t[0]}, v{GG+2+ab}, v{CS+4*lo+2}"); a(f"v_fmac_f32 v{t[1]}, v{GG+2+ab}, v{CS+4*lo+3}")
        a(f"v_cvt_pk_bf16_f32 v{MA+2*lo+ab}, v{t[0]}, v{t[1]}")
a("s_cmp_eq_u32 s3, 4")
a("s_cbranch_scc1 L_m0")
a("s_cmp_ge_u32 s3, 4")
a("s_cbranch_scc1 L_p3b")
TC = lambda k: BA + k if k < 8 else TCh + k - 8
TS_ = lambda k: BB + k if k < 8 else TSh + k - 8
vb = X; vo = X + 1
a(f"v_cvt_f32_u32 v{vb}, v{vn}"); a(f"v_cvt_f32_u32 v{vo}, v{vL5}")
a(f"v_mul_f32 v{vb}, {fl(1/32)}, v{vb}"); a(f"v_mul_f32 v{vo}, 4.0, v{vo}"); a(f"v_mul_f32 v{vo}, v{vb}, v{vo}")
for i in range(16):
    kc = 8 * (i // 4) + i % 4
    if kc == 0: a(f"v_mov_b32 v{t[0]}, v{vo}")
    else: a(f"v_fmamk_f32 v{t[0]}, v{vb}, {hx(f2u(float(kc)))}, v{vo}")
    a(f"v_cos_f32 v{t[1]}, v{t[0]}"); a(f"v_sin_f32 v{t[2]}, v{t[0]}")
    a(f"v_mul_f32 v{t[0]}, {fl(1/32)}, v{t[0]}")
    a(f"v_cvt_pk_bf16_f32 v{MR+i}, v{t[1]}, -v{t[2]}")
    a(f"v_cvt_pk_bf16_f32 v{MI+i}, v{t[2]}, v{t[1]}")
    a(f"v_cos_f32 v{TC(i)}, v{t[0]}"); a(f"v_sin_f32 v{TS_(i)}, v{t[0]}")
a.label("L_p3b")
if optint("pb", 0): a(f"s_sleep {optint('pb', 0)}")
ts(11)
poll("L_poll2", vF3, t[0], "s11", "s49")
ts(12)
if "st2" in OPT: a("s_add_u32 s64, s60, s58")
for tt in range(4):
    for lo in range(2):
        a(f"buffer_load_dwordx2 {vr(SBt[tt]+2*lo,2)}, v{vS3}, s[16:19], {'s10' if lo else 's8'} offen offset:{tt*1024} {SLF}")
MA0 = MR
def fin(tt):
    d = DDt[tt]
    if tt == 0:
        a("s_mov_b32 exec_lo, s24"); a("s_mov_b32 exec_hi, s24")
        for k in range(4): a(f"v_mov_b32 v{d+k}, v{DDt[4]+k}")
        a("s_mov_b64 exec, -1")
    a(f"v_cvt_pk_bf16_f32 v{d}, v{d}, v{d+1}")
    a(f"v_cvt_pk_bf16_f32 v{d+1}, v{d+2}, v{d+3}")
    if tt: a(f"v_xor_b32 v{t[tt]}, {tt<<4}, v{AP}")
    a(f"ds_write_b32 v{t[tt] if tt else AP}, v{d}")
    a(f"ds_write_b32 v{AM[tt]}, v{d+1}")
for tt in range(4):
    a(f"s_waitcnt vmcnt({max(0, 6-2*tt)})")
    a(f"{M16} {vr(DDt[tt],4)}, {vr(MA,4)}, {vr(SBt[tt],4)}, 0")
    if tt == 0: a(f"{M16} {vr(DDt[4],4)}, {vr(MA0,4)}, {vr(SBt[0],4)}, 0")
    if tt >= 1: fin(tt - 1)
fin(3)
vst = vS3
a(f"v_bfe_u32 v{t[4]}, v{vn}, 1, 3"); a(f"v_xor_b32 v{t[4]}, v{t[4]}, v{vL5}"); a(f"v_lshlrev_b32 v{t[4]}, 4, v{t[4]}")
a(f"v_lshl_or_b32 v{t[4]}, v{vn}, 7, v{t[4]}"); a("s_lshl_b32 s26, s51, 12")
a("s_waitcnt lgkmcnt(0)")
a(f"v_add_u32 v{t[0]}, s26, v{t[4]}")
for q in range(1, 4): a(f"v_xor_b32 v{t[q]}, {32*q}, v{t[0]}")
a(f"v_lshlrev_b32 v{t[4]}, 4, v{vL5}"); a(f"v_lshl_or_b32 v{vst}, v{vn}, 6, v{t[4]}")
srd(12, 94, 2048 * 2048)
a("s_add_u32 s30, s22, 0x80000")
if "st2" in OPT: ts(3)
a("s_barrier")
if "st2" in OPT: ts(4)
a("s_cmp_ge_u32 s3, 4")
a("s_cbranch_scc1 L_hx")
for q in range(4): a(f"ds_read_b128 {vr(X+4*q,4)}, v{t[q]}")
for q in range(4):
    a(f"s_waitcnt lgkmcnt({3-q})")
    a(f"{M32} {vr(D1r,16)}, {vr(X+4*q,4)}, {vr(MR+4*q,4)}, {'0' if q == 0 else vr(D1r,16)}")
    a(f"{M32} {vr(D1i,16)}, {vr(X+4*q,4)}, {vr(MI+4*q,4)}, {'0' if q == 0 else vr(D1i,16)}")
def p2m(q):
    a(f"{M32} {vr(D2r,16)}, {vr(X+4*q,4)}, {vr(MR+4*q,4)}, {'0' if q == 0 else vr(D2r,16)}")
    a(f"{M32} {vr(D2i,16)}, {vr(X+4*q,4)}, {vr(MI+4*q,4)}, {'0' if q == 0 else vr(D2i,16)}")
for q in range(4):
    for e in range(4):
        k = 4 * q + e
        a(f"v_mul_f32 v{t[0]}, v{D1r+k}, v{TC(k)}")
        a(f"v_mul_f32 v{t[1]}, v{D1i+k}, v{TC(k)}")
        a(f"v_fma_f32 v{t[0]}, -v{D1i+k}, v{TS_(k)}, v{t[0]}")
        a(f"v_fmac_f32 v{t[1]}, v{D1r+k}, v{TS_(k)}")
        a(f"v_cvt_pk_bf16_f32 v{X+k}, v{t[0]}, v{t[1]}")
        if q == 2 and e == 1: p2m(1)
    if q == 1: p2m(0)
    if q >= 2: p2m(q)
O = MR
for r, (Dx, so) in enumerate(((D2r, "s22"), (D2i, "s30"))):
    for c2 in range(2):
        o = O + 8 * r + 4 * c2
        for e in range(4):
            a(f"v_cvt_pk_bf16_f32 v{o+e}, v{Dx+8*c2+2*e}, v{Dx+8*c2+2*e+1}")
        a(f"v_permlane32_swap_b32 v{o}, v{o+2}")
        a(f"v_permlane32_swap_b32 v{o+1}, v{o+3}")
        a(f"buffer_store_dwordx4 {vr(o,4)}, v{vst}, s[12:15], {so} offen offset:{32*c2}{OSF}")
a.label("L_fin")
stamp_end(32)
a.label("L_end")
a("s_endpgm")
a.label("L_hx")
a("s_lshl_b32 s26, s2, 3"); a("s_add_u32 s26, s26, s3")
a("s_cmp_lg_u32 s26, 4")
a("s_cbranch_scc1 L_fin")
a(f"s_mov_b32 s26, {hx(EP_OFF)}")
setflag(8, "s26", "s49")
a("s_branch L_fin")
a.label("L_m0")
a.hist = []
q_ = [MI + k for k in range(16)]
gaa = q_[0]; gbb = q_[1]; ph = q_[2]; st_ = q_[3]; c_ = q_[4]; s__ = q_[5]; al = q_[6]; be = q_[7]
a(f"v_and_b32 v{t[0]}, 1, v0"); a(f"v_cmp_eq_u32 vcc, 1, v{t[0]}")
a(f"v_bfe_u32 v{t[1]}, v0, 2, 2"); a(f"v_lshl_or_b32 v{t[1]}, v{t[1]}, 1, v{t[0]}")
a(f"v_cndmask_b32 v{gaa}, v{GG}, v{GG+2}, vcc"); a(f"v_cndmask_b32 v{gbb}, v{GG+1}, v{GG+3}, vcc")
a(f"v_lshlrev_b32 v{t[1]}, 8, v{t[1]}"); a(f"v_add_u32 v{t[1]}, s2, v{t[1]}")
a(f"v_cvt_f32_u32 v{st_}, v{t[1]}"); a(f"v_mul_f32 v{st_}, {hx(f2u(1/2048))}, v{st_}")
a(f"v_cvt_f32_u32 v{ph}, v{vg_}"); a(f"v_add_f32 v{ph}, v{ph}, v{ph}"); a(f"v_mul_f32 v{ph}, v{ph}, v{st_}")
a(f"v_bfe_u32 v{t[2]}, v0, 1, 1")
a(f"v_lshrrev_b32 v{t[3]}, 1, v{vg_}"); a(f"v_cmp_eq_u32 s[4:5], v{t[2]}, v{t[3]}")
a(f"v_and_b32 v{t[3]}, 1, v{vg_}"); a(f"v_cmp_eq_u32 s[6:7], 0, v{t[3]}")
a(f"v_cmp_eq_u32 s[14:15], 0, v{t[2]}")
a(f"v_cndmask_b32 v{q_[8]}, 0, v{gaa}, s[4:5]"); a(f"v_cndmask_b32 v{q_[9]}, 0, v{gbb}, s[4:5]")
a(f"v_mul_f32 v{q_[10]}, {fl(0.25)}, v{gaa}"); a(f"v_mul_f32 v{q_[11]}, {fl(0.25)}, v{gbb}")
for lo in range(2):
    if lo: a(f"v_add_f32 v{ph}, v{ph}, v{st_}")
    a(f"v_cos_f32 v{c_}, v{ph}"); a(f"v_sin_f32 v{s__}, v{ph}")
    for ab in range(2):
        if lo == 0:
            if ab == 0:
                a(f"v_cndmask_b32 v{al}, 0, v{q_[10]}, s[14:15]"); a(f"v_cndmask_b32 v{be}, 0, v{q_[11]}, s[14:15]")
            else:
                a(f"v_cndmask_b32 v{al}, v{q_[10]}, 0, s[14:15]"); a(f"v_cndmask_b32 v{be}, v{q_[11]}, 0, s[14:15]")
            a(f"v_cndmask_b32 v{al}, v{q_[8+ab]}, v{al}, s[6:7]"); a(f"v_cndmask_b32 v{be}, 0, v{be}, s[6:7]")
            a(f"v_mul_f32 v{t[0]}, v{al}, v{c_}"); a(f"v_fmac_f32 v{t[0]}, v{be}, v{s__}")
            a(f"v_mul_f32 v{t[1]}, v{be}, v{c_}"); a(f"v_fma_f32 v{t[1]}, -v{al}, v{s__}, v{t[1]}")
            a(f"v_cvt_pk_bf16_f32 v{MA0+2*lo+ab}, v{t[0]}, v{t[1]}")
        else:
            a(f"v_mul_f32 v{t[0]}, v{q_[8+ab]}, v{c_}"); a(f"v_mul_f32 v{t[1]}, v{q_[8+ab]}, v{s__}")
            a(f"v_cvt_pk_bf16_f32 v{MA0+2*lo+ab}, v{t[0]}, -v{t[1]}")
a("s_branch L_p3b")
a.label("L_el")
a.hist = []
a(f"v_lshlrev_b32 v{vEa}, 6, v{vg}"); a(f"v_add_u32 v{vEa}, s29, v{vEa}")
a("s_mov_b32 exec_lo, s52"); a("s_mov_b32 exec_hi, s52")
for cc in range(2):
    for i in range(4):
        for ab in range(2):
            a(f"ds_read_b64 {vr(Wi(2*ab,cc,i),2)}, v{vEa} offset:{256*cc+16*i+8*ab}")
a("s_mov_b64 exec, -1")
a("s_branch L_elb")
a.label("L_sp")
a.hist = []
X = XP2
ts(3)
a("s_lshr_b32 s29, s2, 2"); a("s_lshl_b32 s10, s3, 1"); a("s_add_u32 s29, s29, s10"); a("s_sub_u32 s29, 16, s29")
for cc in range(2):
    a(f"s_sub_u32 s10, s29, {cc}"); a("s_and_b32 s10, s10, 15")
    a("s_lshr_b32 s11, s10, 1"); a("s_lshl_b32 s11, s11, 8"); a("s_and_b32 s10, s10, 1"); a("s_lshl_b32 s10, s10, 3"); a("s_add_u32 s10, s10, s11")
    a(f"v_lshlrev_b32 v{tpr[0][cc]}, 12, v{vg}"); a(f"v_add_u32 v{tpr[0][cc]}, s10, v{tpr[0][cc]}")
for k in range(8): a(f"v_mov_b32 v{TB+k}, 0")
a("s_mov_b32 exec_lo, 0x00010001"); a("s_mov_b32 exec_hi, 0x00010001")
for cc in range(2):
    for h in range(2):
        a(f"ds_read_b64 {vr(TB+4*cc+2*h,2)}, v{tpr[0][cc]} offset:{h*2048}")
a("s_mov_b32 s10, 0x80000000"); a("s_mov_b32 s11, 0x80008000")
a("s_waitcnt lgkmcnt(0)")
for k in range(8): a(f"v_xor_b32 v{TB+k}, s10, v{TB+k}")
a("s_mov_b64 exec, -1")
ts(4)
a("s_cmp_lg_u32 s2, 0")
a("s_cbranch_scc1 L_sp4")
def sp_body(mats):
    def acc(cc):
        a(f"{M16} {vr(X+8*cc,4)}, {vr(mats[cc],4)}, {vr(TB+4*cc,4)}, {vr(X+8*cc,4)}")
        a(f"{M16} {vr(X+8*cc+4,4)}, {vr(mats[cc]+4,4)}, {vr(TB+4*cc,4)}, {vr(X+8*cc+4,4)}")
    acc(0); acc(1)
    a("s_mov_b32 exec_lo, 0x00010001"); a("s_mov_b32 exec_hi, 0x00010001")
    for k in range(8): a(f"v_xor_b32 v{TB+k}, s11, v{TB+k}")
    a("s_mov_b64 exec, -1")
    wmul(0, 0); acc(0); acc(0)
    wmul(1, 0); acc(1); acc(1)
    wmul(0, 1)
    wmul(1, 1)
    ts(6)
    a("s_nop 7")
    a("s_branch L_spb")
YO = [PKD, PKD, PKD + 4, PKD + 4]
sp_body([M2, M2 + 8])
a.label("L_sp4")
a.hist = []
a("s_nop 1")
sp_body([M2 + 8, MX])

nv = (a.maxv + 1 + 7) // 8 * 8
out = "; gated_mix spectral gfnet: persistent MFMA FFT pipeline (generated by gen6.py)\n"
out += f"; @launch grid=(256,1,1) block=(512,1,1) lds={LDS_BYTES}\n"
out += '.amdgcn_target "amdgcn-amd-amdhsa--gfx950"\n.text\n'
out += f".globl {NAME}\n.p2align 8\n.type {NAME},@function\n" + a.text() + ".rept 96\n    s_endpgm\n.endr\nL_code_end:\n"
out += f""".section .rodata,"a"
.p2align 6
.amdhsa_kernel {NAME}
  .amdhsa_next_free_vgpr {nv}
  .amdhsa_next_free_sgpr {min(102, a.maxs + 1)}
  .amdhsa_accum_offset {nv}
  .amdhsa_group_segment_fixed_size 0
  .amdhsa_kernarg_size 80
  .amdhsa_user_sgpr_count 2
  .amdhsa_user_sgpr_kernarg_segment_ptr 1
  .amdhsa_system_sgpr_workgroup_id_x 1
  .amdhsa_float_denorm_mode_32 3
.end_amdhsa_kernel
"""
sys.stderr.write(f"vgpr {a.maxv+1} sgpr {a.maxs+1} lines {len(a.lines)} nops {a.nops}\n")
print(out)
```

```python
import sys
from asmlib import *
NAME = "gated_mix__spectral_gfnet__spectral_gfnet__prompt_kernel"
TSB = 16512
S_OFF = 0x500000
U_OFF = 0x500000
import sys as _s
for _o in _s.argv:
    if _o.startswith('soff'): S_OFF = int(_o[4:]) << 20
F1_OFF = 0xE20000
F2_OFF = 0xE80000
EP_OFF = 0xEF0000
WS_SIZE = 0xF00000
WBYTES = 2048 * 1026
M32 = "v_mfma_f32_32x32x16_bf16"
M16 = "v_mfma_f32_16x16x32_bf16"
OPT = set(sys.argv[1:])
ST = "stamps" in OPT
WSZ = 0x10000000 if ST else WS_SIZE
L_A = 0; L_W = 16384; L_P = L_W; WR = 6144; L_G = 65536; L_N = 65664; L_C = 65920; L_E = 65936; LDS_BYTES = 65936 + 4096
def optint(pfx, d):
    for o in OPT:
        if o.startswith(pfx) and o[len(pfx):].isdigit(): return int(o[len(pfx):])
    return d
SLEEP = optint("sl", 1); PFAT = optint("pf", 8); NWG = optint("nwg", 0)
SPIN_MAX = 400000
NTX = " nt" if "ntx" in OPT else ""
NTW = " nt" if "ntw" in OPT else ""
PLF = "sc0 sc1" if "psys" in OPT else ("sc1 nt" if "pnt" in OPT else ("sc0 sc1 nt" if "psysnt" in OPT else "sc1"))
FSF = "sc0 sc1" if "fsys" in OPT else "sc1"
SSF = "sc0 sc1" if "ssys" in OPT else ("sc1 nt" if "snt" in OPT else ("" if "swb" in OPT else "sc1"))
def lf(k):
    return "sc0 sc1" if k+"sys" in OPT else ("sc1 nt" if k+"nt" in OPT else ("sc0 sc1 nt" if k+"sn" in OPT else "sc1"))
SLF = lf("ls"); TLF = lf("lt")
OSF = " sc1" if "osc1" in OPT else (" nt" if "ont" in OPT else (" sc0 sc1" if "osys" in OPT else ""))
a = Asm()
def srd(d, base, size):
    a(f"s_mov_b32 s{d}, s{base}"); a(f"s_mov_b32 s{d+1}, s{base+1}")
    a(f"s_mov_b32 s{d+2}, {hx(size)}"); a(f"s_mov_b32 s{d+3}, 0x00020000")
NST = 14
AMX = optint("amx", -1)
def ts(k):
    if ST:
        a(f"s_memrealtime s[{60+2*k}:{61+2*k}]")
        a("s_waitcnt lgkmcnt(0)")
def amx_post(vt):
    if AMX < 0: return
    a("s_load_dwordx2 s[4:5], s[0:1], 64")
    a("s_waitcnt lgkmcnt(0)")
    a("s_mov_b32 s6, 256"); a("s_mov_b32 s7, 0x00020000")
    a(f"v_mov_b32 v{vt}, s{60+2*AMX}"); a("s_and_b32 s96, s2, 7"); a("s_lshl_b32 s96, s96, 2"); a(f"v_mov_b32 v{vt+1}, s96")
    a("s_cmp_eq_u32 s3, %d" % optint("aw", 0)); a("s_cselect_b32 exec_lo, 1, 0"); a("s_mov_b32 exec_hi, 0")
    a(f"buffer_atomic_umax v{vt}, v{vt+1}, s[4:7], 0 offen")
    a("s_mov_b64 exec, -1")
def stamp_end(vt):
    if not ST: return
    a("s_waitcnt vmcnt(0)")
    ts(NST - 1)
    for k in range(16): a(f"v_mov_b32 v{vt+k}, {'s%d' % (60+2*k) if k < NST else '0'}")
    a("s_lshl_b32 s96, s3, 6"); a("s_lshl_b32 s97, s2, 9"); a("s_add_u32 s96, s96, s97")
    a(f"s_add_u32 s96, s96, 0x3000000")
    a(f"v_mov_b32 v{vt+16}, 0")
    a("s_mov_b64 exec, 1")
    if AMX >= 0:
        a("s_lshl_b32 s96, s2, 3"); a("s_add_u32 s96, s96, s3"); a("s_cmp_lg_u32 s96, 72"); a("s_cbranch_scc1 L_end")
        a("s_load_dwordx2 s[4:5], s[0:1], 64")
        a("s_waitcnt lgkmcnt(0)")
        a("s_mov_b32 s6, 256"); a("s_mov_b32 s7, 0x00020000")
        a(f"buffer_load_dwordx4 {vr(vt,4)}, v{vt+16}, s[4:7], 0 offen sc1")
        a(f"buffer_load_dwordx4 {vr(vt+4,4)}, v{vt+16}, s[4:7], 0 offen offset:16 sc1")
        a("s_waitcnt vmcnt(0)")
        for k in range(1, 8): a(f"v_max_u32 v{vt}, v{vt}, v{vt+k}")
        a("s_nop 1")
        a(f"v_readfirstlane_b32 s4, v{vt}")
        a(f"s_sub_u32 s4, s4, s60"); a("s_mul_i32 s4, s4, 10"); a(f"s_add_u32 s4, s4, s{60+2*(NST-1)}")
        a.label("L_amp")
        a("s_memrealtime s[6:7]"); a("s_waitcnt lgkmcnt(0)")
        a("s_sub_u32 s5, s6, s4"); a("s_cmp_lt_i32 s5, 0"); a("s_cbranch_scc1 L_amp")
        return
    amp = optint("amp", -1)
    if amp >= 0:
        a("s_lshl_b32 s4, s2, 3"); a("s_add_u32 s4, s4, s3"); a("s_cmp_lg_u32 s4, %d" % (72 + optint("aw", 0))); a("s_cbranch_scc1 L_end")
        a(f"s_sub_u32 s4, s{60+2*amp}, s60"); a("s_mul_i32 s4, s4, 10"); a(f"s_add_u32 s4, s4, s{60+2*(NST-1)}")
        a.label("L_amp")
        a("s_memrealtime s[6:7]"); a("s_waitcnt lgkmcnt(0)")
        a("s_sub_u32 s5, s6, s4"); a("s_cmp_lt_i32 s5, 0"); a("s_cbranch_scc1 L_amp")
        return
    if "dbg" in OPT:
        a("s_load_dwordx2 s[4:5], s[0:1], 64")
        a("s_waitcnt lgkmcnt(0)")
        a("s_mov_b32 s6, 256"); a("s_mov_b32 s7, 0x00020000")
        a(f"v_not_b32 v{vt+14}, v{vt}")
        for k in range(15):
            a(f"buffer_atomic_umax v{vt+k}, v{vt+16}, s[4:7], 0 offen offset:{4*k}")
        return
    for q in range(4): a(f"buffer_store_dwordx4 {vr(vt+4*q,4)}, v{vt+16}, s[16:19], s96 offen offset:{16*q}")
def poll(lbl, vaddr, vtmp, soff, tag):
    a("s_mov_b32 s58, 0")
    a("s_mov_b32 exec_hi, 0")
    a.label(lbl)
    a(f"buffer_load_dword v{vtmp}, v{vaddr}, s[16:19], {soff} offen {PLF}")
    a("s_add_u32 s58, s58, 1")
    a("s_waitcnt vmcnt(0)")
    a(f"v_cmp_ne_u32 vcc, {tag}, v{vtmp}")
    a(f"s_cmp_gt_u32 s58, {SPIN_MAX}")
    a(f"s_cbranch_scc1 {lbl}_d")
    a("s_and_b64 exec, exec, vcc")
    a(f"s_cbranch_execz {lbl}_d")
    if SLEEP: a(f"s_sleep {SLEEP}")
    a(f"s_branch {lbl}")
    a.label(lbl + "_d")
    a("s_mov_b64 exec, -1")
def setflag(vtmp, soff, tag):
    a(f"v_mov_b32 v{vtmp}, {tag}"); a(f"v_lshlrev_b32 v{vtmp+1}, 2, v0")
    a("s_waitcnt vmcnt(0)")
    a("s_mov_b32 exec_hi, 0")
    a(f"buffer_store_dword v{vtmp}, v{vtmp+1}, s[16:19], {soff} offen {FSF}")
    a("s_mov_b32 exec_hi, -1")

a.label(NAME)
a.label("L_code_start")
a("s_cmp_ge_u32 s2, 256")
a("s_cbranch_scc1 L_end")
if ST:
    a("s_memrealtime s[60:61]")
    for k in range(1, NST): a(f"s_mov_b32 s{60+2*k}, 0")
a("s_load_dwordx4 s[4:7], s[0:1], 0")
a("s_load_dwordx2 s[20:21], s[0:1], 72")
a("s_load_dwordx2 s[28:29], s[0:1], 16")
a("s_load_dwordx8 s[88:95], s[0:1], 32")
a("s_getpc_b64 s[12:13]")
a("s_and_b32 s12, s12, 0xffffff00")
a("s_mov_b32 s14, L_code_end-L_code_start")
a("s_mov_b32 s15, 0x00020000")
a("v_lshlrev_b32 v6, 6, v0")
a("s_bfe_u32 s8, s2, 0x20003")
a("v_lshrrev_b32 v1, 6, v0")
a("v_cmp_eq_u32 vcc, s8, v1")
a("s_and_saveexec_b64 s[10:11], vcc")
a("s_cbranch_execz L_cp")
if "nocp" not in OPT: a("buffer_load_ubyte v5, v6, s[12:15], 0 offen")
a.label("L_cp")
a("s_mov_b64 exec, -1")
a("v_and_b32 v0, 63, v0")
a("v_readfirstlane_b32 s3, v1")
vl16 = 2; vn = 3; vL5 = 4; vE = 5
a(f"v_lshlrev_b32 v{vl16}, 4, v0")
a(f"v_and_b32 v{vn}, 31, v0")
a(f"v_lshrrev_b32 v{vL5}, 5, v0")
a("s_and_b32 s51, s3, 3")
a("s_lshl_b32 s22, s51, 9"); a("s_add_u32 s22, s22, s2"); a("s_lshl_b32 s22, s22, 11")
a("s_and_b32 s53, s2, 7"); a("s_lshl_b32 s53, s53, 5"); a("s_lshr_b32 s54, s2, 3"); a("s_add_u32 s53, s53, s54")
a("s_and_b32 s55, s2, 7"); a("s_mul_i32 s55, s55, 1026"); a("s_lshl_b32 s56, s54, 5"); a("s_add_u32 s55, s55, s56")
a("s_lshl_b32 s24, s51, 12")
a("s_lshl_b32 s57, s2, 10"); a(f"s_add_u32 s57, s57, {hx(F1_OFF)}")
a(f"s_mov_b32 s26, {hx(EP_OFF)}")
a("v_mov_b32 v7, 0")
a("s_waitcnt lgkmcnt(0)")
srd(16, 20, WSZ)
a(f"buffer_load_dword v{vE}, v7, s[16:19], s26 offen sc1")
for arr, p_ in enumerate((6, 28, 88, 90)): srd(32 + 4 * arr, p_, WBYTES)
def tags():
    a(f"v_readfirstlane_b32 s48, v{vE}")
    a("s_mul_i32 s48, s48, 0x9E3779B1"); a("s_add_u32 s48, s48, 0x7F4A7C15")
    a("s_xor_b32 s49, s48, 0x5bd1e995")
def arr_srd():
    a("s_cmp_eq_u32 s51, 0"); a("s_cselect_b32 s12, s32, s36"); a("s_cselect_b32 s13, s33, s37")
    a("s_cmp_eq_u32 s51, 2"); a("s_cselect_b32 s12, s40, s12"); a("s_cselect_b32 s13, s41, s13")
    a("s_cmp_eq_u32 s51, 3"); a("s_cselect_b32 s12, s44, s12"); a("s_cselect_b32 s13, s45, s13")
    a(f"s_mov_b32 s14, {hx(WBYTES)}"); a("s_mov_b32 s15, 0x00020000")
V2 = VAlloc(5)
vg = V2(); vc = V2(); vF = V2()
SC = V2(16, 4)
vS = V2(); vw1 = V2(); vr1 = V2(); vT = V2(); vTr = V2(); vWr = V2(); vw2 = V2(); vr2 = V2()
WW = V2(32, 4); TB = V2(8, 4)
Fr = V2(4, 4); Fm = V2(4, 4); M2 = V2(16, 4); MT = V2(16, 4); D = V2(16, 4)
assert V2.n <= 128, V2.n
vW = D; vEa = 2
Wi = lambda arr, cc, i: WW + 16 * cc + 8 * (arr >> 1) + 2 * i + (arr & 1)
MX = SC
L_GW = L_W + 16384
def p2_addr():
    t = [SC + k for k in range(6)]
    a(f"v_lshrrev_b32 v{vg}, 4, v0"); a(f"v_and_b32 v{vc}, 15, v0")
    a(f"v_lshrrev_b32 v{t[0]}, 2, v0"); a(f"v_mul_u32_u24 v{vT}, {16*TSB}, v{t[0]}")
    a(f"v_and_b32 v{t[0]}, 3, v0"); a(f"v_lshl_add_u32 v{vT}, v{t[0]}, 4, v{vT}")
    a("s_lshl_b32 s27, s3, 11")
    a(f"s_mul_i32 s23, s3, {WR}"); a(f"s_add_u32 s23, s23, {L_W}")
    a(f"v_bfe_u32 v{t[0]}, v0, 1, 4"); a(f"v_and_b32 v{t[1]}, 1, v0"); a(f"v_lshl_add_u32 v{t[0]}, v{t[0]}, 4, v{t[1]}")
    a(f"v_lshlrev_b32 v{vF}, 10, v{t[0]}")
    a("s_lshl_b32 s28, s3, 8")
    a("s_and_b32 s8, s2, 7"); a("s_lshl_b32 s8, s8, 7"); a("s_add_u32 s8, s8, s27"); a(f"s_add_u32 s8, s8, {hx(F1_OFF)}")
    a(f"v_lshlrev_b32 v{t[0]}, 4, v{vc}")
    a(f"v_lshl_or_b32 v{t[1]}, v{vg}, 9, v{t[0]}")
    a(f"v_add_u32 v{vw1}, s27, v{t[1]}"); a(f"v_add_u32 v{vw2}, s23, v{t[1]}")
    a(f"v_lshl_or_b32 v{vr1}, v{vg}, 12, v{t[0]}"); a(f"v_add_u32 v{vr1}, s28, v{vr1}")
    a(f"v_mul_u32_u24 v{vr2}, {2*WR}, v{vg}"); a(f"s_add_u32 s29, s28, {L_W}"); a(f"v_add3_u32 v{vr2}, v{vr2}, v{t[0]}, s29")
    if "x4" not in OPT:
        a(f"v_mul_u32_u24 v{vS}, {64*TSB}, v{vg}"); a(f"v_lshl_add_u32 v{vS}, v{vc}, 2, v{vS}")
    else:
        a(f"v_lshlrev_b32 v{t[0]}, 4, v{vg}"); a(f"v_lshl_or_b32 v{vS}, v{vc}, 11, v{t[0]}")
def p2_item():
    t = [SC + k for k in range(6)]
    a(f"s_mul_i32 s24, s3, {2*TSB}"); a("s_lshl_b32 s26, s53, 6"); a("s_add_u32 s24, s24, s26")
    a(f"s_add_u32 s26, s24, {TSB}")
    a(f"v_lshlrev_b32 v{t[0]}, 2, v{vc}"); a(f"v_lshl_or_b32 v{vTr}, v{vg}, 8, v{t[0]}"); a(f"v_add_u32 v{vTr}, s27, v{vTr}")
    a("s_and_b32 s29, s55, 15"); a("s_add_u32 s29, s29, s23")
    a(f"v_mul_u32_u24 v{vWr}, 192, v{vg}"); a(f"v_lshl_add_u32 v{vWr}, v{vc}, 1, v{vWr}"); a(f"v_add_u32 v{vWr}, s29, v{vWr}")
    a("s_lshl_b32 s30, s53, 15"); a("s_add_u32 s30, s30, s28"); a(f"s_add_u32 s30, s30, {hx(S_OFF)}"); a("s_add_u32 s31, s30, 4096")
    a("s_lshl_b32 s9, s53, 10"); a("s_lshl_b32 s10, s3, 7"); a("s_add_u32 s9, s9, s10"); a(f"s_add_u32 s9, s9, {hx(F2_OFF)}")
    a(f"s_mul_i32 s50, s3, {2*TSB}"); a("s_and_b32 s29, s2, 7"); a("s_lshl_b32 s29, s29, 4"); a("s_add_u32 s50, s50, s29"); a("s_add_u32 s50, s50, 16384")
    a("s_cmp_eq_u32 s54, 0"); a("s_cselect_b32 s52, 0x00010001, 0")
    a(f"v_bfe_u32 v{t[0]}, v0, 4, 1"); a(f"v_lshl_add_u32 v{t[0]}, v{vc}, 4, v{t[0]}"); a(f"v_mul_u32_u24 v{vEa}, {TSB}, v{t[0]}")
    a("s_cselect_b32 s59, -1, 0")
def p2_const(dozero=True, hooks=()):
    hooks = list(hooks)
    def hook():
        if hooks: hooks.pop(0)()
    t = [SC + k for k in range(6)]
    vlf = SC + 6; vkf = SC + 7; vc0 = SC + 8; vlc = SC + 10; FA = SC + 12
    a(f"v_cvt_f32_u32 v{vlf}, v{vc}")
    a(f"v_cvt_f32_u32 v{vkf}, v{vg}"); a(f"v_mul_f32 v{vkf}, 4.0, v{vkf}")
    a(f"v_cvt_f32_u32 v{vc0}, s3"); a(f"v_mul_f32 v{vc0}, {fl(1/128)}, v{vc0}")
    a(f"v_mul_f32 v{vlc}, v{vlf}, v{vc0}")
    a(f"v_fmamk_f32 v{vlc+1}, v{vlf}, {hx(f2u(1/256))}, v{vlc}")
    a(f"v_mul_f32 v{vlf}, {fl(1/16)}, v{vlf}")
    z = iter(range(32))
    def zero(n):
        if not dozero:
            if n == 1: a("s_nop 0")
            return
        for _ in range(n):
            k = next(z, None)
            if k is not None: a(f"v_mov_b32 v{WW+k}, 0")
    def mat(ang):
        a(f"v_cos_f32 v{t[3]}, v{ang}"); a(f"v_sin_f32 v{t[4]}, v{ang}")
    def matfin(Mr, Mm):
        a(f"v_cvt_pk_bf16_f32 v{Mr}, v{t[3]}, v{t[4]}")
        a(f"v_cvt_pk_bf16_f32 v{Mm}, -v{t[4]}, v{t[3]}")
        hook()
    hook(); hook()
    for i in range(4):
        if i: a(f"v_add_f32 v{vkf}, 1.0, v{vkf}")
        a(f"v_mul_f32 v{FA+i}, v{vkf}, v{vlf}")
        mat(FA + i); zero(1); matfin(Fr + i, Fm + i)
    for i in range(3, -1, -1):
        a(f"v_fma_f32 v{t[0]}, v{vkf}, v{vc0}, v{FA+i}")
        a(f"v_fmamk_f32 v{t[1]}, v{vkf}, {hx(f2u(1/256))}, v{t[0]}")
        mat(t[0]); a(f"v_add_f32 v{t[2]}, v{FA+i}, v{vlc}"); matfin(M2 + i, M2 + 4 + i)
        mat(t[1]); a(f"v_add_f32 v{t[5]}, v{FA+i}, v{vlc+1}"); matfin(M2 + 8 + i, M2 + 12 + i)
        mat(t[2]); a(f"v_subrev_f32 v{vkf}, 1.0, v{vkf}"); matfin(MT + i, MT + 4 + i)
        mat(t[5]); zero(1); matfin(MT + 8 + i, MT + 12 + i)
    zero(32)
    a(f"v_add_f32 v{vc0}, {fl(1/128)}, v{vc0}")
    a(f"v_mov_b32 v{SC+9}, v{vkf}")
    for i in range(4):
        a(f"v_add_f32 v{SC+9}, 1.0, v{SC+9}")
        a(f"v_fma_f32 v{FA+i}, v{SC+9}, v{vc0}, v{FA+i}")
    for i in range(4):
        a(f"v_cos_f32 v{SC+10}, v{FA+i}"); a(f"v_sin_f32 v{SC+11}, v{FA+i}"); a("s_nop 0")
        a(f"v_cvt_pk_bf16_f32 v{MX+i}, v{SC+10}, v{SC+11}")
        a(f"v_cvt_pk_bf16_f32 v{MX+4+i}, -v{SC+11}, v{SC+10}")
def wvoff(dst, t0, t1):
    a(f"v_mul_u32_u24 v{t0}, 43, v0"); a(f"v_lshrrev_b32 v{t0}, 7, v{t0}")
    a(f"v_mul_u32_u24 v{t1}, 3, v{t0}"); a(f"v_sub_u32 v{t1}, v0, v{t1}")
    a(f"v_mul_u32_u24 v{dst}, {16*8*1026}, v{t0}"); a(f"v_lshl_add_u32 v{dst}, v{t1}, 4, v{dst}")
def wdma_list(vreg, adds, ccs=(0, 1)):
    ops = []
    for add in adds:
        def head(add=add):
            a(f"s_add_u32 s6, s3, {add}")
            a(f"s_mul_i32 s4, s6, {2*8*1026}"); a("s_add_u32 s4, s4, s55"); a("s_and_b32 s4, s4, 0xfffffff0")
            a(f"s_add_u32 s5, s4, {8*1026}")
            a(f"s_mul_i32 s6, s6, {WR}")
        for arr in range(4):
            for cc in ccs:
                def op(arr=arr, cc=cc, head=head):
                    if arr == 0 and cc == ccs[0]: head()
                    a("s_mov_b32 exec_hi, 0xffff")
                    a(f"s_add_u32 m0, s6, {L_W + 1536*arr + 768*cc}")
                    a(f"buffer_load_dwordx4 v{vreg}, {sr(32+4*arr,4)}, {'s4' if cc == 0 else 's5'} offen lds")
                    a("s_mov_b32 exec_hi, -1")
                ops.append(op)
    return ops
a(f"s_mov_b32 s56, {8*1026}")
a("s_cmp_ge_u32 s3, 4")
a("s_cbranch_scc1 L_h")
a("s_setprio 2")
srd(8, 4, 2048 * 2048)
a("s_add_u32 s30, s22, 0x80000")
a("s_mov_b32 m0, s24")
a(f"buffer_load_dwordx4 v{vl16}, s[8:11], s22 offen{NTX} lds")
a(f"buffer_load_dwordx4 v{vl16}, s[8:11], s22 offen offset:1024{NTX} lds")
a("s_add_u32 m0, s24, 2048")
a(f"buffer_load_dwordx4 v{vl16}, s[8:11], s30 offen{NTX} lds")
a(f"buffer_load_dwordx4 v{vl16}, s[8:11], s30 offen offset:1024{NTX} lds")
V = VAlloc(6)
vb = V(); vo = V(); vkn = V(); vtr = V(); vpf = V(); vj = V(); vpw = V(4); t = [V() for _ in range(6)]
srd(8, 92, 2048)
a("s_lshl_b32 s30, s51, 9"); a(f"s_add_u32 m0, s30, {L_GW}")
a("s_mov_b32 exec_hi, 0")
a(f"buffer_load_dwordx4 v{vl16}, s[8:11], s30 offen lds")
a("s_mov_b32 exec_hi, -1")
arr_srd()
a(f"v_and_b32 v{t[0]}, 7, v0"); a("s_lshl_b32 s30, s2, 3"); a(f"v_add_u32 v{t[0]}, s30, v{t[0]}")
a(f"v_bfe_i32 v{t[1]}, v0, 4, 1"); a(f"v_xor_b32 v{t[0]}, v{t[0]}, v{t[1]}"); a(f"v_sub_u32 v{t[0]}, v{t[0]}, v{t[1]}")
a(f"v_and_b32 v{t[0]}, 2047, v{t[0]}"); a(f"v_mul_u32_u24 v{t[2]}, 1026, v{t[0]}")
a(f"v_bfe_u32 v{t[1]}, v0, 3, 1"); a(f"v_lshl_add_u32 v{t[2]}, v{t[1]}, 10, v{t[2]}")
a(f"buffer_load_ushort v{vj}, v{t[2]}, s[12:15], 0 offen")
a("s_and_b32 s30, s2, 7"); a("s_lshl_b32 s31, s54, 6"); a("s_add_u32 s30, s30, s31"); a("s_mul_i32 s30, s30, 1026")
a(f"v_lshrrev_b32 v{t[0]}, 3, v0"); a(f"v_mul_u32_u24 v{t[2]}, {8*1026}, v{t[0]}")
a(f"v_and_b32 v{t[1]}, 7, v0"); a(f"v_lshl_add_u32 v{vpf}, v{t[1]}, 7, v{t[2]}")
vjunk = 1
def prefetch():
    a(f"buffer_load_ubyte v{vjunk}, v{vpf}, s[12:15], s30 offen{NTW}")
    a(f"buffer_load_ubyte v{vjunk}, v{vpt}, s[12:15], s30 offen offset:1024{NTW}")
NPF = 2
vpt = V()
a(f"v_and_b32 v{t[1]}, 1, v0"); a(f"v_lshl_add_u32 v{vpt}, v{t[1]}, 4, v{t[2]}")
if PFAT == 0: prefetch()
CC = V(8, 4); SS = V(8, 4); SN = V(8, 4); XR = V(8, 4); XI = V(8, 4)
BA = V(24, 4); BB = V(24, 4); TCh = V(8); TSh = V(8)
D1r = BA + 8; D1i = BB + 8; D2r = BA; D2i = BB
TC = lambda k: BA + k if k < 8 else TCh + k - 8
TS_ = lambda k: BB + k if k < 8 else TSh + k - 8
assert V.n <= 128, V.n
a(f"v_and_b32 v{t[0]}, 7, v0"); a(f"v_bfe_u32 v{t[1]}, v0, 3, 2")
a(f"v_lshl_or_b32 v{vkn}, v{t[0]}, 2, v{t[1]}")
a(f"v_cvt_f32_u32 v{vb}, v{vkn}"); a(f"v_cvt_f32_u32 v{vo}, v{vL5}")
a(f"v_mul_f32 v{vb}, {fl(1/32)}, v{vb}"); a(f"v_mul_f32 v{vo}, 4.0, v{vo}"); a(f"v_mul_f32 v{vo}, v{vb}, v{vo}")
for i in range(0, 16, 2):
    for e in range(2):
        kc = 8 * ((i + e) // 4) + (i + e) % 4
        if kc == 0: a(f"v_mov_b32 v{t[e]}, v{vo}")
        else: a(f"v_fmamk_f32 v{t[e]}, v{vb}, {hx(f2u(float(kc)))}, v{vo}")
    a(f"v_cos_f32 v{t[2]}, v{t[0]}"); a(f"v_cos_f32 v{t[3]}, v{t[1]}")
    a(f"v_sin_f32 v{t[4]}, v{t[0]}"); a(f"v_sin_f32 v{t[5]}, v{t[1]}")
    a(f"v_mul_f32 v{t[0]}, {fl(1/32)}, v{t[0]}"); a(f"v_mul_f32 v{t[1]}, {fl(1/32)}, v{t[1]}")
    a(f"v_cvt_pk_bf16_f32 v{CC+i//2}, v{t[2]}, v{t[3]}")
    a(f"v_cvt_pk_bf16_f32 v{SS+i//2}, v{t[4]}, v{t[5]}")
    a(f"v_cvt_pk_bf16_f32 v{SN+i//2}, -v{t[4]}, -v{t[5]}")
    a(f"v_cos_f32 v{TC(i)}, v{t[0]}"); a(f"v_cos_f32 v{TC(i+1)}, v{t[1]}")
    a(f"v_sin_f32 v{TS_(i)}, v{t[0]}"); a(f"v_sin_f32 v{TS_(i+1)}, v{t[1]}")
    if PFAT == i // 2 + 1: prefetch()
a(f"v_lshlrev_b32 v{vtr}, 8, v{vL5}")
a(f"v_bfe_u32 v{t[0]}, v0, 2, 2"); a(f"v_lshl_or_b32 v{vtr}, v{t[0]}, 6, v{vtr}")
a(f"v_bfe_u32 v{t[0]}, v0, 4, 1"); a(f"v_lshl_or_b32 v{vtr}, v{t[0]}, 5, v{vtr}")
a(f"v_and_b32 v{t[0]}, 3, v0"); a(f"v_lshl_or_b32 v{vtr}, v{t[0]}, 3, v{vtr}")
a(f"v_add_u32 v{vtr}, s24, v{vtr}")
a(f"v_and_b32 v{t[0]}, 7, v0"); a(f"v_bfe_u32 v{t[1]}, v0, 3, 2"); a(f"v_lshlrev_b32 v{t[1]}, 1, v{t[1]}")
a(f"v_xor_b32 v{t[0]}, v{t[0]}, v{t[1]}"); a(f"v_xor_b32 v{t[0]}, v{t[0]}, v{vL5}")
a(f"v_lshlrev_b32 v{t[0]}, 4, v{t[0]}")
a(f"v_lshl_or_b32 v{vpw}, v{vkn}, 7, v{t[0]}")
a(f"s_add_u32 s26, s24, {L_P}")
a(f"v_add_u32 v{vpw}, s26, v{vpw}")
for c in range(1, 4): a(f"v_xor_b32 v{vpw+c}, {32*c}, v{vpw}")
vet = vb
a(f"v_and_b32 v{t[0]}, 7, v0"); a(f"v_and_b32 v{t[1]}, 16, v0"); a(f"v_lshl_or_b32 v{t[0]}, v{t[0]}, 1, v{t[1]}")
a(f"v_bfe_u32 v{t[1]}, v0, 3, 1"); a(f"v_lshl_or_b32 v{t[0]}, v{t[1]}, 7, v{t[0]}")
a("s_lshl_b32 s30, s51, 5"); a(f"s_add_u32 s30, s30, {L_N}"); a(f"v_add_u32 v{vet}, s30, v{t[0]}")
ts(1)
a(f"s_waitcnt vmcnt({NPF if PFAT <= 8 else 0})")
ts(2)
tags()
a(f"ds_write_b16 v{vet}, v{vj}")
for h in range(2):
    for r, X in ((0, XR), (1, XI)):
        for tt in range(2):
            a(f"ds_read_b64_tr_b16 {vr(X+4*h+2*tt,2)}, v{vtr} offset:{r*2048+h*1024+tt*512}")
a("s_waitcnt lgkmcnt(8)")
a("s_barrier")
def cpass(R, I, Dr, Di, h, first):
    c0 = "0" if first else vr(Dr, 16); c1 = "0" if first else vr(Di, 16)
    a(f"{M32} {vr(Dr,16)}, {vr(R+4*h,4)}, {vr(CC+4*h,4)}, {c0}")
    a(f"{M32} {vr(Di,16)}, {vr(I+4*h,4)}, {vr(CC+4*h,4)}, {c1}")
    a(f"{M32} {vr(Dr,16)}, {vr(I+4*h,4)}, {vr(SS+4*h,4)}, {vr(Dr,16)}")
    a(f"{M32} {vr(Di,16)}, {vr(R+4*h,4)}, {vr(SN+4*h,4)}, {vr(Di,16)}")
a("s_waitcnt lgkmcnt(4)")
cpass(XR, XI, D1r, D1i, 0, True)
a("s_waitcnt lgkmcnt(0)")
cpass(XR, XI, D1r, D1i, 1, False)
for h in range(2):
    for i in range(8 * h, 8 * h + 8, 2):
        for e in range(2):
            k = i + e
            a(f"v_mul_f32 v{t[e]}, v{D1r+k}, v{TC(k)}")
            a(f"v_mul_f32 v{t[2+e]}, v{D1i+k}, v{TC(k)}")
            a(f"v_fmac_f32 v{t[e]}, v{D1i+k}, v{TS_(k)}")
            a(f"v_fma_f32 v{t[2+e]}, -v{D1r+k}, v{TS_(k)}, v{t[2+e]}")
        a(f"v_cvt_pk_bf16_f32 v{XR+i//2}, v{t[0]}, v{t[1]}")
        a(f"v_cvt_pk_bf16_f32 v{XI+i//2}, v{t[2]}, v{t[3]}")
    cpass(XR, XI, D2r, D2i, h, h == 0)
PK = CC
for c in range(4):
    for e in range(4):
        a(f"v_cvt_pk_bf16_f32 v{PK+4*c+e}, v{D2r+4*c+e}, v{D2i+4*c+e}")
    a(f"ds_write_b128 v{vpw+c}, {vr(PK+4*c,4)}")
a("s_waitcnt lgkmcnt(0)")
ts(3)
a("s_barrier")
a("s_setprio 0")
p2_addr()
p2_item()
wvoff(vW, SC, SC + 1)
ts(4)
a("s_barrier")
ts(5)
EARLY = "early" in OPT
SPLIT = "split" in OPT
p2_const(hooks=wdma_list(vW, [0, 4], (0,) if SPLIT else (0, 1)))
ts(6)
a("s_branch L_p2")
a.label("L_h")
a.hist = []
V = VAlloc(6)
t = [V() for _ in range(8)]
XN = V(16, 4); GW = V(8, 4)
def prewrite():
    if "pw" in OPT or "pws" in OPT:
        a(f"v_lshlrev_b32 v{t[0]}, 7, v0")
        a("s_lshl_b32 s30, s53, 15"); a("s_lshl_b32 s31, s51, 13"); a("s_add_u32 s30, s30, s31"); a(f"s_add_u32 s30, s30, {hx(S_OFF)}")
    if "pw" in OPT or "pwt" in OPT:
        a(f"v_and_b32 v{t[1]}, 3, v0"); a(f"v_lshlrev_b32 v{t[1]}, 7, v{t[1]}"); a(f"v_bfe_u32 v{t[2]}, v0, 2, 3"); a(f"v_lshl_or_b32 v{t[1]}, v{t[2]}, 11, v{t[1]}")
        a(f"s_mul_i32 s31, s2, {TSB}"); a("s_lshl_b32 s29, s51, 9"); a("s_add_u32 s31, s31, s29")
        a("s_mov_b32 exec_hi, 0")
        a(f"buffer_store_dword v{t[1]}, v{t[1]}, s[16:19], s31 offen sc1")
        a("s_mov_b32 exec_hi, -1")
    if "pw" in OPT or "pws" in OPT:
        a(f"buffer_store_dword v{t[0]}, v{t[0]}, s[16:19], s30 offen sc1")
NPW = 2 if "pw" in OPT else (1 if ("pws" in OPT or "pwt" in OPT) else 0)
if "pwl" not in OPT: prewrite()
vnat = V(); a(f"v_add_u32 v{vnat}, s24, v{vl16}")
MA = V(4, 4)
DMB = V(48, 4)
vu = DMB; vA = DMB + 1; vB1 = DMB + 2; vB2 = DMB + 3; vsg = DMB + 4
a(f"v_mov_b32 v{t[3]}, {L_C}"); a(f"v_mov_b32 v{t[4]}, 0")
a(f"ds_write_b32 v{t[3]}, v{t[4]}")
a(f"v_bfe_u32 v{t[0]}, v0, 3, 1"); a(f"v_bfe_u32 v{t[1]}, v0, 1, 1")
a(f"v_lshl_or_b32 v{t[0]}, v{t[0]}, 1, v{t[1]}")
a(f"v_and_or_b32 v{vu}, v0, 4, v{t[0]}")
a(f"v_cvt_f32_u32 v{vu}, v{vu}")
a(f"v_cvt_f32_u32 v{vsg}, v{vL5}")
a(f"v_fma_f32 v{vsg}, v{vsg}, -2.0, 1.0")
a(f"v_mul_f32 v{vA}, v{vu}, v{vsg}")
a(f"v_mul_f32 v{vA}, {fl(0.125)}, v{vA}")
a(f"v_and_b32 v{t[0]}, 1, v0"); a(f"v_cvt_f32_u32 v{t[0]}, v{t[0]}")
a(f"v_mul_f32 v{vB1}, v{t[0]}, v{vsg}"); a(f"v_mul_f32 v{vB1}, {fl(0.25)}, v{vB1}")
a(f"v_cvt_f32_u32 v{t[1]}, s2"); a(f"v_mul_f32 v{t[1]}, {fl(1/256)}, v{t[1]}")
a(f"v_fmac_f32 v{vB1}, v{t[1]}, v{vA}")
a(f"v_add_f32 v{vB2}, {fl(0.25)}, v{vB1}")
for pp in range(4):
    if pp == 0: a(f"v_mov_b32 v{t[0]}, v{vB1}")
    else: a(f"v_fmamk_f32 v{t[0]}, v{vA}, {hx(f2u(2.0*pp))}, v{vB1}")
    a(f"v_fmamk_f32 v{t[1]}, v{vA}, {hx(f2u(2.0*pp+1))}, v{vB2}")
    a(f"v_cos_f32 v{t[2]}, v{t[0]}"); a(f"v_cos_f32 v{t[3]}, v{t[1]}")
    a(f"v_sin_f32 v{t[4]}, v{t[0]}"); a(f"v_sin_f32 v{t[5]}, v{t[1]}")
    a(f"v_add_f32 v{t[2]}, v{t[2]}, v{t[3]}")
    a(f"v_add_f32 v{t[4]}, v{t[4]}, v{t[5]}")
    a(f"v_cvt_pk_bf16_f32 v{MA+pp}, v{t[2]}, v{t[4]}")
vmr = V(5); vk = DMB + 5; vneg = DMB + 6
a("s_lshl_b32 s30, s51, 7")
a(f"v_lshlrev_b32 v{t[0]}, 2, v{vn}")
a(f"v_sub_u32 v{vneg}, 0, v{vL5}")
for q in range(5):
    if q < 4: a(f"v_add3_u32 v{vk}, v{t[0]}, s30, {q}")
    else: a(f"v_add_u32 v{vk}, 512, v{t[0]}")
    a(f"v_xor_b32 v{vk}, v{vk}, v{vneg}"); a(f"v_add_u32 v{vk}, v{vk}, v{vL5}")
    a(f"v_bfe_u32 v{t[1]}, v{vk}, 5, 5")
    a(f"v_bfe_u32 v{t[2]}, v{vk}, 7, 3")
    a(f"v_xor_b32 v{t[3]}, v{vk}, v{t[1]}")
    a(f"v_and_b32 v{t[3]}, 3, v{t[3]}")
    a(f"v_bfe_u32 v{t[4]}, v{vk}, 4, 1")
    a(f"v_lshl_or_b32 v{t[3]}, v{t[3]}, 1, v{t[4]}")
    a(f"v_xor_b32 v{t[3]}, v{t[3]}, v{t[2]}")
    a(f"v_and_b32 v{t[4]}, 12, v{vk}")
    a(f"v_lshl_or_b32 v{t[4]}, v{t[3]}, 4, v{t[4]}")
    a(f"v_lshl_or_b32 v{vmr+q}, v{t[1]}, 7, v{t[4]}")
vts = V(); veo = V(); vet2 = V(); vsig = V(); ves = V()
a(f"v_lshlrev_b32 v{t[0]}, 13, v{vL5}"); a(f"v_lshl_or_b32 v{vts}, v{vn}, 4, v{t[0]}")
EV = DMB + 8
a(f"v_and_b32 v{t[0]}, 7, v0"); a(f"v_bfe_u32 v{t[1]}, v0, 3, 1")
a(f"v_lshlrev_b32 v{t[2]}, 3, v{t[1]}"); a(f"v_lshl_or_b32 v{ves}, v{t[0]}, 4, v{t[2]}")
a(f"v_and_b32 v{t[2]}, 3, v0"); a(f"v_cmp_eq_u32 vcc, 0, v{t[2]}")
a(f"v_lshrrev_b32 v{t[3]}, 2, v{t[0]}")
a(f"v_cvt_f32_u32 v{t[4]}, v{t[1]}"); a(f"v_fma_f32 v{t[4]}, v{t[4]}, -2.0, 1.0")
a(f"v_cndmask_b32 v{t[3]}, v{t[3]}, v{t[1]}, vcc")
a(f"v_cndmask_b32 v{vsig}, 0, v{t[4]}, vcc")
a(f"v_lshlrev_b32 v{t[0]}, 1, v{t[0]}"); a(f"v_lshl_or_b32 v{t[0]}, v{t[1]}, 6, v{t[0]}"); a(f"v_lshl_or_b32 v{t[0]}, v{t[3]}, 7, v{t[0]}")
a(f"v_add_u32 v{veo}, {L_N}, v{t[0]}"); a(f"v_xor_b32 v{vet2}, 64, v{veo}")
for k in range(8): a(f"v_mov_b32 v{EV+k}, 0")
a(f"s_mul_i32 s8, s2, {TSB}")
a("s_lshl_b32 s9, s51, 9"); a("s_add_u32 s9, s9, s8"); a("s_add_u32 s10, s9, 4096")
a("s_add_u32 s8, s8, 16384")
a("s_mov_b32 s11, 0xffff0000")
acc = V(4, 4); ones = V(); MB = XN; MB4 = GW
a(f"v_mov_b32 v{ones}, 0x3f803f80")
a(f"v_mov_b32 v{acc}, 0"); a(f"v_mov_b32 v{acc+2}, 0")
vWh = V()
wvoff(vWh, t[0], t[1])
assert V.n <= 128, V.n
a("s_waitcnt lgkmcnt(0)")
if "pwl" in OPT: prewrite()
ts(1)
if EARLY and "e0" in OPT:
    for op in wdma_list(vWh, [0]): op()
a("s_barrier")
for r in range(2):
    for q in range(2):
        a(f"ds_read_b128 {vr(XN+8*r+4*q,4)}, v{vnat} offset:{r*2048+q*1024}")
a(f"ds_read_b128 {vr(GW,4)}, v{vl16} offset:{L_GW}")
a(f"ds_read_b128 {vr(GW+4,4)}, v{vl16} offset:{L_GW+1024}")
for k in range(4):
    a(f"ds_read_u16_d16_hi v{EV+k}, v{veo} offset:{16*k}")
    a(f"ds_read_u16_d16_hi v{EV+4+k}, v{vet2} offset:{16*k}")
a("s_waitcnt lgkmcnt(0)")
a(f"v_add_f32 v{EV+8}, v{EV}, v{EV+1}"); a(f"v_sub_f32 v{EV+9}, v{EV+2}, v{EV+3}")
a(f"v_add_f32 v{EV+4}, v{EV+4}, v{EV+5}"); a(f"v_sub_f32 v{EV+6}, v{EV+6}, v{EV+7}")
a(f"v_fma_f32 v{EV+8}, -v{vsig}, v{EV+6}, v{EV+8}"); a(f"v_fmac_f32 v{EV+9}, v{vsig}, v{EV+4}")
a(f"s_waitcnt vmcnt({NPW})")
tags()
a("s_cmp_eq_u32 s51, 1"); a("s_cselect_b32 exec_lo, 0xffff, 0"); a("s_mov_b32 exec_hi, 0")
a(f"buffer_store_dwordx2 {vr(EV+8,2)}, v{ves}, s[16:19], s8 offen sc1")
if "nopw" not in OPT:
    a("s_cselect_b32 exec_lo, -1, 0"); a("s_cselect_b32 exec_hi, -1, 0")
    for k in range(4): a(f"v_mov_b32 v{EV+k}, s49")
    a(f"buffer_store_dwordx4 {vr(EV,4)}, v{vl16}, s[16:19], s57 offen sc1")
a("s_mov_b64 exec, -1")
ts(2)
if "pt2" in OPT:
    a(f"v_lshlrev_b32 v{t[0]}, 7, v0")
    a("s_lshl_b32 s30, s53, 15"); a("s_lshl_b32 s31, s51, 13"); a("s_add_u32 s30, s30, s31"); a(f"s_add_u32 s30, s30, {hx(S_OFF)}")
    a(f"buffer_load_ubyte v1, v{t[0]}, s[16:19], s30 offen")
eops = wdma_list(vWh, [0]) if (EARLY and "e0" not in OPT) else []
for j in range(8):
    if eops: eops.pop(0)()
    a(f"v_lshlrev_b32 v{t[6]}, 16, v{GW+j}")
    a(f"v_and_b32 v{t[7]}, s11, v{GW+j}")
    for r in range(2):
        a(f"v_lshlrev_b32 v{t[2*r]}, 16, v{XN+8*r+j}")
        a(f"v_and_b32 v{t[2*r+1]}, s11, v{XN+8*r+j}")
    for r in range(2):
        a(f"v_mul_f32 v{t[2*r]}, v{t[2*r]}, v{t[6]}")
        a(f"v_mul_f32 v{t[2*r+1]}, v{t[2*r+1]}, v{t[7]}")
    for r in range(2): a(f"v_cvt_pk_bf16_f32 v{t[4+r]}, v{t[2*r]}, v{t[2*r+1]}")
    for r in range(2): a(f"v_dot2_f32_bf16 v{acc+2*r}, v{t[4+r]}, v{ones}, v{acc+2*r}")
ts(3)
a("s_setprio 2")
a("s_barrier")
ts(4)
o = L_P // 256
a(f"ds_read2st64_b32 {vr(MB4,2)}, v{vmr+4} offset0:{o} offset1:{o+16}")
a(f"ds_read2st64_b32 {vr(MB4+2,2)}, v{vmr+4} offset0:{o+32} offset1:{o+48}")
for q in range(4):
    a(f"ds_read2st64_b32 {vr(MB+4*q,2)}, v{vmr+q} offset0:{o} offset1:{o+16}")
    a(f"ds_read2st64_b32 {vr(MB+4*q+2,2)}, v{vmr+q} offset0:{o+32} offset1:{o+48}")
DN = DMB; DM = [DMB + 8 + 8 * q for q in range(4)]
a("s_waitcnt lgkmcnt(8)")
a(f"{M32} {vr(DN,16)}, {vr(MA,4)}, {vr(MB4,4)}, 0")
for q in range(4):
    a(f"s_waitcnt lgkmcnt({6-2*q})")
    a(f"{M32} {vr(DM[q],16)}, {vr(MA,4)}, {vr(MB+4*q,4)}, 0")
a("s_cmp_eq_u32 s51, 0"); a("s_cselect_b32 exec_lo, 1, 0"); a("s_cselect_b32 exec_hi, 1, 0")
a(f"v_sub_f32 v{DM[0]}, v{DM[0]}, v{DN+1}"); a(f"v_add_f32 v{DM[0]+1}, v{DM[0]+1}, v{DN}")
a("s_mov_b32 exec_lo, 0")
for k in range(2, 8): a(f"v_mov_b32 v{DM[0]+k}, v{DN+k}")
a("s_mov_b64 exec, -1")
OUT = MB
for s_ in range(4):
    for q in range(4):
        a(f"v_cvt_pk_bf16_f32 v{OUT+4*s_+q}, v{DM[q]+2*s_}, v{DM[q]+2*s_+1}")
    a(f"buffer_store_dwordx4 {vr(OUT+4*s_,4)}, v{vts}, s[16:19], {'s9' if s_ < 2 else 's10'} offen offset:{(s_&1)*2048} sc1")
a("s_barrier")
ts(5)
for dpp in ("row_shr:1", "row_shr:2", "row_shr:4", "row_shr:8"):
    for r in range(2):
        a(f"v_add_f32_dpp v{acc+2*r}, v{acc+2*r}, v{acc+2*r} {dpp} row_mask:0xf bank_mask:0xf bound_ctrl:0")
for dpp, rm in (("row_bcast:15", "0xa"), ("row_bcast:31", "0xc")):
    for r in range(2):
        a(f"v_add_f32_dpp v{acc+2*r}, v{acc+2*r}, v{acc+2*r} {dpp} row_mask:{rm} bank_mask:0xf")
a(f"v_cvt_pk_bf16_f32 v{t[0]}, v{acc}, v{acc+2}")
a(f"v_lshlrev_b32 v{t[1]}, 16, v{t[0]}")
a(f"v_and_b32 v{t[2]}, s11, v{t[0]}")
for r in range(2): a(f"v_mul_f32 v{t[1+r]}, {hx(f2u(-1.4426950408889634))}, v{t[1+r]}")
for r in range(2): a(f"v_exp_f32 v{t[1+r]}, v{t[1+r]}")
for r in range(2): a(f"v_add_f32 v{t[1+r]}, 1.0, v{t[1+r]}")
for r in range(2): a(f"v_rcp_f32 v{t[1+r]}, v{t[1+r]}")
a(f"v_cvt_pk_bf16_f32 v{t[0]}, v{t[1]}, v{t[2]}")
a(f"v_lshlrev_b32 v{acc}, 16, v{t[0]}")
a(f"v_and_b32 v{acc+2}, s11, v{t[0]}")
a(f"v_sub_f32 v{t[1]}, 1.0, v{acc}")
a(f"v_sub_f32 v{t[2]}, 1.0, v{acc+2}")
a(f"v_cvt_pk_bf16_f32 v{t[0]}, v{t[1]}, v{t[2]}")
a(f"v_lshlrev_b32 v{acc+1}, 16, v{t[0]}")
a(f"v_and_b32 v{acc+3}, s11, v{t[0]}")
for r in range(4): a(f"v_mul_f32 v{acc+r}, {hx(f2u(2.0**-22))}, v{acc+r}")
a("s_lshl_b32 s30, s51, 4"); a(f"s_add_u32 s30, s30, {L_G}")
a(f"v_mov_b32 v{t[3]}, s30")
a("s_mov_b32 exec_lo, 0"); a("s_mov_b32 exec_hi, 0x80000000")
a(f"ds_write_b128 v{t[3]}, {vr(acc,4)}")
a("s_mov_b64 exec, -1")
a(f"v_mov_b32 v{t[3]}, {L_C}"); a(f"v_mov_b32 v{t[4]}, 1")
for k in range(4): a(f"v_mov_b32 v{DMB+k}, s48")
a("s_mov_b64 exec, 1")
a("s_waitcnt vmcnt(0)")
a(f"ds_add_rtn_u32 v{t[5]}, v{t[3]}, v{t[4]}")
a("s_waitcnt lgkmcnt(0)")
a(f"v_readfirstlane_b32 s30, v{t[5]}")
a("s_cmp_eq_u32 s30, 3"); a("s_cselect_b32 exec_lo, -1, 0"); a("s_cselect_b32 exec_hi, -1, 0")
a(f"buffer_store_dwordx4 {vr(DMB,4)}, v{vl16}, s[16:19], s57 offen {FSF}")
a("s_mov_b64 exec, -1")
def stouch(vt):
    a(f"v_lshlrev_b32 v{vt}, 7, v0")
    a(f"s_mul_i32 s30, s2, {TSB}"); a("s_lshl_b32 s31, s51, 12"); a("s_add_u32 s30, s30, s31"); a(f"s_add_u32 s30, s30, {hx(U_OFF)}")
    a("s_mov_b32 exec_hi, 0")
    a(f"buffer_load_ubyte v1, v{vt}, s[16:19], s30 offen")
    a("s_mov_b32 exec_hi, -1")
if "pt1" in OPT: stouch(t[0])
a("s_setprio 0")
ts(6)
p2_addr(); p2_item(); wvoff(vW, SC, SC + 1); p2_const()
if optint("pa", 0): a(f"s_sleep {optint('pa', 0)}")
a.label("L_p2")
a.hist = []
t = [SC + k for k in range(6)]
ts(7)
if "pw3" in OPT:
    a(f"v_lshrrev_b32 v{TB}, 2, v0"); a(f"v_and_b32 v{TB+1}, 3, v0"); a(f"v_lshlrev_b32 v{TB+1}, 6, v{TB+1}"); a(f"v_lshl_or_b32 v{TB+2}, v{TB}, 11, v{TB+1}")
    a(f"buffer_store_dword v{TB+2}, v{TB+2}, s[16:19], s30 offen sc1")
poll("L_poll1", vF, TB, "s8", "s48")
def f2pre():
    if "nopw" in OPT: return
    a(f"v_mov_b32 v{TB}, s48"); a(f"v_lshlrev_b32 v{TB+1}, 2, v0")
    a("s_mov_b32 exec_hi, 0")
    a(f"buffer_store_dword v{TB}, v{TB+1}, s[16:19], s9 offen sc1")
    a("s_mov_b32 exec_hi, -1")
ts(8)
if "st2" in OPT: a("s_add_u32 s70, s60, s58")
a.label("L_p2c")
a("s_setprio 1")
a("s_mov_b32 m0, s27")
a(f"buffer_load_dwordx4 v{vT}, s[16:19], s24 offen {TLF} lds")
a("s_add_u32 m0, s27, 1024")
a(f"buffer_load_dwordx4 v{vT}, s[16:19], s26 offen {TLF} lds")
a("s_lshl_b32 s29, s3, 9"); a(f"s_add_u32 s29, s29, {L_E}"); a("s_mov_b32 m0, s29")
a("s_mov_b32 exec_lo, s59"); a("s_mov_b32 exec_hi, 0")
a(f"buffer_load_dwordx4 v{vEa}, s[16:19], s50 offen sc1 lds")
a("s_mov_b64 exec, -1")
PW2 = "pw2" in OPT or "pw3" in OPT
def pw2():
    a(f"v_lshrrev_b32 v{TB}, 2, v0"); a(f"v_and_b32 v{TB+1}, 3, v0"); a(f"v_lshlrev_b32 v{TB+1}, 6, v{TB+1}"); a(f"v_lshl_or_b32 v{TB}, v{TB}, 11, v{TB+1}")
    if "pwh" in OPT: a("s_mov_b32 exec_lo, 0x55555555"); a("s_mov_b32 exec_hi, 0x55555555")
    a(f"buffer_store_dword v{TB}, v{TB}, s[16:19], s30 offen sc1")
    if "pwh" in OPT: a("s_mov_b64 exec, -1")
if "pw2" in OPT: pw2()
if SPLIT:
    for op in wdma_list(vW, [0], (1,)): op()
def wread(cc):
    a("s_not_b32 exec_lo, s52"); a("s_not_b32 exec_hi, s52")
    for arr in range(4):
        for i in range(4):
            a(f"ds_read_u16_d16_hi v{Wi(arr,cc,i)}, v{vWr} offset:{1536*arr+768*cc+48*i}")
    a("s_mov_b64 exec, -1")
a("s_barrier")
if "ptw" in OPT:
    a(f"v_lshrrev_b32 v{TB}, 1, v0"); a(f"v_and_b32 v{TB+1}, 1, v0"); a(f"v_lshlrev_b32 v{TB+1}, 7, v{TB+1}"); a(f"v_lshl_or_b32 v{TB}, v{TB}, 11, v{TB+1}")
    a("s_mov_b32 exec_hi, 0")
    a(f"buffer_load_ubyte v1, v{TB}, s[16:19], s30 offen")
    a("s_mov_b32 exec_hi, -1")
wread(0)
if not SPLIT: wread(1)
PKD = SC + 8
a(f"s_waitcnt vmcnt({4 if SPLIT else (1 if ('pw2' in OPT or 'ptw' in OPT) else 0)})")
if ST: a("s_waitcnt lgkmcnt(0)")
ts(9)
def pt9():
    a(f"v_lshlrev_b32 v{D}, 7, v0")
    a(f"s_mul_i32 s30, s2, {TSB}"); a("s_add_u32 s30, s30, s27"); a(f"s_add_u32 s30, s30, {hx(U_OFF)}")
    a("s_mov_b32 exec_lo, 0xffff"); a("s_mov_b32 exec_hi, 0")
    a(f"buffer_load_ubyte v1, v{D}, s[16:19], s30 offen")
    a("s_mov_b64 exec, -1")
if "pt9" in OPT: pt9()
a(f"ds_read2_b32 {vr(TB,2)}, v{vTr} offset0:0 offset1:16")
a(f"ds_read2_b32 {vr(TB+2,2)}, v{vTr} offset0:32 offset1:48")
a(f"v_add_u32 v{vTr}, 1024, v{vTr}")
a(f"ds_read2_b32 {vr(TB+4,2)}, v{vTr} offset0:0 offset1:16")
a(f"ds_read2_b32 {vr(TB+6,2)}, v{vTr} offset0:32 offset1:48")
a.label("L_p2e")
for bb in range(2):
    a(f"s_waitcnt lgkmcnt({2-2*bb})")
    a(f"{M16} {vr(D+8*bb,4)}, {vr(Fr,4)}, {vr(TB+4*bb,4)}, 0")
    a(f"{M16} {vr(D+8*bb+4,4)}, {vr(Fm,4)}, {vr(TB+4*bb,4)}, 0")
for ip in range(2):
    for cc in range(2):
        for bb in range(2):
            i = 2 * ip + cc
            a(f"v_cvt_pk_bf16_f32 v{PKD+4*ip+2*cc+bb}, v{D+8*bb+i}, v{D+8*bb+4+i}")
    a(f"ds_write_b128 v{vw1}, {vr(PKD+4*ip,4)} offset:{ip*256}")
a("s_cmp_lg_u32 s54, 0")
a("s_cbranch_scc0 L_el")
a.label("L_elb")
a("s_waitcnt lgkmcnt(0)")
f2pre()
a("s_barrier")
OB = TB
for cc in range(2):
    for h in range(2):
        a(f"ds_read_b64 {vr(OB+4*cc+2*h,2)}, v{vr1} offset:{h*2048+cc*8}")
X = D
for cc in range(2):
    a(f"s_waitcnt lgkmcnt({2-2*cc})")
    a(f"{M16} {vr(X+8*cc,4)}, {vr(M2+8*cc,4)}, {vr(OB+4*cc,4)}, 0")
    a(f"{M16} {vr(X+8*cc+4,4)}, {vr(M2+8*cc+4,4)}, {vr(OB+4*cc,4)}, 0")
YO = [PKD, PKD + 4, PKD, PKD + 4]
tpr = [(vT, vTr), (vr1, vw1)]
if SPLIT:
    a(f"s_waitcnt vmcnt({0 if 'nopw' in OPT else 1})")
    wread(1)
def dpt(cc, ab, ri): return WW + 16 * cc + 8 * ab + 4 * ri
def wmul(cc, ab):
    n = 2 * cc + ab
    xr = X + 8 * cc; xi = X + 8 * cc + 4
    for i in range(4):
        wr = Wi(2 * ab, cc, i); wi = Wi(2 * ab + 1, cc, i)
        y0, y1 = tpr[i & 1]
        a(f"v_mul_f32 v{y0}, v{xr+i}, v{wr}")
        a(f"v_mul_f32 v{y1}, v{xi+i}, v{wr}")
        a(f"v_fma_f32 v{y0}, -v{xi+i}, v{wi}, v{y0}")
        a(f"v_fmac_f32 v{y1}, v{xr+i}, v{wi}")
        a(f"v_cvt_pk_bf16_f32 v{YO[n]+i}, v{y1}, v{y0}")
    a(f"{M16} {vr(dpt(cc,ab,0),4)}, {vr(MT+8*cc,4)}, {vr(YO[n],4)}, 0")
    a(f"{M16} {vr(dpt(cc,ab,1),4)}, {vr(MT+8*cc+4,4)}, {vr(YO[n],4)}, 0")
a("s_and_b32 s29, s2, 0xfb")
a("s_cmp_eq_u32 s29, 0")
a("s_cbranch_scc1 L_sp")
for cc in range(2):
    if cc == 1: a("s_waitcnt lgkmcnt(0)")
    for ab in range(2): wmul(cc, ab)
a.label("L_spb")
XP2 = X
P2 = D
for ab in range(2):
    for ip in range(2):
        for cc in range(2):
            for bb in range(2):
                i = 2 * ip + bb
                a(f"v_cvt_pk_bf16_f32 v{P2+8*ab+4*ip+2*bb+cc}, v{dpt(cc,ab,0)+i}, v{dpt(cc,ab,1)+i}")
        a(f"ds_write_b128 v{vw2}, {vr(P2+8*ab+4*ip,4)} offset:{2048*ab+ip*256}")
a("s_waitcnt lgkmcnt(0)")
a("s_barrier")
O2 = WW + 16
X4 = False
order = [(0, 1), (1, 1), (0, 0), (1, 0)]
for bb, ab in order:
    for h in range(2):
        a(f"ds_read_b64 {vr(O2+8*bb+4*ab+2*h,2)}, v{vr2} offset:{WR*h+2048*ab+bb*8}")
E = [M2, M2 + 8, MT, MT + 8]
for k_, (bb, ab) in enumerate(order):
    n = 2 * bb + ab
    a(f"s_waitcnt lgkmcnt({6-2*k_})")
    a(f"{M16} {vr(E[n],4)}, {vr(Fr,4)}, {vr(O2+4*n,4)}, 0")
    a(f"{M16} {vr(E[n]+4,4)}, {vr(Fm,4)}, {vr(O2+4*n,4)}, 0")
SO = WW
for ab in (1, 0):
    for bb in range(2):
        n = 2 * bb + ab
        for i in range(4):
            a(f"v_cvt_pk_bf16_f32 v{SO+8*bb+2*i+ab}, v{E[n]+4+i}, v{E[n]+i}")
            a(f"s_add_u32 s30, s24, {hx((16*i+bb)*TSB + ab*U_OFF)}")
            a(f"buffer_store_dword v{SO+8*bb+2*i+ab}, v{vS}, s[16:19], s30 offen {SSF}")
ts(10)
if "swb" in OPT:
    a("s_waitcnt vmcnt(0)")
    a("buffer_wbl2 sc1")
amx_post(t[0])
setflag(t[0], "s9", "s49")
if "st2" in OPT: ts(1)
a("s_setprio 0")
V = VAlloc(8)
vg_ = vg; vc_ = vc
t = [V() for _ in range(6)]
vS3 = 1; vN = 2; vF3 = 7; AP8 = V(); AMx = V()
MR = V(16, 4); MI = V(16, 4); X = V(16, 4)
BA = V(24, 4); BB = V(24, 4); TCh = V(8); TSh = V(8)
assert V.n <= 128, V.n
D1r = BA + 8; D1i = BB + 8; D2r = BA; D2i = BB
SBt = [D1r, D1r + 4, D1r + 8, D1r + 12, X]
DDt = [D1i, D1i + 4, D1i + 8, D1i + 12, X + 4]
MA = X + 8; AP = X + 12; AM = [X + 13, X + 14, X + 15, AMx]
CS = D1r; GG = D1i
a(f"v_bfe_u32 v{t[0]}, v0, 2, 2"); a(f"v_lshlrev_b32 v{t[1]}, 4, v{t[0]}")
a(f"v_add_u32 v{t[1]}, {L_G}, v{t[1]}")
a(f"ds_read_b128 {vr(GG,4)}, v{t[1]}")
if X4:
    a(f"v_and_b32 v{t[1]}, 1, v0"); a(f"v_lshlrev_b32 v{t[1]}, 3, v{t[1]}")
    a(f"v_lshl_or_b32 v{t[1]}, v{t[0]}, 4, v{t[1]}")
    a(f"v_bfe_u32 v{t[2]}, v0, 1, 1"); a(f"v_lshl_or_b32 v{t[1]}, v{t[2]}, 6, v{t[1]}")
else:
    a(f"v_lshlrev_b32 v{t[1]}, 2, v{vc_}")
a(f"v_lshl_or_b32 v{vS3}, v{vg_}, 12, v{t[1]}")
a("s_xor_b32 s50, s3, 4")
a(f"s_mul_i32 s8, s2, {TSB}")
a("s_lshl_b32 s11, s50, 6"); a("s_add_u32 s8, s8, s11"); a(f"s_add_u32 s10, s8, {hx(U_OFF)}")
a(f"v_bfe_u32 v{t[1]}, v0, 2, 3"); a(f"v_and_b32 v{t[2]}, 3, v0"); a(f"v_lshlrev_b32 v{t[2]}, 3, v{t[2]}")
a(f"v_lshl_add_u32 v{t[1]}, v{t[1]}, 5, v{t[2]}"); a(f"v_add_u32 v{t[1]}, s50, v{t[1]}")
a("s_cmp_eq_u32 s50, 0"); a("s_cselect_b32 s24, 0x00010001, 0")
a(f"v_lshlrev_b32 v{vF3}, 10, v{t[1]}")
a("s_bfe_u32 s11, s2, 0x30001"); a("s_lshl_b32 s11, s11, 7"); a(f"s_add_u32 s11, s11, {hx(F2_OFF)}")
vsg = X; ve = X + 1; vstep = X + 2; vpe = X + 3; vpo = X + 4; vk = X + 5; vpl = X + 6
a(f"v_bfe_u32 v{t[1]}, v0, 1, 1"); a(f"v_cvt_f32_u32 v{vsg}, v{t[1]}")
a(f"v_mul_f32 v{vsg}, -0.5, v{vsg}"); a(f"v_add_f32 v{vsg}, {fl(0.25)}, v{vsg}")
a(f"v_and_b32 v{t[1]}, 1, v0"); a(f"v_cvt_f32_u32 v{t[1]}, v{t[1]}")
a(f"v_mul_f32 v{ve}, v{t[1]}, v{vsg}")
a(f"v_lshlrev_b32 v{t[0]}, 9, v{t[0]}"); a(f"v_add_u32 v{t[0]}, s2, v{t[0]}")
a(f"v_cvt_f32_u32 v{vstep}, v{t[0]}"); a(f"v_mul_f32 v{vstep}, {hx(f2u(-1/2048))}, v{vstep}")
a(f"v_cvt_f32_u32 v{t[2]}, v{vg_}"); a(f"v_add_f32 v{t[2]}, v{t[2]}, v{t[2]}")
a(f"v_fma_f32 v{vpe}, v{t[2]}, v{vstep}, v{ve}")
a(f"v_sub_f32 v{vpo}, v{vpe}, v{vsg}")
a(f"v_fmamk_f32 v{vpo}, v{t[2]}, {hx(f2u(-0.125))}, v{vpo}")
for lo in range(2):
    if lo:
        a(f"v_add_f32 v{vpe}, v{vpe}, v{vstep}")
        a(f"v_add_f32 v{vpo}, v{vpo}, v{vstep}"); a(f"v_add_f32 v{vpo}, {hx(f2u(-0.125))}, v{vpo}")
    a(f"v_cos_f32 v{CS+4*lo}, v{vpe}"); a(f"v_sin_f32 v{CS+4*lo+1}, v{vpe}")
    a(f"v_cos_f32 v{CS+4*lo+2}, v{vpo}"); a(f"v_sin_f32 v{CS+4*lo+3}, v{vpo}")
a("s_lshl_b32 s25, s50, 4")
a(f"v_lshlrev_b32 v{vpl}, 12, v{vg_}")
a(f"v_add_u32 v{vk}, s25, v{vc_}")
a(f"v_and_b32 v{t[3]}, 14, v{vk}"); a(f"v_lshl_or_b32 v{t[3]}, v{t[3]}, 3, v{vpl}")
a(f"v_and_b32 v{t[4]}, 31, v{vk}"); a(f"v_lshl_or_b32 v{t[3]}, v{t[4]}, 7, v{t[3]}")
a(f"v_bfe_u32 v{t[4]}, v{vk}, 5, 2"); a(f"v_lshl_or_b32 v{AP}, v{t[4]}, 2, v{t[3]}")
a(f"v_sub_u32 v{t[5]}, 0, v{vk}")
a(f"v_and_b32 v{t[4]}, 31, v{t[5]}"); a(f"v_lshl_or_b32 v{t[3]}, v{t[4]}, 7, v{vpl}")
a(f"v_and_b32 v{t[4]}, 14, v{t[5]}"); a(f"v_lshl_or_b32 v{t[3]}, v{t[4]}, 3, v{t[3]}")
a(f"v_lshrrev_b32 v{t[5]}, 3, v{t[5]}")
for tt in range(4):
    if tt: a(f"v_subrev_u32 v{t[5]}, 16, v{t[5]}")
    a(f"v_and_b32 v{t[4]}, 0x7c, v{t[5]}")
    a(f"v_xor_b32 v{AM[tt]}, v{t[4]}, v{t[3]}")
a("s_mov_b32 exec_lo, s24"); a("s_mov_b32 exec_hi, s24")
a(f"v_or_b32 v{AM[0]}, 64, v{vpl}")
a("s_mov_b64 exec, -1")
a("s_waitcnt lgkmcnt(0)")
for lo in range(2):
    for ab in range(2):
        a(f"v_mul_f32 v{t[0]}, v{GG+ab}, v{CS+4*lo}"); a(f"v_mul_f32 v{t[1]}, v{GG+ab}, v{CS+4*lo+1}")
        a(f"v_fmac_f32 v{t[0]}, v{GG+2+ab}, v{CS+4*lo+2}"); a(f"v_fmac_f32 v{t[1]}, v{GG+2+ab}, v{CS+4*lo+3}")
        a(f"v_cvt_pk_bf16_f32 v{MA+2*lo+ab}, v{t[0]}, v{t[1]}")
a("s_cmp_eq_u32 s3, 4")
a("s_cbranch_scc1 L_m0")
a("s_cmp_ge_u32 s3, 4")
a("s_cbranch_scc1 L_p3b")
TC = lambda k: BA + k if k < 8 else TCh + k - 8
TS_ = lambda k: BB + k if k < 8 else TSh + k - 8
vb = X; vo = X + 1
a(f"v_cvt_f32_u32 v{vb}, v{vn}"); a(f"v_cvt_f32_u32 v{vo}, v{vL5}")
a(f"v_mul_f32 v{vb}, {fl(1/32)}, v{vb}"); a(f"v_mul_f32 v{vo}, 4.0, v{vo}"); a(f"v_mul_f32 v{vo}, v{vb}, v{vo}")
for i in range(16):
    kc = 8 * (i // 4) + i % 4
    if kc == 0: a(f"v_mov_b32 v{t[0]}, v{vo}")
    else: a(f"v_fmamk_f32 v{t[0]}, v{vb}, {hx(f2u(float(kc)))}, v{vo}")
    a(f"v_cos_f32 v{t[1]}, v{t[0]}"); a(f"v_sin_f32 v{t[2]}, v{t[0]}")
    a(f"v_mul_f32 v{t[0]}, {fl(1/32)}, v{t[0]}")
    a(f"v_cvt_pk_bf16_f32 v{MR+i}, v{t[1]}, -v{t[2]}")
    a(f"v_cvt_pk_bf16_f32 v{MI+i}, v{t[2]}, v{t[1]}")
    a(f"v_cos_f32 v{TC(i)}, v{t[0]}"); a(f"v_sin_f32 v{TS_(i)}, v{t[0]}")
a.label("L_p3b")
if optint("pb", 0): a(f"s_sleep {optint('pb', 0)}")
ts(11)
poll("L_poll2", vF3, t[0], "s11", "s49")
ts(12)
if "st2" in OPT: a("s_add_u32 s64, s60, s58")
for tt in range(4):
    for lo in range(2):
        for ab in range(2):
            a(f"buffer_load_dword v{SBt[tt]+2*lo+ab}, v{vS3}, s[16:19], {'s10' if ab else 's8'} offen offset:{tt*512+lo*2048} {SLF}")
MA0 = MR
def fin(tt):
    d = DDt[tt]
    if tt == 0:
        a("s_mov_b32 exec_lo, s24"); a("s_mov_b32 exec_hi, s24")
        for k in range(4): a(f"v_mov_b32 v{d+k}, v{DDt[4]+k}")
        a("s_mov_b64 exec, -1")
    a(f"v_cvt_pk_bf16_f32 v{d}, v{d}, v{d+1}")
    a(f"v_cvt_pk_bf16_f32 v{d+1}, v{d+2}, v{d+3}")
    if tt: a(f"v_xor_b32 v{t[tt]}, {tt<<4}, v{AP}")
    a(f"ds_write_b32 v{t[tt] if tt else AP}, v{d}")
    a(f"ds_write_b32 v{AM[tt]}, v{d+1}")
for tt in range(4):
    a(f"s_waitcnt vmcnt({12-4*tt})")
    a(f"{M16} {vr(DDt[tt],4)}, {vr(MA,4)}, {vr(SBt[tt],4)}, 0")
    if tt == 0: a(f"{M16} {vr(DDt[4],4)}, {vr(MA0,4)}, {vr(SBt[0],4)}, 0")
    if tt >= 1: fin(tt - 1)
fin(3)
vst = vS3
a(f"v_bfe_u32 v{t[4]}, v{vn}, 1, 3"); a(f"v_xor_b32 v{t[4]}, v{t[4]}, v{vL5}"); a(f"v_lshlrev_b32 v{t[4]}, 4, v{t[4]}")
a(f"v_lshl_or_b32 v{t[4]}, v{vn}, 7, v{t[4]}"); a("s_lshl_b32 s26, s51, 12")
a("s_waitcnt lgkmcnt(0)")
a(f"v_add_u32 v{t[0]}, s26, v{t[4]}")
for q in range(1, 4): a(f"v_xor_b32 v{t[q]}, {32*q}, v{t[0]}")
a(f"v_lshlrev_b32 v{t[4]}, 4, v{vL5}"); a(f"v_lshl_or_b32 v{vst}, v{vn}, 6, v{t[4]}")
srd(12, 94, 2048 * 2048)
a("s_add_u32 s30, s22, 0x80000")
if "st2" in OPT: ts(3)
a("s_barrier")
if "st2" in OPT: ts(4)
a("s_cmp_ge_u32 s3, 4")
a("s_cbranch_scc1 L_hx")
for q in range(4): a(f"ds_read_b128 {vr(X+4*q,4)}, v{t[q]}")
for q in range(4):
    a(f"s_waitcnt lgkmcnt({3-q})")
    a(f"{M32} {vr(D1r,16)}, {vr(X+4*q,4)}, {vr(MR+4*q,4)}, {'0' if q == 0 else vr(D1r,16)}")
    a(f"{M32} {vr(D1i,16)}, {vr(X+4*q,4)}, {vr(MI+4*q,4)}, {'0' if q == 0 else vr(D1i,16)}")
def p2m(q):
    a(f"{M32} {vr(D2r,16)}, {vr(X+4*q,4)}, {vr(MR+4*q,4)}, {'0' if q == 0 else vr(D2r,16)}")
    a(f"{M32} {vr(D2i,16)}, {vr(X+4*q,4)}, {vr(MI+4*q,4)}, {'0' if q == 0 else vr(D2i,16)}")
for q in range(4):
    for e in range(4):
        k = 4 * q + e
        a(f"v_mul_f32 v{t[0]}, v{D1r+k}, v{TC(k)}")
        a(f"v_mul_f32 v{t[1]}, v{D1i+k}, v{TC(k)}")
        a(f"v_fma_f32 v{t[0]}, -v{D1i+k}, v{TS_(k)}, v{t[0]}")
        a(f"v_fmac_f32 v{t[1]}, v{D1r+k}, v{TS_(k)}")
        a(f"v_cvt_pk_bf16_f32 v{X+k}, v{t[0]}, v{t[1]}")
        if q == 2 and e == 1: p2m(1)
    if q == 1: p2m(0)
    if q >= 2: p2m(q)
O = MR
for r, (Dx, so) in enumerate(((D2r, "s22"), (D2i, "s30"))):
    for c2 in range(2):
        o = O + 8 * r + 4 * c2
        for e in range(4):
            a(f"v_cvt_pk_bf16_f32 v{o+e}, v{Dx+8*c2+2*e}, v{Dx+8*c2+2*e+1}")
        a(f"v_permlane32_swap_b32 v{o}, v{o+2}")
        a(f"v_permlane32_swap_b32 v{o+1}, v{o+3}")
        a(f"buffer_store_dwordx4 {vr(o,4)}, v{vst}, s[12:15], {so} offen offset:{32*c2}{OSF}")
a.label("L_fin")
stamp_end(32)
a.label("L_end")
a("s_endpgm")
a.label("L_hx")
a("s_lshl_b32 s26, s2, 3"); a("s_add_u32 s26, s26, s3")
a("s_cmp_lg_u32 s26, 4")
a("s_cbranch_scc1 L_fin")
a(f"s_mov_b32 s26, {hx(EP_OFF)}")
setflag(8, "s26", "s49")
a("s_branch L_fin")
a.label("L_m0")
a.hist = []
q_ = [MI + k for k in range(16)]
gaa = q_[0]; gbb = q_[1]; ph = q_[2]; st_ = q_[3]; c_ = q_[4]; s__ = q_[5]; al = q_[6]; be = q_[7]
a(f"v_and_b32 v{t[0]}, 1, v0"); a(f"v_cmp_eq_u32 vcc, 1, v{t[0]}")
a(f"v_bfe_u32 v{t[1]}, v0, 2, 2"); a(f"v_lshl_or_b32 v{t[1]}, v{t[1]}, 1, v{t[0]}")
a(f"v_cndmask_b32 v{gaa}, v{GG}, v{GG+2}, vcc"); a(f"v_cndmask_b32 v{gbb}, v{GG+1}, v{GG+3}, vcc")
a(f"v_lshlrev_b32 v{t[1]}, 8, v{t[1]}"); a(f"v_add_u32 v{t[1]}, s2, v{t[1]}")
a(f"v_cvt_f32_u32 v{st_}, v{t[1]}"); a(f"v_mul_f32 v{st_}, {hx(f2u(1/2048))}, v{st_}")
a(f"v_cvt_f32_u32 v{ph}, v{vg_}"); a(f"v_add_f32 v{ph}, v{ph}, v{ph}"); a(f"v_mul_f32 v{ph}, v{ph}, v{st_}")
a(f"v_bfe_u32 v{t[2]}, v0, 1, 1")
a(f"v_lshrrev_b32 v{t[3]}, 1, v{vg_}"); a(f"v_cmp_eq_u32 s[4:5], v{t[2]}, v{t[3]}")
a(f"v_and_b32 v{t[3]}, 1, v{vg_}"); a(f"v_cmp_eq_u32 s[6:7], 0, v{t[3]}")
a(f"v_cmp_eq_u32 s[14:15], 0, v{t[2]}")
a(f"v_cndmask_b32 v{q_[8]}, 0, v{gaa}, s[4:5]"); a(f"v_cndmask_b32 v{q_[9]}, 0, v{gbb}, s[4:5]")
a(f"v_mul_f32 v{q_[10]}, {fl(0.25)}, v{gaa}"); a(f"v_mul_f32 v{q_[11]}, {fl(0.25)}, v{gbb}")
for lo in range(2):
    if lo: a(f"v_add_f32 v{ph}, v{ph}, v{st_}")
    a(f"v_cos_f32 v{c_}, v{ph}"); a(f"v_sin_f32 v{s__}, v{ph}")
    for ab in range(2):
        if lo == 0:
            if ab == 0:
                a(f"v_cndmask_b32 v{al}, 0, v{q_[10]}, s[14:15]"); a(f"v_cndmask_b32 v{be}, 0, v{q_[11]}, s[14:15]")
            else:
                a(f"v_cndmask_b32 v{al}, v{q_[10]}, 0, s[14:15]"); a(f"v_cndmask_b32 v{be}, v{q_[11]}, 0, s[14:15]")
            a(f"v_cndmask_b32 v{al}, v{q_[8+ab]}, v{al}, s[6:7]"); a(f"v_cndmask_b32 v{be}, 0, v{be}, s[6:7]")
            a(f"v_mul_f32 v{t[0]}, v{al}, v{c_}"); a(f"v_fmac_f32 v{t[0]}, v{be}, v{s__}")
            a(f"v_mul_f32 v{t[1]}, v{be}, v{c_}"); a(f"v_fma_f32 v{t[1]}, -v{al}, v{s__}, v{t[1]}")
            a(f"v_cvt_pk_bf16_f32 v{MA0+2*lo+ab}, v{t[0]}, v{t[1]}")
        else:
            a(f"v_mul_f32 v{t[0]}, v{q_[8+ab]}, v{c_}"); a(f"v_mul_f32 v{t[1]}, v{q_[8+ab]}, v{s__}")
            a(f"v_cvt_pk_bf16_f32 v{MA0+2*lo+ab}, v{t[0]}, -v{t[1]}")
a("s_branch L_p3b")
a.label("L_el")
a.hist = []
a(f"v_lshlrev_b32 v{vEa}, 6, v{vg}"); a(f"v_add_u32 v{vEa}, s29, v{vEa}")
a("s_mov_b32 exec_lo, s52"); a("s_mov_b32 exec_hi, s52")
for cc in range(2):
    for i in range(4):
        for ab in range(2):
            a(f"ds_read_b64 {vr(Wi(2*ab,cc,i),2)}, v{vEa} offset:{256*cc+16*i+8*ab}")
a("s_mov_b64 exec, -1")
a("s_branch L_elb")
a.label("L_sp")
a.hist = []
X = XP2
ts(3)
a("s_lshr_b32 s29, s2, 2"); a("s_lshl_b32 s10, s3, 1"); a("s_add_u32 s29, s29, s10"); a("s_sub_u32 s29, 16, s29")
for cc in range(2):
    a(f"s_sub_u32 s10, s29, {cc}"); a("s_and_b32 s10, s10, 15")
    a("s_lshr_b32 s11, s10, 1"); a("s_lshl_b32 s11, s11, 8"); a("s_and_b32 s10, s10, 1"); a("s_lshl_b32 s10, s10, 3"); a("s_add_u32 s10, s10, s11")
    a(f"v_lshlrev_b32 v{tpr[0][cc]}, 12, v{vg}"); a(f"v_add_u32 v{tpr[0][cc]}, s10, v{tpr[0][cc]}")
for k in range(8): a(f"v_mov_b32 v{TB+k}, 0")
a("s_mov_b32 exec_lo, 0x00010001"); a("s_mov_b32 exec_hi, 0x00010001")
for cc in range(2):
    for h in range(2):
        a(f"ds_read_b64 {vr(TB+4*cc+2*h,2)}, v{tpr[0][cc]} offset:{h*2048}")
a("s_mov_b32 s10, 0x80000000"); a("s_mov_b32 s11, 0x80008000")
a("s_waitcnt lgkmcnt(0)")
for k in range(8): a(f"v_xor_b32 v{TB+k}, s10, v{TB+k}")
a("s_mov_b64 exec, -1")
ts(4)
a("s_cmp_lg_u32 s2, 0")
a("s_cbranch_scc1 L_sp4")
def sp_body(mats):
    def acc(cc):
        a(f"{M16} {vr(X+8*cc,4)}, {vr(mats[cc],4)}, {vr(TB+4*cc,4)}, {vr(X+8*cc,4)}")
        a(f"{M16} {vr(X+8*cc+4,4)}, {vr(mats[cc]+4,4)}, {vr(TB+4*cc,4)}, {vr(X+8*cc+4,4)}")
    acc(0); acc(1)
    a("s_mov_b32 exec_lo, 0x00010001"); a("s_mov_b32 exec_hi, 0x00010001")
    for k in range(8): a(f"v_xor_b32 v{TB+k}, s11, v{TB+k}")
    a("s_mov_b64 exec, -1")
    wmul(0, 0); acc(0); acc(0)
    wmul(1, 0); acc(1); acc(1)
    wmul(0, 1)
    wmul(1, 1)
    ts(6)
    a("s_nop 7")
    a("s_branch L_spb")
YO = [PKD, PKD, PKD + 4, PKD + 4]
sp_body([M2, M2 + 8])
a.label("L_sp4")
a.hist = []
a("s_nop 1")
sp_body([M2 + 8, MX])

nv = (a.maxv + 1 + 7) // 8 * 8
out = "; gated_mix spectral gfnet: persistent MFMA FFT pipeline (generated by gen7.py)\n"
out += f"; @launch grid=(256,1,1) block=(512,1,1) lds={LDS_BYTES}\n"
out += '.amdgcn_target "amdgcn-amd-amdhsa--gfx950"\n.text\n'
out += f".globl {NAME}\n.p2align 8\n.type {NAME},@function\n" + a.text() + ".rept 96\n    s_endpgm\n.endr\nL_code_end:\n"
out += f""".section .rodata,"a"
.p2align 6
.amdhsa_kernel {NAME}
  .amdhsa_next_free_vgpr {nv}
  .amdhsa_next_free_sgpr {min(102, a.maxs + 1)}
  .amdhsa_accum_offset {nv}
  .amdhsa_group_segment_fixed_size 0
  .amdhsa_kernarg_size 80
  .amdhsa_user_sgpr_count 2
  .amdhsa_user_sgpr_kernarg_segment_ptr 1
  .amdhsa_system_sgpr_workgroup_id_x 1
  .amdhsa_float_denorm_mode_32 3
.end_amdhsa_kernel
"""
sys.stderr.write(f"vgpr {a.maxv+1} sgpr {a.maxs+1} lines {len(a.lines)} nops {a.nops}\n")
print(out)
```

```python
import sys
from asmlib import *
NAME = "gated_mix__spectral_gfnet__spectral_gfnet__prompt_kernel"
TSB = 16512
S_OFF = 0x500000
U_OFF = 0x500000
import sys as _s
for _o in _s.argv:
    if _o.startswith('soff'): S_OFF = int(_o[4:]) << 20
F1_OFF = 0xE20000
F2_OFF = 0xE80000
EP_OFF = 0xEF0000
WS_SIZE = 0xF00000
WBYTES = 2048 * 1026
M32 = "v_mfma_f32_32x32x16_bf16"
M16 = "v_mfma_f32_16x16x32_bf16"
OPT = set(sys.argv[1:])
ST = "stamps" in OPT
WSZ = 0x10000000 if ST else WS_SIZE
L_A = 0; L_W = 16384; L_P = L_W; WR = 6144; L_G = 65536; L_N = 65664; L_C = 65920; L_E = 65936; LDS_BYTES = 65936 + 4096
def optint(pfx, d):
    for o in OPT:
        if o.startswith(pfx) and o[len(pfx):].isdigit(): return int(o[len(pfx):])
    return d
SLEEP = optint("sl", 1); PFAT = optint("pf", 8); NWG = optint("nwg", 0)
SPIN_MAX = 400000
NTX = " nt" if "ntx" in OPT else ""
NTW = " nt" if "ntw" in OPT else ""
PLF = "sc0 sc1" if "psys" in OPT else ("sc1 nt" if "pnt" in OPT else ("sc0 sc1 nt" if "psysnt" in OPT else "sc1"))
FSF = "sc0 sc1" if "fsys" in OPT else "sc1"
SSF = "sc0 sc1" if "ssys" in OPT else ("sc1 nt" if "snt" in OPT else ("" if "swb" in OPT else "sc1"))
def lf(k):
    return "sc0 sc1" if k+"sys" in OPT else ("sc1 nt" if k+"nt" in OPT else ("sc0 sc1 nt" if k+"sn" in OPT else "sc1"))
SLF = lf("ls"); TLF = lf("lt")
OSF = " sc1" if "osc1" in OPT else (" nt" if "ont" in OPT else (" sc0 sc1" if "osys" in OPT else ""))
Y4 = "y4" in OPT
a = Asm()
def srd(d, base, size):
    a(f"s_mov_b32 s{d}, s{base}"); a(f"s_mov_b32 s{d+1}, s{base+1}")
    a(f"s_mov_b32 s{d+2}, {hx(size)}"); a(f"s_mov_b32 s{d+3}, 0x00020000")
NST = 14
AMX = optint("amx", -1)
def ts(k):
    if ST:
        a(f"s_memrealtime s[{60+2*k}:{61+2*k}]")
        a("s_waitcnt lgkmcnt(0)")
def amx_post(vt):
    if AMX < 0: return
    a("s_load_dwordx2 s[4:5], s[0:1], 64")
    a("s_waitcnt lgkmcnt(0)")
    a("s_mov_b32 s6, 256"); a("s_mov_b32 s7, 0x00020000")
    a(f"v_mov_b32 v{vt}, s{60+2*AMX}"); a("s_and_b32 s96, s2, 7"); a("s_lshl_b32 s96, s96, 2"); a(f"v_mov_b32 v{vt+1}, s96")
    a("s_cmp_eq_u32 s3, %d" % optint("aw", 0)); a("s_cselect_b32 exec_lo, 1, 0"); a("s_mov_b32 exec_hi, 0")
    a(f"buffer_atomic_umax v{vt}, v{vt+1}, s[4:7], 0 offen")
    a("s_mov_b64 exec, -1")
def stamp_end(vt):
    if not ST: return
    a("s_waitcnt vmcnt(0)")
    ts(NST - 1)
    for k in range(16): a(f"v_mov_b32 v{vt+k}, {'s%d' % (60+2*k) if k < NST else '0'}")
    a("s_lshl_b32 s96, s3, 6"); a("s_lshl_b32 s97, s2, 9"); a("s_add_u32 s96, s96, s97")
    a(f"s_add_u32 s96, s96, 0x3000000")
    a(f"v_mov_b32 v{vt+16}, 0")
    a("s_mov_b64 exec, 1")
    if AMX >= 0:
        a("s_lshl_b32 s96, s2, 3"); a("s_add_u32 s96, s96, s3"); a("s_cmp_lg_u32 s96, 72"); a("s_cbranch_scc1 L_end")
        a("s_load_dwordx2 s[4:5], s[0:1], 64")
        a("s_waitcnt lgkmcnt(0)")
        a("s_mov_b32 s6, 256"); a("s_mov_b32 s7, 0x00020000")
        a(f"buffer_load_dwordx4 {vr(vt,4)}, v{vt+16}, s[4:7], 0 offen sc1")
        a(f"buffer_load_dwordx4 {vr(vt+4,4)}, v{vt+16}, s[4:7], 0 offen offset:16 sc1")
        a("s_waitcnt vmcnt(0)")
        for k in range(1, 8): a(f"v_max_u32 v{vt}, v{vt}, v{vt+k}")
        a("s_nop 1")
        a(f"v_readfirstlane_b32 s4, v{vt}")
        a(f"s_sub_u32 s4, s4, s60"); a("s_mul_i32 s4, s4, 10"); a(f"s_add_u32 s4, s4, s{60+2*(NST-1)}")
        a.label("L_amp")
        a("s_memrealtime s[6:7]"); a("s_waitcnt lgkmcnt(0)")
        a("s_sub_u32 s5, s6, s4"); a("s_cmp_lt_i32 s5, 0"); a("s_cbranch_scc1 L_amp")
        return
    amp = optint("amp", -1)
    if amp >= 0:
        a("s_lshl_b32 s4, s2, 3"); a("s_add_u32 s4, s4, s3"); a("s_cmp_lg_u32 s4, %d" % (72 + optint("aw", 0))); a("s_cbranch_scc1 L_end")
        a(f"s_sub_u32 s4, s{60+2*amp}, s60"); a("s_mul_i32 s4, s4, 10"); a(f"s_add_u32 s4, s4, s{60+2*(NST-1)}")
        a.label("L_amp")
        a("s_memrealtime s[6:7]"); a("s_waitcnt lgkmcnt(0)")
        a("s_sub_u32 s5, s6, s4"); a("s_cmp_lt_i32 s5, 0"); a("s_cbranch_scc1 L_amp")
        return
    if "dbg" in OPT:
        a("s_load_dwordx2 s[4:5], s[0:1], 64")
        a("s_waitcnt lgkmcnt(0)")
        a("s_mov_b32 s6, 256"); a("s_mov_b32 s7, 0x00020000")
        a(f"v_not_b32 v{vt+14}, v{vt}")
        for k in range(15):
            a(f"buffer_atomic_umax v{vt+k}, v{vt+16}, s[4:7], 0 offen offset:{4*k}")
        return
    for q in range(4): a(f"buffer_store_dwordx4 {vr(vt+4*q,4)}, v{vt+16}, s[16:19], s96 offen offset:{16*q}")
def poll(lbl, vaddr, vtmp, soff, tag):
    a("s_mov_b32 s58, 0")
    a("s_mov_b32 exec_hi, 0")
    a.label(lbl)
    a(f"buffer_load_dword v{vtmp}, v{vaddr}, s[16:19], {soff} offen {PLF}")
    a("s_add_u32 s58, s58, 1")
    a("s_waitcnt vmcnt(0)")
    a(f"v_cmp_ne_u32 vcc, {tag}, v{vtmp}")
    a(f"s_cmp_gt_u32 s58, {SPIN_MAX}")
    a(f"s_cbranch_scc1 {lbl}_d")
    a("s_and_b64 exec, exec, vcc")
    a(f"s_cbranch_execz {lbl}_d")
    if SLEEP: a(f"s_sleep {SLEEP}")
    a(f"s_branch {lbl}")
    a.label(lbl + "_d")
    a("s_mov_b64 exec, -1")
def setflag(vtmp, soff, tag):
    a(f"v_mov_b32 v{vtmp}, {tag}"); a(f"v_lshlrev_b32 v{vtmp+1}, 2, v0")
    a("s_waitcnt vmcnt(0)")
    a("s_mov_b32 exec_hi, 0")
    a(f"buffer_store_dword v{vtmp}, v{vtmp+1}, s[16:19], {soff} offen {FSF}")
    a("s_mov_b32 exec_hi, -1")

a.label(NAME)
a.label("L_code_start")
a("s_cmp_ge_u32 s2, 256")
a("s_cbranch_scc1 L_end")
if ST:
    a("s_memrealtime s[60:61]")
    for k in range(1, NST): a(f"s_mov_b32 s{60+2*k}, 0")
a("s_load_dwordx4 s[4:7], s[0:1], 0")
a("s_load_dwordx2 s[20:21], s[0:1], 72")
a("s_load_dwordx2 s[28:29], s[0:1], 16")
a("s_load_dwordx8 s[88:95], s[0:1], 32")
a("s_getpc_b64 s[12:13]")
a("s_and_b32 s12, s12, 0xffffff00")
a("s_mov_b32 s14, L_code_end-L_code_start")
a("s_mov_b32 s15, 0x00020000")
a("v_lshlrev_b32 v6, 6, v0")
a("s_bfe_u32 s8, s2, 0x30003") if ST else a("s_bfe_u32 s8, s2, 0x20003")
a("v_lshrrev_b32 v1, 6, v0")
a("v_cmp_eq_u32 vcc, s8, v1")
a("s_and_saveexec_b64 s[10:11], vcc")
a("s_cbranch_execz L_cp")
if "nocp" not in OPT: a("buffer_load_ubyte v5, v6, s[12:15], 0 offen")
a.label("L_cp")
a("s_mov_b64 exec, -1")
a("v_and_b32 v0, 63, v0")
a("v_readfirstlane_b32 s3, v1")
vl16 = 2; vn = 3; vL5 = 4; vE = 5
a(f"v_lshlrev_b32 v{vl16}, 4, v0")
a(f"v_and_b32 v{vn}, 31, v0")
a(f"v_lshrrev_b32 v{vL5}, 5, v0")
a("s_and_b32 s51, s3, 3")
a("s_lshl_b32 s22, s51, 9"); a("s_add_u32 s22, s22, s2"); a("s_lshl_b32 s22, s22, 11")
a("s_and_b32 s53, s2, 7"); a("s_lshl_b32 s53, s53, 5"); a("s_lshr_b32 s54, s2, 3"); a("s_add_u32 s53, s53, s54")
a("s_and_b32 s55, s2, 7"); a("s_mul_i32 s55, s55, 1026"); a("s_lshl_b32 s56, s54, 5"); a("s_add_u32 s55, s55, s56")
a("s_lshl_b32 s24, s51, 12")
a("s_lshl_b32 s57, s2, 10"); a(f"s_add_u32 s57, s57, {hx(F1_OFF)}")
a(f"s_mov_b32 s26, {hx(EP_OFF)}")
a("v_mov_b32 v7, 0")
a("s_waitcnt lgkmcnt(0)")
srd(16, 20, WSZ)
a(f"buffer_load_dword v{vE}, v7, s[16:19], s26 offen sc1")
for arr, p_ in enumerate((6, 28, 88, 90)): srd(32 + 4 * arr, p_, WBYTES)
def tags():
    a(f"v_readfirstlane_b32 s48, v{vE}")
    a("s_mul_i32 s48, s48, 0x9E3779B1"); a("s_add_u32 s48, s48, 0x7F4A7C15")
    a("s_xor_b32 s49, s48, 0x5bd1e995")
def arr_srd():
    a("s_cmp_eq_u32 s51, 0"); a("s_cselect_b32 s12, s32, s36"); a("s_cselect_b32 s13, s33, s37")
    a("s_cmp_eq_u32 s51, 2"); a("s_cselect_b32 s12, s40, s12"); a("s_cselect_b32 s13, s41, s13")
    a("s_cmp_eq_u32 s51, 3"); a("s_cselect_b32 s12, s44, s12"); a("s_cselect_b32 s13, s45, s13")
    a(f"s_mov_b32 s14, {hx(WBYTES)}"); a("s_mov_b32 s15, 0x00020000")
V2 = VAlloc(5)
vg = V2(); vc = V2(); vF = V2()
SC = V2(16, 4)
vS = V2(); vw1 = V2(); vr1 = V2(); vT = V2(); vTr = V2(); vWr = V2(); vw2 = V2(); vr2 = V2()
WW = V2(32, 4); TB = V2(8, 4)
Fr = V2(4, 4); Fm = V2(4, 4); M2 = V2(16, 4); MT = V2(16, 4); D = V2(16, 4)
assert V2.n <= 128, V2.n
vW = D; vEa = 2
Wi = lambda arr, cc, i: WW + 16 * cc + 8 * (arr >> 1) + 2 * i + (arr & 1)
MX = SC
L_GW = L_W + 16384
def p2_addr():
    t = [SC + k for k in range(6)]
    a(f"v_lshrrev_b32 v{vg}, 4, v0"); a(f"v_and_b32 v{vc}, 15, v0")
    a(f"v_lshrrev_b32 v{t[0]}, 2, v0"); a(f"v_mul_u32_u24 v{vT}, {16*TSB}, v{t[0]}")
    a(f"v_and_b32 v{t[0]}, 3, v0"); a(f"v_lshl_add_u32 v{vT}, v{t[0]}, 4, v{vT}")
    a("s_lshl_b32 s27, s3, 11")
    a(f"s_mul_i32 s23, s3, {WR}"); a(f"s_add_u32 s23, s23, {L_W}")
    a(f"v_bfe_u32 v{t[0]}, v0, 1, 4"); a(f"v_and_b32 v{t[1]}, 1, v0"); a(f"v_lshl_add_u32 v{t[0]}, v{t[0]}, 4, v{t[1]}")
    a(f"v_lshlrev_b32 v{vF}, 10, v{t[0]}")
    a("s_lshl_b32 s28, s3, 8")
    a("s_and_b32 s8, s2, 7"); a("s_lshl_b32 s8, s8, 7"); a("s_add_u32 s8, s8, s27"); a(f"s_add_u32 s8, s8, {hx(F1_OFF)}")
    a(f"v_lshlrev_b32 v{t[0]}, 4, v{vc}")
    a(f"v_lshl_or_b32 v{t[1]}, v{vg}, 9, v{t[0]}")
    a(f"v_add_u32 v{vw1}, s27, v{t[1]}"); a(f"v_add_u32 v{vw2}, s23, v{t[1]}")
    a(f"v_lshl_or_b32 v{vr1}, v{vg}, 12, v{t[0]}"); a(f"v_add_u32 v{vr1}, s28, v{vr1}")
    a(f"v_mul_u32_u24 v{vr2}, {2*WR}, v{vg}"); a(f"s_add_u32 s29, s28, {L_W}"); a(f"v_add3_u32 v{vr2}, v{vr2}, v{t[0]}, s29")
    if "x4" not in OPT:
        if Y4:
            a(f"v_mul_u32_u24 v{vS}, {16*TSB}, v{vc}"); a(f"v_lshl_add_u32 v{vS}, v{vg}, 4, v{vS}")
        else:
            a(f"v_mul_u32_u24 v{vS}, {64*TSB}, v{vg}"); a(f"v_lshl_add_u32 v{vS}, v{vc}, 2, v{vS}")
    else:
        a(f"v_lshlrev_b32 v{t[0]}, 4, v{vg}"); a(f"v_lshl_or_b32 v{vS}, v{vc}, 11, v{t[0]}")
def p2_item():
    t = [SC + k for k in range(6)]
    a(f"s_mul_i32 s24, s3, {2*TSB}"); a("s_lshl_b32 s26, s53, 6"); a("s_add_u32 s24, s24, s26")
    a(f"s_add_u32 s26, s24, {TSB}")
    a(f"v_lshlrev_b32 v{t[0]}, 2, v{vc}"); a(f"v_lshl_or_b32 v{vTr}, v{vg}, 8, v{t[0]}"); a(f"v_add_u32 v{vTr}, s27, v{vTr}")
    a("s_and_b32 s29, s55, 15"); a("s_add_u32 s29, s29, s23")
    a(f"v_mul_u32_u24 v{vWr}, 192, v{vg}"); a(f"v_lshl_add_u32 v{vWr}, v{vc}, 1, v{vWr}"); a(f"v_add_u32 v{vWr}, s29, v{vWr}")
    a("s_lshl_b32 s30, s53, 15"); a("s_add_u32 s30, s30, s28"); a(f"s_add_u32 s30, s30, {hx(S_OFF)}"); a("s_add_u32 s31, s30, 4096")
    a("s_lshl_b32 s9, s53, 10"); a("s_lshl_b32 s10, s3, 7"); a("s_add_u32 s9, s9, s10"); a(f"s_add_u32 s9, s9, {hx(F2_OFF)}")
    a(f"s_mul_i32 s50, s3, {2*TSB}"); a("s_and_b32 s29, s2, 7"); a("s_lshl_b32 s29, s29, 4"); a("s_add_u32 s50, s50, s29"); a("s_add_u32 s50, s50, 16384")
    a("s_cmp_eq_u32 s54, 0"); a("s_cselect_b32 s52, 0x00010001, 0")
    a(f"v_bfe_u32 v{t[0]}, v0, 4, 1"); a(f"v_lshl_add_u32 v{t[0]}, v{vc}, 4, v{t[0]}"); a(f"v_mul_u32_u24 v{vEa}, {TSB}, v{t[0]}")
    a("s_cselect_b32 s59, -1, 0")
def p2_const(dozero=True, hooks=()):
    hooks = list(hooks)
    def hook():
        if hooks: hooks.pop(0)()
    t = [SC + k for k in range(6)]
    vlf = SC + 6; vkf = SC + 7; vc0 = SC + 8; vlc = SC + 10; FA = SC + 12
    a(f"v_cvt_f32_u32 v{vlf}, v{vc}")
    a(f"v_cvt_f32_u32 v{vkf}, v{vg}"); a(f"v_mul_f32 v{vkf}, 4.0, v{vkf}")
    a(f"v_cvt_f32_u32 v{vc0}, s3"); a(f"v_mul_f32 v{vc0}, {fl(1/128)}, v{vc0}")
    a(f"v_mul_f32 v{vlc}, v{vlf}, v{vc0}")
    a(f"v_fmamk_f32 v{vlc+1}, v{vlf}, {hx(f2u(1/256))}, v{vlc}")
    a(f"v_mul_f32 v{vlf}, {fl(1/16)}, v{vlf}")
    z = iter(range(32))
    def zero(n):
        if not dozero:
            if n == 1: a("s_nop 0")
            return
        for _ in range(n):
            k = next(z, None)
            if k is not None: a(f"v_mov_b32 v{WW+k}, 0")
    def mat(ang):
        a(f"v_cos_f32 v{t[3]}, v{ang}"); a(f"v_sin_f32 v{t[4]}, v{ang}")
    def matfin(Mr, Mm):
        a(f"v_cvt_pk_bf16_f32 v{Mr}, v{t[3]}, v{t[4]}")
        a(f"v_cvt_pk_bf16_f32 v{Mm}, -v{t[4]}, v{t[3]}")
        hook()
    hook(); hook()
    for i in range(4):
        if i: a(f"v_add_f32 v{vkf}, 1.0, v{vkf}")
        a(f"v_mul_f32 v{FA+i}, v{vkf}, v{vlf}")
        mat(FA + i); zero(1); matfin(Fr + i, Fm + i)
    for i in range(3, -1, -1):
        a(f"v_fma_f32 v{t[0]}, v{vkf}, v{vc0}, v{FA+i}")
        a(f"v_fmamk_f32 v{t[1]}, v{vkf}, {hx(f2u(1/256))}, v{t[0]}")
        mat(t[0]); a(f"v_add_f32 v{t[2]}, v{FA+i}, v{vlc}"); matfin(M2 + i, M2 + 4 + i)
        mat(t[1]); a(f"v_add_f32 v{t[5]}, v{FA+i}, v{vlc+1}"); matfin(M2 + 8 + i, M2 + 12 + i)
        mat(t[2]); a(f"v_subrev_f32 v{vkf}, 1.0, v{vkf}"); matfin(MT + i, MT + 4 + i)
        mat(t[5]); zero(1); matfin(MT + 8 + i, MT + 12 + i)
    zero(32)
    a(f"v_add_f32 v{vc0}, {fl(1/128)}, v{vc0}")
    a(f"v_mov_b32 v{SC+9}, v{vkf}")
    for i in range(4):
        a(f"v_add_f32 v{SC+9}, 1.0, v{SC+9}")
        a(f"v_fma_f32 v{FA+i}, v{SC+9}, v{vc0}, v{FA+i}")
    for i in range(4):
        a(f"v_cos_f32 v{SC+10}, v{FA+i}"); a(f"v_sin_f32 v{SC+11}, v{FA+i}"); a("s_nop 0")
        a(f"v_cvt_pk_bf16_f32 v{MX+i}, v{SC+10}, v{SC+11}")
        a(f"v_cvt_pk_bf16_f32 v{MX+4+i}, -v{SC+11}, v{SC+10}")
def wvoff(dst, t0, t1):
    a(f"v_mul_u32_u24 v{t0}, 43, v0"); a(f"v_lshrrev_b32 v{t0}, 7, v{t0}")
    a(f"v_mul_u32_u24 v{t1}, 3, v{t0}"); a(f"v_sub_u32 v{t1}, v0, v{t1}")
    a(f"v_mul_u32_u24 v{dst}, {16*8*1026}, v{t0}"); a(f"v_lshl_add_u32 v{dst}, v{t1}, 4, v{dst}")
def wdma_list(vreg, adds, ccs=(0, 1)):
    ops = []
    for add in adds:
        def head(add=add):
            a(f"s_add_u32 s6, s3, {add}")
            a(f"s_mul_i32 s4, s6, {2*8*1026}"); a("s_add_u32 s4, s4, s55"); a("s_and_b32 s4, s4, 0xfffffff0")
            a(f"s_add_u32 s5, s4, {8*1026}")
            a(f"s_mul_i32 s6, s6, {WR}")
        for arr in range(4):
            for cc in ccs:
                def op(arr=arr, cc=cc, head=head):
                    if arr == 0 and cc == ccs[0]: head()
                    a("s_mov_b32 exec_hi, 0xffff")
                    a(f"s_add_u32 m0, s6, {L_W + 1536*arr + 768*cc}")
                    a(f"buffer_load_dwordx4 v{vreg}, {sr(32+4*arr,4)}, {'s4' if cc == 0 else 's5'} offen lds")
                    a("s_mov_b32 exec_hi, -1")
                ops.append(op)
    return ops
a(f"s_mov_b32 s56, {8*1026}")
a("s_cmp_ge_u32 s3, 4")
a("s_cbranch_scc1 L_h")
a("s_setprio 2")
srd(8, 4, 2048 * 2048)
a("s_add_u32 s30, s22, 0x80000")
a("s_mov_b32 m0, s24")
a(f"buffer_load_dwordx4 v{vl16}, s[8:11], s22 offen{NTX} lds")
a(f"buffer_load_dwordx4 v{vl16}, s[8:11], s22 offen offset:1024{NTX} lds")
a("s_add_u32 m0, s24, 2048")
a(f"buffer_load_dwordx4 v{vl16}, s[8:11], s30 offen{NTX} lds")
a(f"buffer_load_dwordx4 v{vl16}, s[8:11], s30 offen offset:1024{NTX} lds")
V = VAlloc(6)
vb = V(); vo = V(); vkn = V(); vtr = V(); vpf = V(); vj = V(); vpw = V(4); t = [V() for _ in range(6)]
arr_srd()
a(f"v_and_b32 v{t[0]}, 7, v0"); a("s_lshl_b32 s30, s2, 3"); a(f"v_add_u32 v{t[0]}, s30, v{t[0]}")
a(f"v_bfe_i32 v{t[1]}, v0, 4, 1"); a(f"v_xor_b32 v{t[0]}, v{t[0]}, v{t[1]}"); a(f"v_sub_u32 v{t[0]}, v{t[0]}, v{t[1]}")
a(f"v_and_b32 v{t[0]}, 2047, v{t[0]}"); a(f"v_mul_u32_u24 v{t[2]}, 1026, v{t[0]}")
a(f"v_bfe_u32 v{t[1]}, v0, 3, 1"); a(f"v_lshl_add_u32 v{t[2]}, v{t[1]}, 10, v{t[2]}")
a(f"buffer_load_ushort v{vj}, v{t[2]}, s[12:15], 0 offen")
a("s_and_b32 s30, s2, 7"); a("s_lshl_b32 s31, s54, 6"); a("s_add_u32 s30, s30, s31"); a("s_mul_i32 s30, s30, 1026")
a(f"v_lshrrev_b32 v{t[0]}, 3, v0"); a(f"v_mul_u32_u24 v{t[2]}, {8*1026}, v{t[0]}")
a(f"v_and_b32 v{t[1]}, 7, v0"); a(f"v_lshl_add_u32 v{vpf}, v{t[1]}, 7, v{t[2]}")
vjunk = 1
def prefetch():
    a(f"buffer_load_ubyte v{vjunk}, v{vpf}, s[12:15], s30 offen{NTW}")
    a(f"buffer_load_ubyte v{vjunk}, v{vpt}, s[12:15], s30 offen offset:1024{NTW}")
NPF = 2
vpt = V()
a(f"v_and_b32 v{t[1]}, 1, v0"); a(f"v_lshl_add_u32 v{vpt}, v{t[1]}, 4, v{t[2]}")
if PFAT == 0: prefetch()
CC = V(8, 4); SS = V(8, 4); SN = V(8, 4); XR = V(8, 4); XI = V(8, 4)
BA = V(24, 4); BB = V(24, 4); TCh = V(8); TSh = V(8)
D1r = BA + 8; D1i = BB + 8; D2r = BA; D2i = BB
TC = lambda k: BA + k if k < 8 else TCh + k - 8
TS_ = lambda k: BB + k if k < 8 else TSh + k - 8
assert V.n <= 128, V.n
a(f"v_and_b32 v{t[0]}, 7, v0"); a(f"v_bfe_u32 v{t[1]}, v0, 3, 2")
a(f"v_lshl_or_b32 v{vkn}, v{t[0]}, 2, v{t[1]}")
a(f"v_cvt_f32_u32 v{vb}, v{vkn}"); a(f"v_cvt_f32_u32 v{vo}, v{vL5}")
a(f"v_mul_f32 v{vb}, {fl(1/32)}, v{vb}"); a(f"v_mul_f32 v{vo}, 4.0, v{vo}"); a(f"v_mul_f32 v{vo}, v{vb}, v{vo}")
for i in range(0, 16, 2):
    for e in range(2):
        kc = 8 * ((i + e) // 4) + (i + e) % 4
        if kc == 0: a(f"v_mov_b32 v{t[e]}, v{vo}")
        else: a(f"v_fmamk_f32 v{t[e]}, v{vb}, {hx(f2u(float(kc)))}, v{vo}")
    a(f"v_cos_f32 v{t[2]}, v{t[0]}"); a(f"v_cos_f32 v{t[3]}, v{t[1]}")
    a(f"v_sin_f32 v{t[4]}, v{t[0]}"); a(f"v_sin_f32 v{t[5]}, v{t[1]}")
    a(f"v_mul_f32 v{t[0]}, {fl(1/32)}, v{t[0]}"); a(f"v_mul_f32 v{t[1]}, {fl(1/32)}, v{t[1]}")
    a(f"v_cvt_pk_bf16_f32 v{CC+i//2}, v{t[2]}, v{t[3]}")
    a(f"v_cvt_pk_bf16_f32 v{SS+i//2}, v{t[4]}, v{t[5]}")
    a(f"v_cvt_pk_bf16_f32 v{SN+i//2}, -v{t[4]}, -v{t[5]}")
    a(f"v_cos_f32 v{TC(i)}, v{t[0]}"); a(f"v_cos_f32 v{TC(i+1)}, v{t[1]}")
    a(f"v_sin_f32 v{TS_(i)}, v{t[0]}"); a(f"v_sin_f32 v{TS_(i+1)}, v{t[1]}")
    if PFAT == i // 2 + 1: prefetch()
a(f"v_lshlrev_b32 v{vtr}, 8, v{vL5}")
a(f"v_bfe_u32 v{t[0]}, v0, 2, 2"); a(f"v_lshl_or_b32 v{vtr}, v{t[0]}, 6, v{vtr}")
a(f"v_bfe_u32 v{t[0]}, v0, 4, 1"); a(f"v_lshl_or_b32 v{vtr}, v{t[0]}, 5, v{vtr}")
a(f"v_and_b32 v{t[0]}, 3, v0"); a(f"v_lshl_or_b32 v{vtr}, v{t[0]}, 3, v{vtr}")
a(f"v_add_u32 v{vtr}, s24, v{vtr}")
a(f"v_and_b32 v{t[0]}, 7, v0"); a(f"v_bfe_u32 v{t[1]}, v0, 3, 2"); a(f"v_lshlrev_b32 v{t[1]}, 1, v{t[1]}")
a(f"v_xor_b32 v{t[0]}, v{t[0]}, v{t[1]}"); a(f"v_xor_b32 v{t[0]}, v{t[0]}, v{vL5}")
a(f"v_lshlrev_b32 v{t[0]}, 4, v{t[0]}")
a(f"v_lshl_or_b32 v{vpw}, v{vkn}, 7, v{t[0]}")
a(f"s_add_u32 s26, s24, {L_P}")
a(f"v_add_u32 v{vpw}, s26, v{vpw}")
for c in range(1, 4): a(f"v_xor_b32 v{vpw+c}, {32*c}, v{vpw}")
vet = vb
a(f"v_and_b32 v{t[0]}, 7, v0"); a(f"v_and_b32 v{t[1]}, 16, v0"); a(f"v_lshl_or_b32 v{t[0]}, v{t[0]}, 1, v{t[1]}")
a(f"v_bfe_u32 v{t[1]}, v0, 3, 1"); a(f"v_lshl_or_b32 v{t[0]}, v{t[1]}, 7, v{t[0]}")
a("s_lshl_b32 s30, s51, 5"); a(f"s_add_u32 s30, s30, {L_N}"); a(f"v_add_u32 v{vet}, s30, v{t[0]}")
ts(1)
a(f"s_waitcnt vmcnt({1 + (NPF if PFAT <= 8 else 0)})")
ts(2)
tags()
for h in range(2):
    for r, X in ((0, XR), (1, XI)):
        for tt in range(2):
            a(f"ds_read_b64_tr_b16 {vr(X+4*h+2*tt,2)}, v{vtr} offset:{r*2048+h*1024+tt*512}")
def cpass(R, I, Dr, Di, h, first):
    c0 = "0" if first else vr(Dr, 16); c1 = "0" if first else vr(Di, 16)
    a(f"{M32} {vr(Dr,16)}, {vr(R+4*h,4)}, {vr(CC+4*h,4)}, {c0}")
    a(f"{M32} {vr(Di,16)}, {vr(I+4*h,4)}, {vr(CC+4*h,4)}, {c1}")
    a(f"{M32} {vr(Dr,16)}, {vr(I+4*h,4)}, {vr(SS+4*h,4)}, {vr(Dr,16)}")
    a(f"{M32} {vr(Di,16)}, {vr(R+4*h,4)}, {vr(SN+4*h,4)}, {vr(Di,16)}")
a("s_waitcnt lgkmcnt(4)")
cpass(XR, XI, D1r, D1i, 0, True)
a("s_waitcnt lgkmcnt(0)")
cpass(XR, XI, D1r, D1i, 1, False)
a("s_barrier")
for h in range(2):
    for i in range(8 * h, 8 * h + 8, 2):
        for e in range(2):
            k = i + e
            a(f"v_mul_f32 v{t[e]}, v{D1r+k}, v{TC(k)}")
            a(f"v_mul_f32 v{t[2+e]}, v{D1i+k}, v{TC(k)}")
            a(f"v_fmac_f32 v{t[e]}, v{D1i+k}, v{TS_(k)}")
            a(f"v_fma_f32 v{t[2+e]}, -v{D1r+k}, v{TS_(k)}, v{t[2+e]}")
        a(f"v_cvt_pk_bf16_f32 v{XR+i//2}, v{t[0]}, v{t[1]}")
        a(f"v_cvt_pk_bf16_f32 v{XI+i//2}, v{t[2]}, v{t[3]}")
    cpass(XR, XI, D2r, D2i, h, h == 0)
a(f"s_waitcnt vmcnt({NPF if PFAT <= 8 else 0})")
a(f"ds_write_b16 v{vet}, v{vj}")
PK = CC
for c in range(4):
    for e in range(4):
        a(f"v_cvt_pk_bf16_f32 v{PK+4*c+e}, v{D2r+4*c+e}, v{D2i+4*c+e}")
    a(f"ds_write_b128 v{vpw+c}, {vr(PK+4*c,4)}")
a("s_waitcnt lgkmcnt(0)")
ts(3)
a("s_barrier")
a("s_setprio 0")
p2_addr()
p2_item()
wvoff(vW, SC, SC + 1)
ts(4)
a("s_barrier")
ts(5)
EARLY = "early" in OPT
SPLIT = "split" in OPT
p2_const(hooks=wdma_list(vW, [0, 4], (0,) if SPLIT else (0, 1)))
ts(6)
a("s_branch L_p2")
a.label("L_h")
a.hist = []
V = VAlloc(6)
t = [V() for _ in range(8)]
XN = V(16, 4); GW = V(8, 4)
srd(8, 92, 2048)
a(f"buffer_load_dwordx4 {vr(GW,4)}, v{vl16}, s[8:11], 0 offen")
a(f"buffer_load_dwordx4 {vr(GW+4,4)}, v{vl16}, s[8:11], 0 offen offset:1024")
def prewrite():
    if "pw" in OPT or "pws" in OPT:
        a(f"v_lshlrev_b32 v{t[0]}, 7, v0")
        a("s_lshl_b32 s30, s53, 15"); a("s_lshl_b32 s31, s51, 13"); a("s_add_u32 s30, s30, s31"); a(f"s_add_u32 s30, s30, {hx(S_OFF)}")
    if "pw" in OPT or "pwt" in OPT:
        a(f"v_and_b32 v{t[1]}, 3, v0"); a(f"v_lshlrev_b32 v{t[1]}, 7, v{t[1]}"); a(f"v_bfe_u32 v{t[2]}, v0, 2, 3"); a(f"v_lshl_or_b32 v{t[1]}, v{t[2]}, 11, v{t[1]}")
        a(f"s_mul_i32 s31, s2, {TSB}"); a("s_lshl_b32 s29, s51, 9"); a("s_add_u32 s31, s31, s29")
        a("s_mov_b32 exec_hi, 0")
        a(f"buffer_store_dword v{t[1]}, v{t[1]}, s[16:19], s31 offen sc1")
        a("s_mov_b32 exec_hi, -1")
    if "pw" in OPT or "pws" in OPT:
        a(f"buffer_store_dword v{t[0]}, v{t[0]}, s[16:19], s30 offen sc1")
NPW = 2 if "pw" in OPT else (1 if ("pws" in OPT or "pwt" in OPT) else 0)
if "pwl" not in OPT: prewrite()
vnat = V(); a(f"v_add_u32 v{vnat}, s24, v{vl16}")
MA = V(4, 4)
DMB = V(48, 4)
vu = DMB; vA = DMB + 1; vB1 = DMB + 2; vB2 = DMB + 3; vsg = DMB + 4
a(f"v_mov_b32 v{t[3]}, {L_C}"); a(f"v_mov_b32 v{t[4]}, 0")
a(f"ds_write_b32 v{t[3]}, v{t[4]}")
a(f"v_bfe_u32 v{t[0]}, v0, 3, 1"); a(f"v_bfe_u32 v{t[1]}, v0, 1, 1")
a(f"v_lshl_or_b32 v{t[0]}, v{t[0]}, 1, v{t[1]}")
a(f"v_and_or_b32 v{vu}, v0, 4, v{t[0]}")
a(f"v_cvt_f32_u32 v{vu}, v{vu}")
a(f"v_cvt_f32_u32 v{vsg}, v{vL5}")
a(f"v_fma_f32 v{vsg}, v{vsg}, -2.0, 1.0")
a(f"v_mul_f32 v{vA}, v{vu}, v{vsg}")
a(f"v_mul_f32 v{vA}, {fl(0.125)}, v{vA}")
a(f"v_and_b32 v{t[0]}, 1, v0"); a(f"v_cvt_f32_u32 v{t[0]}, v{t[0]}")
a(f"v_mul_f32 v{vB1}, v{t[0]}, v{vsg}"); a(f"v_mul_f32 v{vB1}, {fl(0.25)}, v{vB1}")
a(f"v_cvt_f32_u32 v{t[1]}, s2"); a(f"v_mul_f32 v{t[1]}, {fl(1/256)}, v{t[1]}")
a(f"v_fmac_f32 v{vB1}, v{t[1]}, v{vA}")
a(f"v_add_f32 v{vB2}, {fl(0.25)}, v{vB1}")
for pp in range(4):
    if pp == 0: a(f"v_mov_b32 v{t[0]}, v{vB1}")
    else: a(f"v_fmamk_f32 v{t[0]}, v{vA}, {hx(f2u(2.0*pp))}, v{vB1}")
    a(f"v_fmamk_f32 v{t[1]}, v{vA}, {hx(f2u(2.0*pp+1))}, v{vB2}")
    a(f"v_cos_f32 v{t[2]}, v{t[0]}"); a(f"v_cos_f32 v{t[3]}, v{t[1]}")
    a(f"v_sin_f32 v{t[4]}, v{t[0]}"); a(f"v_sin_f32 v{t[5]}, v{t[1]}")
    a(f"v_add_f32 v{t[2]}, v{t[2]}, v{t[3]}")
    a(f"v_add_f32 v{t[4]}, v{t[4]}, v{t[5]}")
    a(f"v_cvt_pk_bf16_f32 v{MA+pp}, v{t[2]}, v{t[4]}")
vmr = V(5); vk = DMB + 5; vneg = DMB + 6
a("s_lshl_b32 s30, s51, 7")
a(f"v_lshlrev_b32 v{t[0]}, 2, v{vn}")
a(f"v_sub_u32 v{vneg}, 0, v{vL5}")
for q in range(5):
    if q < 4: a(f"v_add3_u32 v{vk}, v{t[0]}, s30, {q}")
    else: a(f"v_add_u32 v{vk}, 512, v{t[0]}")
    a(f"v_xor_b32 v{vk}, v{vk}, v{vneg}"); a(f"v_add_u32 v{vk}, v{vk}, v{vL5}")
    a(f"v_bfe_u32 v{t[1]}, v{vk}, 5, 5")
    a(f"v_bfe_u32 v{t[2]}, v{vk}, 7, 3")
    a(f"v_xor_b32 v{t[3]}, v{vk}, v{t[1]}")
    a(f"v_and_b32 v{t[3]}, 3, v{t[3]}")
    a(f"v_bfe_u32 v{t[4]}, v{vk}, 4, 1")
    a(f"v_lshl_or_b32 v{t[3]}, v{t[3]}, 1, v{t[4]}")
    a(f"v_xor_b32 v{t[3]}, v{t[3]}, v{t[2]}")
    a(f"v_and_b32 v{t[4]}, 12, v{vk}")
    a(f"v_lshl_or_b32 v{t[4]}, v{t[3]}, 4, v{t[4]}")
    a(f"v_lshl_or_b32 v{vmr+q}, v{t[1]}, 7, v{t[4]}")
vts = V(); veo = V(); vet2 = V(); vsig = V(); ves = V()
a(f"v_lshlrev_b32 v{t[0]}, 13, v{vL5}"); a(f"v_lshl_or_b32 v{vts}, v{vn}, 4, v{t[0]}")
EV = V(10, 2)
a(f"v_and_b32 v{t[0]}, 7, v0"); a(f"v_bfe_u32 v{t[1]}, v0, 3, 1")
a(f"v_lshlrev_b32 v{t[2]}, 3, v{t[1]}"); a(f"v_lshl_or_b32 v{ves}, v{t[0]}, 4, v{t[2]}")
a(f"v_and_b32 v{t[2]}, 3, v0"); a(f"v_cmp_eq_u32 vcc, 0, v{t[2]}")
a(f"v_lshrrev_b32 v{t[3]}, 2, v{t[0]}")
a(f"v_cvt_f32_u32 v{t[4]}, v{t[1]}"); a(f"v_fma_f32 v{t[4]}, v{t[4]}, -2.0, 1.0")
a(f"v_cndmask_b32 v{t[3]}, v{t[3]}, v{t[1]}, vcc")
a(f"v_cndmask_b32 v{vsig}, 0, v{t[4]}, vcc")
a(f"v_lshlrev_b32 v{t[0]}, 1, v{t[0]}"); a(f"v_lshl_or_b32 v{t[0]}, v{t[1]}, 6, v{t[0]}"); a(f"v_lshl_or_b32 v{t[0]}, v{t[3]}, 7, v{t[0]}")
a(f"v_add_u32 v{veo}, {L_N}, v{t[0]}"); a(f"v_xor_b32 v{vet2}, 64, v{veo}")
for k in range(8): a(f"v_mov_b32 v{EV+k}, 0")
a(f"s_mul_i32 s8, s2, {TSB}")
a("s_lshl_b32 s9, s51, 9"); a("s_add_u32 s9, s9, s8"); a("s_add_u32 s10, s9, 4096")
a("s_add_u32 s8, s8, 16384")
a("s_mov_b32 s11, 0xffff0000")
acc = V(4, 4); ones = V(); MB = XN; MB4 = GW
a(f"v_mov_b32 v{ones}, 0x3f803f80")
a(f"v_mov_b32 v{acc}, 0"); a(f"v_mov_b32 v{acc+2}, 0")
vWh = V()
wvoff(vWh, t[0], t[1])
assert V.n <= 128, V.n
a("s_waitcnt lgkmcnt(0)")
if "pwl" in OPT: prewrite()
ts(1)
if EARLY and "e0" in OPT:
    for op in wdma_list(vWh, [0]): op()
a("s_barrier")
for r in range(2):
    for q in range(2):
        a(f"ds_read_b128 {vr(XN+8*r+4*q,4)}, v{vnat} offset:{r*2048+q*1024}")
a("s_waitcnt vmcnt(0) lgkmcnt(0)")
tags()
a("s_cmp_eq_u32 s51, 1")
if "nopw" not in OPT:
    a("s_cselect_b32 exec_lo, -1, 0"); a("s_cselect_b32 exec_hi, -1, 0")
    for k in range(4): a(f"v_mov_b32 v{DMB+k}, s49")
    a(f"buffer_store_dwordx4 {vr(DMB,4)}, v{vl16}, s[16:19], s57 offen sc1")
a("s_mov_b64 exec, -1")
def ecompute():
    a(f"v_add_f32 v{EV+8}, v{EV}, v{EV+1}"); a(f"v_sub_f32 v{EV+9}, v{EV+2}, v{EV+3}")
    a(f"v_add_f32 v{EV+4}, v{EV+4}, v{EV+5}"); a(f"v_sub_f32 v{EV+6}, v{EV+6}, v{EV+7}")
    a(f"v_fma_f32 v{EV+8}, -v{vsig}, v{EV+6}, v{EV+8}"); a(f"v_fmac_f32 v{EV+9}, v{vsig}, v{EV+4}")
    a("s_cmp_eq_u32 s51, 1"); a("s_cselect_b32 exec_lo, 0xffff, 0"); a("s_mov_b32 exec_hi, 0")
    a(f"buffer_store_dwordx2 {vr(EV+8,2)}, v{ves}, s[16:19], s8 offen sc1")
    a("s_mov_b64 exec, -1")
ts(2)
if "pt2" in OPT:
    a(f"v_lshlrev_b32 v{t[0]}, 7, v0")
    a("s_lshl_b32 s30, s53, 15"); a("s_lshl_b32 s31, s51, 13"); a("s_add_u32 s30, s30, s31"); a(f"s_add_u32 s30, s30, {hx(S_OFF)}")
    a(f"buffer_load_ubyte v1, v{t[0]}, s[16:19], s30 offen")
eops = wdma_list(vWh, [0]) if (EARLY and "e0" not in OPT) else []
for j in range(8):
    if eops: eops.pop(0)()
    a(f"v_lshlrev_b32 v{t[6]}, 16, v{GW+j}")
    a(f"v_and_b32 v{t[7]}, s11, v{GW+j}")
    for r in range(2):
        a(f"v_lshlrev_b32 v{t[2*r]}, 16, v{XN+8*r+j}")
        a(f"v_and_b32 v{t[2*r+1]}, s11, v{XN+8*r+j}")
    for r in range(2):
        a(f"v_mul_f32 v{t[2*r]}, v{t[2*r]}, v{t[6]}")
        a(f"v_mul_f32 v{t[2*r+1]}, v{t[2*r+1]}, v{t[7]}")
    for r in range(2): a(f"v_cvt_pk_bf16_f32 v{t[4+r]}, v{t[2*r]}, v{t[2*r+1]}")
    for r in range(2): a(f"v_dot2_f32_bf16 v{acc+2*r}, v{t[4+r]}, v{ones}, v{acc+2*r}")
ts(3)
a("s_setprio 2")
a("s_barrier")
ts(4)
o = L_P // 256
a(f"ds_read2st64_b32 {vr(MB4,2)}, v{vmr+4} offset0:{o} offset1:{o+16}")
a(f"ds_read2st64_b32 {vr(MB4+2,2)}, v{vmr+4} offset0:{o+32} offset1:{o+48}")
for q in range(4):
    a(f"ds_read2st64_b32 {vr(MB+4*q,2)}, v{vmr+q} offset0:{o} offset1:{o+16}")
    a(f"ds_read2st64_b32 {vr(MB+4*q+2,2)}, v{vmr+q} offset0:{o+32} offset1:{o+48}")
for k in range(4):
    a(f"ds_read_u16_d16_hi v{EV+k}, v{veo} offset:{16*k}")
    a(f"ds_read_u16_d16_hi v{EV+4+k}, v{vet2} offset:{16*k}")
DN = DMB; DM = [DMB + 8 + 8 * q for q in range(4)]
a("s_waitcnt lgkmcnt(15)")
a(f"{M32} {vr(DN,16)}, {vr(MA,4)}, {vr(MB4,4)}, 0")
for q in range(4):
    a(f"s_waitcnt lgkmcnt({14-2*q})")
    a(f"{M32} {vr(DM[q],16)}, {vr(MA,4)}, {vr(MB+4*q,4)}, 0")
a("s_waitcnt lgkmcnt(0)")
ecompute()
a("s_cmp_eq_u32 s51, 0"); a("s_cselect_b32 exec_lo, 1, 0"); a("s_cselect_b32 exec_hi, 1, 0")
a(f"v_sub_f32 v{DM[0]}, v{DM[0]}, v{DN+1}"); a(f"v_add_f32 v{DM[0]+1}, v{DM[0]+1}, v{DN}")
a("s_mov_b32 exec_lo, 0")
for k in range(2, 8): a(f"v_mov_b32 v{DM[0]+k}, v{DN+k}")
a("s_mov_b64 exec, -1")
OUT = MB
for s_ in range(4):
    for q in range(4):
        a(f"v_cvt_pk_bf16_f32 v{OUT+4*s_+q}, v{DM[q]+2*s_}, v{DM[q]+2*s_+1}")
    a(f"buffer_store_dwordx4 {vr(OUT+4*s_,4)}, v{vts}, s[16:19], {'s9' if s_ < 2 else 's10'} offen offset:{(s_&1)*2048} sc1")
a("s_barrier")
ts(5)
for dpp in ("row_shr:1", "row_shr:2", "row_shr:4", "row_shr:8"):
    for r in range(2):
        a(f"v_add_f32_dpp v{acc+2*r}, v{acc+2*r}, v{acc+2*r} {dpp} row_mask:0xf bank_mask:0xf bound_ctrl:0")
for dpp, rm in (("row_bcast:15", "0xa"), ("row_bcast:31", "0xc")):
    for r in range(2):
        a(f"v_add_f32_dpp v{acc+2*r}, v{acc+2*r}, v{acc+2*r} {dpp} row_mask:{rm} bank_mask:0xf")
a(f"v_cvt_pk_bf16_f32 v{t[0]}, v{acc}, v{acc+2}")
a(f"v_lshlrev_b32 v{t[1]}, 16, v{t[0]}")
a(f"v_and_b32 v{t[2]}, s11, v{t[0]}")
for r in range(2): a(f"v_mul_f32 v{t[1+r]}, {hx(f2u(-1.4426950408889634))}, v{t[1+r]}")
for r in range(2): a(f"v_exp_f32 v{t[1+r]}, v{t[1+r]}")
for r in range(2): a(f"v_add_f32 v{t[1+r]}, 1.0, v{t[1+r]}")
for r in range(2): a(f"v_rcp_f32 v{t[1+r]}, v{t[1+r]}")
a(f"v_cvt_pk_bf16_f32 v{t[0]}, v{t[1]}, v{t[2]}")
a(f"v_lshlrev_b32 v{acc}, 16, v{t[0]}")
a(f"v_and_b32 v{acc+2}, s11, v{t[0]}")
a(f"v_sub_f32 v{t[1]}, 1.0, v{acc}")
a(f"v_sub_f32 v{t[2]}, 1.0, v{acc+2}")
a(f"v_cvt_pk_bf16_f32 v{t[0]}, v{t[1]}, v{t[2]}")
a(f"v_lshlrev_b32 v{acc+1}, 16, v{t[0]}")
a(f"v_and_b32 v{acc+3}, s11, v{t[0]}")
for r in range(4): a(f"v_mul_f32 v{acc+r}, {hx(f2u(2.0**-22))}, v{acc+r}")
a("s_lshl_b32 s30, s51, 4"); a(f"s_add_u32 s30, s30, {L_G}")
a(f"v_mov_b32 v{t[3]}, s30")
a("s_mov_b32 exec_lo, 0"); a("s_mov_b32 exec_hi, 0x80000000")
a(f"ds_write_b128 v{t[3]}, {vr(acc,4)}")
a("s_mov_b64 exec, -1")
a(f"v_mov_b32 v{t[3]}, {L_C}"); a(f"v_mov_b32 v{t[4]}, 1")
for k in range(4): a(f"v_mov_b32 v{DMB+k}, s48")
a("s_mov_b64 exec, 1")
a("s_waitcnt vmcnt(0)")
a(f"ds_add_rtn_u32 v{t[5]}, v{t[3]}, v{t[4]}")
a("s_waitcnt lgkmcnt(0)")
a(f"v_readfirstlane_b32 s30, v{t[5]}")
a("s_cmp_eq_u32 s30, 3"); a("s_cselect_b32 exec_lo, -1, 0"); a("s_cselect_b32 exec_hi, -1, 0")
a(f"buffer_store_dwordx4 {vr(DMB,4)}, v{vl16}, s[16:19], s57 offen {FSF}")
a("s_mov_b64 exec, -1")
def stouch(vt):
    a(f"v_lshlrev_b32 v{vt}, 7, v0")
    a(f"s_mul_i32 s30, s2, {TSB}"); a("s_lshl_b32 s31, s51, 12"); a("s_add_u32 s30, s30, s31"); a(f"s_add_u32 s30, s30, {hx(U_OFF)}")
    a("s_mov_b32 exec_hi, 0")
    a(f"buffer_load_ubyte v1, v{vt}, s[16:19], s30 offen")
    a("s_mov_b32 exec_hi, -1")
if "pt1" in OPT: stouch(t[0])
a("s_setprio 0")
ts(6)
p2_addr(); p2_item(); wvoff(vW, SC, SC + 1); p2_const()
if optint("pa", 0): a(f"s_sleep {optint('pa', 0)}")
a.label("L_p2")
a.hist = []
t = [SC + k for k in range(6)]
if "pt7" in OPT:
    a("s_and_b32 s30, s54, 1"); a("s_cmp_eq_u32 s30, 0"); a("s_cselect_b32 s30, s24, s26"); a(f"s_add_u32 s30, s30, {hx(U_OFF)}")
    a("s_mov_b32 exec_lo, 0x11111111"); a("s_mov_b32 exec_hi, 0x11111111")
    a(f"buffer_load_ubyte v1, v{vT}, s[16:19], s30 offen")
    a("s_mov_b64 exec, -1")
if "ga" in OPT: a("s_barrier")
ts(7)
if "pw3" in OPT:
    a(f"v_lshrrev_b32 v{TB}, 2, v0"); a(f"v_and_b32 v{TB+1}, 3, v0"); a(f"v_lshlrev_b32 v{TB+1}, 6, v{TB+1}"); a(f"v_lshl_or_b32 v{TB+2}, v{TB}, 11, v{TB+1}")
    a(f"buffer_store_dword v{TB+2}, v{TB+2}, s[16:19], s30 offen sc1")
poll("L_poll1", vF, TB, "s8", "s48")
def f2pre():
    if "nopw" in OPT: return
    a(f"v_mov_b32 v{TB}, s48"); a(f"v_lshlrev_b32 v{TB+1}, 2, v0")
    a("s_mov_b32 exec_hi, 0")
    a(f"buffer_store_dword v{TB}, v{TB+1}, s[16:19], s9 offen sc1")
    a("s_mov_b32 exec_hi, -1")
ts(8)
if "st2" in OPT: a("s_add_u32 s70, s60, s58")
a.label("L_p2c")
a("s_setprio 1")
a("s_mov_b32 m0, s27")
a(f"buffer_load_dwordx4 v{vT}, s[16:19], s24 offen {TLF} lds")
a("s_add_u32 m0, s27, 1024")
a(f"buffer_load_dwordx4 v{vT}, s[16:19], s26 offen {TLF} lds")
a("s_lshl_b32 s29, s3, 9"); a(f"s_add_u32 s29, s29, {L_E}"); a("s_mov_b32 m0, s29")
a("s_mov_b32 exec_lo, s59"); a("s_mov_b32 exec_hi, 0")
a(f"buffer_load_dwordx4 v{vEa}, s[16:19], s50 offen sc1 lds")
a("s_mov_b64 exec, -1")
PW2 = "pw2" in OPT or "pw3" in OPT
def pw2():
    a(f"v_lshrrev_b32 v{TB}, 2, v0"); a(f"v_and_b32 v{TB+1}, 3, v0"); a(f"v_lshlrev_b32 v{TB+1}, 6, v{TB+1}"); a(f"v_lshl_or_b32 v{TB}, v{TB}, 11, v{TB+1}")
    if "pwh" in OPT: a("s_mov_b32 exec_lo, 0x55555555"); a("s_mov_b32 exec_hi, 0x55555555")
    a(f"buffer_store_dword v{TB}, v{TB}, s[16:19], s30 offen sc1")
    if "pwh" in OPT: a("s_mov_b64 exec, -1")
if "pw2" in OPT: pw2()
if SPLIT:
    for op in wdma_list(vW, [0], (1,)): op()
def wread(cc):
    a("s_not_b32 exec_lo, s52"); a("s_not_b32 exec_hi, s52")
    for arr in range(4):
        for i in range(4):
            a(f"ds_read_u16_d16_hi v{Wi(arr,cc,i)}, v{vWr} offset:{1536*arr+768*cc+48*i}")
    a("s_mov_b64 exec, -1")
a("s_barrier")
if "ptw" in OPT:
    a(f"v_lshrrev_b32 v{TB}, 1, v0"); a(f"v_and_b32 v{TB+1}, 1, v0"); a(f"v_lshlrev_b32 v{TB+1}, 7, v{TB+1}"); a(f"v_lshl_or_b32 v{TB}, v{TB}, 11, v{TB+1}")
    a("s_mov_b32 exec_hi, 0")
    a(f"buffer_load_ubyte v1, v{TB}, s[16:19], s30 offen")
    a("s_mov_b32 exec_hi, -1")
wread(0)
if not SPLIT: wread(1)
PKD = SC + 8
a(f"s_waitcnt vmcnt({4 if SPLIT else (1 if ('pw2' in OPT or 'ptw' in OPT) else 0)})")
if ST: a("s_waitcnt lgkmcnt(0)")
ts(9)
def pt9():
    a("s_and_b32 s30, s54, 1"); a("s_cmp_eq_u32 s30, 0"); a("s_cselect_b32 s30, s24, s26"); a(f"s_add_u32 s30, s30, {hx(U_OFF)}")
    a("s_mov_b32 exec_lo, 0x11111111"); a("s_mov_b32 exec_hi, 0x11111111")
    a(f"buffer_load_ubyte v1, v{vT}, s[16:19], s30 offen")
    a("s_mov_b64 exec, -1")
if "pt9" in OPT: pt9()
a(f"ds_read2_b32 {vr(TB,2)}, v{vTr} offset0:0 offset1:16")
a(f"ds_read2_b32 {vr(TB+2,2)}, v{vTr} offset0:32 offset1:48")
a(f"v_add_u32 v{vTr}, 1024, v{vTr}")
a(f"ds_read2_b32 {vr(TB+4,2)}, v{vTr} offset0:0 offset1:16")
a(f"ds_read2_b32 {vr(TB+6,2)}, v{vTr} offset0:32 offset1:48")
a.label("L_p2e")
for bb in range(2):
    a(f"s_waitcnt lgkmcnt({2-2*bb})")
    a(f"{M16} {vr(D+8*bb,4)}, {vr(Fr,4)}, {vr(TB+4*bb,4)}, 0")
    a(f"{M16} {vr(D+8*bb+4,4)}, {vr(Fm,4)}, {vr(TB+4*bb,4)}, 0")
for ip in range(2):
    for cc in range(2):
        for bb in range(2):
            i = 2 * ip + cc
            a(f"v_cvt_pk_bf16_f32 v{PKD+4*ip+2*cc+bb}, v{D+8*bb+i}, v{D+8*bb+4+i}")
    a(f"ds_write_b128 v{vw1}, {vr(PKD+4*ip,4)} offset:{ip*256}")
a("s_cmp_lg_u32 s54, 0")
a("s_cbranch_scc0 L_el")
a.label("L_elb")
a("s_waitcnt lgkmcnt(0)")
f2pre()
a("s_barrier")
OB = TB
for cc in range(2):
    for h in range(2):
        a(f"ds_read_b64 {vr(OB+4*cc+2*h,2)}, v{vr1} offset:{h*2048+cc*8}")
X = D
for cc in range(2):
    a(f"s_waitcnt lgkmcnt({2-2*cc})")
    a(f"{M16} {vr(X+8*cc,4)}, {vr(M2+8*cc,4)}, {vr(OB+4*cc,4)}, 0")
    a(f"{M16} {vr(X+8*cc+4,4)}, {vr(M2+8*cc+4,4)}, {vr(OB+4*cc,4)}, 0")
YO = [PKD, PKD + 4, PKD, PKD + 4]
tpr = [(vT, vTr), (vr1, vw1)]
if SPLIT:
    a(f"s_waitcnt vmcnt({0 if 'nopw' in OPT else 1})")
    wread(1)
def dpt(cc, ab, ri): return WW + 16 * cc + 8 * ab + 4 * ri
def wmul(cc, ab):
    n = 2 * cc + ab
    xr = X + 8 * cc; xi = X + 8 * cc + 4
    for i in range(4):
        wr = Wi(2 * ab, cc, i); wi = Wi(2 * ab + 1, cc, i)
        y0, y1 = tpr[i & 1]
        a(f"v_mul_f32 v{y0}, v{xr+i}, v{wr}")
        a(f"v_mul_f32 v{y1}, v{xi+i}, v{wr}")
        a(f"v_fma_f32 v{y0}, -v{xi+i}, v{wi}, v{y0}")
        a(f"v_fmac_f32 v{y1}, v{xr+i}, v{wi}")
        a(f"v_cvt_pk_bf16_f32 v{YO[n]+i}, v{y1}, v{y0}")
    a(f"{M16} {vr(dpt(cc,ab,0),4)}, {vr(MT+8*cc,4)}, {vr(YO[n],4)}, 0")
    a(f"{M16} {vr(dpt(cc,ab,1),4)}, {vr(MT+8*cc+4,4)}, {vr(YO[n],4)}, 0")
a("s_and_b32 s29, s2, 0xfb")
a("s_cmp_eq_u32 s29, 0")
a("s_cbranch_scc1 L_sp")
for cc in range(2):
    if cc == 1: a("s_waitcnt lgkmcnt(0)")
    for ab in range(2): wmul(cc, ab)
a.label("L_spb")
XP2 = X
P2 = D
for ab in range(2):
    for ip in range(2):
        for cc in range(2):
            for bb in range(2):
                i = 2 * ip + bb
                a(f"v_cvt_pk_bf16_f32 v{P2+8*ab+4*ip+2*bb+cc}, v{dpt(cc,ab,0)+i}, v{dpt(cc,ab,1)+i}")
        a(f"ds_write_b128 v{vw2}, {vr(P2+8*ab+4*ip,4)} offset:{2048*ab+ip*256}")
a("s_waitcnt lgkmcnt(0)")
a("s_barrier")
O2 = WW + 16
X4 = False
order = [(0, 1), (1, 1), (0, 0), (1, 0)]
for bb, ab in order:
    for h in range(2):
        a(f"ds_read_b64 {vr(O2+8*bb+4*ab+2*h,2)}, v{vr2} offset:{WR*h+2048*ab+bb*8}")
E = [M2, M2 + 8, MT, MT + 8]
for k_, (bb, ab) in enumerate(order):
    n = 2 * bb + ab
    a(f"s_waitcnt lgkmcnt({6-2*k_})")
    if Y4:
        a(f"{M16} {vr(E[n],4)}, {vr(O2+4*n,4)}, {vr(Fr,4)}, 0")
        a(f"{M16} {vr(E[n]+4,4)}, {vr(O2+4*n,4)}, {vr(Fm,4)}, 0")
    else:
        a(f"{M16} {vr(E[n],4)}, {vr(Fr,4)}, {vr(O2+4*n,4)}, 0")
        a(f"{M16} {vr(E[n]+4,4)}, {vr(Fm,4)}, {vr(O2+4*n,4)}, 0")
SO = WW
for ab in (1, 0):
    for bb in range(2):
        n = 2 * bb + ab
        if Y4:
            for i in range(4): a(f"v_cvt_pk_bf16_f32 v{SO+4*n+i}, v{E[n]+4+i}, v{E[n]+i}")
            a(f"s_add_u32 s30, s24, {hx(bb*TSB + ab*U_OFF)}")
            a(f"buffer_store_dwordx4 {vr(SO+4*n,4)}, v{vS}, s[16:19], s30 offen {SSF}")
            continue
        for i in range(4):
            a(f"v_cvt_pk_bf16_f32 v{SO+8*bb+2*i+ab}, v{E[n]+4+i}, v{E[n]+i}")
            a(f"s_add_u32 s30, s24, {hx((16*i+bb)*TSB + ab*U_OFF)}")
            a(f"buffer_store_dword v{SO+8*bb+2*i+ab}, v{vS}, s[16:19], s30 offen {SSF}")
ts(10)
if "swb" in OPT:
    a("s_waitcnt vmcnt(0)")
    a("buffer_wbl2 sc1")
amx_post(t[0])
setflag(t[0], "s9", "s49")
if "st2" in OPT: ts(1)
a("s_setprio 0")
V = VAlloc(8)
vg_ = vg; vc_ = vc
t = [V() for _ in range(6)]
vS3 = 1; vN = 2; vF3 = 7; AP8 = V(); AMx = V()
MR = V(16, 4); MI = V(16, 4); X = V(16, 4)
BA = V(24, 4); BB = V(24, 4); TCh = V(8); TSh = V(8)
assert V.n <= 128, V.n
D1r = BA + 8; D1i = BB + 8; D2r = BA; D2i = BB
SBt = [D1r, D1r + 4, D1r + 8, D1r + 12, X]
DDt = [D1i, D1i + 4, D1i + 8, D1i + 12, X + 4]
MA = X + 8; AP = X + 12; AM = [X + 13, X + 14, X + 15, AMx]
CS = D1r; GG = D1i
a(f"v_bfe_u32 v{t[0]}, v0, 2, 2"); a(f"v_lshlrev_b32 v{t[1]}, 4, v{t[0]}")
a(f"v_add_u32 v{t[1]}, {L_G}, v{t[1]}")
a(f"ds_read_b128 {vr(GG,4)}, v{t[1]}")
if X4:
    a(f"v_and_b32 v{t[1]}, 1, v0"); a(f"v_lshlrev_b32 v{t[1]}, 3, v{t[1]}")
    a(f"v_lshl_or_b32 v{t[1]}, v{t[0]}, 4, v{t[1]}")
    a(f"v_bfe_u32 v{t[2]}, v0, 1, 1"); a(f"v_lshl_or_b32 v{t[1]}, v{t[2]}, 6, v{t[1]}")
else:
    a(f"v_lshlrev_b32 v{t[1]}, 2, v{vc_}")
SD = "sd" in OPT
RS = 2080
if SD:
    a(f"v_mul_u32_u24 v{vS3}, {2*RS}, v{vg_}"); a(f"v_add_u32 v{vS3}, v{vS3}, v{t[1]}")
    a(f"v_lshlrev_b32 v{vN}, 4, v0")
else:
    a(f"v_lshl_or_b32 v{vS3}, v{vg_}, 12, v{t[1]}")
a("s_xor_b32 s50, s3, 4")
a(f"s_mul_i32 s8, s2, {TSB}")
if SD:
    a("s_lshl_b32 s11, s50, 6"); a(f"s_add_u32 s11, s11, {L_W}"); a(f"v_add_u32 v{vS3}, s11, v{vS3}"); a(f"v_add_u32 v{AP8}, {RS}, v{vS3}")
    a("s_lshl_b32 s11, s3, 11"); a("s_add_u32 s8, s8, s11"); a(f"s_add_u32 s10, s8, {hx(U_OFF)}")
    a(f"s_mul_i32 s9, s3, {RS}"); a(f"s_add_u32 s9, s9, {L_W}")
else:
    a("s_lshl_b32 s11, s50, 6"); a("s_add_u32 s8, s8, s11"); a(f"s_add_u32 s10, s8, {hx(U_OFF)}")
if SD:
    a("s_lshl_b32 s11, s3, 5"); a(f"v_add_u32 v{t[1]}, s11, v{vn}")
else:
    a(f"v_bfe_u32 v{t[1]}, v0, 2, 3"); a(f"v_and_b32 v{t[2]}, 3, v0"); a(f"v_lshlrev_b32 v{t[2]}, 3, v{t[2]}")
    a(f"v_lshl_add_u32 v{t[1]}, v{t[1]}, 5, v{t[2]}"); a(f"v_add_u32 v{t[1]}, s50, v{t[1]}")
a("s_cmp_eq_u32 s50, 0"); a("s_cselect_b32 s24, 0x00010001, 0")
a(f"v_lshlrev_b32 v{vF3}, 10, v{t[1]}")
a("s_bfe_u32 s11, s2, 0x30001"); a("s_lshl_b32 s11, s11, 7"); a(f"s_add_u32 s11, s11, {hx(F2_OFF)}")
vsg = X; ve = X + 1; vstep = X + 2; vpe = X + 3; vpo = X + 4; vk = X + 5; vpl = X + 6
a(f"v_bfe_u32 v{t[1]}, v0, 1, 1"); a(f"v_cvt_f32_u32 v{vsg}, v{t[1]}")
a(f"v_mul_f32 v{vsg}, -0.5, v{vsg}"); a(f"v_add_f32 v{vsg}, {fl(0.25)}, v{vsg}")
a(f"v_and_b32 v{t[1]}, 1, v0"); a(f"v_cvt_f32_u32 v{t[1]}, v{t[1]}")
a(f"v_mul_f32 v{ve}, v{t[1]}, v{vsg}")
a(f"v_lshlrev_b32 v{t[0]}, 9, v{t[0]}"); a(f"v_add_u32 v{t[0]}, s2, v{t[0]}")
a(f"v_cvt_f32_u32 v{vstep}, v{t[0]}"); a(f"v_mul_f32 v{vstep}, {hx(f2u(-1/2048))}, v{vstep}")
a(f"v_cvt_f32_u32 v{t[2]}, v{vg_}"); a(f"v_add_f32 v{t[2]}, v{t[2]}, v{t[2]}")
a(f"v_fma_f32 v{vpe}, v{t[2]}, v{vstep}, v{ve}")
a(f"v_sub_f32 v{vpo}, v{vpe}, v{vsg}")
a(f"v_fmamk_f32 v{vpo}, v{t[2]}, {hx(f2u(-0.125))}, v{vpo}")
for lo in range(2):
    if lo:
        a(f"v_add_f32 v{vpe}, v{vpe}, v{vstep}")
        a(f"v_add_f32 v{vpo}, v{vpo}, v{vstep}"); a(f"v_add_f32 v{vpo}, {hx(f2u(-0.125))}, v{vpo}")
    a(f"v_cos_f32 v{CS+4*lo}, v{vpe}"); a(f"v_sin_f32 v{CS+4*lo+1}, v{vpe}")
    a(f"v_cos_f32 v{CS+4*lo+2}, v{vpo}"); a(f"v_sin_f32 v{CS+4*lo+3}, v{vpo}")
a("s_lshl_b32 s25, s50, 4")
a(f"v_lshlrev_b32 v{vpl}, 12, v{vg_}")
a(f"v_add_u32 v{vk}, s25, v{vc_}")
a(f"v_and_b32 v{t[3]}, 14, v{vk}"); a(f"v_lshl_or_b32 v{t[3]}, v{t[3]}, 3, v{vpl}")
a(f"v_and_b32 v{t[4]}, 31, v{vk}"); a(f"v_lshl_or_b32 v{t[3]}, v{t[4]}, 7, v{t[3]}")
a(f"v_bfe_u32 v{t[4]}, v{vk}, 5, 2"); a(f"v_lshl_or_b32 v{AP}, v{t[4]}, 2, v{t[3]}")
a(f"v_sub_u32 v{t[5]}, 0, v{vk}")
a(f"v_and_b32 v{t[4]}, 31, v{t[5]}"); a(f"v_lshl_or_b32 v{t[3]}, v{t[4]}, 7, v{vpl}")
a(f"v_and_b32 v{t[4]}, 14, v{t[5]}"); a(f"v_lshl_or_b32 v{t[3]}, v{t[4]}, 3, v{t[3]}")
a(f"v_lshrrev_b32 v{t[5]}, 3, v{t[5]}")
for tt in range(4):
    if tt: a(f"v_subrev_u32 v{t[5]}, 16, v{t[5]}")
    a(f"v_and_b32 v{t[4]}, 0x7c, v{t[5]}")
    a(f"v_xor_b32 v{AM[tt]}, v{t[4]}, v{t[3]}")
a("s_mov_b32 exec_lo, s24"); a("s_mov_b32 exec_hi, s24")
a(f"v_or_b32 v{AM[0]}, 64, v{vpl}")
a("s_mov_b64 exec, -1")
a("s_waitcnt lgkmcnt(0)")
for lo in range(2):
    for ab in range(2):
        a(f"v_mul_f32 v{t[0]}, v{GG+ab}, v{CS+4*lo}"); a(f"v_mul_f32 v{t[1]}, v{GG+ab}, v{CS+4*lo+1}")
        a(f"v_fmac_f32 v{t[0]}, v{GG+2+ab}, v{CS+4*lo+2}"); a(f"v_fmac_f32 v{t[1]}, v{GG+2+ab}, v{CS+4*lo+3}")
        a(f"v_cvt_pk_bf16_f32 v{MA+2*lo+ab}, v{t[0]}, v{t[1]}")
a("s_cmp_eq_u32 s3, 4")
a("s_cbranch_scc1 L_m0")
a("s_cmp_ge_u32 s3, 4")
a("s_cbranch_scc1 L_p3b")
TC = lambda k: BA + k if k < 8 else TCh + k - 8
TS_ = lambda k: BB + k if k < 8 else TSh + k - 8
vb = X; vo = X + 1
a(f"v_cvt_f32_u32 v{vb}, v{vn}"); a(f"v_cvt_f32_u32 v{vo}, v{vL5}")
a(f"v_mul_f32 v{vb}, {fl(1/32)}, v{vb}"); a(f"v_mul_f32 v{vo}, 4.0, v{vo}"); a(f"v_mul_f32 v{vo}, v{vb}, v{vo}")
for i in range(16):
    kc = 8 * (i // 4) + i % 4
    if kc == 0: a(f"v_mov_b32 v{t[0]}, v{vo}")
    else: a(f"v_fmamk_f32 v{t[0]}, v{vb}, {hx(f2u(float(kc)))}, v{vo}")
    a(f"v_cos_f32 v{t[1]}, v{t[0]}"); a(f"v_sin_f32 v{t[2]}, v{t[0]}")
    a(f"v_mul_f32 v{t[0]}, {fl(1/32)}, v{t[0]}")
    a(f"v_cvt_pk_bf16_f32 v{MR+i}, v{t[1]}, -v{t[2]}")
    a(f"v_cvt_pk_bf16_f32 v{MI+i}, v{t[2]}, v{t[1]}")
    a(f"v_cos_f32 v{TC(i)}, v{t[0]}"); a(f"v_sin_f32 v{TS_(i)}, v{t[0]}")
a.label("L_p3b")
if "nogb" not in OPT: a("s_barrier")
if optint("pb", 0): a(f"s_sleep {optint('pb', 0)}")
ts(11)
poll("L_poll2", vF3, t[0], "s11", "s49")
ts(12)
if "st2" in OPT: a("s_add_u32 s64, s60, s58")
if SD:
    for ab in range(2):
        a(f"s_add_u32 m0, s9, {ab*8*RS}")
        a(f"buffer_load_dwordx4 v{vN}, s[16:19], {'s10' if ab else 's8'} offen {SLF} lds")
        a(f"buffer_load_dwordx4 v{vN}, s[16:19], {'s10' if ab else 's8'} offen offset:1024 {SLF} lds")
    a("s_waitcnt vmcnt(0)")
    a("s_barrier")
    for tt in range(4):
        for lo in range(2):
            a(f"ds_read2st64_b32 {vr(SBt[tt]+2*lo,2)}, v{AP8 if lo else vS3} offset0:{2*tt} offset1:{2*tt + 8*RS//256}")
else:
  for tt in range(4):
    for lo in range(2):
        for ab in range(2):
            a(f"buffer_load_dword v{SBt[tt]+2*lo+ab}, v{vS3}, s[16:19], {'s10' if ab else 's8'} offen offset:{tt*512+lo*2048} {SLF}")
MA0 = MR
def fin(tt):
    d = DDt[tt]
    if tt == 0:
        a("s_mov_b32 exec_lo, s24"); a("s_mov_b32 exec_hi, s24")
        for k in range(4): a(f"v_mov_b32 v{d+k}, v{DDt[4]+k}")
        a("s_mov_b64 exec, -1")
    a(f"v_cvt_pk_bf16_f32 v{d}, v{d}, v{d+1}")
    a(f"v_cvt_pk_bf16_f32 v{d+1}, v{d+2}, v{d+3}")
    if tt: a(f"v_xor_b32 v{t[tt]}, {tt<<4}, v{AP}")
    a(f"ds_write_b32 v{t[tt] if tt else AP}, v{d}")
    a(f"ds_write_b32 v{AM[tt]}, v{d+1}")
if SD:
    for tt in range(4):
        a(f"s_waitcnt lgkmcnt({6-2*tt})")
        a(f"{M16} {vr(DDt[tt],4)}, {vr(MA,4)}, {vr(SBt[tt],4)}, 0")
        if tt == 0: a(f"{M16} {vr(DDt[4],4)}, {vr(MA0,4)}, {vr(SBt[0],4)}, 0")
    for tt in range(4): fin(tt)
else:
    for tt in range(4):
        a(f"s_waitcnt vmcnt({12-4*tt})")
        a(f"{M16} {vr(DDt[tt],4)}, {vr(MA,4)}, {vr(SBt[tt],4)}, 0")
        if tt == 0: a(f"{M16} {vr(DDt[4],4)}, {vr(MA0,4)}, {vr(SBt[0],4)}, 0")
        if tt >= 1: fin(tt - 1)
    fin(3)
vst = vS3
a(f"v_bfe_u32 v{t[4]}, v{vn}, 1, 3"); a(f"v_xor_b32 v{t[4]}, v{t[4]}, v{vL5}"); a(f"v_lshlrev_b32 v{t[4]}, 4, v{t[4]}")
a(f"v_lshl_or_b32 v{t[4]}, v{vn}, 7, v{t[4]}"); a("s_lshl_b32 s26, s51, 12")
a("s_waitcnt lgkmcnt(0)")
a(f"v_add_u32 v{t[0]}, s26, v{t[4]}")
for q in range(1, 4): a(f"v_xor_b32 v{t[q]}, {32*q}, v{t[0]}")
a(f"v_lshlrev_b32 v{t[4]}, 4, v{vL5}"); a(f"v_lshl_or_b32 v{vst}, v{vn}, 6, v{t[4]}")
srd(12, 94, 2048 * 2048)
a("s_add_u32 s30, s22, 0x80000")
if "st2" in OPT: ts(3)
a("s_barrier")
if "st2" in OPT: ts(4)
a("s_cmp_ge_u32 s3, 4")
a("s_cbranch_scc1 L_hx")
for q in range(4): a(f"ds_read_b128 {vr(X+4*q,4)}, v{t[q]}")
for q in range(4):
    a(f"s_waitcnt lgkmcnt({3-q})")
    a(f"{M32} {vr(D1r,16)}, {vr(X+4*q,4)}, {vr(MR+4*q,4)}, {'0' if q == 0 else vr(D1r,16)}")
    a(f"{M32} {vr(D1i,16)}, {vr(X+4*q,4)}, {vr(MI+4*q,4)}, {'0' if q == 0 else vr(D1i,16)}")
def p2m(q):
    a(f"{M32} {vr(D2r,16)}, {vr(X+4*q,4)}, {vr(MR+4*q,4)}, {'0' if q == 0 else vr(D2r,16)}")
    a(f"{M32} {vr(D2i,16)}, {vr(X+4*q,4)}, {vr(MI+4*q,4)}, {'0' if q == 0 else vr(D2i,16)}")
for q in range(4):
    for e in range(4):
        k = 4 * q + e
        a(f"v_mul_f32 v{t[0]}, v{D1r+k}, v{TC(k)}")
        a(f"v_mul_f32 v{t[1]}, v{D1i+k}, v{TC(k)}")
        a(f"v_fma_f32 v{t[0]}, -v{D1i+k}, v{TS_(k)}, v{t[0]}")
        a(f"v_fmac_f32 v{t[1]}, v{D1r+k}, v{TS_(k)}")
        a(f"v_cvt_pk_bf16_f32 v{X+k}, v{t[0]}, v{t[1]}")
        if q == 2 and e == 1: p2m(1)
    if q == 1: p2m(0)
    if q >= 2: p2m(q)
O = MR
for r, (Dx, so) in enumerate(((D2r, "s22"), (D2i, "s30"))):
    for c2 in range(2):
        o = O + 8 * r + 4 * c2
        for e in range(4):
            a(f"v_cvt_pk_bf16_f32 v{o+e}, v{Dx+8*c2+2*e}, v{Dx+8*c2+2*e+1}")
        a(f"v_permlane32_swap_b32 v{o}, v{o+2}")
        a(f"v_permlane32_swap_b32 v{o+1}, v{o+3}")
        a(f"buffer_store_dwordx4 {vr(o,4)}, v{vst}, s[12:15], {so} offen offset:{32*c2}{OSF}")
a.label("L_fin")
stamp_end(32)
a.label("L_end")
a("s_endpgm")
a.label("L_hx")
a("s_lshl_b32 s26, s2, 3"); a("s_add_u32 s26, s26, s3")
a("s_cmp_lg_u32 s26, 4")
a("s_cbranch_scc1 L_fin")
a(f"s_mov_b32 s26, {hx(EP_OFF)}")
setflag(8, "s26", "s49")
a("s_branch L_fin")
a.label("L_m0")
a.hist = []
q_ = [MI + k for k in range(16)]
gaa = q_[0]; gbb = q_[1]; ph = q_[2]; st_ = q_[3]; c_ = q_[4]; s__ = q_[5]; al = q_[6]; be = q_[7]
a(f"v_and_b32 v{t[0]}, 1, v0"); a(f"v_cmp_eq_u32 vcc, 1, v{t[0]}")
a(f"v_bfe_u32 v{t[1]}, v0, 2, 2"); a(f"v_lshl_or_b32 v{t[1]}, v{t[1]}, 1, v{t[0]}")
a(f"v_cndmask_b32 v{gaa}, v{GG}, v{GG+2}, vcc"); a(f"v_cndmask_b32 v{gbb}, v{GG+1}, v{GG+3}, vcc")
a(f"v_lshlrev_b32 v{t[1]}, 8, v{t[1]}"); a(f"v_add_u32 v{t[1]}, s2, v{t[1]}")
a(f"v_cvt_f32_u32 v{st_}, v{t[1]}"); a(f"v_mul_f32 v{st_}, {hx(f2u(1/2048))}, v{st_}")
a(f"v_cvt_f32_u32 v{ph}, v{vg_}"); a(f"v_add_f32 v{ph}, v{ph}, v{ph}"); a(f"v_mul_f32 v{ph}, v{ph}, v{st_}")
a(f"v_bfe_u32 v{t[2]}, v0, 1, 1")
a(f"v_lshrrev_b32 v{t[3]}, 1, v{vg_}"); a(f"v_cmp_eq_u32 s[4:5], v{t[2]}, v{t[3]}")
a(f"v_and_b32 v{t[3]}, 1, v{vg_}"); a(f"v_cmp_eq_u32 s[6:7], 0, v{t[3]}")
a(f"v_cmp_eq_u32 s[14:15], 0, v{t[2]}")
a(f"v_cndmask_b32 v{q_[8]}, 0, v{gaa}, s[4:5]"); a(f"v_cndmask_b32 v{q_[9]}, 0, v{gbb}, s[4:5]")
a(f"v_mul_f32 v{q_[10]}, {fl(0.25)}, v{gaa}"); a(f"v_mul_f32 v{q_[11]}, {fl(0.25)}, v{gbb}")
for lo in range(2):
    if lo: a(f"v_add_f32 v{ph}, v{ph}, v{st_}")
    a(f"v_cos_f32 v{c_}, v{ph}"); a(f"v_sin_f32 v{s__}, v{ph}")
    for ab in range(2):
        if lo == 0:
            if ab == 0:
                a(f"v_cndmask_b32 v{al}, 0, v{q_[10]}, s[14:15]"); a(f"v_cndmask_b32 v{be}, 0, v{q_[11]}, s[14:15]")
            else:
                a(f"v_cndmask_b32 v{al}, v{q_[10]}, 0, s[14:15]"); a(f"v_cndmask_b32 v{be}, v{q_[11]}, 0, s[14:15]")
            a(f"v_cndmask_b32 v{al}, v{q_[8+ab]}, v{al}, s[6:7]"); a(f"v_cndmask_b32 v{be}, 0, v{be}, s[6:7]")
            a(f"v_mul_f32 v{t[0]}, v{al}, v{c_}"); a(f"v_fmac_f32 v{t[0]}, v{be}, v{s__}")
            a(f"v_mul_f32 v{t[1]}, v{be}, v{c_}"); a(f"v_fma_f32 v{t[1]}, -v{al}, v{s__}, v{t[1]}")
            a(f"v_cvt_pk_bf16_f32 v{MA0+2*lo+ab}, v{t[0]}, v{t[1]}")
        else:
            a(f"v_mul_f32 v{t[0]}, v{q_[8+ab]}, v{c_}"); a(f"v_mul_f32 v{t[1]}, v{q_[8+ab]}, v{s__}")
            a(f"v_cvt_pk_bf16_f32 v{MA0+2*lo+ab}, v{t[0]}, -v{t[1]}")
a("s_branch L_p3b")
a.label("L_el")
a.hist = []
a(f"v_lshlrev_b32 v{vEa}, 6, v{vg}"); a(f"v_add_u32 v{vEa}, s29, v{vEa}")
a("s_mov_b32 exec_lo, s52"); a("s_mov_b32 exec_hi, s52")
for cc in range(2):
    for i in range(4):
        for ab in range(2):
            a(f"ds_read_b64 {vr(Wi(2*ab,cc,i),2)}, v{vEa} offset:{256*cc+16*i+8*ab}")
a("s_mov_b64 exec, -1")
a("s_branch L_elb")
a.label("L_sp")
a.hist = []
X = XP2
ts(3)
a("s_lshr_b32 s29, s2, 2"); a("s_lshl_b32 s10, s3, 1"); a("s_add_u32 s29, s29, s10"); a("s_sub_u32 s29, 16, s29")
for cc in range(2):
    a(f"s_sub_u32 s10, s29, {cc}"); a("s_and_b32 s10, s10, 15")
    a("s_lshr_b32 s11, s10, 1"); a("s_lshl_b32 s11, s11, 8"); a("s_and_b32 s10, s10, 1"); a("s_lshl_b32 s10, s10, 3"); a("s_add_u32 s10, s10, s11")
    a(f"v_lshlrev_b32 v{tpr[0][cc]}, 12, v{vg}"); a(f"v_add_u32 v{tpr[0][cc]}, s10, v{tpr[0][cc]}")
for k in range(8): a(f"v_mov_b32 v{TB+k}, 0")
a("s_mov_b32 exec_lo, 0x00010001"); a("s_mov_b32 exec_hi, 0x00010001")
for cc in range(2):
    for h in range(2):
        a(f"ds_read_b64 {vr(TB+4*cc+2*h,2)}, v{tpr[0][cc]} offset:{h*2048}")
a("s_mov_b32 s10, 0x80000000"); a("s_mov_b32 s11, 0x80008000")
a("s_waitcnt lgkmcnt(0)")
for k in range(8): a(f"v_xor_b32 v{TB+k}, s10, v{TB+k}")
a("s_mov_b64 exec, -1")
ts(4)
a("s_cmp_lg_u32 s2, 0")
a("s_cbranch_scc1 L_sp4")
def sp_body(mats):
    def acc(cc):
        a(f"{M16} {vr(X+8*cc,4)}, {vr(mats[cc],4)}, {vr(TB+4*cc,4)}, {vr(X+8*cc,4)}")
        a(f"{M16} {vr(X+8*cc+4,4)}, {vr(mats[cc]+4,4)}, {vr(TB+4*cc,4)}, {vr(X+8*cc+4,4)}")
    acc(0); acc(1)
    a("s_mov_b32 exec_lo, 0x00010001"); a("s_mov_b32 exec_hi, 0x00010001")
    for k in range(8): a(f"v_xor_b32 v{TB+k}, s11, v{TB+k}")
    a("s_mov_b64 exec, -1")
    wmul(0, 0); acc(0); acc(0)
    wmul(1, 0); acc(1); acc(1)
    wmul(0, 1)
    wmul(1, 1)
    ts(6)
    a("s_nop 7")
    a("s_branch L_spb")
YO = [PKD, PKD, PKD + 4, PKD + 4]
sp_body([M2, M2 + 8])
a.label("L_sp4")
a.hist = []
a("s_nop 1")
sp_body([M2 + 8, MX])

nv = (a.maxv + 1 + 7) // 8 * 8
out = "; gated_mix spectral gfnet: persistent MFMA FFT pipeline (generated by gen7.py)\n"
out += f"; @launch grid=(256,1,1) block=(512,1,1) lds={LDS_BYTES}\n"
out += '.amdgcn_target "amdgcn-amd-amdhsa--gfx950"\n.text\n'
out += f".globl {NAME}\n.p2align 8\n.type {NAME},@function\n" + a.text() + ".rept 96\n    s_endpgm\n.endr\nL_code_end:\n"
out += f""".section .rodata,"a"
.p2align 6
.amdhsa_kernel {NAME}
  .amdhsa_next_free_vgpr {nv}
  .amdhsa_next_free_sgpr {min(102, a.maxs + 1)}
  .amdhsa_accum_offset {nv}
  .amdhsa_group_segment_fixed_size 0
  .amdhsa_kernarg_size 80
  .amdhsa_user_sgpr_count 2
  .amdhsa_user_sgpr_kernarg_segment_ptr 1
  .amdhsa_system_sgpr_workgroup_id_x 1
  .amdhsa_float_denorm_mode_32 3
.end_amdhsa_kernel
"""
sys.stderr.write(f"vgpr {a.maxv+1} sgpr {a.maxs+1} lines {len(a.lines)} nops {a.nops}\n")
print(out)
```

```python
import sys
from asmlib import *
NAME = "gated_mix__spectral_gfnet__spectral_gfnet__prompt_kernel"
TSB = 16512
S_OFF = 0x500000
U_OFF = 0x500000
import sys as _s
for _o in _s.argv:
    if _o.startswith('soff'): S_OFF = int(_o[4:]) << 20
F1_OFF = 0xE20000
F2_OFF = 0xE80000
EP_OFF = 0xEF0000
WS_SIZE = 0xF00000
WBYTES = 2048 * 1026
M32 = "v_mfma_f32_32x32x16_bf16"
M16 = "v_mfma_f32_16x16x32_bf16"
OPT = set(sys.argv[1:])
ST = "stamps" in OPT
WSZ = 0x10000000 if ST else WS_SIZE
L_A = 0; L_W = 16384; L_P = L_W; WR = 6144; L_G = 65536; L_N = 65664; L_C = 65920; L_E = 65936; LDS_BYTES = 65936 + 4096
def optint(pfx, d):
    for o in OPT:
        if o.startswith(pfx) and o[len(pfx):].isdigit(): return int(o[len(pfx):])
    return d
SLEEP = optint("sl", 1); PFAT = optint("pf", 8); NWG = optint("nwg", 0)
SPIN_MAX = 400000
NTX = " nt" if "ntx" in OPT else ""
NTW = " nt" if "ntw" in OPT else ""
PLF = "sc0 sc1" if "psys" in OPT else ("sc1 nt" if "pnt" in OPT else ("sc0 sc1 nt" if "psysnt" in OPT else "sc1"))
FSF = "sc0 sc1" if "fsys" in OPT else "sc1"
SSF = "sc0 sc1" if "ssys" in OPT else ("sc1 nt" if "snt" in OPT else ("" if "swb" in OPT else "sc1"))
def lf(k):
    return "sc0 sc1" if k+"sys" in OPT else ("sc1 nt" if k+"nt" in OPT else ("sc0 sc1 nt" if k+"sn" in OPT else "sc1"))
SLF = lf("ls"); TLF = lf("lt")
OSF = " sc1" if "osc1" in OPT else (" nt" if "ont" in OPT else (" sc0 sc1" if "osys" in OPT else ""))
Y4 = "y4" in OPT
UO = "nouo" not in OPT
a = Asm()
def srd(d, base, size):
    a(f"s_mov_b32 s{d}, s{base}"); a(f"s_mov_b32 s{d+1}, s{base+1}")
    a(f"s_mov_b32 s{d+2}, {hx(size)}"); a(f"s_mov_b32 s{d+3}, 0x00020000")
NST = 14
AMX = optint("amx", -1)
def ts(k):
    if ST:
        a(f"s_memrealtime s[{60+2*k}:{61+2*k}]")
        a("s_waitcnt lgkmcnt(0)")
def amx_post(vt):
    if AMX < 0: return
    a("s_load_dwordx2 s[4:5], s[0:1], 64")
    a("s_waitcnt lgkmcnt(0)")
    a("s_mov_b32 s6, 256"); a("s_mov_b32 s7, 0x00020000")
    a(f"v_mov_b32 v{vt}, s{60+2*AMX}"); a("s_and_b32 s96, s2, 7"); a("s_lshl_b32 s96, s96, 2"); a(f"v_mov_b32 v{vt+1}, s96")
    a("s_cmp_eq_u32 s3, %d" % optint("aw", 0)); a("s_cselect_b32 exec_lo, 1, 0"); a("s_mov_b32 exec_hi, 0")
    a(f"buffer_atomic_umax v{vt}, v{vt+1}, s[4:7], 0 offen")
    a("s_mov_b64 exec, -1")
def stamp_end(vt):
    if not ST: return
    a("s_waitcnt vmcnt(0)")
    ts(NST - 1)
    for k in range(16): a(f"v_mov_b32 v{vt+k}, {'s%d' % (60+2*k) if k < NST else '0'}")
    a("s_lshl_b32 s96, s3, 6"); a("s_lshl_b32 s97, s2, 9"); a("s_add_u32 s96, s96, s97")
    a(f"s_add_u32 s96, s96, 0x3000000")
    a(f"v_mov_b32 v{vt+16}, 0")
    a("s_mov_b64 exec, 1")
    if AMX >= 0:
        a("s_lshl_b32 s96, s2, 3"); a("s_add_u32 s96, s96, s3"); a("s_cmp_lg_u32 s96, 72"); a("s_cbranch_scc1 L_end")
        a("s_load_dwordx2 s[4:5], s[0:1], 64")
        a("s_waitcnt lgkmcnt(0)")
        a("s_mov_b32 s6, 256"); a("s_mov_b32 s7, 0x00020000")
        a(f"buffer_load_dwordx4 {vr(vt,4)}, v{vt+16}, s[4:7], 0 offen sc1")
        a(f"buffer_load_dwordx4 {vr(vt+4,4)}, v{vt+16}, s[4:7], 0 offen offset:16 sc1")
        a("s_waitcnt vmcnt(0)")
        for k in range(1, 8): a(f"v_max_u32 v{vt}, v{vt}, v{vt+k}")
        a("s_nop 1")
        a(f"v_readfirstlane_b32 s4, v{vt}")
        a(f"s_sub_u32 s4, s4, s60"); a("s_mul_i32 s4, s4, 10"); a(f"s_add_u32 s4, s4, s{60+2*(NST-1)}")
        a.label("L_amp")
        a("s_memrealtime s[6:7]"); a("s_waitcnt lgkmcnt(0)")
        a("s_sub_u32 s5, s6, s4"); a("s_cmp_lt_i32 s5, 0"); a("s_cbranch_scc1 L_amp")
        return
    amp = optint("amp", -1)
    if amp >= 0:
        a("s_lshl_b32 s4, s2, 3"); a("s_add_u32 s4, s4, s3"); a("s_cmp_lg_u32 s4, %d" % (72 + optint("aw", 0))); a("s_cbranch_scc1 L_end")
        a(f"s_sub_u32 s4, s{60+2*amp}, s60"); a("s_mul_i32 s4, s4, 10"); a(f"s_add_u32 s4, s4, s{60+2*(NST-1)}")
        a.label("L_amp")
        a("s_memrealtime s[6:7]"); a("s_waitcnt lgkmcnt(0)")
        a("s_sub_u32 s5, s6, s4"); a("s_cmp_lt_i32 s5, 0"); a("s_cbranch_scc1 L_amp")
        return
    if "dbg" in OPT:
        a("s_load_dwordx2 s[4:5], s[0:1], 64")
        a("s_waitcnt lgkmcnt(0)")
        a("s_mov_b32 s6, 256"); a("s_mov_b32 s7, 0x00020000")
        a(f"v_not_b32 v{vt+14}, v{vt}")
        for k in range(15):
            a(f"buffer_atomic_umax v{vt+k}, v{vt+16}, s[4:7], 0 offen offset:{4*k}")
        return
    for q in range(4): a(f"buffer_store_dwordx4 {vr(vt+4*q,4)}, v{vt+16}, s[16:19], s96 offen offset:{16*q}")
def poll(lbl, vaddr, vtmp, soff, tag):
    a("s_mov_b32 s58, 0")
    a("s_mov_b32 exec_hi, 0")
    a.label(lbl)
    a(f"buffer_load_dword v{vtmp}, v{vaddr}, s[16:19], {soff} offen {PLF}")
    a("s_add_u32 s58, s58, 1")
    a("s_waitcnt vmcnt(0)")
    a(f"v_cmp_ne_u32 vcc, {tag}, v{vtmp}")
    a(f"s_cmp_gt_u32 s58, {SPIN_MAX}")
    a(f"s_cbranch_scc1 {lbl}_d")
    a("s_and_b64 exec, exec, vcc")
    a(f"s_cbranch_execz {lbl}_d")
    if SLEEP: a(f"s_sleep {SLEEP}")
    a(f"s_branch {lbl}")
    a.label(lbl + "_d")
    a("s_mov_b64 exec, -1")
def setflag(vtmp, soff, tag):
    a(f"v_mov_b32 v{vtmp}, {tag}"); a(f"v_lshlrev_b32 v{vtmp+1}, 2, v0")
    a("s_waitcnt vmcnt(0)")
    a("s_mov_b32 exec_hi, 0")
    a(f"buffer_store_dword v{vtmp}, v{vtmp+1}, s[16:19], {soff} offen {FSF}")
    a("s_mov_b32 exec_hi, -1")

a.label(NAME)
a.label("L_code_start")
a("s_cmp_ge_u32 s2, 256")
a("s_cbranch_scc1 L_end")
if ST:
    a("s_memrealtime s[60:61]")
    for k in range(1, NST): a(f"s_mov_b32 s{60+2*k}, 0")
a("s_load_dwordx4 s[4:7], s[0:1], 0")
a("s_load_dwordx2 s[20:21], s[0:1], 72")
a("s_load_dwordx2 s[28:29], s[0:1], 16")
a("s_load_dwordx8 s[88:95], s[0:1], 32")
a("s_getpc_b64 s[12:13]")
a("s_and_b32 s12, s12, 0xffffff00")
a("s_mov_b32 s14, L_code_end-L_code_start")
a("s_mov_b32 s15, 0x00020000")
a("v_lshlrev_b32 v6, 6, v0")
a("s_bfe_u32 s8, s2, 0x30003") if ST else a("s_bfe_u32 s8, s2, 0x20003")
a("v_lshrrev_b32 v1, 6, v0")
a("v_cmp_eq_u32 vcc, s8, v1")
a("s_and_saveexec_b64 s[10:11], vcc")
a("s_cbranch_execz L_cp")
if "nocp" not in OPT: a("buffer_load_ubyte v5, v6, s[12:15], 0 offen")
a.label("L_cp")
a("s_mov_b64 exec, -1")
a("v_and_b32 v0, 63, v0")
a("v_readfirstlane_b32 s3, v1")
vl16 = 2; vn = 3; vL5 = 4; vE = 5
a(f"v_lshlrev_b32 v{vl16}, 4, v0")
a(f"v_and_b32 v{vn}, 31, v0")
a(f"v_lshrrev_b32 v{vL5}, 5, v0")
a("s_and_b32 s51, s3, 3")
a("s_lshl_b32 s22, s51, 9"); a("s_add_u32 s22, s22, s2"); a("s_lshl_b32 s22, s22, 11")
a("s_and_b32 s53, s2, 7"); a("s_lshl_b32 s53, s53, 5"); a("s_lshr_b32 s54, s2, 3"); a("s_add_u32 s53, s53, s54")
a("s_and_b32 s55, s2, 7"); a("s_mul_i32 s55, s55, 1026"); a("s_lshl_b32 s56, s54, 5"); a("s_add_u32 s55, s55, s56")
a("s_lshl_b32 s24, s51, 12")
a("s_lshl_b32 s57, s2, 10"); a(f"s_add_u32 s57, s57, {hx(F1_OFF)}")
a(f"s_mov_b32 s26, {hx(EP_OFF)}")
a("v_mov_b32 v7, 0")
a("s_waitcnt lgkmcnt(0)")
srd(16, 20, WSZ)
a(f"buffer_load_dword v{vE}, v7, s[16:19], s26 offen sc1")
for arr, p_ in enumerate((6, 28, 88, 90)): srd(32 + 4 * arr, p_, WBYTES)
def tags():
    a(f"v_readfirstlane_b32 s48, v{vE}")
    a("s_mul_i32 s48, s48, 0x9E3779B1"); a("s_add_u32 s48, s48, 0x7F4A7C15")
    a("s_xor_b32 s49, s48, 0x5bd1e995")
def arr_srd():
    a("s_cmp_eq_u32 s51, 0"); a("s_cselect_b32 s12, s32, s36"); a("s_cselect_b32 s13, s33, s37")
    a("s_cmp_eq_u32 s51, 2"); a("s_cselect_b32 s12, s40, s12"); a("s_cselect_b32 s13, s41, s13")
    a("s_cmp_eq_u32 s51, 3"); a("s_cselect_b32 s12, s44, s12"); a("s_cselect_b32 s13, s45, s13")
    a(f"s_mov_b32 s14, {hx(WBYTES)}"); a("s_mov_b32 s15, 0x00020000")
V2 = VAlloc(5)
vg = V2(); vc = V2(); vF = V2()
SC = V2(16, 4)
vS = V2(); vw1 = V2(); vr1 = V2(); vT = V2(); vTr = V2(); vWr = V2(); vw2 = V2(); vr2 = V2()
WW = V2(32, 4); TB = V2(8, 4)
Fr = V2(4, 4); Fm = V2(4, 4); M2 = V2(16, 4); MT = V2(16, 4); D = V2(16, 4)
assert V2.n <= 128, V2.n
vW = D; vEa = 2
Wi = lambda arr, cc, i: WW + 16 * cc + 8 * (arr >> 1) + 2 * i + (arr & 1)
MX = SC
L_GW = L_W + 16384
def p2_addr():
    t = [SC + k for k in range(6)]
    a(f"v_lshrrev_b32 v{vg}, 4, v0"); a(f"v_and_b32 v{vc}, 15, v0")
    a(f"v_lshrrev_b32 v{t[0]}, 2, v0"); a(f"v_mul_u32_u24 v{vT}, {16*TSB}, v{t[0]}")
    a(f"v_and_b32 v{t[0]}, 3, v0"); a(f"v_lshl_add_u32 v{vT}, v{t[0]}, 4, v{vT}")
    a("s_lshl_b32 s27, s3, 11")
    a(f"s_mul_i32 s23, s3, {WR}"); a(f"s_add_u32 s23, s23, {L_W}")
    a(f"v_bfe_u32 v{t[0]}, v0, 1, 4"); a(f"v_and_b32 v{t[1]}, 1, v0"); a(f"v_lshl_add_u32 v{t[0]}, v{t[0]}, 4, v{t[1]}")
    a(f"v_lshlrev_b32 v{vF}, 10, v{t[0]}")
    a("s_lshl_b32 s28, s3, 8")
    a("s_and_b32 s8, s2, 7"); a("s_lshl_b32 s8, s8, 7"); a("s_add_u32 s8, s8, s27"); a(f"s_add_u32 s8, s8, {hx(F1_OFF)}")
    a(f"v_lshlrev_b32 v{t[0]}, 4, v{vc}")
    a(f"v_lshl_or_b32 v{t[1]}, v{vg}, 9, v{t[0]}")
    a(f"v_add_u32 v{vw1}, s27, v{t[1]}"); a(f"v_add_u32 v{vw2}, s23, v{t[1]}")
    a(f"v_lshl_or_b32 v{vr1}, v{vg}, 12, v{t[0]}"); a(f"v_add_u32 v{vr1}, s28, v{vr1}")
    a(f"v_mul_u32_u24 v{vr2}, {2*WR}, v{vg}"); a(f"s_add_u32 s29, s28, {L_W}"); a(f"v_add3_u32 v{vr2}, v{vr2}, v{t[0]}, s29")
    if "x4" not in OPT:
        if Y4:
            a(f"v_mul_u32_u24 v{vS}, {16*TSB}, v{vc}"); a(f"v_lshl_add_u32 v{vS}, v{vg}, 4, v{vS}")
        else:
            a(f"v_mul_u32_u24 v{vS}, {64*TSB}, v{vg}"); a(f"v_lshl_add_u32 v{vS}, v{vc}, 2, v{vS}")
    else:
        a(f"v_lshlrev_b32 v{t[0]}, 4, v{vg}"); a(f"v_lshl_or_b32 v{vS}, v{vc}, 11, v{t[0]}")
def p2_item():
    t = [SC + k for k in range(6)]
    a(f"s_mul_i32 s24, s3, {2*TSB}"); a("s_lshl_b32 s26, s53, 6"); a("s_add_u32 s24, s24, s26")
    a(f"s_add_u32 s26, s24, {TSB}")
    a(f"v_lshlrev_b32 v{t[0]}, 2, v{vc}"); a(f"v_lshl_or_b32 v{vTr}, v{vg}, 8, v{t[0]}"); a(f"v_add_u32 v{vTr}, s27, v{vTr}")
    a("s_and_b32 s29, s55, 15"); a("s_add_u32 s29, s29, s23")
    a(f"v_mul_u32_u24 v{vWr}, 192, v{vg}"); a(f"v_lshl_add_u32 v{vWr}, v{vc}, 1, v{vWr}"); a(f"v_add_u32 v{vWr}, s29, v{vWr}")
    a("s_lshl_b32 s30, s53, 15"); a("s_add_u32 s30, s30, s28"); a(f"s_add_u32 s30, s30, {hx(S_OFF)}"); a("s_add_u32 s31, s30, 4096")
    a("s_lshl_b32 s9, s53, 10"); a("s_lshl_b32 s10, s3, 7"); a("s_add_u32 s9, s9, s10"); a(f"s_add_u32 s9, s9, {hx(F2_OFF)}")
    a(f"s_mul_i32 s50, s3, {2*TSB}"); a("s_and_b32 s29, s2, 7"); a("s_lshl_b32 s29, s29, 4"); a("s_add_u32 s50, s50, s29"); a("s_add_u32 s50, s50, 16384")
    a("s_cmp_eq_u32 s54, 0"); a("s_cselect_b32 s52, 0x00010001, 0")
    a(f"v_bfe_u32 v{t[0]}, v0, 4, 1"); a(f"v_lshl_add_u32 v{t[0]}, v{vc}, 4, v{t[0]}"); a(f"v_mul_u32_u24 v{vEa}, {TSB}, v{t[0]}")
    a("s_cselect_b32 s59, -1, 0")
def p2_const(dozero=True, hooks=()):
    hooks = list(hooks)
    def hook():
        if hooks: hooks.pop(0)()
    t = [SC + k for k in range(6)]
    vlf = SC + 6; vkf = SC + 7; vc0 = SC + 8; vlc = SC + 10; FA = SC + 12
    a(f"v_cvt_f32_u32 v{vlf}, v{vc}")
    a(f"v_cvt_f32_u32 v{vkf}, v{vg}"); a(f"v_mul_f32 v{vkf}, 4.0, v{vkf}")
    a(f"v_cvt_f32_u32 v{vc0}, s3"); a(f"v_mul_f32 v{vc0}, {fl(1/128)}, v{vc0}")
    a(f"v_mul_f32 v{vlc}, v{vlf}, v{vc0}")
    a(f"v_fmamk_f32 v{vlc+1}, v{vlf}, {hx(f2u(1/256))}, v{vlc}")
    a(f"v_mul_f32 v{vlf}, {fl(1/16)}, v{vlf}")
    z = iter(range(32))
    def zero(n):
        if not dozero:
            if n == 1: a("s_nop 0")
            return
        for _ in range(n):
            k = next(z, None)
            if k is not None: a(f"v_mov_b32 v{WW+k}, 0")
    def mat(ang):
        a(f"v_cos_f32 v{t[3]}, v{ang}"); a(f"v_sin_f32 v{t[4]}, v{ang}")
    def matfin(Mr, Mm):
        a(f"v_cvt_pk_bf16_f32 v{Mr}, v{t[3]}, v{t[4]}")
        a(f"v_cvt_pk_bf16_f32 v{Mm}, -v{t[4]}, v{t[3]}")
        hook()
    hook(); hook()
    for i in range(4):
        if i: a(f"v_add_f32 v{vkf}, 1.0, v{vkf}")
        a(f"v_mul_f32 v{FA+i}, v{vkf}, v{vlf}")
        mat(FA + i); zero(1); matfin(Fr + i, Fm + i)
    for i in range(3, -1, -1):
        a(f"v_fma_f32 v{t[0]}, v{vkf}, v{vc0}, v{FA+i}")
        a(f"v_fmamk_f32 v{t[1]}, v{vkf}, {hx(f2u(1/256))}, v{t[0]}")
        mat(t[0]); a(f"v_add_f32 v{t[2]}, v{FA+i}, v{vlc}"); matfin(M2 + i, M2 + 4 + i)
        mat(t[1]); a(f"v_add_f32 v{t[5]}, v{FA+i}, v{vlc+1}"); matfin(M2 + 8 + i, M2 + 12 + i)
        mat(t[2]); a(f"v_subrev_f32 v{vkf}, 1.0, v{vkf}"); matfin(MT + i, MT + 4 + i)
        mat(t[5]); zero(1); matfin(MT + 8 + i, MT + 12 + i)
    zero(32)
    a(f"v_add_f32 v{vc0}, {fl(1/128)}, v{vc0}")
    a(f"v_mov_b32 v{SC+9}, v{vkf}")
    for i in range(4):
        a(f"v_add_f32 v{SC+9}, 1.0, v{SC+9}")
        a(f"v_fma_f32 v{FA+i}, v{SC+9}, v{vc0}, v{FA+i}")
    for i in range(4):
        a(f"v_cos_f32 v{SC+10}, v{FA+i}"); a(f"v_sin_f32 v{SC+11}, v{FA+i}"); a("s_nop 0")
        a(f"v_cvt_pk_bf16_f32 v{MX+i}, v{SC+10}, v{SC+11}")
        a(f"v_cvt_pk_bf16_f32 v{MX+4+i}, -v{SC+11}, v{SC+10}")
def wvoff(dst, t0, t1):
    a(f"v_mul_u32_u24 v{t0}, 43, v0"); a(f"v_lshrrev_b32 v{t0}, 7, v{t0}")
    a(f"v_mul_u32_u24 v{t1}, 3, v{t0}"); a(f"v_sub_u32 v{t1}, v0, v{t1}")
    a(f"v_mul_u32_u24 v{dst}, {16*8*1026}, v{t0}"); a(f"v_lshl_add_u32 v{dst}, v{t1}, 4, v{dst}")
def wdma_list(vreg, adds, ccs=(0, 1)):
    ops = []
    for add in adds:
        def head(add=add):
            a(f"s_add_u32 s6, s3, {add}")
            a(f"s_mul_i32 s4, s6, {2*8*1026}"); a("s_add_u32 s4, s4, s55"); a("s_and_b32 s4, s4, 0xfffffff0")
            a(f"s_add_u32 s5, s4, {8*1026}")
            a(f"s_mul_i32 s6, s6, {WR}")
        for arr in range(4):
            for cc in ccs:
                def op(arr=arr, cc=cc, head=head):
                    if arr == 0 and cc == ccs[0]: head()
                    a("s_mov_b32 exec_hi, 0xffff")
                    a(f"s_add_u32 m0, s6, {L_W + 1536*arr + 768*cc}")
                    a(f"buffer_load_dwordx4 v{vreg}, {sr(32+4*arr,4)}, {'s4' if cc == 0 else 's5'} offen lds")
                    a("s_mov_b32 exec_hi, -1")
                ops.append(op)
    return ops
a(f"s_mov_b32 s56, {8*1026}")
a("s_cmp_ge_u32 s3, 4")
a("s_cbranch_scc1 L_h")
a("s_setprio 2")
srd(8, 4, 2048 * 2048)
a("s_add_u32 s30, s22, 0x80000")
a("s_mov_b32 m0, s24")
a(f"buffer_load_dwordx4 v{vl16}, s[8:11], s22 offen{NTX} lds")
a(f"buffer_load_dwordx4 v{vl16}, s[8:11], s22 offen offset:1024{NTX} lds")
a("s_add_u32 m0, s24, 2048")
a(f"buffer_load_dwordx4 v{vl16}, s[8:11], s30 offen{NTX} lds")
a(f"buffer_load_dwordx4 v{vl16}, s[8:11], s30 offen offset:1024{NTX} lds")
V = VAlloc(6)
vb = V(); vo = V(); vkn = V(); vtr = V(); vpf = V(); vj = V(); vpw = V(4); t = [V() for _ in range(6)]
arr_srd()
a(f"v_and_b32 v{t[0]}, 7, v0"); a("s_lshl_b32 s30, s2, 3"); a(f"v_add_u32 v{t[0]}, s30, v{t[0]}")
a(f"v_bfe_i32 v{t[1]}, v0, 4, 1"); a(f"v_xor_b32 v{t[0]}, v{t[0]}, v{t[1]}"); a(f"v_sub_u32 v{t[0]}, v{t[0]}, v{t[1]}")
a(f"v_and_b32 v{t[0]}, 2047, v{t[0]}"); a(f"v_mul_u32_u24 v{t[2]}, 1026, v{t[0]}")
a(f"v_bfe_u32 v{t[1]}, v0, 3, 1"); a(f"v_lshl_add_u32 v{t[2]}, v{t[1]}, 10, v{t[2]}")
a(f"buffer_load_ushort v{vj}, v{t[2]}, s[12:15], 0 offen")
a("s_and_b32 s30, s2, 7"); a("s_lshl_b32 s31, s54, 6"); a("s_add_u32 s30, s30, s31"); a("s_mul_i32 s30, s30, 1026")
a(f"v_lshrrev_b32 v{t[0]}, 3, v0"); a(f"v_mul_u32_u24 v{t[2]}, {8*1026}, v{t[0]}")
a(f"v_and_b32 v{t[1]}, 7, v0"); a(f"v_lshl_add_u32 v{vpf}, v{t[1]}, 7, v{t[2]}")
vjunk = 1
def prefetch():
    a(f"buffer_load_ubyte v{vjunk}, v{vpf}, s[12:15], s30 offen{NTW}")
    a(f"buffer_load_ubyte v{vjunk}, v{vpt}, s[12:15], s30 offen offset:1024{NTW}")
NPF = 2
vpt = V()
a(f"v_and_b32 v{t[1]}, 1, v0"); a(f"v_lshl_add_u32 v{vpt}, v{t[1]}, 4, v{t[2]}")
if PFAT == 0: prefetch()
CC = V(8, 4); SS = V(8, 4); SN = V(8, 4); XR = V(8, 4); XI = V(8, 4)
BA = V(24, 4); BB = V(24, 4); TCh = V(8); TSh = V(8)
D1r = BA + 8; D1i = BB + 8; D2r = BA; D2i = BB
TC = lambda k: BA + k if k < 8 else TCh + k - 8
TS_ = lambda k: BB + k if k < 8 else TSh + k - 8
assert V.n <= 128, V.n
a(f"v_and_b32 v{t[0]}, 7, v0"); a(f"v_bfe_u32 v{t[1]}, v0, 3, 2")
a(f"v_lshl_or_b32 v{vkn}, v{t[0]}, 2, v{t[1]}")
a(f"v_cvt_f32_u32 v{vb}, v{vkn}"); a(f"v_cvt_f32_u32 v{vo}, v{vL5}")
a(f"v_mul_f32 v{vb}, {fl(1/32)}, v{vb}"); a(f"v_mul_f32 v{vo}, 4.0, v{vo}"); a(f"v_mul_f32 v{vo}, v{vb}, v{vo}")
for i in range(0, 16, 2):
    for e in range(2):
        kc = 8 * ((i + e) // 4) + (i + e) % 4
        if kc == 0: a(f"v_mov_b32 v{t[e]}, v{vo}")
        else: a(f"v_fmamk_f32 v{t[e]}, v{vb}, {hx(f2u(float(kc)))}, v{vo}")
    a(f"v_cos_f32 v{t[2]}, v{t[0]}"); a(f"v_cos_f32 v{t[3]}, v{t[1]}")
    a(f"v_sin_f32 v{t[4]}, v{t[0]}"); a(f"v_sin_f32 v{t[5]}, v{t[1]}")
    a(f"v_mul_f32 v{t[0]}, {fl(1/32)}, v{t[0]}"); a(f"v_mul_f32 v{t[1]}, {fl(1/32)}, v{t[1]}")
    a(f"v_cvt_pk_bf16_f32 v{CC+i//2}, v{t[2]}, v{t[3]}")
    a(f"v_cvt_pk_bf16_f32 v{SS+i//2}, v{t[4]}, v{t[5]}")
    a(f"v_cvt_pk_bf16_f32 v{SN+i//2}, -v{t[4]}, -v{t[5]}")
    a(f"v_cos_f32 v{TC(i)}, v{t[0]}"); a(f"v_cos_f32 v{TC(i+1)}, v{t[1]}")
    a(f"v_sin_f32 v{TS_(i)}, v{t[0]}"); a(f"v_sin_f32 v{TS_(i+1)}, v{t[1]}")
    if PFAT == i // 2 + 1: prefetch()
a(f"v_lshlrev_b32 v{vtr}, 8, v{vL5}")
a(f"v_bfe_u32 v{t[0]}, v0, 2, 2"); a(f"v_lshl_or_b32 v{vtr}, v{t[0]}, 6, v{vtr}")
a(f"v_bfe_u32 v{t[0]}, v0, 4, 1"); a(f"v_lshl_or_b32 v{vtr}, v{t[0]}, 5, v{vtr}")
a(f"v_and_b32 v{t[0]}, 3, v0"); a(f"v_lshl_or_b32 v{vtr}, v{t[0]}, 3, v{vtr}")
a(f"v_add_u32 v{vtr}, s24, v{vtr}")
a(f"v_and_b32 v{t[0]}, 7, v0"); a(f"v_bfe_u32 v{t[1]}, v0, 3, 2"); a(f"v_lshlrev_b32 v{t[1]}, 1, v{t[1]}")
a(f"v_xor_b32 v{t[0]}, v{t[0]}, v{t[1]}"); a(f"v_xor_b32 v{t[0]}, v{t[0]}, v{vL5}")
a(f"v_lshlrev_b32 v{t[0]}, 4, v{t[0]}")
a(f"v_lshl_or_b32 v{vpw}, v{vkn}, 7, v{t[0]}")
a(f"s_add_u32 s26, s24, {L_P}")
a(f"v_add_u32 v{vpw}, s26, v{vpw}")
for c in range(1, 4): a(f"v_xor_b32 v{vpw+c}, {32*c}, v{vpw}")
vet = vb
a(f"v_and_b32 v{t[0]}, 7, v0"); a(f"v_and_b32 v{t[1]}, 16, v0"); a(f"v_lshl_or_b32 v{t[0]}, v{t[0]}, 1, v{t[1]}")
a(f"v_bfe_u32 v{t[1]}, v0, 3, 1"); a(f"v_lshl_or_b32 v{t[0]}, v{t[1]}, 7, v{t[0]}")
a("s_lshl_b32 s30, s51, 5"); a(f"s_add_u32 s30, s30, {L_N}"); a(f"v_add_u32 v{vet}, s30, v{t[0]}")
ts(1)
a(f"s_waitcnt vmcnt({1 + (NPF if PFAT <= 8 else 0)})")
ts(2)
tags()
for h in range(2):
    for r, X in ((0, XR), (1, XI)):
        for tt in range(2):
            a(f"ds_read_b64_tr_b16 {vr(X+4*h+2*tt,2)}, v{vtr} offset:{r*2048+h*1024+tt*512}")
def cpass(R, I, Dr, Di, h, first):
    c0 = "0" if first else vr(Dr, 16); c1 = "0" if first else vr(Di, 16)
    a(f"{M32} {vr(Dr,16)}, {vr(R+4*h,4)}, {vr(CC+4*h,4)}, {c0}")
    a(f"{M32} {vr(Di,16)}, {vr(I+4*h,4)}, {vr(CC+4*h,4)}, {c1}")
    a(f"{M32} {vr(Dr,16)}, {vr(I+4*h,4)}, {vr(SS+4*h,4)}, {vr(Dr,16)}")
    a(f"{M32} {vr(Di,16)}, {vr(R+4*h,4)}, {vr(SN+4*h,4)}, {vr(Di,16)}")
a("s_waitcnt lgkmcnt(4)")
cpass(XR, XI, D1r, D1i, 0, True)
a("s_waitcnt lgkmcnt(0)")
cpass(XR, XI, D1r, D1i, 1, False)
a("s_barrier")
for h in range(2):
    for i in range(8 * h, 8 * h + 8, 2):
        for e in range(2):
            k = i + e
            a(f"v_mul_f32 v{t[e]}, v{D1r+k}, v{TC(k)}")
            a(f"v_mul_f32 v{t[2+e]}, v{D1i+k}, v{TC(k)}")
            a(f"v_fmac_f32 v{t[e]}, v{D1i+k}, v{TS_(k)}")
            a(f"v_fma_f32 v{t[2+e]}, -v{D1r+k}, v{TS_(k)}, v{t[2+e]}")
        a(f"v_cvt_pk_bf16_f32 v{XR+i//2}, v{t[0]}, v{t[1]}")
        a(f"v_cvt_pk_bf16_f32 v{XI+i//2}, v{t[2]}, v{t[3]}")
    cpass(XR, XI, D2r, D2i, h, h == 0)
a(f"s_waitcnt vmcnt({NPF if PFAT <= 8 else 0})")
a(f"ds_write_b16 v{vet}, v{vj}")
PK = CC
for c in range(4):
    for e in range(4):
        a(f"v_cvt_pk_bf16_f32 v{PK+4*c+e}, v{D2r+4*c+e}, v{D2i+4*c+e}")
    a(f"ds_write_b128 v{vpw+c}, {vr(PK+4*c,4)}")
a("s_waitcnt lgkmcnt(0)")
ts(3)
a("s_barrier")
a("s_setprio 0")
p2_addr()
p2_item()
wvoff(vW, SC, SC + 1)
ts(4)
a("s_barrier")
ts(5)
EARLY = "early" in OPT
SPLIT = "split" in OPT
p2_const(hooks=wdma_list(vW, [0, 4], (0,) if SPLIT else (0, 1)))
ts(6)
a("s_branch L_p2")
a.label("L_h")
a.hist = []
V = VAlloc(6)
t = [V() for _ in range(8)]
XN = V(16, 4); GW = V(8, 4)
srd(8, 92, 2048)
a(f"buffer_load_dwordx4 {vr(GW,4)}, v{vl16}, s[8:11], 0 offen")
a(f"buffer_load_dwordx4 {vr(GW+4,4)}, v{vl16}, s[8:11], 0 offen offset:1024")
def prewrite():
    if "pw" in OPT or "pws" in OPT:
        a(f"v_lshlrev_b32 v{t[0]}, 7, v0")
        a("s_lshl_b32 s30, s53, 15"); a("s_lshl_b32 s31, s51, 13"); a("s_add_u32 s30, s30, s31"); a(f"s_add_u32 s30, s30, {hx(S_OFF)}")
    if "pw" in OPT or "pwt" in OPT:
        a(f"v_and_b32 v{t[1]}, 3, v0"); a(f"v_lshlrev_b32 v{t[1]}, 7, v{t[1]}"); a(f"v_bfe_u32 v{t[2]}, v0, 2, 3"); a(f"v_lshl_or_b32 v{t[1]}, v{t[2]}, 11, v{t[1]}")
        a(f"s_mul_i32 s31, s2, {TSB}"); a("s_lshl_b32 s29, s51, 9"); a("s_add_u32 s31, s31, s29")
        a("s_mov_b32 exec_hi, 0")
        a(f"buffer_store_dword v{t[1]}, v{t[1]}, s[16:19], s31 offen sc1")
        a("s_mov_b32 exec_hi, -1")
    if "pw" in OPT or "pws" in OPT:
        a(f"buffer_store_dword v{t[0]}, v{t[0]}, s[16:19], s30 offen sc1")
NPW = 2 if "pw" in OPT else (1 if ("pws" in OPT or "pwt" in OPT) else 0)
if "pwl" not in OPT: prewrite()
vnat = V(); a(f"v_add_u32 v{vnat}, s24, v{vl16}")
MA = V(4, 4)
DMB = V(48, 4)
vu = DMB; vA = DMB + 1; vB1 = DMB + 2; vB2 = DMB + 3; vsg = DMB + 4
a(f"v_mov_b32 v{t[3]}, {L_C}"); a(f"v_mov_b32 v{t[4]}, 0")
a(f"ds_write_b32 v{t[3]}, v{t[4]}")
a(f"v_bfe_u32 v{t[0]}, v0, 3, 1"); a(f"v_bfe_u32 v{t[1]}, v0, 1, 1")
a(f"v_lshl_or_b32 v{t[0]}, v{t[0]}, 1, v{t[1]}")
a(f"v_and_or_b32 v{vu}, v0, 4, v{t[0]}")
a(f"v_cvt_f32_u32 v{vu}, v{vu}")
a(f"v_cvt_f32_u32 v{vsg}, v{vL5}")
a(f"v_fma_f32 v{vsg}, v{vsg}, -2.0, 1.0")
a(f"v_mul_f32 v{vA}, v{vu}, v{vsg}")
a(f"v_mul_f32 v{vA}, {fl(0.125)}, v{vA}")
a(f"v_and_b32 v{t[0]}, 1, v0"); a(f"v_cvt_f32_u32 v{t[0]}, v{t[0]}")
a(f"v_mul_f32 v{vB1}, v{t[0]}, v{vsg}"); a(f"v_mul_f32 v{vB1}, {fl(0.25)}, v{vB1}")
a(f"v_cvt_f32_u32 v{t[1]}, s2"); a(f"v_mul_f32 v{t[1]}, {fl(1/256)}, v{t[1]}")
a(f"v_fmac_f32 v{vB1}, v{t[1]}, v{vA}")
a(f"v_add_f32 v{vB2}, {fl(0.25)}, v{vB1}")
for pp in range(4):
    if pp == 0: a(f"v_mov_b32 v{t[0]}, v{vB1}")
    else: a(f"v_fmamk_f32 v{t[0]}, v{vA}, {hx(f2u(2.0*pp))}, v{vB1}")
    a(f"v_fmamk_f32 v{t[1]}, v{vA}, {hx(f2u(2.0*pp+1))}, v{vB2}")
    a(f"v_cos_f32 v{t[2]}, v{t[0]}"); a(f"v_cos_f32 v{t[3]}, v{t[1]}")
    a(f"v_sin_f32 v{t[4]}, v{t[0]}"); a(f"v_sin_f32 v{t[5]}, v{t[1]}")
    a(f"v_add_f32 v{t[2]}, v{t[2]}, v{t[3]}")
    a(f"v_add_f32 v{t[4]}, v{t[4]}, v{t[5]}")
    a(f"v_cvt_pk_bf16_f32 v{MA+pp}, v{t[2]}, v{t[4]}")
vmr = V(5); vk = DMB + 5; vneg = DMB + 6
a("s_lshl_b32 s30, s51, 7")
a(f"v_lshlrev_b32 v{t[0]}, 2, v{vn}")
a(f"v_sub_u32 v{vneg}, 0, v{vL5}")
for q in range(5):
    if q < 4: a(f"v_add3_u32 v{vk}, v{t[0]}, s30, {q}")
    else: a(f"v_add_u32 v{vk}, 512, v{t[0]}")
    a(f"v_xor_b32 v{vk}, v{vk}, v{vneg}"); a(f"v_add_u32 v{vk}, v{vk}, v{vL5}")
    a(f"v_bfe_u32 v{t[1]}, v{vk}, 5, 5")
    a(f"v_bfe_u32 v{t[2]}, v{vk}, 7, 3")
    a(f"v_xor_b32 v{t[3]}, v{vk}, v{t[1]}")
    a(f"v_and_b32 v{t[3]}, 3, v{t[3]}")
    a(f"v_bfe_u32 v{t[4]}, v{vk}, 4, 1")
    a(f"v_lshl_or_b32 v{t[3]}, v{t[3]}, 1, v{t[4]}")
    a(f"v_xor_b32 v{t[3]}, v{t[3]}, v{t[2]}")
    a(f"v_and_b32 v{t[4]}, 12, v{vk}")
    a(f"v_lshl_or_b32 v{t[4]}, v{t[3]}, 4, v{t[4]}")
    a(f"v_lshl_or_b32 v{vmr+q}, v{t[1]}, 7, v{t[4]}")
vts = V(); veo = V(); vet2 = V(); vsig = V(); ves = V()
a(f"v_lshlrev_b32 v{t[0]}, 13, v{vL5}"); a(f"v_lshl_or_b32 v{vts}, v{vn}, 4, v{t[0]}")
EV = V(10, 2)
a(f"v_and_b32 v{t[0]}, 7, v0"); a(f"v_bfe_u32 v{t[1]}, v0, 3, 1")
a(f"v_lshlrev_b32 v{t[2]}, 3, v{t[1]}"); a(f"v_lshl_or_b32 v{ves}, v{t[0]}, 4, v{t[2]}")
a(f"v_and_b32 v{t[2]}, 3, v0"); a(f"v_cmp_eq_u32 vcc, 0, v{t[2]}")
a(f"v_lshrrev_b32 v{t[3]}, 2, v{t[0]}")
a(f"v_cvt_f32_u32 v{t[4]}, v{t[1]}"); a(f"v_fma_f32 v{t[4]}, v{t[4]}, -2.0, 1.0")
a(f"v_cndmask_b32 v{t[3]}, v{t[3]}, v{t[1]}, vcc")
a(f"v_cndmask_b32 v{vsig}, 0, v{t[4]}, vcc")
a(f"v_lshlrev_b32 v{t[0]}, 1, v{t[0]}"); a(f"v_lshl_or_b32 v{t[0]}, v{t[1]}, 6, v{t[0]}"); a(f"v_lshl_or_b32 v{t[0]}, v{t[3]}, 7, v{t[0]}")
a(f"v_add_u32 v{veo}, {L_N}, v{t[0]}"); a(f"v_xor_b32 v{vet2}, 64, v{veo}")
for k in range(8): a(f"v_mov_b32 v{EV+k}, 0")
a(f"s_mul_i32 s8, s2, {TSB}")
a("s_lshl_b32 s9, s51, 9"); a("s_add_u32 s9, s9, s8"); a("s_add_u32 s10, s9, 4096")
a("s_add_u32 s8, s8, 16384")
a("s_mov_b32 s11, 0xffff0000")
acc = V(4, 4); ones = V(); MB = XN; MB4 = GW
a(f"v_mov_b32 v{ones}, 0x3f803f80")
a(f"v_mov_b32 v{acc}, 0"); a(f"v_mov_b32 v{acc+2}, 0")
vWh = V()
wvoff(vWh, t[0], t[1])
assert V.n <= 128, V.n
a("s_waitcnt lgkmcnt(0)")
if "pwl" in OPT: prewrite()
ts(1)
if EARLY and "e0" in OPT:
    for op in wdma_list(vWh, [0]): op()
a("s_barrier")
for r in range(2):
    for q in range(2):
        a(f"ds_read_b128 {vr(XN+8*r+4*q,4)}, v{vnat} offset:{r*2048+q*1024}")
a("s_waitcnt vmcnt(0) lgkmcnt(0)")
tags()
a("s_cmp_eq_u32 s51, 1")
if "nopw" not in OPT:
    a("s_cselect_b32 exec_lo, -1, 0"); a("s_cselect_b32 exec_hi, -1, 0")
    for k in range(4): a(f"v_mov_b32 v{DMB+k}, s49")
    a(f"buffer_store_dwordx4 {vr(DMB,4)}, v{vl16}, s[16:19], s57 offen sc1")
a("s_mov_b64 exec, -1")
def ecompute():
    a(f"v_add_f32 v{EV+8}, v{EV}, v{EV+1}"); a(f"v_sub_f32 v{EV+9}, v{EV+2}, v{EV+3}")
    a(f"v_add_f32 v{EV+4}, v{EV+4}, v{EV+5}"); a(f"v_sub_f32 v{EV+6}, v{EV+6}, v{EV+7}")
    a(f"v_fma_f32 v{EV+8}, -v{vsig}, v{EV+6}, v{EV+8}"); a(f"v_fmac_f32 v{EV+9}, v{vsig}, v{EV+4}")
    a("s_cmp_eq_u32 s51, 1"); a("s_cselect_b32 exec_lo, 0xffff, 0"); a("s_mov_b32 exec_hi, 0")
    a(f"buffer_store_dwordx2 {vr(EV+8,2)}, v{ves}, s[16:19], s8 offen sc1")
    a("s_mov_b64 exec, -1")
ts(2)
if "pt2" in OPT:
    a(f"v_lshlrev_b32 v{t[0]}, 7, v0")
    a("s_lshl_b32 s30, s53, 15"); a("s_lshl_b32 s31, s51, 13"); a("s_add_u32 s30, s30, s31"); a(f"s_add_u32 s30, s30, {hx(S_OFF)}")
    a(f"buffer_load_ubyte v1, v{t[0]}, s[16:19], s30 offen")
eops = wdma_list(vWh, [0]) if (EARLY and "e0" not in OPT) else []
for j in range(8):
    if eops: eops.pop(0)()
    a(f"v_lshlrev_b32 v{t[6]}, 16, v{GW+j}")
    a(f"v_and_b32 v{t[7]}, s11, v{GW+j}")
    for r in range(2):
        a(f"v_lshlrev_b32 v{t[2*r]}, 16, v{XN+8*r+j}")
        a(f"v_and_b32 v{t[2*r+1]}, s11, v{XN+8*r+j}")
    for r in range(2):
        a(f"v_mul_f32 v{t[2*r]}, v{t[2*r]}, v{t[6]}")
        a(f"v_mul_f32 v{t[2*r+1]}, v{t[2*r+1]}, v{t[7]}")
    for r in range(2): a(f"v_cvt_pk_bf16_f32 v{t[4+r]}, v{t[2*r]}, v{t[2*r+1]}")
    for r in range(2): a(f"v_dot2_f32_bf16 v{acc+2*r}, v{t[4+r]}, v{ones}, v{acc+2*r}")
ts(3)
a("s_setprio 2")
a("s_barrier")
ts(4)
o = L_P // 256
a(f"ds_read2st64_b32 {vr(MB4,2)}, v{vmr+4} offset0:{o} offset1:{o+16}")
a(f"ds_read2st64_b32 {vr(MB4+2,2)}, v{vmr+4} offset0:{o+32} offset1:{o+48}")
for q in range(4):
    a(f"ds_read2st64_b32 {vr(MB+4*q,2)}, v{vmr+q} offset0:{o} offset1:{o+16}")
    a(f"ds_read2st64_b32 {vr(MB+4*q+2,2)}, v{vmr+q} offset0:{o+32} offset1:{o+48}")
for k in range(4):
    a(f"ds_read_u16_d16_hi v{EV+k}, v{veo} offset:{16*k}")
    a(f"ds_read_u16_d16_hi v{EV+4+k}, v{vet2} offset:{16*k}")
DN = DMB; DM = [DMB + 8 + 8 * q for q in range(4)]
a("s_waitcnt lgkmcnt(15)")
a(f"{M32} {vr(DN,16)}, {vr(MA,4)}, {vr(MB4,4)}, 0")
for q in range(4):
    a(f"s_waitcnt lgkmcnt({14-2*q})")
    a(f"{M32} {vr(DM[q],16)}, {vr(MA,4)}, {vr(MB+4*q,4)}, 0")
a("s_waitcnt lgkmcnt(0)")
ecompute()
a("s_cmp_eq_u32 s51, 0"); a("s_cselect_b32 exec_lo, 1, 0"); a("s_cselect_b32 exec_hi, 1, 0")
a(f"v_sub_f32 v{DM[0]}, v{DM[0]}, v{DN+1}"); a(f"v_add_f32 v{DM[0]+1}, v{DM[0]+1}, v{DN}")
a("s_mov_b32 exec_lo, 0")
for k in range(2, 8): a(f"v_mov_b32 v{DM[0]+k}, v{DN+k}")
a("s_mov_b64 exec, -1")
OUT = MB
for s_ in range(4):
    for q in range(4):
        a(f"v_cvt_pk_bf16_f32 v{OUT+4*s_+q}, v{DM[q]+2*s_}, v{DM[q]+2*s_+1}")
    a(f"buffer_store_dwordx4 {vr(OUT+4*s_,4)}, v{vts}, s[16:19], {'s9' if s_ < 2 else 's10'} offen offset:{(s_&1)*2048} sc1")
a("s_barrier")
ts(5)
for dpp in ("row_shr:1", "row_shr:2", "row_shr:4", "row_shr:8"):
    for r in range(2):
        a(f"v_add_f32_dpp v{acc+2*r}, v{acc+2*r}, v{acc+2*r} {dpp} row_mask:0xf bank_mask:0xf bound_ctrl:0")
for dpp, rm in (("row_bcast:15", "0xa"), ("row_bcast:31", "0xc")):
    for r in range(2):
        a(f"v_add_f32_dpp v{acc+2*r}, v{acc+2*r}, v{acc+2*r} {dpp} row_mask:{rm} bank_mask:0xf")
a(f"v_cvt_pk_bf16_f32 v{t[0]}, v{acc}, v{acc+2}")
a(f"v_lshlrev_b32 v{t[1]}, 16, v{t[0]}")
a(f"v_and_b32 v{t[2]}, s11, v{t[0]}")
for r in range(2): a(f"v_mul_f32 v{t[1+r]}, {hx(f2u(-1.4426950408889634))}, v{t[1+r]}")
for r in range(2): a(f"v_exp_f32 v{t[1+r]}, v{t[1+r]}")
for r in range(2): a(f"v_add_f32 v{t[1+r]}, 1.0, v{t[1+r]}")
for r in range(2): a(f"v_rcp_f32 v{t[1+r]}, v{t[1+r]}")
a(f"v_cvt_pk_bf16_f32 v{t[0]}, v{t[1]}, v{t[2]}")
a(f"v_lshlrev_b32 v{acc}, 16, v{t[0]}")
a(f"v_and_b32 v{acc+2}, s11, v{t[0]}")
a(f"v_sub_f32 v{t[1]}, 1.0, v{acc}")
a(f"v_sub_f32 v{t[2]}, 1.0, v{acc+2}")
a(f"v_cvt_pk_bf16_f32 v{t[0]}, v{t[1]}, v{t[2]}")
a(f"v_lshlrev_b32 v{acc+1}, 16, v{t[0]}")
a(f"v_and_b32 v{acc+3}, s11, v{t[0]}")
for r in range(4): a(f"v_mul_f32 v{acc+r}, {hx(f2u(2.0**-22))}, v{acc+r}")
a("s_lshl_b32 s30, s51, 4"); a(f"s_add_u32 s30, s30, {L_G}")
a(f"v_mov_b32 v{t[3]}, s30")
a("s_mov_b32 exec_lo, 0"); a("s_mov_b32 exec_hi, 0x80000000")
a(f"ds_write_b128 v{t[3]}, {vr(acc,4)}")
a("s_mov_b64 exec, -1")
a(f"v_mov_b32 v{t[3]}, {L_C}"); a(f"v_mov_b32 v{t[4]}, 1")
for k in range(4): a(f"v_mov_b32 v{DMB+k}, s48")
a("s_mov_b64 exec, 1")
a("s_waitcnt vmcnt(0)")
a(f"ds_add_rtn_u32 v{t[5]}, v{t[3]}, v{t[4]}")
a("s_waitcnt lgkmcnt(0)")
a(f"v_readfirstlane_b32 s30, v{t[5]}")
a("s_cmp_eq_u32 s30, 3"); a("s_cselect_b32 exec_lo, -1, 0"); a("s_cselect_b32 exec_hi, -1, 0")
a(f"buffer_store_dwordx4 {vr(DMB,4)}, v{vl16}, s[16:19], s57 offen {FSF}")
a("s_mov_b64 exec, -1")
def stouch(vt):
    a(f"v_lshlrev_b32 v{vt}, 7, v0")
    a(f"s_mul_i32 s30, s2, {TSB}"); a("s_lshl_b32 s31, s51, 12"); a("s_add_u32 s30, s30, s31"); a(f"s_add_u32 s30, s30, {hx(U_OFF)}")
    a("s_mov_b32 exec_hi, 0")
    a(f"buffer_load_ubyte v1, v{vt}, s[16:19], s30 offen")
    a("s_mov_b32 exec_hi, -1")
if "pt1" in OPT: stouch(t[0])
a("s_setprio 0")
ts(6)
p2_addr(); p2_item(); wvoff(vW, SC, SC + 1); p2_const()
if optint("pa", 0): a(f"s_sleep {optint('pa', 0)}")
a.label("L_p2")
a.hist = []
t = [SC + k for k in range(6)]
if "pt7" in OPT:
    a("s_and_b32 s30, s54, 1"); a("s_cmp_eq_u32 s30, 0"); a("s_cselect_b32 s30, s24, s26"); a(f"s_add_u32 s30, s30, {hx(U_OFF)}")
    a("s_mov_b32 exec_lo, 0x11111111"); a("s_mov_b32 exec_hi, 0x11111111")
    a(f"buffer_load_ubyte v1, v{vT}, s[16:19], s30 offen")
    a("s_mov_b64 exec, -1")
if "ga" in OPT: a("s_barrier")
ts(7)
if "pw3" in OPT:
    a(f"v_lshrrev_b32 v{TB}, 2, v0"); a(f"v_and_b32 v{TB+1}, 3, v0"); a(f"v_lshlrev_b32 v{TB+1}, 6, v{TB+1}"); a(f"v_lshl_or_b32 v{TB+2}, v{TB}, 11, v{TB+1}")
    a(f"buffer_store_dword v{TB+2}, v{TB+2}, s[16:19], s30 offen sc1")
poll("L_poll1", vF, TB, "s8", "s48")
def f2pre():
    if "nopw" in OPT: return
    a(f"v_mov_b32 v{TB}, s48"); a(f"v_lshlrev_b32 v{TB+1}, 2, v0")
    a("s_mov_b32 exec_hi, 0")
    a(f"buffer_store_dword v{TB}, v{TB+1}, s[16:19], s9 offen sc1")
    a("s_mov_b32 exec_hi, -1")
ts(8)
if "st2" in OPT: a("s_add_u32 s70, s60, s58")
a.label("L_p2c")
a("s_setprio 1")
a("s_mov_b32 m0, s27")
a(f"buffer_load_dwordx4 v{vT}, s[16:19], s24 offen {TLF} lds")
a("s_add_u32 m0, s27, 1024")
a(f"buffer_load_dwordx4 v{vT}, s[16:19], s26 offen {TLF} lds")
a("s_lshl_b32 s29, s3, 9"); a(f"s_add_u32 s29, s29, {L_E}"); a("s_mov_b32 m0, s29")
a("s_mov_b32 exec_lo, s59"); a("s_mov_b32 exec_hi, 0")
a(f"buffer_load_dwordx4 v{vEa}, s[16:19], s50 offen sc1 lds")
a("s_mov_b64 exec, -1")
PW2 = "pw2" in OPT or "pw3" in OPT
def pw2():
    a(f"v_lshrrev_b32 v{TB}, 2, v0"); a(f"v_and_b32 v{TB+1}, 3, v0"); a(f"v_lshlrev_b32 v{TB+1}, 6, v{TB+1}"); a(f"v_lshl_or_b32 v{TB}, v{TB}, 11, v{TB+1}")
    if "pwh" in OPT: a("s_mov_b32 exec_lo, 0x55555555"); a("s_mov_b32 exec_hi, 0x55555555")
    a(f"buffer_store_dword v{TB}, v{TB}, s[16:19], s30 offen sc1")
    if "pwh" in OPT: a("s_mov_b64 exec, -1")
if "pw2" in OPT: pw2()
if SPLIT:
    for op in wdma_list(vW, [0], (1,)): op()
def wread(cc):
    a("s_not_b32 exec_lo, s52"); a("s_not_b32 exec_hi, s52")
    for arr in range(4):
        for i in range(4):
            a(f"ds_read_u16_d16_hi v{Wi(arr,cc,i)}, v{vWr} offset:{1536*arr+768*cc+48*i}")
    a("s_mov_b64 exec, -1")
if UO:
    srd(12, 94, 2048 * 2048)
    a(f"v_lshlrev_b32 v{vF}, 2, v{vc}"); a(f"v_lshl_or_b32 v{vF}, v{vg}, 17, v{vF}")
    a("s_and_b32 s31, s2, 7"); a("s_lshl_b32 s31, s31, 19"); a("s_lshl_b32 s30, s3, 12"); a("s_add_u32 s31, s31, s30"); a("s_lshl_b32 s30, s54, 6"); a("s_add_u32 s31, s31, s30")
a("s_barrier")
if "ptw" in OPT:
    a(f"v_lshrrev_b32 v{TB}, 1, v0"); a(f"v_and_b32 v{TB+1}, 1, v0"); a(f"v_lshlrev_b32 v{TB+1}, 7, v{TB+1}"); a(f"v_lshl_or_b32 v{TB}, v{TB}, 11, v{TB+1}")
    a("s_mov_b32 exec_hi, 0")
    a(f"buffer_load_ubyte v1, v{TB}, s[16:19], s30 offen")
    a("s_mov_b32 exec_hi, -1")
wread(0)
if not SPLIT: wread(1)
PKD = SC + 8
a(f"s_waitcnt vmcnt({4 if SPLIT else (1 if ('pw2' in OPT or 'ptw' in OPT) else 0)})")
if ST: a("s_waitcnt lgkmcnt(0)")
ts(9)
def pt9():
    a("s_and_b32 s30, s54, 1"); a("s_cmp_eq_u32 s30, 0"); a("s_cselect_b32 s30, s24, s26"); a(f"s_add_u32 s30, s30, {hx(U_OFF)}")
    a("s_mov_b32 exec_lo, 0x11111111"); a("s_mov_b32 exec_hi, 0x11111111")
    a(f"buffer_load_ubyte v1, v{vT}, s[16:19], s30 offen")
    a("s_mov_b64 exec, -1")
if "pt9" in OPT: pt9()
a(f"ds_read2_b32 {vr(TB,2)}, v{vTr} offset0:0 offset1:16")
a(f"ds_read2_b32 {vr(TB+2,2)}, v{vTr} offset0:32 offset1:48")
a(f"v_add_u32 v{vTr}, 1024, v{vTr}")
a(f"ds_read2_b32 {vr(TB+4,2)}, v{vTr} offset0:0 offset1:16")
a(f"ds_read2_b32 {vr(TB+6,2)}, v{vTr} offset0:32 offset1:48")
a.label("L_p2e")
for bb in range(2):
    a(f"s_waitcnt lgkmcnt({2-2*bb})")
    a(f"{M16} {vr(D+8*bb,4)}, {vr(Fr,4)}, {vr(TB+4*bb,4)}, 0")
    a(f"{M16} {vr(D+8*bb+4,4)}, {vr(Fm,4)}, {vr(TB+4*bb,4)}, 0")
for ip in range(2):
    for cc in range(2):
        for bb in range(2):
            i = 2 * ip + cc
            a(f"v_cvt_pk_bf16_f32 v{PKD+4*ip+2*cc+bb}, v{D+8*bb+i}, v{D+8*bb+4+i}")
    a(f"ds_write_b128 v{vw1}, {vr(PKD+4*ip,4)} offset:{ip*256}")
a("s_cmp_lg_u32 s54, 0")
a("s_cbranch_scc0 L_el")
a.label("L_elb")
a("s_waitcnt lgkmcnt(0)")
f2pre()
a("s_barrier")
OB = TB
for cc in range(2):
    for h in range(2):
        a(f"ds_read_b64 {vr(OB+4*cc+2*h,2)}, v{vr1} offset:{h*2048+cc*8}")
X = D
for cc in range(2):
    a(f"s_waitcnt lgkmcnt({2-2*cc})")
    a(f"{M16} {vr(X+8*cc,4)}, {vr(M2+8*cc,4)}, {vr(OB+4*cc,4)}, 0")
    a(f"{M16} {vr(X+8*cc+4,4)}, {vr(M2+8*cc+4,4)}, {vr(OB+4*cc,4)}, 0")
YO = [PKD, PKD + 4, PKD, PKD + 4]
tpr = [(vT, vTr), (vr1, vw1)]
if SPLIT:
    a(f"s_waitcnt vmcnt({0 if 'nopw' in OPT else 1})")
    wread(1)
def dpt(cc, ab, ri): return WW + 16 * cc + 8 * ab + 4 * ri
def wmul(cc, ab):
    n = 2 * cc + ab
    xr = X + 8 * cc; xi = X + 8 * cc + 4
    for i in range(4):
        wr = Wi(2 * ab, cc, i); wi = Wi(2 * ab + 1, cc, i)
        y0, y1 = tpr[i & 1]
        a(f"v_mul_f32 v{y0}, v{xr+i}, v{wr}")
        a(f"v_mul_f32 v{y1}, v{xi+i}, v{wr}")
        a(f"v_fma_f32 v{y0}, -v{xi+i}, v{wi}, v{y0}")
        a(f"v_fmac_f32 v{y1}, v{xr+i}, v{wi}")
        a(f"v_cvt_pk_bf16_f32 v{YO[n]+i}, v{y1}, v{y0}")
    a(f"{M16} {vr(dpt(cc,ab,0),4)}, {vr(MT+8*cc,4)}, {vr(YO[n],4)}, 0")
    a(f"{M16} {vr(dpt(cc,ab,1),4)}, {vr(MT+8*cc+4,4)}, {vr(YO[n],4)}, 0")
a("s_and_b32 s29, s2, 0xfb")
a("s_cmp_eq_u32 s29, 0")
a("s_cbranch_scc1 L_sp")
for cc in range(2):
    if cc == 1: a("s_waitcnt lgkmcnt(0)")
    for ab in range(2): wmul(cc, ab)
a.label("L_spb")
XP2 = X
P2 = D
for ab in range(2):
    for ip in range(2):
        for cc in range(2):
            for bb in range(2):
                i = 2 * ip + bb
                a(f"v_cvt_pk_bf16_f32 v{P2+8*ab+4*ip+2*bb+cc}, v{dpt(cc,ab,0)+i}, v{dpt(cc,ab,1)+i}")
        a(f"ds_write_b128 v{vw2}, {vr(P2+8*ab+4*ip,4)} offset:{2048*ab+ip*256}")
a("s_waitcnt lgkmcnt(0)")
a("s_barrier")
O2 = WW + 16
X4 = False
order = [(0, 1), (1, 1), (0, 0), (1, 0)]
for bb, ab in order:
    for h in range(2):
        a(f"ds_read_b64 {vr(O2+8*bb+4*ab+2*h,2)}, v{vr2} offset:{WR*h+2048*ab+bb*8}")
E = [M2, M2 + 8, MT, MT + 8]
for k_, (bb, ab) in enumerate(order):
    n = 2 * bb + ab
    a(f"s_waitcnt lgkmcnt({6-2*k_})")
    if Y4:
        a(f"{M16} {vr(E[n],4)}, {vr(O2+4*n,4)}, {vr(Fr,4)}, 0")
        a(f"{M16} {vr(E[n]+4,4)}, {vr(O2+4*n,4)}, {vr(Fm,4)}, 0")
    else:
        a(f"{M16} {vr(E[n],4)}, {vr(Fr,4)}, {vr(O2+4*n,4)}, 0")
        a(f"{M16} {vr(E[n]+4,4)}, {vr(Fm,4)}, {vr(O2+4*n,4)}, 0")
SO = WW
for ab in (1, 0):
    for bb in range(2):
        n = 2 * bb + ab
        if Y4:
            for i in range(4): a(f"v_cvt_pk_bf16_f32 v{SO+4*n+i}, v{E[n]+4+i}, v{E[n]+i}")
            a(f"s_add_u32 s30, s24, {hx(bb*TSB + ab*U_OFF)}")
            a(f"buffer_store_dwordx4 {vr(SO+4*n,4)}, v{vS}, s[16:19], s30 offen {SSF}")
            continue
        for i in range(4):
            a(f"v_cvt_pk_bf16_f32 v{SO+8*bb+2*i+ab}, v{E[n]+4+i}, v{E[n]+i}")
            if UO and ab:
                if i & 1 or True: a(f"s_add_u32 s30, s31, {hx(16*i*2048)}")
                a(f"buffer_store_dword v{SO+8*bb+2*i+ab}, v{vF}, s[12:15], s30 offen offset:{bb*2048} {SSF}")
                continue
            a(f"s_add_u32 s30, s24, {hx((16*i+bb)*TSB + ab*U_OFF)}")
            a(f"buffer_store_dword v{SO+8*bb+2*i+ab}, v{vS}, s[16:19], s30 offen {SSF}")
ts(10)
if "swb" in OPT:
    a("s_waitcnt vmcnt(0)")
    a("buffer_wbl2 sc1")
amx_post(t[0])
setflag(t[0], "s9", "s49")
if "st2" in OPT: ts(1)
a("s_setprio 0")
V = VAlloc(8)
vg_ = vg; vc_ = vc
t = [V() for _ in range(6)]
vS3 = 1; vN = 2; vF3 = 7; AP8 = V(); AMx = V()
MR = V(16, 4); MI = V(16, 4); X = V(16, 4)
BA = V(24, 4); BB = V(24, 4); TCh = V(8); TSh = V(8)
assert V.n <= 128, V.n
D1r = BA + 8; D1i = BB + 8; D2r = BA; D2i = BB
SBt = [D1r, D1r + 4, D1r + 8, D1r + 12, X]
DDt = [D1i, D1i + 4, D1i + 8, D1i + 12, X + 4]
MA = X + 8; AP = X + 12; AM = [X + 13, X + 14, X + 15, AMx]
CS = D1r; GG = D1i
a(f"v_bfe_u32 v{t[0]}, v0, 2, 2"); a(f"v_lshlrev_b32 v{t[1]}, 4, v{t[0]}")
a(f"v_add_u32 v{t[1]}, {L_G}, v{t[1]}")
a(f"ds_read_b128 {vr(GG,4)}, v{t[1]}")
if X4:
    a(f"v_and_b32 v{t[1]}, 1, v0"); a(f"v_lshlrev_b32 v{t[1]}, 3, v{t[1]}")
    a(f"v_lshl_or_b32 v{t[1]}, v{t[0]}, 4, v{t[1]}")
    a(f"v_bfe_u32 v{t[2]}, v0, 1, 1"); a(f"v_lshl_or_b32 v{t[1]}, v{t[2]}, 6, v{t[1]}")
else:
    a(f"v_lshlrev_b32 v{t[1]}, 2, v{vc_}")
SD = "sd" in OPT
RS = 2080
if SD:
    a(f"v_mul_u32_u24 v{vS3}, {2*RS}, v{vg_}"); a(f"v_add_u32 v{vS3}, v{vS3}, v{t[1]}")
    a(f"v_lshlrev_b32 v{vN}, 4, v0")
else:
    a(f"v_lshl_or_b32 v{vS3}, v{vg_}, 12, v{t[1]}")
    a(f"v_lshl_or_b32 v{vN}, v{vg_}, 20, v{t[1]}")
a("s_xor_b32 s50, s3, 4")
a(f"s_mul_i32 s8, s2, {TSB}")
if SD:
    a("s_lshl_b32 s11, s50, 6"); a(f"s_add_u32 s11, s11, {L_W}"); a(f"v_add_u32 v{vS3}, s11, v{vS3}"); a(f"v_add_u32 v{AP8}, {RS}, v{vS3}")
    a("s_lshl_b32 s11, s3, 11"); a("s_add_u32 s8, s8, s11"); a(f"s_add_u32 s10, s8, {hx(U_OFF)}")
    a(f"s_mul_i32 s9, s3, {RS}"); a(f"s_add_u32 s9, s9, {L_W}")
else:
    a("s_lshl_b32 s11, s50, 6"); a("s_add_u32 s8, s8, s11"); a(f"s_add_u32 s10, s8, {hx(U_OFF)}")
    if UO:
        a("s_lshl_b32 s10, s2, 11"); a("s_add_u32 s10, s10, s11"); a("s_add_u32 s9, s10, 0x80000")
if SD:
    a("s_lshl_b32 s11, s3, 5"); a(f"v_add_u32 v{t[1]}, s11, v{vn}")
else:
    a(f"v_bfe_u32 v{t[1]}, v0, 2, 3"); a(f"v_and_b32 v{t[2]}, 3, v0"); a(f"v_lshlrev_b32 v{t[2]}, 3, v{t[2]}")
    a(f"v_lshl_add_u32 v{t[1]}, v{t[1]}, 5, v{t[2]}"); a(f"v_add_u32 v{t[1]}, s50, v{t[1]}")
a("s_cmp_eq_u32 s50, 0"); a("s_cselect_b32 s24, 0x00010001, 0")
a(f"v_lshlrev_b32 v{vF3}, 10, v{t[1]}")
a("s_bfe_u32 s11, s2, 0x30001"); a("s_lshl_b32 s11, s11, 7"); a(f"s_add_u32 s11, s11, {hx(F2_OFF)}")
vsg = X; ve = X + 1; vstep = X + 2; vpe = X + 3; vpo = X + 4; vk = X + 5; vpl = X + 6
a(f"v_bfe_u32 v{t[1]}, v0, 1, 1"); a(f"v_cvt_f32_u32 v{vsg}, v{t[1]}")
a(f"v_mul_f32 v{vsg}, -0.5, v{vsg}"); a(f"v_add_f32 v{vsg}, {fl(0.25)}, v{vsg}")
a(f"v_and_b32 v{t[1]}, 1, v0"); a(f"v_cvt_f32_u32 v{t[1]}, v{t[1]}")
a(f"v_mul_f32 v{ve}, v{t[1]}, v{vsg}")
a(f"v_lshlrev_b32 v{t[0]}, 9, v{t[0]}"); a(f"v_add_u32 v{t[0]}, s2, v{t[0]}")
a(f"v_cvt_f32_u32 v{vstep}, v{t[0]}"); a(f"v_mul_f32 v{vstep}, {hx(f2u(-1/2048))}, v{vstep}")
a(f"v_cvt_f32_u32 v{t[2]}, v{vg_}"); a(f"v_add_f32 v{t[2]}, v{t[2]}, v{t[2]}")
a(f"v_fma_f32 v{vpe}, v{t[2]}, v{vstep}, v{ve}")
a(f"v_sub_f32 v{vpo}, v{vpe}, v{vsg}")
a(f"v_fmamk_f32 v{vpo}, v{t[2]}, {hx(f2u(-0.125))}, v{vpo}")
for lo in range(2):
    if lo:
        a(f"v_add_f32 v{vpe}, v{vpe}, v{vstep}")
        a(f"v_add_f32 v{vpo}, v{vpo}, v{vstep}"); a(f"v_add_f32 v{vpo}, {hx(f2u(-0.125))}, v{vpo}")
    a(f"v_cos_f32 v{CS+4*lo}, v{vpe}"); a(f"v_sin_f32 v{CS+4*lo+1}, v{vpe}")
    a(f"v_cos_f32 v{CS+4*lo+2}, v{vpo}"); a(f"v_sin_f32 v{CS+4*lo+3}, v{vpo}")
a("s_lshl_b32 s25, s50, 4")
a(f"v_lshlrev_b32 v{vpl}, 12, v{vg_}")
a(f"v_add_u32 v{vk}, s25, v{vc_}")
a(f"v_and_b32 v{t[3]}, 14, v{vk}"); a(f"v_lshl_or_b32 v{t[3]}, v{t[3]}, 3, v{vpl}")
a(f"v_and_b32 v{t[4]}, 31, v{vk}"); a(f"v_lshl_or_b32 v{t[3]}, v{t[4]}, 7, v{t[3]}")
a(f"v_bfe_u32 v{t[4]}, v{vk}, 5, 2"); a(f"v_lshl_or_b32 v{AP}, v{t[4]}, 2, v{t[3]}")
a(f"v_sub_u32 v{t[5]}, 0, v{vk}")
a(f"v_and_b32 v{t[4]}, 31, v{t[5]}"); a(f"v_lshl_or_b32 v{t[3]}, v{t[4]}, 7, v{vpl}")
a(f"v_and_b32 v{t[4]}, 14, v{t[5]}"); a(f"v_lshl_or_b32 v{t[3]}, v{t[4]}, 3, v{t[3]}")
a(f"v_lshrrev_b32 v{t[5]}, 3, v{t[5]}")
for tt in range(4):
    if tt: a(f"v_subrev_u32 v{t[5]}, 16, v{t[5]}")
    a(f"v_and_b32 v{t[4]}, 0x7c, v{t[5]}")
    a(f"v_xor_b32 v{AM[tt]}, v{t[4]}, v{t[3]}")
a("s_mov_b32 exec_lo, s24"); a("s_mov_b32 exec_hi, s24")
a(f"v_or_b32 v{AM[0]}, 64, v{vpl}")
a("s_mov_b64 exec, -1")
a("s_waitcnt lgkmcnt(0)")
for lo in range(2):
    for ab in range(2):
        a(f"v_mul_f32 v{t[0]}, v{GG+ab}, v{CS+4*lo}"); a(f"v_mul_f32 v{t[1]}, v{GG+ab}, v{CS+4*lo+1}")
        a(f"v_fmac_f32 v{t[0]}, v{GG+2+ab}, v{CS+4*lo+2}"); a(f"v_fmac_f32 v{t[1]}, v{GG+2+ab}, v{CS+4*lo+3}")
        a(f"v_cvt_pk_bf16_f32 v{MA+2*lo+ab}, v{t[0]}, v{t[1]}")
a("s_cmp_eq_u32 s3, 4")
a("s_cbranch_scc1 L_m0")
a("s_cmp_ge_u32 s3, 4")
a("s_cbranch_scc1 L_p3b")
TC = lambda k: BA + k if k < 8 else TCh + k - 8
TS_ = lambda k: BB + k if k < 8 else TSh + k - 8
vb = X; vo = X + 1
a(f"v_cvt_f32_u32 v{vb}, v{vn}"); a(f"v_cvt_f32_u32 v{vo}, v{vL5}")
a(f"v_mul_f32 v{vb}, {fl(1/32)}, v{vb}"); a(f"v_mul_f32 v{vo}, 4.0, v{vo}"); a(f"v_mul_f32 v{vo}, v{vb}, v{vo}")
for i in range(16):
    kc = 8 * (i // 4) + i % 4
    if kc == 0: a(f"v_mov_b32 v{t[0]}, v{vo}")
    else: a(f"v_fmamk_f32 v{t[0]}, v{vb}, {hx(f2u(float(kc)))}, v{vo}")
    a(f"v_cos_f32 v{t[1]}, v{t[0]}"); a(f"v_sin_f32 v{t[2]}, v{t[0]}")
    a(f"v_mul_f32 v{t[0]}, {fl(1/32)}, v{t[0]}")
    a(f"v_cvt_pk_bf16_f32 v{MR+i}, v{t[1]}, -v{t[2]}")
    a(f"v_cvt_pk_bf16_f32 v{MI+i}, v{t[2]}, v{t[1]}")
    a(f"v_cos_f32 v{TC(i)}, v{t[0]}"); a(f"v_sin_f32 v{TS_(i)}, v{t[0]}")
a.label("L_p3b")
if "nogb" not in OPT: a("s_barrier")
if optint("pb", 0): a(f"s_sleep {optint('pb', 0)}")
ts(11)
poll("L_poll2", vF3, t[0], "s11", "s49")
ts(12)
if "st2" in OPT: a("s_add_u32 s64, s60, s58")
if SD:
    for ab in range(2):
        a(f"s_add_u32 m0, s9, {ab*8*RS}")
        a(f"buffer_load_dwordx4 v{vN}, s[16:19], {'s10' if ab else 's8'} offen {SLF} lds")
        a(f"buffer_load_dwordx4 v{vN}, s[16:19], {'s10' if ab else 's8'} offen offset:1024 {SLF} lds")
    a("s_waitcnt vmcnt(0)")
    a("s_barrier")
    for tt in range(4):
        for lo in range(2):
            a(f"ds_read2st64_b32 {vr(SBt[tt]+2*lo,2)}, v{AP8 if lo else vS3} offset0:{2*tt} offset1:{2*tt + 8*RS//256}")
else:
  for tt in range(4):
    for lo in range(2):
        for ab in range(2):
            if UO and ab:
                a(f"buffer_load_dword v{SBt[tt]+2*lo+ab}, v{vN}, s[12:15], {'s9' if lo else 's10'} offen offset:{tt*512} {SLF}")
                continue
            a(f"buffer_load_dword v{SBt[tt]+2*lo+ab}, v{vS3}, s[16:19], {'s10' if ab else 's8'} offen offset:{tt*512+lo*2048} {SLF}")
MA0 = MR
def fin(tt):
    d = DDt[tt]
    if tt == 0:
        a("s_mov_b32 exec_lo, s24"); a("s_mov_b32 exec_hi, s24")
        for k in range(4): a(f"v_mov_b32 v{d+k}, v{DDt[4]+k}")
        a("s_mov_b64 exec, -1")
    a(f"v_cvt_pk_bf16_f32 v{d}, v{d}, v{d+1}")
    a(f"v_cvt_pk_bf16_f32 v{d+1}, v{d+2}, v{d+3}")
    if tt: a(f"v_xor_b32 v{t[tt]}, {tt<<4}, v{AP}")
    a(f"ds_write_b32 v{t[tt] if tt else AP}, v{d}")
    a(f"ds_write_b32 v{AM[tt]}, v{d+1}")
if SD:
    for tt in range(4):
        a(f"s_waitcnt lgkmcnt({6-2*tt})")
        a(f"{M16} {vr(DDt[tt],4)}, {vr(MA,4)}, {vr(SBt[tt],4)}, 0")
        if tt == 0: a(f"{M16} {vr(DDt[4],4)}, {vr(MA0,4)}, {vr(SBt[0],4)}, 0")
    for tt in range(4): fin(tt)
else:
    for tt in range(4):
        a(f"s_waitcnt vmcnt({12-4*tt})")
        a(f"{M16} {vr(DDt[tt],4)}, {vr(MA,4)}, {vr(SBt[tt],4)}, 0")
        if tt == 0: a(f"{M16} {vr(DDt[4],4)}, {vr(MA0,4)}, {vr(SBt[0],4)}, 0")
        if tt >= 1: fin(tt - 1)
    fin(3)
vst = vS3
a(f"v_bfe_u32 v{t[4]}, v{vn}, 1, 3"); a(f"v_xor_b32 v{t[4]}, v{t[4]}, v{vL5}"); a(f"v_lshlrev_b32 v{t[4]}, 4, v{t[4]}")
a(f"v_lshl_or_b32 v{t[4]}, v{vn}, 7, v{t[4]}"); a("s_lshl_b32 s26, s51, 12")
a("s_waitcnt lgkmcnt(0)")
a(f"v_add_u32 v{t[0]}, s26, v{t[4]}")
for q in range(1, 4): a(f"v_xor_b32 v{t[q]}, {32*q}, v{t[0]}")
a(f"v_lshlrev_b32 v{t[4]}, 4, v{vL5}"); a(f"v_lshl_or_b32 v{vst}, v{vn}, 6, v{t[4]}")
srd(12, 94, 2048 * 2048)
a("s_add_u32 s30, s22, 0x80000")
if "st2" in OPT: ts(3)
a("s_barrier")
if "st2" in OPT: ts(4)
a("s_cmp_ge_u32 s3, 4")
a("s_cbranch_scc1 L_hx")
for q in range(4): a(f"ds_read_b128 {vr(X+4*q,4)}, v{t[q]}")
for q in range(4):
    a(f"s_waitcnt lgkmcnt({3-q})")
    a(f"{M32} {vr(D1r,16)}, {vr(X+4*q,4)}, {vr(MR+4*q,4)}, {'0' if q == 0 else vr(D1r,16)}")
    a(f"{M32} {vr(D1i,16)}, {vr(X+4*q,4)}, {vr(MI+4*q,4)}, {'0' if q == 0 else vr(D1i,16)}")
def p2m(q):
    a(f"{M32} {vr(D2r,16)}, {vr(X+4*q,4)}, {vr(MR+4*q,4)}, {'0' if q == 0 else vr(D2r,16)}")
    a(f"{M32} {vr(D2i,16)}, {vr(X+4*q,4)}, {vr(MI+4*q,4)}, {'0' if q == 0 else vr(D2i,16)}")
for q in range(4):
    for e in range(4):
        k = 4 * q + e
        a(f"v_mul_f32 v{t[0]}, v{D1r+k}, v{TC(k)}")
        a(f"v_mul_f32 v{t[1]}, v{D1i+k}, v{TC(k)}")
        a(f"v_fma_f32 v{t[0]}, -v{D1i+k}, v{TS_(k)}, v{t[0]}")
        a(f"v_fmac_f32 v{t[1]}, v{D1r+k}, v{TS_(k)}")
        a(f"v_cvt_pk_bf16_f32 v{X+k}, v{t[0]}, v{t[1]}")
        if q == 2 and e == 1: p2m(1)
    if q == 1: p2m(0)
    if q >= 2: p2m(q)
O = MR
for r, (Dx, so) in enumerate(((D2r, "s22"), (D2i, "s30"))):
    for c2 in range(2):
        o = O + 8 * r + 4 * c2
        for e in range(4):
            a(f"v_cvt_pk_bf16_f32 v{o+e}, v{Dx+8*c2+2*e}, v{Dx+8*c2+2*e+1}")
        a(f"v_permlane32_swap_b32 v{o}, v{o+2}")
        a(f"v_permlane32_swap_b32 v{o+1}, v{o+3}")
        a(f"buffer_store_dwordx4 {vr(o,4)}, v{vst}, s[12:15], {so} offen offset:{32*c2}{OSF}")
a.label("L_fin")
stamp_end(32)
a.label("L_end")
a("s_endpgm")
a.label("L_hx")
a("s_lshl_b32 s26, s2, 3"); a("s_add_u32 s26, s26, s3")
a("s_cmp_lg_u32 s26, 4")
a("s_cbranch_scc1 L_fin")
a(f"s_mov_b32 s26, {hx(EP_OFF)}")
setflag(8, "s26", "s49")
a("s_branch L_fin")
a.label("L_m0")
a.hist = []
q_ = [MI + k for k in range(16)]
gaa = q_[0]; gbb = q_[1]; ph = q_[2]; st_ = q_[3]; c_ = q_[4]; s__ = q_[5]; al = q_[6]; be = q_[7]
a(f"v_and_b32 v{t[0]}, 1, v0"); a(f"v_cmp_eq_u32 vcc, 1, v{t[0]}")
a(f"v_bfe_u32 v{t[1]}, v0, 2, 2"); a(f"v_lshl_or_b32 v{t[1]}, v{t[1]}, 1, v{t[0]}")
a(f"v_cndmask_b32 v{gaa}, v{GG}, v{GG+2}, vcc"); a(f"v_cndmask_b32 v{gbb}, v{GG+1}, v{GG+3}, vcc")
a(f"v_lshlrev_b32 v{t[1]}, 8, v{t[1]}"); a(f"v_add_u32 v{t[1]}, s2, v{t[1]}")
a(f"v_cvt_f32_u32 v{st_}, v{t[1]}"); a(f"v_mul_f32 v{st_}, {hx(f2u(1/2048))}, v{st_}")
a(f"v_cvt_f32_u32 v{ph}, v{vg_}"); a(f"v_add_f32 v{ph}, v{ph}, v{ph}"); a(f"v_mul_f32 v{ph}, v{ph}, v{st_}")
a(f"v_bfe_u32 v{t[2]}, v0, 1, 1")
a(f"v_lshrrev_b32 v{t[3]}, 1, v{vg_}"); a(f"v_cmp_eq_u32 s[4:5], v{t[2]}, v{t[3]}")
a(f"v_and_b32 v{t[3]}, 1, v{vg_}"); a(f"v_cmp_eq_u32 s[6:7], 0, v{t[3]}")
a(f"v_cmp_eq_u32 s[28:29], 0, v{t[2]}")
a(f"v_cndmask_b32 v{q_[8]}, 0, v{gaa}, s[4:5]"); a(f"v_cndmask_b32 v{q_[9]}, 0, v{gbb}, s[4:5]")
a(f"v_mul_f32 v{q_[10]}, {fl(0.25)}, v{gaa}"); a(f"v_mul_f32 v{q_[11]}, {fl(0.25)}, v{gbb}")
for lo in range(2):
    if lo: a(f"v_add_f32 v{ph}, v{ph}, v{st_}")
    a(f"v_cos_f32 v{c_}, v{ph}"); a(f"v_sin_f32 v{s__}, v{ph}")
    for ab in range(2):
        if lo == 0:
            if ab == 0:
                a(f"v_cndmask_b32 v{al}, 0, v{q_[10]}, s[28:29]"); a(f"v_cndmask_b32 v{be}, 0, v{q_[11]}, s[28:29]")
            else:
                a(f"v_cndmask_b32 v{al}, v{q_[10]}, 0, s[28:29]"); a(f"v_cndmask_b32 v{be}, v{q_[11]}, 0, s[28:29]")
            a(f"v_cndmask_b32 v{al}, v{q_[8+ab]}, v{al}, s[6:7]"); a(f"v_cndmask_b32 v{be}, 0, v{be}, s[6:7]")
            a(f"v_mul_f32 v{t[0]}, v{al}, v{c_}"); a(f"v_fmac_f32 v{t[0]}, v{be}, v{s__}")
            a(f"v_mul_f32 v{t[1]}, v{be}, v{c_}"); a(f"v_fma_f32 v{t[1]}, -v{al}, v{s__}, v{t[1]}")
            a(f"v_cvt_pk_bf16_f32 v{MA0+2*lo+ab}, v{t[0]}, v{t[1]}")
        else:
            a(f"v_mul_f32 v{t[0]}, v{q_[8+ab]}, v{c_}"); a(f"v_mul_f32 v{t[1]}, v{q_[8+ab]}, v{s__}")
            a(f"v_cvt_pk_bf16_f32 v{MA0+2*lo+ab}, v{t[0]}, -v{t[1]}")
a("s_branch L_p3b")
a.label("L_el")
a.hist = []
a(f"v_lshlrev_b32 v{vEa}, 6, v{vg}"); a(f"v_add_u32 v{vEa}, s29, v{vEa}")
a("s_mov_b32 exec_lo, s52"); a("s_mov_b32 exec_hi, s52")
for cc in range(2):
    for i in range(4):
        for ab in range(2):
            a(f"ds_read_b64 {vr(Wi(2*ab,cc,i),2)}, v{vEa} offset:{256*cc+16*i+8*ab}")
a("s_mov_b64 exec, -1")
a("s_branch L_elb")
a.label("L_sp")
a.hist = []
X = XP2
ts(3)
a("s_lshr_b32 s29, s2, 2"); a("s_lshl_b32 s10, s3, 1"); a("s_add_u32 s29, s29, s10"); a("s_sub_u32 s29, 16, s29")
for cc in range(2):
    a(f"s_sub_u32 s10, s29, {cc}"); a("s_and_b32 s10, s10, 15")
    a("s_lshr_b32 s11, s10, 1"); a("s_lshl_b32 s11, s11, 8"); a("s_and_b32 s10, s10, 1"); a("s_lshl_b32 s10, s10, 3"); a("s_add_u32 s10, s10, s11")
    a(f"v_lshlrev_b32 v{tpr[0][cc]}, 12, v{vg}"); a(f"v_add_u32 v{tpr[0][cc]}, s10, v{tpr[0][cc]}")
for k in range(8): a(f"v_mov_b32 v{TB+k}, 0")
a("s_mov_b32 exec_lo, 0x00010001"); a("s_mov_b32 exec_hi, 0x00010001")
for cc in range(2):
    for h in range(2):
        a(f"ds_read_b64 {vr(TB+4*cc+2*h,2)}, v{tpr[0][cc]} offset:{h*2048}")
a("s_mov_b32 s10, 0x80000000"); a("s_mov_b32 s11, 0x80008000")
a("s_waitcnt lgkmcnt(0)")
for k in range(8): a(f"v_xor_b32 v{TB+k}, s10, v{TB+k}")
a("s_mov_b64 exec, -1")
ts(4)
a("s_cmp_lg_u32 s2, 0")
a("s_cbranch_scc1 L_sp4")
def sp_body(mats):
    def acc(cc):
        a(f"{M16} {vr(X+8*cc,4)}, {vr(mats[cc],4)}, {vr(TB+4*cc,4)}, {vr(X+8*cc,4)}")
        a(f"{M16} {vr(X+8*cc+4,4)}, {vr(mats[cc]+4,4)}, {vr(TB+4*cc,4)}, {vr(X+8*cc+4,4)}")
    acc(0); acc(1)
    a("s_mov_b32 exec_lo, 0x00010001"); a("s_mov_b32 exec_hi, 0x00010001")
    for k in range(8): a(f"v_xor_b32 v{TB+k}, s11, v{TB+k}")
    a("s_mov_b64 exec, -1")
    wmul(0, 0); acc(0); acc(0)
    wmul(1, 0); acc(1); acc(1)
    wmul(0, 1)
    wmul(1, 1)
    ts(6)
    a("s_nop 7")
    a("s_branch L_spb")
YO = [PKD, PKD, PKD + 4, PKD + 4]
sp_body([M2, M2 + 8])
a.label("L_sp4")
a.hist = []
a("s_nop 1")
sp_body([M2 + 8, MX])

nv = (a.maxv + 1 + 7) // 8 * 8
out = "; gated_mix spectral gfnet: persistent MFMA FFT pipeline (generated by gen7.py)\n"
out += f"; @launch grid=(256,1,1) block=(512,1,1) lds={LDS_BYTES}\n"
out += '.amdgcn_target "amdgcn-amd-amdhsa--gfx950"\n.text\n'
out += f".globl {NAME}\n.p2align 8\n.type {NAME},@function\n" + a.text() + ".rept 96\n    s_endpgm\n.endr\nL_code_end:\n"
out += f""".section .rodata,"a"
.p2align 6
.amdhsa_kernel {NAME}
  .amdhsa_next_free_vgpr {nv}
  .amdhsa_next_free_sgpr {min(102, a.maxs + 1)}
  .amdhsa_accum_offset {nv}
  .amdhsa_group_segment_fixed_size 0
  .amdhsa_kernarg_size 80
  .amdhsa_user_sgpr_count 2
  .amdhsa_user_sgpr_kernarg_segment_ptr 1
  .amdhsa_system_sgpr_workgroup_id_x 1
  .amdhsa_float_denorm_mode_32 3
.end_amdhsa_kernel
"""
sys.stderr.write(f"vgpr {a.maxv+1} sgpr {a.maxs+1} lines {len(a.lines)} nops {a.nops}\n")
print(out)
```

```python
import sys
from asmlib import *
NAME = "gated_mix__spectral_gfnet__spectral_gfnet__prompt_kernel"
TSB = 16512
S_OFF = 0x500000
U_OFF = 0x500000
import sys as _s
for _o in _s.argv:
    if _o.startswith('soff'): S_OFF = int(_o[4:]) << 20
F1_OFF = 0xE20000
F2_OFF = 0xE80000
EP_OFF = 0xEF0000
WS_SIZE = 0xF00000
WBYTES = 2048 * 1026
M32 = "v_mfma_f32_32x32x16_bf16"
M16 = "v_mfma_f32_16x16x32_bf16"
OPT = set(sys.argv[1:])
ST = "stamps" in OPT
WSZ = 0x10000000 if ST else WS_SIZE
L_A = 0; L_W = 16384; L_P = L_W; WR = 6144; L_G = 65536; L_N = 65664; L_C = 65920; L_E = 65936; LDS_BYTES = 65936 + 4096
def optint(pfx, d):
    for o in OPT:
        if o.startswith(pfx) and o[len(pfx):].isdigit(): return int(o[len(pfx):])
    return d
SLEEP = optint("sl", 1); PFAT = optint("pf", 8); NWG = optint("nwg", 0)
SPIN_MAX = 400000
NTX = " nt" if "ntx" in OPT else ""
NTW = " nt" if "ntw" in OPT else ""
PLF = "sc0 sc1" if "psys" in OPT else ("sc1 nt" if "pnt" in OPT else ("sc0 sc1 nt" if "psysnt" in OPT else "sc1"))
FSF = "sc0 sc1" if "fsys" in OPT else "sc1"
SSF = "sc0 sc1" if "ssys" in OPT else ("sc1 nt" if "snt" in OPT else ("" if "swb" in OPT else "sc1"))
def lf(k):
    return "sc0 sc1" if k+"sys" in OPT else ("sc1 nt" if k+"nt" in OPT else ("sc0 sc1 nt" if k+"sn" in OPT else "sc1"))
SLF = lf("ls"); TLF = lf("lt")
OSF = " sc1" if "osc1" in OPT else (" nt" if "ont" in OPT else (" sc0 sc1" if "osys" in OPT else ""))
Y4 = "y4" in OPT
UO = "uo" in OPT
a = Asm()
def srd(d, base, size):
    a(f"s_mov_b32 s{d}, s{base}"); a(f"s_mov_b32 s{d+1}, s{base+1}")
    a(f"s_mov_b32 s{d+2}, {hx(size)}"); a(f"s_mov_b32 s{d+3}, 0x00020000")
NST = 14
AMX = optint("amx", -1)
def ts(k):
    if ST:
        a(f"s_memrealtime s[{60+2*k}:{61+2*k}]")
        a("s_waitcnt lgkmcnt(0)")
def amx_post(vt):
    if AMX < 0: return
    a("s_load_dwordx2 s[4:5], s[0:1], 64")
    a("s_waitcnt lgkmcnt(0)")
    a("s_mov_b32 s6, 256"); a("s_mov_b32 s7, 0x00020000")
    a(f"v_mov_b32 v{vt}, s{60+2*AMX}"); a("s_and_b32 s96, s2, 7"); a("s_lshl_b32 s96, s96, 2"); a(f"v_mov_b32 v{vt+1}, s96")
    a("s_cmp_eq_u32 s3, %d" % optint("aw", 0)); a("s_cselect_b32 exec_lo, 1, 0"); a("s_mov_b32 exec_hi, 0")
    a(f"buffer_atomic_umax v{vt}, v{vt+1}, s[4:7], 0 offen")
    a("s_mov_b64 exec, -1")
def stamp_end(vt):
    if not ST: return
    a("s_waitcnt vmcnt(0)")
    ts(NST - 1)
    for k in range(16): a(f"v_mov_b32 v{vt+k}, {'s%d' % (60+2*k) if k < NST else '0'}")
    a("s_lshl_b32 s96, s3, 6"); a("s_lshl_b32 s97, s2, 9"); a("s_add_u32 s96, s96, s97")
    a(f"s_add_u32 s96, s96, 0x3000000")
    a(f"v_mov_b32 v{vt+16}, 0")
    a("s_mov_b64 exec, 1")
    if AMX >= 0:
        a("s_lshl_b32 s96, s2, 3"); a("s_add_u32 s96, s96, s3"); a("s_cmp_lg_u32 s96, 72"); a("s_cbranch_scc1 L_end")
        a("s_load_dwordx2 s[4:5], s[0:1], 64")
        a("s_waitcnt lgkmcnt(0)")
        a("s_mov_b32 s6, 256"); a("s_mov_b32 s7, 0x00020000")
        a(f"buffer_load_dwordx4 {vr(vt,4)}, v{vt+16}, s[4:7], 0 offen sc1")
        a(f"buffer_load_dwordx4 {vr(vt+4,4)}, v{vt+16}, s[4:7], 0 offen offset:16 sc1")
        a("s_waitcnt vmcnt(0)")
        for k in range(1, 8): a(f"v_max_u32 v{vt}, v{vt}, v{vt+k}")
        a("s_nop 1")
        a(f"v_readfirstlane_b32 s4, v{vt}")
        a(f"s_sub_u32 s4, s4, s60"); a("s_mul_i32 s4, s4, 10"); a(f"s_add_u32 s4, s4, s{60+2*(NST-1)}")
        a.label("L_amp")
        a("s_memrealtime s[6:7]"); a("s_waitcnt lgkmcnt(0)")
        a("s_sub_u32 s5, s6, s4"); a("s_cmp_lt_i32 s5, 0"); a("s_cbranch_scc1 L_amp")
        return
    amp = optint("amp", -1)
    if amp >= 0:
        a("s_lshl_b32 s4, s2, 3"); a("s_add_u32 s4, s4, s3"); a("s_cmp_lg_u32 s4, %d" % (72 + optint("aw", 0))); a("s_cbranch_scc1 L_end")
        a(f"s_sub_u32 s4, s{60+2*amp}, s60"); a("s_mul_i32 s4, s4, 10"); a(f"s_add_u32 s4, s4, s{60+2*(NST-1)}")
        a.label("L_amp")
        a("s_memrealtime s[6:7]"); a("s_waitcnt lgkmcnt(0)")
        a("s_sub_u32 s5, s6, s4"); a("s_cmp_lt_i32 s5, 0"); a("s_cbranch_scc1 L_amp")
        return
    if "dbg" in OPT:
        a("s_load_dwordx2 s[4:5], s[0:1], 64")
        a("s_waitcnt lgkmcnt(0)")
        a("s_mov_b32 s6, 256"); a("s_mov_b32 s7, 0x00020000")
        a(f"v_not_b32 v{vt+14}, v{vt}")
        for k in range(15):
            a(f"buffer_atomic_umax v{vt+k}, v{vt+16}, s[4:7], 0 offen offset:{4*k}")
        return
    for q in range(4): a(f"buffer_store_dwordx4 {vr(vt+4*q,4)}, v{vt+16}, s[16:19], s96 offen offset:{16*q}")
def poll(lbl, vaddr, vtmp, soff, tag):
    a("s_mov_b32 s58, 0")
    a("s_mov_b32 exec_hi, 0")
    a.label(lbl)
    a(f"buffer_load_dword v{vtmp}, v{vaddr}, s[16:19], {soff} offen {PLF}")
    a("s_add_u32 s58, s58, 1")
    a("s_waitcnt vmcnt(0)")
    a(f"v_cmp_ne_u32 vcc, {tag}, v{vtmp}")
    a(f"s_cmp_gt_u32 s58, {SPIN_MAX}")
    a(f"s_cbranch_scc1 {lbl}_d")
    a("s_and_b64 exec, exec, vcc")
    a(f"s_cbranch_execz {lbl}_d")
    if SLEEP: a(f"s_sleep {SLEEP}")
    a(f"s_branch {lbl}")
    a.label(lbl + "_d")
    a("s_mov_b64 exec, -1")
def setflag(vtmp, soff, tag):
    a(f"v_mov_b32 v{vtmp}, {tag}"); a(f"v_lshlrev_b32 v{vtmp+1}, 2, v0")
    a("s_waitcnt vmcnt(0)")
    a("s_mov_b32 exec_hi, 0")
    a(f"buffer_store_dword v{vtmp}, v{vtmp+1}, s[16:19], {soff} offen {FSF}")
    a("s_mov_b32 exec_hi, -1")

a.label(NAME)
a.label("L_code_start")
a("s_cmp_ge_u32 s2, 256")
a("s_cbranch_scc1 L_end")
if ST:
    a("s_memrealtime s[60:61]")
    for k in range(1, NST): a(f"s_mov_b32 s{60+2*k}, 0")
a("s_load_dwordx4 s[4:7], s[0:1], 0")
a("s_load_dwordx2 s[20:21], s[0:1], 72")
a("s_load_dwordx2 s[28:29], s[0:1], 16")
a("s_load_dwordx8 s[88:95], s[0:1], 32")
a("s_getpc_b64 s[12:13]")
a("s_and_b32 s12, s12, 0xffffff00")
a("s_mov_b32 s14, L_code_end-L_code_start")
a("s_mov_b32 s15, 0x00020000")
a("v_lshlrev_b32 v6, 6, v0")
a("s_bfe_u32 s8, s2, 0x30003")
a("v_lshrrev_b32 v1, 6, v0")
a("v_cmp_eq_u32 vcc, s8, v1")
a("s_and_saveexec_b64 s[10:11], vcc")
a("s_cbranch_execz L_cp")
if "nocp" not in OPT: a("buffer_load_ubyte v5, v6, s[12:15], 0 offen")
a.label("L_cp")
a("s_mov_b64 exec, -1")
a("v_and_b32 v0, 63, v0")
a("v_readfirstlane_b32 s3, v1")
vl16 = 2; vn = 3; vL5 = 4; vE = 5
a(f"v_lshlrev_b32 v{vl16}, 4, v0")
a(f"v_and_b32 v{vn}, 31, v0")
a(f"v_lshrrev_b32 v{vL5}, 5, v0")
a("s_and_b32 s51, s3, 3")
a("s_lshl_b32 s22, s51, 9"); a("s_add_u32 s22, s22, s2"); a("s_lshl_b32 s22, s22, 11")
a("s_and_b32 s53, s2, 7"); a("s_lshl_b32 s53, s53, 5"); a("s_lshr_b32 s54, s2, 3"); a("s_add_u32 s53, s53, s54")
a("s_and_b32 s55, s2, 7"); a("s_mul_i32 s55, s55, 1026"); a("s_lshl_b32 s56, s54, 5"); a("s_add_u32 s55, s55, s56")
a("s_lshl_b32 s24, s51, 12")
a("s_lshl_b32 s57, s2, 10"); a(f"s_add_u32 s57, s57, {hx(F1_OFF)}")
a(f"s_mov_b32 s26, {hx(EP_OFF)}")
a("v_mov_b32 v7, 0")
a("s_waitcnt lgkmcnt(0)")
srd(16, 20, WSZ)
a(f"buffer_load_dword v{vE}, v7, s[16:19], s26 offen sc1")
for arr, p_ in enumerate((6, 28, 88, 90)): srd(32 + 4 * arr, p_, WBYTES)
def tags():
    a(f"v_readfirstlane_b32 s48, v{vE}")
    a("s_mul_i32 s48, s48, 0x9E3779B1"); a("s_add_u32 s48, s48, 0x7F4A7C15")
    a("s_xor_b32 s49, s48, 0x5bd1e995")
def arr_srd():
    a("s_cmp_eq_u32 s51, 0"); a("s_cselect_b32 s12, s32, s36"); a("s_cselect_b32 s13, s33, s37")
    a("s_cmp_eq_u32 s51, 2"); a("s_cselect_b32 s12, s40, s12"); a("s_cselect_b32 s13, s41, s13")
    a("s_cmp_eq_u32 s51, 3"); a("s_cselect_b32 s12, s44, s12"); a("s_cselect_b32 s13, s45, s13")
    a(f"s_mov_b32 s14, {hx(WBYTES)}"); a("s_mov_b32 s15, 0x00020000")
V2 = VAlloc(5)
vg = V2(); vc = V2(); vF = V2()
SC = V2(16, 4)
vS = V2(); vw1 = V2(); vr1 = V2(); vT = V2(); vTr = V2(); vWr = V2(); vw2 = V2(); vr2 = V2()
WW = V2(32, 4); TB = V2(8, 4)
Fr = V2(4, 4); Fm = V2(4, 4); M2 = V2(16, 4); MT = V2(16, 4); D = V2(16, 4)
assert V2.n <= 128, V2.n
vW = D; vEa = 2
Wi = lambda arr, cc, i: WW + 16 * cc + 8 * (arr >> 1) + 2 * i + (arr & 1)
MX = SC
L_GW = L_W + 16384
def p2_addr():
    t = [SC + k for k in range(6)]
    a(f"v_lshrrev_b32 v{vg}, 4, v0"); a(f"v_and_b32 v{vc}, 15, v0")
    a(f"v_lshrrev_b32 v{t[0]}, 2, v0"); a(f"v_mul_u32_u24 v{vT}, {16*TSB}, v{t[0]}")
    a(f"v_and_b32 v{t[0]}, 3, v0"); a(f"v_lshl_add_u32 v{vT}, v{t[0]}, 4, v{vT}")
    a("s_lshl_b32 s27, s3, 11")
    a(f"s_mul_i32 s23, s3, {WR}"); a(f"s_add_u32 s23, s23, {L_W}")
    a(f"v_bfe_u32 v{t[0]}, v0, 1, 4"); a(f"v_and_b32 v{t[1]}, 1, v0"); a(f"v_lshl_add_u32 v{t[0]}, v{t[0]}, 4, v{t[1]}")
    a(f"v_lshlrev_b32 v{vF}, 10, v{t[0]}")
    a("s_lshl_b32 s28, s3, 8")
    a("s_and_b32 s8, s2, 7"); a("s_lshl_b32 s8, s8, 7"); a("s_add_u32 s8, s8, s27"); a(f"s_add_u32 s8, s8, {hx(F1_OFF)}")
    a(f"v_lshlrev_b32 v{t[0]}, 4, v{vc}")
    a(f"v_lshl_or_b32 v{t[1]}, v{vg}, 9, v{t[0]}")
    a(f"v_add_u32 v{vw1}, s27, v{t[1]}"); a(f"v_add_u32 v{vw2}, s23, v{t[1]}")
    a(f"v_lshl_or_b32 v{vr1}, v{vg}, 12, v{t[0]}"); a(f"v_add_u32 v{vr1}, s28, v{vr1}")
    a(f"v_mul_u32_u24 v{vr2}, {2*WR}, v{vg}"); a(f"s_add_u32 s29, s28, {L_W}"); a(f"v_add3_u32 v{vr2}, v{vr2}, v{t[0]}, s29")
    if "x4" not in OPT:
        if Y4:
            a(f"v_mul_u32_u24 v{vS}, {16*TSB}, v{vc}"); a(f"v_lshl_add_u32 v{vS}, v{vg}, 4, v{vS}")
        else:
            a(f"v_mul_u32_u24 v{vS}, {64*TSB}, v{vg}"); a(f"v_lshl_add_u32 v{vS}, v{vc}, 2, v{vS}")
    else:
        a(f"v_lshlrev_b32 v{t[0]}, 4, v{vg}"); a(f"v_lshl_or_b32 v{vS}, v{vc}, 11, v{t[0]}")
def p2_item():
    t = [SC + k for k in range(6)]
    a(f"s_mul_i32 s24, s3, {2*TSB}"); a("s_lshl_b32 s26, s53, 6"); a("s_add_u32 s24, s24, s26")
    a(f"s_add_u32 s26, s24, {TSB}")
    a(f"v_lshlrev_b32 v{t[0]}, 2, v{vc}"); a(f"v_lshl_or_b32 v{vTr}, v{vg}, 8, v{t[0]}"); a(f"v_add_u32 v{vTr}, s27, v{vTr}")
    a("s_and_b32 s29, s55, 15"); a("s_add_u32 s29, s29, s23")
    a(f"v_mul_u32_u24 v{vWr}, 192, v{vg}"); a(f"v_lshl_add_u32 v{vWr}, v{vc}, 1, v{vWr}"); a(f"v_add_u32 v{vWr}, s29, v{vWr}")
    a("s_lshl_b32 s30, s53, 15"); a("s_add_u32 s30, s30, s28"); a(f"s_add_u32 s30, s30, {hx(S_OFF)}"); a("s_add_u32 s31, s30, 4096")
    a("s_lshl_b32 s9, s53, 10"); a("s_lshl_b32 s10, s3, 7"); a("s_add_u32 s9, s9, s10"); a(f"s_add_u32 s9, s9, {hx(F2_OFF)}")
    a(f"s_mul_i32 s50, s3, {2*TSB}"); a("s_and_b32 s29, s2, 7"); a("s_lshl_b32 s29, s29, 4"); a("s_add_u32 s50, s50, s29"); a("s_add_u32 s50, s50, 16384")
    a("s_cmp_eq_u32 s54, 0"); a("s_cselect_b32 s52, 0x00010001, 0")
    a(f"v_bfe_u32 v{t[0]}, v0, 4, 1"); a(f"v_lshl_add_u32 v{t[0]}, v{vc}, 4, v{t[0]}"); a(f"v_mul_u32_u24 v{vEa}, {TSB}, v{t[0]}")
    a("s_cselect_b32 s59, -1, 0")
def p2_const(dozero=True, hooks=()):
    hooks = list(hooks)
    def hook():
        if hooks: hooks.pop(0)()
    t = [SC + k for k in range(6)]
    vlf = SC + 6; vkf = SC + 7; vc0 = SC + 8; vlc = SC + 10; FA = SC + 12
    a(f"v_cvt_f32_u32 v{vlf}, v{vc}")
    a(f"v_cvt_f32_u32 v{vkf}, v{vg}"); a(f"v_mul_f32 v{vkf}, 4.0, v{vkf}")
    a(f"v_cvt_f32_u32 v{vc0}, s3"); a(f"v_mul_f32 v{vc0}, {fl(1/128)}, v{vc0}")
    a(f"v_mul_f32 v{vlc}, v{vlf}, v{vc0}")
    a(f"v_fmamk_f32 v{vlc+1}, v{vlf}, {hx(f2u(1/256))}, v{vlc}")
    a(f"v_mul_f32 v{vlf}, {fl(1/16)}, v{vlf}")
    z = iter(range(32))
    def zero(n):
        if not dozero:
            if n == 1: a("s_nop 0")
            return
        for _ in range(n):
            k = next(z, None)
            if k is not None: a(f"v_mov_b32 v{WW+k}, 0")
    def mat(ang):
        a(f"v_cos_f32 v{t[3]}, v{ang}"); a(f"v_sin_f32 v{t[4]}, v{ang}")
    def matfin(Mr, Mm):
        a(f"v_cvt_pk_bf16_f32 v{Mr}, v{t[3]}, v{t[4]}")
        a(f"v_cvt_pk_bf16_f32 v{Mm}, -v{t[4]}, v{t[3]}")
        hook()
    hook(); hook()
    for i in range(4):
        if i: a(f"v_add_f32 v{vkf}, 1.0, v{vkf}")
        a(f"v_mul_f32 v{FA+i}, v{vkf}, v{vlf}")
        mat(FA + i); zero(1); matfin(Fr + i, Fm + i)
    for i in range(3, -1, -1):
        a(f"v_fma_f32 v{t[0]}, v{vkf}, v{vc0}, v{FA+i}")
        a(f"v_fmamk_f32 v{t[1]}, v{vkf}, {hx(f2u(1/256))}, v{t[0]}")
        mat(t[0]); a(f"v_add_f32 v{t[2]}, v{FA+i}, v{vlc}"); matfin(M2 + i, M2 + 4 + i)
        mat(t[1]); a(f"v_add_f32 v{t[5]}, v{FA+i}, v{vlc+1}"); matfin(M2 + 8 + i, M2 + 12 + i)
        mat(t[2]); a(f"v_subrev_f32 v{vkf}, 1.0, v{vkf}"); matfin(MT + i, MT + 4 + i)
        mat(t[5]); zero(1); matfin(MT + 8 + i, MT + 12 + i)
    zero(32)
    a(f"v_add_f32 v{vc0}, {fl(1/128)}, v{vc0}")
    a(f"v_mov_b32 v{SC+9}, v{vkf}")
    for i in range(4):
        a(f"v_add_f32 v{SC+9}, 1.0, v{SC+9}")
        a(f"v_fma_f32 v{FA+i}, v{SC+9}, v{vc0}, v{FA+i}")
    for i in range(4):
        a(f"v_cos_f32 v{SC+10}, v{FA+i}"); a(f"v_sin_f32 v{SC+11}, v{FA+i}"); a("s_nop 0")
        a(f"v_cvt_pk_bf16_f32 v{MX+i}, v{SC+10}, v{SC+11}")
        a(f"v_cvt_pk_bf16_f32 v{MX+4+i}, -v{SC+11}, v{SC+10}")
def wvoff(dst, t0, t1):
    a(f"v_mul_u32_u24 v{t0}, 43, v0"); a(f"v_lshrrev_b32 v{t0}, 7, v{t0}")
    a(f"v_mul_u32_u24 v{t1}, 3, v{t0}"); a(f"v_sub_u32 v{t1}, v0, v{t1}")
    a(f"v_mul_u32_u24 v{dst}, {16*8*1026}, v{t0}"); a(f"v_lshl_add_u32 v{dst}, v{t1}, 4, v{dst}")
def wdma_list(vreg, adds, ccs=(0, 1)):
    ops = []
    for add in adds:
        def head(add=add):
            a(f"s_add_u32 s6, s3, {add}")
            a(f"s_mul_i32 s4, s6, {2*8*1026}"); a("s_add_u32 s4, s4, s55"); a("s_and_b32 s4, s4, 0xfffffff0")
            a(f"s_add_u32 s5, s4, {8*1026}")
            a(f"s_mul_i32 s6, s6, {WR}")
        for arr in range(4):
            for cc in ccs:
                def op(arr=arr, cc=cc, head=head):
                    if arr == 0 and cc == ccs[0]: head()
                    a("s_mov_b32 exec_hi, 0xffff")
                    a(f"s_add_u32 m0, s6, {L_W + 1536*arr + 768*cc}")
                    a(f"buffer_load_dwordx4 v{vreg}, {sr(32+4*arr,4)}, {'s4' if cc == 0 else 's5'} offen lds")
                    a("s_mov_b32 exec_hi, -1")
                ops.append(op)
    return ops
a(f"s_mov_b32 s56, {8*1026}")
a("s_cmp_ge_u32 s3, 4")
a("s_cbranch_scc1 L_h")
a("s_setprio 2")
srd(8, 4, 2048 * 2048)
a("s_add_u32 s30, s22, 0x80000")
a("s_mov_b32 m0, s24")
a(f"buffer_load_dwordx4 v{vl16}, s[8:11], s22 offen{NTX} lds")
a(f"buffer_load_dwordx4 v{vl16}, s[8:11], s22 offen offset:1024{NTX} lds")
a("s_add_u32 m0, s24, 2048")
a(f"buffer_load_dwordx4 v{vl16}, s[8:11], s30 offen{NTX} lds")
a(f"buffer_load_dwordx4 v{vl16}, s[8:11], s30 offen offset:1024{NTX} lds")
V = VAlloc(6)
vb = V(); vo = V(); vkn = V(); vtr = V(); vpf = V(); vj = V(); vpw = V(4); t = [V() for _ in range(6)]
arr_srd()
a(f"v_and_b32 v{t[0]}, 7, v0"); a("s_lshl_b32 s30, s2, 3"); a(f"v_add_u32 v{t[0]}, s30, v{t[0]}")
a(f"v_bfe_i32 v{t[1]}, v0, 4, 1"); a(f"v_xor_b32 v{t[0]}, v{t[0]}, v{t[1]}"); a(f"v_sub_u32 v{t[0]}, v{t[0]}, v{t[1]}")
a(f"v_and_b32 v{t[0]}, 2047, v{t[0]}"); a(f"v_mul_u32_u24 v{t[2]}, 1026, v{t[0]}")
a(f"v_bfe_u32 v{t[1]}, v0, 3, 1"); a(f"v_lshl_add_u32 v{t[2]}, v{t[1]}, 10, v{t[2]}")
a(f"buffer_load_ushort v{vj}, v{t[2]}, s[12:15], 0 offen")
a("s_and_b32 s30, s2, 7"); a("s_lshl_b32 s31, s54, 6"); a("s_add_u32 s30, s30, s31"); a("s_mul_i32 s30, s30, 1026")
a(f"v_lshrrev_b32 v{t[0]}, 3, v0"); a(f"v_mul_u32_u24 v{t[2]}, {8*1026}, v{t[0]}")
a(f"v_and_b32 v{t[1]}, 7, v0"); a(f"v_lshl_add_u32 v{vpf}, v{t[1]}, 7, v{t[2]}")
vjunk = 1
def prefetch():
    a(f"buffer_load_ubyte v{vjunk}, v{vpf}, s[12:15], s30 offen{NTW}")
    a(f"buffer_load_ubyte v{vjunk}, v{vpt}, s[12:15], s30 offen offset:1024{NTW}")
NPF = 2
vpt = V()
a(f"v_and_b32 v{t[1]}, 1, v0"); a(f"v_lshl_add_u32 v{vpt}, v{t[1]}, 4, v{t[2]}")
if PFAT == 0: prefetch()
CC = V(8, 4); SS = V(8, 4); SN = V(8, 4); XR = V(8, 4); XI = V(8, 4)
BA = V(24, 4); BB = V(24, 4); TCh = V(8); TSh = V(8)
D1r = BA + 8; D1i = BB + 8; D2r = BA; D2i = BB
TC = lambda k: BA + k if k < 8 else TCh + k - 8
TS_ = lambda k: BB + k if k < 8 else TSh + k - 8
assert V.n <= 128, V.n
a(f"v_and_b32 v{t[0]}, 7, v0"); a(f"v_bfe_u32 v{t[1]}, v0, 3, 2")
a(f"v_lshl_or_b32 v{vkn}, v{t[0]}, 2, v{t[1]}")
a(f"v_cvt_f32_u32 v{vb}, v{vkn}"); a(f"v_cvt_f32_u32 v{vo}, v{vL5}")
a(f"v_mul_f32 v{vb}, {fl(1/32)}, v{vb}"); a(f"v_mul_f32 v{vo}, 4.0, v{vo}"); a(f"v_mul_f32 v{vo}, v{vb}, v{vo}")
for i in range(0, 16, 2):
    for e in range(2):
        kc = 8 * ((i + e) // 4) + (i + e) % 4
        if kc == 0: a(f"v_mov_b32 v{t[e]}, v{vo}")
        else: a(f"v_fmamk_f32 v{t[e]}, v{vb}, {hx(f2u(float(kc)))}, v{vo}")
    a(f"v_cos_f32 v{t[2]}, v{t[0]}"); a(f"v_cos_f32 v{t[3]}, v{t[1]}")
    a(f"v_sin_f32 v{t[4]}, v{t[0]}"); a(f"v_sin_f32 v{t[5]}, v{t[1]}")
    a(f"v_mul_f32 v{t[0]}, {fl(1/32)}, v{t[0]}"); a(f"v_mul_f32 v{t[1]}, {fl(1/32)}, v{t[1]}")
    a(f"v_cvt_pk_bf16_f32 v{CC+i//2}, v{t[2]}, v{t[3]}")
    a(f"v_cvt_pk_bf16_f32 v{SS+i//2}, v{t[4]}, v{t[5]}")
    a(f"v_cvt_pk_bf16_f32 v{SN+i//2}, -v{t[4]}, -v{t[5]}")
    a(f"v_cos_f32 v{TC(i)}, v{t[0]}"); a(f"v_cos_f32 v{TC(i+1)}, v{t[1]}")
    a(f"v_sin_f32 v{TS_(i)}, v{t[0]}"); a(f"v_sin_f32 v{TS_(i+1)}, v{t[1]}")
    if PFAT == i // 2 + 1: prefetch()
a(f"v_lshlrev_b32 v{vtr}, 8, v{vL5}")
a(f"v_bfe_u32 v{t[0]}, v0, 2, 2"); a(f"v_lshl_or_b32 v{vtr}, v{t[0]}, 6, v{vtr}")
a(f"v_bfe_u32 v{t[0]}, v0, 4, 1"); a(f"v_lshl_or_b32 v{vtr}, v{t[0]}, 5, v{vtr}")
a(f"v_and_b32 v{t[0]}, 3, v0"); a(f"v_lshl_or_b32 v{vtr}, v{t[0]}, 3, v{vtr}")
a(f"v_add_u32 v{vtr}, s24, v{vtr}")
a(f"v_and_b32 v{t[0]}, 7, v0"); a(f"v_bfe_u32 v{t[1]}, v0, 3, 2"); a(f"v_lshlrev_b32 v{t[1]}, 1, v{t[1]}")
a(f"v_xor_b32 v{t[0]}, v{t[0]}, v{t[1]}"); a(f"v_xor_b32 v{t[0]}, v{t[0]}, v{vL5}")
a(f"v_lshlrev_b32 v{t[0]}, 4, v{t[0]}")
a(f"v_lshl_or_b32 v{vpw}, v{vkn}, 7, v{t[0]}")
a(f"s_add_u32 s26, s24, {L_P}")
a(f"v_add_u32 v{vpw}, s26, v{vpw}")
for c in range(1, 4): a(f"v_xor_b32 v{vpw+c}, {32*c}, v{vpw}")
vet = vb
a(f"v_and_b32 v{t[0]}, 7, v0"); a(f"v_and_b32 v{t[1]}, 16, v0"); a(f"v_lshl_or_b32 v{t[0]}, v{t[0]}, 1, v{t[1]}")
a(f"v_bfe_u32 v{t[1]}, v0, 3, 1"); a(f"v_lshl_or_b32 v{t[0]}, v{t[1]}, 7, v{t[0]}")
a("s_lshl_b32 s30, s51, 5"); a(f"s_add_u32 s30, s30, {L_N}"); a(f"v_add_u32 v{vet}, s30, v{t[0]}")
ts(1)
a(f"s_waitcnt vmcnt({1 + (NPF if PFAT <= 8 else 0)})")
ts(2)
tags()
for h in range(2):
    for r, X in ((0, XR), (1, XI)):
        for tt in range(2):
            a(f"ds_read_b64_tr_b16 {vr(X+4*h+2*tt,2)}, v{vtr} offset:{r*2048+h*1024+tt*512}")
def cpass(R, I, Dr, Di, h, first):
    c0 = "0" if first else vr(Dr, 16); c1 = "0" if first else vr(Di, 16)
    a(f"{M32} {vr(Dr,16)}, {vr(R+4*h,4)}, {vr(CC+4*h,4)}, {c0}")
    a(f"{M32} {vr(Di,16)}, {vr(I+4*h,4)}, {vr(CC+4*h,4)}, {c1}")
    a(f"{M32} {vr(Dr,16)}, {vr(I+4*h,4)}, {vr(SS+4*h,4)}, {vr(Dr,16)}")
    a(f"{M32} {vr(Di,16)}, {vr(R+4*h,4)}, {vr(SN+4*h,4)}, {vr(Di,16)}")
a("s_waitcnt lgkmcnt(4)")
cpass(XR, XI, D1r, D1i, 0, True)
a("s_waitcnt lgkmcnt(0)")
cpass(XR, XI, D1r, D1i, 1, False)
a("s_barrier")
for h in range(2):
    for i in range(8 * h, 8 * h + 8, 2):
        for e in range(2):
            k = i + e
            a(f"v_mul_f32 v{t[e]}, v{D1r+k}, v{TC(k)}")
            a(f"v_mul_f32 v{t[2+e]}, v{D1i+k}, v{TC(k)}")
            a(f"v_fmac_f32 v{t[e]}, v{D1i+k}, v{TS_(k)}")
            a(f"v_fma_f32 v{t[2+e]}, -v{D1r+k}, v{TS_(k)}, v{t[2+e]}")
        a(f"v_cvt_pk_bf16_f32 v{XR+i//2}, v{t[0]}, v{t[1]}")
        a(f"v_cvt_pk_bf16_f32 v{XI+i//2}, v{t[2]}, v{t[3]}")
    cpass(XR, XI, D2r, D2i, h, h == 0)
a(f"s_waitcnt vmcnt({NPF if PFAT <= 8 else 0})")
a(f"ds_write_b16 v{vet}, v{vj}")
PK = CC
for c in range(4):
    for e in range(4):
        a(f"v_cvt_pk_bf16_f32 v{PK+4*c+e}, v{D2r+4*c+e}, v{D2i+4*c+e}")
    a(f"ds_write_b128 v{vpw+c}, {vr(PK+4*c,4)}")
a("s_waitcnt lgkmcnt(0)")
ts(3)
a("s_barrier")
a("s_setprio 0")
p2_addr()
p2_item()
wvoff(vW, SC, SC + 1)
ts(4)
a("s_barrier")
ts(5)
EARLY = "early" in OPT
SPLIT = "split" in OPT
p2_const(hooks=wdma_list(vW, [0, 4], (0,) if SPLIT else (0, 1)))
ts(6)
a("s_branch L_p2")
a.label("L_h")
a.hist = []
V = VAlloc(6)
t = [V() for _ in range(8)]
XN = V(16, 4); GW = V(8, 4)
srd(8, 92, 2048)
a(f"buffer_load_dwordx4 {vr(GW,4)}, v{vl16}, s[8:11], 0 offen")
a(f"buffer_load_dwordx4 {vr(GW+4,4)}, v{vl16}, s[8:11], 0 offen offset:1024")
def prewrite():
    if "pw" in OPT or "pws" in OPT:
        a(f"v_lshlrev_b32 v{t[0]}, 7, v0")
        a("s_lshl_b32 s30, s53, 15"); a("s_lshl_b32 s31, s51, 13"); a("s_add_u32 s30, s30, s31"); a(f"s_add_u32 s30, s30, {hx(S_OFF)}")
    if "pw" in OPT or "pwt" in OPT:
        a(f"v_and_b32 v{t[1]}, 3, v0"); a(f"v_lshlrev_b32 v{t[1]}, 7, v{t[1]}"); a(f"v_bfe_u32 v{t[2]}, v0, 2, 3"); a(f"v_lshl_or_b32 v{t[1]}, v{t[2]}, 11, v{t[1]}")
        a(f"s_mul_i32 s31, s2, {TSB}"); a("s_lshl_b32 s29, s51, 9"); a("s_add_u32 s31, s31, s29")
        a("s_mov_b32 exec_hi, 0")
        a(f"buffer_store_dword v{t[1]}, v{t[1]}, s[16:19], s31 offen sc1")
        a("s_mov_b32 exec_hi, -1")
    if "pw" in OPT or "pws" in OPT:
        a(f"buffer_store_dword v{t[0]}, v{t[0]}, s[16:19], s30 offen sc1")
NPW = 2 if "pw" in OPT else (1 if ("pws" in OPT or "pwt" in OPT) else 0)
if "pwl" not in OPT: prewrite()
vnat = V(); a(f"v_add_u32 v{vnat}, s24, v{vl16}")
MA = V(4, 4)
DMB = V(48, 4)
vu = DMB; vA = DMB + 1; vB1 = DMB + 2; vB2 = DMB + 3; vsg = DMB + 4
a(f"v_mov_b32 v{t[3]}, {L_C}"); a(f"v_mov_b32 v{t[4]}, 0")
a(f"ds_write_b32 v{t[3]}, v{t[4]}")
a(f"v_bfe_u32 v{t[0]}, v0, 3, 1"); a(f"v_bfe_u32 v{t[1]}, v0, 1, 1")
a(f"v_lshl_or_b32 v{t[0]}, v{t[0]}, 1, v{t[1]}")
a(f"v_and_or_b32 v{vu}, v0, 4, v{t[0]}")
a(f"v_cvt_f32_u32 v{vu}, v{vu}")
a(f"v_cvt_f32_u32 v{vsg}, v{vL5}")
a(f"v_fma_f32 v{vsg}, v{vsg}, -2.0, 1.0")
a(f"v_mul_f32 v{vA}, v{vu}, v{vsg}")
a(f"v_mul_f32 v{vA}, {fl(0.125)}, v{vA}")
a(f"v_and_b32 v{t[0]}, 1, v0"); a(f"v_cvt_f32_u32 v{t[0]}, v{t[0]}")
a(f"v_mul_f32 v{vB1}, v{t[0]}, v{vsg}"); a(f"v_mul_f32 v{vB1}, {fl(0.25)}, v{vB1}")
a(f"v_cvt_f32_u32 v{t[1]}, s2"); a(f"v_mul_f32 v{t[1]}, {fl(1/256)}, v{t[1]}")
a(f"v_fmac_f32 v{vB1}, v{t[1]}, v{vA}")
a(f"v_add_f32 v{vB2}, {fl(0.25)}, v{vB1}")
for pp in range(4):
    if pp == 0: a(f"v_mov_b32 v{t[0]}, v{vB1}")
    else: a(f"v_fmamk_f32 v{t[0]}, v{vA}, {hx(f2u(2.0*pp))}, v{vB1}")
    a(f"v_fmamk_f32 v{t[1]}, v{vA}, {hx(f2u(2.0*pp+1))}, v{vB2}")
    a(f"v_cos_f32 v{t[2]}, v{t[0]}"); a(f"v_cos_f32 v{t[3]}, v{t[1]}")
    a(f"v_sin_f32 v{t[4]}, v{t[0]}"); a(f"v_sin_f32 v{t[5]}, v{t[1]}")
    a(f"v_add_f32 v{t[2]}, v{t[2]}, v{t[3]}")
    a(f"v_add_f32 v{t[4]}, v{t[4]}, v{t[5]}")
    a(f"v_cvt_pk_bf16_f32 v{MA+pp}, v{t[2]}, v{t[4]}")
vmr = V(5); vk = DMB + 5; vneg = DMB + 6
a("s_lshl_b32 s30, s51, 7")
a(f"v_lshlrev_b32 v{t[0]}, 2, v{vn}")
a(f"v_sub_u32 v{vneg}, 0, v{vL5}")
for q in range(5):
    if q < 4: a(f"v_add3_u32 v{vk}, v{t[0]}, s30, {q}")
    else: a(f"v_add_u32 v{vk}, 512, v{t[0]}")
    a(f"v_xor_b32 v{vk}, v{vk}, v{vneg}"); a(f"v_add_u32 v{vk}, v{vk}, v{vL5}")
    a(f"v_bfe_u32 v{t[1]}, v{vk}, 5, 5")
    a(f"v_bfe_u32 v{t[2]}, v{vk}, 7, 3")
    a(f"v_xor_b32 v{t[3]}, v{vk}, v{t[1]}")
    a(f"v_and_b32 v{t[3]}, 3, v{t[3]}")
    a(f"v_bfe_u32 v{t[4]}, v{vk}, 4, 1")
    a(f"v_lshl_or_b32 v{t[3]}, v{t[3]}, 1, v{t[4]}")
    a(f"v_xor_b32 v{t[3]}, v{t[3]}, v{t[2]}")
    a(f"v_and_b32 v{t[4]}, 12, v{vk}")
    a(f"v_lshl_or_b32 v{t[4]}, v{t[3]}, 4, v{t[4]}")
    a(f"v_lshl_or_b32 v{vmr+q}, v{t[1]}, 7, v{t[4]}")
vts = V(); veo = V(); vet2 = V(); vsig = V(); ves = V()
a(f"v_lshlrev_b32 v{t[0]}, 13, v{vL5}"); a(f"v_lshl_or_b32 v{vts}, v{vn}, 4, v{t[0]}")
EV = V(10, 2)
a(f"v_and_b32 v{t[0]}, 7, v0"); a(f"v_bfe_u32 v{t[1]}, v0, 3, 1")
a(f"v_lshlrev_b32 v{t[2]}, 3, v{t[1]}"); a(f"v_lshl_or_b32 v{ves}, v{t[0]}, 4, v{t[2]}")
a(f"v_and_b32 v{t[2]}, 3, v0"); a(f"v_cmp_eq_u32 vcc, 0, v{t[2]}")
a(f"v_lshrrev_b32 v{t[3]}, 2, v{t[0]}")
a(f"v_cvt_f32_u32 v{t[4]}, v{t[1]}"); a(f"v_fma_f32 v{t[4]}, v{t[4]}, -2.0, 1.0")
a(f"v_cndmask_b32 v{t[3]}, v{t[3]}, v{t[1]}, vcc")
a(f"v_cndmask_b32 v{vsig}, 0, v{t[4]}, vcc")
a(f"v_lshlrev_b32 v{t[0]}, 1, v{t[0]}"); a(f"v_lshl_or_b32 v{t[0]}, v{t[1]}, 6, v{t[0]}"); a(f"v_lshl_or_b32 v{t[0]}, v{t[3]}, 7, v{t[0]}")
a(f"v_add_u32 v{veo}, {L_N}, v{t[0]}"); a(f"v_xor_b32 v{vet2}, 64, v{veo}")
for k in range(8): a(f"v_mov_b32 v{EV+k}, 0")
a(f"s_mul_i32 s8, s2, {TSB}")
a("s_lshl_b32 s9, s51, 9"); a("s_add_u32 s9, s9, s8"); a("s_add_u32 s10, s9, 4096")
a("s_add_u32 s8, s8, 16384")
a("s_mov_b32 s11, 0xffff0000")
acc = V(4, 4); ones = V(); MB = XN; MB4 = GW
a(f"v_mov_b32 v{ones}, 0x3f803f80")
a(f"v_mov_b32 v{acc}, 0"); a(f"v_mov_b32 v{acc+2}, 0")
vWh = V()
wvoff(vWh, t[0], t[1])
assert V.n <= 128, V.n
a("s_waitcnt lgkmcnt(0)")
if "pwl" in OPT: prewrite()
ts(1)
if EARLY and "e0" in OPT:
    for op in wdma_list(vWh, [0]): op()
a("s_barrier")
for r in range(2):
    for q in range(2):
        a(f"ds_read_b128 {vr(XN+8*r+4*q,4)}, v{vnat} offset:{r*2048+q*1024}")
a("s_waitcnt vmcnt(0) lgkmcnt(0)")
tags()
a("s_cmp_eq_u32 s51, 1")
if "nopw" not in OPT:
    a("s_cselect_b32 exec_lo, -1, 0"); a("s_cselect_b32 exec_hi, -1, 0")
    for k in range(4): a(f"v_mov_b32 v{DMB+k}, s49")
    a(f"buffer_store_dwordx4 {vr(DMB,4)}, v{vl16}, s[16:19], s57 offen sc1")
a("s_mov_b64 exec, -1")
def ecompute():
    a(f"v_add_f32 v{EV+8}, v{EV}, v{EV+1}"); a(f"v_sub_f32 v{EV+9}, v{EV+2}, v{EV+3}")
    a(f"v_add_f32 v{EV+4}, v{EV+4}, v{EV+5}"); a(f"v_sub_f32 v{EV+6}, v{EV+6}, v{EV+7}")
    a(f"v_fma_f32 v{EV+8}, -v{vsig}, v{EV+6}, v{EV+8}"); a(f"v_fmac_f32 v{EV+9}, v{vsig}, v{EV+4}")
    a("s_cmp_eq_u32 s51, 1"); a("s_cselect_b32 exec_lo, 0xffff, 0"); a("s_mov_b32 exec_hi, 0")
    a(f"buffer_store_dwordx2 {vr(EV+8,2)}, v{ves}, s[16:19], s8 offen sc1")
    a("s_mov_b64 exec, -1")
ts(2)
if "pt2" in OPT:
    a(f"v_lshlrev_b32 v{t[0]}, 7, v0")
    a("s_lshl_b32 s30, s53, 15"); a("s_lshl_b32 s31, s51, 13"); a("s_add_u32 s30, s30, s31"); a(f"s_add_u32 s30, s30, {hx(S_OFF)}")
    a(f"buffer_load_ubyte v1, v{t[0]}, s[16:19], s30 offen")
eops = wdma_list(vWh, [0]) if (EARLY and "e0" not in OPT) else []
for j in range(8):
    if eops: eops.pop(0)()
    a(f"v_lshlrev_b32 v{t[6]}, 16, v{GW+j}")
    a(f"v_and_b32 v{t[7]}, s11, v{GW+j}")
    for r in range(2):
        a(f"v_lshlrev_b32 v{t[2*r]}, 16, v{XN+8*r+j}")
        a(f"v_and_b32 v{t[2*r+1]}, s11, v{XN+8*r+j}")
    for r in range(2):
        a(f"v_mul_f32 v{t[2*r]}, v{t[2*r]}, v{t[6]}")
        a(f"v_mul_f32 v{t[2*r+1]}, v{t[2*r+1]}, v{t[7]}")
    for r in range(2): a(f"v_cvt_pk_bf16_f32 v{t[4+r]}, v{t[2*r]}, v{t[2*r+1]}")
    for r in range(2): a(f"v_dot2_f32_bf16 v{acc+2*r}, v{t[4+r]}, v{ones}, v{acc+2*r}")
ts(3)
a("s_setprio 2")
a("s_barrier")
ts(4)
o = L_P // 256
a(f"ds_read2st64_b32 {vr(MB4,2)}, v{vmr+4} offset0:{o} offset1:{o+16}")
a(f"ds_read2st64_b32 {vr(MB4+2,2)}, v{vmr+4} offset0:{o+32} offset1:{o+48}")
for q in range(4):
    a(f"ds_read2st64_b32 {vr(MB+4*q,2)}, v{vmr+q} offset0:{o} offset1:{o+16}")
    a(f"ds_read2st64_b32 {vr(MB+4*q+2,2)}, v{vmr+q} offset0:{o+32} offset1:{o+48}")
for k in range(4):
    a(f"ds_read_u16_d16_hi v{EV+k}, v{veo} offset:{16*k}")
    a(f"ds_read_u16_d16_hi v{EV+4+k}, v{vet2} offset:{16*k}")
DN = DMB; DM = [DMB + 8 + 8 * q for q in range(4)]
a("s_waitcnt lgkmcnt(15)")
a(f"{M32} {vr(DN,16)}, {vr(MA,4)}, {vr(MB4,4)}, 0")
for q in range(4):
    a(f"s_waitcnt lgkmcnt({14-2*q})")
    a(f"{M32} {vr(DM[q],16)}, {vr(MA,4)}, {vr(MB+4*q,4)}, 0")
a("s_waitcnt lgkmcnt(0)")
ecompute()
a("s_cmp_eq_u32 s51, 0"); a("s_cselect_b32 exec_lo, 1, 0"); a("s_cselect_b32 exec_hi, 1, 0")
a(f"v_sub_f32 v{DM[0]}, v{DM[0]}, v{DN+1}"); a(f"v_add_f32 v{DM[0]+1}, v{DM[0]+1}, v{DN}")
a("s_mov_b32 exec_lo, 0")
for k in range(2, 8): a(f"v_mov_b32 v{DM[0]+k}, v{DN+k}")
a("s_mov_b64 exec, -1")
OUT = MB
for s_ in range(4):
    for q in range(4):
        a(f"v_cvt_pk_bf16_f32 v{OUT+4*s_+q}, v{DM[q]+2*s_}, v{DM[q]+2*s_+1}")
    a(f"buffer_store_dwordx4 {vr(OUT+4*s_,4)}, v{vts}, s[16:19], {'s9' if s_ < 2 else 's10'} offen offset:{(s_&1)*2048} sc1")
a("s_barrier")
ts(5)
for dpp in ("row_shr:1", "row_shr:2", "row_shr:4", "row_shr:8"):
    for r in range(2):
        a(f"v_add_f32_dpp v{acc+2*r}, v{acc+2*r}, v{acc+2*r} {dpp} row_mask:0xf bank_mask:0xf bound_ctrl:0")
for dpp, rm in (("row_bcast:15", "0xa"), ("row_bcast:31", "0xc")):
    for r in range(2):
        a(f"v_add_f32_dpp v{acc+2*r}, v{acc+2*r}, v{acc+2*r} {dpp} row_mask:{rm} bank_mask:0xf")
a(f"v_cvt_pk_bf16_f32 v{t[0]}, v{acc}, v{acc+2}")
a(f"v_lshlrev_b32 v{t[1]}, 16, v{t[0]}")
a(f"v_and_b32 v{t[2]}, s11, v{t[0]}")
for r in range(2): a(f"v_mul_f32 v{t[1+r]}, {hx(f2u(-1.4426950408889634))}, v{t[1+r]}")
for r in range(2): a(f"v_exp_f32 v{t[1+r]}, v{t[1+r]}")
for r in range(2): a(f"v_add_f32 v{t[1+r]}, 1.0, v{t[1+r]}")
for r in range(2): a(f"v_rcp_f32 v{t[1+r]}, v{t[1+r]}")
a(f"v_cvt_pk_bf16_f32 v{t[0]}, v{t[1]}, v{t[2]}")
a(f"v_lshlrev_b32 v{acc}, 16, v{t[0]}")
a(f"v_and_b32 v{acc+2}, s11, v{t[0]}")
a(f"v_sub_f32 v{t[1]}, 1.0, v{acc}")
a(f"v_sub_f32 v{t[2]}, 1.0, v{acc+2}")
a(f"v_cvt_pk_bf16_f32 v{t[0]}, v{t[1]}, v{t[2]}")
a(f"v_lshlrev_b32 v{acc+1}, 16, v{t[0]}")
a(f"v_and_b32 v{acc+3}, s11, v{t[0]}")
for r in range(4): a(f"v_mul_f32 v{acc+r}, {hx(f2u(2.0**-22))}, v{acc+r}")
a("s_lshl_b32 s30, s51, 4"); a(f"s_add_u32 s30, s30, {L_G}")
a(f"v_mov_b32 v{t[3]}, s30")
a("s_mov_b32 exec_lo, 0"); a("s_mov_b32 exec_hi, 0x80000000")
a(f"ds_write_b128 v{t[3]}, {vr(acc,4)}")
a("s_mov_b64 exec, -1")
a(f"v_mov_b32 v{t[3]}, {L_C}"); a(f"v_mov_b32 v{t[4]}, 1")
for k in range(4): a(f"v_mov_b32 v{DMB+k}, s48")
a("s_mov_b64 exec, 1")
a("s_waitcnt vmcnt(0)")
a(f"ds_add_rtn_u32 v{t[5]}, v{t[3]}, v{t[4]}")
a("s_waitcnt lgkmcnt(0)")
a(f"v_readfirstlane_b32 s30, v{t[5]}")
a("s_cmp_eq_u32 s30, 3"); a("s_cselect_b32 exec_lo, -1, 0"); a("s_cselect_b32 exec_hi, -1, 0")
a(f"buffer_store_dwordx4 {vr(DMB,4)}, v{vl16}, s[16:19], s57 offen {FSF}")
a("s_mov_b64 exec, -1")
def stouch(vt):
    a(f"v_lshlrev_b32 v{vt}, 7, v0")
    a(f"s_mul_i32 s30, s2, {TSB}"); a("s_lshl_b32 s31, s51, 12"); a("s_add_u32 s30, s30, s31"); a(f"s_add_u32 s30, s30, {hx(U_OFF)}")
    a("s_mov_b32 exec_hi, 0")
    a(f"buffer_load_ubyte v1, v{vt}, s[16:19], s30 offen")
    a("s_mov_b32 exec_hi, -1")
if "pt1" in OPT: stouch(t[0])
a("s_setprio 0")
ts(6)
p2_addr(); p2_item(); wvoff(vW, SC, SC + 1); p2_const()
if optint("pa", 0): a(f"s_sleep {optint('pa', 0)}")
a.label("L_p2")
a.hist = []
t = [SC + k for k in range(6)]
if "pt7" in OPT:
    a("s_and_b32 s30, s54, 1"); a("s_cmp_eq_u32 s30, 0"); a("s_cselect_b32 s30, s24, s26"); a(f"s_add_u32 s30, s30, {hx(U_OFF)}")
    a("s_mov_b32 exec_lo, 0x11111111"); a("s_mov_b32 exec_hi, 0x11111111")
    a(f"buffer_load_ubyte v1, v{vT}, s[16:19], s30 offen")
    a("s_mov_b64 exec, -1")
if "ga" in OPT: a("s_barrier")
ts(7)
if "pw3" in OPT:
    a(f"v_lshrrev_b32 v{TB}, 2, v0"); a(f"v_and_b32 v{TB+1}, 3, v0"); a(f"v_lshlrev_b32 v{TB+1}, 6, v{TB+1}"); a(f"v_lshl_or_b32 v{TB+2}, v{TB}, 11, v{TB+1}")
    a(f"buffer_store_dword v{TB+2}, v{TB+2}, s[16:19], s30 offen sc1")
poll("L_poll1", vF, TB, "s8", "s48")
def f2pre():
    if "nopw" in OPT: return
    a(f"v_mov_b32 v{TB}, s48"); a(f"v_lshlrev_b32 v{TB+1}, 2, v0")
    a("s_mov_b32 exec_hi, 0")
    a(f"buffer_store_dword v{TB}, v{TB+1}, s[16:19], s9 offen sc1")
    a("s_mov_b32 exec_hi, -1")
ts(8)
if "st2" in OPT: a("s_add_u32 s70, s60, s58")
a.label("L_p2c")
a("s_setprio 1")
a("s_mov_b32 m0, s27")
a(f"buffer_load_dwordx4 v{vT}, s[16:19], s24 offen {TLF} lds")
a("s_add_u32 m0, s27, 1024")
a(f"buffer_load_dwordx4 v{vT}, s[16:19], s26 offen {TLF} lds")
PW2 = "pw2" in OPT or "pw3" in OPT
def pw2():
    a(f"v_lshrrev_b32 v{TB}, 2, v0"); a(f"v_and_b32 v{TB+1}, 3, v0"); a(f"v_lshlrev_b32 v{TB+1}, 6, v{TB+1}"); a(f"v_lshl_or_b32 v{TB}, v{TB}, 11, v{TB+1}")
    if "pwh" in OPT: a("s_mov_b32 exec_lo, 0x55555555"); a("s_mov_b32 exec_hi, 0x55555555")
    a(f"buffer_store_dword v{TB}, v{TB}, s[16:19], s30 offen sc1")
    if "pwh" in OPT: a("s_mov_b64 exec, -1")
if "pw2" in OPT: pw2()
if SPLIT:
    for op in wdma_list(vW, [0], (1,)): op()
def wread(cc):
    a("s_not_b32 exec_lo, s52"); a("s_not_b32 exec_hi, s52")
    for arr in range(4):
        for i in range(4):
            a(f"ds_read_u16_d16_hi v{Wi(arr,cc,i)}, v{vWr} offset:{1536*arr+768*cc+48*i}")
    a("s_mov_b64 exec, -1")
if UO:
    srd(12, 94, 2048 * 2048)
    a(f"v_lshlrev_b32 v{vF}, 2, v{vc}"); a(f"v_lshl_or_b32 v{vF}, v{vg}, 17, v{vF}")
    a("s_and_b32 s31, s2, 7"); a("s_lshl_b32 s31, s31, 19"); a("s_lshl_b32 s30, s3, 12"); a("s_add_u32 s31, s31, s30"); a("s_lshl_b32 s30, s54, 6"); a("s_add_u32 s31, s31, s30")
a("s_barrier")
if "ptw" in OPT:
    a(f"v_lshrrev_b32 v{TB}, 1, v0"); a(f"v_and_b32 v{TB+1}, 1, v0"); a(f"v_lshlrev_b32 v{TB+1}, 7, v{TB+1}"); a(f"v_lshl_or_b32 v{TB}, v{TB}, 11, v{TB+1}")
    a("s_mov_b32 exec_hi, 0")
    a(f"buffer_load_ubyte v1, v{TB}, s[16:19], s30 offen")
    a("s_mov_b32 exec_hi, -1")
wread(0)
if not SPLIT: wread(1)
PKD = SC + 8
a(f"s_waitcnt vmcnt({4 if SPLIT else (1 if ('pw2' in OPT or 'ptw' in OPT) else 0)})")
if ST: a("s_waitcnt lgkmcnt(0)")
ts(9)
def pt9():
    a("s_and_b32 s30, s54, 1"); a("s_cmp_eq_u32 s30, 0"); a("s_cselect_b32 s30, s24, s26"); a(f"s_add_u32 s30, s30, {hx(U_OFF)}")
    a("s_mov_b32 exec_lo, 0x11111111"); a("s_mov_b32 exec_hi, 0x11111111")
    a(f"buffer_load_ubyte v1, v{vT}, s[16:19], s30 offen")
    a("s_mov_b64 exec, -1")
a("s_lshl_b32 s25, s3, 9"); a(f"s_add_u32 s25, s25, {L_E}"); a("s_mov_b32 m0, s25")
a("s_mov_b32 exec_lo, s59"); a("s_mov_b32 exec_hi, 0")
a(f"buffer_load_dwordx4 v{vEa}, s[16:19], s50 offen sc1 lds")
a("s_mov_b64 exec, -1")
a(f"ds_read2_b32 {vr(TB,2)}, v{vTr} offset0:0 offset1:16")
a(f"ds_read2_b32 {vr(TB+2,2)}, v{vTr} offset0:32 offset1:48")
a(f"v_add_u32 v{vTr}, 1024, v{vTr}")
a(f"ds_read2_b32 {vr(TB+4,2)}, v{vTr} offset0:0 offset1:16")
a(f"ds_read2_b32 {vr(TB+6,2)}, v{vTr} offset0:32 offset1:48")
a.label("L_p2e")
for bb in range(2):
    a(f"s_waitcnt lgkmcnt({2-2*bb})")
    a(f"{M16} {vr(D+8*bb,4)}, {vr(Fr,4)}, {vr(TB+4*bb,4)}, 0")
    a(f"{M16} {vr(D+8*bb+4,4)}, {vr(Fm,4)}, {vr(TB+4*bb,4)}, 0")
for ip in range(2):
    for cc in range(2):
        for bb in range(2):
            i = 2 * ip + cc
            a(f"v_cvt_pk_bf16_f32 v{PKD+4*ip+2*cc+bb}, v{D+8*bb+i}, v{D+8*bb+4+i}")
    a(f"ds_write_b128 v{vw1}, {vr(PKD+4*ip,4)} offset:{ip*256}")
a("s_waitcnt lgkmcnt(0)")
f2pre()
a("s_barrier")
OB = TB
for cc in range(2):
    for h in range(2):
        a(f"ds_read_b64 {vr(OB+4*cc+2*h,2)}, v{vr1} offset:{h*2048+cc*8}")
X = D
for cc in range(2):
    a(f"s_waitcnt lgkmcnt({2-2*cc})")
    a(f"{M16} {vr(X+8*cc,4)}, {vr(M2+8*cc,4)}, {vr(OB+4*cc,4)}, 0")
    a(f"{M16} {vr(X+8*cc+4,4)}, {vr(M2+8*cc+4,4)}, {vr(OB+4*cc,4)}, 0")
YO = [PKD, PKD + 4, PKD, PKD + 4]
tpr = [(vT, vTr), (vr1, vw1)]
if SPLIT:
    a(f"s_waitcnt vmcnt({0 if 'nopw' in OPT else 1})")
    wread(1)
def dpt(cc, ab, ri): return WW + 16 * cc + 8 * ab + 4 * ri
def wmul(cc, ab):
    n = 2 * cc + ab
    xr = X + 8 * cc; xi = X + 8 * cc + 4
    for i in range(4):
        wr = Wi(2 * ab, cc, i); wi = Wi(2 * ab + 1, cc, i)
        y0, y1 = tpr[i & 1]
        a(f"v_mul_f32 v{y0}, v{xr+i}, v{wr}")
        a(f"v_mul_f32 v{y1}, v{xi+i}, v{wr}")
        a(f"v_fma_f32 v{y0}, -v{xi+i}, v{wi}, v{y0}")
        a(f"v_fmac_f32 v{y1}, v{xr+i}, v{wi}")
        a(f"v_cvt_pk_bf16_f32 v{YO[n]+i}, v{y1}, v{y0}")
    a(f"{M16} {vr(dpt(cc,ab,0),4)}, {vr(MT+8*cc,4)}, {vr(YO[n],4)}, 0")
    a(f"{M16} {vr(dpt(cc,ab,1),4)}, {vr(MT+8*cc+4,4)}, {vr(YO[n],4)}, 0")
XP2 = X
def x2_write(ab, dst):
    for ip in range(2):
        for cc in range(2):
            for bb in range(2):
                i = 2 * ip + bb
                a(f"v_cvt_pk_bf16_f32 v{dst+4*ip+2*bb+cc}, v{dpt(cc,ab,0)+i}, v{dpt(cc,ab,1)+i}")
        a(f"ds_write_b128 v{vw2}, {vr(dst+4*ip,4)} offset:{2048*ab+ip*256}")
def x2_read(ab, dst):
    for bb in range(2):
        for h in range(2):
            a(f"ds_read_b64 {vr(dst+4*bb+2*h,2)}, v{vr2} offset:{WR*h+2048*ab+bb*8}")
def last_mfma(src, out):
    a(f"{M16} {vr(out,4)}, {vr(Fr,4)}, {vr(src,4)}, 0")
    a(f"{M16} {vr(out+4,4)}, {vr(Fm,4)}, {vr(src,4)}, 0")
def s_store(ab, bb, out):
    for i in range(4):
        a(f"v_cvt_pk_bf16_f32 v{out+i}, v{out+4+i}, v{out+i}")
        a(f"s_add_u32 s30, s24, {hx((16*i+bb)*TSB + ab*U_OFF)}")
        a(f"buffer_store_dword v{out+i}, v{vS}, s[16:19], s30 offen {SSF}")
B1 = WW + 8; B2 = WW + 24
YO = [PKD, PKD, PKD + 4, PKD + 4]
def tail(pre_a0=None, pre_a1=None):
    x2_write(1, PKD)
    a("s_waitcnt lgkmcnt(0)")
    a("s_barrier")
    x2_read(1, B2)
    if pre_a0: pre_a0()
    wmul(0, 0)
    a("s_waitcnt lgkmcnt(0)")
    last_mfma(B2, B1)
    if pre_a1: pre_a1()
    wmul(1, 0)
a("s_cmp_lg_u32 s54, 0")
a("s_cbranch_scc0 L_el")
a.label("L_elb")
wmul(0, 1); wmul(1, 1)
tail()
a.label("L_spb")
last_mfma(B2 + 4, M2)
s_store(1, 0, B1)
x2_write(0, D)
s_store(1, 1, M2)
a("s_waitcnt lgkmcnt(0)")
a("s_barrier")
x2_read(0, B2)
a("s_waitcnt lgkmcnt(2)")
last_mfma(B2, MT)
a("s_waitcnt lgkmcnt(0)")
last_mfma(B2 + 4, MT + 8)
s_store(0, 0, MT)
s_store(0, 1, MT + 8)
X4 = False
ts(10)
if "swb" in OPT:
    a("s_waitcnt vmcnt(0)")
    a("buffer_wbl2 sc1")
amx_post(t[0])
LATE = optint("late", 1)
a("s_mov_b32 s27, s9")
if LATE == 0:
    setflag(t[0], "s27", "s49")
    if "st2" in OPT: ts(1)
a("s_setprio 0")
V = VAlloc(8)
vg_ = vg; vc_ = vc
t = [V() for _ in range(6)]
vS3 = 1; vN = 2; vF3 = 7; AP8 = V(); AMx = V()
MR = V(16, 4); MI = V(16, 4); X = V(16, 4)
BA = V(24, 4); BB = V(24, 4); TCh = V(8); TSh = V(8)
assert V.n <= 128, V.n
D1r = BA + 8; D1i = BB + 8; D2r = BA; D2i = BB
SBt = [D1r, D1r + 4, D1r + 8, D1r + 12, X]
DDt = [D1i, D1i + 4, D1i + 8, D1i + 12, X + 4]
MA = X + 8; AP = X + 12; AM = [X + 13, X + 14, X + 15, AMx]
CS = D1r; GG = D1i
a(f"v_bfe_u32 v{t[0]}, v0, 2, 2"); a(f"v_lshlrev_b32 v{t[1]}, 4, v{t[0]}")
a(f"v_add_u32 v{t[1]}, {L_G}, v{t[1]}")
a(f"ds_read_b128 {vr(GG,4)}, v{t[1]}")
if X4:
    a(f"v_and_b32 v{t[1]}, 1, v0"); a(f"v_lshlrev_b32 v{t[1]}, 3, v{t[1]}")
    a(f"v_lshl_or_b32 v{t[1]}, v{t[0]}, 4, v{t[1]}")
    a(f"v_bfe_u32 v{t[2]}, v0, 1, 1"); a(f"v_lshl_or_b32 v{t[1]}, v{t[2]}, 6, v{t[1]}")
else:
    a(f"v_lshlrev_b32 v{t[1]}, 2, v{vc_}")
SD = "sd" in OPT
RS = 2080
if SD:
    a(f"v_mul_u32_u24 v{vS3}, {2*RS}, v{vg_}"); a(f"v_add_u32 v{vS3}, v{vS3}, v{t[1]}")
    a(f"v_lshlrev_b32 v{vN}, 4, v0")
else:
    a(f"v_lshl_or_b32 v{vS3}, v{vg_}, 12, v{t[1]}")
    a(f"v_lshl_or_b32 v{vN}, v{vg_}, 20, v{t[1]}")
a("s_xor_b32 s50, s3, 4")
a(f"s_mul_i32 s8, s2, {TSB}")
if SD:
    a("s_lshl_b32 s11, s50, 6"); a(f"s_add_u32 s11, s11, {L_W}"); a(f"v_add_u32 v{vS3}, s11, v{vS3}"); a(f"v_add_u32 v{AP8}, {RS}, v{vS3}")
    a("s_lshl_b32 s11, s3, 11"); a("s_add_u32 s8, s8, s11"); a(f"s_add_u32 s10, s8, {hx(U_OFF)}")
    a(f"s_mul_i32 s9, s3, {RS}"); a(f"s_add_u32 s9, s9, {L_W}")
else:
    a("s_lshl_b32 s11, s50, 6"); a("s_add_u32 s8, s8, s11"); a(f"s_add_u32 s10, s8, {hx(U_OFF)}")
    if UO:
        a("s_lshl_b32 s10, s2, 11"); a("s_add_u32 s10, s10, s11"); a("s_add_u32 s9, s10, 0x80000")
if SD:
    a("s_lshl_b32 s11, s3, 5"); a(f"v_add_u32 v{t[1]}, s11, v{vn}")
else:
    a(f"v_bfe_u32 v{t[1]}, v0, 2, 3"); a(f"v_and_b32 v{t[2]}, 3, v0"); a(f"v_lshlrev_b32 v{t[2]}, 3, v{t[2]}")
    a(f"v_lshl_add_u32 v{t[1]}, v{t[1]}, 5, v{t[2]}"); a(f"v_add_u32 v{t[1]}, s50, v{t[1]}")
a("s_cmp_eq_u32 s50, 0"); a("s_cselect_b32 s24, 0x00010001, 0")
a(f"v_lshlrev_b32 v{vF3}, 10, v{t[1]}")
a("s_bfe_u32 s11, s2, 0x30001"); a("s_lshl_b32 s11, s11, 7"); a(f"s_add_u32 s11, s11, {hx(F2_OFF)}")
vsg = X; ve = X + 1; vstep = X + 2; vpe = X + 3; vpo = X + 4; vk = X + 5; vpl = X + 6
a(f"v_bfe_u32 v{t[1]}, v0, 1, 1"); a(f"v_cvt_f32_u32 v{vsg}, v{t[1]}")
a(f"v_mul_f32 v{vsg}, -0.5, v{vsg}"); a(f"v_add_f32 v{vsg}, {fl(0.25)}, v{vsg}")
a(f"v_and_b32 v{t[1]}, 1, v0"); a(f"v_cvt_f32_u32 v{t[1]}, v{t[1]}")
a(f"v_mul_f32 v{ve}, v{t[1]}, v{vsg}")
a(f"v_lshlrev_b32 v{t[0]}, 9, v{t[0]}"); a(f"v_add_u32 v{t[0]}, s2, v{t[0]}")
a(f"v_cvt_f32_u32 v{vstep}, v{t[0]}"); a(f"v_mul_f32 v{vstep}, {hx(f2u(-1/2048))}, v{vstep}")
a(f"v_cvt_f32_u32 v{t[2]}, v{vg_}"); a(f"v_add_f32 v{t[2]}, v{t[2]}, v{t[2]}")
a(f"v_fma_f32 v{vpe}, v{t[2]}, v{vstep}, v{ve}")
a(f"v_sub_f32 v{vpo}, v{vpe}, v{vsg}")
a(f"v_fmamk_f32 v{vpo}, v{t[2]}, {hx(f2u(-0.125))}, v{vpo}")
for lo in range(2):
    if lo:
        a(f"v_add_f32 v{vpe}, v{vpe}, v{vstep}")
        a(f"v_add_f32 v{vpo}, v{vpo}, v{vstep}"); a(f"v_add_f32 v{vpo}, {hx(f2u(-0.125))}, v{vpo}")
    a(f"v_cos_f32 v{CS+4*lo}, v{vpe}"); a(f"v_sin_f32 v{CS+4*lo+1}, v{vpe}")
    a(f"v_cos_f32 v{CS+4*lo+2}, v{vpo}"); a(f"v_sin_f32 v{CS+4*lo+3}, v{vpo}")
a("s_lshl_b32 s25, s50, 4")
a(f"v_lshlrev_b32 v{vpl}, 12, v{vg_}")
a(f"v_add_u32 v{vk}, s25, v{vc_}")
a(f"v_and_b32 v{t[3]}, 14, v{vk}"); a(f"v_lshl_or_b32 v{t[3]}, v{t[3]}, 3, v{vpl}")
a(f"v_and_b32 v{t[4]}, 31, v{vk}"); a(f"v_lshl_or_b32 v{t[3]}, v{t[4]}, 7, v{t[3]}")
a(f"v_bfe_u32 v{t[4]}, v{vk}, 5, 2"); a(f"v_lshl_or_b32 v{AP}, v{t[4]}, 2, v{t[3]}")
a(f"v_sub_u32 v{t[5]}, 0, v{vk}")
a(f"v_and_b32 v{t[4]}, 31, v{t[5]}"); a(f"v_lshl_or_b32 v{t[3]}, v{t[4]}, 7, v{vpl}")
a(f"v_and_b32 v{t[4]}, 14, v{t[5]}"); a(f"v_lshl_or_b32 v{t[3]}, v{t[4]}, 3, v{t[3]}")
a(f"v_lshrrev_b32 v{t[5]}, 3, v{t[5]}")
for tt in range(4):
    if tt: a(f"v_subrev_u32 v{t[5]}, 16, v{t[5]}")
    a(f"v_and_b32 v{t[4]}, 0x7c, v{t[5]}")
    a(f"v_xor_b32 v{AM[tt]}, v{t[4]}, v{t[3]}")
a("s_mov_b32 exec_lo, s24"); a("s_mov_b32 exec_hi, s24")
a(f"v_or_b32 v{AM[0]}, 64, v{vpl}")
a("s_mov_b64 exec, -1")
a("s_waitcnt lgkmcnt(0)")
for lo in range(2):
    for ab in range(2):
        a(f"v_mul_f32 v{t[0]}, v{GG+ab}, v{CS+4*lo}"); a(f"v_mul_f32 v{t[1]}, v{GG+ab}, v{CS+4*lo+1}")
        a(f"v_fmac_f32 v{t[0]}, v{GG+2+ab}, v{CS+4*lo+2}"); a(f"v_fmac_f32 v{t[1]}, v{GG+2+ab}, v{CS+4*lo+3}")
        a(f"v_cvt_pk_bf16_f32 v{MA+2*lo+ab}, v{t[0]}, v{t[1]}")
if LATE == 1:
    setflag(t[0], "s27", "s49")
    if "st2" in OPT: ts(1)
a("s_cmp_eq_u32 s3, 4")
a("s_cbranch_scc1 L_m0")
a("s_cmp_ge_u32 s3, 4")
a("s_cbranch_scc1 L_p3b")
TC = lambda k: BA + k if k < 8 else TCh + k - 8
TS_ = lambda k: BB + k if k < 8 else TSh + k - 8
vb = X; vo = X + 1
a(f"v_cvt_f32_u32 v{vb}, v{vn}"); a(f"v_cvt_f32_u32 v{vo}, v{vL5}")
a(f"v_mul_f32 v{vb}, {fl(1/32)}, v{vb}"); a(f"v_mul_f32 v{vo}, 4.0, v{vo}"); a(f"v_mul_f32 v{vo}, v{vb}, v{vo}")
for i in range(16):
    kc = 8 * (i // 4) + i % 4
    if kc == 0: a(f"v_mov_b32 v{t[0]}, v{vo}")
    else: a(f"v_fmamk_f32 v{t[0]}, v{vb}, {hx(f2u(float(kc)))}, v{vo}")
    a(f"v_cos_f32 v{t[1]}, v{t[0]}"); a(f"v_sin_f32 v{t[2]}, v{t[0]}")
    a(f"v_mul_f32 v{t[0]}, {fl(1/32)}, v{t[0]}")
    a(f"v_cvt_pk_bf16_f32 v{MR+i}, v{t[1]}, -v{t[2]}")
    a(f"v_cvt_pk_bf16_f32 v{MI+i}, v{t[2]}, v{t[1]}")
    a(f"v_cos_f32 v{TC(i)}, v{t[0]}"); a(f"v_sin_f32 v{TS_(i)}, v{t[0]}")
a.label("L_p3b")
if "nogb" not in OPT: a("s_barrier")
if optint("pb", 0): a(f"s_sleep {optint('pb', 0)}")
ts(11)
poll("L_poll2", vF3, t[0], "s11", "s49")
ts(12)
if "st2" in OPT: a("s_add_u32 s64, s60, s58")
if SD:
    for ab in range(2):
        a(f"s_add_u32 m0, s9, {ab*8*RS}")
        a(f"buffer_load_dwordx4 v{vN}, s[16:19], {'s10' if ab else 's8'} offen {SLF} lds")
        a(f"buffer_load_dwordx4 v{vN}, s[16:19], {'s10' if ab else 's8'} offen offset:1024 {SLF} lds")
    a("s_waitcnt vmcnt(0)")
    a("s_barrier")
    for tt in range(4):
        for lo in range(2):
            a(f"ds_read2st64_b32 {vr(SBt[tt]+2*lo,2)}, v{AP8 if lo else vS3} offset0:{2*tt} offset1:{2*tt + 8*RS//256}")
else:
  for tt in range(4):
    for lo in range(2):
        for ab in range(2):
            if UO and ab:
                a(f"buffer_load_dword v{SBt[tt]+2*lo+ab}, v{vN}, s[12:15], {'s9' if lo else 's10'} offen offset:{tt*512} {SLF}")
                continue
            a(f"buffer_load_dword v{SBt[tt]+2*lo+ab}, v{vS3}, s[16:19], {'s10' if ab else 's8'} offen offset:{tt*512+lo*2048} {SLF}")
MA0 = MR
def fin(tt):
    d = DDt[tt]
    if tt == 0:
        a("s_mov_b32 exec_lo, s24"); a("s_mov_b32 exec_hi, s24")
        for k in range(4): a(f"v_mov_b32 v{d+k}, v{DDt[4]+k}")
        a("s_mov_b64 exec, -1")
    a(f"v_cvt_pk_bf16_f32 v{d}, v{d}, v{d+1}")
    a(f"v_cvt_pk_bf16_f32 v{d+1}, v{d+2}, v{d+3}")
    if tt: a(f"v_xor_b32 v{t[tt]}, {tt<<4}, v{AP}")
    a(f"ds_write_b32 v{t[tt] if tt else AP}, v{d}")
    a(f"ds_write_b32 v{AM[tt]}, v{d+1}")
if SD:
    for tt in range(4):
        a(f"s_waitcnt lgkmcnt({6-2*tt})")
        a(f"{M16} {vr(DDt[tt],4)}, {vr(MA,4)}, {vr(SBt[tt],4)}, 0")
        if tt == 0: a(f"{M16} {vr(DDt[4],4)}, {vr(MA0,4)}, {vr(SBt[0],4)}, 0")
    for tt in range(4): fin(tt)
else:
    for tt in range(4):
        a(f"s_waitcnt vmcnt({12-4*tt})")
        a(f"{M16} {vr(DDt[tt],4)}, {vr(MA,4)}, {vr(SBt[tt],4)}, 0")
        if tt == 0: a(f"{M16} {vr(DDt[4],4)}, {vr(MA0,4)}, {vr(SBt[0],4)}, 0")
        if tt >= 1: fin(tt - 1)
    fin(3)
vst = vS3
a(f"v_bfe_u32 v{t[4]}, v{vn}, 1, 3"); a(f"v_xor_b32 v{t[4]}, v{t[4]}, v{vL5}"); a(f"v_lshlrev_b32 v{t[4]}, 4, v{t[4]}")
a(f"v_lshl_or_b32 v{t[4]}, v{vn}, 7, v{t[4]}"); a("s_lshl_b32 s26, s51, 12")
a("s_waitcnt lgkmcnt(0)")
a(f"v_add_u32 v{t[0]}, s26, v{t[4]}")
for q in range(1, 4): a(f"v_xor_b32 v{t[q]}, {32*q}, v{t[0]}")
a(f"v_lshlrev_b32 v{t[4]}, 4, v{vL5}"); a(f"v_lshl_or_b32 v{vst}, v{vn}, 6, v{t[4]}")
srd(12, 94, 2048 * 2048)
a("s_add_u32 s30, s22, 0x80000")
if "st2" in OPT: ts(3)
a("s_barrier")
if "st2" in OPT: ts(4)
a("s_cmp_ge_u32 s3, 4")
a("s_cbranch_scc1 L_hx")
for q in range(4): a(f"ds_read_b128 {vr(X+4*q,4)}, v{t[q]}")
for q in range(4):
    a(f"s_waitcnt lgkmcnt({3-q})")
    a(f"{M32} {vr(D1r,16)}, {vr(X+4*q,4)}, {vr(MR+4*q,4)}, {'0' if q == 0 else vr(D1r,16)}")
    a(f"{M32} {vr(D1i,16)}, {vr(X+4*q,4)}, {vr(MI+4*q,4)}, {'0' if q == 0 else vr(D1i,16)}")
def p2m(q):
    a(f"{M32} {vr(D2r,16)}, {vr(X+4*q,4)}, {vr(MR+4*q,4)}, {'0' if q == 0 else vr(D2r,16)}")
    a(f"{M32} {vr(D2i,16)}, {vr(X+4*q,4)}, {vr(MI+4*q,4)}, {'0' if q == 0 else vr(D2i,16)}")
for q in range(4):
    for e in range(4):
        k = 4 * q + e
        a(f"v_mul_f32 v{t[0]}, v{D1r+k}, v{TC(k)}")
        a(f"v_mul_f32 v{t[1]}, v{D1i+k}, v{TC(k)}")
        a(f"v_fma_f32 v{t[0]}, -v{D1i+k}, v{TS_(k)}, v{t[0]}")
        a(f"v_fmac_f32 v{t[1]}, v{D1r+k}, v{TS_(k)}")
        a(f"v_cvt_pk_bf16_f32 v{X+k}, v{t[0]}, v{t[1]}")
        if q == 2 and e == 1: p2m(1)
    if q == 1: p2m(0)
    if q >= 2: p2m(q)
O = MR
for r, (Dx, so) in enumerate(((D2r, "s22"), (D2i, "s30"))):
    for c2 in range(2):
        o = O + 8 * r + 4 * c2
        for e in range(4):
            a(f"v_cvt_pk_bf16_f32 v{o+e}, v{Dx+8*c2+2*e}, v{Dx+8*c2+2*e+1}")
        a(f"v_permlane32_swap_b32 v{o}, v{o+2}")
        a(f"v_permlane32_swap_b32 v{o+1}, v{o+3}")
        a(f"buffer_store_dwordx4 {vr(o,4)}, v{vst}, s[12:15], {so} offen offset:{32*c2}{OSF}")
a.label("L_fin")
stamp_end(32)
a.label("L_end")
a("s_endpgm")
a.label("L_hx")
a("s_lshl_b32 s26, s2, 3"); a("s_add_u32 s26, s26, s3")
a("s_cmp_lg_u32 s26, 4")
a("s_cbranch_scc1 L_fin")
a(f"s_mov_b32 s26, {hx(EP_OFF)}")
setflag(8, "s26", "s49")
a("s_branch L_fin")
a.label("L_m0")
a.hist = []
q_ = [MI + k for k in range(16)]
gaa = q_[0]; gbb = q_[1]; ph = q_[2]; st_ = q_[3]; c_ = q_[4]; s__ = q_[5]; al = q_[6]; be = q_[7]
a(f"v_and_b32 v{t[0]}, 1, v0"); a(f"v_cmp_eq_u32 vcc, 1, v{t[0]}")
a(f"v_bfe_u32 v{t[1]}, v0, 2, 2"); a(f"v_lshl_or_b32 v{t[1]}, v{t[1]}, 1, v{t[0]}")
a(f"v_cndmask_b32 v{gaa}, v{GG}, v{GG+2}, vcc"); a(f"v_cndmask_b32 v{gbb}, v{GG+1}, v{GG+3}, vcc")
a(f"v_lshlrev_b32 v{t[1]}, 8, v{t[1]}"); a(f"v_add_u32 v{t[1]}, s2, v{t[1]}")
a(f"v_cvt_f32_u32 v{st_}, v{t[1]}"); a(f"v_mul_f32 v{st_}, {hx(f2u(1/2048))}, v{st_}")
a(f"v_cvt_f32_u32 v{ph}, v{vg_}"); a(f"v_add_f32 v{ph}, v{ph}, v{ph}"); a(f"v_mul_f32 v{ph}, v{ph}, v{st_}")
a(f"v_bfe_u32 v{t[2]}, v0, 1, 1")
a(f"v_lshrrev_b32 v{t[3]}, 1, v{vg_}"); a(f"v_cmp_eq_u32 s[4:5], v{t[2]}, v{t[3]}")
a(f"v_and_b32 v{t[3]}, 1, v{vg_}"); a(f"v_cmp_eq_u32 s[6:7], 0, v{t[3]}")
a(f"v_cmp_eq_u32 s[28:29], 0, v{t[2]}")
a(f"v_cndmask_b32 v{q_[8]}, 0, v{gaa}, s[4:5]"); a(f"v_cndmask_b32 v{q_[9]}, 0, v{gbb}, s[4:5]")
a(f"v_mul_f32 v{q_[10]}, {fl(0.25)}, v{gaa}"); a(f"v_mul_f32 v{q_[11]}, {fl(0.25)}, v{gbb}")
for lo in range(2):
    if lo: a(f"v_add_f32 v{ph}, v{ph}, v{st_}")
    a(f"v_cos_f32 v{c_}, v{ph}"); a(f"v_sin_f32 v{s__}, v{ph}")
    for ab in range(2):
        if lo == 0:
            if ab == 0:
                a(f"v_cndmask_b32 v{al}, 0, v{q_[10]}, s[28:29]"); a(f"v_cndmask_b32 v{be}, 0, v{q_[11]}, s[28:29]")
            else:
                a(f"v_cndmask_b32 v{al}, v{q_[10]}, 0, s[28:29]"); a(f"v_cndmask_b32 v{be}, v{q_[11]}, 0, s[28:29]")
            a(f"v_cndmask_b32 v{al}, v{q_[8+ab]}, v{al}, s[6:7]"); a(f"v_cndmask_b32 v{be}, 0, v{be}, s[6:7]")
            a(f"v_mul_f32 v{t[0]}, v{al}, v{c_}"); a(f"v_fmac_f32 v{t[0]}, v{be}, v{s__}")
            a(f"v_mul_f32 v{t[1]}, v{be}, v{c_}"); a(f"v_fma_f32 v{t[1]}, -v{al}, v{s__}, v{t[1]}")
            a(f"v_cvt_pk_bf16_f32 v{MA0+2*lo+ab}, v{t[0]}, v{t[1]}")
        else:
            a(f"v_mul_f32 v{t[0]}, v{q_[8+ab]}, v{c_}"); a(f"v_mul_f32 v{t[1]}, v{q_[8+ab]}, v{s__}")
            a(f"v_cvt_pk_bf16_f32 v{MA0+2*lo+ab}, v{t[0]}, -v{t[1]}")
a("s_branch L_p3b")
a.label("L_el")
a.hist = []
a(f"v_lshlrev_b32 v{vEa}, 6, v{vg}"); a(f"v_add_u32 v{vEa}, s25, v{vEa}")
a("s_mov_b32 exec_lo, s52"); a("s_mov_b32 exec_hi, s52")
a(f"s_waitcnt vmcnt({0 if 'nopw' in OPT else 1})")
for ab in (1, 0):
    for cc in range(2):
        for i in range(4):
            a(f"ds_read_b64 {vr(Wi(2*ab,cc,i),2)}, v{vEa} offset:{256*cc+16*i+8*ab}")
a("s_mov_b64 exec, -1")
a("s_and_b32 s29, s2, 0xfb")
a("s_cmp_eq_u32 s29, 0")
a("s_cbranch_scc1 L_sp")
a("s_waitcnt lgkmcnt(0)")
a("s_branch L_elb")
a.label("L_sp")
a.hist = []
X = XP2
ts(3)
a("s_lshr_b32 s29, s2, 2"); a("s_lshl_b32 s10, s3, 1"); a("s_add_u32 s29, s29, s10"); a("s_sub_u32 s29, 16, s29")
for cc in range(2):
    a(f"s_sub_u32 s10, s29, {cc}"); a("s_and_b32 s10, s10, 15")
    a("s_lshr_b32 s11, s10, 1"); a("s_lshl_b32 s11, s11, 8"); a("s_and_b32 s10, s10, 1"); a("s_lshl_b32 s10, s10, 3"); a("s_add_u32 s10, s10, s11")
    a(f"v_lshlrev_b32 v{tpr[0][cc]}, 12, v{vg}"); a(f"v_add_u32 v{tpr[0][cc]}, s10, v{tpr[0][cc]}")
for k in range(8): a(f"v_mov_b32 v{TB+k}, 0")
a("s_mov_b32 exec_lo, 0x00010001"); a("s_mov_b32 exec_hi, 0x00010001")
for cc in range(2):
    for h in range(2):
        a(f"ds_read_b64 {vr(TB+4*cc+2*h,2)}, v{tpr[0][cc]} offset:{h*2048}")
a("s_mov_b32 s10, 0x00008000"); a("s_mov_b32 s11, 0x80008000")
a("s_waitcnt lgkmcnt(0)")
for k in range(8): a(f"v_xor_b32 v{TB+k}, s10, v{TB+k}")
a("s_mov_b64 exec, -1")
ts(4)
a("s_cmp_lg_u32 s2, 0")
a("s_cbranch_scc1 L_sp4")
def sp_body(mats):
    def acc(cc):
        a(f"{M16} {vr(X+8*cc,4)}, {vr(mats[cc],4)}, {vr(TB+4*cc,4)}, {vr(X+8*cc,4)}")
        a(f"{M16} {vr(X+8*cc+4,4)}, {vr(mats[cc]+4,4)}, {vr(TB+4*cc,4)}, {vr(X+8*cc+4,4)}")
    acc(0); acc(1)
    a("s_mov_b32 exec_lo, 0x00010001"); a("s_mov_b32 exec_hi, 0x00010001")
    for k in range(8): a(f"v_xor_b32 v{TB+k}, s11, v{TB+k}")
    a("s_mov_b64 exec, -1")
    wmul(0, 1); acc(0); acc(0)
    wmul(1, 1); acc(1); acc(1)
    tail()
    ts(6)
    a("s_nop 7")
    a("s_branch L_spb")
sp_body([M2, M2 + 8])
a.label("L_sp4")
a.hist = []
a("s_nop 1")
sp_body([M2 + 8, MX])

nv = (a.maxv + 1 + 7) // 8 * 8
out = "; gated_mix spectral gfnet: persistent MFMA FFT pipeline (generated by gen9.py)\n"
out += f"; @launch grid=(256,1,1) block=(512,1,1) lds={LDS_BYTES}\n"
out += '.amdgcn_target "amdgcn-amd-amdhsa--gfx950"\n.text\n'
out += f".globl {NAME}\n.p2align 8\n.type {NAME},@function\n" + a.text() + ".rept 96\n    s_endpgm\n.endr\nL_code_end:\n"
out += f""".section .rodata,"a"
.p2align 6
.amdhsa_kernel {NAME}
  .amdhsa_next_free_vgpr {nv}
  .amdhsa_next_free_sgpr {min(102, a.maxs + 1)}
  .amdhsa_accum_offset {nv}
  .amdhsa_group_segment_fixed_size 0
  .amdhsa_kernarg_size 80
  .amdhsa_user_sgpr_count 2
  .amdhsa_user_sgpr_kernarg_segment_ptr 1
  .amdhsa_system_sgpr_workgroup_id_x 1
  .amdhsa_float_denorm_mode_32 3
.end_amdhsa_kernel
"""
sys.stderr.write(f"vgpr {a.maxv+1} sgpr {a.maxs+1} lines {len(a.lines)} nops {a.nops}\n")
print(out)
```

```python
import sys
from asmlib import *
NAME = "gated_mix__spectral_gfnet__spectral_gfnet__prompt_kernel"
TSB = 16512
S_OFF = 0x500000
U_OFF = 0x500000
import sys as _s
for _o in _s.argv:
    if _o.startswith('soff'): S_OFF = int(_o[4:]) << 20
F1_OFF = 0xE20000
F2_OFF = 0xE80000
EP_OFF = 0xEF0000
WS_SIZE = 0xF00000
WBYTES = 2048 * 1026
M32 = "v_mfma_f32_32x32x16_bf16"
M16 = "v_mfma_f32_16x16x32_bf16"
OPT = set(sys.argv[1:])
ST = "stamps" in OPT
WSZ = 0x10000000 if ST else WS_SIZE
L_A = 0; L_W = 16384; L_P = L_W; WR = 6144; L_G = 65536; L_N = 65664; L_C = 65920; L_E = 65936; LDS_BYTES = 65936 + 4096
def optint(pfx, d):
    for o in OPT:
        if o.startswith(pfx) and o[len(pfx):].isdigit(): return int(o[len(pfx):])
    return d
SLEEP = optint("sl", 0); PFAT = optint("pf", 8); NWG = optint("nwg", 0)
SPIN_MAX = 400000
NTX = " nt" if "ntx" in OPT else ""
NTW = " nt" if "ntw" in OPT else ""
PLF = "sc0 sc1" if "psys" in OPT else ("sc1 nt" if "pnt" in OPT else ("sc0 sc1 nt" if "psysnt" in OPT else "sc1"))
FSF = "sc0 sc1" if "fsys" in OPT else "sc1"
SSF = "sc0 sc1" if "ssys" in OPT else ("sc1 nt" if "snt" in OPT else ("" if "swb" in OPT else "sc1"))
def lf(k):
    return "sc0 sc1" if k+"sys" in OPT else ("sc1 nt" if k+"nt" in OPT else ("sc0 sc1 nt" if k+"sn" in OPT else "sc1"))
SLF = lf("ls"); TLF = lf("lt")
OSF = " sc1" if "nool" not in OPT else (" nt" if "ont" in OPT else (" sc0 sc1" if "osys" in OPT else ""))
Y4 = "y4" in OPT
UO = "uo" in OPT
a = Asm()
def srd(d, base, size):
    a(f"s_mov_b32 s{d}, s{base}"); a(f"s_mov_b32 s{d+1}, s{base+1}")
    a(f"s_mov_b32 s{d+2}, {hx(size)}"); a(f"s_mov_b32 s{d+3}, 0x00020000")
NST = 14
AMX = optint("amx", -1)
def ts(k):
    if ST:
        a(f"s_memrealtime s[{60+2*k}:{61+2*k}]")
        a("s_waitcnt lgkmcnt(0)")
def amx_post(vt):
    if AMX < 0: return
    a("s_load_dwordx2 s[4:5], s[0:1], 64")
    a("s_waitcnt lgkmcnt(0)")
    a("s_mov_b32 s6, 256"); a("s_mov_b32 s7, 0x00020000")
    a(f"v_mov_b32 v{vt}, s{60+2*AMX}"); a("s_and_b32 s96, s2, 7"); a("s_lshl_b32 s96, s96, 2"); a(f"v_mov_b32 v{vt+1}, s96")
    a("s_cmp_eq_u32 s3, %d" % optint("aw", 0)); a("s_cselect_b32 exec_lo, 1, 0"); a("s_mov_b32 exec_hi, 0")
    a(f"buffer_atomic_umax v{vt}, v{vt+1}, s[4:7], 0 offen")
    a("s_mov_b64 exec, -1")
def stamp_end(vt):
    if not ST: return
    a("s_waitcnt vmcnt(0)")
    ts(NST - 1)
    for k in range(16): a(f"v_mov_b32 v{vt+k}, {'s%d' % (60+2*k) if k < NST else '0'}")
    a("s_lshl_b32 s96, s3, 6"); a("s_lshl_b32 s97, s2, 9"); a("s_add_u32 s96, s96, s97")
    a(f"s_add_u32 s96, s96, 0x3000000")
    a(f"v_mov_b32 v{vt+16}, 0")
    a("s_mov_b64 exec, 1")
    if AMX >= 0:
        a("s_lshl_b32 s96, s2, 3"); a("s_add_u32 s96, s96, s3"); a("s_cmp_lg_u32 s96, 72"); a("s_cbranch_scc1 L_end")
        a("s_load_dwordx2 s[4:5], s[0:1], 64")
        a("s_waitcnt lgkmcnt(0)")
        a("s_mov_b32 s6, 256"); a("s_mov_b32 s7, 0x00020000")
        a(f"buffer_load_dwordx4 {vr(vt,4)}, v{vt+16}, s[4:7], 0 offen sc1")
        a(f"buffer_load_dwordx4 {vr(vt+4,4)}, v{vt+16}, s[4:7], 0 offen offset:16 sc1")
        a("s_waitcnt vmcnt(0)")
        for k in range(1, 8): a(f"v_max_u32 v{vt}, v{vt}, v{vt+k}")
        a("s_nop 1")
        a(f"v_readfirstlane_b32 s4, v{vt}")
        a(f"s_sub_u32 s4, s4, s60"); a("s_mul_i32 s4, s4, 10"); a(f"s_add_u32 s4, s4, s{60+2*(NST-1)}")
        a.label("L_amp")
        a("s_memrealtime s[6:7]"); a("s_waitcnt lgkmcnt(0)")
        a("s_sub_u32 s5, s6, s4"); a("s_cmp_lt_i32 s5, 0"); a("s_cbranch_scc1 L_amp")
        return
    amp = optint("amp", -1)
    if amp >= 0:
        a("s_lshl_b32 s4, s2, 3"); a("s_add_u32 s4, s4, s3"); a("s_cmp_lg_u32 s4, %d" % (72 + optint("aw", 0))); a("s_cbranch_scc1 L_end")
        a(f"s_sub_u32 s4, s{60+2*amp}, s60"); a("s_mul_i32 s4, s4, 10"); a(f"s_add_u32 s4, s4, s{60+2*(NST-1)}")
        a.label("L_amp")
        a("s_memrealtime s[6:7]"); a("s_waitcnt lgkmcnt(0)")
        a("s_sub_u32 s5, s6, s4"); a("s_cmp_lt_i32 s5, 0"); a("s_cbranch_scc1 L_amp")
        return
    if "dbg" in OPT:
        a("s_load_dwordx2 s[4:5], s[0:1], 64")
        a("s_waitcnt lgkmcnt(0)")
        a("s_mov_b32 s6, 256"); a("s_mov_b32 s7, 0x00020000")
        a(f"v_not_b32 v{vt+14}, v{vt}")
        for k in range(15):
            a(f"buffer_atomic_umax v{vt+k}, v{vt+16}, s[4:7], 0 offen offset:{4*k}")
        return
    for q in range(4): a(f"buffer_store_dwordx4 {vr(vt+4*q,4)}, v{vt+16}, s[16:19], s96 offen offset:{16*q}")
def poll(lbl, vaddr, vtmp, soff, tag):
    a("s_mov_b32 s58, 0")
    a("s_mov_b32 exec_hi, 0")
    a.label(lbl)
    a(f"buffer_load_dword v{vtmp}, v{vaddr}, s[16:19], {soff} offen {PLF}")
    a("s_add_u32 s58, s58, 1")
    a("s_waitcnt vmcnt(0)")
    a(f"v_cmp_ne_u32 vcc, {tag}, v{vtmp}")
    a(f"s_cmp_gt_u32 s58, {SPIN_MAX}")
    a(f"s_cbranch_scc1 {lbl}_d")
    a("s_and_b64 exec, exec, vcc")
    a(f"s_cbranch_execz {lbl}_d")
    if SLEEP: a(f"s_sleep {SLEEP}")
    a(f"s_branch {lbl}")
    a.label(lbl + "_d")
    a("s_mov_b64 exec, -1")
def setflag(vtmp, soff, tag):
    a(f"v_mov_b32 v{vtmp}, {tag}"); a(f"v_lshlrev_b32 v{vtmp+1}, 2, v0")
    a("s_waitcnt vmcnt(0)")
    a("s_mov_b32 exec_hi, 0")
    a(f"buffer_store_dword v{vtmp}, v{vtmp+1}, s[16:19], {soff} offen {FSF}")
    a("s_mov_b32 exec_hi, -1")

a.label(NAME)
a.label("L_code_start")
a("s_cmp_ge_u32 s2, 256")
a("s_cbranch_scc1 L_end")
if ST:
    a("s_memrealtime s[60:61]")
    for k in range(1, NST): a(f"s_mov_b32 s{60+2*k}, 0")
a("s_load_dwordx4 s[4:7], s[0:1], 0")
a("s_load_dwordx2 s[20:21], s[0:1], 72")
a("s_load_dwordx2 s[28:29], s[0:1], 16")
a("s_load_dwordx8 s[88:95], s[0:1], 32")
a("s_getpc_b64 s[12:13]")
a("s_and_b32 s12, s12, 0xffffff00")
a("s_mov_b32 s14, L_code_end-L_code_start")
a("s_mov_b32 s15, 0x00020000")
a("v_lshlrev_b32 v6, 6, v0")
a("s_bfe_u32 s8, s2, 0x30003")
a("v_lshrrev_b32 v1, 6, v0")
a("v_cmp_eq_u32 vcc, s8, v1")
a("s_and_saveexec_b64 s[10:11], vcc")
a("s_cbranch_execz L_cp")
if "nocp" not in OPT: a("buffer_load_ubyte v5, v6, s[12:15], 0 offen")
a.label("L_cp")
a("s_mov_b64 exec, -1")
a("v_and_b32 v0, 63, v0")
a("v_readfirstlane_b32 s3, v1")
vl16 = 2; vn = 3; vL5 = 4; vE = 5
a(f"v_lshlrev_b32 v{vl16}, 4, v0")
a(f"v_and_b32 v{vn}, 31, v0")
a(f"v_lshrrev_b32 v{vL5}, 5, v0")
a("s_and_b32 s51, s3, 3")
a("s_lshl_b32 s22, s51, 9"); a("s_add_u32 s22, s22, s2"); a("s_lshl_b32 s22, s22, 11")
a("s_and_b32 s53, s2, 7"); a("s_lshl_b32 s53, s53, 5"); a("s_lshr_b32 s54, s2, 3"); a("s_add_u32 s53, s53, s54")
a("s_and_b32 s55, s2, 7"); a("s_mul_i32 s55, s55, 1026"); a("s_lshl_b32 s56, s54, 5"); a("s_add_u32 s55, s55, s56")
a("s_lshl_b32 s24, s51, 12")
a("s_lshl_b32 s57, s2, 10"); a(f"s_add_u32 s57, s57, {hx(F1_OFF)}")
a(f"s_mov_b32 s26, {hx(EP_OFF)}")
a("v_mov_b32 v7, 0")
a("s_add_u32 s30, s22, 0x80000")
a("s_cmp_ge_u32 s3, 4"); a("s_cselect_b32 s31, 0, -1")
a("s_mov_b32 m0, s24")
a("s_mov_b32 s10, 0x00400000"); a("s_mov_b32 s11, 0x00020000")
a("s_mov_b32 exec_lo, s31"); a("s_mov_b32 exec_hi, s31")
a("s_waitcnt lgkmcnt(0)")
a("s_mov_b32 s8, s4"); a("s_mov_b32 s9, s5")
a("s_cbranch_scc1 L_nox")
a(f"buffer_load_dwordx4 v{vl16}, s[8:11], s22 offen{NTX} lds")
a(f"buffer_load_dwordx4 v{vl16}, s[8:11], s22 offen offset:1024{NTX} lds")
a("s_add_u32 m0, s24, 2048")
a(f"buffer_load_dwordx4 v{vl16}, s[8:11], s30 offen{NTX} lds")
a(f"buffer_load_dwordx4 v{vl16}, s[8:11], s30 offen offset:1024{NTX} lds")
a.label("L_nox")
a("s_mov_b64 exec, -1")
srd(16, 20, WSZ)
a(f"buffer_load_dword v{vE}, v7, s[16:19], s26 offen sc1")
for arr, p_ in enumerate((6, 28, 88, 90)): srd(32 + 4 * arr, p_, WBYTES)
def tags():
    a(f"v_readfirstlane_b32 s48, v{vE}")
    a("s_mul_i32 s48, s48, 0x9E3779B1"); a("s_add_u32 s48, s48, 0x7F4A7C15")
    a("s_xor_b32 s49, s48, 0x5bd1e995")
def arr_srd():
    a("s_cmp_eq_u32 s51, 0"); a("s_cselect_b32 s12, s32, s36"); a("s_cselect_b32 s13, s33, s37")
    a("s_cmp_eq_u32 s51, 2"); a("s_cselect_b32 s12, s40, s12"); a("s_cselect_b32 s13, s41, s13")
    a("s_cmp_eq_u32 s51, 3"); a("s_cselect_b32 s12, s44, s12"); a("s_cselect_b32 s13, s45, s13")
    a(f"s_mov_b32 s14, {hx(WBYTES)}"); a("s_mov_b32 s15, 0x00020000")
V2 = VAlloc(5)
vg = V2(); vc = V2(); vF = V2()
SC = V2(16, 4)
vS = V2(); vw1 = V2(); vr1 = V2(); vT = V2(); vTr = V2(); vWr = V2(); vw2 = V2(); vr2 = V2()
WW = V2(32, 4); TB = V2(8, 4)
Fr = V2(4, 4); Fm = V2(4, 4); M2 = V2(16, 4); MT = V2(16, 4); D = V2(16, 4)
assert V2.n <= 128, V2.n
vW = D; vEa = 2
Wi = lambda arr, cc, i: WW + 16 * cc + 8 * (arr >> 1) + 2 * i + (arr & 1)
MX = SC
L_GW = L_W + 16384
def p2_addr():
    t = [SC + k for k in range(6)]
    a(f"v_lshrrev_b32 v{vg}, 4, v0"); a(f"v_and_b32 v{vc}, 15, v0")
    a(f"v_lshrrev_b32 v{t[0]}, 2, v0"); a(f"v_mul_u32_u24 v{vT}, {16*TSB}, v{t[0]}")
    a(f"v_and_b32 v{t[0]}, 3, v0"); a(f"v_lshl_add_u32 v{vT}, v{t[0]}, 4, v{vT}")
    a("s_lshl_b32 s27, s3, 11")
    a(f"s_mul_i32 s23, s3, {WR}"); a(f"s_add_u32 s23, s23, {L_W}")
    a(f"v_bfe_u32 v{t[0]}, v0, 1, 4"); a(f"v_and_b32 v{t[1]}, 1, v0"); a(f"v_lshl_add_u32 v{t[0]}, v{t[0]}, 4, v{t[1]}")
    a(f"v_lshlrev_b32 v{vF}, 10, v{t[0]}")
    a("s_lshl_b32 s28, s3, 8")
    a("s_and_b32 s8, s2, 7"); a("s_lshl_b32 s8, s8, 7"); a("s_add_u32 s8, s8, s27"); a(f"s_add_u32 s8, s8, {hx(F1_OFF)}")
    a(f"v_lshlrev_b32 v{t[0]}, 4, v{vc}")
    a(f"v_lshl_or_b32 v{t[1]}, v{vg}, 9, v{t[0]}")
    a(f"v_add_u32 v{vw1}, s27, v{t[1]}"); a(f"v_add_u32 v{vw2}, s23, v{t[1]}")
    a(f"v_lshl_or_b32 v{vr1}, v{vg}, 12, v{t[0]}"); a(f"v_add_u32 v{vr1}, s28, v{vr1}")
    a(f"v_mul_u32_u24 v{vr2}, {2*WR}, v{vg}"); a(f"s_add_u32 s29, s28, {L_W}"); a(f"v_add3_u32 v{vr2}, v{vr2}, v{t[0]}, s29")
    if "x4" not in OPT:
        if Y4:
            a(f"v_mul_u32_u24 v{vS}, {16*TSB}, v{vc}"); a(f"v_lshl_add_u32 v{vS}, v{vg}, 4, v{vS}")
        else:
            a(f"v_mul_u32_u24 v{vS}, {64*TSB}, v{vg}"); a(f"v_lshl_add_u32 v{vS}, v{vc}, 2, v{vS}")
    else:
        a(f"v_lshlrev_b32 v{t[0]}, 4, v{vg}"); a(f"v_lshl_or_b32 v{vS}, v{vc}, 11, v{t[0]}")
def p2_item():
    t = [SC + k for k in range(6)]
    a(f"s_mul_i32 s24, s3, {2*TSB}"); a("s_lshl_b32 s26, s53, 6"); a("s_add_u32 s24, s24, s26")
    a(f"s_add_u32 s26, s24, {TSB}")
    a(f"v_lshlrev_b32 v{t[0]}, 2, v{vc}"); a(f"v_lshl_or_b32 v{vTr}, v{vg}, 8, v{t[0]}"); a(f"v_add_u32 v{vTr}, s27, v{vTr}")
    a("s_and_b32 s29, s55, 15"); a("s_add_u32 s29, s29, s23")
    a(f"v_mul_u32_u24 v{vWr}, 192, v{vg}"); a(f"v_lshl_add_u32 v{vWr}, v{vc}, 1, v{vWr}"); a(f"v_add_u32 v{vWr}, s29, v{vWr}")
    a("s_lshl_b32 s30, s53, 15"); a("s_add_u32 s30, s30, s28"); a(f"s_add_u32 s30, s30, {hx(S_OFF)}"); a("s_add_u32 s31, s30, 4096")
    a("s_lshl_b32 s9, s53, 10"); a("s_lshl_b32 s10, s3, 7"); a("s_add_u32 s9, s9, s10"); a(f"s_add_u32 s9, s9, {hx(F2_OFF)}")
    a(f"s_mul_i32 s50, s3, {2*TSB}"); a("s_and_b32 s29, s2, 7"); a("s_lshl_b32 s29, s29, 4"); a("s_add_u32 s50, s50, s29"); a("s_add_u32 s50, s50, 16384")
    a("s_cmp_eq_u32 s54, 0"); a("s_cselect_b32 s52, 0x00010001, 0")
    a(f"v_bfe_u32 v{t[0]}, v0, 4, 1"); a(f"v_lshl_add_u32 v{t[0]}, v{vc}, 4, v{t[0]}"); a(f"v_mul_u32_u24 v{vEa}, {TSB}, v{t[0]}")
    a("s_cselect_b32 s59, -1, 0")
def p2_const(dozero=True, hooks=()):
    hooks = list(hooks)
    def hook():
        if hooks: hooks.pop(0)()
    t = [SC + k for k in range(6)]
    vlf = SC + 6; vkf = SC + 7; vc0 = SC + 8; vlc = SC + 10; FA = SC + 12
    a(f"v_cvt_f32_u32 v{vlf}, v{vc}")
    a(f"v_cvt_f32_u32 v{vkf}, v{vg}"); a(f"v_mul_f32 v{vkf}, 4.0, v{vkf}")
    a(f"v_cvt_f32_u32 v{vc0}, s3"); a(f"v_mul_f32 v{vc0}, {fl(1/128)}, v{vc0}")
    a(f"v_mul_f32 v{vlc}, v{vlf}, v{vc0}")
    a(f"v_fmamk_f32 v{vlc+1}, v{vlf}, {hx(f2u(1/256))}, v{vlc}")
    a(f"v_mul_f32 v{vlf}, {fl(1/16)}, v{vlf}")
    z = iter(range(32))
    def zero(n):
        if not dozero:
            if n == 1: a("s_nop 0")
            return
        for _ in range(n):
            k = next(z, None)
            if k is not None: a(f"v_mov_b32 v{WW+k}, 0")
    def mat(ang):
        a(f"v_cos_f32 v{t[3]}, v{ang}"); a(f"v_sin_f32 v{t[4]}, v{ang}")
    def matfin(Mr, Mm):
        a(f"v_cvt_pk_bf16_f32 v{Mr}, v{t[3]}, v{t[4]}")
        a(f"v_cvt_pk_bf16_f32 v{Mm}, -v{t[4]}, v{t[3]}")
        hook()
    hook(); hook()
    for i in range(4):
        if i: a(f"v_add_f32 v{vkf}, 1.0, v{vkf}")
        a(f"v_mul_f32 v{FA+i}, v{vkf}, v{vlf}")
        mat(FA + i); zero(1); matfin(Fr + i, Fm + i)
    for i in range(3, -1, -1):
        a(f"v_fma_f32 v{t[0]}, v{vkf}, v{vc0}, v{FA+i}")
        a(f"v_fmamk_f32 v{t[1]}, v{vkf}, {hx(f2u(1/256))}, v{t[0]}")
        mat(t[0]); a(f"v_add_f32 v{t[2]}, v{FA+i}, v{vlc}"); matfin(M2 + i, M2 + 4 + i)
        mat(t[1]); a(f"v_add_f32 v{t[5]}, v{FA+i}, v{vlc+1}"); matfin(M2 + 8 + i, M2 + 12 + i)
        mat(t[2]); a(f"v_subrev_f32 v{vkf}, 1.0, v{vkf}"); matfin(MT + i, MT + 4 + i)
        mat(t[5]); zero(1); matfin(MT + 8 + i, MT + 12 + i)
    zero(32)
    a(f"v_add_f32 v{vc0}, {fl(1/128)}, v{vc0}")
    a(f"v_mov_b32 v{SC+9}, v{vkf}")
    for i in range(4):
        a(f"v_add_f32 v{SC+9}, 1.0, v{SC+9}")
        a(f"v_fma_f32 v{FA+i}, v{SC+9}, v{vc0}, v{FA+i}")
    for i in range(4):
        a(f"v_cos_f32 v{SC+10}, v{FA+i}"); a(f"v_sin_f32 v{SC+11}, v{FA+i}"); a("s_nop 0")
        a(f"v_cvt_pk_bf16_f32 v{MX+i}, v{SC+10}, v{SC+11}")
        a(f"v_cvt_pk_bf16_f32 v{MX+4+i}, -v{SC+11}, v{SC+10}")
def wvoff(dst, t0, t1):
    a(f"v_mul_u32_u24 v{t0}, 43, v0"); a(f"v_lshrrev_b32 v{t0}, 7, v{t0}")
    a(f"v_mul_u32_u24 v{t1}, 3, v{t0}"); a(f"v_sub_u32 v{t1}, v0, v{t1}")
    a(f"v_mul_u32_u24 v{dst}, {16*8*1026}, v{t0}"); a(f"v_lshl_add_u32 v{dst}, v{t1}, 4, v{dst}")
def wdma_list(vreg, adds, ccs=(0, 1)):
    ops = []
    for add in adds:
        def head(add=add):
            a(f"s_add_u32 s6, s3, {add}")
            a(f"s_mul_i32 s4, s6, {2*8*1026}"); a("s_add_u32 s4, s4, s55"); a("s_and_b32 s4, s4, 0xfffffff0")
            a(f"s_add_u32 s5, s4, {8*1026}")
            a(f"s_mul_i32 s6, s6, {WR}")
        for arr in range(4):
            for cc in ccs:
                def op(arr=arr, cc=cc, head=head):
                    if arr == 0 and cc == ccs[0]: head()
                    a("s_mov_b32 exec_hi, 0xffff")
                    a(f"s_add_u32 m0, s6, {L_W + 1536*arr + 768*cc}")
                    a(f"buffer_load_dwordx4 v{vreg}, {sr(32+4*arr,4)}, {'s4' if cc == 0 else 's5'} offen lds")
                    a("s_mov_b32 exec_hi, -1")
                ops.append(op)
    return ops
a(f"s_mov_b32 s56, {8*1026}")
a("s_cmp_ge_u32 s3, 4")
a("s_cbranch_scc1 L_h")
a("s_setprio 2")
V = VAlloc(6)
vb = V(); vo = V(); vkn = V(); vtr = V(); vpf = V(); vj = V(); vpw = V(4); t = [V() for _ in range(6)]
arr_srd()
a(f"v_and_b32 v{t[0]}, 7, v0"); a("s_lshl_b32 s30, s2, 3"); a(f"v_add_u32 v{t[0]}, s30, v{t[0]}")
a(f"v_bfe_i32 v{t[1]}, v0, 4, 1"); a(f"v_xor_b32 v{t[0]}, v{t[0]}, v{t[1]}"); a(f"v_sub_u32 v{t[0]}, v{t[0]}, v{t[1]}")
a(f"v_and_b32 v{t[0]}, 2047, v{t[0]}"); a(f"v_mul_u32_u24 v{t[2]}, 1026, v{t[0]}")
a(f"v_bfe_u32 v{t[1]}, v0, 3, 1"); a(f"v_lshl_add_u32 v{t[2]}, v{t[1]}, 10, v{t[2]}")
a(f"buffer_load_ushort v{vj}, v{t[2]}, s[12:15], 0 offen")
a("s_and_b32 s30, s2, 7"); a("s_lshl_b32 s31, s54, 6"); a("s_add_u32 s30, s30, s31"); a("s_mul_i32 s30, s30, 1026")
a(f"v_lshrrev_b32 v{t[0]}, 3, v0"); a(f"v_mul_u32_u24 v{t[2]}, {8*1026}, v{t[0]}")
a(f"v_and_b32 v{t[1]}, 7, v0"); a(f"v_lshl_add_u32 v{vpf}, v{t[1]}, 7, v{t[2]}")
vjunk = 1
def prefetch():
    a(f"buffer_load_ubyte v{vjunk}, v{vpf}, s[12:15], s30 offen{NTW}")
    a(f"buffer_load_ubyte v{vjunk}, v{vpt}, s[12:15], s30 offen offset:1024{NTW}")
NPF = 2
vpt = V()
a(f"v_and_b32 v{t[1]}, 1, v0"); a(f"v_lshl_add_u32 v{vpt}, v{t[1]}, 4, v{t[2]}")
if PFAT == 0: prefetch()
CC = V(8, 4); SS = V(8, 4); SN = V(8, 4); XR = V(8, 4); XI = V(8, 4)
BA = V(24, 4); BB = V(24, 4); TCh = V(8); TSh = V(8)
D1r = BA + 8; D1i = BB + 8; D2r = BA; D2i = BB
TC = lambda k: BA + k if k < 8 else TCh + k - 8
TS_ = lambda k: BB + k if k < 8 else TSh + k - 8
assert V.n <= 128, V.n
a(f"v_and_b32 v{t[0]}, 7, v0"); a(f"v_bfe_u32 v{t[1]}, v0, 3, 2")
a(f"v_lshl_or_b32 v{vkn}, v{t[0]}, 2, v{t[1]}")
a(f"v_cvt_f32_u32 v{vb}, v{vkn}"); a(f"v_cvt_f32_u32 v{vo}, v{vL5}")
a(f"v_mul_f32 v{vb}, {fl(1/32)}, v{vb}"); a(f"v_mul_f32 v{vo}, 4.0, v{vo}"); a(f"v_mul_f32 v{vo}, v{vb}, v{vo}")
for i in range(0, 16, 2):
    for e in range(2):
        kc = 8 * ((i + e) // 4) + (i + e) % 4
        if kc == 0: a(f"v_mov_b32 v{t[e]}, v{vo}")
        else: a(f"v_fmamk_f32 v{t[e]}, v{vb}, {hx(f2u(float(kc)))}, v{vo}")
    a(f"v_cos_f32 v{t[2]}, v{t[0]}"); a(f"v_cos_f32 v{t[3]}, v{t[1]}")
    a(f"v_sin_f32 v{t[4]}, v{t[0]}"); a(f"v_sin_f32 v{t[5]}, v{t[1]}")
    a(f"v_mul_f32 v{t[0]}, {fl(1/32)}, v{t[0]}"); a(f"v_mul_f32 v{t[1]}, {fl(1/32)}, v{t[1]}")
    a(f"v_cvt_pk_bf16_f32 v{CC+i//2}, v{t[2]}, v{t[3]}")
    a(f"v_cvt_pk_bf16_f32 v{SS+i//2}, v{t[4]}, v{t[5]}")
    a(f"v_cvt_pk_bf16_f32 v{SN+i//2}, -v{t[4]}, -v{t[5]}")
    a(f"v_cos_f32 v{TC(i)}, v{t[0]}"); a(f"v_cos_f32 v{TC(i+1)}, v{t[1]}")
    a(f"v_sin_f32 v{TS_(i)}, v{t[0]}"); a(f"v_sin_f32 v{TS_(i+1)}, v{t[1]}")
    if PFAT == i // 2 + 1: prefetch()
a(f"v_lshlrev_b32 v{vtr}, 8, v{vL5}")
a(f"v_bfe_u32 v{t[0]}, v0, 2, 2"); a(f"v_lshl_or_b32 v{vtr}, v{t[0]}, 6, v{vtr}")
a(f"v_bfe_u32 v{t[0]}, v0, 4, 1"); a(f"v_lshl_or_b32 v{vtr}, v{t[0]}, 5, v{vtr}")
a(f"v_and_b32 v{t[0]}, 3, v0"); a(f"v_lshl_or_b32 v{vtr}, v{t[0]}, 3, v{vtr}")
a(f"v_add_u32 v{vtr}, s24, v{vtr}")
a(f"v_and_b32 v{t[0]}, 7, v0"); a(f"v_bfe_u32 v{t[1]}, v0, 3, 2"); a(f"v_lshlrev_b32 v{t[1]}, 1, v{t[1]}")
a(f"v_xor_b32 v{t[0]}, v{t[0]}, v{t[1]}"); a(f"v_xor_b32 v{t[0]}, v{t[0]}, v{vL5}")
a(f"v_lshlrev_b32 v{t[0]}, 4, v{t[0]}")
a(f"v_lshl_or_b32 v{vpw}, v{vkn}, 7, v{t[0]}")
a(f"s_add_u32 s26, s24, {L_P}")
a(f"v_add_u32 v{vpw}, s26, v{vpw}")
for c in range(1, 4): a(f"v_xor_b32 v{vpw+c}, {32*c}, v{vpw}")
vet = vb
a(f"v_and_b32 v{t[0]}, 7, v0"); a(f"v_and_b32 v{t[1]}, 16, v0"); a(f"v_lshl_or_b32 v{t[0]}, v{t[0]}, 1, v{t[1]}")
a(f"v_bfe_u32 v{t[1]}, v0, 3, 1"); a(f"v_lshl_or_b32 v{t[0]}, v{t[1]}, 7, v{t[0]}")
a("s_lshl_b32 s30, s51, 5"); a(f"s_add_u32 s30, s30, {L_N}"); a(f"v_add_u32 v{vet}, s30, v{t[0]}")
ts(1)
a(f"s_waitcnt vmcnt({1 + (NPF if PFAT <= 8 else 0)})")
ts(2)
tags()
for h in range(2):
    for r, X in ((0, XR), (1, XI)):
        for tt in range(2):
            a(f"ds_read_b64_tr_b16 {vr(X+4*h+2*tt,2)}, v{vtr} offset:{r*2048+h*1024+tt*512}")
def cpass(R, I, Dr, Di, h, first):
    c0 = "0" if first else vr(Dr, 16); c1 = "0" if first else vr(Di, 16)
    a(f"{M32} {vr(Dr,16)}, {vr(R+4*h,4)}, {vr(CC+4*h,4)}, {c0}")
    a(f"{M32} {vr(Di,16)}, {vr(I+4*h,4)}, {vr(CC+4*h,4)}, {c1}")
    a(f"{M32} {vr(Dr,16)}, {vr(I+4*h,4)}, {vr(SS+4*h,4)}, {vr(Dr,16)}")
    a(f"{M32} {vr(Di,16)}, {vr(R+4*h,4)}, {vr(SN+4*h,4)}, {vr(Di,16)}")
a("s_waitcnt lgkmcnt(4)")
cpass(XR, XI, D1r, D1i, 0, True)
a("s_waitcnt lgkmcnt(0)")
cpass(XR, XI, D1r, D1i, 1, False)
def cp_list(R, I, Dr, Di, h, first):
    c0 = "0" if first else vr(Dr, 16); c1 = "0" if first else vr(Di, 16)
    return [f"{M32} {vr(Dr,16)}, {vr(R+4*h,4)}, {vr(CC+4*h,4)}, {c0}",
            f"{M32} {vr(Di,16)}, {vr(I+4*h,4)}, {vr(CC+4*h,4)}, {c1}",
            f"{M32} {vr(Dr,16)}, {vr(I+4*h,4)}, {vr(SS+4*h,4)}, {vr(Dr,16)}",
            f"{M32} {vr(Di,16)}, {vr(R+4*h,4)}, {vr(SN+4*h,4)}, {vr(Di,16)}"]
pend = []
for h in range(2):
    for i in range(8 * h, 8 * h + 8, 2):
        if pend: a(pend.pop(0))
        for e in range(2):
            k = i + e
            a(f"v_mul_f32 v{t[e]}, v{D1r+k}, v{TC(k)}")
            a(f"v_mul_f32 v{t[2+e]}, v{D1i+k}, v{TC(k)}")
            a(f"v_fmac_f32 v{t[e]}, v{D1i+k}, v{TS_(k)}")
            a(f"v_fma_f32 v{t[2+e]}, -v{D1r+k}, v{TS_(k)}, v{t[2+e]}")
        a(f"v_cvt_pk_bf16_f32 v{XR+i//2}, v{t[0]}, v{t[1]}")
        a(f"v_cvt_pk_bf16_f32 v{XI+i//2}, v{t[2]}, v{t[3]}")
    pend = cp_list(XR, XI, D2r, D2i, h, h == 0)
for m_ in pend: a(m_)
a(f"s_waitcnt vmcnt({NPF if PFAT <= 8 else 0})")
a(f"ds_write_b16 v{vet}, v{vj}")
PK = CC
for c in range(4):
    for e in range(4):
        a(f"v_cvt_pk_bf16_f32 v{PK+4*c+e}, v{D2r+4*c+e}, v{D2i+4*c+e}")
    a(f"ds_write_b128 v{vpw+c}, {vr(PK+4*c,4)}")
a("s_waitcnt lgkmcnt(0)")
ts(3)
a("s_barrier")
a("s_setprio 0")
p2_addr()
p2_item()
wvoff(vW, SC, SC + 1)
ts(4)
a("s_barrier")
ts(5)
EARLY = "early" in OPT
SPLIT = "split" in OPT
E1 = "e1" in OPT or "e2" in OPT
p2_const(hooks=wdma_list(vW, [0] if E1 else [0, 4], (0,) if SPLIT else (0, 1)))
ts(6)
a("s_branch L_p2")
a.label("L_h")
a.hist = []
V = VAlloc(6)
t = [V() for _ in range(8)]
XN = V(16, 4); GW = V(8, 4)
srd(8, 92, 2048)
a(f"buffer_load_dwordx4 {vr(GW,4)}, v{vl16}, s[8:11], 0 offen")
a(f"buffer_load_dwordx4 {vr(GW+4,4)}, v{vl16}, s[8:11], 0 offen offset:1024")
if "e2" in OPT:
    wvoff(XN, t[0], t[1])
    for op in wdma_list(XN, [0]): op()
def prewrite():
    if "pw" in OPT or "pws" in OPT:
        a(f"v_lshlrev_b32 v{t[0]}, 7, v0")
        a("s_lshl_b32 s30, s53, 15"); a("s_lshl_b32 s31, s51, 13"); a("s_add_u32 s30, s30, s31"); a(f"s_add_u32 s30, s30, {hx(S_OFF)}")
    if "pw" in OPT or "pwt" in OPT:
        a(f"v_and_b32 v{t[1]}, 3, v0"); a(f"v_lshlrev_b32 v{t[1]}, 7, v{t[1]}"); a(f"v_bfe_u32 v{t[2]}, v0, 2, 3"); a(f"v_lshl_or_b32 v{t[1]}, v{t[2]}, 11, v{t[1]}")
        a(f"s_mul_i32 s31, s2, {TSB}"); a("s_lshl_b32 s29, s51, 9"); a("s_add_u32 s31, s31, s29")
        a("s_mov_b32 exec_hi, 0")
        a(f"buffer_store_dword v{t[1]}, v{t[1]}, s[16:19], s31 offen sc1")
        a("s_mov_b32 exec_hi, -1")
    if "pw" in OPT or "pws" in OPT:
        a(f"buffer_store_dword v{t[0]}, v{t[0]}, s[16:19], s30 offen sc1")
NPW = 2 if "pw" in OPT else (1 if ("pws" in OPT or "pwt" in OPT) else 0)
if "pwl" not in OPT: prewrite()
vnat = V(); a(f"v_add_u32 v{vnat}, s24, v{vl16}")
MA = V(4, 4)
DMB = V(48, 4)
vu = DMB; vA = DMB + 1; vB1 = DMB + 2; vB2 = DMB + 3; vsg = DMB + 4
a(f"v_mov_b32 v{t[3]}, {L_C}"); a(f"v_mov_b32 v{t[4]}, 0")
a(f"ds_write_b32 v{t[3]}, v{t[4]}")
a(f"v_bfe_u32 v{t[0]}, v0, 3, 1"); a(f"v_bfe_u32 v{t[1]}, v0, 1, 1")
a(f"v_lshl_or_b32 v{t[0]}, v{t[0]}, 1, v{t[1]}")
a(f"v_and_or_b32 v{vu}, v0, 4, v{t[0]}")
a(f"v_cvt_f32_u32 v{vu}, v{vu}")
a(f"v_cvt_f32_u32 v{vsg}, v{vL5}")
a(f"v_fma_f32 v{vsg}, v{vsg}, -2.0, 1.0")
a(f"v_mul_f32 v{vA}, v{vu}, v{vsg}")
a(f"v_mul_f32 v{vA}, {fl(0.125)}, v{vA}")
a(f"v_and_b32 v{t[0]}, 1, v0"); a(f"v_cvt_f32_u32 v{t[0]}, v{t[0]}")
a(f"v_mul_f32 v{vB1}, v{t[0]}, v{vsg}"); a(f"v_mul_f32 v{vB1}, {fl(0.25)}, v{vB1}")
a(f"v_cvt_f32_u32 v{t[1]}, s2"); a(f"v_mul_f32 v{t[1]}, {fl(1/256)}, v{t[1]}")
a(f"v_fmac_f32 v{vB1}, v{t[1]}, v{vA}")
a(f"v_add_f32 v{vB2}, {fl(0.25)}, v{vB1}")
for pp in range(4):
    if pp == 0: a(f"v_mov_b32 v{t[0]}, v{vB1}")
    else: a(f"v_fmamk_f32 v{t[0]}, v{vA}, {hx(f2u(2.0*pp))}, v{vB1}")
    a(f"v_fmamk_f32 v{t[1]}, v{vA}, {hx(f2u(2.0*pp+1))}, v{vB2}")
    a(f"v_cos_f32 v{t[2]}, v{t[0]}"); a(f"v_cos_f32 v{t[3]}, v{t[1]}")
    a(f"v_sin_f32 v{t[4]}, v{t[0]}"); a(f"v_sin_f32 v{t[5]}, v{t[1]}")
    a(f"v_add_f32 v{t[2]}, v{t[2]}, v{t[3]}")
    a(f"v_add_f32 v{t[4]}, v{t[4]}, v{t[5]}")
    a(f"v_cvt_pk_bf16_f32 v{MA+pp}, v{t[2]}, v{t[4]}")
vmr = V(5); vk = DMB + 5; vneg = DMB + 6
a("s_lshl_b32 s30, s51, 7")
a(f"v_lshlrev_b32 v{t[0]}, 2, v{vn}")
a(f"v_sub_u32 v{vneg}, 0, v{vL5}")
for q in range(5):
    if q < 4: a(f"v_add3_u32 v{vk}, v{t[0]}, s30, {q}")
    else: a(f"v_add_u32 v{vk}, 512, v{t[0]}")
    a(f"v_xor_b32 v{vk}, v{vk}, v{vneg}"); a(f"v_add_u32 v{vk}, v{vk}, v{vL5}")
    a(f"v_bfe_u32 v{t[1]}, v{vk}, 5, 5")
    a(f"v_bfe_u32 v{t[2]}, v{vk}, 7, 3")
    a(f"v_xor_b32 v{t[3]}, v{vk}, v{t[1]}")
    a(f"v_and_b32 v{t[3]}, 3, v{t[3]}")
    a(f"v_bfe_u32 v{t[4]}, v{vk}, 4, 1")
    a(f"v_lshl_or_b32 v{t[3]}, v{t[3]}, 1, v{t[4]}")
    a(f"v_xor_b32 v{t[3]}, v{t[3]}, v{t[2]}")
    a(f"v_and_b32 v{t[4]}, 12, v{vk}")
    a(f"v_lshl_or_b32 v{t[4]}, v{t[3]}, 4, v{t[4]}")
    a(f"v_lshl_or_b32 v{vmr+q}, v{t[1]}, 7, v{t[4]}")
vts = V(); veo = V(); vet2 = V(); vsig = V(); ves = V()
a(f"v_lshlrev_b32 v{t[0]}, 13, v{vL5}"); a(f"v_lshl_or_b32 v{vts}, v{vn}, 4, v{t[0]}")
EV = V(10, 2)
a(f"v_and_b32 v{t[0]}, 7, v0"); a(f"v_bfe_u32 v{t[1]}, v0, 3, 1")
a(f"v_lshlrev_b32 v{t[2]}, 3, v{t[1]}"); a(f"v_lshl_or_b32 v{ves}, v{t[0]}, 4, v{t[2]}")
a(f"v_and_b32 v{t[2]}, 3, v0"); a(f"v_cmp_eq_u32 vcc, 0, v{t[2]}")
a(f"v_lshrrev_b32 v{t[3]}, 2, v{t[0]}")
a(f"v_cvt_f32_u32 v{t[4]}, v{t[1]}"); a(f"v_fma_f32 v{t[4]}, v{t[4]}, -2.0, 1.0")
a(f"v_cndmask_b32 v{t[3]}, v{t[3]}, v{t[1]}, vcc")
a(f"v_cndmask_b32 v{vsig}, 0, v{t[4]}, vcc")
a(f"v_lshlrev_b32 v{t[0]}, 1, v{t[0]}"); a(f"v_lshl_or_b32 v{t[0]}, v{t[1]}, 6, v{t[0]}"); a(f"v_lshl_or_b32 v{t[0]}, v{t[3]}, 7, v{t[0]}")
a(f"v_add_u32 v{veo}, {L_N}, v{t[0]}"); a(f"v_xor_b32 v{vet2}, 64, v{veo}")
for k in range(8): a(f"v_mov_b32 v{EV+k}, 0")
a(f"s_mul_i32 s8, s2, {TSB}")
a("s_lshl_b32 s9, s51, 9"); a("s_add_u32 s9, s9, s8"); a("s_add_u32 s10, s9, 4096")
a("s_add_u32 s8, s8, 16384")
a("s_mov_b32 s11, 0xffff0000")
acc = V(4, 4); MB4 = V(4, 4); ones = V(); MB = XN
a(f"v_mov_b32 v{ones}, 0x3f803f80")
a(f"v_mov_b32 v{acc}, 0"); a(f"v_mov_b32 v{acc+2}, 0")
sys.stderr.write(f"helper regs {V.n}\n")
assert V.n <= 128, V.n
a("s_waitcnt lgkmcnt(0)")
if "pwl" in OPT: prewrite()
ts(1)
a(f"s_waitcnt vmcnt({10 if 'e2' in OPT else 2}) lgkmcnt(0)")
tags()
a("s_cmp_eq_u32 s51, 1")
if "nopw" not in OPT:
    a("s_cselect_b32 exec_lo, -1, 0"); a("s_cselect_b32 exec_hi, -1, 0")
    for k in range(4): a(f"v_mov_b32 v{DMB+k}, s49")
    a(f"buffer_store_dwordx4 {vr(DMB,4)}, v{vl16}, s[16:19], s57 offen sc1")
a("s_mov_b64 exec, -1")
def ecompute():
    a(f"v_add_f32 v{EV+8}, v{EV}, v{EV+1}"); a(f"v_sub_f32 v{EV+9}, v{EV+2}, v{EV+3}")
    a(f"v_add_f32 v{EV+4}, v{EV+4}, v{EV+5}"); a(f"v_sub_f32 v{EV+6}, v{EV+6}, v{EV+7}")
    a(f"v_fma_f32 v{EV+8}, -v{vsig}, v{EV+6}, v{EV+8}"); a(f"v_fmac_f32 v{EV+9}, v{vsig}, v{EV+4}")
    a("s_cmp_eq_u32 s51, 1"); a("s_cselect_b32 exec_lo, 0xffff, 0"); a("s_mov_b32 exec_hi, 0")
    a(f"buffer_store_dwordx2 {vr(EV+8,2)}, v{ves}, s[16:19], s8 offen sc1")
    a("s_mov_b64 exec, -1")
def gate_main():
    for j in range(8):
        a(f"v_lshlrev_b32 v{t[6]}, 16, v{GW+j}")
        a(f"v_and_b32 v{t[7]}, s11, v{GW+j}")
        for r in range(2):
            a(f"v_lshlrev_b32 v{t[2*r]}, 16, v{XN+8*r+j}")
            a(f"v_and_b32 v{t[2*r+1]}, s11, v{XN+8*r+j}")
        for r in range(2):
            a(f"v_mul_f32 v{t[2*r]}, v{t[2*r]}, v{t[6]}")
            a(f"v_mul_f32 v{t[2*r+1]}, v{t[2*r+1]}, v{t[7]}")
        for r in range(2): a(f"v_cvt_pk_bf16_f32 v{t[4+r]}, v{t[2*r]}, v{t[2*r+1]}")
        for r in range(2): a(f"v_dot2_f32_bf16 v{acc+2*r}, v{t[4+r]}, v{ones}, v{acc+2*r}")
if "e1" in OPT:
    wvoff(DMB + 8, t[0], t[1])
    for op in wdma_list(DMB + 8, [0]): op()
ts(3)
a("s_setprio 2")
a("s_barrier")
ts(4)
o = L_P // 256
a(f"ds_read2st64_b32 {vr(MB4,2)}, v{vmr+4} offset0:{o} offset1:{o+16}")
a(f"ds_read2st64_b32 {vr(MB4+2,2)}, v{vmr+4} offset0:{o+32} offset1:{o+48}")
for q in range(4):
    a(f"ds_read2st64_b32 {vr(MB+4*q,2)}, v{vmr+q} offset0:{o} offset1:{o+16}")
    a(f"ds_read2st64_b32 {vr(MB+4*q+2,2)}, v{vmr+q} offset0:{o+32} offset1:{o+48}")
for k in range(4):
    a(f"ds_read_u16_d16_hi v{EV+k}, v{veo} offset:{16*k}")
    a(f"ds_read_u16_d16_hi v{EV+4+k}, v{vet2} offset:{16*k}")
DN = DMB; DM = [DMB + 8 + 8 * q for q in range(4)]
a("s_waitcnt lgkmcnt(15)")
a(f"{M32} {vr(DN,16)}, {vr(MA,4)}, {vr(MB4,4)}, 0")
for q in range(4):
    a(f"s_waitcnt lgkmcnt({14-2*q})")
    a(f"{M32} {vr(DM[q],16)}, {vr(MA,4)}, {vr(MB+4*q,4)}, 0")
a("s_waitcnt lgkmcnt(0)")
ecompute()
a("s_cmp_eq_u32 s51, 0"); a("s_cselect_b32 exec_lo, 1, 0"); a("s_cselect_b32 exec_hi, 1, 0")
a(f"v_sub_f32 v{DM[0]}, v{DM[0]}, v{DN+1}"); a(f"v_add_f32 v{DM[0]+1}, v{DM[0]+1}, v{DN}")
a("s_mov_b32 exec_lo, 0")
for k in range(2, 8): a(f"v_mov_b32 v{DM[0]+k}, v{DN+k}")
a("s_mov_b64 exec, -1")
OUT = MB
for s_ in range(4):
    for q in range(4):
        a(f"v_cvt_pk_bf16_f32 v{OUT+4*s_+q}, v{DM[q]+2*s_}, v{DM[q]+2*s_+1}")
    a(f"buffer_store_dwordx4 {vr(OUT+4*s_,4)}, v{vts}, s[16:19], {'s9' if s_ < 2 else 's10'} offen offset:{(s_&1)*2048} sc1")
for r in range(2):
    for q in range(2):
        a(f"ds_read_b128 {vr(XN+8*r+4*q,4)}, v{vnat} offset:{r*2048+q*1024}")
a("s_waitcnt lgkmcnt(0)")
a("s_barrier")
ts(5)
a("s_waitcnt vmcnt(4)")
gate_main()
for dpp in ("row_shr:1", "row_shr:2", "row_shr:4", "row_shr:8"):
    for r in range(2):
        a(f"v_add_f32_dpp v{acc+2*r}, v{acc+2*r}, v{acc+2*r} {dpp} row_mask:0xf bank_mask:0xf bound_ctrl:0")
for dpp, rm in (("row_bcast:15", "0xa"), ("row_bcast:31", "0xc")):
    for r in range(2):
        a(f"v_add_f32_dpp v{acc+2*r}, v{acc+2*r}, v{acc+2*r} {dpp} row_mask:{rm} bank_mask:0xf")
a(f"v_cvt_pk_bf16_f32 v{t[0]}, v{acc}, v{acc+2}")
a(f"v_lshlrev_b32 v{t[1]}, 16, v{t[0]}")
a(f"v_and_b32 v{t[2]}, s11, v{t[0]}")
for r in range(2): a(f"v_mul_f32 v{t[1+r]}, {hx(f2u(-1.4426950408889634))}, v{t[1+r]}")
for r in range(2): a(f"v_exp_f32 v{t[1+r]}, v{t[1+r]}")
for r in range(2): a(f"v_add_f32 v{t[1+r]}, 1.0, v{t[1+r]}")
for r in range(2): a(f"v_rcp_f32 v{t[1+r]}, v{t[1+r]}")
a(f"v_cvt_pk_bf16_f32 v{t[0]}, v{t[1]}, v{t[2]}")
a(f"v_lshlrev_b32 v{acc}, 16, v{t[0]}")
a(f"v_and_b32 v{acc+2}, s11, v{t[0]}")
a(f"v_sub_f32 v{t[1]}, 1.0, v{acc}")
a(f"v_sub_f32 v{t[2]}, 1.0, v{acc+2}")
a(f"v_cvt_pk_bf16_f32 v{t[0]}, v{t[1]}, v{t[2]}")
a(f"v_lshlrev_b32 v{acc+1}, 16, v{t[0]}")
a(f"v_and_b32 v{acc+3}, s11, v{t[0]}")
for r in range(4): a(f"v_mul_f32 v{acc+r}, {hx(f2u(2.0**-22))}, v{acc+r}")
a("s_lshl_b32 s30, s51, 4"); a(f"s_add_u32 s30, s30, {L_G}")
a(f"v_mov_b32 v{t[3]}, s30")
a("s_mov_b32 exec_lo, 0"); a("s_mov_b32 exec_hi, 0x80000000")
a(f"ds_write_b128 v{t[3]}, {vr(acc,4)}")
a("s_mov_b64 exec, -1")
a(f"v_mov_b32 v{t[3]}, {L_C}"); a(f"v_mov_b32 v{t[4]}, 1")
for k in range(4): a(f"v_mov_b32 v{DMB+k}, s48")
a("s_mov_b64 exec, 1")
a("s_waitcnt vmcnt(0)")
a(f"ds_add_rtn_u32 v{t[5]}, v{t[3]}, v{t[4]}")
a("s_waitcnt lgkmcnt(0)")
a(f"v_readfirstlane_b32 s30, v{t[5]}")
a("s_cmp_eq_u32 s30, 3"); a("s_cselect_b32 exec_lo, -1, 0"); a("s_cselect_b32 exec_hi, -1, 0")
a(f"buffer_store_dwordx4 {vr(DMB,4)}, v{vl16}, s[16:19], s57 offen {FSF}")
a("s_mov_b64 exec, -1")
def stouch(vt):
    a(f"v_lshlrev_b32 v{vt}, 7, v0")
    a(f"s_mul_i32 s30, s2, {TSB}"); a("s_lshl_b32 s31, s51, 12"); a("s_add_u32 s30, s30, s31"); a(f"s_add_u32 s30, s30, {hx(U_OFF)}")
    a("s_mov_b32 exec_hi, 0")
    a(f"buffer_load_ubyte v1, v{vt}, s[16:19], s30 offen")
    a("s_mov_b32 exec_hi, -1")
if "pt1" in OPT: stouch(t[0])
a("s_setprio 0")
ts(6)
p2_addr(); p2_item(); wvoff(vW, SC, SC + 1); p2_const()
if optint("pa", 0): a(f"s_sleep {optint('pa', 0)}")
a.label("L_p2")
a.hist = []
t = [SC + k for k in range(6)]
if "pt7" in OPT:
    a("s_and_b32 s30, s54, 1"); a("s_cmp_eq_u32 s30, 0"); a("s_cselect_b32 s30, s24, s26"); a(f"s_add_u32 s30, s30, {hx(U_OFF)}")
    a("s_mov_b32 exec_lo, 0x11111111"); a("s_mov_b32 exec_hi, 0x11111111")
    a(f"buffer_load_ubyte v1, v{vT}, s[16:19], s30 offen")
    a("s_mov_b64 exec, -1")
if "ga" in OPT: a("s_barrier")
ts(7)
if "pw3" in OPT:
    a(f"v_lshrrev_b32 v{TB}, 2, v0"); a(f"v_and_b32 v{TB+1}, 3, v0"); a(f"v_lshlrev_b32 v{TB+1}, 6, v{TB+1}"); a(f"v_lshl_or_b32 v{TB+2}, v{TB}, 11, v{TB+1}")
    a(f"buffer_store_dword v{TB+2}, v{TB+2}, s[16:19], s30 offen sc1")
poll("L_poll1", vF, TB, "s8", "s48")
def f2pre():
    if "nopw" in OPT: return
    a(f"v_mov_b32 v{TB}, s48"); a(f"v_lshlrev_b32 v{TB+1}, 2, v0")
    a("s_mov_b32 exec_hi, 0")
    a(f"buffer_store_dword v{TB}, v{TB+1}, s[16:19], s9 offen sc1")
    a("s_mov_b32 exec_hi, -1")
ts(8)
if "st2" in OPT: a("s_add_u32 s70, s60, s58")
a.label("L_p2c")
a("s_setprio 1")
a("s_mov_b32 m0, s27")
a(f"buffer_load_dwordx4 v{vT}, s[16:19], s24 offen {TLF} lds")
a("s_add_u32 m0, s27, 1024")
a(f"buffer_load_dwordx4 v{vT}, s[16:19], s26 offen {TLF} lds")
PW2 = "pw2" in OPT or "pw3" in OPT
def pw2():
    a(f"v_lshrrev_b32 v{TB}, 2, v0"); a(f"v_and_b32 v{TB+1}, 3, v0"); a(f"v_lshlrev_b32 v{TB+1}, 6, v{TB+1}"); a(f"v_lshl_or_b32 v{TB}, v{TB}, 11, v{TB+1}")
    if "pwh" in OPT: a("s_mov_b32 exec_lo, 0x55555555"); a("s_mov_b32 exec_hi, 0x55555555")
    a(f"buffer_store_dword v{TB}, v{TB}, s[16:19], s30 offen sc1")
    if "pwh" in OPT: a("s_mov_b64 exec, -1")
if "pw2" in OPT: pw2()
if SPLIT:
    for op in wdma_list(vW, [0], (1,)): op()
def wread(cc):
    a("s_not_b32 exec_lo, s52"); a("s_not_b32 exec_hi, s52")
    for arr in range(4):
        for i in range(4):
            a(f"ds_read_u16_d16_hi v{Wi(arr,cc,i)}, v{vWr} offset:{1536*arr+768*cc+48*i}")
    a("s_mov_b64 exec, -1")
if UO:
    srd(12, 94, 2048 * 2048)
    a(f"v_lshlrev_b32 v{vF}, 2, v{vc}"); a(f"v_lshl_or_b32 v{vF}, v{vg}, 17, v{vF}")
    a("s_and_b32 s31, s2, 7"); a("s_lshl_b32 s31, s31, 19"); a("s_lshl_b32 s30, s3, 12"); a("s_add_u32 s31, s31, s30"); a("s_lshl_b32 s30, s54, 6"); a("s_add_u32 s31, s31, s30")
a("s_barrier")
if "ptw" in OPT:
    a(f"v_lshrrev_b32 v{TB}, 1, v0"); a(f"v_and_b32 v{TB+1}, 1, v0"); a(f"v_lshlrev_b32 v{TB+1}, 7, v{TB+1}"); a(f"v_lshl_or_b32 v{TB}, v{TB}, 11, v{TB+1}")
    a("s_mov_b32 exec_hi, 0")
    a(f"buffer_load_ubyte v1, v{TB}, s[16:19], s30 offen")
    a("s_mov_b32 exec_hi, -1")
wread(0)
if not SPLIT: wread(1)
PKD = SC + 8
a(f"s_waitcnt vmcnt({4 if SPLIT else (1 if ('pw2' in OPT or 'ptw' in OPT) else 0)})")
if ST: a("s_waitcnt lgkmcnt(0)")
ts(9)
def pt9():
    a("s_and_b32 s30, s54, 1"); a("s_cmp_eq_u32 s30, 0"); a("s_cselect_b32 s30, s24, s26"); a(f"s_add_u32 s30, s30, {hx(U_OFF)}")
    a("s_mov_b32 exec_lo, 0x11111111"); a("s_mov_b32 exec_hi, 0x11111111")
    a(f"buffer_load_ubyte v1, v{vT}, s[16:19], s30 offen")
    a("s_mov_b64 exec, -1")
a("s_lshl_b32 s25, s3, 9"); a(f"s_add_u32 s25, s25, {L_E}"); a("s_mov_b32 m0, s25")
a("s_mov_b32 exec_lo, s59"); a("s_mov_b32 exec_hi, 0")
a(f"buffer_load_dwordx4 v{vEa}, s[16:19], s50 offen sc1 lds")
a("s_mov_b64 exec, -1")
a(f"ds_read2_b32 {vr(TB,2)}, v{vTr} offset0:0 offset1:16")
a(f"ds_read2_b32 {vr(TB+2,2)}, v{vTr} offset0:32 offset1:48")
a(f"v_add_u32 v{vTr}, 1024, v{vTr}")
a(f"ds_read2_b32 {vr(TB+4,2)}, v{vTr} offset0:0 offset1:16")
a(f"ds_read2_b32 {vr(TB+6,2)}, v{vTr} offset0:32 offset1:48")
a.label("L_p2e")
for bb in range(2):
    a(f"s_waitcnt lgkmcnt({2-2*bb})")
    a(f"{M16} {vr(D+8*bb,4)}, {vr(Fr,4)}, {vr(TB+4*bb,4)}, 0")
    a(f"{M16} {vr(D+8*bb+4,4)}, {vr(Fm,4)}, {vr(TB+4*bb,4)}, 0")
for ip in range(2):
    for cc in range(2):
        for bb in range(2):
            i = 2 * ip + cc
            a(f"v_cvt_pk_bf16_f32 v{PKD+4*ip+2*cc+bb}, v{D+8*bb+i}, v{D+8*bb+4+i}")
    a(f"ds_write_b128 v{vw1}, {vr(PKD+4*ip,4)} offset:{ip*256}")
a("s_waitcnt lgkmcnt(0)")
f2pre()
a("s_barrier")
OB = TB
for cc in range(2):
    for h in range(2):
        a(f"ds_read_b64 {vr(OB+4*cc+2*h,2)}, v{vr1} offset:{h*2048+cc*8}")
X = D
for cc in range(2):
    a(f"s_waitcnt lgkmcnt({2-2*cc})")
    a(f"{M16} {vr(X+8*cc,4)}, {vr(M2+8*cc,4)}, {vr(OB+4*cc,4)}, 0")
    a(f"{M16} {vr(X+8*cc+4,4)}, {vr(M2+8*cc+4,4)}, {vr(OB+4*cc,4)}, 0")
YO = [PKD, PKD + 4, PKD, PKD + 4]
tpr = [(vT, vTr), (vr1, vw1)]
if SPLIT:
    a(f"s_waitcnt vmcnt({0 if 'nopw' in OPT else 1})")
    wread(1)
def dpt(cc, ab, ri): return WW + 16 * cc + 8 * ab + 4 * ri
def wmul(cc, ab):
    n = 2 * cc + ab
    xr = X + 8 * cc; xi = X + 8 * cc + 4
    for i in range(4):
        wr = Wi(2 * ab, cc, i); wi = Wi(2 * ab + 1, cc, i)
        y0, y1 = tpr[i & 1]
        a(f"v_mul_f32 v{y0}, v{xr+i}, v{wr}")
        a(f"v_mul_f32 v{y1}, v{xi+i}, v{wr}")
        a(f"v_fma_f32 v{y0}, -v{xi+i}, v{wi}, v{y0}")
        a(f"v_fmac_f32 v{y1}, v{xr+i}, v{wi}")
        a(f"v_cvt_pk_bf16_f32 v{YO[n]+i}, v{y1}, v{y0}")
    a(f"{M16} {vr(dpt(cc,ab,0),4)}, {vr(MT+8*cc,4)}, {vr(YO[n],4)}, 0")
    a(f"{M16} {vr(dpt(cc,ab,1),4)}, {vr(MT+8*cc+4,4)}, {vr(YO[n],4)}, 0")
XP2 = X
def x2_write(ab, dst):
    for ip in range(2):
        for cc in range(2):
            for bb in range(2):
                i = 2 * ip + bb
                a(f"v_cvt_pk_bf16_f32 v{dst+4*ip+2*bb+cc}, v{dpt(cc,ab,0)+i}, v{dpt(cc,ab,1)+i}")
        a(f"ds_write_b128 v{vw2}, {vr(dst+4*ip,4)} offset:{2048*ab+ip*256}")
def x2_read(ab, dst):
    for bb in range(2):
        for h in range(2):
            a(f"ds_read_b64 {vr(dst+4*bb+2*h,2)}, v{vr2} offset:{WR*h+2048*ab+bb*8}")
def last_mfma(src, out):
    a(f"{M16} {vr(out,4)}, {vr(Fr,4)}, {vr(src,4)}, 0")
    a(f"{M16} {vr(out+4,4)}, {vr(Fm,4)}, {vr(src,4)}, 0")
def s_store(ab, bb, out):
    for i in range(4):
        a(f"v_cvt_pk_bf16_f32 v{out+i}, v{out+4+i}, v{out+i}")
        if UO and ab:
            a(f"s_add_u32 s30, s31, {hx(16*i*2048)}")
            a(f"buffer_store_dword v{out+i}, v{vF}, s[12:15], s30 offen offset:{bb*2048} {SSF}")
            continue
        a(f"s_add_u32 s30, s24, {hx((16*i+bb)*TSB + ab*U_OFF)}")
        a(f"buffer_store_dword v{out+i}, v{vS}, s[16:19], s30 offen {SSF}")
B1 = WW + 8; B2 = WW + 24
YO = [PKD, PKD, PKD + 4, PKD + 4]
def tail():
    x2_write(1, PKD)
    a("s_waitcnt lgkmcnt(0)")
    a("s_barrier")
a("s_cmp_lg_u32 s54, 0")
a("s_cbranch_scc0 L_el")
a.label("L_elb")
wmul(0, 1); wmul(1, 1)
tail()
a.label("L_spb")
x2_read(1, B2)
if "t1" not in OPT:
    a("s_waitcnt lgkmcnt(2)")
    last_mfma(B2, B1)
    a("s_waitcnt lgkmcnt(0)")
    last_mfma(B2 + 4, M2)
    wmul(0, 0)
    s_store(1, 0, B1)
    wmul(1, 0)
    s_store(1, 1, M2)
    x2_write(0, D)
else:
    wmul(0, 0)
    a("s_waitcnt lgkmcnt(0)")
    last_mfma(B2, B1)
    last_mfma(B2 + 4, M2)
    wmul(1, 0)
    s_store(1, 0, B1)
    x2_write(0, D)
    s_store(1, 1, M2)
a("s_waitcnt lgkmcnt(0)")
a("s_barrier")
x2_read(0, B2)
a("s_waitcnt lgkmcnt(2)")
last_mfma(B2, MT)
a("s_waitcnt lgkmcnt(0)")
last_mfma(B2 + 4, MT + 8)
s_store(0, 0, MT)
s_store(0, 1, MT + 8)
X4 = False
ts(10)
if "swb" in OPT:
    a("s_waitcnt vmcnt(0)")
    a("buffer_wbl2 sc1")
amx_post(t[0])
LATE = optint("late", 1)
a("s_mov_b32 s27, s9")
if LATE == 0:
    setflag(t[0], "s27", "s49")
    if "st2" in OPT: ts(1)
a("s_setprio 0")
V = VAlloc(8)
vg_ = vg; vc_ = vc
t = [V() for _ in range(6)]
vS3 = 1; vN = 2; vF3 = 7; AP8 = V(); AMx = V()
MR = V(16, 4); MI = V(16, 4); X = V(16, 4)
BA = V(24, 4); BB = V(24, 4); TCh = V(8); TSh = V(8)
assert V.n <= 128, V.n
D1r = BA + 8; D1i = BB + 8; D2r = BA; D2i = BB
SBt = [D1r, D1r + 4, D1r + 8, D1r + 12, X]
DDt = [D1i, D1i + 4, D1i + 8, D1i + 12, X + 4]
MA = X + 8; AP = X + 12; AM = [X + 13, X + 14, X + 15, AMx]
CS = D1r; GG = D1i
a(f"v_bfe_u32 v{t[0]}, v0, 2, 2"); a(f"v_lshlrev_b32 v{t[1]}, 4, v{t[0]}")
a(f"v_add_u32 v{t[1]}, {L_G}, v{t[1]}")
a(f"ds_read_b128 {vr(GG,4)}, v{t[1]}")
if X4:
    a(f"v_and_b32 v{t[1]}, 1, v0"); a(f"v_lshlrev_b32 v{t[1]}, 3, v{t[1]}")
    a(f"v_lshl_or_b32 v{t[1]}, v{t[0]}, 4, v{t[1]}")
    a(f"v_bfe_u32 v{t[2]}, v0, 1, 1"); a(f"v_lshl_or_b32 v{t[1]}, v{t[2]}, 6, v{t[1]}")
else:
    a(f"v_lshlrev_b32 v{t[1]}, 2, v{vc_}")
SD = "sd" in OPT
RS = 2080
if SD:
    a(f"v_mul_u32_u24 v{vS3}, {2*RS}, v{vg_}"); a(f"v_add_u32 v{vS3}, v{vS3}, v{t[1]}")
    a(f"v_lshlrev_b32 v{vN}, 4, v0")
else:
    a(f"v_lshl_or_b32 v{vS3}, v{vg_}, 12, v{t[1]}")
    a(f"v_lshl_or_b32 v{vN}, v{vg_}, 20, v{t[1]}")
a("s_xor_b32 s50, s3, 4")
a(f"s_mul_i32 s8, s2, {TSB}")
if SD:
    a("s_lshl_b32 s11, s50, 6"); a(f"s_add_u32 s11, s11, {L_W}"); a(f"v_add_u32 v{vS3}, s11, v{vS3}"); a(f"v_add_u32 v{AP8}, {RS}, v{vS3}")
    a("s_lshl_b32 s11, s3, 11"); a("s_add_u32 s8, s8, s11"); a(f"s_add_u32 s10, s8, {hx(U_OFF)}")
    a(f"s_mul_i32 s9, s3, {RS}"); a(f"s_add_u32 s9, s9, {L_W}")
else:
    a("s_lshl_b32 s11, s50, 6"); a("s_add_u32 s8, s8, s11"); a(f"s_add_u32 s10, s8, {hx(U_OFF)}")
    if UO:
        a("s_lshl_b32 s10, s2, 11"); a("s_add_u32 s10, s10, s11"); a("s_add_u32 s9, s10, 0x80000")
if SD:
    a("s_lshl_b32 s11, s3, 5"); a(f"v_add_u32 v{t[1]}, s11, v{vn}")
else:
    a(f"v_bfe_u32 v{t[1]}, v0, 2, 3"); a(f"v_and_b32 v{t[2]}, 3, v0"); a(f"v_lshlrev_b32 v{t[2]}, 3, v{t[2]}")
    a(f"v_lshl_add_u32 v{t[1]}, v{t[1]}, 5, v{t[2]}"); a(f"v_add_u32 v{t[1]}, s50, v{t[1]}")
a("s_cmp_eq_u32 s50, 0"); a("s_cselect_b32 s24, 0x00010001, 0")
a(f"v_lshlrev_b32 v{vF3}, 10, v{t[1]}")
a("s_bfe_u32 s11, s2, 0x30001"); a("s_lshl_b32 s11, s11, 7"); a(f"s_add_u32 s11, s11, {hx(F2_OFF)}")
vsg = X; ve = X + 1; vstep = X + 2; vpe = X + 3; vpo = X + 4; vk = X + 5; vpl = X + 6
a(f"v_bfe_u32 v{t[1]}, v0, 1, 1"); a(f"v_cvt_f32_u32 v{vsg}, v{t[1]}")
a(f"v_mul_f32 v{vsg}, -0.5, v{vsg}"); a(f"v_add_f32 v{vsg}, {fl(0.25)}, v{vsg}")
a(f"v_and_b32 v{t[1]}, 1, v0"); a(f"v_cvt_f32_u32 v{t[1]}, v{t[1]}")
a(f"v_mul_f32 v{ve}, v{t[1]}, v{vsg}")
a(f"v_lshlrev_b32 v{t[0]}, 9, v{t[0]}"); a(f"v_add_u32 v{t[0]}, s2, v{t[0]}")
a(f"v_cvt_f32_u32 v{vstep}, v{t[0]}"); a(f"v_mul_f32 v{vstep}, {hx(f2u(-1/2048))}, v{vstep}")
a(f"v_cvt_f32_u32 v{t[2]}, v{vg_}"); a(f"v_add_f32 v{t[2]}, v{t[2]}, v{t[2]}")
a(f"v_fma_f32 v{vpe}, v{t[2]}, v{vstep}, v{ve}")
a(f"v_sub_f32 v{vpo}, v{vpe}, v{vsg}")
a(f"v_fmamk_f32 v{vpo}, v{t[2]}, {hx(f2u(-0.125))}, v{vpo}")
for lo in range(2):
    if lo:
        a(f"v_add_f32 v{vpe}, v{vpe}, v{vstep}")
        a(f"v_add_f32 v{vpo}, v{vpo}, v{vstep}"); a(f"v_add_f32 v{vpo}, {hx(f2u(-0.125))}, v{vpo}")
    a(f"v_cos_f32 v{CS+4*lo}, v{vpe}"); a(f"v_sin_f32 v{CS+4*lo+1}, v{vpe}")
    a(f"v_cos_f32 v{CS+4*lo+2}, v{vpo}"); a(f"v_sin_f32 v{CS+4*lo+3}, v{vpo}")
a("s_lshl_b32 s25, s50, 4")
a(f"v_lshlrev_b32 v{vpl}, 12, v{vg_}")
a(f"v_add_u32 v{vk}, s25, v{vc_}")
a(f"v_and_b32 v{t[3]}, 14, v{vk}"); a(f"v_lshl_or_b32 v{t[3]}, v{t[3]}, 3, v{vpl}")
a(f"v_and_b32 v{t[4]}, 31, v{vk}"); a(f"v_lshl_or_b32 v{t[3]}, v{t[4]}, 7, v{t[3]}")
a(f"v_bfe_u32 v{t[4]}, v{vk}, 5, 2"); a(f"v_lshl_or_b32 v{AP}, v{t[4]}, 2, v{t[3]}")
a(f"v_sub_u32 v{t[5]}, 0, v{vk}")
a(f"v_and_b32 v{t[4]}, 31, v{t[5]}"); a(f"v_lshl_or_b32 v{t[3]}, v{t[4]}, 7, v{vpl}")
a(f"v_and_b32 v{t[4]}, 14, v{t[5]}"); a(f"v_lshl_or_b32 v{t[3]}, v{t[4]}, 3, v{t[3]}")
a(f"v_lshrrev_b32 v{t[5]}, 3, v{t[5]}")
for tt in range(4):
    if tt: a(f"v_subrev_u32 v{t[5]}, 16, v{t[5]}")
    a(f"v_and_b32 v{t[4]}, 0x7c, v{t[5]}")
    a(f"v_xor_b32 v{AM[tt]}, v{t[4]}, v{t[3]}")
a("s_mov_b32 exec_lo, s24"); a("s_mov_b32 exec_hi, s24")
a(f"v_or_b32 v{AM[0]}, 64, v{vpl}")
a("s_mov_b64 exec, -1")
a("s_waitcnt lgkmcnt(0)")
for lo in range(2):
    for ab in range(2):
        a(f"v_mul_f32 v{t[0]}, v{GG+ab}, v{CS+4*lo}"); a(f"v_mul_f32 v{t[1]}, v{GG+ab}, v{CS+4*lo+1}")
        a(f"v_fmac_f32 v{t[0]}, v{GG+2+ab}, v{CS+4*lo+2}"); a(f"v_fmac_f32 v{t[1]}, v{GG+2+ab}, v{CS+4*lo+3}")
        a(f"v_cvt_pk_bf16_f32 v{MA+2*lo+ab}, v{t[0]}, v{t[1]}")
if LATE == 1:
    setflag(t[0], "s27", "s49")
    if "st2" in OPT: ts(1)
a("s_cmp_eq_u32 s3, 4")
a("s_cbranch_scc1 L_m0")
a("s_cmp_ge_u32 s3, 4")
a("s_cbranch_scc1 L_p3b")
TC = lambda k: BA + k if k < 8 else TCh + k - 8
TS_ = lambda k: BB + k if k < 8 else TSh + k - 8
vb = X; vo = X + 1
a(f"v_cvt_f32_u32 v{vb}, v{vn}"); a(f"v_cvt_f32_u32 v{vo}, v{vL5}")
a(f"v_mul_f32 v{vb}, {fl(1/32)}, v{vb}"); a(f"v_mul_f32 v{vo}, 4.0, v{vo}"); a(f"v_mul_f32 v{vo}, v{vb}, v{vo}")
for i in range(16):
    kc = 8 * (i // 4) + i % 4
    if kc == 0: a(f"v_mov_b32 v{t[0]}, v{vo}")
    else: a(f"v_fmamk_f32 v{t[0]}, v{vb}, {hx(f2u(float(kc)))}, v{vo}")
    a(f"v_cos_f32 v{t[1]}, v{t[0]}"); a(f"v_sin_f32 v{t[2]}, v{t[0]}")
    a(f"v_mul_f32 v{t[0]}, {fl(1/32)}, v{t[0]}")
    a(f"v_cvt_pk_bf16_f32 v{MR+i}, v{t[1]}, -v{t[2]}")
    a(f"v_cvt_pk_bf16_f32 v{MI+i}, v{t[2]}, v{t[1]}")
    a(f"v_cos_f32 v{TC(i)}, v{t[0]}"); a(f"v_sin_f32 v{TS_(i)}, v{t[0]}")
a.label("L_p3b")
if "nogb" not in OPT: a("s_barrier")
if optint("pb", 0): a(f"s_sleep {optint('pb', 0)}")
ts(11)
poll("L_poll2", vF3, t[0], "s11", "s49")
ts(12)
if "st2" in OPT: a("s_add_u32 s64, s60, s58")
if SD:
    for ab in range(2):
        a(f"s_add_u32 m0, s9, {ab*8*RS}")
        a(f"buffer_load_dwordx4 v{vN}, s[16:19], {'s10' if ab else 's8'} offen {SLF} lds")
        a(f"buffer_load_dwordx4 v{vN}, s[16:19], {'s10' if ab else 's8'} offen offset:1024 {SLF} lds")
    a("s_waitcnt vmcnt(0)")
    a("s_barrier")
    for tt in range(4):
        for lo in range(2):
            a(f"ds_read2st64_b32 {vr(SBt[tt]+2*lo,2)}, v{AP8 if lo else vS3} offset0:{2*tt} offset1:{2*tt + 8*RS//256}")
else:
  for tt in range(4):
    for lo in range(2):
        for ab in range(2):
            if UO and ab:
                a(f"buffer_load_dword v{SBt[tt]+2*lo+ab}, v{vN}, s[12:15], {'s9' if lo else 's10'} offen offset:{tt*512} {SLF}")
                continue
            a(f"buffer_load_dword v{SBt[tt]+2*lo+ab}, v{vS3}, s[16:19], {'s10' if ab else 's8'} offen offset:{tt*512+lo*2048} {SLF}")
MA0 = MR
def fin(tt):
    d = DDt[tt]
    if tt == 0:
        a("s_mov_b32 exec_lo, s24"); a("s_mov_b32 exec_hi, s24")
        for k in range(4): a(f"v_mov_b32 v{d+k}, v{DDt[4]+k}")
        a("s_mov_b64 exec, -1")
    a(f"v_cvt_pk_bf16_f32 v{d}, v{d}, v{d+1}")
    a(f"v_cvt_pk_bf16_f32 v{d+1}, v{d+2}, v{d+3}")
    if tt: a(f"v_xor_b32 v{t[tt]}, {tt<<4}, v{AP}")
    a(f"ds_write_b32 v{t[tt] if tt else AP}, v{d}")
    a(f"ds_write_b32 v{AM[tt]}, v{d+1}")
if SD:
    for tt in range(4):
        a(f"s_waitcnt lgkmcnt({6-2*tt})")
        a(f"{M16} {vr(DDt[tt],4)}, {vr(MA,4)}, {vr(SBt[tt],4)}, 0")
        if tt == 0: a(f"{M16} {vr(DDt[4],4)}, {vr(MA0,4)}, {vr(SBt[0],4)}, 0")
    for tt in range(4): fin(tt)
else:
    for tt in range(4):
        a(f"s_waitcnt vmcnt({12-4*tt})")
        a(f"{M16} {vr(DDt[tt],4)}, {vr(MA,4)}, {vr(SBt[tt],4)}, 0")
        if tt == 0: a(f"{M16} {vr(DDt[4],4)}, {vr(MA0,4)}, {vr(SBt[0],4)}, 0")
        if tt >= 1: fin(tt - 1)
    fin(3)
vst = vS3
a(f"v_bfe_u32 v{t[4]}, v{vn}, 1, 3"); a(f"v_xor_b32 v{t[4]}, v{t[4]}, v{vL5}"); a(f"v_lshlrev_b32 v{t[4]}, 4, v{t[4]}")
a(f"v_lshl_or_b32 v{t[4]}, v{vn}, 7, v{t[4]}"); a("s_lshl_b32 s26, s51, 12")
a("s_waitcnt lgkmcnt(0)")
a(f"v_add_u32 v{t[0]}, s26, v{t[4]}")
for q in range(1, 4): a(f"v_xor_b32 v{t[q]}, {32*q}, v{t[0]}")
a(f"v_lshlrev_b32 v{t[4]}, 4, v{vL5}"); a(f"v_lshl_or_b32 v{vst}, v{vn}, 6, v{t[4]}")
srd(12, 94, 2048 * 2048)
a("s_add_u32 s30, s22, 0x80000")
if "st2" in OPT: ts(3)
a("s_barrier")
if "st2" in OPT: ts(4)
a("s_cmp_ge_u32 s3, 4")
a("s_cbranch_scc1 L_hx")
for q in range(4): a(f"ds_read_b128 {vr(X+4*q,4)}, v{t[q]}")
for q in range(4):
    a(f"s_waitcnt lgkmcnt({3-q})")
    a(f"{M32} {vr(D1r,16)}, {vr(X+4*q,4)}, {vr(MR+4*q,4)}, {'0' if q == 0 else vr(D1r,16)}")
    a(f"{M32} {vr(D1i,16)}, {vr(X+4*q,4)}, {vr(MI+4*q,4)}, {'0' if q == 0 else vr(D1i,16)}")
if "nool" not in OPT:
    ta = [AP8, AMx, 2, 7]; tb = 5; tc_ = 6
    a(f"v_bfe_u32 v{t[2]}, v{vn}, 1, 2"); a(f"v_lshlrev_b32 v{t[2]}, 4, v{t[2]}"); a(f"v_lshl_or_b32 v{t[2]}, v{vn}, 6, v{t[2]}")
    a(f"v_lshl_or_b32 v{t[2]}, v{vL5}, 3, v{t[2]}"); a(f"v_add_u32 v{ta[0]}, s26, v{t[2]}")
    for c in range(1, 4): a(f"v_xor_b32 v{ta[c]}, {16*c}, v{ta[0]}")
    a(f"v_lshlrev_b32 v{tc_}, 4, v0"); a(f"v_bfe_u32 v{t[2]}, v0, 3, 2"); a(f"v_lshlrev_b32 v{t[2]}, 4, v{t[2]}")
    a(f"v_xor_b32 v{tb}, v{tc_}, v{t[2]}"); a(f"v_add_u32 v{tb}, s26, v{tb}")
def p2m(q):
    a(f"{M32} {vr(D2r,16)}, {vr(X+4*q,4)}, {vr(MR+4*q,4)}, {'0' if q == 0 else vr(D2r,16)}")
    a(f"{M32} {vr(D2i,16)}, {vr(X+4*q,4)}, {vr(MI+4*q,4)}, {'0' if q == 0 else vr(D2i,16)}")
def p2l(q):
    return [f"{M32} {vr(D2r,16)}, {vr(X+4*q,4)}, {vr(MR+4*q,4)}, {'0' if q == 0 else vr(D2r,16)}",
            f"{M32} {vr(D2i,16)}, {vr(X+4*q,4)}, {vr(MI+4*q,4)}, {'0' if q == 0 else vr(D2i,16)}"]
pend = []
for q in range(4):
    for e in range(4):
        k = 4 * q + e
        if pend and (q == 2 or (e & 1) == 1): a(pend.pop(0))
        a(f"v_mul_f32 v{t[0]}, v{D1r+k}, v{TC(k)}")
        a(f"v_mul_f32 v{t[1]}, v{D1i+k}, v{TC(k)}")
        a(f"v_fma_f32 v{t[0]}, -v{D1i+k}, v{TS_(k)}, v{t[0]}")
        a(f"v_fmac_f32 v{t[1]}, v{D1r+k}, v{TS_(k)}")
        a(f"v_cvt_pk_bf16_f32 v{X+k}, v{t[0]}, v{t[1]}")
    if q == 1: pend += p2l(0) + p2l(1)
    if q >= 2: pend += p2l(q)
for m_ in pend: a(m_)
O = MR
OL = "nool" not in OPT
if OL:
    for r, Dx in enumerate((D2r, D2i)):
        for c in range(4):
            o = O + 8 * r + 2 * c
            a(f"v_cvt_pk_bf16_f32 v{o}, v{Dx+4*c}, v{Dx+4*c+1}"); a(f"v_cvt_pk_bf16_f32 v{o+1}, v{Dx+4*c+2}, v{Dx+4*c+3}")
            a(f"ds_write_b64 v{ta[c]}, {vr(o,2)} offset:{2048*r}")
    a("s_waitcnt lgkmcnt(0)")
    for q in range(4): a(f"ds_read_b128 {vr(MI+4*q,4)}, v{tb} offset:{1024*q}")
    for q in range(4):
        a(f"s_waitcnt lgkmcnt({3-q})")
        a(f"buffer_store_dwordx4 {vr(MI+4*q,4)}, v{tc_}, s[12:15], {'s22' if q < 2 else 's30'} offen offset:{1024*(q&1)}{OSF}")
else:
  for r, (Dx, so) in enumerate(((D2r, "s22"), (D2i, "s30"))):
    for c2 in range(2):
        o = O + 8 * r + 4 * c2
        for e in range(4):
            a(f"v_cvt_pk_bf16_f32 v{o+e}, v{Dx+8*c2+2*e}, v{Dx+8*c2+2*e+1}")
        a(f"v_permlane32_swap_b32 v{o}, v{o+2}")
        a(f"v_permlane32_swap_b32 v{o+1}, v{o+3}")
        a(f"buffer_store_dwordx4 {vr(o,4)}, v{vst}, s[12:15], {so} offen offset:{32*c2}{OSF}")
a.label("L_fin")
stamp_end(32)
a.label("L_end")
a("s_endpgm")
a.label("L_hx")
a("s_lshl_b32 s26, s2, 3"); a("s_add_u32 s26, s26, s3")
a("s_cmp_lg_u32 s26, 4")
a("s_cbranch_scc1 L_fin")
a(f"s_mov_b32 s26, {hx(EP_OFF)}")
setflag(8, "s26", "s49")
a("s_branch L_fin")
a.label("L_m0")
a.hist = []
q_ = [MI + k for k in range(16)]
gaa = q_[0]; gbb = q_[1]; ph = q_[2]; st_ = q_[3]; c_ = q_[4]; s__ = q_[5]; al = q_[6]; be = q_[7]
a(f"v_and_b32 v{t[0]}, 1, v0"); a(f"v_cmp_eq_u32 vcc, 1, v{t[0]}")
a(f"v_bfe_u32 v{t[1]}, v0, 2, 2"); a(f"v_lshl_or_b32 v{t[1]}, v{t[1]}, 1, v{t[0]}")
a(f"v_cndmask_b32 v{gaa}, v{GG}, v{GG+2}, vcc"); a(f"v_cndmask_b32 v{gbb}, v{GG+1}, v{GG+3}, vcc")
a(f"v_lshlrev_b32 v{t[1]}, 8, v{t[1]}"); a(f"v_add_u32 v{t[1]}, s2, v{t[1]}")
a(f"v_cvt_f32_u32 v{st_}, v{t[1]}"); a(f"v_mul_f32 v{st_}, {hx(f2u(1/2048))}, v{st_}")
a(f"v_cvt_f32_u32 v{ph}, v{vg_}"); a(f"v_add_f32 v{ph}, v{ph}, v{ph}"); a(f"v_mul_f32 v{ph}, v{ph}, v{st_}")
a(f"v_bfe_u32 v{t[2]}, v0, 1, 1")
a(f"v_lshrrev_b32 v{t[3]}, 1, v{vg_}"); a(f"v_cmp_eq_u32 s[4:5], v{t[2]}, v{t[3]}")
a(f"v_and_b32 v{t[3]}, 1, v{vg_}"); a(f"v_cmp_eq_u32 s[6:7], 0, v{t[3]}")
a(f"v_cmp_eq_u32 s[28:29], 0, v{t[2]}")
a(f"v_cndmask_b32 v{q_[8]}, 0, v{gaa}, s[4:5]"); a(f"v_cndmask_b32 v{q_[9]}, 0, v{gbb}, s[4:5]")
a(f"v_mul_f32 v{q_[10]}, {fl(0.25)}, v{gaa}"); a(f"v_mul_f32 v{q_[11]}, {fl(0.25)}, v{gbb}")
for lo in range(2):
    if lo: a(f"v_add_f32 v{ph}, v{ph}, v{st_}")
    a(f"v_cos_f32 v{c_}, v{ph}"); a(f"v_sin_f32 v{s__}, v{ph}")
    for ab in range(2):
        if lo == 0:
            if ab == 0:
                a(f"v_cndmask_b32 v{al}, 0, v{q_[10]}, s[28:29]"); a(f"v_cndmask_b32 v{be}, 0, v{q_[11]}, s[28:29]")
            else:
                a(f"v_cndmask_b32 v{al}, v{q_[10]}, 0, s[28:29]"); a(f"v_cndmask_b32 v{be}, v{q_[11]}, 0, s[28:29]")
            a(f"v_cndmask_b32 v{al}, v{q_[8+ab]}, v{al}, s[6:7]"); a(f"v_cndmask_b32 v{be}, 0, v{be}, s[6:7]")
            a(f"v_mul_f32 v{t[0]}, v{al}, v{c_}"); a(f"v_fmac_f32 v{t[0]}, v{be}, v{s__}")
            a(f"v_mul_f32 v{t[1]}, v{be}, v{c_}"); a(f"v_fma_f32 v{t[1]}, -v{al}, v{s__}, v{t[1]}")
            a(f"v_cvt_pk_bf16_f32 v{MA0+2*lo+ab}, v{t[0]}, v{t[1]}")
        else:
            a(f"v_mul_f32 v{t[0]}, v{q_[8+ab]}, v{c_}"); a(f"v_mul_f32 v{t[1]}, v{q_[8+ab]}, v{s__}")
            a(f"v_cvt_pk_bf16_f32 v{MA0+2*lo+ab}, v{t[0]}, -v{t[1]}")
a("s_branch L_p3b")
a.label("L_el")
a.hist = []
a(f"v_lshlrev_b32 v{vEa}, 6, v{vg}"); a(f"v_add_u32 v{vEa}, s25, v{vEa}")
a("s_mov_b32 exec_lo, s52"); a("s_mov_b32 exec_hi, s52")
a(f"s_waitcnt vmcnt({0 if 'nopw' in OPT else 1})")
for ab in (1, 0):
    for cc in range(2):
        for i in range(4):
            a(f"ds_read_b64 {vr(Wi(2*ab,cc,i),2)}, v{vEa} offset:{256*cc+16*i+8*ab}")
a("s_mov_b64 exec, -1")
a("s_and_b32 s29, s2, 0xfb")
a("s_cmp_eq_u32 s29, 0")
a("s_cbranch_scc1 L_sp")
a("s_waitcnt lgkmcnt(0)")
a("s_branch L_elb")
a.label("L_sp")
a.hist = []
X = XP2
ts(3)
a("s_lshr_b32 s29, s2, 2"); a("s_lshl_b32 s10, s3, 1"); a("s_add_u32 s29, s29, s10"); a("s_sub_u32 s29, 16, s29")
for cc in range(2):
    a(f"s_sub_u32 s10, s29, {cc}"); a("s_and_b32 s10, s10, 15")
    a("s_lshr_b32 s11, s10, 1"); a("s_lshl_b32 s11, s11, 8"); a("s_and_b32 s10, s10, 1"); a("s_lshl_b32 s10, s10, 3"); a("s_add_u32 s10, s10, s11")
    a(f"v_lshlrev_b32 v{tpr[0][cc]}, 12, v{vg}"); a(f"v_add_u32 v{tpr[0][cc]}, s10, v{tpr[0][cc]}")
for k in range(8): a(f"v_mov_b32 v{TB+k}, 0")
a("s_mov_b32 exec_lo, 0x00010001"); a("s_mov_b32 exec_hi, 0x00010001")
for cc in range(2):
    for h in range(2):
        a(f"ds_read_b64 {vr(TB+4*cc+2*h,2)}, v{tpr[0][cc]} offset:{h*2048}")
a("s_mov_b32 s10, 0x00008000"); a("s_mov_b32 s11, 0x80008000")
a("s_waitcnt lgkmcnt(0)")
for k in range(8): a(f"v_xor_b32 v{TB+k}, s10, v{TB+k}")
a("s_mov_b64 exec, -1")
ts(4)
a("s_cmp_lg_u32 s2, 0")
a("s_cbranch_scc1 L_sp4")
def sp_body(mats):
    def acc(cc):
        a(f"{M16} {vr(X+8*cc,4)}, {vr(mats[cc],4)}, {vr(TB+4*cc,4)}, {vr(X+8*cc,4)}")
        a(f"{M16} {vr(X+8*cc+4,4)}, {vr(mats[cc]+4,4)}, {vr(TB+4*cc,4)}, {vr(X+8*cc+4,4)}")
    acc(0); acc(1)
    a("s_mov_b32 exec_lo, 0x00010001"); a("s_mov_b32 exec_hi, 0x00010001")
    for k in range(8): a(f"v_xor_b32 v{TB+k}, s11, v{TB+k}")
    a("s_mov_b64 exec, -1")
    wmul(0, 1); acc(0); acc(0)
    wmul(1, 1); acc(1); acc(1)
    tail()
    ts(6)
    a("s_nop 7")
    a("s_branch L_spb")
sp_body([M2, M2 + 8])
a.label("L_sp4")
a.hist = []
a("s_nop 1")
sp_body([M2 + 8, MX])

nv = (a.maxv + 1 + 7) // 8 * 8
out = "; gated_mix spectral gfnet: persistent MFMA FFT pipeline (generated by gen9.py)\n"
out += f"; @launch grid=(256,1,1) block=(512,1,1) lds={LDS_BYTES}\n"
out += '.amdgcn_target "amdgcn-amd-amdhsa--gfx950"\n.text\n'
out += f".globl {NAME}\n.p2align 8\n.type {NAME},@function\n" + a.text() + ".rept 96\n    s_endpgm\n.endr\nL_code_end:\n"
out += f""".section .rodata,"a"
.p2align 6
.amdhsa_kernel {NAME}
  .amdhsa_next_free_vgpr {nv}
  .amdhsa_next_free_sgpr {min(102, a.maxs + 1)}
  .amdhsa_accum_offset {nv}
  .amdhsa_group_segment_fixed_size 0
  .amdhsa_kernarg_size 80
  .amdhsa_user_sgpr_count 2
  .amdhsa_user_sgpr_kernarg_segment_ptr 1
  .amdhsa_system_sgpr_workgroup_id_x 1
  .amdhsa_float_denorm_mode_32 3
.end_amdhsa_kernel
"""
sys.stderr.write(f"vgpr {a.maxv+1} sgpr {a.maxs+1} lines {len(a.lines)} nops {a.nops}\n")
print(out)
```

```python
import sys
from asmlib import *
NAME = "gated_mix__spectral_gfnet__spectral_gfnet__prompt_kernel"
TSB = 16512
S_OFF = 0x500000
U_OFF = 0x500000
import sys as _s
for _o in _s.argv:
    if _o.startswith('soff'): S_OFF = int(_o[4:]) << 20
F1_OFF = 0xE20000
F2_OFF = 0xE80000
EP_OFF = 0xEF0000
WS_SIZE = 0xF00000
WBYTES = 2048 * 1026
M32 = "v_mfma_f32_32x32x16_bf16"
M16 = "v_mfma_f32_16x16x32_bf16"
OPT = set(sys.argv[1:])
ST = "stamps" in OPT
WSZ = 0x10000000 if ST else WS_SIZE
L_A = 0; L_W = 16384; L_P = L_W; WR = 6144; L_G = 65536; L_N = 65664; L_C = 65920; L_E = 65936; LDS_BYTES = 65936 + 4096
def optint(pfx, d):
    for o in OPT:
        if o.startswith(pfx) and o[len(pfx):].isdigit(): return int(o[len(pfx):])
    return d
SLEEP = optint("sl", 0); PFAT = optint("pf", 8); NWG = optint("nwg", 0)
SPIN_MAX = 400000
NTX = " nt" if "ntx" in OPT else ""
NTW = " nt" if "ntw" in OPT else ""
PLF = "sc0 sc1" if "psys" in OPT else ("sc1 nt" if "pnt" in OPT else ("sc0 sc1 nt" if "psysnt" in OPT else "sc1"))
FSF = "sc0 sc1" if "fsys" in OPT else "sc1"
SSF = "sc0 sc1" if "ssys" in OPT else ("sc1 nt" if "snt" in OPT else ("" if "swb" in OPT else "sc1"))
def lf(k):
    return "sc0 sc1" if k+"sys" in OPT else ("sc1 nt" if k+"nt" in OPT else ("sc0 sc1 nt" if k+"sn" in OPT else "sc1"))
SLF = lf("ls"); TLF = lf("lt")
OSF = " sc1" if "nool" not in OPT else (" nt" if "ont" in OPT else (" sc0 sc1" if "osys" in OPT else ""))
Y4 = "y4" in OPT
UO = "uo" in OPT
a = Asm()
def srd(d, base, size):
    a(f"s_mov_b32 s{d}, s{base}"); a(f"s_mov_b32 s{d+1}, s{base+1}")
    a(f"s_mov_b32 s{d+2}, {hx(size)}"); a(f"s_mov_b32 s{d+3}, 0x00020000")
NST = 14
AMX = optint("amx", -1)
def ts(k):
    if ST:
        a(f"s_memrealtime s[{60+2*k}:{61+2*k}]")
        a("s_waitcnt lgkmcnt(0)")
def amx_post(vt):
    if AMX < 0: return
    a("s_load_dwordx2 s[4:5], s[0:1], 64")
    a("s_waitcnt lgkmcnt(0)")
    a("s_mov_b32 s6, 256"); a("s_mov_b32 s7, 0x00020000")
    a(f"v_mov_b32 v{vt}, s{60+2*AMX}"); a("s_and_b32 s96, s2, 7"); a("s_lshl_b32 s96, s96, 2"); a(f"v_mov_b32 v{vt+1}, s96")
    a("s_cmp_eq_u32 s3, %d" % optint("aw", 0)); a("s_cselect_b32 exec_lo, 1, 0"); a("s_mov_b32 exec_hi, 0")
    a(f"buffer_atomic_umax v{vt}, v{vt+1}, s[4:7], 0 offen")
    a("s_mov_b64 exec, -1")
def stamp_end(vt):
    if not ST: return
    a("s_waitcnt vmcnt(0)")
    ts(NST - 1)
    for k in range(16): a(f"v_mov_b32 v{vt+k}, {'s%d' % (60+2*k) if k < NST else '0'}")
    a("s_lshl_b32 s96, s3, 6"); a("s_lshl_b32 s97, s2, 9"); a("s_add_u32 s96, s96, s97")
    a(f"s_add_u32 s96, s96, 0x3000000")
    a(f"v_mov_b32 v{vt+16}, 0")
    a("s_mov_b64 exec, 1")
    if AMX >= 0:
        a("s_lshl_b32 s96, s2, 3"); a("s_add_u32 s96, s96, s3"); a("s_cmp_lg_u32 s96, 72"); a("s_cbranch_scc1 L_end")
        a("s_load_dwordx2 s[4:5], s[0:1], 64")
        a("s_waitcnt lgkmcnt(0)")
        a("s_mov_b32 s6, 256"); a("s_mov_b32 s7, 0x00020000")
        a(f"buffer_load_dwordx4 {vr(vt,4)}, v{vt+16}, s[4:7], 0 offen sc1")
        a(f"buffer_load_dwordx4 {vr(vt+4,4)}, v{vt+16}, s[4:7], 0 offen offset:16 sc1")
        a("s_waitcnt vmcnt(0)")
        for k in range(1, 8): a(f"v_max_u32 v{vt}, v{vt}, v{vt+k}")
        a("s_nop 1")
        a(f"v_readfirstlane_b32 s4, v{vt}")
        a(f"s_sub_u32 s4, s4, s60"); a("s_mul_i32 s4, s4, 10"); a(f"s_add_u32 s4, s4, s{60+2*(NST-1)}")
        a.label("L_amp")
        a("s_memrealtime s[6:7]"); a("s_waitcnt lgkmcnt(0)")
        a("s_sub_u32 s5, s6, s4"); a("s_cmp_lt_i32 s5, 0"); a("s_cbranch_scc1 L_amp")
        return
    amp = optint("amp", -1)
    if amp >= 0:
        a("s_lshl_b32 s4, s2, 3"); a("s_add_u32 s4, s4, s3"); a("s_cmp_lg_u32 s4, %d" % (72 + optint("aw", 0))); a("s_cbranch_scc1 L_end")
        a(f"s_sub_u32 s4, s{60+2*amp}, s60"); a("s_mul_i32 s4, s4, 10"); a(f"s_add_u32 s4, s4, s{60+2*(NST-1)}")
        a.label("L_amp")
        a("s_memrealtime s[6:7]"); a("s_waitcnt lgkmcnt(0)")
        a("s_sub_u32 s5, s6, s4"); a("s_cmp_lt_i32 s5, 0"); a("s_cbranch_scc1 L_amp")
        return
    if "dbg" in OPT:
        a("s_load_dwordx2 s[4:5], s[0:1], 64")
        a("s_waitcnt lgkmcnt(0)")
        a("s_mov_b32 s6, 256"); a("s_mov_b32 s7, 0x00020000")
        a(f"v_not_b32 v{vt+14}, v{vt}")
        for k in range(15):
            a(f"buffer_atomic_umax v{vt+k}, v{vt+16}, s[4:7], 0 offen offset:{4*k}")
        return
    for q in range(4): a(f"buffer_store_dwordx4 {vr(vt+4*q,4)}, v{vt+16}, s[16:19], s96 offen offset:{16*q}")
def poll(lbl, vaddr, vtmp, soff, tag):
    a("s_mov_b32 s58, 0")
    a("s_mov_b32 exec_hi, 0")
    a.label(lbl)
    a(f"buffer_load_dword v{vtmp}, v{vaddr}, s[16:19], {soff} offen {PLF}")
    a("s_add_u32 s58, s58, 1")
    a("s_waitcnt vmcnt(0)")
    a(f"v_cmp_ne_u32 vcc, {tag}, v{vtmp}")
    a(f"s_cmp_gt_u32 s58, {SPIN_MAX}")
    a(f"s_cbranch_scc1 {lbl}_d")
    a("s_and_b64 exec, exec, vcc")
    a(f"s_cbranch_execz {lbl}_d")
    if SLEEP: a(f"s_sleep {SLEEP}")
    a(f"s_branch {lbl}")
    a.label(lbl + "_d")
    a("s_mov_b64 exec, -1")
def setflag(vtmp, soff, tag):
    a(f"v_mov_b32 v{vtmp}, {tag}"); a(f"v_lshlrev_b32 v{vtmp+1}, 2, v0")
    a("s_waitcnt vmcnt(0)")
    a("s_mov_b32 exec_hi, 0")
    a(f"buffer_store_dword v{vtmp}, v{vtmp+1}, s[16:19], {soff} offen {FSF}")
    a("s_mov_b32 exec_hi, -1")

a.label(NAME)
a.label("L_code_start")
a("s_cmp_ge_u32 s2, 256")
a("s_cbranch_scc1 L_end")
if ST:
    a("s_memrealtime s[60:61]")
    for k in range(1, NST): a(f"s_mov_b32 s{60+2*k}, 0")
a("s_load_dwordx4 s[4:7], s[0:1], 0")
a("s_load_dwordx2 s[20:21], s[0:1], 72")
a("s_load_dwordx2 s[28:29], s[0:1], 16")
a("s_load_dwordx8 s[88:95], s[0:1], 32")
a("s_getpc_b64 s[12:13]")
a("s_and_b32 s12, s12, 0xffffff00")
a("s_mov_b32 s14, L_code_end-L_code_start")
a("s_mov_b32 s15, 0x00020000")
a("v_lshlrev_b32 v6, 6, v0")
a("s_bfe_u32 s8, s2, 0x30003")
a("v_lshrrev_b32 v1, 6, v0")
a("v_cmp_eq_u32 vcc, s8, v1")
a("s_and_saveexec_b64 s[10:11], vcc")
a("s_cbranch_execz L_cp")
if "nocp" not in OPT: a("buffer_load_ubyte v5, v6, s[12:15], 0 offen")
a.label("L_cp")
a("s_mov_b64 exec, -1")
a("v_and_b32 v0, 63, v0")
a("v_readfirstlane_b32 s3, v1")
vl16 = 2; vn = 3; vL5 = 4; vE = 5
a(f"v_lshlrev_b32 v{vl16}, 4, v0")
a(f"v_and_b32 v{vn}, 31, v0")
a(f"v_lshrrev_b32 v{vL5}, 5, v0")
a("s_and_b32 s51, s3, 3")
a("s_lshl_b32 s22, s51, 9"); a("s_add_u32 s22, s22, s2"); a("s_lshl_b32 s22, s22, 11")
a("s_and_b32 s53, s2, 7"); a("s_lshl_b32 s53, s53, 5"); a("s_lshr_b32 s54, s2, 3"); a("s_add_u32 s53, s53, s54")
a("s_and_b32 s55, s2, 7"); a("s_mul_i32 s55, s55, 1026"); a("s_lshl_b32 s56, s54, 5"); a("s_add_u32 s55, s55, s56")
a("s_lshl_b32 s24, s51, 12")
a("s_lshl_b32 s57, s2, 10"); a(f"s_add_u32 s57, s57, {hx(F1_OFF)}")
a(f"s_mov_b32 s26, {hx(EP_OFF)}")
a("v_mov_b32 v7, 0")
a("s_add_u32 s30, s22, 0x80000")
a("s_cmp_ge_u32 s3, 4"); a("s_cselect_b32 s31, 0, -1")
a("s_mov_b32 m0, s24")
a("s_mov_b32 s10, 0x00400000"); a("s_mov_b32 s11, 0x00020000")
a("s_mov_b32 exec_lo, s31"); a("s_mov_b32 exec_hi, s31")
a("s_waitcnt lgkmcnt(0)")
a("s_mov_b32 s8, s4"); a("s_mov_b32 s9, s5")
a("s_cbranch_scc1 L_nox")
a(f"buffer_load_dwordx4 v{vl16}, s[8:11], s22 offen{NTX} lds")
a(f"buffer_load_dwordx4 v{vl16}, s[8:11], s22 offen offset:1024{NTX} lds")
a("s_add_u32 m0, s24, 2048")
a(f"buffer_load_dwordx4 v{vl16}, s[8:11], s30 offen{NTX} lds")
a(f"buffer_load_dwordx4 v{vl16}, s[8:11], s30 offen offset:1024{NTX} lds")
a.label("L_nox")
a("s_mov_b64 exec, -1")
srd(16, 20, WSZ)
a(f"buffer_load_dword v{vE}, v7, s[16:19], s26 offen sc1")
for arr, p_ in enumerate((6, 28, 88, 90)): srd(32 + 4 * arr, p_, WBYTES)
def tags():
    a(f"v_readfirstlane_b32 s48, v{vE}")
    a("s_mul_i32 s48, s48, 0x9E3779B1"); a("s_add_u32 s48, s48, 0x7F4A7C15")
    a("s_xor_b32 s49, s48, 0x5bd1e995")
def arr_srd():
    a("s_cmp_eq_u32 s51, 0"); a("s_cselect_b32 s12, s32, s36"); a("s_cselect_b32 s13, s33, s37")
    a("s_cmp_eq_u32 s51, 2"); a("s_cselect_b32 s12, s40, s12"); a("s_cselect_b32 s13, s41, s13")
    a("s_cmp_eq_u32 s51, 3"); a("s_cselect_b32 s12, s44, s12"); a("s_cselect_b32 s13, s45, s13")
    a(f"s_mov_b32 s14, {hx(WBYTES)}"); a("s_mov_b32 s15, 0x00020000")
V2 = VAlloc(5)
vg = V2(); vc = V2(); vF = V2()
SC = V2(16, 4)
vS = V2(); vw1 = V2(); vr1 = V2(); vT = V2(); vTr = V2(); vWr = V2(); vw2 = V2(); vr2 = V2()
WW = V2(32, 4); TB = V2(8, 4)
Fr = V2(4, 4); Fm = V2(4, 4); M2 = V2(16, 4); MT = V2(16, 4); D = V2(16, 4)
assert V2.n <= 128, V2.n
vW = D; vEa = 2
Wi = lambda arr, cc, i: WW + 16 * cc + 8 * (arr >> 1) + 2 * i + (arr & 1)
MX = SC
L_GW = L_W + 16384
def p2_addr():
    t = [SC + k for k in range(6)]
    a(f"v_lshrrev_b32 v{vg}, 4, v0"); a(f"v_and_b32 v{vc}, 15, v0")
    a(f"v_lshrrev_b32 v{t[0]}, 2, v0"); a(f"v_mul_u32_u24 v{vT}, {16*TSB}, v{t[0]}")
    a(f"v_and_b32 v{t[0]}, 3, v0"); a(f"v_lshl_add_u32 v{vT}, v{t[0]}, 4, v{vT}")
    a("s_lshl_b32 s27, s3, 11")
    a(f"s_mul_i32 s23, s3, {WR}"); a(f"s_add_u32 s23, s23, {L_W}")
    a(f"v_bfe_u32 v{t[0]}, v0, 1, 4"); a(f"v_and_b32 v{t[1]}, 1, v0"); a(f"v_lshl_add_u32 v{t[0]}, v{t[0]}, 4, v{t[1]}")
    a(f"v_lshlrev_b32 v{vF}, 10, v{t[0]}")
    a("s_lshl_b32 s28, s3, 8")
    a("s_and_b32 s8, s2, 7"); a("s_lshl_b32 s8, s8, 7"); a("s_add_u32 s8, s8, s27"); a(f"s_add_u32 s8, s8, {hx(F1_OFF)}")
    a(f"v_lshlrev_b32 v{t[0]}, 4, v{vc}")
    a(f"v_lshl_or_b32 v{t[1]}, v{vg}, 9, v{t[0]}")
    a(f"v_add_u32 v{vw1}, s27, v{t[1]}"); a(f"v_add_u32 v{vw2}, s23, v{t[1]}")
    a(f"v_lshl_or_b32 v{vr1}, v{vg}, 12, v{t[0]}"); a(f"v_add_u32 v{vr1}, s28, v{vr1}")
    a(f"v_mul_u32_u24 v{vr2}, {2*WR}, v{vg}"); a(f"s_add_u32 s29, s28, {L_W}"); a(f"v_add3_u32 v{vr2}, v{vr2}, v{t[0]}, s29")
    if "x4" not in OPT:
        if Y4:
            a(f"v_mul_u32_u24 v{vS}, {16*TSB}, v{vc}"); a(f"v_lshl_add_u32 v{vS}, v{vg}, 4, v{vS}")
        else:
            a(f"v_mul_u32_u24 v{vS}, {64*TSB}, v{vg}"); a(f"v_lshl_add_u32 v{vS}, v{vc}, 2, v{vS}")
    else:
        a(f"v_lshlrev_b32 v{t[0]}, 4, v{vg}"); a(f"v_lshl_or_b32 v{vS}, v{vc}, 11, v{t[0]}")
def p2_item():
    t = [SC + k for k in range(6)]
    a(f"s_mul_i32 s24, s3, {2*TSB}"); a("s_lshl_b32 s26, s53, 6"); a("s_add_u32 s24, s24, s26")
    a(f"s_add_u32 s26, s24, {TSB}")
    a(f"v_lshlrev_b32 v{t[0]}, 2, v{vc}"); a(f"v_lshl_or_b32 v{vTr}, v{vg}, 8, v{t[0]}"); a(f"v_add_u32 v{vTr}, s27, v{vTr}")
    a("s_and_b32 s29, s55, 15"); a("s_add_u32 s29, s29, s23")
    a(f"v_mul_u32_u24 v{vWr}, 192, v{vg}"); a(f"v_lshl_add_u32 v{vWr}, v{vc}, 1, v{vWr}"); a(f"v_add_u32 v{vWr}, s29, v{vWr}")
    a("s_lshl_b32 s30, s53, 15"); a("s_add_u32 s30, s30, s28"); a(f"s_add_u32 s30, s30, {hx(S_OFF)}"); a("s_add_u32 s31, s30, 4096")
    a("s_lshl_b32 s9, s53, 10"); a("s_lshl_b32 s10, s3, 7"); a("s_add_u32 s9, s9, s10"); a(f"s_add_u32 s9, s9, {hx(F2_OFF)}")
    a(f"s_mul_i32 s50, s3, {2*TSB}"); a("s_and_b32 s29, s2, 7"); a("s_lshl_b32 s29, s29, 4"); a("s_add_u32 s50, s50, s29"); a("s_add_u32 s50, s50, 16384")
    a("s_cmp_eq_u32 s54, 0"); a("s_cselect_b32 s52, 0x00010001, 0")
    a(f"v_bfe_u32 v{t[0]}, v0, 4, 1"); a(f"v_lshl_add_u32 v{t[0]}, v{vc}, 4, v{t[0]}"); a(f"v_mul_u32_u24 v{vEa}, {TSB}, v{t[0]}")
    a("s_cselect_b32 s59, -1, 0")
def p2_const(dozero=True, hooks=()):
    hooks = list(hooks)
    def hook():
        if hooks: hooks.pop(0)()
    t = [SC + k for k in range(6)]
    vlf = SC + 6; vkf = SC + 7; vc0 = SC + 8; vlc = SC + 10; FA = SC + 12
    a(f"v_cvt_f32_u32 v{vlf}, v{vc}")
    a(f"v_cvt_f32_u32 v{vkf}, v{vg}"); a(f"v_mul_f32 v{vkf}, 4.0, v{vkf}")
    a(f"v_cvt_f32_u32 v{vc0}, s3"); a(f"v_mul_f32 v{vc0}, {fl(1/128)}, v{vc0}")
    a(f"v_mul_f32 v{vlc}, v{vlf}, v{vc0}")
    a(f"v_fmamk_f32 v{vlc+1}, v{vlf}, {hx(f2u(1/256))}, v{vlc}")
    a(f"v_mul_f32 v{vlf}, {fl(1/16)}, v{vlf}")
    z = iter(range(32))
    def zero(n):
        if not dozero:
            if n == 1: a("s_nop 0")
            return
        for _ in range(n):
            k = next(z, None)
            if k is not None: a(f"v_mov_b32 v{WW+k}, 0")
    def mat(ang):
        a(f"v_cos_f32 v{t[3]}, v{ang}"); a(f"v_sin_f32 v{t[4]}, v{ang}")
    def matfin(Mr, Mm):
        a(f"v_cvt_pk_bf16_f32 v{Mr}, v{t[3]}, v{t[4]}")
        a(f"v_cvt_pk_bf16_f32 v{Mm}, -v{t[4]}, v{t[3]}")
        hook()
    hook(); hook()
    for i in range(4):
        if i: a(f"v_add_f32 v{vkf}, 1.0, v{vkf}")
        a(f"v_mul_f32 v{FA+i}, v{vkf}, v{vlf}")
        mat(FA + i); zero(1); matfin(Fr + i, Fm + i)
    for i in range(3, -1, -1):
        a(f"v_fma_f32 v{t[0]}, v{vkf}, v{vc0}, v{FA+i}")
        a(f"v_fmamk_f32 v{t[1]}, v{vkf}, {hx(f2u(1/256))}, v{t[0]}")
        mat(t[0]); a(f"v_add_f32 v{t[2]}, v{FA+i}, v{vlc}"); matfin(M2 + i, M2 + 4 + i)
        mat(t[1]); a(f"v_add_f32 v{t[5]}, v{FA+i}, v{vlc+1}"); matfin(M2 + 8 + i, M2 + 12 + i)
        mat(t[2]); a(f"v_subrev_f32 v{vkf}, 1.0, v{vkf}"); matfin(MT + i, MT + 4 + i)
        mat(t[5]); zero(1); matfin(MT + 8 + i, MT + 12 + i)
    zero(32)
    a(f"v_add_f32 v{vc0}, {fl(1/128)}, v{vc0}")
    a(f"v_mov_b32 v{SC+9}, v{vkf}")
    for i in range(4):
        a(f"v_add_f32 v{SC+9}, 1.0, v{SC+9}")
        a(f"v_fma_f32 v{FA+i}, v{SC+9}, v{vc0}, v{FA+i}")
    for i in range(4):
        a(f"v_cos_f32 v{SC+10}, v{FA+i}"); a(f"v_sin_f32 v{SC+11}, v{FA+i}"); a("s_nop 0")
        a(f"v_cvt_pk_bf16_f32 v{MX+i}, v{SC+10}, v{SC+11}")
        a(f"v_cvt_pk_bf16_f32 v{MX+4+i}, -v{SC+11}, v{SC+10}")
def wvoff(dst, t0, t1):
    a(f"v_mul_u32_u24 v{t0}, 43, v0"); a(f"v_lshrrev_b32 v{t0}, 7, v{t0}")
    a(f"v_mul_u32_u24 v{t1}, 3, v{t0}"); a(f"v_sub_u32 v{t1}, v0, v{t1}")
    a(f"v_mul_u32_u24 v{dst}, {16*8*1026}, v{t0}"); a(f"v_lshl_add_u32 v{dst}, v{t1}, 4, v{dst}")
def wdma_list(vreg, adds, arrs=(0, 1, 2, 3)):
    ccs = (0, 1)
    ops = []
    for add in adds:
        def head(add=add):
            a(f"s_add_u32 s6, s3, {add}")
            a(f"s_mul_i32 s4, s6, {2*8*1026}"); a("s_add_u32 s4, s4, s55"); a("s_and_b32 s4, s4, 0xfffffff0")
            a(f"s_add_u32 s5, s4, {8*1026}")
            a(f"s_mul_i32 s6, s6, {WR}")
        for arr in arrs:
            for cc in ccs:
                def op(arr=arr, cc=cc, head=head):
                    if arr == arrs[0] and cc == ccs[0]: head()
                    a("s_mov_b32 exec_hi, 0xffff")
                    a(f"s_add_u32 m0, s6, {L_W + 1536*arr + 768*cc}")
                    a(f"buffer_load_dwordx4 v{vreg}, {sr(32+4*arr,4)}, {'s4' if cc == 0 else 's5'} offen lds")
                    a("s_mov_b32 exec_hi, -1")
                ops.append(op)
    return ops
a(f"s_mov_b32 s56, {8*1026}")
a("s_cmp_ge_u32 s3, 4")
a("s_cbranch_scc1 L_h")
a("s_setprio 2")
V = VAlloc(6)
vb = V(); vo = V(); vkn = V(); vtr = V(); vpf = V(); vj = V(); vpw = V(4); t = [V() for _ in range(6)]
arr_srd()
a(f"v_and_b32 v{t[0]}, 7, v0"); a("s_lshl_b32 s30, s2, 3"); a(f"v_add_u32 v{t[0]}, s30, v{t[0]}")
a(f"v_bfe_i32 v{t[1]}, v0, 4, 1"); a(f"v_xor_b32 v{t[0]}, v{t[0]}, v{t[1]}"); a(f"v_sub_u32 v{t[0]}, v{t[0]}, v{t[1]}")
a(f"v_and_b32 v{t[0]}, 2047, v{t[0]}"); a(f"v_mul_u32_u24 v{t[2]}, 1026, v{t[0]}")
a(f"v_bfe_u32 v{t[1]}, v0, 3, 1"); a(f"v_lshl_add_u32 v{t[2]}, v{t[1]}, 10, v{t[2]}")
a(f"buffer_load_ushort v{vj}, v{t[2]}, s[12:15], 0 offen")
a("s_and_b32 s30, s2, 7"); a("s_lshl_b32 s31, s54, 6"); a("s_add_u32 s30, s30, s31"); a("s_mul_i32 s30, s30, 1026")
a(f"v_lshrrev_b32 v{t[0]}, 3, v0"); a(f"v_mul_u32_u24 v{t[2]}, {8*1026}, v{t[0]}")
a(f"v_and_b32 v{t[1]}, 7, v0"); a(f"v_lshl_add_u32 v{vpf}, v{t[1]}, 7, v{t[2]}")
vjunk = 1
def prefetch():
    a(f"buffer_load_ubyte v{vjunk}, v{vpf}, s[12:15], s30 offen{NTW}")
    a(f"buffer_load_ubyte v{vjunk}, v{vpt}, s[12:15], s30 offen offset:1024{NTW}")
NPF = 2
vpt = V()
a(f"v_and_b32 v{t[1]}, 1, v0"); a(f"v_lshl_add_u32 v{vpt}, v{t[1]}, 4, v{t[2]}")
if PFAT == 0: prefetch()
CC = V(8, 4); SS = V(8, 4); SN = V(8, 4); XR = V(8, 4); XI = V(8, 4)
BA = V(24, 4); BB = V(24, 4); TCh = V(8); TSh = V(8)
D1r = BA + 8; D1i = BB + 8; D2r = BA; D2i = BB
TC = lambda k: BA + k if k < 8 else TCh + k - 8
TS_ = lambda k: BB + k if k < 8 else TSh + k - 8
assert V.n <= 128, V.n
a(f"v_and_b32 v{t[0]}, 7, v0"); a(f"v_bfe_u32 v{t[1]}, v0, 3, 2")
a(f"v_lshl_or_b32 v{vkn}, v{t[0]}, 2, v{t[1]}")
a(f"v_cvt_f32_u32 v{vb}, v{vkn}"); a(f"v_cvt_f32_u32 v{vo}, v{vL5}")
a(f"v_mul_f32 v{vb}, {fl(1/32)}, v{vb}"); a(f"v_mul_f32 v{vo}, 4.0, v{vo}"); a(f"v_mul_f32 v{vo}, v{vb}, v{vo}")
for i in range(0, 16, 2):
    for e in range(2):
        kc = 8 * ((i + e) // 4) + (i + e) % 4
        if kc == 0: a(f"v_mov_b32 v{t[e]}, v{vo}")
        else: a(f"v_fmamk_f32 v{t[e]}, v{vb}, {hx(f2u(float(kc)))}, v{vo}")
    a(f"v_cos_f32 v{t[2]}, v{t[0]}"); a(f"v_cos_f32 v{t[3]}, v{t[1]}")
    a(f"v_sin_f32 v{t[4]}, v{t[0]}"); a(f"v_sin_f32 v{t[5]}, v{t[1]}")
    a(f"v_mul_f32 v{t[0]}, {fl(1/32)}, v{t[0]}"); a(f"v_mul_f32 v{t[1]}, {fl(1/32)}, v{t[1]}")
    a(f"v_cvt_pk_bf16_f32 v{CC+i//2}, v{t[2]}, v{t[3]}")
    a(f"v_cvt_pk_bf16_f32 v{SS+i//2}, v{t[4]}, v{t[5]}")
    a(f"v_cvt_pk_bf16_f32 v{SN+i//2}, -v{t[4]}, -v{t[5]}")
    a(f"v_cos_f32 v{TC(i)}, v{t[0]}"); a(f"v_cos_f32 v{TC(i+1)}, v{t[1]}")
    a(f"v_sin_f32 v{TS_(i)}, v{t[0]}"); a(f"v_sin_f32 v{TS_(i+1)}, v{t[1]}")
    if PFAT == i // 2 + 1: prefetch()
a(f"v_lshlrev_b32 v{vtr}, 8, v{vL5}")
a(f"v_bfe_u32 v{t[0]}, v0, 2, 2"); a(f"v_lshl_or_b32 v{vtr}, v{t[0]}, 6, v{vtr}")
a(f"v_bfe_u32 v{t[0]}, v0, 4, 1"); a(f"v_lshl_or_b32 v{vtr}, v{t[0]}, 5, v{vtr}")
a(f"v_and_b32 v{t[0]}, 3, v0"); a(f"v_lshl_or_b32 v{vtr}, v{t[0]}, 3, v{vtr}")
a(f"v_add_u32 v{vtr}, s24, v{vtr}")
a(f"v_and_b32 v{t[0]}, 7, v0"); a(f"v_bfe_u32 v{t[1]}, v0, 3, 2"); a(f"v_lshlrev_b32 v{t[1]}, 1, v{t[1]}")
a(f"v_xor_b32 v{t[0]}, v{t[0]}, v{t[1]}"); a(f"v_xor_b32 v{t[0]}, v{t[0]}, v{vL5}")
a(f"v_lshlrev_b32 v{t[0]}, 4, v{t[0]}")
a(f"v_lshl_or_b32 v{vpw}, v{vkn}, 7, v{t[0]}")
a(f"s_add_u32 s26, s24, {L_P}")
a(f"v_add_u32 v{vpw}, s26, v{vpw}")
for c in range(1, 4): a(f"v_xor_b32 v{vpw+c}, {32*c}, v{vpw}")
vet = vb
a(f"v_and_b32 v{t[0]}, 7, v0"); a(f"v_and_b32 v{t[1]}, 16, v0"); a(f"v_lshl_or_b32 v{t[0]}, v{t[0]}, 1, v{t[1]}")
a(f"v_bfe_u32 v{t[1]}, v0, 3, 1"); a(f"v_lshl_or_b32 v{t[0]}, v{t[1]}, 7, v{t[0]}")
a("s_lshl_b32 s30, s51, 5"); a(f"s_add_u32 s30, s30, {L_N}"); a(f"v_add_u32 v{vet}, s30, v{t[0]}")
ts(1)
a(f"s_waitcnt vmcnt({1 + (NPF if PFAT <= 8 else 0)})")
ts(2)
tags()
for h in range(2):
    for r, X in ((0, XR), (1, XI)):
        for tt in range(2):
            a(f"ds_read_b64_tr_b16 {vr(X+4*h+2*tt,2)}, v{vtr} offset:{r*2048+h*1024+tt*512}")
def cpass(R, I, Dr, Di, h, first):
    c0 = "0" if first else vr(Dr, 16); c1 = "0" if first else vr(Di, 16)
    a(f"{M32} {vr(Dr,16)}, {vr(R+4*h,4)}, {vr(CC+4*h,4)}, {c0}")
    a(f"{M32} {vr(Di,16)}, {vr(I+4*h,4)}, {vr(CC+4*h,4)}, {c1}")
    a(f"{M32} {vr(Dr,16)}, {vr(I+4*h,4)}, {vr(SS+4*h,4)}, {vr(Dr,16)}")
    a(f"{M32} {vr(Di,16)}, {vr(R+4*h,4)}, {vr(SN+4*h,4)}, {vr(Di,16)}")
a("s_waitcnt lgkmcnt(4)")
cpass(XR, XI, D1r, D1i, 0, True)
a("s_waitcnt lgkmcnt(0)")
cpass(XR, XI, D1r, D1i, 1, False)
def cp_list(R, I, Dr, Di, h, first):
    c0 = "0" if first else vr(Dr, 16); c1 = "0" if first else vr(Di, 16)
    return [f"{M32} {vr(Dr,16)}, {vr(R+4*h,4)}, {vr(CC+4*h,4)}, {c0}",
            f"{M32} {vr(Di,16)}, {vr(I+4*h,4)}, {vr(CC+4*h,4)}, {c1}",
            f"{M32} {vr(Dr,16)}, {vr(I+4*h,4)}, {vr(SS+4*h,4)}, {vr(Dr,16)}",
            f"{M32} {vr(Di,16)}, {vr(R+4*h,4)}, {vr(SN+4*h,4)}, {vr(Di,16)}"]
pend = []
for h in range(2):
    for i in range(8 * h, 8 * h + 8, 2):
        if pend: a(pend.pop(0))
        for e in range(2):
            k = i + e
            a(f"v_mul_f32 v{t[e]}, v{D1r+k}, v{TC(k)}")
            a(f"v_mul_f32 v{t[2+e]}, v{D1i+k}, v{TC(k)}")
            a(f"v_fmac_f32 v{t[e]}, v{D1i+k}, v{TS_(k)}")
            a(f"v_fma_f32 v{t[2+e]}, -v{D1r+k}, v{TS_(k)}, v{t[2+e]}")
        a(f"v_cvt_pk_bf16_f32 v{XR+i//2}, v{t[0]}, v{t[1]}")
        a(f"v_cvt_pk_bf16_f32 v{XI+i//2}, v{t[2]}, v{t[3]}")
    pend = cp_list(XR, XI, D2r, D2i, h, h == 0)
for m_ in pend: a(m_)
a(f"s_waitcnt vmcnt({NPF if PFAT <= 8 else 0})")
a(f"ds_write_b16 v{vet}, v{vj}")
PK = CC
for c in range(4):
    for e in range(4):
        a(f"v_cvt_pk_bf16_f32 v{PK+4*c+e}, v{D2r+4*c+e}, v{D2i+4*c+e}")
    a(f"ds_write_b128 v{vpw+c}, {vr(PK+4*c,4)}")
a("s_waitcnt lgkmcnt(0)")
ts(3)
a("s_barrier")
a("s_setprio 0")
p2_addr()
p2_item()
wvoff(vW, SC, SC + 1)
ts(4)
a("s_barrier")
ts(5)
EARLY = "early" in OPT
SPLIT = "split" in OPT
E1 = "e1" in OPT or "e2" in OPT
p2_const(hooks=wdma_list(vW, [0] if E1 else [0, 4], (2, 3) if SPLIT else (2, 3, 0, 1)))
ts(6)
a("s_branch L_p2")
a.label("L_h")
a.hist = []
V = VAlloc(6)
t = [V() for _ in range(8)]
XN = V(16, 4); GW = V(8, 4)
srd(8, 92, 2048)
a(f"buffer_load_dwordx4 {vr(GW,4)}, v{vl16}, s[8:11], 0 offen")
a(f"buffer_load_dwordx4 {vr(GW+4,4)}, v{vl16}, s[8:11], 0 offen offset:1024")
if "e2" in OPT:
    wvoff(XN, t[0], t[1])
    for op in wdma_list(XN, [0]): op()
def prewrite():
    if "pw" in OPT or "pws" in OPT:
        a(f"v_lshlrev_b32 v{t[0]}, 7, v0")
        a("s_lshl_b32 s30, s53, 15"); a("s_lshl_b32 s31, s51, 13"); a("s_add_u32 s30, s30, s31"); a(f"s_add_u32 s30, s30, {hx(S_OFF)}")
    if "pw" in OPT or "pwt" in OPT:
        a(f"v_and_b32 v{t[1]}, 3, v0"); a(f"v_lshlrev_b32 v{t[1]}, 7, v{t[1]}"); a(f"v_bfe_u32 v{t[2]}, v0, 2, 3"); a(f"v_lshl_or_b32 v{t[1]}, v{t[2]}, 11, v{t[1]}")
        a(f"s_mul_i32 s31, s2, {TSB}"); a("s_lshl_b32 s29, s51, 9"); a("s_add_u32 s31, s31, s29")
        a("s_mov_b32 exec_hi, 0")
        a(f"buffer_store_dword v{t[1]}, v{t[1]}, s[16:19], s31 offen sc1")
        a("s_mov_b32 exec_hi, -1")
    if "pw" in OPT or "pws" in OPT:
        a(f"buffer_store_dword v{t[0]}, v{t[0]}, s[16:19], s30 offen sc1")
NPW = 2 if "pw" in OPT else (1 if ("pws" in OPT or "pwt" in OPT) else 0)
if "pwl" not in OPT: prewrite()
vnat = V(); a(f"v_add_u32 v{vnat}, s24, v{vl16}")
MA = V(4, 4)
DMB = V(48, 4)
vu = DMB; vA = DMB + 1; vB1 = DMB + 2; vB2 = DMB + 3; vsg = DMB + 4
a(f"v_mov_b32 v{t[3]}, {L_C}"); a(f"v_mov_b32 v{t[4]}, 0")
a(f"ds_write_b32 v{t[3]}, v{t[4]}")
a(f"v_bfe_u32 v{t[0]}, v0, 3, 1"); a(f"v_bfe_u32 v{t[1]}, v0, 1, 1")
a(f"v_lshl_or_b32 v{t[0]}, v{t[0]}, 1, v{t[1]}")
a(f"v_and_or_b32 v{vu}, v0, 4, v{t[0]}")
a(f"v_cvt_f32_u32 v{vu}, v{vu}")
a(f"v_cvt_f32_u32 v{vsg}, v{vL5}")
a(f"v_fma_f32 v{vsg}, v{vsg}, -2.0, 1.0")
a(f"v_mul_f32 v{vA}, v{vu}, v{vsg}")
a(f"v_mul_f32 v{vA}, {fl(0.125)}, v{vA}")
a(f"v_and_b32 v{t[0]}, 1, v0"); a(f"v_cvt_f32_u32 v{t[0]}, v{t[0]}")
a(f"v_mul_f32 v{vB1}, v{t[0]}, v{vsg}"); a(f"v_mul_f32 v{vB1}, {fl(0.25)}, v{vB1}")
a(f"v_cvt_f32_u32 v{t[1]}, s2"); a(f"v_mul_f32 v{t[1]}, {fl(1/256)}, v{t[1]}")
a(f"v_fmac_f32 v{vB1}, v{t[1]}, v{vA}")
a(f"v_add_f32 v{vB2}, {fl(0.25)}, v{vB1}")
for pp in range(4):
    if pp == 0: a(f"v_mov_b32 v{t[0]}, v{vB1}")
    else: a(f"v_fmamk_f32 v{t[0]}, v{vA}, {hx(f2u(2.0*pp))}, v{vB1}")
    a(f"v_fmamk_f32 v{t[1]}, v{vA}, {hx(f2u(2.0*pp+1))}, v{vB2}")
    a(f"v_cos_f32 v{t[2]}, v{t[0]}"); a(f"v_cos_f32 v{t[3]}, v{t[1]}")
    a(f"v_sin_f32 v{t[4]}, v{t[0]}"); a(f"v_sin_f32 v{t[5]}, v{t[1]}")
    a(f"v_add_f32 v{t[2]}, v{t[2]}, v{t[3]}")
    a(f"v_add_f32 v{t[4]}, v{t[4]}, v{t[5]}")
    a(f"v_cvt_pk_bf16_f32 v{MA+pp}, v{t[2]}, v{t[4]}")
vmr = V(5); vk = DMB + 5; vneg = DMB + 6
a("s_lshl_b32 s30, s51, 7")
a(f"v_lshlrev_b32 v{t[0]}, 2, v{vn}")
a(f"v_sub_u32 v{vneg}, 0, v{vL5}")
for q in range(5):
    if q < 4: a(f"v_add3_u32 v{vk}, v{t[0]}, s30, {q}")
    else: a(f"v_add_u32 v{vk}, 512, v{t[0]}")
    a(f"v_xor_b32 v{vk}, v{vk}, v{vneg}"); a(f"v_add_u32 v{vk}, v{vk}, v{vL5}")
    a(f"v_bfe_u32 v{t[1]}, v{vk}, 5, 5")
    a(f"v_bfe_u32 v{t[2]}, v{vk}, 7, 3")
    a(f"v_xor_b32 v{t[3]}, v{vk}, v{t[1]}")
    a(f"v_and_b32 v{t[3]}, 3, v{t[3]}")
    a(f"v_bfe_u32 v{t[4]}, v{vk}, 4, 1")
    a(f"v_lshl_or_b32 v{t[3]}, v{t[3]}, 1, v{t[4]}")
    a(f"v_xor_b32 v{t[3]}, v{t[3]}, v{t[2]}")
    a(f"v_and_b32 v{t[4]}, 12, v{vk}")
    a(f"v_lshl_or_b32 v{t[4]}, v{t[3]}, 4, v{t[4]}")
    a(f"v_lshl_or_b32 v{vmr+q}, v{t[1]}, 7, v{t[4]}")
vts = V(); veo = V(); vet2 = V(); vsig = V(); ves = V()
a(f"v_lshlrev_b32 v{t[0]}, 13, v{vL5}"); a(f"v_lshl_or_b32 v{vts}, v{vn}, 4, v{t[0]}")
EV = V(10, 2)
a(f"v_and_b32 v{t[0]}, 7, v0"); a(f"v_bfe_u32 v{t[1]}, v0, 3, 1")
a(f"v_lshlrev_b32 v{t[2]}, 3, v{t[1]}"); a(f"v_lshl_or_b32 v{ves}, v{t[0]}, 4, v{t[2]}")
a(f"v_and_b32 v{t[2]}, 3, v0"); a(f"v_cmp_eq_u32 vcc, 0, v{t[2]}")
a(f"v_lshrrev_b32 v{t[3]}, 2, v{t[0]}")
a(f"v_cvt_f32_u32 v{t[4]}, v{t[1]}"); a(f"v_fma_f32 v{t[4]}, v{t[4]}, -2.0, 1.0")
a(f"v_cndmask_b32 v{t[3]}, v{t[3]}, v{t[1]}, vcc")
a(f"v_cndmask_b32 v{vsig}, 0, v{t[4]}, vcc")
a(f"v_lshlrev_b32 v{t[0]}, 1, v{t[0]}"); a(f"v_lshl_or_b32 v{t[0]}, v{t[1]}, 6, v{t[0]}"); a(f"v_lshl_or_b32 v{t[0]}, v{t[3]}, 7, v{t[0]}")
a(f"v_add_u32 v{veo}, {L_N}, v{t[0]}"); a(f"v_xor_b32 v{vet2}, 64, v{veo}")
for k in range(8): a(f"v_mov_b32 v{EV+k}, 0")
a(f"s_mul_i32 s8, s2, {TSB}")
a("s_lshl_b32 s9, s51, 9"); a("s_add_u32 s9, s9, s8"); a("s_add_u32 s10, s9, 4096")
a("s_add_u32 s8, s8, 16384")
a("s_mov_b32 s11, 0xffff0000")
acc = V(4, 4); MB4 = V(4, 4); ones = V(); MB = XN
a(f"v_mov_b32 v{ones}, 0x3f803f80")
a(f"v_mov_b32 v{acc}, 0"); a(f"v_mov_b32 v{acc+2}, 0")
sys.stderr.write(f"helper regs {V.n}\n")
assert V.n <= 128, V.n
a("s_waitcnt lgkmcnt(0)")
if "pwl" in OPT: prewrite()
ts(1)
a(f"s_waitcnt vmcnt({10 if 'e2' in OPT else 2}) lgkmcnt(0)")
tags()
a("s_cmp_eq_u32 s51, 1")
if "nopw" not in OPT:
    a("s_cselect_b32 exec_lo, -1, 0"); a("s_cselect_b32 exec_hi, -1, 0")
    for k in range(4): a(f"v_mov_b32 v{DMB+k}, s49")
    a(f"buffer_store_dwordx4 {vr(DMB,4)}, v{vl16}, s[16:19], s57 offen sc1")
a("s_mov_b64 exec, -1")
def ecompute():
    a(f"v_add_f32 v{EV+8}, v{EV}, v{EV+1}"); a(f"v_sub_f32 v{EV+9}, v{EV+2}, v{EV+3}")
    a(f"v_add_f32 v{EV+4}, v{EV+4}, v{EV+5}"); a(f"v_sub_f32 v{EV+6}, v{EV+6}, v{EV+7}")
    a(f"v_fma_f32 v{EV+8}, -v{vsig}, v{EV+6}, v{EV+8}"); a(f"v_fmac_f32 v{EV+9}, v{vsig}, v{EV+4}")
    a("s_cmp_eq_u32 s51, 1"); a("s_cselect_b32 exec_lo, 0xffff, 0"); a("s_mov_b32 exec_hi, 0")
    a(f"buffer_store_dwordx2 {vr(EV+8,2)}, v{ves}, s[16:19], s8 offen sc1")
    a("s_mov_b64 exec, -1")
def gate_main():
    for j in range(8):
        a(f"v_lshlrev_b32 v{t[6]}, 16, v{GW+j}")
        a(f"v_and_b32 v{t[7]}, s11, v{GW+j}")
        for r in range(2):
            a(f"v_lshlrev_b32 v{t[2*r]}, 16, v{XN+8*r+j}")
            a(f"v_and_b32 v{t[2*r+1]}, s11, v{XN+8*r+j}")
        for r in range(2):
            a(f"v_mul_f32 v{t[2*r]}, v{t[2*r]}, v{t[6]}")
            a(f"v_mul_f32 v{t[2*r+1]}, v{t[2*r+1]}, v{t[7]}")
        for r in range(2): a(f"v_cvt_pk_bf16_f32 v{t[4+r]}, v{t[2*r]}, v{t[2*r+1]}")
        for r in range(2): a(f"v_dot2_f32_bf16 v{acc+2*r}, v{t[4+r]}, v{ones}, v{acc+2*r}")
if "e1" in OPT:
    wvoff(DMB + 8, t[0], t[1])
    for op in wdma_list(DMB + 8, [0]): op()
ts(3)
a("s_setprio 2")
a("s_barrier")
ts(4)
o = L_P // 256
a(f"ds_read2st64_b32 {vr(MB4,2)}, v{vmr+4} offset0:{o} offset1:{o+16}")
a(f"ds_read2st64_b32 {vr(MB4+2,2)}, v{vmr+4} offset0:{o+32} offset1:{o+48}")
for q in range(4):
    a(f"ds_read2st64_b32 {vr(MB+4*q,2)}, v{vmr+q} offset0:{o} offset1:{o+16}")
    a(f"ds_read2st64_b32 {vr(MB+4*q+2,2)}, v{vmr+q} offset0:{o+32} offset1:{o+48}")
for k in range(4):
    a(f"ds_read_u16_d16_hi v{EV+k}, v{veo} offset:{16*k}")
    a(f"ds_read_u16_d16_hi v{EV+4+k}, v{vet2} offset:{16*k}")
DN = DMB; DM = [DMB + 8 + 8 * q for q in range(4)]
a("s_waitcnt lgkmcnt(15)")
a(f"{M32} {vr(DN,16)}, {vr(MA,4)}, {vr(MB4,4)}, 0")
for q in range(4):
    a(f"s_waitcnt lgkmcnt({14-2*q})")
    a(f"{M32} {vr(DM[q],16)}, {vr(MA,4)}, {vr(MB+4*q,4)}, 0")
a("s_waitcnt lgkmcnt(0)")
ecompute()
a("s_cmp_eq_u32 s51, 0"); a("s_cselect_b32 exec_lo, 1, 0"); a("s_cselect_b32 exec_hi, 1, 0")
a(f"v_sub_f32 v{DM[0]}, v{DM[0]}, v{DN+1}"); a(f"v_add_f32 v{DM[0]+1}, v{DM[0]+1}, v{DN}")
a("s_mov_b32 exec_lo, 0")
for k in range(2, 8): a(f"v_mov_b32 v{DM[0]+k}, v{DN+k}")
a("s_mov_b64 exec, -1")
OUT = MB
for s_ in range(4):
    for q in range(4):
        a(f"v_cvt_pk_bf16_f32 v{OUT+4*s_+q}, v{DM[q]+2*s_}, v{DM[q]+2*s_+1}")
    a(f"buffer_store_dwordx4 {vr(OUT+4*s_,4)}, v{vts}, s[16:19], {'s9' if s_ < 2 else 's10'} offen offset:{(s_&1)*2048} sc1")
for r in range(2):
    for q in range(2):
        a(f"ds_read_b128 {vr(XN+8*r+4*q,4)}, v{vnat} offset:{r*2048+q*1024}")
a("s_waitcnt lgkmcnt(0)")
a("s_barrier")
ts(5)
a("s_waitcnt vmcnt(4)")
gate_main()
for dpp in ("row_shr:1", "row_shr:2", "row_shr:4", "row_shr:8"):
    for r in range(2):
        a(f"v_add_f32_dpp v{acc+2*r}, v{acc+2*r}, v{acc+2*r} {dpp} row_mask:0xf bank_mask:0xf bound_ctrl:0")
for dpp, rm in (("row_bcast:15", "0xa"), ("row_bcast:31", "0xc")):
    for r in range(2):
        a(f"v_add_f32_dpp v{acc+2*r}, v{acc+2*r}, v{acc+2*r} {dpp} row_mask:{rm} bank_mask:0xf")
a(f"v_cvt_pk_bf16_f32 v{t[0]}, v{acc}, v{acc+2}")
a(f"v_lshlrev_b32 v{t[1]}, 16, v{t[0]}")
a(f"v_and_b32 v{t[2]}, s11, v{t[0]}")
for r in range(2): a(f"v_mul_f32 v{t[1+r]}, {hx(f2u(-1.4426950408889634))}, v{t[1+r]}")
for r in range(2): a(f"v_exp_f32 v{t[1+r]}, v{t[1+r]}")
for r in range(2): a(f"v_add_f32 v{t[1+r]}, 1.0, v{t[1+r]}")
for r in range(2): a(f"v_rcp_f32 v{t[1+r]}, v{t[1+r]}")
a(f"v_cvt_pk_bf16_f32 v{t[0]}, v{t[1]}, v{t[2]}")
a(f"v_lshlrev_b32 v{acc}, 16, v{t[0]}")
a(f"v_and_b32 v{acc+2}, s11, v{t[0]}")
a(f"v_sub_f32 v{t[1]}, 1.0, v{acc}")
a(f"v_sub_f32 v{t[2]}, 1.0, v{acc+2}")
a(f"v_cvt_pk_bf16_f32 v{t[0]}, v{t[1]}, v{t[2]}")
a(f"v_lshlrev_b32 v{acc+1}, 16, v{t[0]}")
a(f"v_and_b32 v{acc+3}, s11, v{t[0]}")
for r in range(4): a(f"v_mul_f32 v{acc+r}, {hx(f2u(2.0**-22))}, v{acc+r}")
a("s_lshl_b32 s30, s51, 4"); a(f"s_add_u32 s30, s30, {L_G}")
a(f"v_mov_b32 v{t[3]}, s30")
a("s_mov_b32 exec_lo, 0"); a("s_mov_b32 exec_hi, 0x80000000")
a(f"ds_write_b128 v{t[3]}, {vr(acc,4)}")
a("s_mov_b64 exec, -1")
a(f"v_mov_b32 v{t[3]}, {L_C}"); a(f"v_mov_b32 v{t[4]}, 1")
for k in range(4): a(f"v_mov_b32 v{DMB+k}, s48")
a("s_mov_b64 exec, 1")
a("s_waitcnt vmcnt(0)")
a(f"ds_add_rtn_u32 v{t[5]}, v{t[3]}, v{t[4]}")
a("s_waitcnt lgkmcnt(0)")
a(f"v_readfirstlane_b32 s30, v{t[5]}")
a("s_cmp_eq_u32 s30, 3"); a("s_cselect_b32 exec_lo, -1, 0"); a("s_cselect_b32 exec_hi, -1, 0")
a(f"buffer_store_dwordx4 {vr(DMB,4)}, v{vl16}, s[16:19], s57 offen {FSF}")
a("s_mov_b64 exec, -1")
def stouch(vt):
    a(f"v_lshlrev_b32 v{vt}, 7, v0")
    a(f"s_mul_i32 s30, s2, {TSB}"); a("s_lshl_b32 s31, s51, 12"); a("s_add_u32 s30, s30, s31"); a(f"s_add_u32 s30, s30, {hx(U_OFF)}")
    a("s_mov_b32 exec_hi, 0")
    a(f"buffer_load_ubyte v1, v{vt}, s[16:19], s30 offen")
    a("s_mov_b32 exec_hi, -1")
if "pt1" in OPT: stouch(t[0])
a("s_setprio 0")
ts(6)
p2_addr(); p2_item(); wvoff(vW, SC, SC + 1); p2_const()
if optint("pa", 0): a(f"s_sleep {optint('pa', 0)}")
a.label("L_p2")
a.hist = []
t = [SC + k for k in range(6)]
if "pt7" in OPT:
    a("s_and_b32 s30, s54, 1"); a("s_cmp_eq_u32 s30, 0"); a("s_cselect_b32 s30, s24, s26"); a(f"s_add_u32 s30, s30, {hx(U_OFF)}")
    a("s_mov_b32 exec_lo, 0x11111111"); a("s_mov_b32 exec_hi, 0x11111111")
    a(f"buffer_load_ubyte v1, v{vT}, s[16:19], s30 offen")
    a("s_mov_b64 exec, -1")
GW_ = "now" in OPT
if GW_: a("s_waitcnt vmcnt(0)")
if "noga" not in OPT: a("s_barrier")
ts(7)
if "pw3" in OPT:
    a(f"v_lshrrev_b32 v{TB}, 2, v0"); a(f"v_and_b32 v{TB+1}, 3, v0"); a(f"v_lshlrev_b32 v{TB+1}, 6, v{TB+1}"); a(f"v_lshl_or_b32 v{TB+2}, v{TB}, 11, v{TB+1}")
    a(f"buffer_store_dword v{TB+2}, v{TB+2}, s[16:19], s30 offen sc1")
poll("L_poll1", vF, TB, "s8", "s48")
def f2pre():
    if "nopw" in OPT: return
    a(f"v_mov_b32 v{TB}, s48"); a(f"v_lshlrev_b32 v{TB+1}, 2, v0")
    a("s_mov_b32 exec_hi, 0")
    a(f"buffer_store_dword v{TB}, v{TB+1}, s[16:19], s9 offen sc1")
    a("s_mov_b32 exec_hi, -1")
ts(8)
if "st2" in OPT: a("s_add_u32 s70, s60, s58")
a.label("L_p2c")
a("s_setprio 1")
a("s_mov_b32 m0, s27")
a(f"buffer_load_dwordx4 v{vT}, s[16:19], s24 offen {TLF} lds")
a("s_add_u32 m0, s27, 1024")
a(f"buffer_load_dwordx4 v{vT}, s[16:19], s26 offen {TLF} lds")
PW2 = "pw2" in OPT or "pw3" in OPT
def pw2():
    a(f"v_lshrrev_b32 v{TB}, 2, v0"); a(f"v_and_b32 v{TB+1}, 3, v0"); a(f"v_lshlrev_b32 v{TB+1}, 6, v{TB+1}"); a(f"v_lshl_or_b32 v{TB}, v{TB}, 11, v{TB+1}")
    if "pwh" in OPT: a("s_mov_b32 exec_lo, 0x55555555"); a("s_mov_b32 exec_hi, 0x55555555")
    a(f"buffer_store_dword v{TB}, v{TB}, s[16:19], s30 offen sc1")
    if "pwh" in OPT: a("s_mov_b64 exec, -1")
if "pw2" in OPT: pw2()
if SPLIT:
    for op in wdma_list(vW, [0], (0, 1)): op()
def wread(ab):
    a("s_not_b32 exec_lo, s52"); a("s_not_b32 exec_hi, s52")
    for arr, cc in ((2*ab, 0), (2*ab+1, 0), (2*ab, 1), (2*ab+1, 1)):
        for i in range(4):
            a(f"ds_read_u16_d16_hi v{Wi(arr,cc,i)}, v{vWr} offset:{1536*arr+768*cc+48*i}")
    a("s_mov_b64 exec, -1")
if UO:
    srd(12, 94, 2048 * 2048)
    a(f"v_lshlrev_b32 v{vF}, 2, v{vc}"); a(f"v_lshl_or_b32 v{vF}, v{vg}, 17, v{vF}")
    a("s_and_b32 s31, s2, 7"); a("s_lshl_b32 s31, s31, 19"); a("s_lshl_b32 s30, s3, 12"); a("s_add_u32 s31, s31, s30"); a("s_lshl_b32 s30, s54, 6"); a("s_add_u32 s31, s31, s30")
if not GW_: a("s_barrier")
if "ptw" in OPT:
    a(f"v_lshrrev_b32 v{TB}, 1, v0"); a(f"v_and_b32 v{TB+1}, 1, v0"); a(f"v_lshlrev_b32 v{TB+1}, 7, v{TB+1}"); a(f"v_lshl_or_b32 v{TB}, v{TB}, 11, v{TB+1}")
    a("s_mov_b32 exec_hi, 0")
    a(f"buffer_load_ubyte v1, v{TB}, s[16:19], s30 offen")
    a("s_mov_b32 exec_hi, -1")
wread(1)
if not SPLIT: wread(0)
PKD = SC + 8
a(f"s_waitcnt vmcnt({4 if SPLIT else (1 if ('pw2' in OPT or 'ptw' in OPT) else 0)})")
if ST: a("s_waitcnt lgkmcnt(0)")
ts(9)
def pt9():
    a("s_and_b32 s30, s54, 1"); a("s_cmp_eq_u32 s30, 0"); a("s_cselect_b32 s30, s24, s26"); a(f"s_add_u32 s30, s30, {hx(U_OFF)}")
    a("s_mov_b32 exec_lo, 0x11111111"); a("s_mov_b32 exec_hi, 0x11111111")
    a(f"buffer_load_ubyte v1, v{vT}, s[16:19], s30 offen")
    a("s_mov_b64 exec, -1")
a("s_lshl_b32 s25, s3, 9"); a(f"s_add_u32 s25, s25, {L_E}"); a("s_mov_b32 m0, s25")
a("s_mov_b32 exec_lo, s59"); a("s_mov_b32 exec_hi, 0")
a(f"buffer_load_dwordx4 v{vEa}, s[16:19], s50 offen sc1 lds")
a("s_mov_b64 exec, -1")
a(f"ds_read2_b32 {vr(TB,2)}, v{vTr} offset0:0 offset1:16")
a(f"ds_read2_b32 {vr(TB+2,2)}, v{vTr} offset0:32 offset1:48")
a(f"v_add_u32 v{vTr}, 1024, v{vTr}")
a(f"ds_read2_b32 {vr(TB+4,2)}, v{vTr} offset0:0 offset1:16")
a(f"ds_read2_b32 {vr(TB+6,2)}, v{vTr} offset0:32 offset1:48")
a.label("L_p2e")
for bb in range(2):
    a(f"s_waitcnt lgkmcnt({2-2*bb})")
    a(f"{M16} {vr(D+8*bb,4)}, {vr(Fr,4)}, {vr(TB+4*bb,4)}, 0")
    a(f"{M16} {vr(D+8*bb+4,4)}, {vr(Fm,4)}, {vr(TB+4*bb,4)}, 0")
for ip in range(2):
    for cc in range(2):
        for bb in range(2):
            i = 2 * ip + cc
            a(f"v_cvt_pk_bf16_f32 v{PKD+4*ip+2*cc+bb}, v{D+8*bb+i}, v{D+8*bb+4+i}")
    a(f"ds_write_b128 v{vw1}, {vr(PKD+4*ip,4)} offset:{ip*256}")
a("s_waitcnt lgkmcnt(0)")
f2pre()
a("s_barrier")
OB = TB
for cc in range(2):
    for h in range(2):
        a(f"ds_read_b64 {vr(OB+4*cc+2*h,2)}, v{vr1} offset:{h*2048+cc*8}")
X = D
for cc in range(2):
    a(f"s_waitcnt lgkmcnt({2-2*cc})")
    a(f"{M16} {vr(X+8*cc,4)}, {vr(M2+8*cc,4)}, {vr(OB+4*cc,4)}, 0")
    a(f"{M16} {vr(X+8*cc+4,4)}, {vr(M2+8*cc+4,4)}, {vr(OB+4*cc,4)}, 0")
YO = [PKD, PKD + 4, PKD, PKD + 4]
tpr = [(vT, vTr), (vr1, vw1)]
def dpt(cc, ab, ri): return WW + 16 * cc + 8 * ab + 4 * ri
def wmul(cc, ab):
    n = 2 * cc + ab
    xr = X + 8 * cc; xi = X + 8 * cc + 4
    for i in range(4):
        wr = Wi(2 * ab, cc, i); wi = Wi(2 * ab + 1, cc, i)
        y0, y1 = tpr[i & 1]
        a(f"v_mul_f32 v{y0}, v{xr+i}, v{wr}")
        a(f"v_mul_f32 v{y1}, v{xi+i}, v{wr}")
        a(f"v_fma_f32 v{y0}, -v{xi+i}, v{wi}, v{y0}")
        a(f"v_fmac_f32 v{y1}, v{xr+i}, v{wi}")
        a(f"v_cvt_pk_bf16_f32 v{YO[n]+i}, v{y1}, v{y0}")
    a(f"{M16} {vr(dpt(cc,ab,0),4)}, {vr(MT+8*cc,4)}, {vr(YO[n],4)}, 0")
    a(f"{M16} {vr(dpt(cc,ab,1),4)}, {vr(MT+8*cc+4,4)}, {vr(YO[n],4)}, 0")
XP2 = X
def x2_write(ab, dst):
    for ip in range(2):
        for cc in range(2):
            for bb in range(2):
                i = 2 * ip + bb
                a(f"v_cvt_pk_bf16_f32 v{dst+4*ip+2*bb+cc}, v{dpt(cc,ab,0)+i}, v{dpt(cc,ab,1)+i}")
        a(f"ds_write_b128 v{vw2}, {vr(dst+4*ip,4)} offset:{3072*ab+ip*256}")
def x2_read(ab, dst):
    for bb in range(2):
        for h in range(2):
            a(f"ds_read_b64 {vr(dst+4*bb+2*h,2)}, v{vr2} offset:{WR*h+3072*ab+bb*8}")
def last_mfma(src, out):
    a(f"{M16} {vr(out,4)}, {vr(Fr,4)}, {vr(src,4)}, 0")
    a(f"{M16} {vr(out+4,4)}, {vr(Fm,4)}, {vr(src,4)}, 0")
def s_store(ab, bb, out):
    for i in range(4):
        a(f"v_cvt_pk_bf16_f32 v{out+i}, v{out+4+i}, v{out+i}")
        if UO and ab:
            a(f"s_add_u32 s30, s31, {hx(16*i*2048)}")
            a(f"buffer_store_dword v{out+i}, v{vF}, s[12:15], s30 offen offset:{bb*2048} {SSF}")
            continue
        a(f"s_add_u32 s30, s24, {hx((16*i+bb)*TSB + ab*U_OFF)}")
        a(f"buffer_store_dword v{out+i}, v{vS}, s[16:19], s30 offen {SSF}")
B1 = WW + 8; B2 = WW + 24
YO = [PKD, PKD, PKD + 4, PKD + 4]
def tail():
    x2_write(1, PKD)
    if SPLIT:
        a(f"s_waitcnt vmcnt({0 if 'nopw' in OPT else 1})")
        wread(0)
    a("s_waitcnt lgkmcnt(0)")
    a("s_barrier")
a("s_cmp_lg_u32 s54, 0")
a("s_cbranch_scc0 L_el")
a.label("L_elb")
wmul(0, 1); wmul(1, 1)
tail()
a.label("L_spb")
x2_read(1, B2)
if "t1" not in OPT:
    a("s_waitcnt lgkmcnt(2)")
    last_mfma(B2, B1)
    a("s_waitcnt lgkmcnt(0)")
    last_mfma(B2 + 4, M2)
    wmul(0, 0)
    s_store(1, 0, B1)
    wmul(1, 0)
    s_store(1, 1, M2)
    x2_write(0, D)
else:
    wmul(0, 0)
    a("s_waitcnt lgkmcnt(0)")
    last_mfma(B2, B1)
    last_mfma(B2 + 4, M2)
    wmul(1, 0)
    s_store(1, 0, B1)
    x2_write(0, D)
    s_store(1, 1, M2)
a("s_waitcnt lgkmcnt(0)")
a("s_barrier")
x2_read(0, B2)
a("s_waitcnt lgkmcnt(2)")
last_mfma(B2, MT)
a("s_waitcnt lgkmcnt(0)")
last_mfma(B2 + 4, MT + 8)
s_store(0, 0, MT)
s_store(0, 1, MT + 8)
X4 = False
ts(10)
if "swb" in OPT:
    a("s_waitcnt vmcnt(0)")
    a("buffer_wbl2 sc1")
amx_post(t[0])
LATE = optint("late", 1)
a("s_mov_b32 s27, s9")
if LATE == 0:
    setflag(t[0], "s27", "s49")
    if "st2" in OPT: ts(1)
a("s_setprio 0")
V = VAlloc(8)
vg_ = vg; vc_ = vc
t = [V() for _ in range(6)]
vS3 = 1; vN = 2; vF3 = 7; AP8 = V(); AMx = V()
MR = V(16, 4); MI = V(16, 4); X = V(16, 4)
BA = V(24, 4); BB = V(24, 4); TCh = V(8); TSh = V(8)
assert V.n <= 128, V.n
D1r = BA + 8; D1i = BB + 8; D2r = BA; D2i = BB
SBt = [D1r, D1r + 4, D1r + 8, D1r + 12, X]
DDt = [D1i, D1i + 4, D1i + 8, D1i + 12, X + 4]
MA = X + 8; AP = X + 12; AM = [X + 13, X + 14, X + 15, AMx]
CS = D1r; GG = D1i
a(f"v_bfe_u32 v{t[0]}, v0, 2, 2"); a(f"v_lshlrev_b32 v{t[1]}, 4, v{t[0]}")
a(f"v_add_u32 v{t[1]}, {L_G}, v{t[1]}")
a(f"ds_read_b128 {vr(GG,4)}, v{t[1]}")
if X4:
    a(f"v_and_b32 v{t[1]}, 1, v0"); a(f"v_lshlrev_b32 v{t[1]}, 3, v{t[1]}")
    a(f"v_lshl_or_b32 v{t[1]}, v{t[0]}, 4, v{t[1]}")
    a(f"v_bfe_u32 v{t[2]}, v0, 1, 1"); a(f"v_lshl_or_b32 v{t[1]}, v{t[2]}, 6, v{t[1]}")
else:
    a(f"v_lshlrev_b32 v{t[1]}, 2, v{vc_}")
SD = "sd" in OPT
RS = 2080
if SD:
    a(f"v_mul_u32_u24 v{vS3}, {2*RS}, v{vg_}"); a(f"v_add_u32 v{vS3}, v{vS3}, v{t[1]}")
    a(f"v_lshlrev_b32 v{vN}, 4, v0")
else:
    a(f"v_lshl_or_b32 v{vS3}, v{vg_}, 12, v{t[1]}")
    a(f"v_lshl_or_b32 v{vN}, v{vg_}, 20, v{t[1]}")
a("s_xor_b32 s50, s3, 4")
a(f"s_mul_i32 s8, s2, {TSB}")
if SD:
    a("s_lshl_b32 s11, s50, 6"); a(f"s_add_u32 s11, s11, {L_W}"); a(f"v_add_u32 v{vS3}, s11, v{vS3}"); a(f"v_add_u32 v{AP8}, {RS}, v{vS3}")
    a("s_lshl_b32 s11, s3, 11"); a("s_add_u32 s8, s8, s11"); a(f"s_add_u32 s10, s8, {hx(U_OFF)}")
    a(f"s_mul_i32 s9, s3, {RS}"); a(f"s_add_u32 s9, s9, {L_W}")
else:
    a("s_lshl_b32 s11, s50, 6"); a("s_add_u32 s8, s8, s11"); a(f"s_add_u32 s10, s8, {hx(U_OFF)}")
    if UO:
        a("s_lshl_b32 s10, s2, 11"); a("s_add_u32 s10, s10, s11"); a("s_add_u32 s9, s10, 0x80000")
if SD:
    a("s_lshl_b32 s11, s3, 5"); a(f"v_add_u32 v{t[1]}, s11, v{vn}")
else:
    a(f"v_bfe_u32 v{t[1]}, v0, 2, 3"); a(f"v_and_b32 v{t[2]}, 3, v0"); a(f"v_lshlrev_b32 v{t[2]}, 3, v{t[2]}")
    a(f"v_lshl_add_u32 v{t[1]}, v{t[1]}, 5, v{t[2]}"); a(f"v_add_u32 v{t[1]}, s50, v{t[1]}")
a("s_cmp_eq_u32 s50, 0"); a("s_cselect_b32 s24, 0x00010001, 0")
a(f"v_lshlrev_b32 v{vF3}, 10, v{t[1]}")
a("s_bfe_u32 s11, s2, 0x30001"); a("s_lshl_b32 s11, s11, 7"); a(f"s_add_u32 s11, s11, {hx(F2_OFF)}")
vsg = X; ve = X + 1; vstep = X + 2; vpe = X + 3; vpo = X + 4; vk = X + 5; vpl = X + 6
a(f"v_bfe_u32 v{t[1]}, v0, 1, 1"); a(f"v_cvt_f32_u32 v{vsg}, v{t[1]}")
a(f"v_mul_f32 v{vsg}, -0.5, v{vsg}"); a(f"v_add_f32 v{vsg}, {fl(0.25)}, v{vsg}")
a(f"v_and_b32 v{t[1]}, 1, v0"); a(f"v_cvt_f32_u32 v{t[1]}, v{t[1]}")
a(f"v_mul_f32 v{ve}, v{t[1]}, v{vsg}")
a(f"v_lshlrev_b32 v{t[0]}, 9, v{t[0]}"); a(f"v_add_u32 v{t[0]}, s2, v{t[0]}")
a(f"v_cvt_f32_u32 v{vstep}, v{t[0]}"); a(f"v_mul_f32 v{vstep}, {hx(f2u(-1/2048))}, v{vstep}")
a(f"v_cvt_f32_u32 v{t[2]}, v{vg_}"); a(f"v_add_f32 v{t[2]}, v{t[2]}, v{t[2]}")
a(f"v_fma_f32 v{vpe}, v{t[2]}, v{vstep}, v{ve}")
a(f"v_sub_f32 v{vpo}, v{vpe}, v{vsg}")
a(f"v_fmamk_f32 v{vpo}, v{t[2]}, {hx(f2u(-0.125))}, v{vpo}")
for lo in range(2):
    if lo:
        a(f"v_add_f32 v{vpe}, v{vpe}, v{vstep}")
        a(f"v_add_f32 v{vpo}, v{vpo}, v{vstep}"); a(f"v_add_f32 v{vpo}, {hx(f2u(-0.125))}, v{vpo}")
    a(f"v_cos_f32 v{CS+4*lo}, v{vpe}"); a(f"v_sin_f32 v{CS+4*lo+1}, v{vpe}")
    a(f"v_cos_f32 v{CS+4*lo+2}, v{vpo}"); a(f"v_sin_f32 v{CS+4*lo+3}, v{vpo}")
a("s_lshl_b32 s25, s50, 4")
a(f"v_lshlrev_b32 v{vpl}, 12, v{vg_}")
a(f"v_add_u32 v{vk}, s25, v{vc_}")
a(f"v_and_b32 v{t[3]}, 14, v{vk}"); a(f"v_lshl_or_b32 v{t[3]}, v{t[3]}, 3, v{vpl}")
a(f"v_and_b32 v{t[4]}, 31, v{vk}"); a(f"v_lshl_or_b32 v{t[3]}, v{t[4]}, 7, v{t[3]}")
a(f"v_bfe_u32 v{t[4]}, v{vk}, 5, 2"); a(f"v_lshl_or_b32 v{AP}, v{t[4]}, 2, v{t[3]}")
a(f"v_sub_u32 v{t[5]}, 0, v{vk}")
a(f"v_and_b32 v{t[4]}, 31, v{t[5]}"); a(f"v_lshl_or_b32 v{t[3]}, v{t[4]}, 7, v{vpl}")
a(f"v_and_b32 v{t[4]}, 14, v{t[5]}"); a(f"v_lshl_or_b32 v{t[3]}, v{t[4]}, 3, v{t[3]}")
a(f"v_lshrrev_b32 v{t[5]}, 3, v{t[5]}")
for tt in range(4):
    if tt: a(f"v_subrev_u32 v{t[5]}, 16, v{t[5]}")
    a(f"v_and_b32 v{t[4]}, 0x7c, v{t[5]}")
    a(f"v_xor_b32 v{AM[tt]}, v{t[4]}, v{t[3]}")
a("s_mov_b32 exec_lo, s24"); a("s_mov_b32 exec_hi, s24")
a(f"v_or_b32 v{AM[0]}, 64, v{vpl}")
a("s_mov_b64 exec, -1")
a("s_waitcnt lgkmcnt(0)")
for lo in range(2):
    for ab in range(2):
        a(f"v_mul_f32 v{t[0]}, v{GG+ab}, v{CS+4*lo}"); a(f"v_mul_f32 v{t[1]}, v{GG+ab}, v{CS+4*lo+1}")
        a(f"v_fmac_f32 v{t[0]}, v{GG+2+ab}, v{CS+4*lo+2}"); a(f"v_fmac_f32 v{t[1]}, v{GG+2+ab}, v{CS+4*lo+3}")
        a(f"v_cvt_pk_bf16_f32 v{MA+2*lo+ab}, v{t[0]}, v{t[1]}")
if LATE == 1:
    setflag(t[0], "s27", "s49")
    if "st2" in OPT: ts(1)
a("s_cmp_eq_u32 s3, 4")
a("s_cbranch_scc1 L_m0")
a("s_cmp_ge_u32 s3, 4")
a("s_cbranch_scc1 L_p3b")
TC = lambda k: BA + k if k < 8 else TCh + k - 8
TS_ = lambda k: BB + k if k < 8 else TSh + k - 8
vb = X; vo = X + 1
a(f"v_cvt_f32_u32 v{vb}, v{vn}"); a(f"v_cvt_f32_u32 v{vo}, v{vL5}")
a(f"v_mul_f32 v{vb}, {fl(1/32)}, v{vb}"); a(f"v_mul_f32 v{vo}, 4.0, v{vo}"); a(f"v_mul_f32 v{vo}, v{vb}, v{vo}")
for i in range(16):
    kc = 8 * (i // 4) + i % 4
    if kc == 0: a(f"v_mov_b32 v{t[0]}, v{vo}")
    else: a(f"v_fmamk_f32 v{t[0]}, v{vb}, {hx(f2u(float(kc)))}, v{vo}")
    a(f"v_cos_f32 v{t[1]}, v{t[0]}"); a(f"v_sin_f32 v{t[2]}, v{t[0]}")
    a(f"v_mul_f32 v{t[0]}, {fl(1/32)}, v{t[0]}")
    a(f"v_cvt_pk_bf16_f32 v{MR+i}, v{t[1]}, -v{t[2]}")
    a(f"v_cvt_pk_bf16_f32 v{MI+i}, v{t[2]}, v{t[1]}")
    a(f"v_cos_f32 v{TC(i)}, v{t[0]}"); a(f"v_sin_f32 v{TS_(i)}, v{t[0]}")
a.label("L_p3b")
if "nogb" not in OPT: a("s_barrier")
if optint("pb", 0): a(f"s_sleep {optint('pb', 0)}")
ts(11)
poll("L_poll2", vF3, t[0], "s11", "s49")
ts(12)
if "st2" in OPT: a("s_add_u32 s64, s60, s58")
if SD:
    for ab in range(2):
        a(f"s_add_u32 m0, s9, {ab*8*RS}")
        a(f"buffer_load_dwordx4 v{vN}, s[16:19], {'s10' if ab else 's8'} offen {SLF} lds")
        a(f"buffer_load_dwordx4 v{vN}, s[16:19], {'s10' if ab else 's8'} offen offset:1024 {SLF} lds")
    a("s_waitcnt vmcnt(0)")
    a("s_barrier")
    for tt in range(4):
        for lo in range(2):
            a(f"ds_read2st64_b32 {vr(SBt[tt]+2*lo,2)}, v{AP8 if lo else vS3} offset0:{2*tt} offset1:{2*tt + 8*RS//256}")
else:
  for tt in range(4):
    for lo in range(2):
        for ab in range(2):
            if UO and ab:
                a(f"buffer_load_dword v{SBt[tt]+2*lo+ab}, v{vN}, s[12:15], {'s9' if lo else 's10'} offen offset:{tt*512} {SLF}")
                continue
            a(f"buffer_load_dword v{SBt[tt]+2*lo+ab}, v{vS3}, s[16:19], {'s10' if ab else 's8'} offen offset:{tt*512+lo*2048} {SLF}")
MA0 = MR
def fin(tt):
    d = DDt[tt]
    if tt == 0:
        a("s_mov_b32 exec_lo, s24"); a("s_mov_b32 exec_hi, s24")
        for k in range(4): a(f"v_mov_b32 v{d+k}, v{DDt[4]+k}")
        a("s_mov_b64 exec, -1")
    a(f"v_cvt_pk_bf16_f32 v{d}, v{d}, v{d+1}")
    a(f"v_cvt_pk_bf16_f32 v{d+1}, v{d+2}, v{d+3}")
    if tt: a(f"v_xor_b32 v{t[tt]}, {tt<<4}, v{AP}")
    a(f"ds_write_b32 v{t[tt] if tt else AP}, v{d}")
    a(f"ds_write_b32 v{AM[tt]}, v{d+1}")
if SD:
    for tt in range(4):
        a(f"s_waitcnt lgkmcnt({6-2*tt})")
        a(f"{M16} {vr(DDt[tt],4)}, {vr(MA,4)}, {vr(SBt[tt],4)}, 0")
        if tt == 0: a(f"{M16} {vr(DDt[4],4)}, {vr(MA0,4)}, {vr(SBt[0],4)}, 0")
    for tt in range(4): fin(tt)
else:
    for tt in range(4):
        a(f"s_waitcnt vmcnt({12-4*tt})")
        a(f"{M16} {vr(DDt[tt],4)}, {vr(MA,4)}, {vr(SBt[tt],4)}, 0")
        if tt == 0: a(f"{M16} {vr(DDt[4],4)}, {vr(MA0,4)}, {vr(SBt[0],4)}, 0")
        if tt >= 1: fin(tt - 1)
    fin(3)
vst = vS3
a(f"v_bfe_u32 v{t[4]}, v{vn}, 1, 3"); a(f"v_xor_b32 v{t[4]}, v{t[4]}, v{vL5}"); a(f"v_lshlrev_b32 v{t[4]}, 4, v{t[4]}")
a(f"v_lshl_or_b32 v{t[4]}, v{vn}, 7, v{t[4]}"); a("s_lshl_b32 s26, s51, 12")
a("s_waitcnt lgkmcnt(0)")
a(f"v_add_u32 v{t[0]}, s26, v{t[4]}")
for q in range(1, 4): a(f"v_xor_b32 v{t[q]}, {32*q}, v{t[0]}")
a(f"v_lshlrev_b32 v{t[4]}, 4, v{vL5}"); a(f"v_lshl_or_b32 v{vst}, v{vn}, 6, v{t[4]}")
srd(12, 94, 2048 * 2048)
a("s_add_u32 s30, s22, 0x80000")
if "st2" in OPT: ts(3)
a("s_barrier")
if "st2" in OPT: ts(4)
a("s_cmp_ge_u32 s3, 4")
a("s_cbranch_scc1 L_hx")
for q in range(4): a(f"ds_read_b128 {vr(X+4*q,4)}, v{t[q]}")
for q in range(4):
    a(f"s_waitcnt lgkmcnt({3-q})")
    a(f"{M32} {vr(D1r,16)}, {vr(X+4*q,4)}, {vr(MR+4*q,4)}, {'0' if q == 0 else vr(D1r,16)}")
    a(f"{M32} {vr(D1i,16)}, {vr(X+4*q,4)}, {vr(MI+4*q,4)}, {'0' if q == 0 else vr(D1i,16)}")
if "nool" not in OPT:
    ta = [AP8, AMx, 2, 7]; tb = 5; tc_ = 6
    a(f"v_bfe_u32 v{t[2]}, v{vn}, 1, 2"); a(f"v_lshlrev_b32 v{t[2]}, 4, v{t[2]}"); a(f"v_lshl_or_b32 v{t[2]}, v{vn}, 6, v{t[2]}")
    a(f"v_lshl_or_b32 v{t[2]}, v{vL5}, 3, v{t[2]}"); a(f"v_add_u32 v{ta[0]}, s26, v{t[2]}")
    for c in range(1, 4): a(f"v_xor_b32 v{ta[c]}, {16*c}, v{ta[0]}")
    a(f"v_lshlrev_b32 v{tc_}, 4, v0"); a(f"v_bfe_u32 v{t[2]}, v0, 3, 2"); a(f"v_lshlrev_b32 v{t[2]}, 4, v{t[2]}")
    a(f"v_xor_b32 v{tb}, v{tc_}, v{t[2]}"); a(f"v_add_u32 v{tb}, s26, v{tb}")
def p2m(q):
    a(f"{M32} {vr(D2r,16)}, {vr(X+4*q,4)}, {vr(MR+4*q,4)}, {'0' if q == 0 else vr(D2r,16)}")
    a(f"{M32} {vr(D2i,16)}, {vr(X+4*q,4)}, {vr(MI+4*q,4)}, {'0' if q == 0 else vr(D2i,16)}")
def p2l(q):
    return [f"{M32} {vr(D2r,16)}, {vr(X+4*q,4)}, {vr(MR+4*q,4)}, {'0' if q == 0 else vr(D2r,16)}",
            f"{M32} {vr(D2i,16)}, {vr(X+4*q,4)}, {vr(MI+4*q,4)}, {'0' if q == 0 else vr(D2i,16)}"]
pend = []
for q in range(4):
    for e in range(4):
        k = 4 * q + e
        if pend and (q == 2 or (e & 1) == 1): a(pend.pop(0))
        a(f"v_mul_f32 v{t[0]}, v{D1r+k}, v{TC(k)}")
        a(f"v_mul_f32 v{t[1]}, v{D1i+k}, v{TC(k)}")
        a(f"v_fma_f32 v{t[0]}, -v{D1i+k}, v{TS_(k)}, v{t[0]}")
        a(f"v_fmac_f32 v{t[1]}, v{D1r+k}, v{TS_(k)}")
        a(f"v_cvt_pk_bf16_f32 v{X+k}, v{t[0]}, v{t[1]}")
    if q == 1: pend += p2l(0) + p2l(1)
    if q >= 2: pend += p2l(q)
for m_ in pend: a(m_)
O = MR
OL = "nool" not in OPT
if OL:
    for r, Dx in enumerate((D2r, D2i)):
        for c in range(4):
            o = O + 8 * r + 2 * c
            a(f"v_cvt_pk_bf16_f32 v{o}, v{Dx+4*c}, v{Dx+4*c+1}"); a(f"v_cvt_pk_bf16_f32 v{o+1}, v{Dx+4*c+2}, v{Dx+4*c+3}")
            a(f"ds_write_b64 v{ta[c]}, {vr(o,2)} offset:{2048*r}")
    a("s_waitcnt lgkmcnt(0)")
    for q in range(4): a(f"ds_read_b128 {vr(MI+4*q,4)}, v{tb} offset:{1024*q}")
    for q in range(4):
        a(f"s_waitcnt lgkmcnt({3-q})")
        a(f"buffer_store_dwordx4 {vr(MI+4*q,4)}, v{tc_}, s[12:15], {'s22' if q < 2 else 's30'} offen offset:{1024*(q&1)}{OSF}")
else:
  for r, (Dx, so) in enumerate(((D2r, "s22"), (D2i, "s30"))):
    for c2 in range(2):
        o = O + 8 * r + 4 * c2
        for e in range(4):
            a(f"v_cvt_pk_bf16_f32 v{o+e}, v{Dx+8*c2+2*e}, v{Dx+8*c2+2*e+1}")
        a(f"v_permlane32_swap_b32 v{o}, v{o+2}")
        a(f"v_permlane32_swap_b32 v{o+1}, v{o+3}")
        a(f"buffer_store_dwordx4 {vr(o,4)}, v{vst}, s[12:15], {so} offen offset:{32*c2}{OSF}")
a.label("L_fin")
stamp_end(32)
a.label("L_end")
a("s_endpgm")
a.label("L_hx")
a("s_lshl_b32 s26, s2, 3"); a("s_add_u32 s26, s26, s3")
a("s_cmp_lg_u32 s26, 4")
a("s_cbranch_scc1 L_fin")
a(f"s_mov_b32 s26, {hx(EP_OFF)}")
setflag(8, "s26", "s49")
a("s_branch L_fin")
a.label("L_m0")
a.hist = []
q_ = [MI + k for k in range(16)]
gaa = q_[0]; gbb = q_[1]; ph = q_[2]; st_ = q_[3]; c_ = q_[4]; s__ = q_[5]; al = q_[6]; be = q_[7]
a(f"v_and_b32 v{t[0]}, 1, v0"); a(f"v_cmp_eq_u32 vcc, 1, v{t[0]}")
a(f"v_bfe_u32 v{t[1]}, v0, 2, 2"); a(f"v_lshl_or_b32 v{t[1]}, v{t[1]}, 1, v{t[0]}")
a(f"v_cndmask_b32 v{gaa}, v{GG}, v{GG+2}, vcc"); a(f"v_cndmask_b32 v{gbb}, v{GG+1}, v{GG+3}, vcc")
a(f"v_lshlrev_b32 v{t[1]}, 8, v{t[1]}"); a(f"v_add_u32 v{t[1]}, s2, v{t[1]}")
a(f"v_cvt_f32_u32 v{st_}, v{t[1]}"); a(f"v_mul_f32 v{st_}, {hx(f2u(1/2048))}, v{st_}")
a(f"v_cvt_f32_u32 v{ph}, v{vg_}"); a(f"v_add_f32 v{ph}, v{ph}, v{ph}"); a(f"v_mul_f32 v{ph}, v{ph}, v{st_}")
a(f"v_bfe_u32 v{t[2]}, v0, 1, 1")
a(f"v_lshrrev_b32 v{t[3]}, 1, v{vg_}"); a(f"v_cmp_eq_u32 s[4:5], v{t[2]}, v{t[3]}")
a(f"v_and_b32 v{t[3]}, 1, v{vg_}"); a(f"v_cmp_eq_u32 s[6:7], 0, v{t[3]}")
a(f"v_cmp_eq_u32 s[28:29], 0, v{t[2]}")
a(f"v_cndmask_b32 v{q_[8]}, 0, v{gaa}, s[4:5]"); a(f"v_cndmask_b32 v{q_[9]}, 0, v{gbb}, s[4:5]")
a(f"v_mul_f32 v{q_[10]}, {fl(0.25)}, v{gaa}"); a(f"v_mul_f32 v{q_[11]}, {fl(0.25)}, v{gbb}")
for lo in range(2):
    if lo: a(f"v_add_f32 v{ph}, v{ph}, v{st_}")
    a(f"v_cos_f32 v{c_}, v{ph}"); a(f"v_sin_f32 v{s__}, v{ph}")
    for ab in range(2):
        if lo == 0:
            if ab == 0:
                a(f"v_cndmask_b32 v{al}, 0, v{q_[10]}, s[28:29]"); a(f"v_cndmask_b32 v{be}, 0, v{q_[11]}, s[28:29]")
            else:
                a(f"v_cndmask_b32 v{al}, v{q_[10]}, 0, s[28:29]"); a(f"v_cndmask_b32 v{be}, v{q_[11]}, 0, s[28:29]")
            a(f"v_cndmask_b32 v{al}, v{q_[8+ab]}, v{al}, s[6:7]"); a(f"v_cndmask_b32 v{be}, 0, v{be}, s[6:7]")
            a(f"v_mul_f32 v{t[0]}, v{al}, v{c_}"); a(f"v_fmac_f32 v{t[0]}, v{be}, v{s__}")
            a(f"v_mul_f32 v{t[1]}, v{be}, v{c_}"); a(f"v_fma_f32 v{t[1]}, -v{al}, v{s__}, v{t[1]}")
            a(f"v_cvt_pk_bf16_f32 v{MA0+2*lo+ab}, v{t[0]}, v{t[1]}")
        else:
            a(f"v_mul_f32 v{t[0]}, v{q_[8+ab]}, v{c_}"); a(f"v_mul_f32 v{t[1]}, v{q_[8+ab]}, v{s__}")
            a(f"v_cvt_pk_bf16_f32 v{MA0+2*lo+ab}, v{t[0]}, -v{t[1]}")
a("s_branch L_p3b")
a.label("L_el")
a.hist = []
a(f"v_lshlrev_b32 v{vEa}, 6, v{vg}"); a(f"v_add_u32 v{vEa}, s25, v{vEa}")
a("s_mov_b32 exec_lo, s52"); a("s_mov_b32 exec_hi, s52")
a(f"s_waitcnt vmcnt({0 if 'nopw' in OPT else 1})")
for ab in (1, 0):
    for cc in range(2):
        for i in range(4):
            a(f"ds_read_b64 {vr(Wi(2*ab,cc,i),2)}, v{vEa} offset:{256*cc+16*i+8*ab}")
a("s_mov_b64 exec, -1")
a("s_and_b32 s29, s2, 0xfb")
a("s_cmp_eq_u32 s29, 0")
a("s_cbranch_scc1 L_sp")
a("s_waitcnt lgkmcnt(0)")
a("s_branch L_elb")
a.label("L_sp")
a.hist = []
X = XP2
ts(3)
a("s_lshr_b32 s29, s2, 2"); a("s_lshl_b32 s10, s3, 1"); a("s_add_u32 s29, s29, s10"); a("s_sub_u32 s29, 16, s29")
for cc in range(2):
    a(f"s_sub_u32 s10, s29, {cc}"); a("s_and_b32 s10, s10, 15")
    a("s_lshr_b32 s11, s10, 1"); a("s_lshl_b32 s11, s11, 8"); a("s_and_b32 s10, s10, 1"); a("s_lshl_b32 s10, s10, 3"); a("s_add_u32 s10, s10, s11")
    a(f"v_lshlrev_b32 v{tpr[0][cc]}, 12, v{vg}"); a(f"v_add_u32 v{tpr[0][cc]}, s10, v{tpr[0][cc]}")
for k in range(8): a(f"v_mov_b32 v{TB+k}, 0")
a("s_mov_b32 exec_lo, 0x00010001"); a("s_mov_b32 exec_hi, 0x00010001")
for cc in range(2):
    for h in range(2):
        a(f"ds_read_b64 {vr(TB+4*cc+2*h,2)}, v{tpr[0][cc]} offset:{h*2048}")
a("s_mov_b32 s10, 0x00008000"); a("s_mov_b32 s11, 0x80008000")
a("s_waitcnt lgkmcnt(0)")
for k in range(8): a(f"v_xor_b32 v{TB+k}, s10, v{TB+k}")
a("s_mov_b64 exec, -1")
ts(4)
a("s_cmp_lg_u32 s2, 0")
a("s_cbranch_scc1 L_sp4")
def sp_body(mats):
    def acc(cc):
        a(f"{M16} {vr(X+8*cc,4)}, {vr(mats[cc],4)}, {vr(TB+4*cc,4)}, {vr(X+8*cc,4)}")
        a(f"{M16} {vr(X+8*cc+4,4)}, {vr(mats[cc]+4,4)}, {vr(TB+4*cc,4)}, {vr(X+8*cc+4,4)}")
    acc(0); acc(1)
    a("s_mov_b32 exec_lo, 0x00010001"); a("s_mov_b32 exec_hi, 0x00010001")
    for k in range(8): a(f"v_xor_b32 v{TB+k}, s11, v{TB+k}")
    a("s_mov_b64 exec, -1")
    wmul(0, 1); acc(0); acc(0)
    wmul(1, 1); acc(1); acc(1)
    tail()
    ts(6)
    a("s_nop 7")
    a("s_branch L_spb")
sp_body([M2, M2 + 8])
a.label("L_sp4")
a.hist = []
a("s_nop 1")
sp_body([M2 + 8, MX])

nv = (a.maxv + 1 + 7) // 8 * 8
out = """; gated_mix(spectral_gfnet A, spectral_gfnet B): out = g*irfft2(rfft2(x)*Wa) + (1-g)*irfft2(rfft2(x)*Wb)
; One persistent kernel, 256 workgroups x 8 waves, all transforms done as bf16 MFMA DFT passes (fp32 accumulate).
"""
out += f"; @launch grid=(256,1,1) block=(512,1,1) lds={LDS_BYTES}\n"
out += '.amdgcn_target "amdgcn-amd-amdhsa--gfx950"\n.text\n'
out += f".globl {NAME}\n.p2align 8\n.type {NAME},@function\n" + a.text() + ".rept 96\n    s_endpgm\n.endr\nL_code_end:\n"
out += f""".section .rodata,"a"
.p2align 6
.amdhsa_kernel {NAME}
  .amdhsa_next_free_vgpr {nv}
  .amdhsa_next_free_sgpr {min(102, a.maxs + 1)}
  .amdhsa_accum_offset {nv}
  .amdhsa_group_segment_fixed_size 0
  .amdhsa_kernarg_size 80
  .amdhsa_user_sgpr_count 2
  .amdhsa_user_sgpr_kernarg_segment_ptr 1
  .amdhsa_system_sgpr_workgroup_id_x 1
  .amdhsa_float_denorm_mode_32 3
.end_amdhsa_kernel
"""
sys.stderr.write(f"vgpr {a.maxv+1} sgpr {a.maxs+1} lines {len(a.lines)} nops {a.nops}\n")
print(out)
```

```python
import sys
from asmlib import *
NAME = "gated_mix__spectral_gfnet__spectral_gfnet__prompt_kernel"
TSB = 16512
S_OFF = 0x500000
U_OFF = 0x500000
import sys as _s
for _o in _s.argv:
    if _o.startswith('soff'): S_OFF = int(_o[4:]) << 20
F1_OFF = 0xE20000
F2_OFF = 0xE80000
EP_OFF = 0xEF0000
WS_SIZE = 0xF00000
WBYTES = 2048 * 1026
M32 = "v_mfma_f32_32x32x16_bf16"
M16 = "v_mfma_f32_16x16x32_bf16"
OPT = set(sys.argv[1:])
ST = "stamps" in OPT
WSZ = 0x10000000 if ST else WS_SIZE
L_A = 0; L_W = 16384; L_P = L_W; WR = 6144; L_G = 65536; L_N = 65664; L_C = 65920; L_E = 65936; LDS_BYTES = 65936 + 4096
def optint(pfx, d):
    for o in OPT:
        if o.startswith(pfx) and o[len(pfx):].isdigit(): return int(o[len(pfx):])
    return d
SLEEP = optint("sl", 0); PFAT = optint("pf", 8); NWG = optint("nwg", 0)
SPIN_MAX = 400000
NTX = " nt" if "ntx" in OPT else ""
NTW = " nt" if "ntw" in OPT else ""
PLF = "sc0 sc1" if "psys" in OPT else ("sc1 nt" if "pnt" in OPT else ("sc0 sc1 nt" if "psysnt" in OPT else "sc1"))
FSF = "sc0 sc1" if "fsys" in OPT else "sc1"
SSF = "sc0 sc1" if "ssys" in OPT else ("sc1 nt" if "snt" in OPT else ("" if "swb" in OPT else "sc1"))
def lf(k):
    return "sc0 sc1" if k+"sys" in OPT else ("sc1 nt" if k+"nt" in OPT else ("sc0 sc1 nt" if k+"sn" in OPT else "sc1"))
SLF = lf("ls"); TLF = lf("lt")
OSF = " sc1" if "nool" not in OPT else (" nt" if "ont" in OPT else (" sc0 sc1" if "osys" in OPT else ""))
Y4 = "y4" in OPT
UO = "uo" in OPT
a = Asm()
def srd(d, base, size):
    a(f"s_mov_b32 s{d}, s{base}"); a(f"s_mov_b32 s{d+1}, s{base+1}")
    a(f"s_mov_b32 s{d+2}, {hx(size)}"); a(f"s_mov_b32 s{d+3}, 0x00020000")
NST = 14
AMX = optint("amx", -1)
def ts(k):
    if ST:
        a(f"s_memrealtime s[{60+2*k}:{61+2*k}]")
        a("s_waitcnt lgkmcnt(0)")
def amx_post(vt):
    if AMX < 0: return
    a("s_load_dwordx2 s[4:5], s[0:1], 64")
    a("s_waitcnt lgkmcnt(0)")
    a("s_mov_b32 s6, 256"); a("s_mov_b32 s7, 0x00020000")
    a(f"v_mov_b32 v{vt}, s{60+2*AMX}"); a("s_and_b32 s96, s2, 7"); a("s_lshl_b32 s96, s96, 2"); a(f"v_mov_b32 v{vt+1}, s96")
    a("s_cmp_eq_u32 s3, %d" % optint("aw", 0)); a("s_cselect_b32 exec_lo, 1, 0"); a("s_mov_b32 exec_hi, 0")
    a(f"buffer_atomic_umax v{vt}, v{vt+1}, s[4:7], 0 offen")
    a("s_mov_b64 exec, -1")
def stamp_end(vt):
    if not ST: return
    a("s_waitcnt vmcnt(0)")
    ts(NST - 1)
    for k in range(16): a(f"v_mov_b32 v{vt+k}, {'s%d' % (60+2*k) if k < NST else '0'}")
    a("s_lshl_b32 s96, s3, 6"); a("s_lshl_b32 s97, s2, 9"); a("s_add_u32 s96, s96, s97")
    a(f"s_add_u32 s96, s96, 0x3000000")
    a(f"v_mov_b32 v{vt+16}, 0")
    a("s_mov_b64 exec, 1")
    if AMX >= 0:
        a("s_lshl_b32 s96, s2, 3"); a("s_add_u32 s96, s96, s3"); a("s_cmp_lg_u32 s96, 72"); a("s_cbranch_scc1 L_end")
        a("s_load_dwordx2 s[4:5], s[0:1], 64")
        a("s_waitcnt lgkmcnt(0)")
        a("s_mov_b32 s6, 256"); a("s_mov_b32 s7, 0x00020000")
        a(f"buffer_load_dwordx4 {vr(vt,4)}, v{vt+16}, s[4:7], 0 offen sc1")
        a(f"buffer_load_dwordx4 {vr(vt+4,4)}, v{vt+16}, s[4:7], 0 offen offset:16 sc1")
        a("s_waitcnt vmcnt(0)")
        for k in range(1, 8): a(f"v_max_u32 v{vt}, v{vt}, v{vt+k}")
        a("s_nop 1")
        a(f"v_readfirstlane_b32 s4, v{vt}")
        a(f"s_sub_u32 s4, s4, s60"); a("s_mul_i32 s4, s4, 10"); a(f"s_add_u32 s4, s4, s{60+2*(NST-1)}")
        a.label("L_amp")
        a("s_memrealtime s[6:7]"); a("s_waitcnt lgkmcnt(0)")
        a("s_sub_u32 s5, s6, s4"); a("s_cmp_lt_i32 s5, 0"); a("s_cbranch_scc1 L_amp")
        return
    amp = optint("amp", -1)
    if amp >= 0:
        a("s_lshl_b32 s4, s2, 3"); a("s_add_u32 s4, s4, s3"); a("s_cmp_lg_u32 s4, %d" % (72 + optint("aw", 0))); a("s_cbranch_scc1 L_end")
        a(f"s_sub_u32 s4, s{60+2*amp}, s60"); a("s_mul_i32 s4, s4, 10"); a(f"s_add_u32 s4, s4, s{60+2*(NST-1)}")
        a.label("L_amp")
        a("s_memrealtime s[6:7]"); a("s_waitcnt lgkmcnt(0)")
        a("s_sub_u32 s5, s6, s4"); a("s_cmp_lt_i32 s5, 0"); a("s_cbranch_scc1 L_amp")
        return
    if "dbg" in OPT:
        a("s_load_dwordx2 s[4:5], s[0:1], 64")
        a("s_waitcnt lgkmcnt(0)")
        a("s_mov_b32 s6, 256"); a("s_mov_b32 s7, 0x00020000")
        a(f"v_not_b32 v{vt+14}, v{vt}")
        for k in range(15):
            a(f"buffer_atomic_umax v{vt+k}, v{vt+16}, s[4:7], 0 offen offset:{4*k}")
        return
    for q in range(4): a(f"buffer_store_dwordx4 {vr(vt+4*q,4)}, v{vt+16}, s[16:19], s96 offen offset:{16*q}")
def poll(lbl, vaddr, vtmp, soff, tag):
    a("s_mov_b32 s58, 0")
    a("s_mov_b32 exec_hi, 0")
    a.label(lbl)
    a(f"buffer_load_dword v{vtmp}, v{vaddr}, s[16:19], {soff} offen {PLF}")
    a("s_add_u32 s58, s58, 1")
    a("s_waitcnt vmcnt(0)")
    a(f"v_cmp_ne_u32 vcc, {tag}, v{vtmp}")
    a(f"s_cmp_gt_u32 s58, {SPIN_MAX}")
    a(f"s_cbranch_scc1 {lbl}_d")
    a("s_and_b64 exec, exec, vcc")
    a(f"s_cbranch_execz {lbl}_d")
    if SLEEP: a(f"s_sleep {SLEEP}")
    a(f"s_branch {lbl}")
    a.label(lbl + "_d")
    a("s_mov_b64 exec, -1")
def setflag(vtmp, soff, tag):
    a(f"v_mov_b32 v{vtmp}, {tag}"); a(f"v_lshlrev_b32 v{vtmp+1}, 2, v0")
    a("s_waitcnt vmcnt(0)")
    a("s_mov_b32 exec_hi, 0")
    a(f"buffer_store_dword v{vtmp}, v{vtmp+1}, s[16:19], {soff} offen {FSF}")
    a("s_mov_b32 exec_hi, -1")

a.label(NAME)
a.label("L_code_start")
a("s_cmp_ge_u32 s2, 256")
a("s_cbranch_scc1 L_end")
if ST:
    a("s_memrealtime s[60:61]")
    for k in range(1, NST): a(f"s_mov_b32 s{60+2*k}, 0")
a("s_load_dwordx4 s[4:7], s[0:1], 0")
a("s_load_dwordx2 s[20:21], s[0:1], 72")
a("s_load_dwordx2 s[28:29], s[0:1], 16")
a("s_load_dwordx8 s[88:95], s[0:1], 32")
a("s_getpc_b64 s[12:13]")
a("s_and_b32 s12, s12, 0xffffff00")
a("s_mov_b32 s14, L_code_end-L_code_start")
a("s_mov_b32 s15, 0x00020000")
a("v_lshlrev_b32 v6, 6, v0")
a("s_bfe_u32 s8, s2, 0x30003")
a("v_lshrrev_b32 v1, 6, v0")
a("v_cmp_eq_u32 vcc, s8, v1")
a("s_and_saveexec_b64 s[10:11], vcc")
a("s_cbranch_execz L_cp")
if "nocp" not in OPT: a("buffer_load_ubyte v5, v6, s[12:15], 0 offen")
a.label("L_cp")
a("s_mov_b64 exec, -1")
a("v_and_b32 v0, 63, v0")
a("v_readfirstlane_b32 s3, v1")
vl16 = 2; vn = 3; vL5 = 4; vE = 5
a(f"v_lshlrev_b32 v{vl16}, 4, v0")
a(f"v_and_b32 v{vn}, 31, v0")
a(f"v_lshrrev_b32 v{vL5}, 5, v0")
a("s_and_b32 s51, s3, 3")
a("s_lshl_b32 s22, s51, 9"); a("s_add_u32 s22, s22, s2"); a("s_lshl_b32 s22, s22, 11")
a("s_and_b32 s53, s2, 7"); a("s_lshl_b32 s53, s53, 5"); a("s_lshr_b32 s54, s2, 3"); a("s_add_u32 s53, s53, s54")
a("s_and_b32 s55, s2, 7"); a("s_mul_i32 s55, s55, 1026"); a("s_lshl_b32 s56, s54, 5"); a("s_add_u32 s55, s55, s56")
a("s_lshl_b32 s24, s51, 12")
a("s_lshl_b32 s57, s2, 10"); a(f"s_add_u32 s57, s57, {hx(F1_OFF)}")
a(f"s_mov_b32 s26, {hx(EP_OFF)}")
a("v_mov_b32 v7, 0")
a("s_add_u32 s30, s22, 0x80000")
a("s_cmp_ge_u32 s3, 4"); a("s_cselect_b32 s31, 0, -1")
a("s_mov_b32 m0, s24")
a("s_mov_b32 s10, 0x00400000"); a("s_mov_b32 s11, 0x00020000")
a("s_mov_b32 exec_lo, s31"); a("s_mov_b32 exec_hi, s31")
a("s_waitcnt lgkmcnt(0)")
a("s_mov_b32 s8, s4"); a("s_mov_b32 s9, s5")
a("s_cbranch_scc1 L_nox")
a(f"buffer_load_dwordx4 v{vl16}, s[8:11], s22 offen{NTX} lds")
a(f"buffer_load_dwordx4 v{vl16}, s[8:11], s22 offen offset:1024{NTX} lds")
a("s_add_u32 m0, s24, 2048")
a(f"buffer_load_dwordx4 v{vl16}, s[8:11], s30 offen{NTX} lds")
a(f"buffer_load_dwordx4 v{vl16}, s[8:11], s30 offen offset:1024{NTX} lds")
a.label("L_nox")
a("s_mov_b64 exec, -1")
srd(16, 20, WSZ)
a(f"buffer_load_dword v{vE}, v7, s[16:19], s26 offen sc1")
for arr, p_ in enumerate((6, 28, 88, 90)): srd(32 + 4 * arr, p_, WBYTES)
def tags():
    a(f"v_readfirstlane_b32 s48, v{vE}")
    a("s_mul_i32 s48, s48, 0x9E3779B1"); a("s_add_u32 s48, s48, 0x7F4A7C15")
    a("s_xor_b32 s49, s48, 0x5bd1e995")
def arr_srd():
    a("s_cmp_eq_u32 s51, 0"); a("s_cselect_b32 s12, s32, s36"); a("s_cselect_b32 s13, s33, s37")
    a("s_cmp_eq_u32 s51, 2"); a("s_cselect_b32 s12, s40, s12"); a("s_cselect_b32 s13, s41, s13")
    a("s_cmp_eq_u32 s51, 3"); a("s_cselect_b32 s12, s44, s12"); a("s_cselect_b32 s13, s45, s13")
    a(f"s_mov_b32 s14, {hx(WBYTES)}"); a("s_mov_b32 s15, 0x00020000")
V2 = VAlloc(5)
vg = V2(); vc = V2(); vF = V2()
SC = V2(16, 4)
vS = V2(); vw1 = V2(); vr1 = V2(); vT = V2(); vTr = V2(); vWr = V2(); vw2 = V2(); vr2 = V2()
WW = V2(32, 4); TB = V2(8, 4)
Fr = V2(4, 4); Fm = V2(4, 4); M2 = V2(16, 4); MT = V2(16, 4); D = V2(16, 4)
assert V2.n <= 128, V2.n
vW = D; vEa = 2
Wi = lambda arr, cc, i: WW + 16 * cc + 8 * (arr >> 1) + 2 * i + (arr & 1)
MX = SC
L_GW = L_W + 16384
def p2_addr():
    t = [SC + k for k in range(6)]
    a(f"v_lshrrev_b32 v{vg}, 4, v0"); a(f"v_and_b32 v{vc}, 15, v0")
    a(f"v_lshrrev_b32 v{t[0]}, 2, v0"); a(f"v_mul_u32_u24 v{vT}, {16*TSB}, v{t[0]}")
    a(f"v_and_b32 v{t[0]}, 3, v0"); a(f"v_lshl_add_u32 v{vT}, v{t[0]}, 4, v{vT}")
    a("s_lshl_b32 s27, s3, 11")
    a(f"s_mul_i32 s23, s3, {WR}"); a(f"s_add_u32 s23, s23, {L_W}")
    a(f"v_bfe_u32 v{t[0]}, v0, 1, 4"); a(f"v_and_b32 v{t[1]}, 1, v0"); a(f"v_lshl_add_u32 v{t[0]}, v{t[0]}, 4, v{t[1]}")
    a(f"v_lshlrev_b32 v{vF}, 10, v{t[0]}")
    a("s_lshl_b32 s28, s3, 8")
    a("s_and_b32 s8, s2, 7"); a("s_lshl_b32 s8, s8, 7"); a("s_add_u32 s8, s8, s27"); a(f"s_add_u32 s8, s8, {hx(F1_OFF)}")
    a(f"v_lshlrev_b32 v{t[0]}, 4, v{vc}")
    a(f"v_lshl_or_b32 v{t[1]}, v{vg}, 9, v{t[0]}")
    a(f"v_add_u32 v{vw1}, s27, v{t[1]}"); a(f"v_add_u32 v{vw2}, s23, v{t[1]}")
    a(f"v_lshl_or_b32 v{vr1}, v{vg}, 12, v{t[0]}"); a(f"v_add_u32 v{vr1}, s28, v{vr1}")
    a(f"v_mul_u32_u24 v{vr2}, {2*WR}, v{vg}"); a(f"s_add_u32 s29, s28, {L_W}"); a(f"v_add3_u32 v{vr2}, v{vr2}, v{t[0]}, s29")
    if "x4" not in OPT:
        if Y4:
            a(f"v_mul_u32_u24 v{vS}, {16*TSB}, v{vc}"); a(f"v_lshl_add_u32 v{vS}, v{vg}, 4, v{vS}")
        else:
            a(f"v_mul_u32_u24 v{vS}, {64*TSB}, v{vg}"); a(f"v_lshl_add_u32 v{vS}, v{vc}, 2, v{vS}")
    else:
        a(f"v_lshlrev_b32 v{t[0]}, 4, v{vg}"); a(f"v_lshl_or_b32 v{vS}, v{vc}, 11, v{t[0]}")
def p2_item():
    t = [SC + k for k in range(6)]
    a(f"s_mul_i32 s24, s3, {2*TSB}"); a("s_lshl_b32 s26, s53, 6"); a("s_add_u32 s24, s24, s26")
    a(f"s_add_u32 s26, s24, {TSB}")
    a(f"v_lshlrev_b32 v{t[0]}, 2, v{vc}"); a(f"v_lshl_or_b32 v{vTr}, v{vg}, 8, v{t[0]}"); a(f"v_add_u32 v{vTr}, s27, v{vTr}")
    a("s_and_b32 s29, s55, 15"); a("s_add_u32 s29, s29, s23")
    a(f"v_mul_u32_u24 v{vWr}, 192, v{vg}"); a(f"v_lshl_add_u32 v{vWr}, v{vc}, 1, v{vWr}"); a(f"v_add_u32 v{vWr}, s29, v{vWr}")
    a("s_lshl_b32 s30, s53, 15"); a("s_add_u32 s30, s30, s28"); a(f"s_add_u32 s30, s30, {hx(S_OFF)}"); a("s_add_u32 s31, s30, 4096")
    a("s_lshl_b32 s9, s53, 10"); a("s_lshl_b32 s10, s3, 7"); a("s_add_u32 s9, s9, s10"); a(f"s_add_u32 s9, s9, {hx(F2_OFF)}")
    a(f"s_mul_i32 s50, s3, {2*TSB}"); a("s_and_b32 s29, s2, 7"); a("s_lshl_b32 s29, s29, 4"); a("s_add_u32 s50, s50, s29"); a("s_add_u32 s50, s50, 16384")
    a("s_cmp_eq_u32 s54, 0"); a("s_cselect_b32 s52, 0x00010001, 0")
    a(f"v_bfe_u32 v{t[0]}, v0, 4, 1"); a(f"v_lshl_add_u32 v{t[0]}, v{vc}, 4, v{t[0]}"); a(f"v_mul_u32_u24 v{vEa}, {TSB}, v{t[0]}")
    a("s_cselect_b32 s59, -1, 0")
def p2_const(dozero=True, hooks=()):
    hooks = list(hooks)
    def hook():
        if hooks: hooks.pop(0)()
    t = [SC + k for k in range(6)]
    vlf = SC + 6; vkf = SC + 7; vc0 = SC + 8; vlc = SC + 10; FA = SC + 12
    a(f"v_cvt_f32_u32 v{vlf}, v{vc}")
    a(f"v_cvt_f32_u32 v{vkf}, v{vg}"); a(f"v_mul_f32 v{vkf}, 4.0, v{vkf}")
    a(f"v_cvt_f32_u32 v{vc0}, s3"); a(f"v_mul_f32 v{vc0}, {fl(1/128)}, v{vc0}")
    a(f"v_mul_f32 v{vlc}, v{vlf}, v{vc0}")
    a(f"v_fmamk_f32 v{vlc+1}, v{vlf}, {hx(f2u(1/256))}, v{vlc}")
    a(f"v_mul_f32 v{vlf}, {fl(1/16)}, v{vlf}")
    z = iter(range(32))
    def zero(n):
        if not dozero:
            if n == 1: a("s_nop 0")
            return
        for _ in range(n):
            k = next(z, None)
            if k is not None: a(f"v_mov_b32 v{WW+k}, 0")
    def mat(ang):
        a(f"v_cos_f32 v{t[3]}, v{ang}"); a(f"v_sin_f32 v{t[4]}, v{ang}")
    def matfin(Mr, Mm):
        a(f"v_cvt_pk_bf16_f32 v{Mr}, v{t[3]}, v{t[4]}")
        a(f"v_cvt_pk_bf16_f32 v{Mm}, -v{t[4]}, v{t[3]}")
        hook()
    hook(); hook()
    for i in range(4):
        if i: a(f"v_add_f32 v{vkf}, 1.0, v{vkf}")
        a(f"v_mul_f32 v{FA+i}, v{vkf}, v{vlf}")
        mat(FA + i); zero(1); matfin(Fr + i, Fm + i)
    for i in range(3, -1, -1):
        a(f"v_fma_f32 v{t[0]}, v{vkf}, v{vc0}, v{FA+i}")
        a(f"v_fmamk_f32 v{t[1]}, v{vkf}, {hx(f2u(1/256))}, v{t[0]}")
        mat(t[0]); a(f"v_add_f32 v{t[2]}, v{FA+i}, v{vlc}"); matfin(M2 + i, M2 + 4 + i)
        mat(t[1]); a(f"v_add_f32 v{t[5]}, v{FA+i}, v{vlc+1}"); matfin(M2 + 8 + i, M2 + 12 + i)
        mat(t[2]); a(f"v_subrev_f32 v{vkf}, 1.0, v{vkf}"); matfin(MT + i, MT + 4 + i)
        mat(t[5]); zero(1); matfin(MT + 8 + i, MT + 12 + i)
    zero(32)
    a(f"v_add_f32 v{vc0}, {fl(1/128)}, v{vc0}")
    a(f"v_mov_b32 v{SC+9}, v{vkf}")
    for i in range(4):
        a(f"v_add_f32 v{SC+9}, 1.0, v{SC+9}")
        a(f"v_fma_f32 v{FA+i}, v{SC+9}, v{vc0}, v{FA+i}")
    for i in range(4):
        a(f"v_cos_f32 v{SC+10}, v{FA+i}"); a(f"v_sin_f32 v{SC+11}, v{FA+i}"); a("s_nop 0")
        a(f"v_cvt_pk_bf16_f32 v{MX+i}, v{SC+10}, v{SC+11}")
        a(f"v_cvt_pk_bf16_f32 v{MX+4+i}, -v{SC+11}, v{SC+10}")
def wvoff(dst, t0, t1):
    a(f"v_mul_u32_u24 v{t0}, 43, v0"); a(f"v_lshrrev_b32 v{t0}, 7, v{t0}")
    a(f"v_mul_u32_u24 v{t1}, 3, v{t0}"); a(f"v_sub_u32 v{t1}, v0, v{t1}")
    a(f"v_mul_u32_u24 v{dst}, {16*8*1026}, v{t0}"); a(f"v_lshl_add_u32 v{dst}, v{t1}, 4, v{dst}")
def wdma_list(vreg, adds, arrs=(0, 1, 2, 3)):
    ccs = (0, 1)
    ops = []
    for add in adds:
        def head(add=add):
            a(f"s_add_u32 s6, s3, {add}")
            a(f"s_mul_i32 s4, s6, {2*8*1026}"); a("s_add_u32 s4, s4, s55"); a("s_and_b32 s4, s4, 0xfffffff0")
            a(f"s_add_u32 s5, s4, {8*1026}")
            a(f"s_mul_i32 s6, s6, {WR}")
        for arr in arrs:
            for cc in ccs:
                def op(arr=arr, cc=cc, head=head):
                    if arr == arrs[0] and cc == ccs[0]: head()
                    a("s_mov_b32 exec_hi, 0xffff")
                    a(f"s_add_u32 m0, s6, {L_W + 1536*arr + 768*cc}")
                    a(f"buffer_load_dwordx4 v{vreg}, {sr(32+4*arr,4)}, {'s4' if cc == 0 else 's5'} offen lds")
                    a("s_mov_b32 exec_hi, -1")
                ops.append(op)
    return ops
a(f"s_mov_b32 s56, {8*1026}")
a("s_cmp_ge_u32 s3, 4")
a("s_cbranch_scc1 L_h")
a("s_setprio 2")
V = VAlloc(6)
vb = V(); vo = V(); vkn = V(); vtr = V(); vpf = V(); vj = V(); vpw = V(4); t = [V() for _ in range(6)]
arr_srd()
a(f"v_and_b32 v{t[0]}, 7, v0"); a("s_lshl_b32 s30, s2, 3"); a(f"v_add_u32 v{t[0]}, s30, v{t[0]}")
a(f"v_bfe_i32 v{t[1]}, v0, 4, 1"); a(f"v_xor_b32 v{t[0]}, v{t[0]}, v{t[1]}"); a(f"v_sub_u32 v{t[0]}, v{t[0]}, v{t[1]}")
a(f"v_and_b32 v{t[0]}, 2047, v{t[0]}"); a(f"v_mul_u32_u24 v{t[2]}, 1026, v{t[0]}")
a(f"v_bfe_u32 v{t[1]}, v0, 3, 1"); a(f"v_lshl_add_u32 v{t[2]}, v{t[1]}, 10, v{t[2]}")
a(f"buffer_load_ushort v{vj}, v{t[2]}, s[12:15], 0 offen")
a("s_and_b32 s30, s2, 7"); a("s_lshl_b32 s31, s54, 6"); a("s_add_u32 s30, s30, s31"); a("s_mul_i32 s30, s30, 1026")
a(f"v_lshrrev_b32 v{t[0]}, 3, v0"); a(f"v_mul_u32_u24 v{t[2]}, {8*1026}, v{t[0]}")
a(f"v_and_b32 v{t[1]}, 7, v0"); a(f"v_lshl_add_u32 v{vpf}, v{t[1]}, 7, v{t[2]}")
vjunk = 1
def prefetch():
    a(f"buffer_load_ubyte v{vjunk}, v{vpf}, s[12:15], s30 offen{NTW}")
    a(f"buffer_load_ubyte v{vjunk}, v{vpt}, s[12:15], s30 offen offset:1024{NTW}")
NPF = 2
vpt = V()
a(f"v_and_b32 v{t[1]}, 1, v0"); a(f"v_lshl_add_u32 v{vpt}, v{t[1]}, 4, v{t[2]}")
if PFAT == 0: prefetch()
CC = V(8, 4); SS = V(8, 4); SN = V(8, 4); XR = V(8, 4); XI = V(8, 4)
BA = V(24, 4); BB = V(24, 4); TCh = V(8); TSh = V(8)
D1r = BA + 8; D1i = BB + 8; D2r = BA; D2i = BB
TC = lambda k: BA + k if k < 8 else TCh + k - 8
TS_ = lambda k: BB + k if k < 8 else TSh + k - 8
assert V.n <= 128, V.n
a(f"v_and_b32 v{t[0]}, 7, v0"); a(f"v_bfe_u32 v{t[1]}, v0, 3, 2")
a(f"v_lshl_or_b32 v{vkn}, v{t[0]}, 2, v{t[1]}")
a(f"v_cvt_f32_u32 v{vb}, v{vkn}"); a(f"v_cvt_f32_u32 v{vo}, v{vL5}")
a(f"v_mul_f32 v{vb}, {fl(1/32)}, v{vb}"); a(f"v_mul_f32 v{vo}, 4.0, v{vo}"); a(f"v_mul_f32 v{vo}, v{vb}, v{vo}")
for i in range(0, 16, 2):
    for e in range(2):
        kc = 8 * ((i + e) // 4) + (i + e) % 4
        if kc == 0: a(f"v_mov_b32 v{t[e]}, v{vo}")
        else: a(f"v_fmamk_f32 v{t[e]}, v{vb}, {hx(f2u(float(kc)))}, v{vo}")
    a(f"v_cos_f32 v{t[2]}, v{t[0]}"); a(f"v_cos_f32 v{t[3]}, v{t[1]}")
    a(f"v_sin_f32 v{t[4]}, v{t[0]}"); a(f"v_sin_f32 v{t[5]}, v{t[1]}")
    a(f"v_mul_f32 v{t[0]}, {fl(1/32)}, v{t[0]}"); a(f"v_mul_f32 v{t[1]}, {fl(1/32)}, v{t[1]}")
    a(f"v_cvt_pk_bf16_f32 v{CC+i//2}, v{t[2]}, v{t[3]}")
    a(f"v_cvt_pk_bf16_f32 v{SS+i//2}, v{t[4]}, v{t[5]}")
    a(f"v_cvt_pk_bf16_f32 v{SN+i//2}, -v{t[4]}, -v{t[5]}")
    a(f"v_cos_f32 v{TC(i)}, v{t[0]}"); a(f"v_cos_f32 v{TC(i+1)}, v{t[1]}")
    a(f"v_sin_f32 v{TS_(i)}, v{t[0]}"); a(f"v_sin_f32 v{TS_(i+1)}, v{t[1]}")
    if PFAT == i // 2 + 1: prefetch()
a(f"v_lshlrev_b32 v{vtr}, 8, v{vL5}")
a(f"v_bfe_u32 v{t[0]}, v0, 2, 2"); a(f"v_lshl_or_b32 v{vtr}, v{t[0]}, 6, v{vtr}")
a(f"v_bfe_u32 v{t[0]}, v0, 4, 1"); a(f"v_lshl_or_b32 v{vtr}, v{t[0]}, 5, v{vtr}")
a(f"v_and_b32 v{t[0]}, 3, v0"); a(f"v_lshl_or_b32 v{vtr}, v{t[0]}, 3, v{vtr}")
a(f"v_add_u32 v{vtr}, s24, v{vtr}")
a(f"v_and_b32 v{t[0]}, 7, v0"); a(f"v_bfe_u32 v{t[1]}, v0, 3, 2"); a(f"v_lshlrev_b32 v{t[1]}, 1, v{t[1]}")
a(f"v_xor_b32 v{t[0]}, v{t[0]}, v{t[1]}"); a(f"v_xor_b32 v{t[0]}, v{t[0]}, v{vL5}")
a(f"v_lshlrev_b32 v{t[0]}, 4, v{t[0]}")
a(f"v_lshl_or_b32 v{vpw}, v{vkn}, 7, v{t[0]}")
a(f"s_add_u32 s26, s24, {L_P}")
a(f"v_add_u32 v{vpw}, s26, v{vpw}")
for c in range(1, 4): a(f"v_xor_b32 v{vpw+c}, {32*c}, v{vpw}")
vet = vb
a(f"v_and_b32 v{t[0]}, 7, v0"); a(f"v_and_b32 v{t[1]}, 16, v0"); a(f"v_lshl_or_b32 v{t[0]}, v{t[0]}, 1, v{t[1]}")
a(f"v_bfe_u32 v{t[1]}, v0, 3, 1"); a(f"v_lshl_or_b32 v{t[0]}, v{t[1]}, 7, v{t[0]}")
a("s_lshl_b32 s30, s51, 5"); a(f"s_add_u32 s30, s30, {L_N}"); a(f"v_add_u32 v{vet}, s30, v{t[0]}")
ts(1)
a(f"s_waitcnt vmcnt({1 + (NPF if PFAT <= 8 else 0)})")
ts(2)
tags()
for h in range(2):
    for r, X in ((0, XR), (1, XI)):
        for tt in range(2):
            a(f"ds_read_b64_tr_b16 {vr(X+4*h+2*tt,2)}, v{vtr} offset:{r*2048+h*1024+tt*512}")
def cpass(R, I, Dr, Di, h, first):
    c0 = "0" if first else vr(Dr, 16); c1 = "0" if first else vr(Di, 16)
    a(f"{M32} {vr(Dr,16)}, {vr(R+4*h,4)}, {vr(CC+4*h,4)}, {c0}")
    a(f"{M32} {vr(Di,16)}, {vr(I+4*h,4)}, {vr(CC+4*h,4)}, {c1}")
    a(f"{M32} {vr(Dr,16)}, {vr(I+4*h,4)}, {vr(SS+4*h,4)}, {vr(Dr,16)}")
    a(f"{M32} {vr(Di,16)}, {vr(R+4*h,4)}, {vr(SN+4*h,4)}, {vr(Di,16)}")
a("s_waitcnt lgkmcnt(4)")
cpass(XR, XI, D1r, D1i, 0, True)
a("s_waitcnt lgkmcnt(0)")
cpass(XR, XI, D1r, D1i, 1, False)
def cp_list(R, I, Dr, Di, h, first):
    c0 = "0" if first else vr(Dr, 16); c1 = "0" if first else vr(Di, 16)
    return [f"{M32} {vr(Dr,16)}, {vr(R+4*h,4)}, {vr(CC+4*h,4)}, {c0}",
            f"{M32} {vr(Di,16)}, {vr(I+4*h,4)}, {vr(CC+4*h,4)}, {c1}",
            f"{M32} {vr(Dr,16)}, {vr(I+4*h,4)}, {vr(SS+4*h,4)}, {vr(Dr,16)}",
            f"{M32} {vr(Di,16)}, {vr(R+4*h,4)}, {vr(SN+4*h,4)}, {vr(Di,16)}"]
pend = []
for h in range(2):
    for i in range(8 * h, 8 * h + 8, 2):
        if pend: a(pend.pop(0))
        for e in range(2):
            k = i + e
            a(f"v_mul_f32 v{t[e]}, v{D1r+k}, v{TC(k)}")
            a(f"v_mul_f32 v{t[2+e]}, v{D1i+k}, v{TC(k)}")
            a(f"v_fmac_f32 v{t[e]}, v{D1i+k}, v{TS_(k)}")
            a(f"v_fma_f32 v{t[2+e]}, -v{D1r+k}, v{TS_(k)}, v{t[2+e]}")
        a(f"v_cvt_pk_bf16_f32 v{XR+i//2}, v{t[0]}, v{t[1]}")
        a(f"v_cvt_pk_bf16_f32 v{XI+i//2}, v{t[2]}, v{t[3]}")
    pend = cp_list(XR, XI, D2r, D2i, h, h == 0)
for m_ in pend: a(m_)
a(f"s_waitcnt vmcnt({NPF if PFAT <= 8 else 0})")
a(f"ds_write_b16 v{vet}, v{vj}")
PK = CC
for c in range(4):
    for e in range(4):
        a(f"v_cvt_pk_bf16_f32 v{PK+4*c+e}, v{D2r+4*c+e}, v{D2i+4*c+e}")
    a(f"ds_write_b128 v{vpw+c}, {vr(PK+4*c,4)}")
a("s_waitcnt lgkmcnt(0)")
ts(3)
a("s_barrier")
a("s_setprio 0")
p2_addr()
p2_item()
wvoff(vW, SC, SC + 1)
ts(4)
a("s_barrier")
ts(5)
EARLY = "early" in OPT
SPLIT = "split" in OPT
E1 = "e1" in OPT or "e2" in OPT
p2_const(hooks=wdma_list(vW, [0] if E1 else [0, 4], (2, 3) if SPLIT else (2, 3, 0, 1)))
ts(6)
a("s_branch L_p2")
a.label("L_h")
a.hist = []
V = VAlloc(6)
t = [V() for _ in range(8)]
XN = V(16, 4); GW = V(8, 4)
srd(8, 92, 2048)
a(f"buffer_load_dwordx4 {vr(GW,4)}, v{vl16}, s[8:11], 0 offen")
a(f"buffer_load_dwordx4 {vr(GW+4,4)}, v{vl16}, s[8:11], 0 offen offset:1024")
if "e2" in OPT:
    wvoff(XN, t[0], t[1])
    for op in wdma_list(XN, [0]): op()
def tpre():
    a(f"v_lshlrev_b32 v{t[0]}, 7, v0")
    a(f"s_mul_i32 s30, s2, {TSB}"); a("s_lshl_b32 s31, s51, 12"); a("s_add_u32 s30, s30, s31")
    a("s_mov_b32 exec_hi, 0")
    a(f"buffer_load_ubyte v1, v{t[0]}, s[16:19], s30 offen")
    a("s_mov_b32 exec_hi, -1")
if "tp0" in OPT: tpre()
def prewrite():
    if "pw" in OPT or "pws" in OPT:
        a(f"v_lshlrev_b32 v{t[0]}, 7, v0")
        a("s_lshl_b32 s30, s53, 15"); a("s_lshl_b32 s31, s51, 13"); a("s_add_u32 s30, s30, s31"); a(f"s_add_u32 s30, s30, {hx(S_OFF)}")
    if "pw" in OPT or "pwt" in OPT:
        a(f"v_and_b32 v{t[1]}, 3, v0"); a(f"v_lshlrev_b32 v{t[1]}, 7, v{t[1]}"); a(f"v_bfe_u32 v{t[2]}, v0, 2, 3"); a(f"v_lshl_or_b32 v{t[1]}, v{t[2]}, 11, v{t[1]}")
        a(f"s_mul_i32 s31, s2, {TSB}"); a("s_lshl_b32 s29, s51, 9"); a("s_add_u32 s31, s31, s29")
        a("s_mov_b32 exec_hi, 0")
        a(f"buffer_store_dword v{t[1]}, v{t[1]}, s[16:19], s31 offen sc1")
        a("s_mov_b32 exec_hi, -1")
    if "pw" in OPT or "pws" in OPT:
        a(f"buffer_store_dword v{t[0]}, v{t[0]}, s[16:19], s30 offen sc1")
NPW = 2 if "pw" in OPT else (1 if ("pws" in OPT or "pwt" in OPT) else 0)
if "pwl" not in OPT: prewrite()
vnat = V(); a(f"v_add_u32 v{vnat}, s24, v{vl16}")
MA = V(4, 4)
DMB = V(48, 4)
vu = DMB; vA = DMB + 1; vB1 = DMB + 2; vB2 = DMB + 3; vsg = DMB + 4
a(f"v_mov_b32 v{t[3]}, {L_C}"); a(f"v_mov_b32 v{t[4]}, 0")
a(f"ds_write_b32 v{t[3]}, v{t[4]}")
a(f"v_bfe_u32 v{t[0]}, v0, 3, 1"); a(f"v_bfe_u32 v{t[1]}, v0, 1, 1")
a(f"v_lshl_or_b32 v{t[0]}, v{t[0]}, 1, v{t[1]}")
a(f"v_and_or_b32 v{vu}, v0, 4, v{t[0]}")
a(f"v_cvt_f32_u32 v{vu}, v{vu}")
a(f"v_cvt_f32_u32 v{vsg}, v{vL5}")
a(f"v_fma_f32 v{vsg}, v{vsg}, -2.0, 1.0")
a(f"v_mul_f32 v{vA}, v{vu}, v{vsg}")
a(f"v_mul_f32 v{vA}, {fl(0.125)}, v{vA}")
a(f"v_and_b32 v{t[0]}, 1, v0"); a(f"v_cvt_f32_u32 v{t[0]}, v{t[0]}")
a(f"v_mul_f32 v{vB1}, v{t[0]}, v{vsg}"); a(f"v_mul_f32 v{vB1}, {fl(0.25)}, v{vB1}")
a(f"v_cvt_f32_u32 v{t[1]}, s2"); a(f"v_mul_f32 v{t[1]}, {fl(1/256)}, v{t[1]}")
a(f"v_fmac_f32 v{vB1}, v{t[1]}, v{vA}")
a(f"v_add_f32 v{vB2}, {fl(0.25)}, v{vB1}")
for pp in range(4):
    if pp == 0: a(f"v_mov_b32 v{t[0]}, v{vB1}")
    else: a(f"v_fmamk_f32 v{t[0]}, v{vA}, {hx(f2u(2.0*pp))}, v{vB1}")
    a(f"v_fmamk_f32 v{t[1]}, v{vA}, {hx(f2u(2.0*pp+1))}, v{vB2}")
    a(f"v_cos_f32 v{t[2]}, v{t[0]}"); a(f"v_cos_f32 v{t[3]}, v{t[1]}")
    a(f"v_sin_f32 v{t[4]}, v{t[0]}"); a(f"v_sin_f32 v{t[5]}, v{t[1]}")
    a(f"v_add_f32 v{t[2]}, v{t[2]}, v{t[3]}")
    a(f"v_add_f32 v{t[4]}, v{t[4]}, v{t[5]}")
    a(f"v_cvt_pk_bf16_f32 v{MA+pp}, v{t[2]}, v{t[4]}")
vmr = V(5); vk = DMB + 5; vneg = DMB + 6
a("s_lshl_b32 s30, s51, 7")
a(f"v_lshlrev_b32 v{t[0]}, 2, v{vn}")
a(f"v_sub_u32 v{vneg}, 0, v{vL5}")
for q in range(5):
    if q < 4: a(f"v_add3_u32 v{vk}, v{t[0]}, s30, {q}")
    else: a(f"v_add_u32 v{vk}, 512, v{t[0]}")
    a(f"v_xor_b32 v{vk}, v{vk}, v{vneg}"); a(f"v_add_u32 v{vk}, v{vk}, v{vL5}")
    a(f"v_bfe_u32 v{t[1]}, v{vk}, 5, 5")
    a(f"v_bfe_u32 v{t[2]}, v{vk}, 7, 3")
    a(f"v_xor_b32 v{t[3]}, v{vk}, v{t[1]}")
    a(f"v_and_b32 v{t[3]}, 3, v{t[3]}")
    a(f"v_bfe_u32 v{t[4]}, v{vk}, 4, 1")
    a(f"v_lshl_or_b32 v{t[3]}, v{t[3]}, 1, v{t[4]}")
    a(f"v_xor_b32 v{t[3]}, v{t[3]}, v{t[2]}")
    a(f"v_and_b32 v{t[4]}, 12, v{vk}")
    a(f"v_lshl_or_b32 v{t[4]}, v{t[3]}, 4, v{t[4]}")
    a(f"v_lshl_or_b32 v{vmr+q}, v{t[1]}, 7, v{t[4]}")
vts = V(); veo = V(); vet2 = V(); vsig = V(); ves = V()
a(f"v_lshlrev_b32 v{t[0]}, 13, v{vL5}"); a(f"v_lshl_or_b32 v{vts}, v{vn}, 4, v{t[0]}")
EV = V(10, 2)
a(f"v_and_b32 v{t[0]}, 7, v0"); a(f"v_bfe_u32 v{t[1]}, v0, 3, 1")
a(f"v_lshlrev_b32 v{t[2]}, 3, v{t[1]}"); a(f"v_lshl_or_b32 v{ves}, v{t[0]}, 4, v{t[2]}")
a(f"v_and_b32 v{t[2]}, 3, v0"); a(f"v_cmp_eq_u32 vcc, 0, v{t[2]}")
a(f"v_lshrrev_b32 v{t[3]}, 2, v{t[0]}")
a(f"v_cvt_f32_u32 v{t[4]}, v{t[1]}"); a(f"v_fma_f32 v{t[4]}, v{t[4]}, -2.0, 1.0")
a(f"v_cndmask_b32 v{t[3]}, v{t[3]}, v{t[1]}, vcc")
a(f"v_cndmask_b32 v{vsig}, 0, v{t[4]}, vcc")
a(f"v_lshlrev_b32 v{t[0]}, 1, v{t[0]}"); a(f"v_lshl_or_b32 v{t[0]}, v{t[1]}, 6, v{t[0]}"); a(f"v_lshl_or_b32 v{t[0]}, v{t[3]}, 7, v{t[0]}")
a(f"v_add_u32 v{veo}, {L_N}, v{t[0]}"); a(f"v_xor_b32 v{vet2}, 64, v{veo}")
for k in range(8): a(f"v_mov_b32 v{EV+k}, 0")
a(f"s_mul_i32 s8, s2, {TSB}")
a("s_lshl_b32 s9, s51, 9"); a("s_add_u32 s9, s9, s8"); a("s_add_u32 s10, s9, 4096")
a("s_add_u32 s8, s8, 16384")
a("s_mov_b32 s11, 0xffff0000")
acc = V(4, 4); MB4 = V(4, 4); ones = V(); MB = XN
a(f"v_mov_b32 v{ones}, 0x3f803f80")
a(f"v_mov_b32 v{acc}, 0"); a(f"v_mov_b32 v{acc+2}, 0")
sys.stderr.write(f"helper regs {V.n}\n")
assert V.n <= 128, V.n
a("s_waitcnt lgkmcnt(0)")
if "pwl" in OPT: prewrite()
ts(1)
a(f"s_waitcnt vmcnt({10 if 'e2' in OPT else (3 if 'tp0' in OPT else 2)}) lgkmcnt(0)")
tags()
a("s_cmp_eq_u32 s51, 1")
if "nopw" not in OPT:
    a("s_cselect_b32 exec_lo, -1, 0"); a("s_cselect_b32 exec_hi, -1, 0")
    for k in range(4): a(f"v_mov_b32 v{DMB+k}, s49")
    a(f"buffer_store_dwordx4 {vr(DMB,4)}, v{vl16}, s[16:19], s57 offen sc1")
a("s_mov_b64 exec, -1")
def ecompute():
    a(f"v_add_f32 v{EV+8}, v{EV}, v{EV+1}"); a(f"v_sub_f32 v{EV+9}, v{EV+2}, v{EV+3}")
    a(f"v_add_f32 v{EV+4}, v{EV+4}, v{EV+5}"); a(f"v_sub_f32 v{EV+6}, v{EV+6}, v{EV+7}")
    a(f"v_fma_f32 v{EV+8}, -v{vsig}, v{EV+6}, v{EV+8}"); a(f"v_fmac_f32 v{EV+9}, v{vsig}, v{EV+4}")
    a("s_cmp_eq_u32 s51, 1"); a("s_cselect_b32 exec_lo, 0xffff, 0"); a("s_mov_b32 exec_hi, 0")
    a(f"buffer_store_dwordx2 {vr(EV+8,2)}, v{ves}, s[16:19], s8 offen sc1")
    a("s_mov_b64 exec, -1")
def gate_main():
    for j in range(8):
        a(f"v_lshlrev_b32 v{t[6]}, 16, v{GW+j}")
        a(f"v_and_b32 v{t[7]}, s11, v{GW+j}")
        for r in range(2):
            a(f"v_lshlrev_b32 v{t[2*r]}, 16, v{XN+8*r+j}")
            a(f"v_and_b32 v{t[2*r+1]}, s11, v{XN+8*r+j}")
        for r in range(2):
            a(f"v_mul_f32 v{t[2*r]}, v{t[2*r]}, v{t[6]}")
            a(f"v_mul_f32 v{t[2*r+1]}, v{t[2*r+1]}, v{t[7]}")
        for r in range(2): a(f"v_cvt_pk_bf16_f32 v{t[4+r]}, v{t[2*r]}, v{t[2*r+1]}")
        for r in range(2): a(f"v_dot2_f32_bf16 v{acc+2*r}, v{t[4+r]}, v{ones}, v{acc+2*r}")
if "e1" in OPT:
    wvoff(DMB + 8, t[0], t[1])
    for op in wdma_list(DMB + 8, [0]): op()
ts(3)
a("s_setprio 2")
a("s_barrier")
ts(4)
o = L_P // 256
a(f"ds_read2st64_b32 {vr(MB4,2)}, v{vmr+4} offset0:{o} offset1:{o+16}")
a(f"ds_read2st64_b32 {vr(MB4+2,2)}, v{vmr+4} offset0:{o+32} offset1:{o+48}")
for q in range(4):
    a(f"ds_read2st64_b32 {vr(MB+4*q,2)}, v{vmr+q} offset0:{o} offset1:{o+16}")
    a(f"ds_read2st64_b32 {vr(MB+4*q+2,2)}, v{vmr+q} offset0:{o+32} offset1:{o+48}")
for k in range(4):
    a(f"ds_read_u16_d16_hi v{EV+k}, v{veo} offset:{16*k}")
    a(f"ds_read_u16_d16_hi v{EV+4+k}, v{vet2} offset:{16*k}")
DN = DMB; DM = [DMB + 8 + 8 * q for q in range(4)]
a("s_waitcnt lgkmcnt(15)")
a(f"{M32} {vr(DN,16)}, {vr(MA,4)}, {vr(MB4,4)}, 0")
for q in range(4):
    a(f"s_waitcnt lgkmcnt({14-2*q})")
    a(f"{M32} {vr(DM[q],16)}, {vr(MA,4)}, {vr(MB+4*q,4)}, 0")
a("s_waitcnt lgkmcnt(0)")
ecompute()
a("s_cmp_eq_u32 s51, 0"); a("s_cselect_b32 exec_lo, 1, 0"); a("s_cselect_b32 exec_hi, 1, 0")
a(f"v_sub_f32 v{DM[0]}, v{DM[0]}, v{DN+1}"); a(f"v_add_f32 v{DM[0]+1}, v{DM[0]+1}, v{DN}")
a("s_mov_b32 exec_lo, 0")
for k in range(2, 8): a(f"v_mov_b32 v{DM[0]+k}, v{DN+k}")
a("s_mov_b64 exec, -1")
OUT = MB
for s_ in range(4):
    for q in range(4):
        a(f"v_cvt_pk_bf16_f32 v{OUT+4*s_+q}, v{DM[q]+2*s_}, v{DM[q]+2*s_+1}")
    a(f"buffer_store_dwordx4 {vr(OUT+4*s_,4)}, v{vts}, s[16:19], {'s9' if s_ < 2 else 's10'} offen offset:{(s_&1)*2048} sc1")
for r in range(2):
    for q in range(2):
        a(f"ds_read_b128 {vr(XN+8*r+4*q,4)}, v{vnat} offset:{r*2048+q*1024}")
a("s_waitcnt lgkmcnt(0)")
a("s_barrier")
ts(5)
a("s_waitcnt vmcnt(4)")
gate_main()
for dpp in ("row_shr:1", "row_shr:2", "row_shr:4", "row_shr:8"):
    for r in range(2):
        a(f"v_add_f32_dpp v{acc+2*r}, v{acc+2*r}, v{acc+2*r} {dpp} row_mask:0xf bank_mask:0xf bound_ctrl:0")
for dpp, rm in (("row_bcast:15", "0xa"), ("row_bcast:31", "0xc")):
    for r in range(2):
        a(f"v_add_f32_dpp v{acc+2*r}, v{acc+2*r}, v{acc+2*r} {dpp} row_mask:{rm} bank_mask:0xf")
a(f"v_cvt_pk_bf16_f32 v{t[0]}, v{acc}, v{acc+2}")
a(f"v_lshlrev_b32 v{t[1]}, 16, v{t[0]}")
a(f"v_and_b32 v{t[2]}, s11, v{t[0]}")
for r in range(2): a(f"v_mul_f32 v{t[1+r]}, {hx(f2u(-1.4426950408889634))}, v{t[1+r]}")
for r in range(2): a(f"v_exp_f32 v{t[1+r]}, v{t[1+r]}")
for r in range(2): a(f"v_add_f32 v{t[1+r]}, 1.0, v{t[1+r]}")
for r in range(2): a(f"v_rcp_f32 v{t[1+r]}, v{t[1+r]}")
a(f"v_cvt_pk_bf16_f32 v{t[0]}, v{t[1]}, v{t[2]}")
a(f"v_lshlrev_b32 v{acc}, 16, v{t[0]}")
a(f"v_and_b32 v{acc+2}, s11, v{t[0]}")
a(f"v_sub_f32 v{t[1]}, 1.0, v{acc}")
a(f"v_sub_f32 v{t[2]}, 1.0, v{acc+2}")
a(f"v_cvt_pk_bf16_f32 v{t[0]}, v{t[1]}, v{t[2]}")
a(f"v_lshlrev_b32 v{acc+1}, 16, v{t[0]}")
a(f"v_and_b32 v{acc+3}, s11, v{t[0]}")
for r in range(4): a(f"v_mul_f32 v{acc+r}, {hx(f2u(2.0**-22))}, v{acc+r}")
a("s_lshl_b32 s30, s51, 4"); a(f"s_add_u32 s30, s30, {L_G}")
a(f"v_mov_b32 v{t[3]}, s30")
a("s_mov_b32 exec_lo, 0"); a("s_mov_b32 exec_hi, 0x80000000")
a(f"ds_write_b128 v{t[3]}, {vr(acc,4)}")
a("s_mov_b64 exec, -1")
a(f"v_mov_b32 v{t[3]}, {L_C}"); a(f"v_mov_b32 v{t[4]}, 1")
for k in range(4): a(f"v_mov_b32 v{DMB+k}, s48")
a("s_mov_b64 exec, 1")
a("s_waitcnt vmcnt(0)")
a(f"ds_add_rtn_u32 v{t[5]}, v{t[3]}, v{t[4]}")
a("s_waitcnt lgkmcnt(0)")
a(f"v_readfirstlane_b32 s30, v{t[5]}")
a("s_cmp_eq_u32 s30, 3"); a("s_cselect_b32 exec_lo, -1, 0"); a("s_cselect_b32 exec_hi, -1, 0")
a(f"buffer_store_dwordx4 {vr(DMB,4)}, v{vl16}, s[16:19], s57 offen {FSF}")
a("s_mov_b64 exec, -1")
def stouch(vt):
    a(f"v_lshlrev_b32 v{vt}, 7, v0")
    a(f"s_mul_i32 s30, s2, {TSB}"); a("s_lshl_b32 s31, s51, 12"); a("s_add_u32 s30, s30, s31"); a(f"s_add_u32 s30, s30, {hx(U_OFF)}")
    a("s_mov_b32 exec_hi, 0")
    a(f"buffer_load_ubyte v1, v{vt}, s[16:19], s30 offen")
    a("s_mov_b32 exec_hi, -1")
if "pt1" in OPT: stouch(t[0])
a("s_setprio 0")
ts(6)
p2_addr(); p2_item(); wvoff(vW, SC, SC + 1); p2_const()
if optint("pa", 0): a(f"s_sleep {optint('pa', 0)}")
a.label("L_p2")
a.hist = []
t = [SC + k for k in range(6)]
if "pt7" in OPT:
    a("s_and_b32 s30, s54, 1"); a("s_cmp_eq_u32 s30, 0"); a("s_cselect_b32 s30, s24, s26"); a(f"s_add_u32 s30, s30, {hx(U_OFF)}")
    a("s_mov_b32 exec_lo, 0x11111111"); a("s_mov_b32 exec_hi, 0x11111111")
    a(f"buffer_load_ubyte v1, v{vT}, s[16:19], s30 offen")
    a("s_mov_b64 exec, -1")
GW_ = "now" in OPT
if GW_: a("s_waitcnt vmcnt(0)")
if "noga" not in OPT: a("s_barrier")
ts(7)
if "pw3" in OPT:
    a(f"v_lshrrev_b32 v{TB}, 2, v0"); a(f"v_and_b32 v{TB+1}, 3, v0"); a(f"v_lshlrev_b32 v{TB+1}, 6, v{TB+1}"); a(f"v_lshl_or_b32 v{TB+2}, v{TB}, 11, v{TB+1}")
    a(f"buffer_store_dword v{TB+2}, v{TB+2}, s[16:19], s30 offen sc1")
poll("L_poll1", vF, TB, "s8", "s48")
def f2pre():
    if "nopw" in OPT: return
    a(f"v_mov_b32 v{TB}, s48"); a(f"v_lshlrev_b32 v{TB+1}, 2, v0")
    a("s_mov_b32 exec_hi, 0")
    a(f"buffer_store_dword v{TB}, v{TB+1}, s[16:19], s9 offen sc1")
    a("s_mov_b32 exec_hi, -1")
ts(8)
if "st2" in OPT: a("s_add_u32 s70, s60, s58")
a.label("L_p2c")
a("s_setprio 1")
a("s_mov_b32 m0, s27")
a(f"buffer_load_dwordx4 v{vT}, s[16:19], s24 offen {TLF} lds")
a("s_add_u32 m0, s27, 1024")
a(f"buffer_load_dwordx4 v{vT}, s[16:19], s26 offen {TLF} lds")
PW2 = "pw2" in OPT or "pw3" in OPT
def pw2():
    a(f"v_lshrrev_b32 v{TB}, 2, v0"); a(f"v_and_b32 v{TB+1}, 3, v0"); a(f"v_lshlrev_b32 v{TB+1}, 6, v{TB+1}"); a(f"v_lshl_or_b32 v{TB}, v{TB}, 11, v{TB+1}")
    if "pwh" in OPT: a("s_mov_b32 exec_lo, 0x55555555"); a("s_mov_b32 exec_hi, 0x55555555")
    a(f"buffer_store_dword v{TB}, v{TB}, s[16:19], s30 offen sc1")
    if "pwh" in OPT: a("s_mov_b64 exec, -1")
if "pw2" in OPT: pw2()
if SPLIT:
    for op in wdma_list(vW, [0], (0, 1)): op()
def wread(ab):
    a("s_not_b32 exec_lo, s52"); a("s_not_b32 exec_hi, s52")
    for arr, cc in ((2*ab, 0), (2*ab+1, 0), (2*ab, 1), (2*ab+1, 1)):
        for i in range(4):
            a(f"ds_read_u16_d16_hi v{Wi(arr,cc,i)}, v{vWr} offset:{1536*arr+768*cc+48*i}")
    a("s_mov_b64 exec, -1")
if UO:
    srd(12, 94, 2048 * 2048)
    a(f"v_lshlrev_b32 v{vF}, 2, v{vc}"); a(f"v_lshl_or_b32 v{vF}, v{vg}, 17, v{vF}")
    a("s_and_b32 s31, s2, 7"); a("s_lshl_b32 s31, s31, 19"); a("s_lshl_b32 s30, s3, 12"); a("s_add_u32 s31, s31, s30"); a("s_lshl_b32 s30, s54, 6"); a("s_add_u32 s31, s31, s30")
if not GW_: a("s_barrier")
if "ptw" in OPT:
    a(f"v_lshrrev_b32 v{TB}, 1, v0"); a(f"v_and_b32 v{TB+1}, 1, v0"); a(f"v_lshlrev_b32 v{TB+1}, 7, v{TB+1}"); a(f"v_lshl_or_b32 v{TB}, v{TB}, 11, v{TB+1}")
    a("s_mov_b32 exec_hi, 0")
    a(f"buffer_load_ubyte v1, v{TB}, s[16:19], s30 offen")
    a("s_mov_b32 exec_hi, -1")
wread(1)
if not SPLIT: wread(0)
PKD = SC + 8
a(f"s_waitcnt vmcnt({4 if SPLIT else (1 if ('pw2' in OPT or 'ptw' in OPT) else 0)})")
if ST: a("s_waitcnt lgkmcnt(0)")
ts(9)
def pt9():
    a("s_and_b32 s30, s54, 1"); a("s_cmp_eq_u32 s30, 0"); a("s_cselect_b32 s30, s24, s26"); a(f"s_add_u32 s30, s30, {hx(U_OFF)}")
    a("s_mov_b32 exec_lo, 0x11111111"); a("s_mov_b32 exec_hi, 0x11111111")
    a(f"buffer_load_ubyte v1, v{vT}, s[16:19], s30 offen")
    a("s_mov_b64 exec, -1")
a("s_lshl_b32 s25, s3, 9"); a(f"s_add_u32 s25, s25, {L_E}"); a("s_mov_b32 m0, s25")
a("s_mov_b32 exec_lo, s59"); a("s_mov_b32 exec_hi, 0")
a(f"buffer_load_dwordx4 v{vEa}, s[16:19], s50 offen sc1 lds")
a("s_mov_b64 exec, -1")
a(f"ds_read2_b32 {vr(TB,2)}, v{vTr} offset0:0 offset1:16")
a(f"ds_read2_b32 {vr(TB+2,2)}, v{vTr} offset0:32 offset1:48")
a(f"v_add_u32 v{vTr}, 1024, v{vTr}")
a(f"ds_read2_b32 {vr(TB+4,2)}, v{vTr} offset0:0 offset1:16")
a(f"ds_read2_b32 {vr(TB+6,2)}, v{vTr} offset0:32 offset1:48")
a.label("L_p2e")
for bb in range(2):
    a(f"s_waitcnt lgkmcnt({2-2*bb})")
    a(f"{M16} {vr(D+8*bb,4)}, {vr(Fr,4)}, {vr(TB+4*bb,4)}, 0")
    a(f"{M16} {vr(D+8*bb+4,4)}, {vr(Fm,4)}, {vr(TB+4*bb,4)}, 0")
for ip in range(2):
    for cc in range(2):
        for bb in range(2):
            i = 2 * ip + cc
            a(f"v_cvt_pk_bf16_f32 v{PKD+4*ip+2*cc+bb}, v{D+8*bb+i}, v{D+8*bb+4+i}")
    a(f"ds_write_b128 v{vw1}, {vr(PKD+4*ip,4)} offset:{ip*256}")
a("s_waitcnt lgkmcnt(0)")
f2pre()
a("s_barrier")
OB = TB
for cc in range(2):
    for h in range(2):
        a(f"ds_read_b64 {vr(OB+4*cc+2*h,2)}, v{vr1} offset:{h*2048+cc*8}")
X = D
for cc in range(2):
    a(f"s_waitcnt lgkmcnt({2-2*cc})")
    a(f"{M16} {vr(X+8*cc,4)}, {vr(M2+8*cc,4)}, {vr(OB+4*cc,4)}, 0")
    a(f"{M16} {vr(X+8*cc+4,4)}, {vr(M2+8*cc+4,4)}, {vr(OB+4*cc,4)}, 0")
YO = [PKD, PKD + 4, PKD, PKD + 4]
tpr = [(vT, vTr), (vr1, vw1)]
def dpt(cc, ab, ri): return WW + 16 * cc + 8 * ab + 4 * ri
def wmul(cc, ab):
    n = 2 * cc + ab
    xr = X + 8 * cc; xi = X + 8 * cc + 4
    for i in range(4):
        wr = Wi(2 * ab, cc, i); wi = Wi(2 * ab + 1, cc, i)
        y0, y1 = tpr[i & 1]
        a(f"v_mul_f32 v{y0}, v{xr+i}, v{wr}")
        a(f"v_mul_f32 v{y1}, v{xi+i}, v{wr}")
        a(f"v_fma_f32 v{y0}, -v{xi+i}, v{wi}, v{y0}")
        a(f"v_fmac_f32 v{y1}, v{xr+i}, v{wi}")
        a(f"v_cvt_pk_bf16_f32 v{YO[n]+i}, v{y1}, v{y0}")
    a(f"{M16} {vr(dpt(cc,ab,0),4)}, {vr(MT+8*cc,4)}, {vr(YO[n],4)}, 0")
    a(f"{M16} {vr(dpt(cc,ab,1),4)}, {vr(MT+8*cc+4,4)}, {vr(YO[n],4)}, 0")
XP2 = X
def x2_write(ab, dst):
    for ip in range(2):
        for cc in range(2):
            for bb in range(2):
                i = 2 * ip + bb
                a(f"v_cvt_pk_bf16_f32 v{dst+4*ip+2*bb+cc}, v{dpt(cc,ab,0)+i}, v{dpt(cc,ab,1)+i}")
        a(f"ds_write_b128 v{vw2}, {vr(dst+4*ip,4)} offset:{3072*ab+ip*256}")
def x2_read(ab, dst):
    for bb in range(2):
        for h in range(2):
            a(f"ds_read_b64 {vr(dst+4*bb+2*h,2)}, v{vr2} offset:{WR*h+3072*ab+bb*8}")
def last_mfma(src, out):
    a(f"{M16} {vr(out,4)}, {vr(Fr,4)}, {vr(src,4)}, 0")
    a(f"{M16} {vr(out+4,4)}, {vr(Fm,4)}, {vr(src,4)}, 0")
def s_store(ab, bb, out):
    for i in range(4):
        a(f"v_cvt_pk_bf16_f32 v{out+i}, v{out+4+i}, v{out+i}")
        if UO and ab:
            a(f"s_add_u32 s30, s31, {hx(16*i*2048)}")
            a(f"buffer_store_dword v{out+i}, v{vF}, s[12:15], s30 offen offset:{bb*2048} {SSF}")
            continue
        a(f"s_add_u32 s30, s24, {hx((16*i+bb)*TSB + ab*U_OFF)}")
        a(f"buffer_store_dword v{out+i}, v{vS}, s[16:19], s30 offen {SSF}")
B1 = WW + 8; B2 = WW + 24
YO = [PKD, PKD, PKD + 4, PKD + 4]
def tail():
    x2_write(1, PKD)
    if SPLIT:
        a(f"s_waitcnt vmcnt({0 if 'nopw' in OPT else 1})")
        wread(0)
    a("s_waitcnt lgkmcnt(0)")
    a("s_barrier")
a("s_cmp_lg_u32 s54, 0")
a("s_cbranch_scc0 L_el")
a.label("L_elb")
wmul(0, 1); wmul(1, 1)
tail()
a.label("L_spb")
x2_read(1, B2)
if "t1" not in OPT:
    a("s_waitcnt lgkmcnt(2)")
    last_mfma(B2, B1)
    a("s_waitcnt lgkmcnt(0)")
    last_mfma(B2 + 4, M2)
    wmul(0, 0)
    s_store(1, 0, B1)
    wmul(1, 0)
    s_store(1, 1, M2)
    x2_write(0, D)
else:
    wmul(0, 0)
    a("s_waitcnt lgkmcnt(0)")
    last_mfma(B2, B1)
    last_mfma(B2 + 4, M2)
    wmul(1, 0)
    s_store(1, 0, B1)
    x2_write(0, D)
    s_store(1, 1, M2)
a("s_waitcnt lgkmcnt(0)")
a("s_barrier")
x2_read(0, B2)
a("s_waitcnt lgkmcnt(2)")
last_mfma(B2, MT)
a("s_waitcnt lgkmcnt(0)")
last_mfma(B2 + 4, MT + 8)
s_store(0, 0, MT)
s_store(0, 1, MT + 8)
X4 = False
ts(10)
if "swb" in OPT:
    a("s_waitcnt vmcnt(0)")
    a("buffer_wbl2 sc1")
amx_post(t[0])
LATE = optint("late", 1)
a("s_mov_b32 s27, s9")
if LATE == 0:
    setflag(t[0], "s27", "s49")
    if "st2" in OPT: ts(1)
a("s_setprio 0")
V = VAlloc(8)
vg_ = vg; vc_ = vc
t = [V() for _ in range(6)]
vS3 = 1; vN = 2; vF3 = 7; AP8 = V(); AMx = V()
MR = V(16, 4); MI = V(16, 4); X = V(16, 4)
BA = V(24, 4); BB = V(24, 4); TCh = V(8); TSh = V(8)
assert V.n <= 128, V.n
D1r = BA + 8; D1i = BB + 8; D2r = BA; D2i = BB
SBt = [D1r, D1r + 4, D1r + 8, D1r + 12, X]
DDt = [D1i, D1i + 4, D1i + 8, D1i + 12, X + 4]
MA = X + 8; AP = X + 12; AM = [X + 13, X + 14, X + 15, AMx]
CS = D1r; GG = D1i
a(f"v_bfe_u32 v{t[0]}, v0, 2, 2"); a(f"v_lshlrev_b32 v{t[1]}, 4, v{t[0]}")
a(f"v_add_u32 v{t[1]}, {L_G}, v{t[1]}")
a(f"ds_read_b128 {vr(GG,4)}, v{t[1]}")
if X4:
    a(f"v_and_b32 v{t[1]}, 1, v0"); a(f"v_lshlrev_b32 v{t[1]}, 3, v{t[1]}")
    a(f"v_lshl_or_b32 v{t[1]}, v{t[0]}, 4, v{t[1]}")
    a(f"v_bfe_u32 v{t[2]}, v0, 1, 1"); a(f"v_lshl_or_b32 v{t[1]}, v{t[2]}, 6, v{t[1]}")
else:
    a(f"v_lshlrev_b32 v{t[1]}, 2, v{vc_}")
SD = "sd" in OPT
RS = 2080
if SD:
    a(f"v_mul_u32_u24 v{vS3}, {2*RS}, v{vg_}"); a(f"v_add_u32 v{vS3}, v{vS3}, v{t[1]}")
    a(f"v_lshlrev_b32 v{vN}, 4, v0")
else:
    a(f"v_lshl_or_b32 v{vS3}, v{vg_}, 12, v{t[1]}")
    a(f"v_lshl_or_b32 v{vN}, v{vg_}, 20, v{t[1]}")
a("s_xor_b32 s50, s3, 4")
a(f"s_mul_i32 s8, s2, {TSB}")
if SD:
    a("s_lshl_b32 s11, s50, 6"); a(f"s_add_u32 s11, s11, {L_W}"); a(f"v_add_u32 v{vS3}, s11, v{vS3}"); a(f"v_add_u32 v{AP8}, {RS}, v{vS3}")
    a("s_lshl_b32 s11, s3, 11"); a("s_add_u32 s8, s8, s11"); a(f"s_add_u32 s10, s8, {hx(U_OFF)}")
    a(f"s_mul_i32 s9, s3, {RS}"); a(f"s_add_u32 s9, s9, {L_W}")
else:
    a("s_lshl_b32 s11, s50, 6"); a("s_add_u32 s8, s8, s11"); a(f"s_add_u32 s10, s8, {hx(U_OFF)}")
    if UO:
        a("s_lshl_b32 s10, s2, 11"); a("s_add_u32 s10, s10, s11"); a("s_add_u32 s9, s10, 0x80000")
if SD:
    a("s_lshl_b32 s11, s3, 5"); a(f"v_add_u32 v{t[1]}, s11, v{vn}")
else:
    a(f"v_bfe_u32 v{t[1]}, v0, 2, 3"); a(f"v_and_b32 v{t[2]}, 3, v0"); a(f"v_lshlrev_b32 v{t[2]}, 3, v{t[2]}")
    a(f"v_lshl_add_u32 v{t[1]}, v{t[1]}, 5, v{t[2]}"); a(f"v_add_u32 v{t[1]}, s50, v{t[1]}")
a("s_cmp_eq_u32 s50, 0"); a("s_cselect_b32 s24, 0x00010001, 0")
a(f"v_lshlrev_b32 v{vF3}, 10, v{t[1]}")
a("s_bfe_u32 s11, s2, 0x30001"); a("s_lshl_b32 s11, s11, 7"); a(f"s_add_u32 s11, s11, {hx(F2_OFF)}")
vsg = X; ve = X + 1; vstep = X + 2; vpe = X + 3; vpo = X + 4; vk = X + 5; vpl = X + 6
a(f"v_bfe_u32 v{t[1]}, v0, 1, 1"); a(f"v_cvt_f32_u32 v{vsg}, v{t[1]}")
a(f"v_mul_f32 v{vsg}, -0.5, v{vsg}"); a(f"v_add_f32 v{vsg}, {fl(0.25)}, v{vsg}")
a(f"v_and_b32 v{t[1]}, 1, v0"); a(f"v_cvt_f32_u32 v{t[1]}, v{t[1]}")
a(f"v_mul_f32 v{ve}, v{t[1]}, v{vsg}")
a(f"v_lshlrev_b32 v{t[0]}, 9, v{t[0]}"); a(f"v_add_u32 v{t[0]}, s2, v{t[0]}")
a(f"v_cvt_f32_u32 v{vstep}, v{t[0]}"); a(f"v_mul_f32 v{vstep}, {hx(f2u(-1/2048))}, v{vstep}")
a(f"v_cvt_f32_u32 v{t[2]}, v{vg_}"); a(f"v_add_f32 v{t[2]}, v{t[2]}, v{t[2]}")
a(f"v_fma_f32 v{vpe}, v{t[2]}, v{vstep}, v{ve}")
a(f"v_sub_f32 v{vpo}, v{vpe}, v{vsg}")
a(f"v_fmamk_f32 v{vpo}, v{t[2]}, {hx(f2u(-0.125))}, v{vpo}")
for lo in range(2):
    if lo:
        a(f"v_add_f32 v{vpe}, v{vpe}, v{vstep}")
        a(f"v_add_f32 v{vpo}, v{vpo}, v{vstep}"); a(f"v_add_f32 v{vpo}, {hx(f2u(-0.125))}, v{vpo}")
    a(f"v_cos_f32 v{CS+4*lo}, v{vpe}"); a(f"v_sin_f32 v{CS+4*lo+1}, v{vpe}")
    a(f"v_cos_f32 v{CS+4*lo+2}, v{vpo}"); a(f"v_sin_f32 v{CS+4*lo+3}, v{vpo}")
a("s_lshl_b32 s25, s50, 4")
a(f"v_lshlrev_b32 v{vpl}, 12, v{vg_}")
a(f"v_add_u32 v{vk}, s25, v{vc_}")
a(f"v_and_b32 v{t[3]}, 14, v{vk}"); a(f"v_lshl_or_b32 v{t[3]}, v{t[3]}, 3, v{vpl}")
a(f"v_and_b32 v{t[4]}, 31, v{vk}"); a(f"v_lshl_or_b32 v{t[3]}, v{t[4]}, 7, v{t[3]}")
a(f"v_bfe_u32 v{t[4]}, v{vk}, 5, 2"); a(f"v_lshl_or_b32 v{AP}, v{t[4]}, 2, v{t[3]}")
a(f"v_sub_u32 v{t[5]}, 0, v{vk}")
a(f"v_and_b32 v{t[4]}, 31, v{t[5]}"); a(f"v_lshl_or_b32 v{t[3]}, v{t[4]}, 7, v{vpl}")
a(f"v_and_b32 v{t[4]}, 14, v{t[5]}"); a(f"v_lshl_or_b32 v{t[3]}, v{t[4]}, 3, v{t[3]}")
a(f"v_lshrrev_b32 v{t[5]}, 3, v{t[5]}")
for tt in range(4):
    if tt: a(f"v_subrev_u32 v{t[5]}, 16, v{t[5]}")
    a(f"v_and_b32 v{t[4]}, 0x7c, v{t[5]}")
    a(f"v_xor_b32 v{AM[tt]}, v{t[4]}, v{t[3]}")
a("s_mov_b32 exec_lo, s24"); a("s_mov_b32 exec_hi, s24")
a(f"v_or_b32 v{AM[0]}, 64, v{vpl}")
a("s_mov_b64 exec, -1")
a("s_waitcnt lgkmcnt(0)")
for lo in range(2):
    for ab in range(2):
        a(f"v_mul_f32 v{t[0]}, v{GG+ab}, v{CS+4*lo}"); a(f"v_mul_f32 v{t[1]}, v{GG+ab}, v{CS+4*lo+1}")
        a(f"v_fmac_f32 v{t[0]}, v{GG+2+ab}, v{CS+4*lo+2}"); a(f"v_fmac_f32 v{t[1]}, v{GG+2+ab}, v{CS+4*lo+3}")
        a(f"v_cvt_pk_bf16_f32 v{MA+2*lo+ab}, v{t[0]}, v{t[1]}")
if LATE == 1:
    setflag(t[0], "s27", "s49")
    if "st2" in OPT: ts(1)
a("s_cmp_eq_u32 s3, 4")
a("s_cbranch_scc1 L_m0")
a("s_cmp_ge_u32 s3, 4")
a("s_cbranch_scc1 L_p3b")
TC = lambda k: BA + k if k < 8 else TCh + k - 8
TS_ = lambda k: BB + k if k < 8 else TSh + k - 8
vb = X; vo = X + 1
a(f"v_cvt_f32_u32 v{vb}, v{vn}"); a(f"v_cvt_f32_u32 v{vo}, v{vL5}")
a(f"v_mul_f32 v{vb}, {fl(1/32)}, v{vb}"); a(f"v_mul_f32 v{vo}, 4.0, v{vo}"); a(f"v_mul_f32 v{vo}, v{vb}, v{vo}")
for i in range(16):
    kc = 8 * (i // 4) + i % 4
    if kc == 0: a(f"v_mov_b32 v{t[0]}, v{vo}")
    else: a(f"v_fmamk_f32 v{t[0]}, v{vb}, {hx(f2u(float(kc)))}, v{vo}")
    a(f"v_cos_f32 v{t[1]}, v{t[0]}"); a(f"v_sin_f32 v{t[2]}, v{t[0]}")
    a(f"v_mul_f32 v{t[0]}, {fl(1/32)}, v{t[0]}")
    a(f"v_cvt_pk_bf16_f32 v{MR+i}, v{t[1]}, -v{t[2]}")
    a(f"v_cvt_pk_bf16_f32 v{MI+i}, v{t[2]}, v{t[1]}")
    a(f"v_cos_f32 v{TC(i)}, v{t[0]}"); a(f"v_sin_f32 v{TS_(i)}, v{t[0]}")
a.label("L_p3b")
if "nogb" not in OPT: a("s_barrier")
if optint("pb", 0): a(f"s_sleep {optint('pb', 0)}")
ts(11)
poll("L_poll2", vF3, t[0], "s11", "s49")
ts(12)
if "st2" in OPT: a("s_add_u32 s64, s60, s58")
if SD:
    for ab in range(2):
        a(f"s_add_u32 m0, s9, {ab*8*RS}")
        a(f"buffer_load_dwordx4 v{vN}, s[16:19], {'s10' if ab else 's8'} offen {SLF} lds")
        a(f"buffer_load_dwordx4 v{vN}, s[16:19], {'s10' if ab else 's8'} offen offset:1024 {SLF} lds")
    a("s_waitcnt vmcnt(0)")
    a("s_barrier")
    for tt in range(4):
        for lo in range(2):
            a(f"ds_read2st64_b32 {vr(SBt[tt]+2*lo,2)}, v{AP8 if lo else vS3} offset0:{2*tt} offset1:{2*tt + 8*RS//256}")
else:
  for tt in range(4):
    for lo in range(2):
        for ab in range(2):
            if UO and ab:
                a(f"buffer_load_dword v{SBt[tt]+2*lo+ab}, v{vN}, s[12:15], {'s9' if lo else 's10'} offen offset:{tt*512} {SLF}")
                continue
            a(f"buffer_load_dword v{SBt[tt]+2*lo+ab}, v{vS3}, s[16:19], {'s10' if ab else 's8'} offen offset:{tt*512+lo*2048} {SLF}")
MA0 = MR
def fin(tt):
    d = DDt[tt]
    if tt == 0:
        a("s_mov_b32 exec_lo, s24"); a("s_mov_b32 exec_hi, s24")
        for k in range(4): a(f"v_mov_b32 v{d+k}, v{DDt[4]+k}")
        a("s_mov_b64 exec, -1")
    a(f"v_cvt_pk_bf16_f32 v{d}, v{d}, v{d+1}")
    a(f"v_cvt_pk_bf16_f32 v{d+1}, v{d+2}, v{d+3}")
    if tt: a(f"v_xor_b32 v{t[tt]}, {tt<<4}, v{AP}")
    a(f"ds_write_b32 v{t[tt] if tt else AP}, v{d}")
    a(f"ds_write_b32 v{AM[tt]}, v{d+1}")
if SD:
    for tt in range(4):
        a(f"s_waitcnt lgkmcnt({6-2*tt})")
        a(f"{M16} {vr(DDt[tt],4)}, {vr(MA,4)}, {vr(SBt[tt],4)}, 0")
        if tt == 0: a(f"{M16} {vr(DDt[4],4)}, {vr(MA0,4)}, {vr(SBt[0],4)}, 0")
    for tt in range(4): fin(tt)
else:
    for tt in range(4):
        a(f"s_waitcnt vmcnt({12-4*tt})")
        a(f"{M16} {vr(DDt[tt],4)}, {vr(MA,4)}, {vr(SBt[tt],4)}, 0")
        if tt == 0: a(f"{M16} {vr(DDt[4],4)}, {vr(MA0,4)}, {vr(SBt[0],4)}, 0")
        if tt >= 1: fin(tt - 1)
    fin(3)
vst = vS3
a(f"v_bfe_u32 v{t[4]}, v{vn}, 1, 3"); a(f"v_xor_b32 v{t[4]}, v{t[4]}, v{vL5}"); a(f"v_lshlrev_b32 v{t[4]}, 4, v{t[4]}")
a(f"v_lshl_or_b32 v{t[4]}, v{vn}, 7, v{t[4]}"); a("s_lshl_b32 s26, s51, 12")
a("s_waitcnt lgkmcnt(0)")
a(f"v_add_u32 v{t[0]}, s26, v{t[4]}")
for q in range(1, 4): a(f"v_xor_b32 v{t[q]}, {32*q}, v{t[0]}")
a(f"v_lshlrev_b32 v{t[4]}, 4, v{vL5}"); a(f"v_lshl_or_b32 v{vst}, v{vn}, 6, v{t[4]}")
srd(12, 94, 2048 * 2048)
a("s_add_u32 s30, s22, 0x80000")
if "st2" in OPT: ts(3)
a("s_barrier")
if "st2" in OPT: ts(4)
a("s_cmp_ge_u32 s3, 4")
a("s_cbranch_scc1 L_hx")
for q in range(4): a(f"ds_read_b128 {vr(X+4*q,4)}, v{t[q]}")
for q in range(4):
    a(f"s_waitcnt lgkmcnt({3-q})")
    a(f"{M32} {vr(D1r,16)}, {vr(X+4*q,4)}, {vr(MR+4*q,4)}, {'0' if q == 0 else vr(D1r,16)}")
    a(f"{M32} {vr(D1i,16)}, {vr(X+4*q,4)}, {vr(MI+4*q,4)}, {'0' if q == 0 else vr(D1i,16)}")
if "nool" not in OPT:
    ta = [AP8, AMx, 2, 7]; tb = 5; tc_ = 6
    a(f"v_bfe_u32 v{t[2]}, v{vn}, 1, 2"); a(f"v_lshlrev_b32 v{t[2]}, 4, v{t[2]}"); a(f"v_lshl_or_b32 v{t[2]}, v{vn}, 6, v{t[2]}")
    a(f"v_lshl_or_b32 v{t[2]}, v{vL5}, 3, v{t[2]}"); a(f"v_add_u32 v{ta[0]}, s26, v{t[2]}")
    for c in range(1, 4): a(f"v_xor_b32 v{ta[c]}, {16*c}, v{ta[0]}")
    a(f"v_lshlrev_b32 v{tc_}, 4, v0"); a(f"v_bfe_u32 v{t[2]}, v0, 3, 2"); a(f"v_lshlrev_b32 v{t[2]}, 4, v{t[2]}")
    a(f"v_xor_b32 v{tb}, v{tc_}, v{t[2]}"); a(f"v_add_u32 v{tb}, s26, v{tb}")
def p2m(q):
    a(f"{M32} {vr(D2r,16)}, {vr(X+4*q,4)}, {vr(MR+4*q,4)}, {'0' if q == 0 else vr(D2r,16)}")
    a(f"{M32} {vr(D2i,16)}, {vr(X+4*q,4)}, {vr(MI+4*q,4)}, {'0' if q == 0 else vr(D2i,16)}")
def p2l(q):
    return [f"{M32} {vr(D2r,16)}, {vr(X+4*q,4)}, {vr(MR+4*q,4)}, {'0' if q == 0 else vr(D2r,16)}",
            f"{M32} {vr(D2i,16)}, {vr(X+4*q,4)}, {vr(MI+4*q,4)}, {'0' if q == 0 else vr(D2i,16)}"]
pend = []
for q in range(4):
    for e in range(4):
        k = 4 * q + e
        if pend and (q == 2 or (e & 1) == 1): a(pend.pop(0))
        a(f"v_mul_f32 v{t[0]}, v{D1r+k}, v{TC(k)}")
        a(f"v_mul_f32 v{t[1]}, v{D1i+k}, v{TC(k)}")
        a(f"v_fma_f32 v{t[0]}, -v{D1i+k}, v{TS_(k)}, v{t[0]}")
        a(f"v_fmac_f32 v{t[1]}, v{D1r+k}, v{TS_(k)}")
        a(f"v_cvt_pk_bf16_f32 v{X+k}, v{t[0]}, v{t[1]}")
    if q == 1: pend += p2l(0) + p2l(1)
    if q >= 2: pend += p2l(q)
for m_ in pend: a(m_)
O = MR
OL = "nool" not in OPT
if OL:
    for r, Dx in enumerate((D2r, D2i)):
        for c in range(4):
            o = O + 8 * r + 2 * c
            a(f"v_cvt_pk_bf16_f32 v{o}, v{Dx+4*c}, v{Dx+4*c+1}"); a(f"v_cvt_pk_bf16_f32 v{o+1}, v{Dx+4*c+2}, v{Dx+4*c+3}")
            a(f"ds_write_b64 v{ta[c]}, {vr(o,2)} offset:{2048*r}")
    a("s_waitcnt lgkmcnt(0)")
    for q in range(4): a(f"ds_read_b128 {vr(MI+4*q,4)}, v{tb} offset:{1024*q}")
    for q in range(4):
        a(f"s_waitcnt lgkmcnt({3-q})")
        a(f"buffer_store_dwordx4 {vr(MI+4*q,4)}, v{tc_}, s[12:15], {'s22' if q < 2 else 's30'} offen offset:{1024*(q&1)}{OSF}")
else:
  for r, (Dx, so) in enumerate(((D2r, "s22"), (D2i, "s30"))):
    for c2 in range(2):
        o = O + 8 * r + 4 * c2
        for e in range(4):
            a(f"v_cvt_pk_bf16_f32 v{o+e}, v{Dx+8*c2+2*e}, v{Dx+8*c2+2*e+1}")
        a(f"v_permlane32_swap_b32 v{o}, v{o+2}")
        a(f"v_permlane32_swap_b32 v{o+1}, v{o+3}")
        a(f"buffer_store_dwordx4 {vr(o,4)}, v{vst}, s[12:15], {so} offen offset:{32*c2}{OSF}")
a.label("L_fin")
stamp_end(32)
a.label("L_end")
a("s_endpgm")
a.label("L_hx")
a("s_lshl_b32 s26, s2, 3"); a("s_add_u32 s26, s26, s3")
a("s_cmp_lg_u32 s26, 4")
a("s_cbranch_scc1 L_fin")
a(f"s_mov_b32 s26, {hx(EP_OFF)}")
setflag(8, "s26", "s49")
a("s_branch L_fin")
a.label("L_m0")
a.hist = []
q_ = [MI + k for k in range(16)]
gaa = q_[0]; gbb = q_[1]; ph = q_[2]; st_ = q_[3]; c_ = q_[4]; s__ = q_[5]; al = q_[6]; be = q_[7]
a(f"v_and_b32 v{t[0]}, 1, v0"); a(f"v_cmp_eq_u32 vcc, 1, v{t[0]}")
a(f"v_bfe_u32 v{t[1]}, v0, 2, 2"); a(f"v_lshl_or_b32 v{t[1]}, v{t[1]}, 1, v{t[0]}")
a(f"v_cndmask_b32 v{gaa}, v{GG}, v{GG+2}, vcc"); a(f"v_cndmask_b32 v{gbb}, v{GG+1}, v{GG+3}, vcc")
a(f"v_lshlrev_b32 v{t[1]}, 8, v{t[1]}"); a(f"v_add_u32 v{t[1]}, s2, v{t[1]}")
a(f"v_cvt_f32_u32 v{st_}, v{t[1]}"); a(f"v_mul_f32 v{st_}, {hx(f2u(1/2048))}, v{st_}")
a(f"v_cvt_f32_u32 v{ph}, v{vg_}"); a(f"v_add_f32 v{ph}, v{ph}, v{ph}"); a(f"v_mul_f32 v{ph}, v{ph}, v{st_}")
a(f"v_bfe_u32 v{t[2]}, v0, 1, 1")
a(f"v_lshrrev_b32 v{t[3]}, 1, v{vg_}"); a(f"v_cmp_eq_u32 s[4:5], v{t[2]}, v{t[3]}")
a(f"v_and_b32 v{t[3]}, 1, v{vg_}"); a(f"v_cmp_eq_u32 s[6:7], 0, v{t[3]}")
a(f"v_cmp_eq_u32 s[28:29], 0, v{t[2]}")
a(f"v_cndmask_b32 v{q_[8]}, 0, v{gaa}, s[4:5]"); a(f"v_cndmask_b32 v{q_[9]}, 0, v{gbb}, s[4:5]")
a(f"v_mul_f32 v{q_[10]}, {fl(0.25)}, v{gaa}"); a(f"v_mul_f32 v{q_[11]}, {fl(0.25)}, v{gbb}")
for lo in range(2):
    if lo: a(f"v_add_f32 v{ph}, v{ph}, v{st_}")
    a(f"v_cos_f32 v{c_}, v{ph}"); a(f"v_sin_f32 v{s__}, v{ph}")
    for ab in range(2):
        if lo == 0:
            if ab == 0:
                a(f"v_cndmask_b32 v{al}, 0, v{q_[10]}, s[28:29]"); a(f"v_cndmask_b32 v{be}, 0, v{q_[11]}, s[28:29]")
            else:
                a(f"v_cndmask_b32 v{al}, v{q_[10]}, 0, s[28:29]"); a(f"v_cndmask_b32 v{be}, v{q_[11]}, 0, s[28:29]")
            a(f"v_cndmask_b32 v{al}, v{q_[8+ab]}, v{al}, s[6:7]"); a(f"v_cndmask_b32 v{be}, 0, v{be}, s[6:7]")
            a(f"v_mul_f32 v{t[0]}, v{al}, v{c_}"); a(f"v_fmac_f32 v{t[0]}, v{be}, v{s__}")
            a(f"v_mul_f32 v{t[1]}, v{be}, v{c_}"); a(f"v_fma_f32 v{t[1]}, -v{al}, v{s__}, v{t[1]}")
            a(f"v_cvt_pk_bf16_f32 v{MA0+2*lo+ab}, v{t[0]}, v{t[1]}")
        else:
            a(f"v_mul_f32 v{t[0]}, v{q_[8+ab]}, v{c_}"); a(f"v_mul_f32 v{t[1]}, v{q_[8+ab]}, v{s__}")
            a(f"v_cvt_pk_bf16_f32 v{MA0+2*lo+ab}, v{t[0]}, -v{t[1]}")
a("s_branch L_p3b")
a.label("L_el")
a.hist = []
a(f"v_lshlrev_b32 v{vEa}, 6, v{vg}"); a(f"v_add_u32 v{vEa}, s25, v{vEa}")
a("s_mov_b32 exec_lo, s52"); a("s_mov_b32 exec_hi, s52")
a(f"s_waitcnt vmcnt({0 if 'nopw' in OPT else 1})")
for ab in (1, 0):
    for cc in range(2):
        for i in range(4):
            a(f"ds_read_b64 {vr(Wi(2*ab,cc,i),2)}, v{vEa} offset:{256*cc+16*i+8*ab}")
a("s_mov_b64 exec, -1")
a("s_and_b32 s29, s2, 0xfb")
a("s_cmp_eq_u32 s29, 0")
a("s_cbranch_scc1 L_sp")
a("s_waitcnt lgkmcnt(0)")
a("s_branch L_elb")
a.label("L_sp")
a.hist = []
X = XP2
ts(3)
a("s_lshr_b32 s29, s2, 2"); a("s_lshl_b32 s10, s3, 1"); a("s_add_u32 s29, s29, s10"); a("s_sub_u32 s29, 16, s29")
for cc in range(2):
    a(f"s_sub_u32 s10, s29, {cc}"); a("s_and_b32 s10, s10, 15")
    a("s_lshr_b32 s11, s10, 1"); a("s_lshl_b32 s11, s11, 8"); a("s_and_b32 s10, s10, 1"); a("s_lshl_b32 s10, s10, 3"); a("s_add_u32 s10, s10, s11")
    a(f"v_lshlrev_b32 v{tpr[0][cc]}, 12, v{vg}"); a(f"v_add_u32 v{tpr[0][cc]}, s10, v{tpr[0][cc]}")
for k in range(8): a(f"v_mov_b32 v{TB+k}, 0")
a("s_mov_b32 exec_lo, 0x00010001"); a("s_mov_b32 exec_hi, 0x00010001")
for cc in range(2):
    for h in range(2):
        a(f"ds_read_b64 {vr(TB+4*cc+2*h,2)}, v{tpr[0][cc]} offset:{h*2048}")
a("s_mov_b32 s10, 0x00008000"); a("s_mov_b32 s11, 0x80008000")
a("s_waitcnt lgkmcnt(0)")
for k in range(8): a(f"v_xor_b32 v{TB+k}, s10, v{TB+k}")
a("s_mov_b64 exec, -1")
ts(4)
a("s_cmp_lg_u32 s2, 0")
a("s_cbranch_scc1 L_sp4")
def sp_body(mats):
    def acc(cc):
        a(f"{M16} {vr(X+8*cc,4)}, {vr(mats[cc],4)}, {vr(TB+4*cc,4)}, {vr(X+8*cc,4)}")
        a(f"{M16} {vr(X+8*cc+4,4)}, {vr(mats[cc]+4,4)}, {vr(TB+4*cc,4)}, {vr(X+8*cc+4,4)}")
    acc(0); acc(1)
    a("s_mov_b32 exec_lo, 0x00010001"); a("s_mov_b32 exec_hi, 0x00010001")
    for k in range(8): a(f"v_xor_b32 v{TB+k}, s11, v{TB+k}")
    a("s_mov_b64 exec, -1")
    wmul(0, 1); acc(0); acc(0)
    wmul(1, 1); acc(1); acc(1)
    tail()
    ts(6)
    a("s_nop 7")
    a("s_branch L_spb")
sp_body([M2, M2 + 8])
a.label("L_sp4")
a.hist = []
a("s_nop 1")
sp_body([M2 + 8, MX])

nv = (a.maxv + 1 + 7) // 8 * 8
out = """; gated_mix(spectral_gfnet A, spectral_gfnet B): out = g*irfft2(rfft2(x)*Wa) + (1-g)*irfft2(rfft2(x)*Wb)
; One persistent kernel, 256 workgroups x 8 waves, all transforms done as bf16 MFMA DFT passes (fp32 accumulate).
"""
out += f"; @launch grid=(256,1,1) block=(512,1,1) lds={LDS_BYTES}\n"
out += '.amdgcn_target "amdgcn-amd-amdhsa--gfx950"\n.text\n'
out += f".globl {NAME}\n.p2align 8\n.type {NAME},@function\n" + a.text() + ".rept 96\n    s_endpgm\n.endr\nL_code_end:\n"
out += f""".section .rodata,"a"
.p2align 6
.amdhsa_kernel {NAME}
  .amdhsa_next_free_vgpr {nv}
  .amdhsa_next_free_sgpr {min(102, a.maxs + 1)}
  .amdhsa_accum_offset {nv}
  .amdhsa_group_segment_fixed_size 0
  .amdhsa_kernarg_size 80
  .amdhsa_user_sgpr_count 2
  .amdhsa_user_sgpr_kernarg_segment_ptr 1
  .amdhsa_system_sgpr_workgroup_id_x 1
  .amdhsa_float_denorm_mode_32 3
.end_amdhsa_kernel
"""
sys.stderr.write(f"vgpr {a.maxv+1} sgpr {a.maxs+1} lines {len(a.lines)} nops {a.nops}\n")
print(out)
```

```python
import sys
from asmlib import *
NAME = "gated_mix__spectral_gfnet__spectral_gfnet__prompt_kernel"
TSB = 16512
S_OFF = 0x500000
U_OFF = 0x500000
import sys as _s
for _o in _s.argv:
    if _o.startswith('soff'): S_OFF = int(_o[4:]) << 20
F1_OFF = 0xE20000
F2_OFF = 0xE80000
EP_OFF = 0xEF0000
WS_SIZE = 0xF00000
WBYTES = 2048 * 1026
M32 = "v_mfma_f32_32x32x16_bf16"
M16 = "v_mfma_f32_16x16x32_bf16"
OPT = set(sys.argv[1:])
ST = "stamps" in OPT
WSZ = 0x10000000 if ST else WS_SIZE
L_A = 0; L_W = 16384; L_P = L_W; WR = 6144; L_G = 65536; L_N = 65664; L_C = 65920; L_E = 65936; LDS_BYTES = 65936 + 4096
def optint(pfx, d):
    for o in OPT:
        if o.startswith(pfx) and o[len(pfx):].isdigit(): return int(o[len(pfx):])
    return d
SLEEP = optint("sl", 0); PFAT = optint("pf", 8); NWG = optint("nwg", 0)
SPIN_MAX = 400000
NTX = " nt" if "ntx" in OPT else ""
NTW = " nt" if "ntw" in OPT else ""
PLF = "sc0 sc1" if "psys" in OPT else ("sc1 nt" if "pnt" in OPT else ("sc0 sc1 nt" if "psysnt" in OPT else "sc1"))
FSF = "sc0 sc1" if "fsys" in OPT else "sc1"
SSF = "sc0 sc1" if "ssys" in OPT else ("sc1 nt" if "snt" in OPT else ("" if "swb" in OPT else "sc1"))
def lf(k):
    return "sc0 sc1" if k+"sys" in OPT else ("sc1 nt" if k+"nt" in OPT else ("sc0 sc1 nt" if k+"sn" in OPT else "sc1"))
SLF = lf("ls"); TLF = lf("lt")
OSF = " sc1" if "nool" not in OPT else (" nt" if "ont" in OPT else (" sc0 sc1" if "osys" in OPT else ""))
Y4 = "y4" in OPT
UO = "uo" in OPT
a = Asm()
def srd(d, base, size):
    a(f"s_mov_b32 s{d}, s{base}"); a(f"s_mov_b32 s{d+1}, s{base+1}")
    a(f"s_mov_b32 s{d+2}, {hx(size)}"); a(f"s_mov_b32 s{d+3}, 0x00020000")
NST = 14
AMX = optint("amx", -1)
def ts(k):
    if ST:
        a(f"s_memrealtime s[{60+2*k}:{61+2*k}]")
        a("s_waitcnt lgkmcnt(0)")
def amx_post(vt):
    if AMX < 0: return
    a("s_load_dwordx2 s[4:5], s[0:1], 64")
    a("s_waitcnt lgkmcnt(0)")
    a("s_mov_b32 s6, 256"); a("s_mov_b32 s7, 0x00020000")
    a(f"v_mov_b32 v{vt}, s{60+2*AMX}"); a("s_and_b32 s96, s2, 7"); a("s_lshl_b32 s96, s96, 2"); a(f"v_mov_b32 v{vt+1}, s96")
    a("s_cmp_eq_u32 s3, %d" % optint("aw", 0)); a("s_cselect_b32 exec_lo, 1, 0"); a("s_mov_b32 exec_hi, 0")
    a(f"buffer_atomic_umax v{vt}, v{vt+1}, s[4:7], 0 offen")
    a("s_mov_b64 exec, -1")
def stamp_end(vt):
    if not ST: return
    a("s_waitcnt vmcnt(0)")
    ts(NST - 1)
    for k in range(16): a(f"v_mov_b32 v{vt+k}, {'s%d' % (60+2*k) if k < NST else '0'}")
    a("s_lshl_b32 s96, s3, 6"); a("s_lshl_b32 s97, s2, 9"); a("s_add_u32 s96, s96, s97")
    a(f"s_add_u32 s96, s96, 0x3000000")
    a(f"v_mov_b32 v{vt+16}, 0")
    a("s_mov_b64 exec, 1")
    if AMX >= 0:
        a("s_lshl_b32 s96, s2, 3"); a("s_add_u32 s96, s96, s3"); a("s_cmp_lg_u32 s96, 72"); a("s_cbranch_scc1 L_end")
        a("s_load_dwordx2 s[4:5], s[0:1], 64")
        a("s_waitcnt lgkmcnt(0)")
        a("s_mov_b32 s6, 256"); a("s_mov_b32 s7, 0x00020000")
        a(f"buffer_load_dwordx4 {vr(vt,4)}, v{vt+16}, s[4:7], 0 offen sc1")
        a(f"buffer_load_dwordx4 {vr(vt+4,4)}, v{vt+16}, s[4:7], 0 offen offset:16 sc1")
        a("s_waitcnt vmcnt(0)")
        for k in range(1, 8): a(f"v_max_u32 v{vt}, v{vt}, v{vt+k}")
        a("s_nop 1")
        a(f"v_readfirstlane_b32 s4, v{vt}")
        a(f"s_sub_u32 s4, s4, s60"); a("s_mul_i32 s4, s4, 10"); a(f"s_add_u32 s4, s4, s{60+2*(NST-1)}")
        a.label("L_amp")
        a("s_memrealtime s[6:7]"); a("s_waitcnt lgkmcnt(0)")
        a("s_sub_u32 s5, s6, s4"); a("s_cmp_lt_i32 s5, 0"); a("s_cbranch_scc1 L_amp")
        return
    amp = optint("amp", -1)
    if amp >= 0:
        a("s_lshl_b32 s4, s2, 3"); a("s_add_u32 s4, s4, s3"); a("s_cmp_lg_u32 s4, %d" % (72 + optint("aw", 0))); a("s_cbranch_scc1 L_end")
        a(f"s_sub_u32 s4, s{60+2*amp}, s60"); a("s_mul_i32 s4, s4, 10"); a(f"s_add_u32 s4, s4, s{60+2*(NST-1)}")
        a.label("L_amp")
        a("s_memrealtime s[6:7]"); a("s_waitcnt lgkmcnt(0)")
        a("s_sub_u32 s5, s6, s4"); a("s_cmp_lt_i32 s5, 0"); a("s_cbranch_scc1 L_amp")
        return
    if "dbg" in OPT:
        a("s_load_dwordx2 s[4:5], s[0:1], 64")
        a("s_waitcnt lgkmcnt(0)")
        a("s_mov_b32 s6, 256"); a("s_mov_b32 s7, 0x00020000")
        a(f"v_not_b32 v{vt+14}, v{vt}")
        for k in range(15):
            a(f"buffer_atomic_umax v{vt+k}, v{vt+16}, s[4:7], 0 offen offset:{4*k}")
        return
    for q in range(4): a(f"buffer_store_dwordx4 {vr(vt+4*q,4)}, v{vt+16}, s[16:19], s96 offen offset:{16*q}")
def poll(lbl, vaddr, vtmp, soff, tag):
    a("s_mov_b32 s58, 0")
    a("s_mov_b32 exec_hi, 0")
    a.label(lbl)
    a(f"buffer_load_dword v{vtmp}, v{vaddr}, s[16:19], {soff} offen {PLF}")
    a("s_add_u32 s58, s58, 1")
    a("s_waitcnt vmcnt(0)")
    a(f"v_cmp_ne_u32 vcc, {tag}, v{vtmp}")
    a(f"s_cmp_gt_u32 s58, {SPIN_MAX}")
    a(f"s_cbranch_scc1 {lbl}_d")
    a("s_and_b64 exec, exec, vcc")
    a(f"s_cbranch_execz {lbl}_d")
    if SLEEP: a(f"s_sleep {SLEEP}")
    a(f"s_branch {lbl}")
    a.label(lbl + "_d")
    a("s_mov_b64 exec, -1")
def setflag(vtmp, soff, tag):
    a(f"v_mov_b32 v{vtmp}, {tag}"); a(f"v_lshlrev_b32 v{vtmp+1}, 2, v0")
    a("s_waitcnt vmcnt(0)")
    a("s_mov_b32 exec_hi, 0")
    a(f"buffer_store_dword v{vtmp}, v{vtmp+1}, s[16:19], {soff} offen {FSF}")
    a("s_mov_b32 exec_hi, -1")

a.label(NAME)
a.label("L_code_start")
a("s_cmp_ge_u32 s2, 256")
a("s_cbranch_scc1 L_end")
if ST:
    a("s_memrealtime s[60:61]")
    for k in range(1, NST): a(f"s_mov_b32 s{60+2*k}, 0")
a("s_load_dwordx4 s[4:7], s[0:1], 0")
a("s_load_dwordx2 s[20:21], s[0:1], 72")
a("s_load_dwordx2 s[28:29], s[0:1], 16")
a("s_load_dwordx8 s[88:95], s[0:1], 32")
a("s_getpc_b64 s[12:13]")
a("s_and_b32 s12, s12, 0xffffff00")
a("s_mov_b32 s14, L_code_end-L_code_start")
a("s_mov_b32 s15, 0x00020000")
a("v_lshlrev_b32 v6, 6, v0")
a("s_bfe_u32 s8, s2, 0x30003")
a("v_lshrrev_b32 v1, 6, v0")
a("v_cmp_eq_u32 vcc, s8, v1")
a("s_and_saveexec_b64 s[10:11], vcc")
a("s_cbranch_execz L_cp")
if "nocp" not in OPT: a("buffer_load_ubyte v5, v6, s[12:15], 0 offen")
a.label("L_cp")
a("s_mov_b64 exec, -1")
a("v_and_b32 v0, 63, v0")
a("v_readfirstlane_b32 s3, v1")
vl16 = 2; vn = 3; vL5 = 4; vE = 5
a(f"v_lshlrev_b32 v{vl16}, 4, v0")
a(f"v_and_b32 v{vn}, 31, v0")
a(f"v_lshrrev_b32 v{vL5}, 5, v0")
a("s_and_b32 s51, s3, 3")
a("s_lshl_b32 s22, s51, 9"); a("s_add_u32 s22, s22, s2"); a("s_lshl_b32 s22, s22, 11")
a("s_and_b32 s53, s2, 7"); a("s_lshl_b32 s53, s53, 5"); a("s_lshr_b32 s54, s2, 3"); a("s_add_u32 s53, s53, s54")
a("s_and_b32 s55, s2, 7"); a("s_mul_i32 s55, s55, 1026"); a("s_lshl_b32 s56, s54, 5"); a("s_add_u32 s55, s55, s56")
a("s_lshl_b32 s24, s51, 12")
a("s_lshl_b32 s57, s2, 10"); a(f"s_add_u32 s57, s57, {hx(F1_OFF)}")
a(f"s_mov_b32 s26, {hx(EP_OFF)}")
a("v_mov_b32 v7, 0")
a("s_add_u32 s30, s22, 0x80000")
a("s_cmp_ge_u32 s3, 4"); a("s_cselect_b32 s31, 0, -1")
a("s_mov_b32 m0, s24")
a("s_mov_b32 s10, 0x00400000"); a("s_mov_b32 s11, 0x00020000")
a("s_mov_b32 exec_lo, s31"); a("s_mov_b32 exec_hi, s31")
a("s_waitcnt lgkmcnt(0)")
a("s_mov_b32 s8, s4"); a("s_mov_b32 s9, s5")
a("s_cbranch_scc1 L_nox")
a(f"buffer_load_dwordx4 v{vl16}, s[8:11], s22 offen{NTX} lds")
a(f"buffer_load_dwordx4 v{vl16}, s[8:11], s22 offen offset:1024{NTX} lds")
a("s_add_u32 m0, s24, 2048")
a(f"buffer_load_dwordx4 v{vl16}, s[8:11], s30 offen{NTX} lds")
a(f"buffer_load_dwordx4 v{vl16}, s[8:11], s30 offen offset:1024{NTX} lds")
a.label("L_nox")
a("s_mov_b64 exec, -1")
srd(16, 20, WSZ)
a(f"buffer_load_dword v{vE}, v7, s[16:19], s26 offen sc1")
for arr, p_ in enumerate((6, 28, 88, 90)): srd(32 + 4 * arr, p_, WBYTES)
def tags():
    a(f"v_readfirstlane_b32 s48, v{vE}")
    a("s_mul_i32 s48, s48, 0x9E3779B1"); a("s_add_u32 s48, s48, 0x7F4A7C15")
    a("s_xor_b32 s49, s48, 0x5bd1e995")
def arr_srd():
    a("s_cmp_eq_u32 s51, 0"); a("s_cselect_b32 s12, s32, s36"); a("s_cselect_b32 s13, s33, s37")
    a("s_cmp_eq_u32 s51, 2"); a("s_cselect_b32 s12, s40, s12"); a("s_cselect_b32 s13, s41, s13")
    a("s_cmp_eq_u32 s51, 3"); a("s_cselect_b32 s12, s44, s12"); a("s_cselect_b32 s13, s45, s13")
    a(f"s_mov_b32 s14, {hx(WBYTES)}"); a("s_mov_b32 s15, 0x00020000")
V2 = VAlloc(5)
vg = V2(); vc = V2(); vF = V2()
SC = V2(16, 4)
vS = V2(); vw1 = V2(); vr1 = V2(); vT = V2(); vTr = V2(); vWr = V2(); vw2 = V2(); vr2 = V2()
WW = V2(32, 4); TB = V2(8, 4)
Fr = V2(4, 4); Fm = V2(4, 4); M2 = V2(16, 4); MT = V2(16, 4); D = V2(16, 4)
assert V2.n <= 128, V2.n
vW = D; vEa = 2
Wi = lambda arr, cc, i: WW + 16 * cc + 8 * (arr >> 1) + 2 * i + (arr & 1)
MX = SC
L_GW = L_W + 16384
def p2_addr():
    t = [SC + k for k in range(6)]
    a(f"v_lshrrev_b32 v{vg}, 4, v0"); a(f"v_and_b32 v{vc}, 15, v0")
    a(f"v_lshrrev_b32 v{t[0]}, 2, v0"); a(f"v_mul_u32_u24 v{vT}, {16*TSB}, v{t[0]}")
    a(f"v_and_b32 v{t[0]}, 3, v0"); a(f"v_lshl_add_u32 v{vT}, v{t[0]}, 4, v{vT}")
    a("s_lshl_b32 s27, s3, 11")
    a(f"s_mul_i32 s23, s3, {WR}"); a(f"s_add_u32 s23, s23, {L_W}")
    a(f"v_bfe_u32 v{t[0]}, v0, 1, 4"); a(f"v_and_b32 v{t[1]}, 1, v0"); a(f"v_lshl_add_u32 v{t[0]}, v{t[0]}, 4, v{t[1]}")
    a(f"v_lshlrev_b32 v{vF}, 10, v{t[0]}")
    a("s_lshl_b32 s28, s3, 8")
    a("s_and_b32 s8, s2, 7"); a("s_lshl_b32 s8, s8, 7"); a("s_add_u32 s8, s8, s27"); a(f"s_add_u32 s8, s8, {hx(F1_OFF)}")
    a(f"v_lshlrev_b32 v{t[0]}, 4, v{vc}")
    a(f"v_lshl_or_b32 v{t[1]}, v{vg}, 9, v{t[0]}")
    a(f"v_add_u32 v{vw1}, s27, v{t[1]}"); a(f"v_add_u32 v{vw2}, s23, v{t[1]}")
    a(f"v_lshl_or_b32 v{vr1}, v{vg}, 12, v{t[0]}"); a(f"v_add_u32 v{vr1}, s28, v{vr1}")
    a(f"v_mul_u32_u24 v{vr2}, {2*WR}, v{vg}"); a(f"s_add_u32 s29, s28, {L_W}"); a(f"v_add3_u32 v{vr2}, v{vr2}, v{t[0]}, s29")
    if "x4" not in OPT:
        if Y4:
            a(f"v_mul_u32_u24 v{vS}, {16*TSB}, v{vc}"); a(f"v_lshl_add_u32 v{vS}, v{vg}, 4, v{vS}")
        else:
            a(f"v_mul_u32_u24 v{vS}, {64*TSB}, v{vg}"); a(f"v_lshl_add_u32 v{vS}, v{vc}, 2, v{vS}")
    else:
        a(f"v_lshlrev_b32 v{t[0]}, 4, v{vg}"); a(f"v_lshl_or_b32 v{vS}, v{vc}, 11, v{t[0]}")
def p2_item():
    t = [SC + k for k in range(6)]
    a(f"s_mul_i32 s24, s3, {2*TSB}"); a("s_lshl_b32 s26, s53, 6"); a("s_add_u32 s24, s24, s26")
    a(f"s_add_u32 s26, s24, {TSB}")
    a(f"v_lshlrev_b32 v{t[0]}, 2, v{vc}"); a(f"v_lshl_or_b32 v{vTr}, v{vg}, 8, v{t[0]}"); a(f"v_add_u32 v{vTr}, s27, v{vTr}")
    a("s_and_b32 s29, s55, 15"); a("s_add_u32 s29, s29, s23")
    a(f"v_mul_u32_u24 v{vWr}, 192, v{vg}"); a(f"v_lshl_add_u32 v{vWr}, v{vc}, 1, v{vWr}"); a(f"v_add_u32 v{vWr}, s29, v{vWr}")
    a("s_lshl_b32 s30, s53, 15"); a("s_add_u32 s30, s30, s28"); a(f"s_add_u32 s30, s30, {hx(S_OFF)}"); a("s_add_u32 s31, s30, 4096")
    a("s_lshl_b32 s9, s53, 10"); a("s_lshl_b32 s10, s3, 7"); a("s_add_u32 s9, s9, s10"); a(f"s_add_u32 s9, s9, {hx(F2_OFF)}")
    a(f"s_mul_i32 s50, s3, {2*TSB}"); a("s_and_b32 s29, s2, 7"); a("s_lshl_b32 s29, s29, 4"); a("s_add_u32 s50, s50, s29"); a("s_add_u32 s50, s50, 16384")
    a("s_cmp_eq_u32 s54, 0"); a("s_cselect_b32 s52, 0x00010001, 0")
    a(f"v_bfe_u32 v{t[0]}, v0, 4, 1"); a(f"v_lshl_add_u32 v{t[0]}, v{vc}, 4, v{t[0]}"); a(f"v_mul_u32_u24 v{vEa}, {TSB}, v{t[0]}")
    a("s_cselect_b32 s59, -1, 0")
def p2_const(dozero=True, hooks=()):
    hooks = list(hooks)
    def hook():
        if hooks: hooks.pop(0)()
    t = [SC + k for k in range(6)]
    vlf = SC + 6; vkf = SC + 7; vc0 = SC + 8; vlc = SC + 10; FA = SC + 12
    a(f"v_cvt_f32_u32 v{vlf}, v{vc}")
    a(f"v_cvt_f32_u32 v{vkf}, v{vg}"); a(f"v_mul_f32 v{vkf}, 4.0, v{vkf}")
    a(f"v_cvt_f32_u32 v{vc0}, s3"); a(f"v_mul_f32 v{vc0}, {fl(1/128)}, v{vc0}")
    a(f"v_mul_f32 v{vlc}, v{vlf}, v{vc0}")
    a(f"v_fmamk_f32 v{vlc+1}, v{vlf}, {hx(f2u(1/256))}, v{vlc}")
    a(f"v_mul_f32 v{vlf}, {fl(1/16)}, v{vlf}")
    z = iter(range(32))
    def zero(n):
        if not dozero:
            if n == 1: a("s_nop 0")
            return
        for _ in range(n):
            k = next(z, None)
            if k is not None: a(f"v_mov_b32 v{WW+k}, 0")
    def mat(ang):
        a(f"v_cos_f32 v{t[3]}, v{ang}"); a(f"v_sin_f32 v{t[4]}, v{ang}")
    def matfin(Mr, Mm):
        a(f"v_cvt_pk_bf16_f32 v{Mr}, v{t[3]}, v{t[4]}")
        a(f"v_cvt_pk_bf16_f32 v{Mm}, -v{t[4]}, v{t[3]}")
        hook()
    hook(); hook()
    for i in range(4):
        if i: a(f"v_add_f32 v{vkf}, 1.0, v{vkf}")
        a(f"v_mul_f32 v{FA+i}, v{vkf}, v{vlf}")
        mat(FA + i); zero(1); matfin(Fr + i, Fm + i)
    for i in range(3, -1, -1):
        a(f"v_fma_f32 v{t[0]}, v{vkf}, v{vc0}, v{FA+i}")
        a(f"v_fmamk_f32 v{t[1]}, v{vkf}, {hx(f2u(1/256))}, v{t[0]}")
        mat(t[0]); a(f"v_add_f32 v{t[2]}, v{FA+i}, v{vlc}"); matfin(M2 + i, M2 + 4 + i)
        mat(t[1]); a(f"v_add_f32 v{t[5]}, v{FA+i}, v{vlc+1}"); matfin(M2 + 8 + i, M2 + 12 + i)
        mat(t[2]); a(f"v_subrev_f32 v{vkf}, 1.0, v{vkf}"); matfin(MT + i, MT + 4 + i)
        mat(t[5]); zero(1); matfin(MT + 8 + i, MT + 12 + i)
    zero(32)
    a(f"v_add_f32 v{vc0}, {fl(1/128)}, v{vc0}")
    a(f"v_mov_b32 v{SC+9}, v{vkf}")
    for i in range(4):
        a(f"v_add_f32 v{SC+9}, 1.0, v{SC+9}")
        a(f"v_fma_f32 v{FA+i}, v{SC+9}, v{vc0}, v{FA+i}")
    for i in range(4):
        a(f"v_cos_f32 v{SC+10}, v{FA+i}"); a(f"v_sin_f32 v{SC+11}, v{FA+i}"); a("s_nop 0")
        a(f"v_cvt_pk_bf16_f32 v{MX+i}, v{SC+10}, v{SC+11}")
        a(f"v_cvt_pk_bf16_f32 v{MX+4+i}, -v{SC+11}, v{SC+10}")
def wvoff(dst, t0, t1):
    a(f"v_mul_u32_u24 v{t0}, 43, v0"); a(f"v_lshrrev_b32 v{t0}, 7, v{t0}")
    a(f"v_mul_u32_u24 v{t1}, 3, v{t0}"); a(f"v_sub_u32 v{t1}, v0, v{t1}")
    a(f"v_mul_u32_u24 v{dst}, {16*8*1026}, v{t0}"); a(f"v_lshl_add_u32 v{dst}, v{t1}, 4, v{dst}")
def wdma_list(vreg, adds, arrs=(0, 1, 2, 3)):
    ccs = (0, 1)
    ops = []
    for add in adds:
        def head(add=add):
            a(f"s_add_u32 s6, s3, {add}")
            a(f"s_mul_i32 s4, s6, {2*8*1026}"); a("s_add_u32 s4, s4, s55"); a("s_and_b32 s4, s4, 0xfffffff0")
            a(f"s_add_u32 s5, s4, {8*1026}")
            a(f"s_mul_i32 s6, s6, {WR}")
        for arr in arrs:
            for cc in ccs:
                def op(arr=arr, cc=cc, head=head):
                    if arr == arrs[0] and cc == ccs[0]: head()
                    a("s_mov_b32 exec_hi, 0xffff")
                    a(f"s_add_u32 m0, s6, {L_W + 1536*arr + 768*cc}")
                    a(f"buffer_load_dwordx4 v{vreg}, {sr(32+4*arr,4)}, {'s4' if cc == 0 else 's5'} offen lds")
                    a("s_mov_b32 exec_hi, -1")
                ops.append(op)
    return ops
a(f"s_mov_b32 s56, {8*1026}")
a("s_cmp_ge_u32 s3, 4")
a("s_cbranch_scc1 L_h")
a("s_setprio 2")
V = VAlloc(6)
vb = V(); vo = V(); vkn = V(); vtr = V(); vpf = V(); vj = V(); vpw = V(4); t = [V() for _ in range(6)]
arr_srd()
a(f"v_and_b32 v{t[0]}, 7, v0"); a("s_lshl_b32 s30, s2, 3"); a(f"v_add_u32 v{t[0]}, s30, v{t[0]}")
a(f"v_bfe_i32 v{t[1]}, v0, 4, 1"); a(f"v_xor_b32 v{t[0]}, v{t[0]}, v{t[1]}"); a(f"v_sub_u32 v{t[0]}, v{t[0]}, v{t[1]}")
a(f"v_and_b32 v{t[0]}, 2047, v{t[0]}"); a(f"v_mul_u32_u24 v{t[2]}, 1026, v{t[0]}")
a(f"v_bfe_u32 v{t[1]}, v0, 3, 1"); a(f"v_lshl_add_u32 v{t[2]}, v{t[1]}, 10, v{t[2]}")
a(f"buffer_load_ushort v{vj}, v{t[2]}, s[12:15], 0 offen")
a("s_and_b32 s30, s2, 7"); a("s_lshl_b32 s31, s54, 6"); a("s_add_u32 s30, s30, s31"); a("s_mul_i32 s30, s30, 1026")
a(f"v_lshrrev_b32 v{t[0]}, 3, v0"); a(f"v_mul_u32_u24 v{t[2]}, {8*1026}, v{t[0]}")
a(f"v_and_b32 v{t[1]}, 7, v0"); a(f"v_lshl_add_u32 v{vpf}, v{t[1]}, 7, v{t[2]}")
vjunk = 1
def prefetch():
    a(f"buffer_load_ubyte v{vjunk}, v{vpf}, s[12:15], s30 offen{NTW}")
    a(f"buffer_load_ubyte v{vjunk}, v{vpt}, s[12:15], s30 offen offset:1024{NTW}")
NPF = 2
vpt = V()
a(f"v_and_b32 v{t[1]}, 1, v0"); a(f"v_lshl_add_u32 v{vpt}, v{t[1]}, 4, v{t[2]}")
if PFAT == 0: prefetch()
CC = V(8, 4); SS = V(8, 4); SN = V(8, 4); XR = V(8, 4); XI = V(8, 4)
BA = V(24, 4); BB = V(24, 4); TCh = V(8); TSh = V(8)
D1r = BA + 8; D1i = BB + 8; D2r = BA; D2i = BB
TC = lambda k: BA + k if k < 8 else TCh + k - 8
TS_ = lambda k: BB + k if k < 8 else TSh + k - 8
assert V.n <= 128, V.n
a(f"v_and_b32 v{t[0]}, 7, v0"); a(f"v_bfe_u32 v{t[1]}, v0, 3, 2")
a(f"v_lshl_or_b32 v{vkn}, v{t[0]}, 2, v{t[1]}")
a(f"v_cvt_f32_u32 v{vb}, v{vkn}"); a(f"v_cvt_f32_u32 v{vo}, v{vL5}")
a(f"v_mul_f32 v{vb}, {fl(1/32)}, v{vb}"); a(f"v_mul_f32 v{vo}, 4.0, v{vo}"); a(f"v_mul_f32 v{vo}, v{vb}, v{vo}")
for i in range(0, 16, 2):
    for e in range(2):
        kc = 8 * ((i + e) // 4) + (i + e) % 4
        if kc == 0: a(f"v_mov_b32 v{t[e]}, v{vo}")
        else: a(f"v_fmamk_f32 v{t[e]}, v{vb}, {hx(f2u(float(kc)))}, v{vo}")
    a(f"v_cos_f32 v{t[2]}, v{t[0]}"); a(f"v_cos_f32 v{t[3]}, v{t[1]}")
    a(f"v_sin_f32 v{t[4]}, v{t[0]}"); a(f"v_sin_f32 v{t[5]}, v{t[1]}")
    a(f"v_mul_f32 v{t[0]}, {fl(1/32)}, v{t[0]}"); a(f"v_mul_f32 v{t[1]}, {fl(1/32)}, v{t[1]}")
    a(f"v_cvt_pk_bf16_f32 v{CC+i//2}, v{t[2]}, v{t[3]}")
    a(f"v_cvt_pk_bf16_f32 v{SS+i//2}, v{t[4]}, v{t[5]}")
    a(f"v_cvt_pk_bf16_f32 v{SN+i//2}, -v{t[4]}, -v{t[5]}")
    a(f"v_cos_f32 v{TC(i)}, v{t[0]}"); a(f"v_cos_f32 v{TC(i+1)}, v{t[1]}")
    a(f"v_sin_f32 v{TS_(i)}, v{t[0]}"); a(f"v_sin_f32 v{TS_(i+1)}, v{t[1]}")
    if PFAT == i // 2 + 1: prefetch()
a(f"v_lshlrev_b32 v{vtr}, 8, v{vL5}")
a(f"v_bfe_u32 v{t[0]}, v0, 2, 2"); a(f"v_lshl_or_b32 v{vtr}, v{t[0]}, 6, v{vtr}")
a(f"v_bfe_u32 v{t[0]}, v0, 4, 1"); a(f"v_lshl_or_b32 v{vtr}, v{t[0]}, 5, v{vtr}")
a(f"v_and_b32 v{t[0]}, 3, v0"); a(f"v_lshl_or_b32 v{vtr}, v{t[0]}, 3, v{vtr}")
a(f"v_add_u32 v{vtr}, s24, v{vtr}")
a(f"v_and_b32 v{t[0]}, 7, v0"); a(f"v_bfe_u32 v{t[1]}, v0, 3, 2"); a(f"v_lshlrev_b32 v{t[1]}, 1, v{t[1]}")
a(f"v_xor_b32 v{t[0]}, v{t[0]}, v{t[1]}"); a(f"v_xor_b32 v{t[0]}, v{t[0]}, v{vL5}")
a(f"v_lshlrev_b32 v{t[0]}, 4, v{t[0]}")
a(f"v_lshl_or_b32 v{vpw}, v{vkn}, 7, v{t[0]}")
a(f"s_add_u32 s26, s24, {L_P}")
a(f"v_add_u32 v{vpw}, s26, v{vpw}")
for c in range(1, 4): a(f"v_xor_b32 v{vpw+c}, {32*c}, v{vpw}")
vet = vb
a(f"v_and_b32 v{t[0]}, 7, v0"); a(f"v_and_b32 v{t[1]}, 16, v0"); a(f"v_lshl_or_b32 v{t[0]}, v{t[0]}, 1, v{t[1]}")
a(f"v_bfe_u32 v{t[1]}, v0, 3, 1"); a(f"v_lshl_or_b32 v{t[0]}, v{t[1]}, 7, v{t[0]}")
a("s_lshl_b32 s30, s51, 5"); a(f"s_add_u32 s30, s30, {L_N}"); a(f"v_add_u32 v{vet}, s30, v{t[0]}")
ts(1)
a(f"s_waitcnt vmcnt({1 + (NPF if PFAT <= 8 else 0)})")
ts(2)
tags()
for h in range(2):
    for r, X in ((0, XR), (1, XI)):
        for tt in range(2):
            a(f"ds_read_b64_tr_b16 {vr(X+4*h+2*tt,2)}, v{vtr} offset:{r*2048+h*1024+tt*512}")
def cpass(R, I, Dr, Di, h, first):
    c0 = "0" if first else vr(Dr, 16); c1 = "0" if first else vr(Di, 16)
    a(f"{M32} {vr(Dr,16)}, {vr(R+4*h,4)}, {vr(CC+4*h,4)}, {c0}")
    a(f"{M32} {vr(Di,16)}, {vr(I+4*h,4)}, {vr(CC+4*h,4)}, {c1}")
    a(f"{M32} {vr(Dr,16)}, {vr(I+4*h,4)}, {vr(SS+4*h,4)}, {vr(Dr,16)}")
    a(f"{M32} {vr(Di,16)}, {vr(R+4*h,4)}, {vr(SN+4*h,4)}, {vr(Di,16)}")
a("s_waitcnt lgkmcnt(4)")
cpass(XR, XI, D1r, D1i, 0, True)
a("s_waitcnt lgkmcnt(0)")
cpass(XR, XI, D1r, D1i, 1, False)
def cp_list(R, I, Dr, Di, h, first):
    c0 = "0" if first else vr(Dr, 16); c1 = "0" if first else vr(Di, 16)
    return [f"{M32} {vr(Dr,16)}, {vr(R+4*h,4)}, {vr(CC+4*h,4)}, {c0}",
            f"{M32} {vr(Di,16)}, {vr(I+4*h,4)}, {vr(CC+4*h,4)}, {c1}",
            f"{M32} {vr(Dr,16)}, {vr(I+4*h,4)}, {vr(SS+4*h,4)}, {vr(Dr,16)}",
            f"{M32} {vr(Di,16)}, {vr(R+4*h,4)}, {vr(SN+4*h,4)}, {vr(Di,16)}"]
pend = []
for h in range(2):
    for i in range(8 * h, 8 * h + 8, 2):
        if pend: a(pend.pop(0))
        for e in range(2):
            k = i + e
            a(f"v_mul_f32 v{t[e]}, v{D1r+k}, v{TC(k)}")
            a(f"v_mul_f32 v{t[2+e]}, v{D1i+k}, v{TC(k)}")
            a(f"v_fmac_f32 v{t[e]}, v{D1i+k}, v{TS_(k)}")
            a(f"v_fma_f32 v{t[2+e]}, -v{D1r+k}, v{TS_(k)}, v{t[2+e]}")
        a(f"v_cvt_pk_bf16_f32 v{XR+i//2}, v{t[0]}, v{t[1]}")
        a(f"v_cvt_pk_bf16_f32 v{XI+i//2}, v{t[2]}, v{t[3]}")
    pend = cp_list(XR, XI, D2r, D2i, h, h == 0)
for m_ in pend: a(m_)
a(f"s_waitcnt vmcnt({NPF if PFAT <= 8 else 0})")
a(f"ds_write_b16 v{vet}, v{vj}")
PK = CC
for c in range(4):
    for e in range(4):
        a(f"v_cvt_pk_bf16_f32 v{PK+4*c+e}, v{D2r+4*c+e}, v{D2i+4*c+e}")
    a(f"ds_write_b128 v{vpw+c}, {vr(PK+4*c,4)}")
a("s_waitcnt lgkmcnt(0)")
ts(3)
a("s_barrier")
a("s_setprio 0")
p2_addr()
p2_item()
wvoff(vW, SC, SC + 1)
ts(4)
a("s_barrier")
ts(5)
EARLY = "early" in OPT
SPLIT = "split" in OPT
E1 = "e1" in OPT or "e2" in OPT
p2_const(hooks=wdma_list(vW, [0] if E1 else [0, 4], (2, 3) if SPLIT else (2, 3, 0, 1)))
ts(6)
a("s_branch L_p2")
a.label("L_h")
a.hist = []
V = VAlloc(6)
t = [V() for _ in range(8)]
XN = V(16, 4); GW = V(8, 4)
srd(8, 92, 2048)
a(f"buffer_load_dwordx4 {vr(GW,4)}, v{vl16}, s[8:11], 0 offen")
a(f"buffer_load_dwordx4 {vr(GW+4,4)}, v{vl16}, s[8:11], 0 offen offset:1024")
if "e2" in OPT:
    wvoff(XN, t[0], t[1])
    for op in wdma_list(XN, [0]): op()
def tpre():
    a(f"v_lshlrev_b32 v{t[0]}, 7, v0")
    a(f"s_mul_i32 s30, s2, {TSB}"); a("s_lshl_b32 s31, s51, 12"); a("s_add_u32 s30, s30, s31")
    a("s_mov_b32 exec_hi, 0")
    a(f"buffer_load_ubyte v1, v{t[0]}, s[16:19], s30 offen")
    a("s_mov_b32 exec_hi, -1")
if "tp0" in OPT: tpre()
def prewrite():
    if "pw" in OPT or "pws" in OPT:
        a(f"v_lshlrev_b32 v{t[0]}, 7, v0")
        a("s_lshl_b32 s30, s53, 15"); a("s_lshl_b32 s31, s51, 13"); a("s_add_u32 s30, s30, s31"); a(f"s_add_u32 s30, s30, {hx(S_OFF)}")
    if "pw" in OPT or "pwt" in OPT:
        a(f"v_and_b32 v{t[1]}, 3, v0"); a(f"v_lshlrev_b32 v{t[1]}, 7, v{t[1]}"); a(f"v_bfe_u32 v{t[2]}, v0, 2, 3"); a(f"v_lshl_or_b32 v{t[1]}, v{t[2]}, 11, v{t[1]}")
        a(f"s_mul_i32 s31, s2, {TSB}"); a("s_lshl_b32 s29, s51, 9"); a("s_add_u32 s31, s31, s29")
        a("s_mov_b32 exec_hi, 0")
        a(f"buffer_store_dword v{t[1]}, v{t[1]}, s[16:19], s31 offen sc1")
        a("s_mov_b32 exec_hi, -1")
    if "pw" in OPT or "pws" in OPT:
        a(f"buffer_store_dword v{t[0]}, v{t[0]}, s[16:19], s30 offen sc1")
NPW = 2 if "pw" in OPT else (1 if ("pws" in OPT or "pwt" in OPT) else 0)
if "pwl" not in OPT: prewrite()
vnat = V(); a(f"v_add_u32 v{vnat}, s24, v{vl16}")
MA = V(4, 4)
DMB = V(48, 4)
vu = DMB; vA = DMB + 1; vB1 = DMB + 2; vB2 = DMB + 3; vsg = DMB + 4
a(f"v_mov_b32 v{t[3]}, {L_C}"); a(f"v_mov_b32 v{t[4]}, 0")
a(f"ds_write_b32 v{t[3]}, v{t[4]}")
a(f"v_bfe_u32 v{t[0]}, v0, 3, 1"); a(f"v_bfe_u32 v{t[1]}, v0, 1, 1")
a(f"v_lshl_or_b32 v{t[0]}, v{t[0]}, 1, v{t[1]}")
a(f"v_and_or_b32 v{vu}, v0, 4, v{t[0]}")
a(f"v_cvt_f32_u32 v{vu}, v{vu}")
a(f"v_cvt_f32_u32 v{vsg}, v{vL5}")
a(f"v_fma_f32 v{vsg}, v{vsg}, -2.0, 1.0")
a(f"v_mul_f32 v{vA}, v{vu}, v{vsg}")
a(f"v_mul_f32 v{vA}, {fl(0.125)}, v{vA}")
a(f"v_and_b32 v{t[0]}, 1, v0"); a(f"v_cvt_f32_u32 v{t[0]}, v{t[0]}")
a(f"v_mul_f32 v{vB1}, v{t[0]}, v{vsg}"); a(f"v_mul_f32 v{vB1}, {fl(0.25)}, v{vB1}")
a(f"v_cvt_f32_u32 v{t[1]}, s2"); a(f"v_mul_f32 v{t[1]}, {fl(1/256)}, v{t[1]}")
a(f"v_fmac_f32 v{vB1}, v{t[1]}, v{vA}")
a(f"v_add_f32 v{vB2}, {fl(0.25)}, v{vB1}")
for pp in range(4):
    if pp == 0: a(f"v_mov_b32 v{t[0]}, v{vB1}")
    else: a(f"v_fmamk_f32 v{t[0]}, v{vA}, {hx(f2u(2.0*pp))}, v{vB1}")
    a(f"v_fmamk_f32 v{t[1]}, v{vA}, {hx(f2u(2.0*pp+1))}, v{vB2}")
    a(f"v_cos_f32 v{t[2]}, v{t[0]}"); a(f"v_cos_f32 v{t[3]}, v{t[1]}")
    a(f"v_sin_f32 v{t[4]}, v{t[0]}"); a(f"v_sin_f32 v{t[5]}, v{t[1]}")
    a(f"v_add_f32 v{t[2]}, v{t[2]}, v{t[3]}")
    a(f"v_add_f32 v{t[4]}, v{t[4]}, v{t[5]}")
    a(f"v_cvt_pk_bf16_f32 v{MA+pp}, v{t[2]}, v{t[4]}")
vmr = V(5); vk = DMB + 5; vneg = DMB + 6
a("s_lshl_b32 s30, s51, 7")
a(f"v_lshlrev_b32 v{t[0]}, 2, v{vn}")
a(f"v_sub_u32 v{vneg}, 0, v{vL5}")
for q in range(5):
    if q < 4: a(f"v_add3_u32 v{vk}, v{t[0]}, s30, {q}")
    else: a(f"v_add_u32 v{vk}, 512, v{t[0]}")
    a(f"v_xor_b32 v{vk}, v{vk}, v{vneg}"); a(f"v_add_u32 v{vk}, v{vk}, v{vL5}")
    a(f"v_bfe_u32 v{t[1]}, v{vk}, 5, 5")
    a(f"v_bfe_u32 v{t[2]}, v{vk}, 7, 3")
    a(f"v_xor_b32 v{t[3]}, v{vk}, v{t[1]}")
    a(f"v_and_b32 v{t[3]}, 3, v{t[3]}")
    a(f"v_bfe_u32 v{t[4]}, v{vk}, 4, 1")
    a(f"v_lshl_or_b32 v{t[3]}, v{t[3]}, 1, v{t[4]}")
    a(f"v_xor_b32 v{t[3]}, v{t[3]}, v{t[2]}")
    a(f"v_and_b32 v{t[4]}, 12, v{vk}")
    a(f"v_lshl_or_b32 v{t[4]}, v{t[3]}, 4, v{t[4]}")
    a(f"v_lshl_or_b32 v{vmr+q}, v{t[1]}, 7, v{t[4]}")
vts = V(); veo = V(); vet2 = V(); vsig = V(); ves = V()
a(f"v_lshlrev_b32 v{t[0]}, 13, v{vL5}"); a(f"v_lshl_or_b32 v{vts}, v{vn}, 4, v{t[0]}")
EV = V(10, 2)
a(f"v_and_b32 v{t[0]}, 7, v0"); a(f"v_bfe_u32 v{t[1]}, v0, 3, 1")
a(f"v_lshlrev_b32 v{t[2]}, 3, v{t[1]}"); a(f"v_lshl_or_b32 v{ves}, v{t[0]}, 4, v{t[2]}")
a(f"v_and_b32 v{t[2]}, 3, v0"); a(f"v_cmp_eq_u32 vcc, 0, v{t[2]}")
a(f"v_lshrrev_b32 v{t[3]}, 2, v{t[0]}")
a(f"v_cvt_f32_u32 v{t[4]}, v{t[1]}"); a(f"v_fma_f32 v{t[4]}, v{t[4]}, -2.0, 1.0")
a(f"v_cndmask_b32 v{t[3]}, v{t[3]}, v{t[1]}, vcc")
a(f"v_cndmask_b32 v{vsig}, 0, v{t[4]}, vcc")
a(f"v_lshlrev_b32 v{t[0]}, 1, v{t[0]}"); a(f"v_lshl_or_b32 v{t[0]}, v{t[1]}, 6, v{t[0]}"); a(f"v_lshl_or_b32 v{t[0]}, v{t[3]}, 7, v{t[0]}")
a(f"v_add_u32 v{veo}, {L_N}, v{t[0]}"); a(f"v_xor_b32 v{vet2}, 64, v{veo}")
for k in range(8): a(f"v_mov_b32 v{EV+k}, 0")
a(f"s_mul_i32 s8, s2, {TSB}")
a("s_lshl_b32 s9, s51, 9"); a("s_add_u32 s9, s9, s8"); a("s_add_u32 s10, s9, 4096")
a("s_add_u32 s8, s8, 16384")
a("s_mov_b32 s11, 0xffff0000")
acc = V(4, 4); MB4 = V(4, 4); ones = V(); MB = XN
a(f"v_mov_b32 v{ones}, 0x3f803f80")
a(f"v_mov_b32 v{acc}, 0"); a(f"v_mov_b32 v{acc+2}, 0")
sys.stderr.write(f"helper regs {V.n}\n")
assert V.n <= 128, V.n
a("s_waitcnt lgkmcnt(0)")
if "pwl" in OPT: prewrite()
ts(1)
a(f"s_waitcnt vmcnt({10 if 'e2' in OPT else (3 if 'tp0' in OPT else 2)}) lgkmcnt(0)")
tags()
a("s_cmp_eq_u32 s51, 1")
if "nopw" not in OPT:
    a("s_cselect_b32 exec_lo, -1, 0"); a("s_cselect_b32 exec_hi, -1, 0")
    for k in range(4): a(f"v_mov_b32 v{DMB+k}, s49")
    a(f"buffer_store_dwordx4 {vr(DMB,4)}, v{vl16}, s[16:19], s57 offen sc1")
a("s_mov_b64 exec, -1")
def ecompute():
    a(f"v_add_f32 v{EV+8}, v{EV}, v{EV+1}"); a(f"v_sub_f32 v{EV+9}, v{EV+2}, v{EV+3}")
    a(f"v_add_f32 v{EV+4}, v{EV+4}, v{EV+5}"); a(f"v_sub_f32 v{EV+6}, v{EV+6}, v{EV+7}")
    a(f"v_fma_f32 v{EV+8}, -v{vsig}, v{EV+6}, v{EV+8}"); a(f"v_fmac_f32 v{EV+9}, v{vsig}, v{EV+4}")
    a("s_cmp_eq_u32 s51, 1"); a("s_cselect_b32 exec_lo, 0xffff, 0"); a("s_mov_b32 exec_hi, 0")
    a(f"buffer_store_dwordx2 {vr(EV+8,2)}, v{ves}, s[16:19], s8 offen sc1")
    a("s_mov_b64 exec, -1")
def gate_main():
    for j in range(8):
        a(f"v_lshlrev_b32 v{t[6]}, 16, v{GW+j}")
        a(f"v_and_b32 v{t[7]}, s11, v{GW+j}")
        for r in range(2):
            a(f"v_lshlrev_b32 v{t[2*r]}, 16, v{XN+8*r+j}")
            a(f"v_and_b32 v{t[2*r+1]}, s11, v{XN+8*r+j}")
        for r in range(2):
            a(f"v_mul_f32 v{t[2*r]}, v{t[2*r]}, v{t[6]}")
            a(f"v_mul_f32 v{t[2*r+1]}, v{t[2*r+1]}, v{t[7]}")
        for r in range(2): a(f"v_cvt_pk_bf16_f32 v{t[4+r]}, v{t[2*r]}, v{t[2*r+1]}")
        for r in range(2): a(f"v_dot2_f32_bf16 v{acc+2*r}, v{t[4+r]}, v{ones}, v{acc+2*r}")
if "e1" in OPT:
    wvoff(DMB + 8, t[0], t[1])
    for op in wdma_list(DMB + 8, [0]): op()
ts(3)
a("s_setprio 2")
a("s_barrier")
ts(4)
o = L_P // 256
a(f"ds_read2st64_b32 {vr(MB4,2)}, v{vmr+4} offset0:{o} offset1:{o+16}")
a(f"ds_read2st64_b32 {vr(MB4+2,2)}, v{vmr+4} offset0:{o+32} offset1:{o+48}")
for q in range(4):
    a(f"ds_read2st64_b32 {vr(MB+4*q,2)}, v{vmr+q} offset0:{o} offset1:{o+16}")
    a(f"ds_read2st64_b32 {vr(MB+4*q+2,2)}, v{vmr+q} offset0:{o+32} offset1:{o+48}")
for k in range(4):
    a(f"ds_read_u16_d16_hi v{EV+k}, v{veo} offset:{16*k}")
    a(f"ds_read_u16_d16_hi v{EV+4+k}, v{vet2} offset:{16*k}")
DN = DMB; DM = [DMB + 8 + 8 * q for q in range(4)]
a("s_waitcnt lgkmcnt(15)")
a(f"{M32} {vr(DN,16)}, {vr(MA,4)}, {vr(MB4,4)}, 0")
for q in range(4):
    a(f"s_waitcnt lgkmcnt({14-2*q})")
    a(f"{M32} {vr(DM[q],16)}, {vr(MA,4)}, {vr(MB+4*q,4)}, 0")
a("s_waitcnt lgkmcnt(0)")
ecompute()
a("s_cmp_eq_u32 s51, 0"); a("s_cselect_b32 exec_lo, 1, 0"); a("s_cselect_b32 exec_hi, 1, 0")
a(f"v_sub_f32 v{DM[0]}, v{DM[0]}, v{DN+1}"); a(f"v_add_f32 v{DM[0]+1}, v{DM[0]+1}, v{DN}")
a("s_mov_b32 exec_lo, 0")
for k in range(2, 8): a(f"v_mov_b32 v{DM[0]+k}, v{DN+k}")
a("s_mov_b64 exec, -1")
OUT = MB
for s_ in range(4):
    for q in range(4):
        a(f"v_cvt_pk_bf16_f32 v{OUT+4*s_+q}, v{DM[q]+2*s_}, v{DM[q]+2*s_+1}")
    a(f"buffer_store_dwordx4 {vr(OUT+4*s_,4)}, v{vts}, s[16:19], {'s9' if s_ < 2 else 's10'} offen offset:{(s_&1)*2048} sc1")
for r in range(2):
    for q in range(2):
        a(f"ds_read_b128 {vr(XN+8*r+4*q,4)}, v{vnat} offset:{r*2048+q*1024}")
a("s_waitcnt lgkmcnt(0)")
a("s_barrier")
ts(5)
a("s_waitcnt vmcnt(4)")
gate_main()
for dpp in ("row_shr:1", "row_shr:2", "row_shr:4", "row_shr:8"):
    for r in range(2):
        a(f"v_add_f32_dpp v{acc+2*r}, v{acc+2*r}, v{acc+2*r} {dpp} row_mask:0xf bank_mask:0xf bound_ctrl:0")
for dpp, rm in (("row_bcast:15", "0xa"), ("row_bcast:31", "0xc")):
    for r in range(2):
        a(f"v_add_f32_dpp v{acc+2*r}, v{acc+2*r}, v{acc+2*r} {dpp} row_mask:{rm} bank_mask:0xf")
a(f"v_cvt_pk_bf16_f32 v{t[0]}, v{acc}, v{acc+2}")
a(f"v_lshlrev_b32 v{t[1]}, 16, v{t[0]}")
a(f"v_and_b32 v{t[2]}, s11, v{t[0]}")
for r in range(2): a(f"v_mul_f32 v{t[1+r]}, {hx(f2u(-1.4426950408889634))}, v{t[1+r]}")
for r in range(2): a(f"v_exp_f32 v{t[1+r]}, v{t[1+r]}")
for r in range(2): a(f"v_add_f32 v{t[1+r]}, 1.0, v{t[1+r]}")
for r in range(2): a(f"v_rcp_f32 v{t[1+r]}, v{t[1+r]}")
a(f"v_cvt_pk_bf16_f32 v{t[0]}, v{t[1]}, v{t[2]}")
a(f"v_lshlrev_b32 v{acc}, 16, v{t[0]}")
a(f"v_and_b32 v{acc+2}, s11, v{t[0]}")
a(f"v_sub_f32 v{t[1]}, 1.0, v{acc}")
a(f"v_sub_f32 v{t[2]}, 1.0, v{acc+2}")
a(f"v_cvt_pk_bf16_f32 v{t[0]}, v{t[1]}, v{t[2]}")
a(f"v_lshlrev_b32 v{acc+1}, 16, v{t[0]}")
a(f"v_and_b32 v{acc+3}, s11, v{t[0]}")
for r in range(4): a(f"v_mul_f32 v{acc+r}, {hx(f2u(2.0**-22))}, v{acc+r}")
a("s_lshl_b32 s30, s51, 4"); a(f"s_add_u32 s30, s30, {L_G}")
a(f"v_mov_b32 v{t[3]}, s30")
a("s_mov_b32 exec_lo, 0"); a("s_mov_b32 exec_hi, 0x80000000")
a(f"ds_write_b128 v{t[3]}, {vr(acc,4)}")
a("s_mov_b64 exec, -1")
a(f"v_mov_b32 v{t[3]}, {L_C}"); a(f"v_mov_b32 v{t[4]}, 1")
for k in range(4): a(f"v_mov_b32 v{DMB+k}, s48")
a("s_mov_b64 exec, 1")
a("s_waitcnt vmcnt(0)")
a(f"ds_add_rtn_u32 v{t[5]}, v{t[3]}, v{t[4]}")
a("s_waitcnt lgkmcnt(0)")
a(f"v_readfirstlane_b32 s30, v{t[5]}")
a("s_cmp_eq_u32 s30, 3"); a("s_cselect_b32 exec_lo, -1, 0"); a("s_cselect_b32 exec_hi, -1, 0")
a(f"buffer_store_dwordx4 {vr(DMB,4)}, v{vl16}, s[16:19], s57 offen {FSF}")
a("s_mov_b64 exec, -1")
def stouch(vt):
    a(f"v_lshlrev_b32 v{vt}, 7, v0")
    a(f"s_mul_i32 s30, s2, {TSB}"); a("s_lshl_b32 s31, s51, 12"); a("s_add_u32 s30, s30, s31"); a(f"s_add_u32 s30, s30, {hx(U_OFF)}")
    a("s_mov_b32 exec_hi, 0")
    a(f"buffer_load_ubyte v1, v{vt}, s[16:19], s30 offen")
    a("s_mov_b32 exec_hi, -1")
if "pt1" in OPT: stouch(t[0])
a("s_setprio 0")
ts(6)
p2_addr(); p2_item(); wvoff(vW, SC, SC + 1); p2_const()
if optint("pa", 0): a(f"s_sleep {optint('pa', 0)}")
a.label("L_p2")
a.hist = []
t = [SC + k for k in range(6)]
if "pt7" in OPT:
    a("s_and_b32 s30, s54, 1"); a("s_cmp_eq_u32 s30, 0"); a("s_cselect_b32 s30, s24, s26"); a(f"s_add_u32 s30, s30, {hx(U_OFF)}")
    a("s_mov_b32 exec_lo, 0x11111111"); a("s_mov_b32 exec_hi, 0x11111111")
    a(f"buffer_load_ubyte v1, v{vT}, s[16:19], s30 offen")
    a("s_mov_b64 exec, -1")
GW_ = "now" in OPT
if GW_: a("s_waitcnt vmcnt(0)")
if "noga" not in OPT: a("s_barrier")
ts(7)
if "pw3" in OPT:
    a(f"v_lshrrev_b32 v{TB}, 2, v0"); a(f"v_and_b32 v{TB+1}, 3, v0"); a(f"v_lshlrev_b32 v{TB+1}, 6, v{TB+1}"); a(f"v_lshl_or_b32 v{TB+2}, v{TB}, 11, v{TB+1}")
    a(f"buffer_store_dword v{TB+2}, v{TB+2}, s[16:19], s30 offen sc1")
poll("L_poll1", vF, TB, "s8", "s48")
def f2pre():
    if "nopw" in OPT: return
    a(f"v_mov_b32 v{TB}, s48"); a(f"v_lshlrev_b32 v{TB+1}, 2, v0")
    a("s_mov_b32 exec_hi, 0")
    a(f"buffer_store_dword v{TB}, v{TB+1}, s[16:19], s9 offen sc1")
    a("s_mov_b32 exec_hi, -1")
ts(8)
if "st2" in OPT: a("s_add_u32 s70, s60, s58")
a.label("L_p2c")
a("s_setprio 1")
a("s_mov_b32 m0, s27")
a(f"buffer_load_dwordx4 v{vT}, s[16:19], s24 offen {TLF} lds")
a("s_add_u32 m0, s27, 1024")
a(f"buffer_load_dwordx4 v{vT}, s[16:19], s26 offen {TLF} lds")
PW2 = "pw2" in OPT or "pw3" in OPT
def pw2():
    a(f"v_lshrrev_b32 v{TB}, 2, v0"); a(f"v_and_b32 v{TB+1}, 3, v0"); a(f"v_lshlrev_b32 v{TB+1}, 6, v{TB+1}"); a(f"v_lshl_or_b32 v{TB}, v{TB}, 11, v{TB+1}")
    if "pwh" in OPT: a("s_mov_b32 exec_lo, 0x55555555"); a("s_mov_b32 exec_hi, 0x55555555")
    a(f"buffer_store_dword v{TB}, v{TB}, s[16:19], s30 offen sc1")
    if "pwh" in OPT: a("s_mov_b64 exec, -1")
if "pw2" in OPT: pw2()
if SPLIT:
    for op in wdma_list(vW, [0], (0, 1)): op()
def wread(ab):
    a("s_not_b32 exec_lo, s52"); a("s_not_b32 exec_hi, s52")
    for arr, cc in ((2*ab, 0), (2*ab+1, 0), (2*ab, 1), (2*ab+1, 1)):
        for i in range(4):
            a(f"ds_read_u16_d16_hi v{Wi(arr,cc,i)}, v{vWr} offset:{1536*arr+768*cc+48*i}")
    a("s_mov_b64 exec, -1")
if UO:
    srd(12, 94, 2048 * 2048)
    a(f"v_lshlrev_b32 v{vF}, 2, v{vc}"); a(f"v_lshl_or_b32 v{vF}, v{vg}, 17, v{vF}")
    a("s_and_b32 s31, s2, 7"); a("s_lshl_b32 s31, s31, 19"); a("s_lshl_b32 s30, s3, 12"); a("s_add_u32 s31, s31, s30"); a("s_lshl_b32 s30, s54, 6"); a("s_add_u32 s31, s31, s30")
if not GW_: a("s_barrier")
if "ptw" in OPT:
    a(f"v_lshrrev_b32 v{TB}, 1, v0"); a(f"v_and_b32 v{TB+1}, 1, v0"); a(f"v_lshlrev_b32 v{TB+1}, 7, v{TB+1}"); a(f"v_lshl_or_b32 v{TB}, v{TB}, 11, v{TB+1}")
    a("s_mov_b32 exec_hi, 0")
    a(f"buffer_load_ubyte v1, v{TB}, s[16:19], s30 offen")
    a("s_mov_b32 exec_hi, -1")
wread(1)
if not SPLIT: wread(0)
PKD = SC + 8
a(f"s_waitcnt vmcnt({4 if SPLIT else (1 if ('pw2' in OPT or 'ptw' in OPT) else 0)})")
if ST: a("s_waitcnt lgkmcnt(0)")
ts(9)
def pt9():
    a("s_and_b32 s30, s54, 1"); a("s_cmp_eq_u32 s30, 0"); a("s_cselect_b32 s30, s24, s26"); a(f"s_add_u32 s30, s30, {hx(U_OFF)}")
    a("s_mov_b32 exec_lo, 0x11111111"); a("s_mov_b32 exec_hi, 0x11111111")
    a(f"buffer_load_ubyte v1, v{vT}, s[16:19], s30 offen")
    a("s_mov_b64 exec, -1")
a("s_lshl_b32 s25, s3, 9"); a(f"s_add_u32 s25, s25, {L_E}"); a("s_mov_b32 m0, s25")
a("s_mov_b32 exec_lo, s59"); a("s_mov_b32 exec_hi, 0")
a(f"buffer_load_dwordx4 v{vEa}, s[16:19], s50 offen sc1 lds")
a("s_mov_b64 exec, -1")
a(f"ds_read2_b32 {vr(TB,2)}, v{vTr} offset0:0 offset1:16")
a(f"ds_read2_b32 {vr(TB+2,2)}, v{vTr} offset0:32 offset1:48")
a(f"v_add_u32 v{vTr}, 1024, v{vTr}")
a(f"ds_read2_b32 {vr(TB+4,2)}, v{vTr} offset0:0 offset1:16")
a(f"ds_read2_b32 {vr(TB+6,2)}, v{vTr} offset0:32 offset1:48")
a.label("L_p2e")
for bb in range(2):
    a(f"s_waitcnt lgkmcnt({2-2*bb})")
    a(f"{M16} {vr(D+8*bb,4)}, {vr(Fr,4)}, {vr(TB+4*bb,4)}, 0")
    a(f"{M16} {vr(D+8*bb+4,4)}, {vr(Fm,4)}, {vr(TB+4*bb,4)}, 0")
for ip in range(2):
    for cc in range(2):
        for bb in range(2):
            i = 2 * ip + cc
            a(f"v_cvt_pk_bf16_f32 v{PKD+4*ip+2*cc+bb}, v{D+8*bb+i}, v{D+8*bb+4+i}")
    a(f"ds_write_b128 v{vw1}, {vr(PKD+4*ip,4)} offset:{ip*256}")
a("s_waitcnt lgkmcnt(0)")
f2pre()
if "st3" in OPT: ts(1)
a("s_barrier")
if "st3" in OPT: ts(2)
OB = TB
for cc in range(2):
    for h in range(2):
        a(f"ds_read_b64 {vr(OB+4*cc+2*h,2)}, v{vr1} offset:{h*2048+cc*8}")
X = D
for cc in range(2):
    a(f"s_waitcnt lgkmcnt({2-2*cc})")
    a(f"{M16} {vr(X+8*cc,4)}, {vr(M2+8*cc,4)}, {vr(OB+4*cc,4)}, 0")
    a(f"{M16} {vr(X+8*cc+4,4)}, {vr(M2+8*cc+4,4)}, {vr(OB+4*cc,4)}, 0")
YO = [PKD, PKD + 4, PKD, PKD + 4]
tpr = [(vT, vTr), (vr1, vw1)]
def dpt(cc, ab, ri): return WW + 16 * cc + 8 * ab + 4 * ri
def wmul(cc, ab):
    n = 2 * cc + ab
    xr = X + 8 * cc; xi = X + 8 * cc + 4
    for i in range(4):
        wr = Wi(2 * ab, cc, i); wi = Wi(2 * ab + 1, cc, i)
        y0, y1 = tpr[i & 1]
        a(f"v_mul_f32 v{y0}, v{xr+i}, v{wr}")
        a(f"v_mul_f32 v{y1}, v{xi+i}, v{wr}")
        a(f"v_fma_f32 v{y0}, -v{xi+i}, v{wi}, v{y0}")
        a(f"v_fmac_f32 v{y1}, v{xr+i}, v{wi}")
        a(f"v_cvt_pk_bf16_f32 v{YO[n]+i}, v{y1}, v{y0}")
    a(f"{M16} {vr(dpt(cc,ab,0),4)}, {vr(MT+8*cc,4)}, {vr(YO[n],4)}, 0")
    a(f"{M16} {vr(dpt(cc,ab,1),4)}, {vr(MT+8*cc+4,4)}, {vr(YO[n],4)}, 0")
XP2 = X
def x2_write(ab, dst):
    for ip in range(2):
        for cc in range(2):
            for bb in range(2):
                i = 2 * ip + bb
                a(f"v_cvt_pk_bf16_f32 v{dst+4*ip+2*bb+cc}, v{dpt(cc,ab,0)+i}, v{dpt(cc,ab,1)+i}")
        a(f"ds_write_b128 v{vw2}, {vr(dst+4*ip,4)} offset:{3072*ab+ip*256}")
def x2_read(ab, dst):
    for bb in range(2):
        for h in range(2):
            a(f"ds_read_b64 {vr(dst+4*bb+2*h,2)}, v{vr2} offset:{WR*h+3072*ab+bb*8}")
def last_mfma(src, out):
    a(f"{M16} {vr(out,4)}, {vr(Fr,4)}, {vr(src,4)}, 0")
    a(f"{M16} {vr(out+4,4)}, {vr(Fm,4)}, {vr(src,4)}, 0")
def s_store(ab, bb, out):
    for i in range(4):
        a(f"v_cvt_pk_bf16_f32 v{out+i}, v{out+4+i}, v{out+i}")
        if UO and ab:
            a(f"s_add_u32 s30, s31, {hx(16*i*2048)}")
            a(f"buffer_store_dword v{out+i}, v{vF}, s[12:15], s30 offen offset:{bb*2048} {SSF}")
            continue
        a(f"s_add_u32 s30, s24, {hx((16*i+bb)*TSB + ab*U_OFF)}")
        a(f"buffer_store_dword v{out+i}, v{vS}, s[16:19], s30 offen {SSF}")
B1 = WW + 8; B2 = WW + 24
YO = [PKD, PKD, PKD + 4, PKD + 4]
def tail():
    x2_write(1, PKD)
    if SPLIT:
        a(f"s_waitcnt vmcnt({0 if 'nopw' in OPT else 1})")
        wread(0)
    a("s_waitcnt lgkmcnt(0)")
    if "st3" in OPT: ts(3)
    a("s_barrier")
    if "st3" in OPT: ts(4)
a("s_cmp_lg_u32 s54, 0")
a("s_cbranch_scc0 L_el")
a.label("L_elb")
wmul(0, 1); wmul(1, 1)
tail()
a.label("L_spb")
x2_read(1, B2)
if "t1" not in OPT:
    a("s_waitcnt lgkmcnt(2)")
    last_mfma(B2, B1)
    a("s_waitcnt lgkmcnt(0)")
    last_mfma(B2 + 4, M2)
    wmul(0, 0)
    s_store(1, 0, B1)
    wmul(1, 0)
    s_store(1, 1, M2)
    x2_write(0, D)
else:
    wmul(0, 0)
    a("s_waitcnt lgkmcnt(0)")
    last_mfma(B2, B1)
    last_mfma(B2 + 4, M2)
    wmul(1, 0)
    s_store(1, 0, B1)
    x2_write(0, D)
    s_store(1, 1, M2)
a("s_waitcnt lgkmcnt(0)")
if "st3" in OPT: ts(5)
a("s_barrier")
if "st3" in OPT: ts(6)
x2_read(0, B2)
a("s_waitcnt lgkmcnt(2)")
last_mfma(B2, MT)
a("s_waitcnt lgkmcnt(0)")
last_mfma(B2 + 4, MT + 8)
s_store(0, 0, MT)
s_store(0, 1, MT + 8)
X4 = False
ts(10)
if "swb" in OPT:
    a("s_waitcnt vmcnt(0)")
    a("buffer_wbl2 sc1")
amx_post(t[0])
LATE = optint("late", 1)
a("s_mov_b32 s27, s9")
if LATE == 0:
    setflag(t[0], "s27", "s49")
    if "st2" in OPT: ts(1)
a("s_setprio 0")
V = VAlloc(8)
vg_ = vg; vc_ = vc
t = [V() for _ in range(6)]
vS3 = 1; vN = 2; vF3 = 7; AP8 = V(); AMx = V()
MR = V(16, 4); MI = V(16, 4); X = V(16, 4)
BA = V(24, 4); BB = V(24, 4); TCh = V(8); TSh = V(8)
assert V.n <= 128, V.n
D1r = BA + 8; D1i = BB + 8; D2r = BA; D2i = BB
SBt = [D1r, D1r + 4, D1r + 8, D1r + 12, X]
DDt = [D1i, D1i + 4, D1i + 8, D1i + 12, X + 4]
MA = X + 8; AP = X + 12; AM = [X + 13, X + 14, X + 15, AMx]
CS = D1r; GG = D1i
a(f"v_bfe_u32 v{t[0]}, v0, 2, 2"); a(f"v_lshlrev_b32 v{t[1]}, 4, v{t[0]}")
a(f"v_add_u32 v{t[1]}, {L_G}, v{t[1]}")
a(f"ds_read_b128 {vr(GG,4)}, v{t[1]}")
if X4:
    a(f"v_and_b32 v{t[1]}, 1, v0"); a(f"v_lshlrev_b32 v{t[1]}, 3, v{t[1]}")
    a(f"v_lshl_or_b32 v{t[1]}, v{t[0]}, 4, v{t[1]}")
    a(f"v_bfe_u32 v{t[2]}, v0, 1, 1"); a(f"v_lshl_or_b32 v{t[1]}, v{t[2]}, 6, v{t[1]}")
else:
    a(f"v_lshlrev_b32 v{t[1]}, 2, v{vc_}")
SD = "sd" in OPT
RS = 2080
if SD:
    a(f"v_mul_u32_u24 v{vS3}, {2*RS}, v{vg_}"); a(f"v_add_u32 v{vS3}, v{vS3}, v{t[1]}")
    a(f"v_lshlrev_b32 v{vN}, 4, v0")
else:
    a(f"v_lshl_or_b32 v{vS3}, v{vg_}, 12, v{t[1]}")
    a(f"v_lshl_or_b32 v{vN}, v{vg_}, 20, v{t[1]}")
a("s_xor_b32 s50, s3, 4")
a(f"s_mul_i32 s8, s2, {TSB}")
if SD:
    a("s_lshl_b32 s11, s50, 6"); a(f"s_add_u32 s11, s11, {L_W}"); a(f"v_add_u32 v{vS3}, s11, v{vS3}"); a(f"v_add_u32 v{AP8}, {RS}, v{vS3}")
    a("s_lshl_b32 s11, s3, 11"); a("s_add_u32 s8, s8, s11"); a(f"s_add_u32 s10, s8, {hx(U_OFF)}")
    a(f"s_mul_i32 s9, s3, {RS}"); a(f"s_add_u32 s9, s9, {L_W}")
else:
    a("s_lshl_b32 s11, s50, 6"); a("s_add_u32 s8, s8, s11"); a(f"s_add_u32 s10, s8, {hx(U_OFF)}")
    if UO:
        a("s_lshl_b32 s10, s2, 11"); a("s_add_u32 s10, s10, s11"); a("s_add_u32 s9, s10, 0x80000")
if SD:
    a("s_lshl_b32 s11, s3, 5"); a(f"v_add_u32 v{t[1]}, s11, v{vn}")
else:
    a(f"v_bfe_u32 v{t[1]}, v0, 2, 3"); a(f"v_and_b32 v{t[2]}, 3, v0"); a(f"v_lshlrev_b32 v{t[2]}, 3, v{t[2]}")
    a(f"v_lshl_add_u32 v{t[1]}, v{t[1]}, 5, v{t[2]}"); a(f"v_add_u32 v{t[1]}, s50, v{t[1]}")
a("s_cmp_eq_u32 s50, 0"); a("s_cselect_b32 s24, 0x00010001, 0")
a(f"v_lshlrev_b32 v{vF3}, 10, v{t[1]}")
a("s_bfe_u32 s11, s2, 0x30001"); a("s_lshl_b32 s11, s11, 7"); a(f"s_add_u32 s11, s11, {hx(F2_OFF)}")
vsg = X; ve = X + 1; vstep = X + 2; vpe = X + 3; vpo = X + 4; vk = X + 5; vpl = X + 6
a(f"v_bfe_u32 v{t[1]}, v0, 1, 1"); a(f"v_cvt_f32_u32 v{vsg}, v{t[1]}")
a(f"v_mul_f32 v{vsg}, -0.5, v{vsg}"); a(f"v_add_f32 v{vsg}, {fl(0.25)}, v{vsg}")
a(f"v_and_b32 v{t[1]}, 1, v0"); a(f"v_cvt_f32_u32 v{t[1]}, v{t[1]}")
a(f"v_mul_f32 v{ve}, v{t[1]}, v{vsg}")
a(f"v_lshlrev_b32 v{t[0]}, 9, v{t[0]}"); a(f"v_add_u32 v{t[0]}, s2, v{t[0]}")
a(f"v_cvt_f32_u32 v{vstep}, v{t[0]}"); a(f"v_mul_f32 v{vstep}, {hx(f2u(-1/2048))}, v{vstep}")
a(f"v_cvt_f32_u32 v{t[2]}, v{vg_}"); a(f"v_add_f32 v{t[2]}, v{t[2]}, v{t[2]}")
a(f"v_fma_f32 v{vpe}, v{t[2]}, v{vstep}, v{ve}")
a(f"v_sub_f32 v{vpo}, v{vpe}, v{vsg}")
a(f"v_fmamk_f32 v{vpo}, v{t[2]}, {hx(f2u(-0.125))}, v{vpo}")
for lo in range(2):
    if lo:
        a(f"v_add_f32 v{vpe}, v{vpe}, v{vstep}")
        a(f"v_add_f32 v{vpo}, v{vpo}, v{vstep}"); a(f"v_add_f32 v{vpo}, {hx(f2u(-0.125))}, v{vpo}")
    a(f"v_cos_f32 v{CS+4*lo}, v{vpe}"); a(f"v_sin_f32 v{CS+4*lo+1}, v{vpe}")
    a(f"v_cos_f32 v{CS+4*lo+2}, v{vpo}"); a(f"v_sin_f32 v{CS+4*lo+3}, v{vpo}")
a("s_lshl_b32 s25, s50, 4")
a(f"v_lshlrev_b32 v{vpl}, 12, v{vg_}")
a(f"v_add_u32 v{vk}, s25, v{vc_}")
a(f"v_and_b32 v{t[3]}, 14, v{vk}"); a(f"v_lshl_or_b32 v{t[3]}, v{t[3]}, 3, v{vpl}")
a(f"v_and_b32 v{t[4]}, 31, v{vk}"); a(f"v_lshl_or_b32 v{t[3]}, v{t[4]}, 7, v{t[3]}")
a(f"v_bfe_u32 v{t[4]}, v{vk}, 5, 2"); a(f"v_lshl_or_b32 v{AP}, v{t[4]}, 2, v{t[3]}")
a(f"v_sub_u32 v{t[5]}, 0, v{vk}")
a(f"v_and_b32 v{t[4]}, 31, v{t[5]}"); a(f"v_lshl_or_b32 v{t[3]}, v{t[4]}, 7, v{vpl}")
a(f"v_and_b32 v{t[4]}, 14, v{t[5]}"); a(f"v_lshl_or_b32 v{t[3]}, v{t[4]}, 3, v{t[3]}")
a(f"v_lshrrev_b32 v{t[5]}, 3, v{t[5]}")
for tt in range(4):
    if tt: a(f"v_subrev_u32 v{t[5]}, 16, v{t[5]}")
    a(f"v_and_b32 v{t[4]}, 0x7c, v{t[5]}")
    a(f"v_xor_b32 v{AM[tt]}, v{t[4]}, v{t[3]}")
a("s_mov_b32 exec_lo, s24"); a("s_mov_b32 exec_hi, s24")
a(f"v_or_b32 v{AM[0]}, 64, v{vpl}")
a("s_mov_b64 exec, -1")
a("s_waitcnt lgkmcnt(0)")
for lo in range(2):
    for ab in range(2):
        a(f"v_mul_f32 v{t[0]}, v{GG+ab}, v{CS+4*lo}"); a(f"v_mul_f32 v{t[1]}, v{GG+ab}, v{CS+4*lo+1}")
        a(f"v_fmac_f32 v{t[0]}, v{GG+2+ab}, v{CS+4*lo+2}"); a(f"v_fmac_f32 v{t[1]}, v{GG+2+ab}, v{CS+4*lo+3}")
        a(f"v_cvt_pk_bf16_f32 v{MA+2*lo+ab}, v{t[0]}, v{t[1]}")
if LATE == 1:
    setflag(t[0], "s27", "s49")
    if "st2" in OPT: ts(1)
a("s_cmp_eq_u32 s3, 4")
a("s_cbranch_scc1 L_m0")
a("s_cmp_ge_u32 s3, 4")
a("s_cbranch_scc1 L_p3b")
TC = lambda k: BA + k if k < 8 else TCh + k - 8
TS_ = lambda k: BB + k if k < 8 else TSh + k - 8
vb = X; vo = X + 1
a(f"v_cvt_f32_u32 v{vb}, v{vn}"); a(f"v_cvt_f32_u32 v{vo}, v{vL5}")
a(f"v_mul_f32 v{vb}, {fl(1/32)}, v{vb}"); a(f"v_mul_f32 v{vo}, 4.0, v{vo}"); a(f"v_mul_f32 v{vo}, v{vb}, v{vo}")
for i in range(16):
    kc = 8 * (i // 4) + i % 4
    if kc == 0: a(f"v_mov_b32 v{t[0]}, v{vo}")
    else: a(f"v_fmamk_f32 v{t[0]}, v{vb}, {hx(f2u(float(kc)))}, v{vo}")
    a(f"v_cos_f32 v{t[1]}, v{t[0]}"); a(f"v_sin_f32 v{t[2]}, v{t[0]}")
    a(f"v_mul_f32 v{t[0]}, {fl(1/32)}, v{t[0]}")
    a(f"v_cvt_pk_bf16_f32 v{MR+i}, v{t[1]}, -v{t[2]}")
    a(f"v_cvt_pk_bf16_f32 v{MI+i}, v{t[2]}, v{t[1]}")
    a(f"v_cos_f32 v{TC(i)}, v{t[0]}"); a(f"v_sin_f32 v{TS_(i)}, v{t[0]}")
a.label("L_p3b")
if "nogb" not in OPT: a("s_barrier")
if optint("pb", 0): a(f"s_sleep {optint('pb', 0)}")
ts(11)
poll("L_poll2", vF3, t[0], "s11", "s49")
ts(12)
if "st2" in OPT: a("s_add_u32 s64, s60, s58")
if SD:
    for ab in range(2):
        a(f"s_add_u32 m0, s9, {ab*8*RS}")
        a(f"buffer_load_dwordx4 v{vN}, s[16:19], {'s10' if ab else 's8'} offen {SLF} lds")
        a(f"buffer_load_dwordx4 v{vN}, s[16:19], {'s10' if ab else 's8'} offen offset:1024 {SLF} lds")
    a("s_waitcnt vmcnt(0)")
    a("s_barrier")
    for tt in range(4):
        for lo in range(2):
            a(f"ds_read2st64_b32 {vr(SBt[tt]+2*lo,2)}, v{AP8 if lo else vS3} offset0:{2*tt} offset1:{2*tt + 8*RS//256}")
else:
  for tt in range(4):
    for lo in range(2):
        for ab in range(2):
            if UO and ab:
                a(f"buffer_load_dword v{SBt[tt]+2*lo+ab}, v{vN}, s[12:15], {'s9' if lo else 's10'} offen offset:{tt*512} {SLF}")
                continue
            a(f"buffer_load_dword v{SBt[tt]+2*lo+ab}, v{vS3}, s[16:19], {'s10' if ab else 's8'} offen offset:{tt*512+lo*2048} {SLF}")
MA0 = MR
def fin(tt):
    d = DDt[tt]
    if tt == 0:
        a("s_mov_b32 exec_lo, s24"); a("s_mov_b32 exec_hi, s24")
        for k in range(4): a(f"v_mov_b32 v{d+k}, v{DDt[4]+k}")
        a("s_mov_b64 exec, -1")
    a(f"v_cvt_pk_bf16_f32 v{d}, v{d}, v{d+1}")
    a(f"v_cvt_pk_bf16_f32 v{d+1}, v{d+2}, v{d+3}")
    if tt: a(f"v_xor_b32 v{t[tt]}, {tt<<4}, v{AP}")
    a(f"ds_write_b32 v{t[tt] if tt else AP}, v{d}")
    a(f"ds_write_b32 v{AM[tt]}, v{d+1}")
if SD:
    for tt in range(4):
        a(f"s_waitcnt lgkmcnt({6-2*tt})")
        a(f"{M16} {vr(DDt[tt],4)}, {vr(MA,4)}, {vr(SBt[tt],4)}, 0")
        if tt == 0: a(f"{M16} {vr(DDt[4],4)}, {vr(MA0,4)}, {vr(SBt[0],4)}, 0")
    for tt in range(4): fin(tt)
else:
    for tt in range(4):
        a(f"s_waitcnt vmcnt({12-4*tt})")
        a(f"{M16} {vr(DDt[tt],4)}, {vr(MA,4)}, {vr(SBt[tt],4)}, 0")
        if tt == 0: a(f"{M16} {vr(DDt[4],4)}, {vr(MA0,4)}, {vr(SBt[0],4)}, 0")
        if tt >= 1: fin(tt - 1)
    fin(3)
vst = vS3
a(f"v_bfe_u32 v{t[4]}, v{vn}, 1, 3"); a(f"v_xor_b32 v{t[4]}, v{t[4]}, v{vL5}"); a(f"v_lshlrev_b32 v{t[4]}, 4, v{t[4]}")
a(f"v_lshl_or_b32 v{t[4]}, v{vn}, 7, v{t[4]}"); a("s_lshl_b32 s26, s51, 12")
a("s_waitcnt lgkmcnt(0)")
a(f"v_add_u32 v{t[0]}, s26, v{t[4]}")
for q in range(1, 4): a(f"v_xor_b32 v{t[q]}, {32*q}, v{t[0]}")
a(f"v_lshlrev_b32 v{t[4]}, 4, v{vL5}"); a(f"v_lshl_or_b32 v{vst}, v{vn}, 6, v{t[4]}")
srd(12, 94, 2048 * 2048)
a("s_add_u32 s30, s22, 0x80000")
if "st2" in OPT: ts(3)
a("s_barrier")
if "st2" in OPT: ts(4)
a("s_cmp_ge_u32 s3, 4")
a("s_cbranch_scc1 L_hx")
for q in range(4): a(f"ds_read_b128 {vr(X+4*q,4)}, v{t[q]}")
for q in range(4):
    a(f"s_waitcnt lgkmcnt({3-q})")
    a(f"{M32} {vr(D1r,16)}, {vr(X+4*q,4)}, {vr(MR+4*q,4)}, {'0' if q == 0 else vr(D1r,16)}")
    a(f"{M32} {vr(D1i,16)}, {vr(X+4*q,4)}, {vr(MI+4*q,4)}, {'0' if q == 0 else vr(D1i,16)}")
if "nool" not in OPT:
    ta = [AP8, AMx, 2, 7]; tb = 5; tc_ = 6
    a(f"v_bfe_u32 v{t[2]}, v{vn}, 1, 2"); a(f"v_lshlrev_b32 v{t[2]}, 4, v{t[2]}"); a(f"v_lshl_or_b32 v{t[2]}, v{vn}, 6, v{t[2]}")
    a(f"v_lshl_or_b32 v{t[2]}, v{vL5}, 3, v{t[2]}"); a(f"v_add_u32 v{ta[0]}, s26, v{t[2]}")
    for c in range(1, 4): a(f"v_xor_b32 v{ta[c]}, {16*c}, v{ta[0]}")
    a(f"v_lshlrev_b32 v{tc_}, 4, v0"); a(f"v_bfe_u32 v{t[2]}, v0, 3, 2"); a(f"v_lshlrev_b32 v{t[2]}, 4, v{t[2]}")
    a(f"v_xor_b32 v{tb}, v{tc_}, v{t[2]}"); a(f"v_add_u32 v{tb}, s26, v{tb}")
def p2m(q):
    a(f"{M32} {vr(D2r,16)}, {vr(X+4*q,4)}, {vr(MR+4*q,4)}, {'0' if q == 0 else vr(D2r,16)}")
    a(f"{M32} {vr(D2i,16)}, {vr(X+4*q,4)}, {vr(MI+4*q,4)}, {'0' if q == 0 else vr(D2i,16)}")
def p2l(q):
    return [f"{M32} {vr(D2r,16)}, {vr(X+4*q,4)}, {vr(MR+4*q,4)}, {'0' if q == 0 else vr(D2r,16)}",
            f"{M32} {vr(D2i,16)}, {vr(X+4*q,4)}, {vr(MI+4*q,4)}, {'0' if q == 0 else vr(D2i,16)}"]
pend = []
for q in range(4):
    for e in range(4):
        k = 4 * q + e
        if pend and (q == 2 or (e & 1) == 1): a(pend.pop(0))
        a(f"v_mul_f32 v{t[0]}, v{D1r+k}, v{TC(k)}")
        a(f"v_mul_f32 v{t[1]}, v{D1i+k}, v{TC(k)}")
        a(f"v_fma_f32 v{t[0]}, -v{D1i+k}, v{TS_(k)}, v{t[0]}")
        a(f"v_fmac_f32 v{t[1]}, v{D1r+k}, v{TS_(k)}")
        a(f"v_cvt_pk_bf16_f32 v{X+k}, v{t[0]}, v{t[1]}")
    if q == 1: pend += p2l(0) + p2l(1)
    if q >= 2: pend += p2l(q)
for m_ in pend: a(m_)
O = MR
OL = "nool" not in OPT
if OL:
    for r, Dx in enumerate((D2r, D2i)):
        for c in range(4):
            o = O + 8 * r + 2 * c
            a(f"v_cvt_pk_bf16_f32 v{o}, v{Dx+4*c}, v{Dx+4*c+1}"); a(f"v_cvt_pk_bf16_f32 v{o+1}, v{Dx+4*c+2}, v{Dx+4*c+3}")
            a(f"ds_write_b64 v{ta[c]}, {vr(o,2)} offset:{2048*r}")
    a("s_waitcnt lgkmcnt(0)")
    for q in range(4): a(f"ds_read_b128 {vr(MI+4*q,4)}, v{tb} offset:{1024*q}")
    for q in range(4):
        a(f"s_waitcnt lgkmcnt({3-q})")
        a(f"buffer_store_dwordx4 {vr(MI+4*q,4)}, v{tc_}, s[12:15], {'s22' if q < 2 else 's30'} offen offset:{1024*(q&1)}{OSF}")
else:
  for r, (Dx, so) in enumerate(((D2r, "s22"), (D2i, "s30"))):
    for c2 in range(2):
        o = O + 8 * r + 4 * c2
        for e in range(4):
            a(f"v_cvt_pk_bf16_f32 v{o+e}, v{Dx+8*c2+2*e}, v{Dx+8*c2+2*e+1}")
        a(f"v_permlane32_swap_b32 v{o}, v{o+2}")
        a(f"v_permlane32_swap_b32 v{o+1}, v{o+3}")
        a(f"buffer_store_dwordx4 {vr(o,4)}, v{vst}, s[12:15], {so} offen offset:{32*c2}{OSF}")
a.label("L_fin")
stamp_end(32)
a.label("L_end")
a("s_endpgm")
a.label("L_hx")
a("s_lshl_b32 s26, s2, 3"); a("s_add_u32 s26, s26, s3")
a("s_cmp_lg_u32 s26, 4")
a("s_cbranch_scc1 L_fin")
a(f"s_mov_b32 s26, {hx(EP_OFF)}")
setflag(8, "s26", "s49")
a("s_branch L_fin")
a.label("L_m0")
a.hist = []
q_ = [MI + k for k in range(16)]
gaa = q_[0]; gbb = q_[1]; ph = q_[2]; st_ = q_[3]; c_ = q_[4]; s__ = q_[5]; al = q_[6]; be = q_[7]
a(f"v_and_b32 v{t[0]}, 1, v0"); a(f"v_cmp_eq_u32 vcc, 1, v{t[0]}")
a(f"v_bfe_u32 v{t[1]}, v0, 2, 2"); a(f"v_lshl_or_b32 v{t[1]}, v{t[1]}, 1, v{t[0]}")
a(f"v_cndmask_b32 v{gaa}, v{GG}, v{GG+2}, vcc"); a(f"v_cndmask_b32 v{gbb}, v{GG+1}, v{GG+3}, vcc")
a(f"v_lshlrev_b32 v{t[1]}, 8, v{t[1]}"); a(f"v_add_u32 v{t[1]}, s2, v{t[1]}")
a(f"v_cvt_f32_u32 v{st_}, v{t[1]}"); a(f"v_mul_f32 v{st_}, {hx(f2u(1/2048))}, v{st_}")
a(f"v_cvt_f32_u32 v{ph}, v{vg_}"); a(f"v_add_f32 v{ph}, v{ph}, v{ph}"); a(f"v_mul_f32 v{ph}, v{ph}, v{st_}")
a(f"v_bfe_u32 v{t[2]}, v0, 1, 1")
a(f"v_lshrrev_b32 v{t[3]}, 1, v{vg_}"); a(f"v_cmp_eq_u32 s[4:5], v{t[2]}, v{t[3]}")
a(f"v_and_b32 v{t[3]}, 1, v{vg_}"); a(f"v_cmp_eq_u32 s[6:7], 0, v{t[3]}")
a(f"v_cmp_eq_u32 s[28:29], 0, v{t[2]}")
a(f"v_cndmask_b32 v{q_[8]}, 0, v{gaa}, s[4:5]"); a(f"v_cndmask_b32 v{q_[9]}, 0, v{gbb}, s[4:5]")
a(f"v_mul_f32 v{q_[10]}, {fl(0.25)}, v{gaa}"); a(f"v_mul_f32 v{q_[11]}, {fl(0.25)}, v{gbb}")
for lo in range(2):
    if lo: a(f"v_add_f32 v{ph}, v{ph}, v{st_}")
    a(f"v_cos_f32 v{c_}, v{ph}"); a(f"v_sin_f32 v{s__}, v{ph}")
    for ab in range(2):
        if lo == 0:
            if ab == 0:
                a(f"v_cndmask_b32 v{al}, 0, v{q_[10]}, s[28:29]"); a(f"v_cndmask_b32 v{be}, 0, v{q_[11]}, s[28:29]")
            else:
                a(f"v_cndmask_b32 v{al}, v{q_[10]}, 0, s[28:29]"); a(f"v_cndmask_b32 v{be}, v{q_[11]}, 0, s[28:29]")
            a(f"v_cndmask_b32 v{al}, v{q_[8+ab]}, v{al}, s[6:7]"); a(f"v_cndmask_b32 v{be}, 0, v{be}, s[6:7]")
            a(f"v_mul_f32 v{t[0]}, v{al}, v{c_}"); a(f"v_fmac_f32 v{t[0]}, v{be}, v{s__}")
            a(f"v_mul_f32 v{t[1]}, v{be}, v{c_}"); a(f"v_fma_f32 v{t[1]}, -v{al}, v{s__}, v{t[1]}")
            a(f"v_cvt_pk_bf16_f32 v{MA0+2*lo+ab}, v{t[0]}, v{t[1]}")
        else:
            a(f"v_mul_f32 v{t[0]}, v{q_[8+ab]}, v{c_}"); a(f"v_mul_f32 v{t[1]}, v{q_[8+ab]}, v{s__}")
            a(f"v_cvt_pk_bf16_f32 v{MA0+2*lo+ab}, v{t[0]}, -v{t[1]}")
a("s_branch L_p3b")
a.label("L_el")
a.hist = []
a(f"v_lshlrev_b32 v{vEa}, 6, v{vg}"); a(f"v_add_u32 v{vEa}, s25, v{vEa}")
a("s_mov_b32 exec_lo, s52"); a("s_mov_b32 exec_hi, s52")
a(f"s_waitcnt vmcnt({0 if 'nopw' in OPT else 1})")
for ab in (1, 0):
    for cc in range(2):
        for i in range(4):
            a(f"ds_read_b64 {vr(Wi(2*ab,cc,i),2)}, v{vEa} offset:{256*cc+16*i+8*ab}")
a("s_mov_b64 exec, -1")
a("s_and_b32 s29, s2, 0xfb")
a("s_cmp_eq_u32 s29, 0")
a("s_cbranch_scc1 L_sp")
a("s_waitcnt lgkmcnt(0)")
a("s_branch L_elb")
a.label("L_sp")
a.hist = []
X = XP2
ts(3)
a("s_lshr_b32 s29, s2, 2"); a("s_lshl_b32 s10, s3, 1"); a("s_add_u32 s29, s29, s10"); a("s_sub_u32 s29, 16, s29")
for cc in range(2):
    a(f"s_sub_u32 s10, s29, {cc}"); a("s_and_b32 s10, s10, 15")
    a("s_lshr_b32 s11, s10, 1"); a("s_lshl_b32 s11, s11, 8"); a("s_and_b32 s10, s10, 1"); a("s_lshl_b32 s10, s10, 3"); a("s_add_u32 s10, s10, s11")
    a(f"v_lshlrev_b32 v{tpr[0][cc]}, 12, v{vg}"); a(f"v_add_u32 v{tpr[0][cc]}, s10, v{tpr[0][cc]}")
for k in range(8): a(f"v_mov_b32 v{TB+k}, 0")
a("s_mov_b32 exec_lo, 0x00010001"); a("s_mov_b32 exec_hi, 0x00010001")
for cc in range(2):
    for h in range(2):
        a(f"ds_read_b64 {vr(TB+4*cc+2*h,2)}, v{tpr[0][cc]} offset:{h*2048}")
a("s_mov_b32 s10, 0x00008000"); a("s_mov_b32 s11, 0x80008000")
a("s_waitcnt lgkmcnt(0)")
for k in range(8): a(f"v_xor_b32 v{TB+k}, s10, v{TB+k}")
a("s_mov_b64 exec, -1")
ts(4)
a("s_cmp_lg_u32 s2, 0")
a("s_cbranch_scc1 L_sp4")
def sp_body(mats):
    def acc(cc):
        a(f"{M16} {vr(X+8*cc,4)}, {vr(mats[cc],4)}, {vr(TB+4*cc,4)}, {vr(X+8*cc,4)}")
        a(f"{M16} {vr(X+8*cc+4,4)}, {vr(mats[cc]+4,4)}, {vr(TB+4*cc,4)}, {vr(X+8*cc+4,4)}")
    acc(0); acc(1)
    a("s_mov_b32 exec_lo, 0x00010001"); a("s_mov_b32 exec_hi, 0x00010001")
    for k in range(8): a(f"v_xor_b32 v{TB+k}, s11, v{TB+k}")
    a("s_mov_b64 exec, -1")
    wmul(0, 1); acc(0); acc(0)
    wmul(1, 1); acc(1); acc(1)
    tail()
    ts(6)
    a("s_nop 7")
    a("s_branch L_spb")
sp_body([M2, M2 + 8])
a.label("L_sp4")
a.hist = []
a("s_nop 1")
sp_body([M2 + 8, MX])

nv = (a.maxv + 1 + 7) // 8 * 8
out = """; gated_mix(spectral_gfnet A, spectral_gfnet B): out = g*irfft2(rfft2(x)*Wa) + (1-g)*irfft2(rfft2(x)*Wb)
; One persistent kernel, 256 workgroups x 8 waves, all transforms done as bf16 MFMA DFT passes (fp32 accumulate).
"""
out += f"; @launch grid=(256,1,1) block=(512,1,1) lds={LDS_BYTES}\n"
out += '.amdgcn_target "amdgcn-amd-amdhsa--gfx950"\n.text\n'
out += f".globl {NAME}\n.p2align 8\n.type {NAME},@function\n" + a.text() + ".rept 96\n    s_endpgm\n.endr\nL_code_end:\n"
out += f""".section .rodata,"a"
.p2align 6
.amdhsa_kernel {NAME}
  .amdhsa_next_free_vgpr {nv}
  .amdhsa_next_free_sgpr {min(102, a.maxs + 1)}
  .amdhsa_accum_offset {nv}
  .amdhsa_group_segment_fixed_size 0
  .amdhsa_kernarg_size 80
  .amdhsa_user_sgpr_count 2
  .amdhsa_user_sgpr_kernarg_segment_ptr 1
  .amdhsa_system_sgpr_workgroup_id_x 1
  .amdhsa_float_denorm_mode_32 3
.end_amdhsa_kernel
"""
sys.stderr.write(f"vgpr {a.maxv+1} sgpr {a.maxs+1} lines {len(a.lines)} nops {a.nops}\n")
print(out)
```
